```python
import torch

def _softmax(x, axis=-1):
    return torch.softmax(x, dim=axis)
def _gelu(x):
    return torch.nn.functional.gelu(x, approximate="tanh")
def _silu(x):
    return torch.nn.functional.silu(x)
def _sigmoid(x):
    return torch.sigmoid(x)
def _layernorm(x, axis=-1, eps=1e-5):
    m = x.mean(dim=axis, keepdim=True)
    v = x.var(dim=axis, keepdim=True, unbiased=False)
    return (x - m) / torch.sqrt(v + eps)
def _scatter_add(tgt, idx, src, axis=0):
    return tgt.clone().index_add_(axis, idx, src)
def _segment_sum(src, seg, n):
    out = torch.zeros((n,) + src.shape[1:], dtype=src.dtype)
    return out.index_add_(0, seg, src)
def _pad(x, pw):
    flat = tuple(v for pair in reversed(pw) for v in pair)
    return torch.nn.functional.pad(x, flat)

kernel_name = 'concat_heads__grouped_kv_mqa__spectral_fnet__prompt'

def setup_inputs():

    _w = (lambda a: (lambda t: t.to(torch.bfloat16) if t.is_floating_point() else t)(torch.as_tensor(a)))
    def _A_setup():
        B, S, D, H = 1, 2048, 1024, 32
        Dh = D // H
        return {
            "x": _w((lambda *s: torch.randn(*s, dtype=torch.bfloat16) * 0.05)(B, S, D)),
            "wq": _w((lambda *s: torch.randn(*s, dtype=torch.bfloat16) * 3.2)(D, H * Dh)),
            "wk": _w((lambda *s: torch.randn(*s, dtype=torch.bfloat16) * 3.2)(D, Dh)),
            "wv": _w((lambda *s: torch.randn(*s, dtype=torch.bfloat16) * 0.4)(D, Dh)),
            "wo": _w((lambda *s: torch.randn(*s, dtype=torch.bfloat16) * 0.4)(H * Dh, D)),
        }
    _A_in = _A_setup()

    def _B_setup():
        B, S, D = 1, 2048, 1024
        ns = torch.arange(S)[:, None] * torch.arange(S)[None, :]
        nd = torch.arange(D)[:, None] * torch.arange(D)[None, :]
        Ws_re = torch.cos(-2.0 * torch.pi * ns / S).to(float)
        Ws_im = torch.sin(-2.0 * torch.pi * ns / S).to(float)
        Wd_re = torch.cos(-2.0 * torch.pi * nd / D).to(float)
        Wd_im = torch.sin(-2.0 * torch.pi * nd / D).to(float)
        return {
            "x": _w((lambda *s: torch.randn(*s, dtype=torch.bfloat16) * 0.05)(B, S, D)),
            "dft_seq_re": _w(Ws_re),
            "dft_seq_im": _w(Ws_im),
            "dft_hid_re": _w(Wd_re),
            "dft_hid_im": _w(Wd_im),
        }
    _B_in = _B_setup()

    return {
        "A_x": _A_in["x"],
        "A_wq": _A_in["wq"],
        "A_wk": _A_in["wk"],
        "A_wv": _A_in["wv"],
        "A_wo": _A_in["wo"],
        "B_x": _B_in["x"],
        "B_dft_seq_re": _B_in["dft_seq_re"],
        "B_dft_seq_im": _B_in["dft_seq_im"],
        "B_dft_hid_re": _B_in["dft_hid_re"],
        "B_dft_hid_im": _B_in["dft_hid_im"],
    }

def reference(A_x, A_wq, A_wk, A_wv, A_wo, B_x, B_dft_seq_re, B_dft_seq_im, B_dft_hid_re, B_dft_hid_im):
    def _A_ref(x, wq, wk, wv, wo):
        B, S, D = x.shape
        H = 32
        Dh = D // H
        q = (lambda x, *d: x.permute(*d))((x @ wq).reshape(B, S, H, Dh), 0, 2, 1, 3)
        k = x @ wk
        v = x @ wv
        scores = torch.einsum("bhqd,bkd->bhqk", q, k) * (Dh ** -0.5)
        p = _softmax(scores, axis=-1)
        o = torch.einsum("bhqk,bkd->bhqd", p, v)
        return (lambda x, *d: x.permute(*d))(o, 0, 2, 1, 3).reshape(B, S, H * Dh) @ wo

    def _B_ref(x, dft_seq_re, dft_seq_im, dft_hid_re, dft_hid_im):
        a = torch.einsum("bsd,ed->bse", x, dft_hid_re)
        b = torch.einsum("bsd,ed->bse", x, dft_hid_im)
        y = torch.einsum("ts,bse->bte", dft_seq_re, a) - torch.einsum("ts,bse->bte", dft_seq_im, b)
        return y

    a = _A_ref(A_x, A_wq, A_wk, A_wv, A_wo)
    b = _B_ref(B_x, B_dft_seq_re, B_dft_seq_im, B_dft_hid_re, B_dft_hid_im)
    return torch.concatenate([a, b], axis=-1)
```

```python
import sys, os
PROF = os.environ.get('PROF'); NOMFMA = os.environ.get('NOMFMA'); NODMA = os.environ.get('NODMA')

KN = "concat_heads__grouped_kv_mqa__spectral_fnet__prompt"
WS_Q = 0
WS_KF = 4 << 20
WS_VF = (4 << 20) + (128 << 10)
WS_AB = 8 << 20
WS_O = 16 << 20
QSCALE = 1.4426950408889634 * 32 ** -0.5


def f32bits(x):
    import struct
    return struct.unpack("<I", struct.pack("<f", x))[0]


class Asm:
    def __init__(self):
        self.lines = []

    def __call__(self, s):
        for l in s.strip("\n").split("\n"):
            self.lines.append(l if l.endswith(":") else "    " + l.strip())

    def text(self):
        return "\n".join(self.lines) + "\n"


def srd(a, d, lo, hi, nbytes, off=0):
    if off:
        a(f"s_add_u32 s{d}, s{lo}, {off}\ns_addc_u32 s{d+1}, s{hi}, 0")
    else:
        a(f"s_mov_b32 s{d}, s{lo}\ns_mov_b32 s{d+1}, s{hi}")
    a(f"s_mov_b32 s{d+2}, {nbytes}\ns_mov_b32 s{d+3}, 0x00020000")


FR = [16, 32]
PROFOFF = {'g1': 0, 'g2': 0, 'g3': 0, 'g4': 65536, 'g5': 131072}
ACC = 64
DV = 48
RA = 128


def pipeline(a, tag, nsteps, NS, nu, dmas, reads, mfmas, nreads, kadv, switch=None):
    nd = len(dmas(0))

    def issue_all(stage):
        for g in dmas(stage % NS):
            for ins in g:
                a(ins)
        for ins in kadv:
            a(ins)

    for st in range(min(NS - 1, nsteps)):
        issue_all(st)
    a(f"s_waitcnt vmcnt({(min(NS - 1, nsteps) - 1) * nd})")
    a("s_barrier")
    if PROF:
        a("s_memtime s[56:57]\ns_memrealtime s[60:61]\ns_waitcnt lgkmcnt(0)")
    for ins in reads(0, 0, 0):
        a(ins)
    state = {"set": 0}

    def step(i, dyn=False):
        do_dma = (i + NS - 1) <= nsteps - 1
        groups = list(dmas((i + NS - 1) % NS)) if do_dma else []
        if do_dma and switch is not None:
            if dyn:
                a(switch[2])
            elif i + NS - 1 == switch[0]:
                a(switch[1])
        mcount = len(mfmas(0))
        half = mcount // 2
        nm = (nu - 1) * mcount + half
        slots = [[] for _ in range(nu * mcount)]
        for gi, g in enumerate(groups):
            slots[min(nm - 1, gi * nm // max(1, len(groups)))].extend(g)
        if do_dma:
            slots[nm - 1].extend(kadv)
        last_issued = min(i + NS - 1, nsteps - 1)
        mi = 0

        def emit_m(ms):
            nonlocal mi
            for m in ms:
                if not NOMFMA:
                    a(m)
                for ins in slots[mi]:
                    if NODMA and 'buffer_load' in ins:
                        continue
                    a(ins)
                mi += 1

        for ul in range(nu):
            cur = state["set"]
            nxt = 1 - cur
            ms = mfmas(cur)
            if ul + 1 < nu:
                rd = reads(i % NS, ul + 1, nxt)
                for ins in rd:
                    a(ins)
                a(f"s_waitcnt lgkmcnt({len(rd)})")
                emit_m(ms)
            else:
                a("s_waitcnt lgkmcnt(0)")
                emit_m(ms[:half])
                if i + 1 <= nsteps - 1:
                    a(f"s_waitcnt vmcnt({(last_issued - (i + 1)) * nd})")
                    a("s_barrier")
                    for ins in reads((i + 1) % NS, 0, nxt):
                        a(ins)
                emit_m(ms[half:])
            state["set"] = nxt

    steady_end = nsteps - NS + 1
    unroll = NS if (nu % 2 == 0 or NS % 2 == 0) else 2 * NS
    nloop = steady_end // unroll
    if nloop >= 2 and nsteps > 16:
        a(f"s_mov_b32 s19, 0")
        a(f"L_{tag}_loop:")
        for i in range(unroll):
            step(i, dyn=True)
        a(f"s_add_u32 s19, s19, 1\ns_cmp_lt_u32 s19, {nloop}\ns_cbranch_scc1 L_{tag}_loop")
        start = nloop * unroll
    else:
        start = 0
    for i in range(start, nsteps):
        step(i)
    if PROF:
        a(f'''s_memtime s[58:59]
s_memrealtime s[62:63]
s_waitcnt lgkmcnt(0)
s_sub_u32 s58, s58, s56
s_sub_u32 s62, s62, s60
s_load_dwordx2 s[56:57], s[0:1], 96
s_waitcnt lgkmcnt(0)
s_add_u32 s56, s56, {24<<20}
s_addc_u32 s57, s57, 0
v_mov_b32 v6, s58
v_mov_b32 v7, s62
s_lshl_b32 s23, s2, 6
s_lshl_b32 s58, s22, 3
s_add_u32 s23, s23, s58
s_add_u32 s23, s23, {PROFOFF[tag]}
v_mov_b32 v5, s23
global_store_dwordx2 v5, v[6:7], s[56:57]
''')


def wave_setup(a):
    a("""
v_lshrrev_b32 v1, 6, v0
s_nop 0
v_readfirstlane_b32 s22, v1
v_and_b32 v2, 63, v0
s_nop 2
s_lshl_b32 s18, s22, 10
""")


def t_dma_voff(a, vdst, n, pitch):
    a(f"""
v_lshrrev_b32 v3, 3, v2
v_lshl_add_u32 v3, v1, 3, v3
v_bfe_u32 v4, v3, 1, 3
v_and_b32 v5, 7, v2
v_xor_b32 v4, v4, v5
v_lshlrev_b32 v4, 4, v4
s_mov_b32 s23, {pitch}
v_mul_lo_u32 v3, v3, s23
v_add_u32 v{vdst}, v3, v4
""")
    for i in range(1, n):
        a(f"v_add_u32 v{vdst+i}, {i*64*pitch}, v{vdst}")


def n_dma_voff(a, vdst, n, pitch, MT):
    lpr = MT * 2 // 16
    rows = 64 // lpr
    sh = lpr.bit_length() - 1
    a(f"""
v_lshrrev_b32 v3, {sh}, v2
v_lshl_add_u32 v3, v1, {rows.bit_length()-1}, v3
v_and_b32 v5, {lpr-1}, v2
v_lshrrev_b32 v6, 2, v5
v_and_b32 v4, 3, v3
v_xor_b32 v6, v6, v4
v_and_b32 v5, 3, v5
v_lshlrev_b32 v5, 4, v5
v_lshl_add_u32 v5, v6, 6, v5
s_mov_b32 s23, {pitch}
v_mul_lo_u32 v3, v3, s23
v_add_u32 v{vdst}, v3, v5
""")
    for i in range(1, n):
        a(f"v_add_u32 v{vdst+i}, {i*8*rows*pitch}, v{vdst}")


def t_read_addr(a, vdst, nu, srow, skg2, base, NS, STAGE, stride):
    a(f"""
v_and_b32 v3, 31, v2
v_bfe_u32 v4, v3, 1, 3
v_lshrrev_b32 v5, 5, v2
v_xor_b32 v4, v4, v5
v_xor_b32 v4, s{skg2}, v4
v_add_u32 v3, s{srow}, v3
v_lshlrev_b32 v3, 7, v3
v_lshl_add_u32 v3, v4, 4, v3
""")
    for st in range(NS):
        for ul in range(nu):
            if ul == 0:
                a(f"v_add_u32 v{vdst+st*stride}, {base+st*STAGE}, v3")
            else:
                a(f"v_xor_b32 v{vdst+st*stride+ul}, {ul*32}, v{vdst+st*stride}")


def n_read_addr(a, vdst, sunit, skrow, LP, base, NS, STAGE, stride, nblk=2):
    a(f"""
v_bfe_u32 v3, v2, 2, 2
v_lshrrev_b32 v4, 5, v2
v_lshl_add_u32 v4, v4, 3, v3
s_mov_b32 s23, {LP}
v_mul_lo_u32 v4, v4, s23
v_add_u32 v4, s{skrow}, v4
v_bfe_u32 v5, v2, 4, 1
v_lshl_add_u32 v4, v5, 5, v4
v_and_b32 v5, 3, v2
v_lshl_add_u32 v4, v5, 3, v4
""")
    for b in range(nblk):
        a(f"""
s_add_u32 s23, s{sunit}, {b}
v_xor_b32 v5, s23, v3
v_lshl_add_u32 v5, v5, 6, v4
""")
        for st in range(NS):
            a(f"v_add_u32 v{vdst+st*stride+b}, {base+st*STAGE}, v5")


def gemm(a, tag, WM, WN, KS, ptype, pP, pR, nsteps, NS, opitch, scale=False, switch=None):
    assert WM * WN * KS == 8
    MT, NT = 64 * WM, 64 * WN
    PB, RB = MT * 128, NT * 128
    STAGE = PB + RB
    nu = 4 // KS
    ncP, ncR = PB // 8192, RB // 8192
    wave_setup(a)
    lw = (WM * WN).bit_length() - 1
    lm = WM.bit_length() - 1
    a(f"""
s_lshr_b32 s24, s22, {lw}
s_and_b32 s25, s22, {WM-1}
s_lshr_b32 s26, s22, {lm}
s_and_b32 s26, s26, {WN-1}
""")
    if ptype == 'T':
        t_dma_voff(a, DV, ncP, pP)
    else:
        n_dma_voff(a, DV, ncP, pP, MT)
    t_dma_voff(a, DV + ncP, ncR, pR)
    nP = nu if ptype == 'T' else 2
    stride = nP + nu
    a(f"s_mul_i32 s27, s24, {nu*2}")
    if ptype == 'T':
        a(f"s_lshl_b32 s28, s25, 6")
        t_read_addr(a, RA, nu, 28, 27, 0, NS, STAGE, stride)
    else:
        a(f"s_lshl_b32 s28, s25, 1\ns_mul_i32 s29, s24, {nu*16*MT*2}")
        n_read_addr(a, RA, 28, 29, MT * 2, 0, NS, STAGE, stride)
    a(f"s_lshl_b32 s28, s26, 6")
    t_read_addr(a, RA + nP, nu, 28, 27, PB, NS, STAGE, stride)
    for i in range(64):
        a(f"v_mov_b32 v{ACC+i}, 0")

    def dmas(st):
        r = []
        for i in range(ncP):
            r.append([f"s_add_u32 m0, s18, {st*STAGE + i*8192}", "s_nop 0",
                      f"buffer_load_dwordx4 v{DV+i}, s[4:7], s16 offen lds"])
        for i in range(ncR):
            r.append([f"s_add_u32 m0, s18, {st*STAGE + PB + i*8192}", "s_nop 0",
                      f"buffer_load_dwordx4 v{DV+ncP+i}, s[8:11], s17 offen lds"])
        return r

    def reads(st, ul, fs):
        f = FR[fs]
        r = []
        if ptype == 'T':
            for b in range(2):
                r.append(f"ds_read_b128 v[{f+4*b}:{f+4*b+3}], v{RA+st*stride+ul} offset:{b*4096}")
        else:
            for b in range(2):
                for rr in range(2):
                    r.append(f"ds_read_b64_tr_b16 v[{f+4*b+2*rr}:{f+4*b+2*rr+1}], v{RA+st*stride+b} offset:{(16*ul+4*rr)*MT*2}")
        for b in range(2):
            r.append(f"ds_read_b128 v[{f+8+4*b}:{f+8+4*b+3}], v{RA+st*stride+nP+ul} offset:{b*4096}")
        return r

    def mfmas(fs):
        f = FR[fs]
        r = []
        for nb in range(2):
            for mb in range(2):
                c = ACC + 16 * (nb * 2 + mb)
                r.append(f"v_mfma_f32_32x32x16_bf16 v[{c}:{c+15}], v[{f+4*mb}:{f+4*mb+3}], v[{f+8+4*nb}:{f+8+4*nb+3}], v[{c}:{c+15}]")
        return r

    kadv = [f"s_add_u32 s16, s16, {128 if ptype == 'T' else 64*pP}", "s_add_u32 s17, s17, 128"]
    pipeline(a, tag, nsteps, NS, nu, dmas, reads, mfmas, None, kadv, switch)

    a("s_nop 15\ns_nop 3")
    blocks = [(nb, mb) for nb in range(2) for mb in range(2)]
    if KS == 2:
        a("s_barrier")
        a(f"""
v_lshlrev_b32 v3, 4, v2
s_lshl_b32 s23, s22, 13
v_add_u32 v3, s23, v3
s_xor_b32 s23, s22, 4
s_lshl_b32 s23, s23, 13
v_lshlrev_b32 v4, 4, v2
v_add_u32 v4, s23, v4
s_cmp_eq_u32 s24, 0
s_cbranch_scc1 L_{tag}_x0
""")
        for j in range(8):
            a(f"ds_write_b128 v3, v[{ACC+4*j}:{ACC+4*j+3}] offset:{j*1024}")
        for j in range(32):
            a(f"v_mov_b32 v{ACC+j}, v{ACC+32+j}")
        a(f"s_branch L_{tag}_x1\nL_{tag}_x0:")
        for j in range(8):
            a(f"ds_write_b128 v3, v[{ACC+32+4*j}:{ACC+32+4*j+3}] offset:{j*1024}")
        a(f"L_{tag}_x1:\ns_waitcnt lgkmcnt(0)\ns_barrier")
        for j in range(8):
            a(f"ds_read_b128 v[{ACC+32+4*j}:{ACC+32+4*j+3}], v4 offset:{j*1024}")
        for j in range(8):
            a(f"s_waitcnt lgkmcnt({7-j})")
            for r in range(4):
                a(f"v_add_f32 v{ACC+4*j+r}, v{ACC+4*j+r}, v{ACC+32+4*j+r}")
        blocks = [(0, 0), (0, 1)]
    a(f"""
s_lshl_b32 s23, s26, 6
v_and_b32 v3, 31, v2
v_add_u32 v3, s23, v3
""")
    if KS == 2:
        a("s_lshl_b32 s23, s24, 5\nv_add_u32 v3, s23, v3")
    a(f"""
s_mov_b32 s23, {opitch}
v_mul_lo_u32 v3, v3, s23
v_lshrrev_b32 v4, 5, v2
v_lshl_add_u32 v3, v4, 4, v3
s_lshl_b32 s23, s25, 7
s_add_u32 s23, s23, s21
v_add_u32 v3, s23, v3
v_add_u32 v4, {32*opitch}, v3
""")
    for bi, (nb, mb) in enumerate(blocks):
        c = ACC + 16 * (nb * 2 + mb)
        t = 16 + 8 * (bi % 4)
        if scale:
            for r in range(16):
                a(f"v_mul_f32 v{c+r}, s20, v{c+r}")
        for r in range(8):
            a(f"v_cvt_pk_bf16_f32 v{t+r}, v{c+2*r}, v{c+2*r+1}")
        a("s_nop 1")
        for p in range(2):
            a(f"v_permlane32_swap_b32 v{t+4*p}, v{t+4*p+2}\nv_permlane32_swap_b32 v{t+4*p+1}, v{t+4*p+3}")
        for p in range(2):
            a(f"buffer_store_dwordx4 v[{t+4*p}:{t+4*p+3}], v{3+nb}, s[12:15], 0 offen offset:{mb*64+p*32}")


def gemm_kv(a, tag, NS=3):
    PB, RB = 8192, 32768
    STAGE = PB + RB
    nu = 4
    a(f"""
v_and_b32 v3, 3, v1
v_lshlrev_b32 v3, 10, v3
v_lshl_add_u32 v{DV}, v2, 4, v3
""")
    t_dma_voff(a, DV + 1, 4, 2048)
    stride = 1 + nu
    a(f"""
v_bfe_u32 v3, v2, 2, 2
v_lshrrev_b32 v4, 5, v2
v_lshl_add_u32 v4, v4, 3, v3
v_lshlrev_b32 v4, 6, v4
v_bfe_u32 v5, v2, 4, 1
v_lshl_add_u32 v4, v5, 5, v4
v_and_b32 v5, 3, v2
v_lshl_add_u32 v4, v5, 3, v4
""")
    for st in range(NS):
        a(f"v_add_u32 v{RA+st*stride}, {st*STAGE}, v4")
    a("s_mov_b32 s27, 0\ns_lshl_b32 s28, s22, 5")
    t_read_addr(a, RA + 1, nu, 28, 27, PB, NS, STAGE, stride)
    for i in range(32):
        a(f"v_mov_b32 v{ACC+i}, 0")

    def dmas(st):
        r = [[f"s_add_u32 m0, s18, {st*STAGE}", "s_nop 0", f"buffer_load_dwordx4 v{DV}, s[4:7], s16 offen lds"]]
        for i in range(4):
            r.append([f"s_add_u32 m0, s18, {st*STAGE + PB + i*8192}", "s_nop 0",
                      f"buffer_load_dwordx4 v{DV+1+i}, s[8:11], s17 offen lds"])
        return r

    def reads(st, ul, fs):
        f = FR[fs]
        r = []
        for b in range(2):
            for rr in range(2):
                r.append(f"ds_read_b64_tr_b16 v[{f+4*b+2*rr}:{f+4*b+2*rr+1}], v{RA+st*stride} offset:{b*4096+(16*ul+4*rr)*64}")
        r.append(f"ds_read_b128 v[{f+8}:{f+11}], v{RA+st*stride+1+ul}")
        return r

    def mfmas(fs):
        f = FR[fs]
        return [f"v_mfma_f32_32x32x16_bf16 v[{ACC}:{ACC+15}], v[{f}:{f+3}], v[{f+8}:{f+11}], v[{ACC}:{ACC+15}]",
                f"v_mfma_f32_32x32x16_bf16 v[{ACC+16}:{ACC+31}], v[{f+8}:{f+11}], v[{f+4}:{f+7}], v[{ACC+16}:{ACC+31}]"]

    kadv = ["s_add_u32 s16, s16, 4096", "s_add_u32 s17, s17, 128"]
    pipeline(a, tag, 16, NS, nu, dmas, reads, mfmas, None, kadv)
    a("s_nop 15\ns_nop 3")
    a(f"""
s_add_u32 s23, s21, s22
s_lshl_b32 s23, s23, 12
v_lshlrev_b32 v3, 4, v2
v_add_u32 v3, s23, v3
v_add_u32 v4, {WS_KF+2048}, v3
v_add_u32 v3, {WS_KF}, v3
""")
    for r in range(8):
        a(f"v_cvt_pk_bf16_f32 v{16+r}, v{ACC+2*r}, v{ACC+2*r+1}")
    for r in range(8):
        a(f"v_cvt_pk_bf16_f32 v{24+r}, v{ACC+16+2*r}, v{ACC+16+2*r+1}")
    for p in range(2):
        a(f"v_permlane32_swap_b32 v{16+4*p}, v{16+4*p+2}\nv_permlane32_swap_b32 v{16+4*p+1}, v{16+4*p+3}")
    for p in range(2):
        a(f"buffer_store_dwordx4 v[{16+4*p}:{16+4*p+3}], v3, s[12:15], 0 offen offset:{p*1024}")
        a(f"buffer_store_dwordx4 v[{24+4*p}:{24+4*p+3}], v4, s[12:15], 0 offen offset:{p*1024}")


def kernel_header(a, name):
    a.lines.append(f".globl {name}\n.p2align 8\n.type {name},@function\n{name}:")


def kernel_desc(name, vgpr, sgpr=64):
    return f""".amdhsa_kernel {name}
  .amdhsa_next_free_vgpr {vgpr}
  .amdhsa_next_free_sgpr {sgpr}
  .amdhsa_accum_offset {(vgpr+3)//4*4}
  .amdhsa_group_segment_fixed_size 0
  .amdhsa_kernarg_size 104
  .amdhsa_user_sgpr_count 2
  .amdhsa_user_sgpr_kernarg_segment_ptr 1
  .amdhsa_system_sgpr_workgroup_id_x 1
.end_amdhsa_kernel
"""


WS_BYTES = 32 << 20


def k1(a):
    kernel_header(a, "k1_kernel")
    a("""
s_cmp_ge_u32 s2, 200
s_cbranch_scc1 L_k1_end
s_load_dwordx8 s[32:39], s[0:1], 0
s_load_dwordx2 s[40:41], s[0:1], 40
s_load_dwordx4 s[44:47], s[0:1], 64
s_load_dwordx2 s[48:49], s[0:1], 96
s_and_b32 s30, s2, 7
s_lshr_b32 s31, s2, 3
s_waitcnt lgkmcnt(0)
""")
    srd(a, 12, 48, 49, WS_BYTES)
    a("""
s_cmp_ge_u32 s2, 192
s_cbranch_scc1 L_k1_kv
s_cmp_ge_u32 s2, 128
s_cbranch_scc1 L_k1_q
""")
    a("""
s_and_b32 s50, s30, 3
s_lshl_b32 s50, s50, 2
s_and_b32 s51, s31, 3
s_add_u32 s50, s50, s51
s_lshr_b32 s51, s30, 2
s_lshl_b32 s51, s51, 2
s_lshr_b32 s52, s31, 2
s_add_u32 s51, s51, s52
""")
    srd(a, 4, 40, 41, 2048 * 2048)
    a(f"""
s_cmp_ge_u32 s51, 4
s_cselect_b32 s8, s46, s44
s_cselect_b32 s9, s47, s45
s_cselect_b32 s20, {f32bits(-1.0)}, 1.0
s_mov_b32 s10, {1024*2048}
s_mov_b32 s11, 0x00020000
s_lshl_b32 s16, s50, 18
s_and_b32 s17, s51, 3
s_lshl_b32 s17, s17, 19
s_lshl_b32 s21, s51, 20
s_lshl_b32 s23, s50, 8
s_add_u32 s21, s21, s23
s_add_u32 s21, s21, {WS_AB}
""")
    gemm(a, "g3", 2, 4, 1, 'T', 2048, 2048, 16, 3, 4096, scale=True)
    a("s_endpgm")
    a(f"""
L_k1_q:
s_sub_u32 s31, s31, 16
s_and_b32 s50, s30, 1
s_lshl_b32 s50, s50, 2
s_and_b32 s51, s31, 3
s_add_u32 s50, s50, s51
s_lshr_b32 s51, s30, 1
s_lshl_b32 s51, s51, 1
s_lshr_b32 s52, s31, 2
s_add_u32 s51, s51, s52
""")
    srd(a, 4, 34, 35, 1024 * 2048)
    srd(a, 8, 32, 33, 2048 * 2048)
    a(f"""
s_mov_b32 s20, {f32bits(QSCALE)}
s_lshl_b32 s16, s50, 8
s_lshl_b32 s17, s51, 19
s_add_u32 s21, s17, s16
""")
    gemm(a, "g1", 2, 4, 1, 'N', 2048, 2048, 16, 3, 2048, scale=True)
    a("s_endpgm")
    a("L_k1_kv:")
    wave_setup(a)
    a(f"""
s_cmp_ge_u32 s22, 4
s_cselect_b32 s4, s38, s36
s_cselect_b32 s5, s39, s37
s_mov_b32 s6, 65536
s_mov_b32 s7, 0x00020000
""")
    srd(a, 8, 32, 33, 2048 * 2048)
    a("""
s_mov_b32 s16, 0
s_lshl_b32 s17, s30, 19
s_lshl_b32 s21, s30, 3
""")
    gemm_kv(a, "g2")
    a("L_k1_end:\ns_endpgm")


def k3(a):
    kernel_header(a, "k3_kernel")
    a("""
s_cmp_ge_u32 s2, 128
s_cbranch_scc1 L_k3_end
s_load_dwordx2 s[32:33], s[0:1], 32
s_load_dwordx2 s[34:35], s[0:1], 80
s_load_dwordx2 s[48:49], s[0:1], 96
s_and_b32 s30, s2, 7
s_lshr_b32 s31, s2, 3
s_and_b32 s50, s30, 1
s_lshl_b32 s50, s50, 2
s_and_b32 s51, s31, 3
s_add_u32 s50, s50, s51
s_lshr_b32 s51, s30, 1
s_lshl_b32 s51, s51, 2
s_lshr_b32 s52, s31, 2
s_add_u32 s51, s51, s52
s_waitcnt lgkmcnt(0)
""")
    srd(a, 4, 32, 33, 1024 * 2048)
    srd(a, 8, 48, 49, 2048 * 2048, WS_O)
    srd(a, 12, 34, 35, 2048 * 4096)
    a("""
s_lshl_b32 s16, s50, 8
s_lshl_b32 s17, s51, 18
s_lshl_b32 s21, s51, 19
s_add_u32 s21, s21, s16
""")
    gemm(a, "g5", 2, 2, 2, 'N', 2048, 2048, 16, 4, 4096)
    a("L_k3_end:\ns_endpgm")


def g4(a):
    a("""
s_and_b32 s50, s30, 1
s_lshl_b32 s50, s50, 2
s_and_b32 s51, s31, 3
s_add_u32 s50, s50, s51
s_lshr_b32 s51, s30, 1
s_lshl_b32 s51, s51, 2
s_lshr_b32 s52, s31, 2
s_add_u32 s51, s51, s52
""")
    if os.environ.get('SAMETILE') == '1':
        a("s_mov_b32 s50, 0\ns_mov_b32 s51, 0")
    if os.environ.get('SAMETILE') == '2':
        a("s_and_b32 s50, s30, 7\ns_mov_b32 s51, s30")
    if os.environ.get('SAMETILE') == '3':
        a("s_and_b32 s50, s2, 7\ns_lshr_b32 s51, s2, 3")
    srd(a, 4, 48, 49, 2048 * 4096, WS_AB)
    srd(a, 8, 32, 33, 2048 * 4096)
    srd(a, 12, 36, 37, 2048 * 4096)
    a("""
s_lshl_b32 s16, s50, 19
s_lshl_b32 s17, s51, 19
s_lshl_b32 s21, s50, 8
s_add_u32 s21, s21, s17
s_add_u32 s21, s21, 2048
s_add_u32 s53, s17, 4096
""")
    sw = f"""
s_mov_b32 s8, s34
s_mov_b32 s9, s35
s_sub_u32 s17, s17, 4096
s_add_u32 s16, s16, {1024*4096 - 4096}
s_mov_b32 s53, -1
"""
    uid = [0]

    class Dyn(str):
        pass
    dyn = f"""
s_cmp_eq_u32 s17, s53
s_cselect_b32 s8, s34, s8
s_cselect_b32 s9, s35, s9
s_cselect_b32 s23, 4096, 0
s_cselect_b32 s54, {1024*4096 - 4096}, 0
s_cselect_b32 s53, -1, s53
s_sub_u32 s17, s17, s23
s_add_u32 s16, s16, s54
"""
    gemm(a, "g4", 2, 2, 2, 'T', 4096, 4096, 64, 4, 4096, switch=(32, sw, dyn))


def k2_test(a):
    kernel_header(a, "k2_kernel")
    a("""
s_cmp_ge_u32 s2, 128
s_cbranch_scc1 L_k2_end
s_load_dwordx4 s[32:35], s[0:1], 48
s_load_dwordx2 s[36:37], s[0:1], 80
s_load_dwordx2 s[48:49], s[0:1], 96
s_and_b32 s30, s2, 7
s_lshr_b32 s31, s2, 3
s_waitcnt lgkmcnt(0)
""")
    g4(a)
    a("L_k2_end:\ns_endpgm")


TPS = 4
ASTAGE = 2 * TPS * 4096
ANS = 3
AX = ANS * ASTAGE
Q0, QN, KF_, VF_, P_, ONES, LA, LB, NEGM, SX, SY, OA, OB = 16, 24, 32, 40, 48, 56, 60, 64, 72, 88, 104, 120, 136
ST, KT, VT, PT = 152, 168, 176, 184
THR1 = 2.0 ** 40
THR2 = 2.0 ** 120


def r(b, n):
    return f"v[{b}:{b+n-1}]"


def mf32(d, a_, b_, c):
    return f"v_mfma_f32_32x32x16_bf16 {r(d,16)}, {r(a_,4)}, {r(b_,4)}, {r(c,16) if isinstance(c,int) else c}"


def mf16(d, a_, b_, c):
    return f"v_mfma_f32_16x16x32_bf16 {r(d,4)}, {r(a_,4)}, {r(b_,4)}, {r(c,4)}"


def attn_dma(a, i):
    a(f"s_add_u32 m0, s17, {i*8192}\ns_nop 0\nbuffer_load_dwordx4 v{12+i}, s[12:15], s16 offen lds")


def attn_dma_adv(a):
    a(f"""
s_add_u32 s16, s16, {TPS*4096}
s_and_b32 s16, s16, {131072-1}
s_add_u32 s17, s17, {ASTAGE}
s_sub_u32 s30, s17, {ANS*ASTAGE}
s_cmp_ge_u32 s17, {ANS*ASTAGE}
s_cselect_b32 s17, s30, s17
""")


def attn_tile(a, tt, X, Y, Oc, Od, lc, ld):
    def rd(dst, t2, part):
        v = 10 if t2 < TPS else 11
        a(f"ds_read_b128 {r(dst,4)}, v{v} offset:{(t2 % TPS)*4096 + part*1024}")
    bar = (tt == TPS - 2)
    if bar:
        a("s_waitcnt vmcnt(0)\ns_barrier")
    E = lambda i: a(f"v_exp_f32 v{X+i}, v{X+i}")
    C = lambda i: a(f"v_cvt_pk_bf16_f32 v{P_+i}, v{X+2*i}, v{X+2*i+1}")
    a("s_waitcnt lgkmcnt(3)")
    a(mf32(Y, KF_, Q0, NEGM))
    rd(KF_, tt + 2, 0)
    for i in range(4): E(i)
    if bar: attn_dma(a, 0)
    E(4); C(0); E(5); C(1); E(6); E(7)
    a("s_waitcnt lgkmcnt(3)")
    a(mf32(Y, KF_ + 4, Q0 + 4, Y))
    rd(KF_ + 4, tt + 2, 1)
    C(2); C(3)
    if bar: attn_dma(a, 1)
    E(8); E(9)
    a("s_waitcnt lgkmcnt(3)")
    a(mf32(Od, VF_, P_, Oc))
    rd(VF_, tt + 1, 2)
    E(10); E(11); E(12); C(4)
    a(mf16(ld, ONES, P_, lc))
    if bar: attn_dma(a, 2)
    E(13); C(5); E(14); E(15); C(6)
    if bar:
        attn_dma(a, 3)
        attn_dma_adv(a)
    else:
        a("s_nop 0")
    C(7)
    a("s_waitcnt lgkmcnt(3)\ns_nop 0")
    a(mf32(Od, VF_ + 4, P_ + 4, Od))
    rd(VF_ + 4, tt + 1, 3)
    a(mf16(ld, ONES, P_ + 4, ld))


def attn_slow(a, tag, Oold, Onew, lold, lnew, Snext):
    a(f"L_{tag}_slow:")
    a("s_nop 15")
    a(f"v_cmp_nlt_f32 vcc, v{lnew}, s29\ns_nop 4\ns_cbranch_vccnz L_{tag}_heavy")
    a(f"""
v_frexp_exp_i32_f32 v3, v{lnew}
v_cvt_f32_i32 v4, v3
v_sub_u32 v3, 0, v3
""")
    for i in range(16): a(f"v_ldexp_f32 v{Onew+i}, v{Onew+i}, v3")
    for i in range(4): a(f"v_ldexp_f32 v{lnew+i}, v{lnew+i}, v3")
    for i in range(16): a(f"v_sub_f32 v{NEGM+i}, v{NEGM+i}, v4")
    for i in range(16): a(f"v_sub_f32 v{Snext+i}, v{Snext+i}, v4")
    a(f"s_nop 1\ns_branch L_{tag}_ret")
    a(f"L_{tag}_heavy:")
    a(f"s_waitcnt lgkmcnt(0)\nv_log_f32 v5, v{lold}\nv_mov_b32 v6, v10\ns_mov_b32 s30, 0")
    a(f"L_{tag}_h1:")
    a(f"ds_read_b128 {r(KT,4)}, v6\nds_read_b128 {r(KT+4,4)}, v6 offset:1024\ns_waitcnt lgkmcnt(0)")
    a(mf32(ST, KT, Q0, NEGM)); a(mf32(ST, KT + 4, Q0 + 4, ST))
    a("s_nop 15")
    for i in range(8): a(f"v_max3_f32 v5, v{ST+2*i}, v{ST+2*i+1}, v5")
    a(f"v_add_u32 v6, 4096, v6\ns_add_u32 s30, s30, 1\ns_cmp_lt_u32 s30, {TPS}\ns_cbranch_scc1 L_{tag}_h1")
    a(f"""
v_mov_b32 v6, v5
s_nop 1
v_permlane32_swap_b32 v5, v6
s_nop 1
v_max_f32 v5, v5, v6
v_ceil_f32 v4, v5
v_cvt_i32_f32 v3, v4
v_sub_u32 v3, 0, v3
""")
    for i in range(16): a(f"v_ldexp_f32 v{Onew+i}, v{Oold+i}, v3")
    for i in range(4): a(f"v_ldexp_f32 v{lnew+i}, v{lold+i}, v3")
    for i in range(16): a(f"v_sub_f32 v{NEGM+i}, v{NEGM+i}, v4")
    for i in range(16): a(f"v_sub_f32 v{Snext+i}, v{Snext+i}, v4")
    a(f"v_mov_b32 v6, v10\ns_mov_b32 s30, 0")
    a(f"L_{tag}_h2:")
    a(f"ds_read_b128 {r(KT,4)}, v6\nds_read_b128 {r(KT+4,4)}, v6 offset:1024\nds_read_b128 {r(VT,4)}, v6 offset:2048\nds_read_b128 {r(VT+4,4)}, v6 offset:3072\ns_waitcnt lgkmcnt(0)")
    a(mf32(ST, KT, Q0, NEGM)); a(mf32(ST, KT + 4, Q0 + 4, ST))
    a("s_nop 15")
    for i in range(16): a(f"v_exp_f32 v{ST+i}, v{ST+i}")
    a("s_nop 0")
    for i in range(8): a(f"v_cvt_pk_bf16_f32 v{PT+i}, v{ST+2*i}, v{ST+2*i+1}")
    a("s_nop 1")
    a(mf32(Onew, VT, PT, Onew)); a(mf32(Onew, VT + 4, PT + 4, Onew))
    a(mf16(lnew, ONES, PT, lnew)); a(mf16(lnew, ONES, PT + 4, lnew))
    a(f"v_add_u32 v6, 4096, v6\ns_add_u32 s30, s30, 1\ns_cmp_lt_u32 s30, {TPS}\ns_cbranch_scc1 L_{tag}_h2")
    a(f"s_nop 7\ns_branch L_{tag}_ret")


def attention(a, tag):
    wave_setup(a)
    a(f"""
s_mov_b32 s28, {f32bits(THR1)}
s_mov_b32 s29, {f32bits(THR2)}
v_lshlrev_b32 v3, 4, v2
v_lshl_add_u32 v12, v1, 10, v3
v_add_u32 v12, {WS_KF}, v12
v_add_u32 v13, 8192, v12
v_add_u32 v14, 131072, v12
v_add_u32 v15, {131072+8192}, v12
v_lshrrev_b32 v4, 2, v1
v_lshl_add_u32 v9, v4, 14, v3
v_mov_b32 v10, v9
v_add_u32 v11, {ASTAGE}, v9
s_mov_b32 s24, {ASTAGE}
s_mov_b32 s16, 0
s_mov_b32 s17, s18
""")
    a(f"""
v_and_b32 v4, 3, v1
v_and_b32 v5, 31, v2
v_lshl_add_u32 v4, v4, 5, v5
v_lshrrev_b32 v5, 5, v2
v_lshlrev_b32 v5, 4, v5
v_lshl_add_u32 v8, v4, 6, v5
""")
    a(f"""
v_lshrrev_b32 v4, 2, v2
v_lshrrev_b32 v5, 4, v2
v_xor_b32 v4, v4, v5
v_and_b32 v4, 1, v4
v_cmp_eq_u32 vcc, 0, v4
v_mov_b32 v5, 0x3f803f80
s_nop 1
v_cndmask_b32 v{ONES}, 0, v5, vcc
v_mov_b32 v{ONES+1}, v{ONES}
v_mov_b32 v{ONES+2}, v{ONES}
v_mov_b32 v{ONES+3}, v{ONES}
""")
    a(f"buffer_load_dwordx4 {r(QN,4)}, v8, s[12:15], s26 offen\nbuffer_load_dwordx4 {r(QN+4,4)}, v8, s[12:15], s26 offen offset:32")
    for st in range(2):
        for i in range(4): attn_dma(a, i)
        attn_dma_adv(a)
    a("s_waitcnt vmcnt(4)\ns_barrier")
    a(f"L_{tag}_pass:")
    for i in range(8): a(f"v_mov_b32 v{Q0+i}, v{QN+i}")
    a(f"ds_read_b128 {r(KF_,4)}, v10\nds_read_b128 {r(KF_+4,4)}, v10 offset:1024")
    a(f"s_add_u32 s31, s26, 8192")
    a(f"buffer_load_dwordx4 {r(QN,4)}, v8, s[12:15], s31 offen\nbuffer_load_dwordx4 {r(QN+4,4)}, v8, s[12:15], s31 offen offset:32")
    for i in range(16): a(f"v_mov_b32 v{OB+i}, 0")
    for i in range(4): a(f"v_mov_b32 v{LB+i}, 0")
    a("s_waitcnt lgkmcnt(0)")
    a(mf32(SX, KF_, Q0, "0")); a(mf32(SX, KF_ + 4, Q0 + 4, SX))
    a(f"ds_read_b128 {r(KF_,4)}, v10 offset:4096\nds_read_b128 {r(KF_+4,4)}, v10 offset:{4096+1024}")
    a(f"ds_read_b128 {r(VF_,4)}, v10 offset:2048\nds_read_b128 {r(VF_+4,4)}, v10 offset:3072")
    a("s_nop 11")
    a(f"v_max3_f32 v5, v{SX}, v{SX+1}, v{SX+2}")
    for i in range(6): a(f"v_max3_f32 v5, v{SX+3+2*i}, v{SX+4+2*i}, v5")
    a(f"""
v_max_f32 v5, v{SX+15}, v5
v_mov_b32 v6, v5
s_nop 1
v_permlane32_swap_b32 v5, v6
s_nop 1
v_max_f32 v5, v5, v6
""")
    for i in range(16): a(f"v_sub_f32 v{NEGM+i}, 0, v5")
    for i in range(16): a(f"v_sub_f32 v{SX+i}, v{SX+i}, v5")
    a("s_mov_b32 s19, 0")
    a(f"L_{tag}_loop:")
    for par in range(2):
        Oold, Onew, lold, lnew = (OB, OA, LB, LA) if par == 0 else (OA, OB, LA, LB)
        for tt in range(TPS):
            X, Y = (SX, SY) if tt % 2 == 0 else (SY, SX)
            attn_tile(a, tt, X, Y, Oold if tt == 0 else Onew, Onew, lold if tt == 0 else lnew, lnew)
        a(f"""
s_add_u32 s24, s24, {ASTAGE}
s_cmp_ge_u32 s24, {ANS*ASTAGE}
s_cselect_b32 s24, 0, s24
s_nop 4
v_cmp_nlt_f32 vcc, v{lnew}, s28
s_nop 4
s_cbranch_vccnz L_{tag}{par}_slow
L_{tag}{par}_ret:
v_mov_b32 v10, v11
v_add_u32 v11, s24, v9
""")
    a(f"s_add_u32 s19, s19, 1\ns_cmp_lt_u32 s19, 4\ns_cbranch_scc1 L_{tag}_loop")
    a(f"""
s_nop 7
v_lshlrev_b32 v3, 4, v2
s_and_b32 s30, s22, 3
s_mulk_i32 s30, 5120
s_add_u32 s30, s30, {AX}
v_add_u32 v3, s30, v3
s_cmp_ge_u32 s22, 4
s_cbranch_scc0 L_{tag}_fin0
v_mov_b32 v{LB+1}, v{NEGM}
""")
    for j in range(4): a(f"ds_write_b128 v3, {r(OB+4*j,4)} offset:{j*1024}")
    a(f"ds_write_b128 v3, {r(LB,4)} offset:4096")
    a(f"s_waitcnt lgkmcnt(0)\ns_barrier\ns_branch L_{tag}_fin1")
    a(f"L_{tag}_fin0:\ns_barrier")
    a(f"ds_read_b128 {r(LA,4)}, v3 offset:4096")
    for j in range(4): a(f"ds_read_b128 {r(OA+4*j,4)}, v3 offset:{j*1024}")
    a(f"""
s_waitcnt lgkmcnt(4)
v_min_f32 v4, v{NEGM}, v{LA+1}
v_sub_f32 v5, v4, v{NEGM}
v_sub_f32 v6, v4, v{LA+1}
v_exp_f32 v5, v5
v_exp_f32 v6, v6
s_nop 0
v_mul_f32 v7, v5, v{LB}
v_fmac_f32 v7, v6, v{LA}
v_rcp_f32 v7, v7
s_nop 0
v_mul_f32 v5, v5, v7
v_mul_f32 v6, v6, v7
s_waitcnt lgkmcnt(0)
""")
    for i in range(16):
        a(f"v_mul_f32 v{OB+i}, v5, v{OB+i}\nv_fmac_f32 v{OB+i}, v6, v{OA+i}")
    for i in range(8): a(f"v_cvt_pk_bf16_f32 v{P_+i}, v{OB+2*i}, v{OB+2*i+1}")
    a("s_nop 1")
    for p in range(2):
        a(f"v_permlane32_swap_b32 v{P_+4*p}, v{P_+4*p+2}\nv_permlane32_swap_b32 v{P_+4*p+1}, v{P_+4*p+3}")
    a(f"s_add_u32 s31, s26, {WS_O}")
    for p in range(2):
        a(f"buffer_store_dwordx4 {r(P_+4*p,4)}, v8, s[12:15], s31 offen offset:{p*32}")
    a(f"L_{tag}_fin1:")
    a(f"""
s_add_u32 s26, s26, 8192
s_sub_u32 s27, s27, 1
s_cmp_lg_u32 s27, 0
s_waitcnt lgkmcnt(0)
s_cbranch_scc1 L_{tag}_pass
s_endpgm
""")
    attn_slow(a, f"{tag}0", OB, OA, LB, LA, SX)
    attn_slow(a, f"{tag}1", OA, OB, LA, LB, SX)


def k2(a):
    kernel_header(a, "k2_kernel")
    a("""
s_cmp_ge_u32 s2, 256
s_cbranch_scc1 L_k2_end
s_load_dwordx4 s[32:35], s[0:1], 48
s_load_dwordx2 s[36:37], s[0:1], 80
s_load_dwordx2 s[48:49], s[0:1], 96
s_and_b32 s30, s2, 7
s_lshr_b32 s31, s2, 3
s_waitcnt lgkmcnt(0)
s_cmp_ge_u32 s2, 128
s_cbranch_scc1 L_k2_a
""")
    g4(a)
    a("""
s_waitcnt vmcnt(0) lgkmcnt(0)
s_barrier
s_lshl_b32 s26, s2, 13
s_mov_b32 s27, 1
s_branch L_k2_attn
L_k2_a:
s_sub_u32 s26, s2, 128
s_mul_i32 s26, s26, 3
s_add_u32 s26, s26, 128
s_lshl_b32 s26, s26, 13
s_mov_b32 s27, 3
L_k2_attn:
""")
    srd(a, 12, 48, 49, WS_BYTES)
    attention(a, "at")
    a("L_k2_end:\ns_endpgm")


def main():
    a = Asm()
    hdr = open("cdna_kernels/" + KN + ".s.ref").read().split("; Override launch")[0]
    launches = """; @launch kernel=k1_kernel grid=(200,1,1) block=(512,1,1) lds=147456
; @launch kernel=k2_kernel grid=(256,1,1) block=(512,1,1) lds=131072
; @launch kernel=k3_kernel grid=(128,1,1) block=(512,1,1) lds=131072
"""
    k1(a)
    k2(a)
    k3(a)
    out = hdr + launches + '.amdgcn_target "amdgcn-amd-amdhsa--gfx950"\n.text\n' + a.text()
    out += '.section .rodata,"a"\n.p2align 6\n' + kernel_desc("k1_kernel", 160) + ".p2align 6\n" + kernel_desc("k2_kernel", 200) + ".p2align 6\n" + kernel_desc("k3_kernel", 160)
    open(sys.argv[1] if len(sys.argv) > 1 else "out.s", "w").write(out)


if __name__ == "__main__":
    main()
```

```python
import sys, os
PROF = os.environ.get('PROF'); NOMFMA = os.environ.get('NOMFMA'); NODMA = os.environ.get('NODMA')

KN = "concat_heads__grouped_kv_mqa__spectral_fnet__prompt"
WS_Q = 0
WS_KF = 4 << 20
WS_VF = (4 << 20) + (128 << 10)
WS_AB = 8 << 20
WS_O = 16 << 20
WS_XP = 26 << 20
WS_XM = 29 << 20
WS_AT = 32 << 20
WS_BT = 34 << 20
WS_FLAG = 36 << 20
ATP = 2176
QSCALE = 1.4426950408889634 * 32 ** -0.5


def f32bits(x):
    import struct
    return struct.unpack("<I", struct.pack("<f", x))[0]


class Asm:
    def __init__(self):
        self.lines = []

    def __call__(self, s):
        for l in s.strip("\n").split("\n"):
            self.lines.append(l if l.endswith(":") else "    " + l.strip())

    def text(self):
        return "\n".join(self.lines) + "\n"


def srd(a, d, lo, hi, nbytes, off=0):
    if off:
        a(f"s_add_u32 s{d}, s{lo}, {off}\ns_addc_u32 s{d+1}, s{hi}, 0")
    else:
        a(f"s_mov_b32 s{d}, s{lo}\ns_mov_b32 s{d+1}, s{hi}")
    a(f"s_mov_b32 s{d+2}, {nbytes}\ns_mov_b32 s{d+3}, 0x00020000")


FR = [16, 32]
PROFOFF = {'g1': 0, 'g2': 0, 'g3': 0, 'g4': 65536, 'g5': 131072, 's1': 65536, 's2': 131072}
ACC = 64
DV = 48
RA = 128


def pipeline(a, tag, nsteps, NS, nu, dmas, reads, mfmas, nreads, kadv, switch=None, pre=None, setup=None, xtra=0):
    nd = len(dmas(0))

    def issue_all(stage):
        for g in dmas(stage % NS):
            for ins in g:
                a(ins)
        for ins in kadv:
            a(ins)

    for st in range(min(NS - 1, nsteps)):
        issue_all(st)
    if setup is not None:
        setup()
    if pre is not None:
        pre()
        a("s_waitcnt vmcnt(0)")
    else:
        a(f"s_waitcnt vmcnt({(min(NS - 1, nsteps) - 1) * nd + xtra})")
    a("s_barrier")
    stamp_begin(a, 72)
    tl(a, 1)
    for ins in reads(0, 0, 0):
        a(ins)
    state = {"set": 0}

    def step(i, dyn=False):
        do_dma = (i + NS - 1) <= nsteps - 1
        groups = list(dmas((i + NS - 1) % NS)) if do_dma else []
        if do_dma and switch is not None:
            if dyn:
                a(switch[2])
            elif i + NS - 1 == switch[0]:
                a(switch[1])
        mcount = len(mfmas(0))
        half = mcount // 2
        nm = (nu - 1) * mcount + half
        slots = [[] for _ in range(nu * mcount)]
        for gi, g in enumerate(groups):
            slots[min(nm - 1, gi * nm // max(1, len(groups)))].extend(g)
        if do_dma:
            slots[nm - 1].extend(kadv)
        last_issued = min(i + NS - 1, nsteps - 1)
        mi = 0

        def emit_m(ms):
            nonlocal mi
            for m in ms:
                if not NOMFMA:
                    a(m)
                for ins in slots[mi]:
                    if NODMA and 'buffer_load' in ins:
                        continue
                    a(ins)
                mi += 1

        for ul in range(nu):
            cur = state["set"]
            nxt = 1 - cur
            ms = mfmas(cur)
            if ul + 1 < nu:
                rd = reads(i % NS, ul + 1, nxt)
                for ins in rd:
                    a(ins)
                a(f"s_waitcnt lgkmcnt({len(rd)})")
                emit_m(ms)
            else:
                a("s_waitcnt lgkmcnt(0)")
                emit_m(ms[:half])
                if i + 1 <= nsteps - 1:
                    a(f"s_waitcnt vmcnt({(last_issued - (i + 1)) * nd + (xtra if (i + 1 <= NS - 2 and not dyn) else 0)})")
                    a("s_barrier")
                    for ins in reads((i + 1) % NS, 0, nxt):
                        a(ins)
                emit_m(ms[half:])
            state["set"] = nxt

    steady_end = nsteps - NS + 1
    unroll = NS if (nu % 2 == 0 or NS % 2 == 0) else 2 * NS
    nloop = steady_end // unroll
    if nloop >= 2 and nsteps > 16:
        a(f"s_mov_b32 s19, 0")
        a(f"L_{tag}_loop:")
        for i in range(unroll):
            step(i, dyn=True)
        a(f"s_add_u32 s19, s19, 1\ns_cmp_lt_u32 s19, {nloop}\ns_cbranch_scc1 L_{tag}_loop")
        start = nloop * unroll
    else:
        start = 0
    for i in range(start, nsteps):
        step(i)
    stamp_end(a, PROFOFF[tag], 72)
    tl(a, 2)


def stamp_begin(a, base=64):
    if PROF:
        a(f"s_memtime s[{base}:{base+1}]\ns_memrealtime s[{base+4}:{base+5}]\ns_waitcnt lgkmcnt(0)")


def stamp_end(a, off, base=64):
    if PROF:
        a(f"""s_memtime s[{base+2}:{base+3}]
s_memrealtime s[{base+6}:{base+7}]
s_waitcnt lgkmcnt(0)
s_sub_u32 s{base+2}, s{base+2}, s{base}
s_sub_u32 s{base+6}, s{base+6}, s{base+4}
s_load_dwordx2 s[{base}:{base+1}], s[0:1], 96
s_waitcnt lgkmcnt(0)
s_add_u32 s{base}, s{base}, {24<<20}
s_addc_u32 s{base+1}, s{base+1}, 0
v_mov_b32 v6, s{base+2}
v_mov_b32 v7, s{base+6}
s_lshl_b32 s23, s2, 6
s_lshl_b32 s{base+2}, s22, 3
s_add_u32 s23, s23, s{base+2}
s_add_u32 s23, s23, {off}
v_mov_b32 v5, s23
global_store_dwordx2 v5, v[6:7], s[{base}:{base+1}]
""")


TLK = [0]


def tl(a, slot, drain=False):
    if not os.environ.get('TL'):
        return
    if drain:
        a("s_waitcnt vmcnt(0)")
    a(f"""s_memrealtime s[80:81]
s_load_dwordx2 s[82:83], s[0:1], 96
s_waitcnt lgkmcnt(0)
s_add_u32 s82, s82, {(24<<20) + (512<<10) + TLK[0]*65536 + slot*4}
s_addc_u32 s83, s83, 0
s_lshl_b32 s84, s2, 6
v_mov_b32 v198, s84
v_mov_b32 v199, s80
v_cmp_eq_u32 vcc, 0, v0
s_and_saveexec_b64 s[86:87], vcc
s_cbranch_execz 1
global_store_dword v198, v199, s[82:83]
s_mov_b64 exec, s[86:87]
""".replace("s_cbranch_execz 1\n", ""))


def wave_setup(a):
    a("""
v_lshrrev_b32 v1, 6, v0
s_nop 0
v_readfirstlane_b32 s22, v1
v_and_b32 v2, 63, v0
s_nop 2
s_lshl_b32 s18, s22, 10
""")


def t_dma_voff(a, vdst, n, pitch):
    a(f"""
v_lshrrev_b32 v3, 3, v2
v_lshl_add_u32 v3, v1, 3, v3
v_bfe_u32 v4, v3, 1, 3
v_and_b32 v5, 7, v2
v_xor_b32 v4, v4, v5
v_lshlrev_b32 v4, 4, v4
s_mov_b32 s23, {pitch}
v_mul_lo_u32 v3, v3, s23
v_add_u32 v{vdst}, v3, v4
""")
    for i in range(1, n):
        a(f"v_add_u32 v{vdst+i}, {i*64*pitch}, v{vdst}")


def n_dma_voff(a, vdst, n, pitch, MT):
    lpr = MT * 2 // 16
    rows = 64 // lpr
    sh = lpr.bit_length() - 1
    a(f"""
v_lshrrev_b32 v3, {sh}, v2
v_lshl_add_u32 v3, v1, {rows.bit_length()-1}, v3
v_and_b32 v5, {lpr-1}, v2
v_lshrrev_b32 v6, 2, v5
v_and_b32 v4, 3, v3
v_xor_b32 v6, v6, v4
v_and_b32 v5, 3, v5
v_lshlrev_b32 v5, 4, v5
v_lshl_add_u32 v5, v6, 6, v5
s_mov_b32 s23, {pitch}
v_mul_lo_u32 v3, v3, s23
v_add_u32 v{vdst}, v3, v5
""")
    for i in range(1, n):
        a(f"v_add_u32 v{vdst+i}, {i*8*rows*pitch}, v{vdst}")


def t_read_addr(a, vdst, nu, srow, skg2, base, NS, STAGE, stride):
    a(f"""
v_and_b32 v3, 31, v2
v_bfe_u32 v4, v3, 1, 3
v_lshrrev_b32 v5, 5, v2
v_xor_b32 v4, v4, v5
v_xor_b32 v4, s{skg2}, v4
v_add_u32 v3, s{srow}, v3
v_lshlrev_b32 v3, 7, v3
v_lshl_add_u32 v3, v4, 4, v3
""")
    for st in range(NS):
        for ul in range(nu):
            if ul == 0:
                a(f"v_add_u32 v{vdst+st*stride}, {base+st*STAGE}, v3")
            else:
                a(f"v_xor_b32 v{vdst+st*stride+ul}, {ul*32}, v{vdst+st*stride}")


def n_read_addr(a, vdst, sunit, skrow, LP, base, NS, STAGE, stride, nblk=2):
    a(f"""
v_bfe_u32 v3, v2, 2, 2
v_lshrrev_b32 v4, 5, v2
v_lshl_add_u32 v4, v4, 3, v3
s_mov_b32 s23, {LP}
v_mul_lo_u32 v4, v4, s23
v_add_u32 v4, s{skrow}, v4
v_bfe_u32 v5, v2, 4, 1
v_lshl_add_u32 v4, v5, 5, v4
v_and_b32 v5, 3, v2
v_lshl_add_u32 v4, v5, 3, v4
""")
    for b in range(nblk):
        a(f"""
s_add_u32 s23, s{sunit}, {b}
v_xor_b32 v5, s23, v3
v_lshl_add_u32 v5, v5, 6, v4
""")
        for st in range(NS):
            a(f"v_add_u32 v{vdst+st*stride+b}, {base+st*STAGE}, v5")


def gemm(a, tag, WM, WN, KS, ptype, pP, pR, nsteps, NS, opitch, scale=False, switch=None, touch=None):
    assert WM * WN * KS == 8
    MT, NT = 64 * WM, 64 * WN
    PB, RB = MT * 128, NT * 128
    STAGE = PB + RB
    nu = 4 // KS
    ncP, ncR = PB // 8192, RB // 8192
    wave_setup(a)
    lw = (WM * WN).bit_length() - 1
    lm = WM.bit_length() - 1
    a(f"""
s_lshr_b32 s24, s22, {lw}
s_and_b32 s25, s22, {WM-1}
s_lshr_b32 s26, s22, {lm}
s_and_b32 s26, s26, {WN-1}
""")
    if ptype == 'T':
        t_dma_voff(a, DV, ncP, pP)
    else:
        n_dma_voff(a, DV, ncP, pP, MT)
    t_dma_voff(a, DV + ncP, ncR, pR)
    nP = nu if ptype == 'T' else 2
    stride = nP + nu

    def setup():
        if touch:
            a(touch)
        a(f"s_mul_i32 s27, s24, {nu*2}")
        if ptype == 'T':
            a(f"s_lshl_b32 s28, s25, 6")
            t_read_addr(a, RA, nu, 28, 27, 0, NS, STAGE, stride)
        else:
            a(f"s_lshl_b32 s28, s25, 1\ns_mul_i32 s29, s24, {nu*16*MT*2}")
            n_read_addr(a, RA, 28, 29, MT * 2, 0, NS, STAGE, stride)
        a(f"s_lshl_b32 s28, s26, 6")
        t_read_addr(a, RA + nP, nu, 28, 27, PB, NS, STAGE, stride)
        for i in range(64):
            a(f"v_mov_b32 v{ACC+i}, 0")

    def dmas(st):
        r = []
        for i in range(ncP):
            r.append([f"s_add_u32 m0, s18, {st*STAGE + i*8192}", "s_nop 0",
                      f"buffer_load_dwordx4 v{DV+i}, s[4:7], s16 offen lds"])
        for i in range(ncR):
            r.append([f"s_add_u32 m0, s18, {st*STAGE + PB + i*8192}", "s_nop 0",
                      f"buffer_load_dwordx4 v{DV+ncP+i}, s[8:11], s17 offen lds"])
        return r

    def reads(st, ul, fs):
        f = FR[fs]
        r = []
        if ptype == 'T':
            for b in range(2):
                r.append(f"ds_read_b128 v[{f+4*b}:{f+4*b+3}], v{RA+st*stride+ul} offset:{b*4096}")
        else:
            for b in range(2):
                for rr in range(2):
                    r.append(f"ds_read_b64_tr_b16 v[{f+4*b+2*rr}:{f+4*b+2*rr+1}], v{RA+st*stride+b} offset:{(16*ul+4*rr)*MT*2}")
        for b in range(2):
            r.append(f"ds_read_b128 v[{f+8+4*b}:{f+8+4*b+3}], v{RA+st*stride+nP+ul} offset:{b*4096}")
        return r

    def mfmas(fs):
        f = FR[fs]
        r = []
        for nb in range(2):
            for mb in range(2):
                c = ACC + 16 * (nb * 2 + mb)
                r.append(f"v_mfma_f32_32x32x16_bf16 v[{c}:{c+15}], v[{f+4*mb}:{f+4*mb+3}], v[{f+8+4*nb}:{f+8+4*nb+3}], v[{c}:{c+15}]")
        return r

    kadv = [f"s_add_u32 s16, s16, {128 if ptype == 'T' else 64*pP}", "s_add_u32 s17, s17, 128"]
    pipeline(a, tag, nsteps, NS, nu, dmas, reads, mfmas, None, kadv, switch, setup=setup, xtra=(2 if touch else 0))

    a("s_nop 15\ns_nop 3")
    blocks = [(nb, mb) for nb in range(2) for mb in range(2)]
    if KS == 2:
        a("s_barrier")
        a(f"""
v_lshlrev_b32 v3, 4, v2
s_lshl_b32 s23, s22, 13
v_add_u32 v3, s23, v3
s_xor_b32 s23, s22, 4
s_lshl_b32 s23, s23, 13
v_lshlrev_b32 v4, 4, v2
v_add_u32 v4, s23, v4
s_cmp_eq_u32 s24, 0
s_cbranch_scc1 L_{tag}_x0
""")
        for j in range(8):
            a(f"ds_write_b128 v3, v[{ACC+4*j}:{ACC+4*j+3}] offset:{j*1024}")
        for j in range(32):
            a(f"v_mov_b32 v{ACC+j}, v{ACC+32+j}")
        a(f"s_branch L_{tag}_x1\nL_{tag}_x0:")
        for j in range(8):
            a(f"ds_write_b128 v3, v[{ACC+32+4*j}:{ACC+32+4*j+3}] offset:{j*1024}")
        a(f"L_{tag}_x1:\ns_waitcnt lgkmcnt(0)\ns_barrier")
        for j in range(8):
            a(f"ds_read_b128 v[{ACC+32+4*j}:{ACC+32+4*j+3}], v4 offset:{j*1024}")
        for j in range(8):
            a(f"s_waitcnt lgkmcnt({7-j})")
            for r in range(4):
                a(f"v_add_f32 v{ACC+4*j+r}, v{ACC+4*j+r}, v{ACC+32+4*j+r}")
        blocks = [(0, 0), (0, 1)]
    a(f"""
s_lshl_b32 s23, s26, 6
v_and_b32 v3, 31, v2
v_add_u32 v3, s23, v3
""")
    if KS == 2:
        a("s_lshl_b32 s23, s24, 5\nv_add_u32 v3, s23, v3")
    a(f"""
s_mov_b32 s23, {opitch}
v_mul_lo_u32 v3, v3, s23
v_lshrrev_b32 v4, 5, v2
v_lshl_add_u32 v3, v4, 4, v3
s_lshl_b32 s23, s25, 7
s_add_u32 s23, s23, s21
v_add_u32 v3, s23, v3
v_add_u32 v4, {32*opitch}, v3
""")
    for bi, (nb, mb) in enumerate(blocks):
        c = ACC + 16 * (nb * 2 + mb)
        t = 16 + 8 * (bi % 4)
        if scale:
            for r in range(16):
                a(f"v_mul_f32 v{c+r}, s20, v{c+r}")
        for r in range(8):
            a(f"v_cvt_pk_bf16_f32 v{t+r}, v{c+2*r}, v{c+2*r+1}")
        a("s_nop 1")
        for p in range(2):
            a(f"v_permlane32_swap_b32 v{t+4*p}, v{t+4*p+2}\nv_permlane32_swap_b32 v{t+4*p+1}, v{t+4*p+3}")
        for p in range(2):
            a(f"buffer_store_dwordx4 v[{t+4*p}:{t+4*p+3}], v{3+nb}, s[12:15], 0 offen offset:{mb*64+p*32}")


def gemm_kv(a, tag, NS=4):
    PB, RB = 8192, 16384
    STAGE = PB + RB
    nu = 4
    a(f"""
v_and_b32 v3, 3, v1
v_lshlrev_b32 v3, 10, v3
v_lshl_add_u32 v{DV}, v2, 4, v3
""")
    t_dma_voff(a, DV + 1, 2, 2048)
    stride = 1 + nu

    def dmas(st):
        r_ = [[f"s_add_u32 m0, s18, {st*STAGE}", "s_nop 0", f"buffer_load_dwordx4 v{DV}, s[4:7], s16 offen lds"]]
        for i in range(2):
            r_.append([f"s_add_u32 m0, s18, {st*STAGE + PB + i*8192}", "s_nop 0",
                       f"buffer_load_dwordx4 v{DV+1+i}, s[8:11], s17 offen lds"])
        return r_

    def setup():
        a(f"""
v_bfe_u32 v3, v2, 2, 2
v_lshrrev_b32 v4, 5, v2
v_lshl_add_u32 v4, v4, 3, v3
v_lshlrev_b32 v4, 6, v4
v_bfe_u32 v5, v2, 4, 1
v_lshl_add_u32 v4, v5, 5, v4
v_and_b32 v5, 3, v2
v_lshl_add_u32 v4, v5, 3, v4
v_lshrrev_b32 v5, 2, v1
v_lshl_add_u32 v4, v5, 12, v4
""")
        for st in range(NS):
            a(f"v_add_u32 v{RA+st*stride}, {st*STAGE}, v4")
        a("s_mov_b32 s27, 0\ns_and_b32 s28, s22, 3\ns_lshl_b32 s28, s28, 5")
        t_read_addr(a, RA + 1, nu, 28, 27, PB, NS, STAGE, stride)
        for i in range(16):
            a(f"v_mov_b32 v{ACC+i}, 0")

    def reads(st, ul, fs):
        f = FR[fs]
        r_ = []
        for rr in range(2):
            r_.append(f"ds_read_b64_tr_b16 v[{f+2*rr}:{f+2*rr+1}], v{RA+st*stride} offset:{(16*ul+4*rr)*64}")
        r_.append(f"ds_read_b128 v[{f+8}:{f+11}], v{RA+st*stride+1+ul}")
        return r_

    kadv = ["s_add_u32 s16, s16, 4096", "s_add_u32 s17, s17, 128"]
    a(f"s_cmp_ge_u32 s22, 4\ns_cbranch_scc1 L_{tag}_v")
    for kv in range(2):
        if kv:
            a(f"L_{tag}_v:")

        def mfmas(fs):
            f = FR[fs]
            if kv == 0:
                return ["s_nop 0", f"v_mfma_f32_32x32x16_bf16 v[{ACC}:{ACC+15}], v[{f}:{f+3}], v[{f+8}:{f+11}], v[{ACC}:{ACC+15}]"]
            return ["s_nop 0", f"v_mfma_f32_32x32x16_bf16 v[{ACC}:{ACC+15}], v[{f+8}:{f+11}], v[{f}:{f+3}], v[{ACC}:{ACC+15}]"]

        pipeline(a, tag, 16, NS, nu, dmas, reads, mfmas, None, kadv, setup=setup)
        a("s_nop 15\ns_nop 3")
        a(f"""
s_and_b32 s23, s22, 3
s_add_u32 s23, s21, s23
s_lshl_b32 s23, s23, 12
v_lshlrev_b32 v3, 4, v2
v_add_u32 v3, s23, v3
v_add_u32 v3, {WS_KF + 2048*kv}, v3
""")
        for r_ in range(8):
            a(f"v_cvt_pk_bf16_f32 v{16+r_}, v{ACC+2*r_}, v{ACC+2*r_+1}")
        if kv == 0:
            a("s_nop 1")
            for p in range(2):
                a(f"v_permlane32_swap_b32 v{16+4*p}, v{16+4*p+2}\nv_permlane32_swap_b32 v{16+4*p+1}, v{16+4*p+3}")
        for p in range(2):
            a(f"buffer_store_dwordx4 v[{16+4*p}:{16+4*p+3}], v3, s[12:15], 0 offen offset:{p*1024}")
        if kv == 0:
            tl(a, 5, True)
            a("s_endpgm")


def kernel_header(a, name):
    a.lines.append(f".globl {name}\n.p2align 8\n.type {name},@function\n{name}:")


def kernel_desc(name, vgpr, sgpr=100):
    return f""".amdhsa_kernel {name}
  .amdhsa_next_free_vgpr {vgpr}
  .amdhsa_next_free_sgpr {sgpr}
  .amdhsa_accum_offset {(vgpr+3)//4*4}
  .amdhsa_group_segment_fixed_size 0
  .amdhsa_kernarg_size 104
  .amdhsa_user_sgpr_count 2
  .amdhsa_user_sgpr_kernarg_segment_ptr 1
  .amdhsa_system_sgpr_workgroup_id_x 1
.end_amdhsa_kernel
"""


WS_BYTES = 40 << 20


def g4(a):
    a("""
s_and_b32 s50, s30, 1
s_lshl_b32 s50, s50, 2
s_and_b32 s51, s31, 3
s_add_u32 s50, s50, s51
s_lshr_b32 s51, s30, 1
s_lshl_b32 s51, s51, 2
s_lshr_b32 s52, s31, 2
s_add_u32 s51, s51, s52
""")
    if os.environ.get('SAMETILE') == '1':
        a("s_mov_b32 s50, 0\ns_mov_b32 s51, 0")
    if os.environ.get('SAMETILE') == '2':
        a("s_and_b32 s50, s30, 7\ns_mov_b32 s51, s30")
    if os.environ.get('SAMETILE') == '3':
        a("s_and_b32 s50, s2, 7\ns_lshr_b32 s51, s2, 3")
    srd(a, 4, 48, 49, 2048 * 4096, WS_AB)
    srd(a, 8, 32, 33, 2048 * 4096)
    srd(a, 12, 36, 37, 2048 * 4096)
    a("""
s_lshl_b32 s16, s50, 19
s_lshl_b32 s17, s51, 19
s_lshl_b32 s21, s50, 8
s_add_u32 s21, s21, s17
s_add_u32 s21, s21, 2048
s_add_u32 s53, s17, 4096
""")
    sw = f"""
s_mov_b32 s8, s34
s_mov_b32 s9, s35
s_sub_u32 s17, s17, 4096
s_add_u32 s16, s16, {1024*4096 - 4096}
s_mov_b32 s53, -1
"""
    uid = [0]

    class Dyn(str):
        pass
    dyn = f"""
s_cmp_eq_u32 s17, s53
s_cselect_b32 s8, s34, s8
s_cselect_b32 s9, s35, s9
s_cselect_b32 s23, 4096, 0
s_cselect_b32 s54, {1024*4096 - 4096}, 0
s_cselect_b32 s53, -1, s53
s_sub_u32 s17, s17, s23
s_add_u32 s16, s16, s54
"""
    gemm(a, "g4", 2, 2, 2, 'T', 4096, 4096, 64, 4, 4096, switch=(32, sw, dyn))


TPS = 8
ASTAGE = TPS * 4096
ANS = 3
NSTG = 64 // TPS
Q0, KF_, VF_, P_, ONES, LA, LB, NEGM, SX, SY, OA, OB = 16, 32, 40, 48, 56, 60, 64, 72, 88, 104, 120, 136
ST, KT, VT, PT = 152, 168, 176, 184
THR1 = 2.0 ** int(os.environ.get('THR1', '60'))
THR2 = 2.0 ** 120
MARGIN = int(os.environ.get('MARGIN', '60'))


def r(b, n):
    return f"v[{b}:{b+n-1}]"


def mf32(d, a_, b_, c):
    return f"v_mfma_f32_32x32x16_bf16 {r(d,16)}, {r(a_,4)}, {r(b_,4)}, {r(c,16) if isinstance(c,int) else c}"


def mf16(d, a_, b_, c):
    return f"v_mfma_f32_16x16x32_bf16 {r(d,4)}, {r(a_,4)}, {r(b_,4)}, {r(c,4)}"


def attn_dma(a, i):
    a(f"s_add_u32 m0, s17, {i*8192}\ns_nop 0\nbuffer_load_dwordx4 v{12+i}, s[12:15], s16 offen lds")


def attn_dma_adv(a):
    a(f"""
s_add_u32 s16, s16, {ASTAGE}
s_add_u32 s17, s17, {ASTAGE}
s_sub_u32 s30, s17, {ANS*ASTAGE}
s_cmp_ge_u32 s17, {ANS*ASTAGE}
s_cselect_b32 s17, s30, s17
""")


def attn_tile(a, tt, X, Y, Oc, Od, lc, ld, par=0):
    def rd(dst, t2, part):
        v = 10 if t2 < TPS else 11
        a(f"ds_read_b128 {r(dst,4)}, v{v} offset:{(t2 % TPS)*4096 + part*1024}")
    bar = (tt == TPS - 2)
    if bar:
        a("s_waitcnt vmcnt(0)\ns_barrier")
    E = lambda i: a(f"v_exp_f32 v{X+i}, v{X+i}")
    C = lambda i: a(f"v_cvt_pk_bf16_f32 v{P_+i}, v{X+2*i}, v{X+2*i+1}")
    last = (tt == TPS - 1)
    if tt == 0:
        a(f"s_branch L_vload{par}\nL_vload{par}_ret:")
    if last:
        a(f"s_branch L_vcmp{par}\nL_vcmp{par}_ret:")

    def hook(i):
        if bar:
            attn_dma(a, i)
            if i == 3: attn_dma_adv(a)
        if tt == 0:
            s1_dma(a, par, i)
    a(f"s_waitcnt lgkmcnt({8 if last else 2})")
    a(mf32(Y, KF_, Q0, NEGM))
    for i in range(4): E(i)
    hook(0)
    a("s_waitcnt lgkmcnt(0)")
    if tt > 0:
        a(mf32(Od, VF_ + 4, P_ + 4, Od))
    if tt == TPS - 1:
        rd(VF_ + 4, tt, 3)
    for i in range(4, 6): E(i)
    if last: s1_mfma(a, 0)
    for i in range(6, 8): E(i)
    hook(1)
    if tt > 0:
        a(mf16(ld, ONES, P_ + 4, ld))
        for i in range(4): C(i)
    else:
        for i in (0, 1, 2, 3): C(i) if i < 3 else (a("s_nop 0") if False else C(i))
    a(mf32(Y, KF_ + 4, Q0 + 4, Y))
    rd(KF_, tt + 2, 0)
    rd(KF_ + 4, tt + 2, 1)
    for i in range(8, 10): E(i)
    if last: s1_mfma(a, 1)
    for i in range(10, 12): E(i)
    hook(2)
    a(mf32(Od, VF_, P_, Oc))
    if tt < TPS - 1:
        rd(VF_ + 4, tt, 3)
        rd(VF_, tt + 1, 2)
    else:
        rd(VF_, tt + 1, 2)
    for i in range(12, 14): E(i)
    if last: s1_mfma(a, 2)
    for i in range(14, 16): E(i)
    hook(3)
    a(mf16(ld, ONES, P_, lc))
    if bar: s1_reads(a, par)
    for i in range(4, 8): C(i)
    if last: s1_mfma(a, 3)
    if tt == TPS - 1:
        a("s_waitcnt lgkmcnt(3)\ns_nop 0")
        a(mf32(Od, VF_ + 4, P_ + 4, Od))
        a(mf16(ld, ONES, P_ + 4, ld))


def attn_slow(a, tag, Oold, Onew, lold, lnew, Snext):
    a(f"L_{tag}_slow:")
    a("s_nop 15")
    a(f"v_cmp_nlt_f32 vcc, v{lnew}, s29\ns_nop 4\ns_cbranch_vccnz L_{tag}_heavy")
    a(f"""
v_frexp_exp_i32_f32 v3, v{lnew}
v_add_u32 v3, {MARGIN}, v3
v_cvt_f32_i32 v4, v3
v_sub_u32 v3, 0, v3
""")
    for i in range(16): a(f"v_ldexp_f32 v{Onew+i}, v{Onew+i}, v3")
    for i in range(4): a(f"v_ldexp_f32 v{lnew+i}, v{lnew+i}, v3")
    for i in range(16): a(f"v_sub_f32 v{NEGM+i}, v{NEGM+i}, v4")
    for i in range(16): a(f"v_sub_f32 v{Snext+i}, v{Snext+i}, v4")
    a(f"s_nop 1\ns_branch L_{tag}_ret")
    a(f"L_{tag}_heavy:")
    a(f"s_waitcnt lgkmcnt(0)\nv_log_f32 v5, v{lold}\nv_mov_b32 v6, v10\ns_mov_b32 s30, 0")
    a(f"L_{tag}_h1:")
    a(f"ds_read_b128 {r(KT,4)}, v6\nds_read_b128 {r(KT+4,4)}, v6 offset:1024\ns_waitcnt lgkmcnt(0)")
    a(mf32(ST, KT, Q0, NEGM)); a(mf32(ST, KT + 4, Q0 + 4, ST))
    a("s_nop 15")
    for i in range(8): a(f"v_max3_f32 v5, v{ST+2*i}, v{ST+2*i+1}, v5")
    a(f"v_add_u32 v6, 4096, v6\ns_add_u32 s30, s30, 1\ns_cmp_lt_u32 s30, {TPS}\ns_cbranch_scc1 L_{tag}_h1")
    a(f"""
v_mov_b32 v6, v5
s_nop 1
v_permlane32_swap_b32 v5, v6
s_nop 1
v_max_f32 v5, v5, v6
v_ceil_f32 v4, v5
v_add_f32 v4, {f32bits(float(MARGIN))}, v4
v_cvt_i32_f32 v3, v4
v_sub_u32 v3, 0, v3
""")
    for i in range(16): a(f"v_ldexp_f32 v{Onew+i}, v{Oold+i}, v3")
    for i in range(4): a(f"v_ldexp_f32 v{lnew+i}, v{lold+i}, v3")
    for i in range(16): a(f"v_sub_f32 v{NEGM+i}, v{NEGM+i}, v4")
    for i in range(16): a(f"v_sub_f32 v{Snext+i}, v{Snext+i}, v4")
    a(f"v_mov_b32 v6, v10\ns_mov_b32 s30, 0")
    a(f"L_{tag}_h2:")
    a(f"ds_read_b128 {r(KT,4)}, v6\nds_read_b128 {r(KT+4,4)}, v6 offset:1024\nds_read_b128 {r(VT,4)}, v6 offset:2048\nds_read_b128 {r(VT+4,4)}, v6 offset:3072\ns_waitcnt lgkmcnt(0)")
    a(mf32(ST, KT, Q0, NEGM)); a(mf32(ST, KT + 4, Q0 + 4, ST))
    a("s_nop 15")
    for i in range(16): a(f"v_exp_f32 v{ST+i}, v{ST+i}")
    a("s_nop 0")
    for i in range(8): a(f"v_cvt_pk_bf16_f32 v{PT+i}, v{ST+2*i}, v{ST+2*i+1}")
    a("s_nop 1")
    a(mf32(Onew, VT, PT, Onew)); a(mf32(Onew, VT + 4, PT + 4, Onew))
    a(mf16(lnew, ONES, PT, lnew)); a(mf16(lnew, ONES, PT + 4, lnew))
    a(f"v_add_u32 v6, 4096, v6\ns_add_u32 s30, s30, 1\ns_cmp_lt_u32 s30, {TPS}\ns_cbranch_scc1 L_{tag}_h2")
    a(f"s_nop 7\ns_branch L_{tag}_ret")


def attention(a, tag, endlabel):
    wave_setup(a)
    stamp_begin(a)
    tl(a, 3)
    a(f"""
s_mov_b32 s28, {f32bits(THR1)}
s_mov_b32 s29, {f32bits(THR2)}
v_lshlrev_b32 v9, 4, v2
v_lshl_add_u32 v12, v1, 10, v9
v_add_u32 v12, {WS_KF}, v12
v_add_u32 v13, 8192, v12
v_add_u32 v14, 16384, v12
v_add_u32 v15, 24576, v12
v_mov_b32 v10, v9
v_add_u32 v11, {ASTAGE}, v9
s_mov_b32 s24, {ASTAGE}
s_mov_b32 s16, 0
s_mov_b32 s17, s18
v_and_b32 v5, 31, v2
v_lshl_add_u32 v4, v1, 5, v5
v_lshrrev_b32 v5, 5, v2
v_lshlrev_b32 v5, 4, v5
v_lshl_add_u32 v8, v4, 6, v5
""")
    a(f"buffer_load_dwordx4 {r(Q0,4)}, v8, s[12:15], s26 offen\nbuffer_load_dwordx4 {r(Q0+4,4)}, v8, s[12:15], s26 offen offset:32")
    for st in range(2):
        for i in range(4): attn_dma(a, i)
        attn_dma_adv(a)
    stage1_setup(a)
    stage1_setup2(a)
    verify_setup(a)
    a(f"""
v_lshrrev_b32 v4, 2, v2
v_lshrrev_b32 v5, 4, v2
v_xor_b32 v4, v4, v5
v_and_b32 v4, 1, v4
v_cmp_eq_u32 vcc, 0, v4
v_mov_b32 v5, 0x3f803f80
s_nop 1
v_cndmask_b32 v{ONES}, 0, v5, vcc
v_mov_b32 v{ONES+1}, v{ONES}
v_mov_b32 v{ONES+2}, v{ONES}
v_mov_b32 v{ONES+3}, v{ONES}
""")
    for i in range(16): a(f"v_mov_b32 v{OB+i}, 0")
    for i in range(4): a(f"v_mov_b32 v{LB+i}, 0")
    a(f"v_mov_b32 v{VMAX}, 0")
    a("s_waitcnt vmcnt(4)\ns_barrier")
    a(f"ds_read_b128 {r(KF_,4)}, v10\nds_read_b128 {r(KF_+4,4)}, v10 offset:1024")
    a("s_waitcnt lgkmcnt(0)")
    a(mf32(SX, KF_, Q0, "0")); a(mf32(SX, KF_ + 4, Q0 + 4, SX))
    a(f"ds_read_b128 {r(KF_,4)}, v10 offset:4096\nds_read_b128 {r(KF_+4,4)}, v10 offset:{4096+1024}")
    a(f"ds_read_b128 {r(VF_+4,4)}, v10 offset:3072\nds_read_b128 {r(VF_,4)}, v10 offset:2048")
    a("s_nop 11")
    a(f"v_max3_f32 v5, v{SX}, v{SX+1}, v{SX+2}")
    for i in range(6): a(f"v_max3_f32 v5, v{SX+3+2*i}, v{SX+4+2*i}, v5")
    a(f"""
v_max_f32 v5, v{SX+15}, v5
v_mov_b32 v6, v5
s_nop 1
v_permlane32_swap_b32 v5, v6
s_nop 1
v_max_f32 v5, v5, v6
v_add_f32 v5, {f32bits(float(MARGIN))}, v5
""")
    for i in range(16): a(f"v_sub_f32 v{NEGM+i}, 0, v5")
    for i in range(16): a(f"v_sub_f32 v{SX+i}, v{SX+i}, v5")
    tl(a, 4)
    a("s_mov_b32 s19, 0")
    a(f"L_{tag}_loop:")
    for par in range(2):
        Oold, Onew, lold, lnew = (OB, OA, LB, LA) if par == 0 else (OA, OB, LA, LB)
        for tt in range(TPS):
            X, Y = (SX, SY) if tt % 2 == 0 else (SY, SX)
            attn_tile(a, tt, X, Y, Oold if tt == 0 else Onew, Onew, lold if tt == 0 else lnew, lnew, par)
        a(f"""
s_add_u32 s24, s24, {ASTAGE}
s_cmp_ge_u32 s24, {ANS*ASTAGE}
s_cselect_b32 s24, 0, s24
s_nop 4
v_cmp_nlt_f32 vcc, v{lnew}, s28
s_nop 1
s_cbranch_vccnz L_{tag}{par}_slow
L_{tag}{par}_ret:
v_mov_b32 v10, v11
v_add_u32 v11, s24, v9
""")
    a(f"s_add_u32 s19, s19, 1\ns_cmp_lt_u32 s19, {NSTG//2}\ns_cbranch_scc1 L_{tag}_loop")
    a(f"s_nop 3\nv_rcp_f32 v7, v{LB}\ns_add_u32 s31, s26, {WS_O}")
    for i in range(16):
        a(f"v_mul_f32 v{OB+i}, v7, v{OB+i}")
    for i in range(8): a(f"v_cvt_pk_bf16_f32 v{P_+i}, v{OB+2*i}, v{OB+2*i+1}")
    a("s_nop 1")
    for p in range(2):
        a(f"v_permlane32_swap_b32 v{P_+4*p}, v{P_+4*p+2}\nv_permlane32_swap_b32 v{P_+4*p+1}, v{P_+4*p+3}")
    for p in range(2):
        a(f"buffer_store_dwordx4 {r(P_+4*p,4)}, v8, s[12:15], s31 offen offset:{p*32}")
    tl(a, 2)
    a(f"""
s_mov_b32 s23, {f32bits(VTOL)}
v_cmp_nle_f32 vcc, v{VMAX}, s23
s_lshl_b32 s23, s22, 2
s_add_u32 s23, s23, {S1B + 32768 - 64}
v_mov_b32 v4, s23
s_cmp_lg_u64 vcc, 0
s_cselect_b32 s23, 1, 0
v_mov_b32 v3, s23
ds_write_b32 v4, v3
""")
    stage1_store(a)
    a(f"""
v_mov_b32 v4, {S1B + 32768 - 64}
ds_read_b128 v[20:23], v4
ds_read_b128 v[24:27], v4 offset:16
s_lshl_b32 s23, s2, 2
s_add_u32 s23, s23, {WS_FLAG}
v_mov_b32 v4, 0
s_waitcnt lgkmcnt(0)
v_or3_b32 v20, v20, v21, v22
v_or3_b32 v24, v24, v25, v26
v_or3_b32 v20, v20, v23, v27
v_or_b32 v20, v20, v24
v_cmp_eq_u32 vcc, 0, v0
s_and_saveexec_b64 s[64:65], vcc
s_cbranch_execz L_at_nf
buffer_store_dword v20, v4, s[12:15], s23 offen
L_at_nf:
s_mov_b64 exec, s[64:65]
""")
    stamp_end(a, 196608)
    tl(a, 5, True)
    a(f"s_branch {endlabel}")
    attn_slow(a, f"{tag}0", OB, OA, LB, LA, SX)
    attn_slow(a, f"{tag}1", OA, OB, LA, LB, SX)
    verify_subs(a, 0)
    verify_subs(a, 1)


def wave_sum(a, v, t):
    for sh in (8, 4, 2, 1):
        a(f"s_nop 1\nv_add_f32_dpp v{v}, v{v}, v{v} row_ror:{sh} row_mask:0xf bank_mask:0xf")
    a(f"""
v_mov_b32 v{t}, v{v}
s_nop 1
v_permlane16_swap_b32 v{v}, v{t}
s_nop 1
v_add_f32 v{v}, v{v}, v{t}
v_mov_b32 v{t}, v{v}
s_nop 1
v_permlane32_swap_b32 v{v}, v{t}
s_nop 1
v_add_f32 v{v}, v{v}, v{t}
""")


def small_gemm(a, tag, mode, pP, pR, nsteps, kstep, pre=None):
    NS, STAGE, nu = 4, 32768, 2
    t_dma_voff(a, DV, 1, pP)
    t_dma_voff(a, DV + 1, 1, pR)
    stride = 4

    def setup():
        a("""
s_and_b32 s26, s22, 1
s_lshr_b32 s24, s22, 2
s_and_b32 s27, s22, 2
s_lshl_b32 s27, s27, 1
s_lshl_b32 s28, s24, 7
""")
        t_read_addr(a, RA, nu, 28, 27, 0, NS, STAGE, stride)
        a("s_lshl_b32 s29, s26, 5\ns_add_u32 s28, s28, s29")
        t_read_addr(a, RA + 2, nu, 28, 27, 8192, NS, STAGE, stride)
        for i in range(32):
            a(f"v_mov_b32 v{ACC+i}, 0")

    def dmas(st):
        return [[f"s_add_u32 m0, s18, {st*STAGE}", "s_nop 0", f"buffer_load_dwordx4 v{DV}, s[4:7], s16 offen lds"],
                [f"s_add_u32 m0, s18, {st*STAGE+8192}", "s_nop 0", f"buffer_load_dwordx4 v{DV+1}, s[8:11], s17 offen lds"],
                [f"s_add_u32 m0, s18, {st*STAGE+16384}", "s_nop 0", f"buffer_load_dwordx4 v{DV}, s[36:39], s40 offen lds"],
                [f"s_add_u32 m0, s18, {st*STAGE+24576}", "s_nop 0", f"buffer_load_dwordx4 v{DV+1}, s[44:47], s41 offen lds"]]

    def reads(st, ul, fs):
        f = FR[fs]
        return [f"ds_read_b128 v[{f}:{f+3}], v{RA+st*stride+ul}",
                f"ds_read_b128 v[{f+4}:{f+7}], v{RA+st*stride+ul} offset:4096",
                f"ds_read_b128 v[{f+8}:{f+11}], v{RA+st*stride+2+ul}"]

    def mfmas(fs):
        f = FR[fs]
        return [f"v_mfma_f32_32x32x16_bf16 v[{ACC+16*mb}:{ACC+16*mb+15}], v[{f+4*mb}:{f+4*mb+3}], v[{f+8}:{f+11}], v[{ACC+16*mb}:{ACC+16*mb+15}]" for mb in range(2)]

    kadv = [f"s_add_u32 s{r_}, s{r_}, {kstep}" for r_ in (16, 17, 40, 41)]
    pipeline(a, tag, nsteps, NS, nu, dmas, reads, mfmas, None, kadv, pre=pre, setup=setup)
    small_epi(a, mode, ACC)


def small_epi(a, mode, AC):
    a("s_and_b32 s26, s22, 1")
    a("s_nop 15\ns_barrier")
    a(f"""
v_lshlrev_b32 v3, 4, v2
s_lshl_b32 s23, s22, 13
v_add_u32 v4, s23, v3
s_lshr_b32 s25, s22, 1
s_lshl_b32 s23, s25, 11
s_lshl_b32 s29, s26, 13
s_add_u32 s23, s23, s29
v_add_u32 v3, s23, v3
""")
    for j in range(8):
        a(f"ds_write_b128 v4, v[{AC+4*j}:{AC+4*j+3}] offset:{j*1024}")
    a("s_waitcnt lgkmcnt(0)\ns_barrier")
    for i in range(4):
        for j in range(2):
            a(f"ds_read_b128 v[{96+8*i+4*j}:{96+8*i+4*j+3}], v3 offset:{i*16384+j*1024}")
    a("s_waitcnt lgkmcnt(4)")
    for r_ in range(8):
        a(f"v_add_f32 v{64+r_}, v{96+r_}, v{104+r_}")
    a("s_waitcnt lgkmcnt(0)")
    for r_ in range(8):
        a(f"v_add_f32 v{72+r_}, v{112+r_}, v{120+r_}")
    if mode == 1:
        for r_ in range(8):
            a(f"v_add_f32 v{64+r_}, v{64+r_}, v{72+r_}")


def pack8(a, dst, src):
    for r_ in range(4):
        a(f"v_cvt_pk_bf16_f32 v{dst+r_}, v{src+2*r_}, v{src+2*r_+1}")
    a(f"s_nop 1\nv_permlane32_swap_b32 v{dst}, v{dst+2}\nv_permlane32_swap_b32 v{dst+1}, v{dst+3}")


S1ACC, S1F, S1A, S1D = 200, 232, 24, 68
S1B = ANS_BYTES = 98304


def stage1_setup(a):
    a(f"""
s_and_b32 s30, s2, 7
s_lshr_b32 s31, s2, 3
s_and_b32 s31, s31, 15
s_and_b32 s54, s30, 3
s_lshl_b32 s54, s54, 2
s_and_b32 s55, s31, 3
s_add_u32 s54, s54, s55
s_lshr_b32 s55, s30, 2
s_lshl_b32 s55, s55, 2
s_lshr_b32 s56, s31, 2
s_add_u32 s55, s55, s56
s_cmp_ge_u32 s2, 128
s_cselect_b32 s8, s52, s50
s_cselect_b32 s9, s53, s51
s_cselect_b32 s56, {WS_XM-WS_XP}, 0
s_cselect_b32 s57, {WS_BT-WS_AT}, 0
s_add_u32 s56, s56, {WS_XP}
s_add_u32 s57, s57, {WS_AT}
s_mov_b32 s10, {1024*2048}
s_mov_b32 s11, 0x00020000
""")
    srd(a, 4, 48, 49, WS_BYTES)
    a(f"""
s_lshl_b32 s40, s54, 17
s_add_u32 s40, s40, s56
s_add_u32 s42, s40, 128
s_lshl_b32 s41, s55, 17
s_add_u32 s43, s41, 128
s_mul_i32 s21, s55, {64*ATP}
s_add_u32 s21, s21, s57
s_lshl_b32 s23, s54, 7
s_add_u32 s21, s21, s23
""")
    t_dma_voff(a, S1D, 1, 2048)


def stage1_setup2(a):
    a("""
s_lshr_b32 s25, s22, 2
s_and_b32 s27, s22, 2
s_lshl_b32 s27, s27, 1
s_lshl_b32 s25, s25, 7
""")
    t_read_addr(a, S1A, 2, 25, 27, S1B, 2, 32768, 4)
    a("s_and_b32 s23, s22, 1\ns_lshl_b32 s23, s23, 5\ns_add_u32 s25, s25, s23")
    t_read_addr(a, S1A + 2, 2, 25, 27, S1B + 8192, 2, 32768, 4)
    for i in range(32):
        a(f"v_mov_b32 v{S1ACC+i}, 0")


def s1_dma(a, buf, i):
    if os.environ.get('NOS1'): return
    sr, so = ((4, 40), (8, 41), (4, 42), (8, 43))[i]
    a(f"s_add_u32 m0, s18, {S1B + buf*32768 + i*8192}\ns_nop 0\nbuffer_load_dwordx4 v{S1D}, s[{sr}:{sr+3}], s{so} offen lds\ns_add_u32 s{so}, s{so}, 256")


def s1_reads(a, buf):
    for ul in range(2):
        f = S1F + 12 * ul
        a(f"""
ds_read_b128 v[{f}:{f+3}], v{S1A+buf*4+ul}
ds_read_b128 v[{f+4}:{f+7}], v{S1A+buf*4+ul} offset:4096
ds_read_b128 v[{f+8}:{f+11}], v{S1A+buf*4+2+ul}
""")


def s1_mfma(a, i):
    if os.environ.get('NOS1'): return
    ul, mb = i >> 1, i & 1
    f = S1F + 12 * ul
    c = S1ACC + 16 * mb
    a(f"v_mfma_f32_32x32x16_bf16 v[{c}:{c+15}], v[{f+4*mb}:{f+4*mb+3}], v[{f+8}:{f+11}], v[{c}:{c+15}]")


def stage1_store(a):
    a("s_waitcnt vmcnt(0) lgkmcnt(0)")
    small_epi(a, 1, S1ACC)
    pack8(a, 16, 64)
    a(f"""
v_and_b32 v3, 31, v2
s_lshl_b32 s23, s26, 5
v_add_u32 v3, s23, v3
s_mov_b32 s23, {ATP}
v_mul_lo_u32 v3, v3, s23
v_lshrrev_b32 v4, 5, v2
v_lshl_add_u32 v3, v4, 4, v3
s_lshl_b32 s23, s25, 5
s_add_u32 s23, s23, s21
buffer_store_dwordx4 v[16:19], v3, s[12:15], s23 offen
""")


def dot_loads(a, dst, srdA, soffA, srdB, soffB):
    for (d, sr, so) in ((dst, srdA, soffA), (dst + 12, srdB, soffB)):
        a(f"""
buffer_load_dwordx4 v[{d}:{d+3}], v6, s[{sr}:{sr+3}], s{so} offen
buffer_load_dwordx4 v[{d+4}:{d+7}], v6, s[{sr}:{sr+3}], s{so} offen offset:16
buffer_load_dwordx4 v[{d+8}:{d+11}], v7, s[{sr}:{sr+3}], s{so} offen
""")


def dot_compute(a, res, src, t):
    a(f"v_mov_b32 v{res}, 0")
    for i in range(12):
        a(f"v_dot2c_f32_bf16 v{res}, v{src+i}, v{src+12+i}")
    a("s_nop 3")
    wave_sum(a, res, t)


def stage2(a):
    a(f"""
s_and_b32 s54, s30, 3
s_lshl_b32 s54, s54, 2
s_and_b32 s55, s31, 3
s_add_u32 s54, s54, s55
s_lshr_b32 s55, s30, 2
s_lshl_b32 s55, s55, 2
s_lshr_b32 s56, s31, 2
s_add_u32 s55, s55, s56
""")
    srd(a, 4, 48, 49, WS_BYTES)
    srd(a, 36, 48, 49, WS_BYTES)
    srd(a, 8, 50, 51, 2048 * 4096)
    srd(a, 44, 52, 53, 2048 * 4096)
    srd(a, 12, 34, 35, 2048 * 4096)
    a(f"""
s_mul_i32 s16, s55, {64*ATP}
s_add_u32 s40, s16, {WS_BT}
s_add_u32 s16, s16, {WS_AT}
s_lshl_b32 s17, s54, 18
s_mov_b32 s41, s17
""")
    wave_setup(a)
    a(f"""
v_lshlrev_b32 v6, 5, v2
v_lshlrev_b32 v7, 4, v2
v_add_u32 v7, 2048, v7
v_mov_b32 v3, 0x7ffffff0
v_cmp_gt_u32 vcc, 8, v2
s_lshl_b32 s58, s54, 6
s_lshl_b32 s23, s55, 3
s_add_u32 s58, s58, s23
s_add_u32 s58, s58, s22
v_cndmask_b32 v7, v3, v7, vcc
s_lshl_b32 s59, s58, 12
s_mov_b32 s60, {WS_AT + 512*ATP}
s_lshl_b32 s61, s55, 6
s_lshl_b32 s23, s54, 2
s_add_u32 s61, s61, s23
s_add_u32 s61, s61, s22
s_cmp_ge_u32 s22, 4
s_cselect_b32 s61, 512, s61
s_mul_i32 s62, s61, {ATP}
s_add_u32 s62, s62, {WS_AT}
s_mov_b32 s63, {1024*4096}
""")
    flag_load(a, 208, 76, 48, 49)
    dot_loads(a, 160, 8, 59, 4, 60)
    dot_loads(a, 184, 8, 63, 4, 62)

    def pre():
        a("s_waitcnt vmcnt(12)")
        flag_test(a, 208)
        a("s_cbranch_scc1 L_k3_fb")
        dot_compute(a, 156, 160, 3)
        dot_compute(a, 157, 184, 3)
        a(f"""
v_cvt_pk_bf16_f32 v156, v156, v157
v_lshrrev_b32 v157, 16, v156
v_cmp_gt_u32 vcc, 2, v2
s_and_saveexec_b64 s[64:65], vcc
s_sub_u32 s23, 2048, s58
v_mov_b32 v3, s58
v_mov_b32 v4, s23
v_cmp_eq_u32 vcc, 0, v2
s_nop 1
v_cndmask_b32 v3, v4, v3, vcc
v_lshlrev_b32 v3, 12, v3
buffer_store_short v156, v3, s[12:15], 0 offen offset:3072
s_sub_u32 s23, 1024, s61
v_mov_b32 v3, s61
v_mov_b32 v4, s23
s_nop 0
v_cndmask_b32 v3, v4, v3, vcc
v_lshlrev_b32 v3, 1, v3
v_add_u32 v3, {1024*4096 + 2048}, v3
s_cmp_eq_u32 s61, 0
s_cselect_b64 s[66:67], 1, 3
s_cmp_gt_u32 s22, 4
s_cselect_b64 s[66:67], 0, s[66:67]
s_mov_b64 exec, s[66:67]
s_cbranch_execz L_s2_e1
buffer_store_short v157, v3, s[12:15], 0 offen
L_s2_e1:
s_mov_b64 exec, s[64:65]
""")

    small_gemm(a, "s2", 2, ATP, 4096, 17, 128, pre=pre)
    for r_ in range(8):
        a(f"v_sub_f32 v{80+r_}, v{64+r_}, v{72+r_}\nv_add_f32 v{88+r_}, v{64+r_}, v{72+r_}")
    pack8(a, 16, 80)
    pack8(a, 20, 88)
    a("s_nop 0")
    for r_ in range(4):
        a(f"v_alignbit_b32 v{24+r_}, v{19-r_}, v{19-r_}, 16")
        a(f"v_alignbit_b32 v{28+r_}, v{23-r_}, v{23-r_}, 16")
    a(f"""
v_and_b32 v3, 31, v2
s_lshl_b32 s23, s26, 5
s_lshl_b32 s29, s54, 6
s_add_u32 s23, s23, s29
v_add_u32 v3, s23, v3
v_sub_u32 v4, 2048, v3
v_lshlrev_b32 v3, 12, v3
v_lshlrev_b32 v4, 12, v4
v_lshrrev_b32 v5, 5, v2
v_lshlrev_b32 v5, 4, v5
s_lshl_b32 s23, s25, 5
s_lshl_b32 s29, s55, 7
s_add_u32 s23, s23, s29
v_add_u32 v5, s23, v5
v_add_u32 v6, v3, v5
v_add_u32 v7, v4, v5
v_sub_u32 v8, 4082, v5
v_add_u32 v9, v4, v8
v_add_u32 v8, v3, v8
buffer_store_dwordx4 v[16:19], v6, s[12:15], 0 offen offset:2048
buffer_store_dwordx4 v[20:23], v7, s[12:15], 0 offen offset:2048
v_cmp_ne_u32 vcc, 0, v5
s_and_saveexec_b64 s[64:65], vcc
buffer_store_dwordx4 v[28:31], v8, s[12:15], 0 offen
buffer_store_dwordx4 v[24:27], v9, s[12:15], 0 offen
s_andn2_b64 exec, s[64:65], exec
s_cbranch_execz L_s2_e2
buffer_store_dwordx3 v[28:30], v8, s[12:15], 0 offen
buffer_store_short v31, v8, s[12:15], 0 offen offset:12
buffer_store_dwordx3 v[24:26], v9, s[12:15], 0 offen
buffer_store_short v27, v9, s[12:15], 0 offen offset:12
L_s2_e2:
s_mov_b64 exec, s[64:65]
""")


def fold(a):
    wave_setup(a)
    srd(a, 4, 40, 41, 2048 * 2048)
    srd(a, 8, 44, 45, 1024 * 2048)
    a(f"""
v_lshlrev_b32 v6, 5, v2
s_lshl_b32 s16, s31, 5
s_lshl_b32 s23, s22, 2
s_add_u32 s16, s16, s23
s_mov_b32 s17, {512*2048}
buffer_load_dwordx4 v[8:11], v6, s[8:11], s17 offen
buffer_load_dwordx4 v[12:15], v6, s[8:11], s17 offen offset:16
""")
    for i in range(4):
        b = 16 + 16 * i
        a(f"""
s_add_u32 s23, s16, {i}
s_sub_u32 s24, 2048, s23
s_lshl_b32 s23, s23, 11
s_lshl_b32 s24, s24, 11
buffer_load_dwordx4 v[{b}:{b+3}], v6, s[4:7], s23 offen
buffer_load_dwordx4 v[{b+4}:{b+7}], v6, s[4:7], s23 offen offset:16
buffer_load_dwordx4 v[{b+8}:{b+11}], v6, s[4:7], s24 offen
buffer_load_dwordx4 v[{b+12}:{b+15}], v6, s[4:7], s24 offen offset:16
""")
    for i in range(4):
        b = 16 + 16 * i
        o = 96 + 16 * i
        a(f"s_waitcnt vmcnt({(3-i)*4 + 5*i})")
        a(f"v_mov_b32 v{88+i}, 0")
        for j in range(8):
            a(f"""
v_lshlrev_b32 v80, 16, v{b+j}
v_and_b32 v81, 0xffff0000, v{b+j}
v_lshlrev_b32 v82, 16, v{b+8+j}
v_and_b32 v83, 0xffff0000, v{b+8+j}
v_add_f32 v84, v80, v82
v_add_f32 v85, v81, v83
v_sub_f32 v86, v80, v82
v_sub_f32 v87, v81, v83
v_cvt_pk_bf16_f32 v{o+j}, v84, v85
v_cvt_pk_bf16_f32 v{o+8+j}, v86, v87
v_dot2c_f32_bf16 v{88+i}, v{o+j}, v{8+j}
""")
        a(f"""
s_add_u32 s23, s16, {i}
s_lshl_b32 s24, s23, 11
s_add_u32 s25, s24, {WS_XM}
s_add_u32 s24, s24, {WS_XP}
buffer_store_dwordx4 v[{o}:{o+3}], v6, s[12:15], s24 offen
buffer_store_dwordx4 v[{o+4}:{o+7}], v6, s[12:15], s24 offen offset:16
buffer_store_dwordx4 v[{o+8}:{o+11}], v6, s[12:15], s25 offen
buffer_store_dwordx4 v[{o+12}:{o+15}], v6, s[12:15], s25 offen offset:16
""")
        wave_sum(a, 88 + i, 3)
        a(f"""
v_cvt_pk_bf16_f32 v{88+i}, v{88+i}, v{88+i}
s_lshl_b32 s23, s23, 1
s_add_u32 s23, s23, {WS_AT + 512*ATP}
v_mov_b32 v4, 0
s_mov_b64 exec, 1
buffer_store_short v{88+i}, v4, s[12:15], s23 offen
s_mov_b64 exec, -1
""")


def edge_mv(a):
    wave_setup(a)
    srd(a, 4, 40, 41, 2048 * 2048)
    srd(a, 8, 44, 45, 513 * 2048)
    a(f"""
v_lshlrev_b32 v6, 5, v2
s_lshl_b32 s16, s31, 3
s_add_u32 s16, s16, s22
s_mul_i32 s16, s16, 9
s_mov_b32 s17, {1024*2048}
buffer_load_dwordx4 v[8:11], v6, s[4:7], s17 offen
buffer_load_dwordx4 v[12:15], v6, s[4:7], s17 offen offset:16
v_lshlrev_b32 v7, 2, v2
""")
    for i in range(9):
        b = 16 + 8 * i
        a(f"""
s_add_u32 s23, s16, {i}
s_lshl_b32 s23, s23, 11
buffer_load_dwordx4 v[{b}:{b+3}], v6, s[8:11], s23 offen
buffer_load_dwordx4 v[{b+4}:{b+7}], v6, s[8:11], s23 offen offset:16
""")
    a("s_waitcnt vmcnt(0)\nv_mov_b32 v5, 0")
    for i in range(9):
        b = 16 + 8 * i
        a(f"v_mov_b32 v{96+i}, 0")
        for j in range(8):
            a(f"v_dot2c_f32_bf16 v{96+i}, v{b+j}, v{8+j}")
        a("s_nop 3")
        wave_sum(a, 96 + i, 3)
        a(f"""
v_cvt_pk_bf16_f32 v{96+i}, v{96+i}, v5
v_cmp_eq_u32 vcc, 0, v2
s_add_u32 s23, s16, {i}
s_cmp_gt_u32 s23, 512
s_cbranch_scc1 L_emv_done
v_cndmask_b32 v{96+i}, v5, v{96+i}, vcc
s_mul_i32 s23, s23, {ATP}
s_add_u32 s24, s23, {WS_BT + 2048}
s_add_u32 s23, s23, {WS_AT + 2048}
s_mov_b32 exec_hi, 0
buffer_store_dword v{96+i}, v7, s[12:15], s23 offen
buffer_store_dword v5, v7, s[12:15], s24 offen
s_mov_b64 exec, -1
""")
    a("L_emv_done:")


VTOL = 2.0 ** -8 * 1.01
VMAX = 70
VB = 152


def cmp_dw(a, x, y, neg, rev=False):
    lo_y, hi_y = (f"v_and_b32 v5, 0xffff0000, v{y}", f"v_lshlrev_b32 v6, 16, v{y}") if rev else (f"v_lshlrev_b32 v5, 16, v{y}", f"v_and_b32 v6, 0xffff0000, v{y}")
    a(f"""
v_lshlrev_b32 v3, 16, v{x}
v_and_b32 v4, 0xffff0000, v{x}
{lo_y}
{hi_y}
v_fmac_f32 v3, s60, v5
v_fmac_f32 v4, s60, v6
v_max3_f32 v{VMAX}, |v3|, |v4|, v{VMAX}
""")


def verify_c_setup(a):
    a(f"""
s_bitcmp1_b32 s58, 0
s_cselect_b32 s76, s94, s92
s_cselect_b32 s77, s95, s93
s_cselect_b32 s60, 1.0, -1.0
s_mov_b32 s78, {2048*4096}
s_mov_b32 s79, 0x00020000
s_sub_u32 s62, 2048, s61
s_and_b32 s62, s62, 2047
s_lshl_b32 s61, s61, 12
s_lshl_b32 s62, s62, 12
""")


def verify_setup(a):
    a("s_lshl_b32 s58, s2, 3\ns_add_u32 s58, s58, s22\ns_lshr_b32 s61, s58, 1")
    verify_c_setup(a)


def verify_subs(a, par):
    P = par
    a(f"""
L_vload{P}:
s_cmp_eq_u32 s19, 3
s_cbranch_scc1 L_vload{P}_3
s_cmp_eq_u32 s19, 2
s_cbranch_scc1 L_vload{P}_2
s_lshl_b32 s63, s19, 11
s_add_u32 s59, s63, s62
s_add_u32 s63, s63, s61
buffer_load_dwordx4 v[{VB}:{VB+3}], v9, s[76:79], s63 offen offset:{P*1024}
buffer_load_dwordx4 v[{VB+4}:{VB+7}], v9, s[76:79], s59 offen offset:{P*1024}
s_branch L_vload{P}_ret
L_vload{P}_2:
v_sub_u32 v3, {4080 - 1024*P}, v9
buffer_load_dwordx4 v[{VB}:{VB+3}], v9, s[76:79], s61 offen offset:{P*1024+2}
buffer_load_dwordx4 v[{VB+4}:{VB+7}], v3, s[76:79], s61 offen
s_branch L_vload{P}_ret
L_vload{P}_3:
""")
    if P == 0:
        a(f"""
s_bitcmp1_b32 s58, 1
s_cselect_b32 s76, s52, s50
s_cselect_b32 s77, s53, s51
s_cselect_b32 s60, 1.0, -1.0
s_mov_b32 s78, {1024*2048}
s_lshr_b32 s61, s58, 2
s_add_u32 s61, s61, 1
s_sub_u32 s62, 1024, s61
s_lshl_b32 s61, s61, 11
s_lshl_b32 s62, s62, 11
s_and_b32 s63, s58, 1
s_lshl_b32 s63, s63, 10
s_add_u32 s61, s61, s63
s_add_u32 s62, s62, s63
buffer_load_dwordx4 v[{VB}:{VB+3}], v9, s[76:79], s61 offen
buffer_load_dwordx4 v[{VB+4}:{VB+7}], v9, s[76:79], s62 offen
""")
        srd(a, 80, 88, 89, 1024 * 2048)
        a(f"""
v_lshl_add_u32 v3, v0, 8, s2
v_lshlrev_b32 v3, 7, v3
buffer_load_dword v{VB+8}, v3, s[80:83], 0 offen
""")
    else:
        a(f"s_cmp_ge_u32 s58, 2\ns_cbranch_scc1 L_vload{P}_ret\ns_mov_b32 s61, 1024")
        verify_c_setup(a)
        a("v_sub_u32 v3, 4080, v9\nv_sub_u32 v4, 3056, v9")
        for j in range(4):
            a(f"buffer_load_dwordx4 v[{VB+4*j}:{VB+4*j+3}], v9, s[76:79], s61 offen offset:{j*1024}")
        for j in range(2):
            a(f"buffer_load_dwordx4 v[{VB+32+4*j}:{VB+32+4*j+3}], v9, s[76:79], s61 offen offset:{j*1024+2}")
            a(f"buffer_load_dwordx4 v[{VB+40+4*j}:{VB+40+4*j+3}], v{3+j}, s[76:79], s61 offen")
    a(f"""
s_branch L_vload{P}_ret
L_vcmp{P}:
s_cmp_eq_u32 s19, 2
s_cbranch_scc1 L_vcmp{P}_2
""")
    if P == 1:
        a(f"s_cmp_eq_u32 s19, 3\ns_cbranch_scc1 L_vcmp{P}_3")
    a(f"s_cmp_eq_u32 s61, 0\ns_cbranch_scc1 L_vcmp{P}_ret")
    for j in range(4):
        cmp_dw(a, VB + j, VB + 4 + j, 's')
    a(f"s_branch L_vcmp{P}_ret\nL_vcmp{P}_2:")
    for r_ in range(4):
        cmp_dw(a, VB + r_, VB + 4 + 3 - r_, 's', rev=True)
    a(f"s_branch L_vcmp{P}_ret")
    if P == 1:
        a(f"L_vcmp{P}_3:\ns_cmp_ge_u32 s58, 2\ns_cbranch_scc1 L_vcmp{P}_ret")
        for j in range(16):
            cmp_dw(a, VB + j, VB + j, 's')
        for j in range(2):
            for r_ in range(4):
                cmp_dw(a, VB + 32 + 4 * j + r_, VB + 40 + 4 * j + 3 - r_, 's', rev=True)
        a(f"s_branch L_vcmp{P}_ret")


def touch(a):
    a("""
s_load_dwordx4 s[32:35], s[0:1], 16
s_load_dwordx4 s[40:43], s[0:1], 64
s_sub_u32 s31, s2, 184
s_lshl_b32 s23, s31, 9
v_add_u32 v3, s23, v0
s_waitcnt lgkmcnt(0)
""")
    srd(a, 4, 32, 33, 65536)
    srd(a, 8, 34, 35, 65536)
    srd(a, 16, 40, 41, 513 * 2048)
    srd(a, 20, 42, 43, 512 * 2048)
    a(f"""
v_lshlrev_b32 v4, 7, v3
buffer_load_dword v12, v4, s[4:7], 0 offen
buffer_load_dword v13, v4, s[8:11], 0 offen
buffer_load_dword v10, v4, s[16:19], 0 offen
buffer_load_dword v11, v4, s[20:23], 0 offen
s_waitcnt vmcnt(0)
""")


def flag_load(a, vd, sr, lo, hi):
    srd(a, sr, lo, hi, 1024, WS_FLAG)
    a("v_and_b32 v3, 63, v0\nv_lshlrev_b32 v3, 4, v3")
    a(f"buffer_load_dwordx4 v[{vd}:{vd+3}], v3, s[{sr}:{sr+3}], 0 offen")


def flag_test(a, vd):
    for j in range(1, 4):
        a(f"v_or_b32 v{vd}, v{vd}, v{vd+j}")
    a(f"v_cmp_ne_u32 vcc, 0, v{vd}\ns_nop 1\ns_cmp_lg_u64 vcc, 0")


def g3(a):
    a("""
s_and_b32 s50, s30, 3
s_lshl_b32 s50, s50, 2
s_and_b32 s51, s31, 3
s_add_u32 s50, s50, s51
s_lshr_b32 s51, s30, 2
s_lshl_b32 s51, s51, 2
s_lshr_b32 s52, s31, 2
s_add_u32 s51, s51, s52
""")
    srd(a, 4, 40, 41, 2048 * 2048)
    a(f"""
s_cmp_ge_u32 s51, 4
s_cselect_b32 s8, s46, s44
s_cselect_b32 s9, s47, s45
s_cselect_b32 s20, {f32bits(-1.0)}, 1.0
s_mov_b32 s10, {1024*2048}
s_mov_b32 s11, 0x00020000
s_lshl_b32 s16, s50, 18
s_and_b32 s17, s51, 3
s_lshl_b32 s17, s17, 19
s_lshl_b32 s21, s51, 20
s_lshl_b32 s23, s50, 8
s_add_u32 s21, s21, s23
s_add_u32 s21, s21, {WS_AB}
""")
    gemm(a, "g3", 2, 4, 1, 'T', 2048, 2048, 16, 3, 4096, scale=True)


def touch2(a):
    a("""
v_lshl_add_u32 v3, v0, 8, s2
v_lshlrev_b32 v4, 7, v3
v_lshrrev_b32 v5, 5, v3
v_and_b32 v6, 31, v3
v_lshlrev_b32 v5, 12, v5
v_lshl_add_u32 v5, v6, 7, v5
v_mov_b32 v7, 0x7ffffff0
v_cmp_gt_u32 vcc, 17, v6
""")
    srd(a, 76, 88, 89, 1024 * 2048)
    a("v_cndmask_b32 v5, v7, v5, vcc\nbuffer_load_dword v196, v4, s[76:79], 0 offen")
    srd(a, 80, 92, 93, 1025 * 4096)
    a("buffer_load_dword v197, v5, s[80:83], 0 offen")
    srd(a, 84, 94, 95, 1025 * 4096)
    a("buffer_load_dword v198, v5, s[84:87], 0 offen")


def k1(a):
    kernel_header(a, "k1_kernel")
    a("""
s_cmp_ge_u32 s2, 256
s_cbranch_scc1 L_k1_end
s_cmp_ge_u32 s2, 184
s_cbranch_scc1 L_k1_touch
s_load_dwordx8 s[32:39], s[0:1], 0
s_load_dwordx2 s[40:41], s[0:1], 40
s_load_dwordx4 s[44:47], s[0:1], 64
s_load_dwordx2 s[48:49], s[0:1], 96
s_and_b32 s30, s2, 7
s_lshr_b32 s31, s2, 3
s_waitcnt lgkmcnt(0)
""")
    TLK[0] = 0
    tl(a, 0)
    srd(a, 12, 48, 49, WS_BYTES)
    a("""
s_cmp_ge_u32 s2, 176
s_cbranch_scc1 L_k1_emv
s_cmp_ge_u32 s2, 144
s_cbranch_scc1 L_k1_fold
s_cmp_ge_u32 s2, 128
s_cbranch_scc1 L_k1_kv
""")
    a(f"""
s_and_b32 s50, s30, 1
s_lshl_b32 s50, s50, 2
s_and_b32 s51, s31, 3
s_add_u32 s50, s50, s51
s_lshr_b32 s51, s30, 1
s_lshl_b32 s51, s51, 2
s_lshr_b32 s52, s31, 2
s_add_u32 s51, s51, s52
""")
    srd(a, 4, 34, 35, 1024 * 2048)
    srd(a, 8, 32, 33, 2048 * 2048)
    a(f"""
s_mov_b32 s20, {f32bits(QSCALE)}
s_lshl_b32 s16, s50, 8
s_lshl_b32 s17, s51, 18
s_add_u32 s21, s17, s16
""")
    tch = """
s_lshl_b32 s23, s2, 9
v_add_u32 v3, s23, v0
v_lshlrev_b32 v3, 7, v3
buffer_load_dword v160, v3, s[8:11], 0 offen
v_subrev_u32 v3, 0x400000, v3
buffer_load_dword v161, v3, s[4:7], 0 offen
"""
    gemm(a, "g1", 2, 2, 2, 'N', 2048, 2048, 16, 4, 2048, scale=True, touch=tch)
    tl(a, 5, True)
    a("s_endpgm")
    a("L_k1_kv:")
    wave_setup(a)
    a(f"""
s_cmp_ge_u32 s22, 4
s_cselect_b32 s4, s38, s36
s_cselect_b32 s5, s39, s37
s_mov_b32 s6, 65536
s_mov_b32 s7, 0x00020000
""")
    srd(a, 8, 32, 33, 2048 * 2048)
    a("""
s_mov_b32 s16, 0
s_sub_u32 s31, s2, 128
s_lshl_b32 s17, s31, 18
s_lshl_b32 s21, s31, 2
""")
    gemm_kv(a, "g2")
    tl(a, 5, True)
    a("s_endpgm\nL_k1_fold:\ns_sub_u32 s31, s2, 144")
    fold(a)
    tl(a, 5, True)
    a("s_endpgm\nL_k1_emv:\ns_sub_u32 s31, s2, 176")
    edge_mv(a)
    tl(a, 5, True)
    a("s_endpgm\nL_k1_touch:")
    touch(a)
    a("L_k1_end:\ns_endpgm")


def k2(a):
    kernel_header(a, "k2_kernel")
    a("""
s_cmp_ge_u32 s2, 256
s_cbranch_scc1 L_k2_end
s_load_dwordx2 s[50:51], s[0:1], 64
s_load_dwordx2 s[52:53], s[0:1], 72
s_load_dwordx2 s[88:89], s[0:1], 32
s_load_dwordx4 s[92:95], s[0:1], 48
s_load_dwordx2 s[48:49], s[0:1], 96
s_waitcnt lgkmcnt(0)
""")
    TLK[0] = 1
    tl(a, 0)
    srd(a, 12, 48, 49, WS_BYTES)
    a("s_lshl_b32 s26, s2, 14")
    attention(a, "at", "L_k2_end")
    a("L_k2_end:\ns_endpgm")


def k3(a):
    kernel_header(a, "k3_kernel")
    a("""
s_cmp_ge_u32 s2, 256
s_cbranch_scc1 L_k3_end
s_load_dwordx2 s[32:33], s[0:1], 32
s_load_dwordx2 s[34:35], s[0:1], 80
s_load_dwordx2 s[48:49], s[0:1], 96
s_load_dwordx4 s[56:59], s[0:1], 48
s_and_b32 s30, s2, 7
s_lshr_b32 s31, s2, 3
s_waitcnt lgkmcnt(0)
""")
    TLK[0] = 2
    tl(a, 0)
    a("""
s_cmp_ge_u32 s2, 128
s_cbranch_scc1 L_k3_s2
s_and_b32 s50, s30, 1
s_lshl_b32 s50, s50, 2
s_and_b32 s51, s31, 3
s_add_u32 s50, s50, s51
s_lshr_b32 s51, s30, 1
s_lshl_b32 s51, s51, 2
s_lshr_b32 s52, s31, 2
s_add_u32 s51, s51, s52
""")
    srd(a, 4, 32, 33, 1024 * 2048)
    srd(a, 8, 48, 49, 2048 * 2048, WS_O)
    srd(a, 12, 34, 35, 2048 * 4096)
    a("""
s_lshl_b32 s16, s50, 8
s_lshl_b32 s17, s51, 18
s_lshl_b32 s21, s51, 19
s_add_u32 s21, s21, s16
""")
    gemm(a, "g5", 2, 2, 2, 'N', 2048, 2048, 16, 4, 4096)
    tl(a, 5, True)
    a("""
s_endpgm
L_k3_s2:
s_sub_u32 s31, s31, 16
s_mov_b32 s50, s56
s_mov_b32 s51, s57
s_mov_b32 s52, s58
s_mov_b32 s53, s59
""")
    stage2(a)
    tl(a, 5, True)
    a("""
s_endpgm
L_k3_fb:
s_load_dwordx2 s[40:41], s[0:1], 40
s_load_dwordx4 s[44:47], s[0:1], 64
s_load_dwordx2 s[90:91], s[0:1], 88
s_mov_b32 s36, s34
s_mov_b32 s37, s35
s_mov_b32 s32, s50
s_mov_b32 s33, s51
s_mov_b32 s34, s52
s_mov_b32 s35, s53
s_waitcnt vmcnt(0) lgkmcnt(0)
s_barrier
""")
    srd(a, 12, 48, 49, WS_BYTES)
    g3(a)
    a("""
s_waitcnt vmcnt(0) lgkmcnt(0)
s_barrier
s_cmp_lg_u32 s22, 0
s_cbranch_scc1 L_k3_gb2
buffer_wbl2 sc1
s_waitcnt vmcnt(0)
v_mov_b32 v3, 0
v_mov_b32 v4, 1
s_mov_b64 exec, 1
global_atomic_add v3, v4, s[90:91] sc1
s_waitcnt vmcnt(0)
L_k3_gb1:
s_sleep 8
global_load_dword v5, v3, s[90:91] sc1
s_waitcnt vmcnt(0)
v_readfirstlane_b32 s23, v5
s_nop 3
s_cmp_lt_u32 s23, 128
s_cbranch_scc1 L_k3_gb1
s_mov_b64 exec, -1
buffer_inv sc1
s_waitcnt vmcnt(0)
L_k3_gb2:
s_barrier
""")
    g4(a)
    a("L_k3_end:\ns_endpgm")


def V(n):
    return 256 if os.environ.get('TL') else n


def main():
    a = Asm()
    hdr = open("cdna_kernels/" + KN + ".s.ref").read().split("; Override launch")[0]
    launches = """; @launch kernel=k1_kernel grid=(256,1,1) block=(512,1,1) lds=131072
; @launch kernel=k2_kernel grid=(256,1,1) block=(512,1,1) lds=163840
; @launch kernel=k3_kernel grid=(256,1,1) block=(512,1,1) lds=147456
"""
    k1(a)
    k2(a)
    k3(a)
    out = hdr + launches + '.amdgcn_target "amdgcn-amd-amdhsa--gfx950"\n.text\n' + a.text()
    out += '.section .rodata,"a"\n.p2align 6\n' + kernel_desc("k1_kernel", V(168)) + ".p2align 6\n" + kernel_desc("k2_kernel", V(256)) + ".p2align 6\n" + kernel_desc("k3_kernel", V(224))
    open(sys.argv[1] if len(sys.argv) > 1 else "out.s", "w").write(out)


if __name__ == "__main__":
    main()
```

```python
import sys, os
PROF = os.environ.get('PROF'); NOMFMA = os.environ.get('NOMFMA'); NODMA = os.environ.get('NODMA')

KN = "concat_heads__grouped_kv_mqa__spectral_fnet__prompt"
WS_Q = 0
WS_KF = 4 << 20
WS_VF = (4 << 20) + (128 << 10)
WS_AB = 8 << 20
WS_O = 16 << 20
WS_XP = 26 << 20
WS_XM = 29 << 20
WS_AT = 32 << 20
WS_BT = 34 << 20
WS_FLAG = 36 << 20
ATP = 2176
QSCALE = 1.4426950408889634 * 32 ** -0.5


def f32bits(x):
    import struct
    return struct.unpack("<I", struct.pack("<f", x))[0]


class Asm:
    def __init__(self):
        self.lines = []

    def __call__(self, s):
        for l in s.strip("\n").split("\n"):
            self.lines.append(l if l.endswith(":") else "    " + l.strip())

    def text(self):
        return "\n".join(self.lines) + "\n"


def srd(a, d, lo, hi, nbytes, off=0):
    if off:
        a(f"s_add_u32 s{d}, s{lo}, {off}\ns_addc_u32 s{d+1}, s{hi}, 0")
    else:
        a(f"s_mov_b32 s{d}, s{lo}\ns_mov_b32 s{d+1}, s{hi}")
    a(f"s_mov_b32 s{d+2}, {nbytes}\ns_mov_b32 s{d+3}, 0x00020000")


FR = [16, 32]
UID = [0]
PROFOFF = {'g1': 0, 'g2': 0, 'g3': 0, 'g4': 65536, 'g5': 131072, 's1': 65536, 's2': 131072}
ACC = 64
DV = 48
RA = 128


def pipeline(a, tag, nsteps, NS, nu, dmas, reads, mfmas, nreads, kadv, switch=None, pre=None, setup=None, xtra=0):
    nd = len(dmas(0))

    def issue_all(stage):
        for g in dmas(stage % NS):
            for ins in g:
                a(ins)
        for ins in kadv:
            a(ins)

    for st in range(min(NS - 1, nsteps)):
        issue_all(st)
    if setup is not None:
        setup()
    if pre is not None:
        pre()
        a("s_waitcnt vmcnt(0)")
    else:
        a(f"s_waitcnt vmcnt({(min(NS - 1, nsteps) - 1) * nd + xtra})")
    a("s_barrier")
    stamp_begin(a, 72)
    tl(a, 1)
    for ins in reads(0, 0, 0):
        a(ins)
    state = {"set": 0}

    def step(i, dyn=False):
        do_dma = (i + NS - 1) <= nsteps - 1
        groups = list(dmas((i + NS - 1) % NS)) if do_dma else []
        if do_dma and switch is not None:
            if dyn:
                a(switch[2])
            elif i + NS - 1 == switch[0]:
                a(switch[1])
        mcount = len(mfmas(0))
        half = mcount // 2
        nm = (nu - 1) * mcount + half
        slots = [[] for _ in range(nu * mcount)]
        for gi, g in enumerate(groups):
            slots[min(nm - 1, gi * nm // max(1, len(groups)))].extend(g)
        if do_dma:
            slots[nm - 1].extend(kadv)
        last_issued = min(i + NS - 1, nsteps - 1)
        mi = 0

        def emit_m(ms):
            nonlocal mi
            for m in ms:
                if not NOMFMA:
                    a(m)
                for ins in slots[mi]:
                    if NODMA and 'buffer_load' in ins:
                        continue
                    a(ins)
                mi += 1

        for ul in range(nu):
            cur = state["set"]
            nxt = 1 - cur
            ms = mfmas(cur)
            if ul + 1 < nu:
                rd = reads(i % NS, ul + 1, nxt)
                for ins in rd:
                    a(ins)
                a(f"s_waitcnt lgkmcnt({len(rd)})")
                emit_m(ms)
            else:
                a("s_waitcnt lgkmcnt(0)")
                emit_m(ms[:half])
                if i + 1 <= nsteps - 1:
                    a(f"s_waitcnt vmcnt({(last_issued - (i + 1)) * nd + (xtra if (i + 1 <= NS - 2 and not dyn) else 0)})")
                    a("s_barrier")
                    for ins in reads((i + 1) % NS, 0, nxt):
                        a(ins)
                emit_m(ms[half:])
            state["set"] = nxt

    xtra_block = False
    steady_end = nsteps - NS + 1
    unroll = NS if (nu % 2 == 0 or NS % 2 == 0) else 2 * NS
    nloop = steady_end // unroll
    if nloop >= 2 and nsteps > int(os.environ.get('LOOPMIN', '16')) and not xtra_block:
        UID[0] += 1
        lab = f"L_{tag}_loop{UID[0]}"
        a(f"s_mov_b32 s19, 0")
        a(f"{lab}:")
        for i in range(unroll):
            step(i, dyn=True)
        a(f"s_add_u32 s19, s19, 1\ns_cmp_lt_u32 s19, {nloop}\ns_cbranch_scc1 {lab}")
        start = nloop * unroll
    else:
        start = 0
    for i in range(start, nsteps):
        step(i)
    stamp_end(a, PROFOFF[tag], 72)
    tl(a, 2)


def stamp_begin(a, base=64):
    if PROF:
        a(f"s_memtime s[{base}:{base+1}]\ns_memrealtime s[{base+4}:{base+5}]\ns_waitcnt lgkmcnt(0)")


def stamp_end(a, off, base=64):
    if PROF:
        a(f"""s_memtime s[{base+2}:{base+3}]
s_memrealtime s[{base+6}:{base+7}]
s_waitcnt lgkmcnt(0)
s_sub_u32 s{base+2}, s{base+2}, s{base}
s_sub_u32 s{base+6}, s{base+6}, s{base+4}
s_load_dwordx2 s[{base}:{base+1}], s[0:1], 96
s_waitcnt lgkmcnt(0)
s_add_u32 s{base}, s{base}, {24<<20}
s_addc_u32 s{base+1}, s{base+1}, 0
v_mov_b32 v6, s{base+2}
v_mov_b32 v7, s{base+6}
s_lshl_b32 s23, s2, 6
s_lshl_b32 s{base+2}, s22, 3
s_add_u32 s23, s23, s{base+2}
s_add_u32 s23, s23, {off}
v_mov_b32 v5, s23
global_store_dwordx2 v5, v[6:7], s[{base}:{base+1}]
""")


TLK = [0]


def tl(a, slot, drain=False):
    if not os.environ.get('TL'):
        return
    if drain:
        a("s_waitcnt vmcnt(0)")
    a(f"""s_memrealtime s[80:81]
s_load_dwordx2 s[82:83], s[0:1], 96
s_waitcnt lgkmcnt(0)
s_add_u32 s82, s82, {(24<<20) + (512<<10) + TLK[0]*65536 + slot*4}
s_addc_u32 s83, s83, 0
s_lshl_b32 s84, s2, 6
v_mov_b32 v198, s84
v_mov_b32 v199, s80
v_cmp_eq_u32 vcc, 0, v0
s_and_saveexec_b64 s[86:87], vcc
s_cbranch_execz 1
global_store_dword v198, v199, s[82:83]
s_mov_b64 exec, s[86:87]
""".replace("s_cbranch_execz 1\n", ""))


def wave_setup(a):
    a("""
v_lshrrev_b32 v1, 6, v0
s_nop 0
v_readfirstlane_b32 s22, v1
v_and_b32 v2, 63, v0
s_nop 2
s_lshl_b32 s18, s22, 10
""")


def t_dma_voff(a, vdst, n, pitch):
    a(f"""
v_lshrrev_b32 v3, 3, v2
v_lshl_add_u32 v3, v1, 3, v3
v_bfe_u32 v4, v3, 1, 3
v_and_b32 v5, 7, v2
v_xor_b32 v4, v4, v5
v_lshlrev_b32 v4, 4, v4
s_mov_b32 s23, {pitch}
v_mul_lo_u32 v3, v3, s23
v_add_u32 v{vdst}, v3, v4
""")
    for i in range(1, n):
        a(f"v_add_u32 v{vdst+i}, {i*64*pitch}, v{vdst}")


def n_dma_voff(a, vdst, n, pitch, MT):
    lpr = MT * 2 // 16
    rows = 64 // lpr
    sh = lpr.bit_length() - 1
    a(f"""
v_lshrrev_b32 v3, {sh}, v2
v_lshl_add_u32 v3, v1, {rows.bit_length()-1}, v3
v_and_b32 v5, {lpr-1}, v2
v_lshrrev_b32 v6, 2, v5
v_and_b32 v4, 3, v3
v_xor_b32 v6, v6, v4
v_and_b32 v5, 3, v5
v_lshlrev_b32 v5, 4, v5
v_lshl_add_u32 v5, v6, 6, v5
s_mov_b32 s23, {pitch}
v_mul_lo_u32 v3, v3, s23
v_add_u32 v{vdst}, v3, v5
""")
    for i in range(1, n):
        a(f"v_add_u32 v{vdst+i}, {i*8*rows*pitch}, v{vdst}")


def t_read_addr(a, vdst, nu, srow, skg2, base, NS, STAGE, stride):
    a(f"""
v_and_b32 v3, 31, v2
v_bfe_u32 v4, v3, 1, 3
v_lshrrev_b32 v5, 5, v2
v_xor_b32 v4, v4, v5
v_xor_b32 v4, s{skg2}, v4
v_add_u32 v3, s{srow}, v3
v_lshlrev_b32 v3, 7, v3
v_lshl_add_u32 v3, v4, 4, v3
""")
    for st in range(NS):
        for ul in range(nu):
            if ul == 0:
                a(f"v_add_u32 v{vdst+st*stride}, {base+st*STAGE}, v3")
            else:
                a(f"v_xor_b32 v{vdst+st*stride+ul}, {ul*32}, v{vdst+st*stride}")


def n_read_addr(a, vdst, sunit, skrow, LP, base, NS, STAGE, stride, nblk=2):
    a(f"""
v_bfe_u32 v3, v2, 2, 2
v_lshrrev_b32 v4, 5, v2
v_lshl_add_u32 v4, v4, 3, v3
s_mov_b32 s23, {LP}
v_mul_lo_u32 v4, v4, s23
v_add_u32 v4, s{skrow}, v4
v_bfe_u32 v5, v2, 4, 1
v_lshl_add_u32 v4, v5, 5, v4
v_and_b32 v5, 3, v2
v_lshl_add_u32 v4, v5, 3, v4
""")
    for b in range(nblk):
        a(f"""
s_add_u32 s23, s{sunit}, {b}
v_xor_b32 v5, s23, v3
v_lshl_add_u32 v5, v5, 6, v4
""")
        for st in range(NS):
            a(f"v_add_u32 v{vdst+st*stride+b}, {base+st*STAGE}, v5")


def gemm(a, tag, WM, WN, KS, ptype, pP, pR, nsteps, NS, opitch, scale=False, switch=None, touch=None):
    assert WM * WN * KS == 8
    MT, NT = 64 * WM, 64 * WN
    PB, RB = MT * 128, NT * 128
    STAGE = PB + RB
    nu = 4 // KS
    ncP, ncR = PB // 8192, RB // 8192
    wave_setup(a)
    lw = (WM * WN).bit_length() - 1
    lm = WM.bit_length() - 1
    a(f"""
s_lshr_b32 s24, s22, {lw}
s_and_b32 s25, s22, {WM-1}
s_lshr_b32 s26, s22, {lm}
s_and_b32 s26, s26, {WN-1}
""")
    if ptype == 'T':
        t_dma_voff(a, DV, ncP, pP)
    else:
        n_dma_voff(a, DV, ncP, pP, MT)
    t_dma_voff(a, DV + ncP, ncR, pR)
    nP = nu if ptype == 'T' else 2
    stride = nP + nu

    def setup():
        if touch:
            a(touch)
        a(f"s_mul_i32 s27, s24, {nu*2}")
        if ptype == 'T':
            a(f"s_lshl_b32 s28, s25, 6")
            t_read_addr(a, RA, nu, 28, 27, 0, NS, STAGE, stride)
        else:
            a(f"s_lshl_b32 s28, s25, 1\ns_mul_i32 s29, s24, {nu*16*MT*2}")
            n_read_addr(a, RA, 28, 29, MT * 2, 0, NS, STAGE, stride)
        a(f"s_lshl_b32 s28, s26, 6")
        t_read_addr(a, RA + nP, nu, 28, 27, PB, NS, STAGE, stride)
        for i in range(64):
            a(f"v_mov_b32 v{ACC+i}, 0")

    def dmas(st):
        r = []
        for i in range(ncP):
            r.append([f"s_add_u32 m0, s18, {st*STAGE + i*8192}", "s_nop 0",
                      f"buffer_load_dwordx4 v{DV+i}, s[4:7], s16 offen lds"])
        for i in range(ncR):
            r.append([f"s_add_u32 m0, s18, {st*STAGE + PB + i*8192}", "s_nop 0",
                      f"buffer_load_dwordx4 v{DV+ncP+i}, s[8:11], s17 offen lds"])
        return r

    def reads(st, ul, fs):
        f = FR[fs]
        r = []
        if ptype == 'T':
            for b in range(2):
                r.append(f"ds_read_b128 v[{f+4*b}:{f+4*b+3}], v{RA+st*stride+ul} offset:{b*4096}")
        else:
            for b in range(2):
                for rr in range(2):
                    r.append(f"ds_read_b64_tr_b16 v[{f+4*b+2*rr}:{f+4*b+2*rr+1}], v{RA+st*stride+b} offset:{(16*ul+4*rr)*MT*2}")
        for b in range(2):
            r.append(f"ds_read_b128 v[{f+8+4*b}:{f+8+4*b+3}], v{RA+st*stride+nP+ul} offset:{b*4096}")
        return r

    def mfmas(fs):
        f = FR[fs]
        r = []
        for nb in range(2):
            for mb in range(2):
                c = ACC + 16 * (nb * 2 + mb)
                r.append(f"v_mfma_f32_32x32x16_bf16 v[{c}:{c+15}], v[{f+4*mb}:{f+4*mb+3}], v[{f+8+4*nb}:{f+8+4*nb+3}], v[{c}:{c+15}]")
        return r

    kadv = [f"s_add_u32 s16, s16, {128 if ptype == 'T' else 64*pP}", "s_add_u32 s17, s17, 128"]
    pipeline(a, tag, nsteps, NS, nu, dmas, reads, mfmas, None, kadv, switch, setup=setup, xtra=(2 if touch else 0))

    a("s_nop 15\ns_nop 3")
    blocks = [(nb, mb) for nb in range(2) for mb in range(2)]
    if KS == 2:
        a("s_barrier")
        a(f"""
v_lshlrev_b32 v3, 4, v2
s_lshl_b32 s23, s22, 13
v_add_u32 v3, s23, v3
s_xor_b32 s23, s22, 4
s_lshl_b32 s23, s23, 13
v_lshlrev_b32 v4, 4, v2
v_add_u32 v4, s23, v4
s_cmp_eq_u32 s24, 0
s_cbranch_scc1 L_{tag}_x0
""")
        for j in range(8):
            a(f"ds_write_b128 v3, v[{ACC+4*j}:{ACC+4*j+3}] offset:{j*1024}")
        for j in range(32):
            a(f"v_mov_b32 v{ACC+j}, v{ACC+32+j}")
        a(f"s_branch L_{tag}_x1\nL_{tag}_x0:")
        for j in range(8):
            a(f"ds_write_b128 v3, v[{ACC+32+4*j}:{ACC+32+4*j+3}] offset:{j*1024}")
        a(f"L_{tag}_x1:\ns_waitcnt lgkmcnt(0)\ns_barrier")
        for j in range(8):
            a(f"ds_read_b128 v[{ACC+32+4*j}:{ACC+32+4*j+3}], v4 offset:{j*1024}")
        for j in range(8):
            a(f"s_waitcnt lgkmcnt({7-j})")
            for r in range(4):
                a(f"v_add_f32 v{ACC+4*j+r}, v{ACC+4*j+r}, v{ACC+32+4*j+r}")
        blocks = [(0, 0), (0, 1)]
    a(f"""
s_lshl_b32 s23, s26, 6
v_and_b32 v3, 31, v2
v_add_u32 v3, s23, v3
""")
    if KS == 2:
        a("s_lshl_b32 s23, s24, 5\nv_add_u32 v3, s23, v3")
    a(f"""
s_mov_b32 s23, {opitch}
v_mul_lo_u32 v3, v3, s23
v_lshrrev_b32 v4, 5, v2
v_lshl_add_u32 v3, v4, 4, v3
s_lshl_b32 s23, s25, 7
s_add_u32 s23, s23, s21
v_add_u32 v3, s23, v3
v_add_u32 v4, {32*opitch}, v3
""")
    for bi, (nb, mb) in enumerate(blocks):
        c = ACC + 16 * (nb * 2 + mb)
        t = 16 + 8 * (bi % 4)
        if scale:
            for r in range(16):
                a(f"v_mul_f32 v{c+r}, s20, v{c+r}")
        for r in range(8):
            a(f"v_cvt_pk_bf16_f32 v{t+r}, v{c+2*r}, v{c+2*r+1}")
        a("s_nop 1")
        for p in range(2):
            a(f"v_permlane32_swap_b32 v{t+4*p}, v{t+4*p+2}\nv_permlane32_swap_b32 v{t+4*p+1}, v{t+4*p+3}")
        for p in range(2):
            a(f"buffer_store_dwordx4 v[{t+4*p}:{t+4*p+3}], v{3+nb}, s[12:15], 0 offen offset:{mb*64+p*32}")


def gemm_kv(a, tag, NS=4):
    PB, RB = 8192, 16384
    STAGE = PB + RB
    nu = 4
    a(f"""
v_and_b32 v3, 3, v1
v_lshlrev_b32 v3, 10, v3
v_lshl_add_u32 v{DV}, v2, 4, v3
""")
    t_dma_voff(a, DV + 1, 2, 2048)
    stride = 1 + nu

    def dmas(st):
        r_ = [[f"s_add_u32 m0, s18, {st*STAGE}", "s_nop 0", f"buffer_load_dwordx4 v{DV}, s[4:7], s16 offen lds"]]
        for i in range(2):
            r_.append([f"s_add_u32 m0, s18, {st*STAGE + PB + i*8192}", "s_nop 0",
                       f"buffer_load_dwordx4 v{DV+1+i}, s[8:11], s17 offen lds"])
        return r_

    def setup():
        a(f"""
v_bfe_u32 v3, v2, 2, 2
v_lshrrev_b32 v4, 5, v2
v_lshl_add_u32 v4, v4, 3, v3
v_lshlrev_b32 v4, 6, v4
v_bfe_u32 v5, v2, 4, 1
v_lshl_add_u32 v4, v5, 5, v4
v_and_b32 v5, 3, v2
v_lshl_add_u32 v4, v5, 3, v4
v_lshrrev_b32 v5, 2, v1
v_lshl_add_u32 v4, v5, 12, v4
""")
        for st in range(NS):
            a(f"v_add_u32 v{RA+st*stride}, {st*STAGE}, v4")
        a("s_mov_b32 s27, 0\ns_and_b32 s28, s22, 3\ns_lshl_b32 s28, s28, 5")
        t_read_addr(a, RA + 1, nu, 28, 27, PB, NS, STAGE, stride)
        for i in range(16):
            a(f"v_mov_b32 v{ACC+i}, 0")

    def reads(st, ul, fs):
        f = FR[fs]
        r_ = []
        for rr in range(2):
            r_.append(f"ds_read_b64_tr_b16 v[{f+2*rr}:{f+2*rr+1}], v{RA+st*stride} offset:{(16*ul+4*rr)*64}")
        r_.append(f"ds_read_b128 v[{f+8}:{f+11}], v{RA+st*stride+1+ul}")
        return r_

    kadv = ["s_add_u32 s16, s16, 4096", "s_add_u32 s17, s17, 128"]
    a(f"s_cmp_ge_u32 s22, 4\ns_cbranch_scc1 L_{tag}_v")
    for kv in range(2):
        if kv:
            a(f"L_{tag}_v:")

        def mfmas(fs):
            f = FR[fs]
            if kv == 0:
                return ["s_nop 0", f"v_mfma_f32_32x32x16_bf16 v[{ACC}:{ACC+15}], v[{f}:{f+3}], v[{f+8}:{f+11}], v[{ACC}:{ACC+15}]"]
            return ["s_nop 0", f"v_mfma_f32_32x32x16_bf16 v[{ACC}:{ACC+15}], v[{f+8}:{f+11}], v[{f}:{f+3}], v[{ACC}:{ACC+15}]"]

        pipeline(a, tag, 16, NS, nu, dmas, reads, mfmas, None, kadv, setup=setup)
        a("s_nop 15\ns_nop 3")
        a(f"""
s_and_b32 s23, s22, 3
s_add_u32 s23, s21, s23
s_lshl_b32 s23, s23, 12
v_lshlrev_b32 v3, 4, v2
v_add_u32 v3, s23, v3
v_add_u32 v3, {WS_KF + 2048*kv}, v3
""")
        for r_ in range(8):
            a(f"v_cvt_pk_bf16_f32 v{16+r_}, v{ACC+2*r_}, v{ACC+2*r_+1}")
        if kv == 0:
            a("s_nop 1")
            for p in range(2):
                a(f"v_permlane32_swap_b32 v{16+4*p}, v{16+4*p+2}\nv_permlane32_swap_b32 v{16+4*p+1}, v{16+4*p+3}")
        for p in range(2):
            a(f"buffer_store_dwordx4 v[{16+4*p}:{16+4*p+3}], v3, s[12:15], 0 offen offset:{p*1024}")
        if kv == 0:
            tl(a, 5, True)
            a("s_endpgm")


def kernel_header(a, name):
    a.lines.append(f".globl {name}\n.p2align 8\n.type {name},@function\n{name}:")


def kernel_desc(name, vgpr, sgpr=100):
    return f""".amdhsa_kernel {name}
  .amdhsa_next_free_vgpr {vgpr}
  .amdhsa_next_free_sgpr {sgpr}
  .amdhsa_accum_offset {(vgpr+3)//4*4}
  .amdhsa_group_segment_fixed_size 0
  .amdhsa_kernarg_size 104
  .amdhsa_user_sgpr_count 2
  .amdhsa_user_sgpr_kernarg_segment_ptr 1
  .amdhsa_system_sgpr_workgroup_id_x 1
.end_amdhsa_kernel
"""


WS_BYTES = 40 << 20


def g4(a):
    a("""
s_and_b32 s50, s30, 1
s_lshl_b32 s50, s50, 2
s_and_b32 s51, s31, 3
s_add_u32 s50, s50, s51
s_lshr_b32 s51, s30, 1
s_lshl_b32 s51, s51, 2
s_lshr_b32 s52, s31, 2
s_add_u32 s51, s51, s52
""")
    if os.environ.get('SAMETILE') == '1':
        a("s_mov_b32 s50, 0\ns_mov_b32 s51, 0")
    if os.environ.get('SAMETILE') == '2':
        a("s_and_b32 s50, s30, 7\ns_mov_b32 s51, s30")
    if os.environ.get('SAMETILE') == '3':
        a("s_and_b32 s50, s2, 7\ns_lshr_b32 s51, s2, 3")
    srd(a, 4, 48, 49, 2048 * 4096, WS_AB)
    srd(a, 8, 32, 33, 2048 * 4096)
    srd(a, 12, 36, 37, 2048 * 4096)
    a("""
s_lshl_b32 s16, s50, 19
s_lshl_b32 s17, s51, 19
s_lshl_b32 s21, s50, 8
s_add_u32 s21, s21, s17
s_add_u32 s21, s21, 2048
s_add_u32 s53, s17, 4096
""")
    sw = f"""
s_mov_b32 s8, s34
s_mov_b32 s9, s35
s_sub_u32 s17, s17, 4096
s_add_u32 s16, s16, {1024*4096 - 4096}
s_mov_b32 s53, -1
"""
    uid = [0]

    class Dyn(str):
        pass
    dyn = f"""
s_cmp_eq_u32 s17, s53
s_cselect_b32 s8, s34, s8
s_cselect_b32 s9, s35, s9
s_cselect_b32 s23, 4096, 0
s_cselect_b32 s54, {1024*4096 - 4096}, 0
s_cselect_b32 s53, -1, s53
s_sub_u32 s17, s17, s23
s_add_u32 s16, s16, s54
"""
    gemm(a, "g4", 2, 2, 2, 'T', 4096, 4096, 64, 4, 4096, switch=(32, sw, dyn))


TPS = 8
ASTAGE = TPS * 4096
ANS = 3
NSTG = 64 // TPS
Q0, KF_, VF_, P_, ONES, LA, LB, NEGM, SX, SY, OA, OB = 16, 32, 40, 48, 56, 60, 64, 72, 88, 104, 120, 136
ST, KT, VT, PT = 152, 168, 176, 184
THR1 = 2.0 ** int(os.environ.get('THR1', '60'))
THR2 = 2.0 ** 120
MARGIN = int(os.environ.get('MARGIN', '60'))


def r(b, n):
    return f"v[{b}:{b+n-1}]"


def mf32(d, a_, b_, c):
    return f"v_mfma_f32_32x32x16_bf16 {r(d,16)}, {r(a_,4)}, {r(b_,4)}, {r(c,16) if isinstance(c,int) else c}"


def mf16(d, a_, b_, c):
    return f"v_mfma_f32_16x16x32_bf16 {r(d,4)}, {r(a_,4)}, {r(b_,4)}, {r(c,4)}"


def attn_dma(a, i):
    a(f"s_add_u32 m0, s17, {i*8192}\ns_nop 0\nbuffer_load_dwordx4 v{12+i}, s[12:15], s16 offen lds")


def attn_dma_adv(a):
    a(f"""
s_add_u32 s16, s16, {ASTAGE}
s_add_u32 s17, s17, {ASTAGE}
s_sub_u32 s30, s17, {ANS*ASTAGE}
s_cmp_ge_u32 s17, {ANS*ASTAGE}
s_cselect_b32 s17, s30, s17
""")


def attn_tile(a, tt, X, Y, Oc, Od, lc, ld, par=0):
    def rd(dst, t2, part):
        v = 10 if t2 < TPS else 11
        a(f"ds_read_b128 {r(dst,4)}, v{v} offset:{(t2 % TPS)*4096 + part*1024}")
    bar = (tt == TPS - 2)
    if bar:
        a("s_waitcnt vmcnt(0)\ns_barrier")
    E = lambda i: a(f"v_exp_f32 v{X+i}, v{X+i}")
    C = lambda i: a(f"v_cvt_pk_bf16_f32 v{P_+i}, v{X+2*i}, v{X+2*i+1}")
    last = (tt == TPS - 1)
    if tt == 0:
        a(f"s_branch L_vload{par}\nL_vload{par}_ret:")
    if last:
        a(f"s_branch L_vcmp{par}\nL_vcmp{par}_ret:")

    def hook(i):
        if bar:
            attn_dma(a, i)
            if i == 3: attn_dma_adv(a)
        if tt == 0:
            s1_dma(a, par, i)
    a(f"s_waitcnt lgkmcnt({8 if last else 2})")
    a(mf32(Y, KF_, Q0, NEGM))
    for i in range(4): E(i)
    hook(0)
    a("s_waitcnt lgkmcnt(0)")
    if tt > 0:
        a(mf32(Od, VF_ + 4, P_ + 4, Od))
    if tt == TPS - 1:
        rd(VF_ + 4, tt, 3)
    for i in range(4, 6): E(i)
    if last: s1_mfma(a, 0)
    for i in range(6, 8): E(i)
    hook(1)
    if tt > 0:
        a(mf16(ld, ONES, P_ + 4, ld))
        for i in range(4): C(i)
    else:
        for i in (0, 1, 2, 3): C(i) if i < 3 else (a("s_nop 0") if False else C(i))
    a(mf32(Y, KF_ + 4, Q0 + 4, Y))
    rd(KF_, tt + 2, 0)
    rd(KF_ + 4, tt + 2, 1)
    for i in range(8, 10): E(i)
    if last: s1_mfma(a, 1)
    for i in range(10, 12): E(i)
    hook(2)
    a(mf32(Od, VF_, P_, Oc))
    if tt < TPS - 1:
        rd(VF_ + 4, tt, 3)
        rd(VF_, tt + 1, 2)
    else:
        rd(VF_, tt + 1, 2)
    for i in range(12, 14): E(i)
    if last: s1_mfma(a, 2)
    for i in range(14, 16): E(i)
    hook(3)
    a(mf16(ld, ONES, P_, lc))
    if bar: s1_reads(a, par)
    for i in range(4, 8): C(i)
    if last: s1_mfma(a, 3)
    if tt == TPS - 1:
        a("s_waitcnt lgkmcnt(3)\ns_nop 0")
        a(mf32(Od, VF_ + 4, P_ + 4, Od))
        a(mf16(ld, ONES, P_ + 4, ld))


def attn_slow(a, tag, Oold, Onew, lold, lnew, Snext):
    a(f"L_{tag}_slow:")
    a("s_nop 15")
    a(f"v_cmp_nlt_f32 vcc, v{lnew}, s29\ns_nop 4\ns_cbranch_vccnz L_{tag}_heavy")
    a(f"""
v_frexp_exp_i32_f32 v3, v{lnew}
v_add_u32 v3, {MARGIN}, v3
v_cvt_f32_i32 v4, v3
v_sub_u32 v3, 0, v3
""")
    for i in range(16): a(f"v_ldexp_f32 v{Onew+i}, v{Onew+i}, v3")
    for i in range(4): a(f"v_ldexp_f32 v{lnew+i}, v{lnew+i}, v3")
    for i in range(16): a(f"v_sub_f32 v{NEGM+i}, v{NEGM+i}, v4")
    for i in range(16): a(f"v_sub_f32 v{Snext+i}, v{Snext+i}, v4")
    a(f"s_nop 1\ns_branch L_{tag}_ret")
    a(f"L_{tag}_heavy:")
    a(f"s_waitcnt lgkmcnt(0)\nv_log_f32 v5, v{lold}\nv_mov_b32 v6, v10\ns_mov_b32 s30, 0")
    a(f"L_{tag}_h1:")
    a(f"ds_read_b128 {r(KT,4)}, v6\nds_read_b128 {r(KT+4,4)}, v6 offset:1024\ns_waitcnt lgkmcnt(0)")
    a(mf32(ST, KT, Q0, NEGM)); a(mf32(ST, KT + 4, Q0 + 4, ST))
    a("s_nop 15")
    for i in range(8): a(f"v_max3_f32 v5, v{ST+2*i}, v{ST+2*i+1}, v5")
    a(f"v_add_u32 v6, 4096, v6\ns_add_u32 s30, s30, 1\ns_cmp_lt_u32 s30, {TPS}\ns_cbranch_scc1 L_{tag}_h1")
    a(f"""
v_mov_b32 v6, v5
s_nop 1
v_permlane32_swap_b32 v5, v6
s_nop 1
v_max_f32 v5, v5, v6
v_ceil_f32 v4, v5
v_add_f32 v4, {f32bits(float(MARGIN))}, v4
v_cvt_i32_f32 v3, v4
v_sub_u32 v3, 0, v3
""")
    for i in range(16): a(f"v_ldexp_f32 v{Onew+i}, v{Oold+i}, v3")
    for i in range(4): a(f"v_ldexp_f32 v{lnew+i}, v{lold+i}, v3")
    for i in range(16): a(f"v_sub_f32 v{NEGM+i}, v{NEGM+i}, v4")
    for i in range(16): a(f"v_sub_f32 v{Snext+i}, v{Snext+i}, v4")
    a(f"v_mov_b32 v6, v10\ns_mov_b32 s30, 0")
    a(f"L_{tag}_h2:")
    a(f"ds_read_b128 {r(KT,4)}, v6\nds_read_b128 {r(KT+4,4)}, v6 offset:1024\nds_read_b128 {r(VT,4)}, v6 offset:2048\nds_read_b128 {r(VT+4,4)}, v6 offset:3072\ns_waitcnt lgkmcnt(0)")
    a(mf32(ST, KT, Q0, NEGM)); a(mf32(ST, KT + 4, Q0 + 4, ST))
    a("s_nop 15")
    for i in range(16): a(f"v_exp_f32 v{ST+i}, v{ST+i}")
    a("s_nop 0")
    for i in range(8): a(f"v_cvt_pk_bf16_f32 v{PT+i}, v{ST+2*i}, v{ST+2*i+1}")
    a("s_nop 1")
    a(mf32(Onew, VT, PT, Onew)); a(mf32(Onew, VT + 4, PT + 4, Onew))
    a(mf16(lnew, ONES, PT, lnew)); a(mf16(lnew, ONES, PT + 4, lnew))
    a(f"v_add_u32 v6, 4096, v6\ns_add_u32 s30, s30, 1\ns_cmp_lt_u32 s30, {TPS}\ns_cbranch_scc1 L_{tag}_h2")
    a(f"s_nop 7\ns_branch L_{tag}_ret")


def attention(a, tag, endlabel):
    wave_setup(a)
    stamp_begin(a)
    tl(a, 3)
    a(f"""
s_mov_b32 s28, {f32bits(THR1)}
s_mov_b32 s29, {f32bits(THR2)}
v_lshlrev_b32 v9, 4, v2
v_lshl_add_u32 v12, v1, 10, v9
v_add_u32 v12, {WS_KF}, v12
v_add_u32 v13, 8192, v12
v_add_u32 v14, 16384, v12
v_add_u32 v15, 24576, v12
v_mov_b32 v10, v9
v_add_u32 v11, {ASTAGE}, v9
s_mov_b32 s24, {ASTAGE}
s_mov_b32 s16, 0
s_mov_b32 s17, s18
v_and_b32 v5, 31, v2
v_lshl_add_u32 v4, v1, 5, v5
v_lshrrev_b32 v5, 5, v2
v_lshlrev_b32 v5, 4, v5
v_lshl_add_u32 v8, v4, 6, v5
""")
    a(f"buffer_load_dwordx4 {r(Q0,4)}, v8, s[12:15], s26 offen\nbuffer_load_dwordx4 {r(Q0+4,4)}, v8, s[12:15], s26 offen offset:32")
    for st in range(2):
        for i in range(4): attn_dma(a, i)
        attn_dma_adv(a)
    stage1_setup(a)
    stage1_setup2(a)
    verify_setup(a)
    a(f"""
v_lshrrev_b32 v4, 2, v2
v_lshrrev_b32 v5, 4, v2
v_xor_b32 v4, v4, v5
v_and_b32 v4, 1, v4
v_cmp_eq_u32 vcc, 0, v4
v_mov_b32 v5, 0x3f803f80
s_nop 1
v_cndmask_b32 v{ONES}, 0, v5, vcc
v_mov_b32 v{ONES+1}, v{ONES}
v_mov_b32 v{ONES+2}, v{ONES}
v_mov_b32 v{ONES+3}, v{ONES}
""")
    for i in range(16): a(f"v_mov_b32 v{OB+i}, 0")
    for i in range(4): a(f"v_mov_b32 v{LB+i}, 0")
    a(f"v_mov_b32 v{VMAX}, 0")
    a("s_waitcnt vmcnt(4)\ns_barrier")
    a(f"ds_read_b128 {r(KF_,4)}, v10\nds_read_b128 {r(KF_+4,4)}, v10 offset:1024")
    a("s_waitcnt lgkmcnt(0)")
    a(mf32(SX, KF_, Q0, "0")); a(mf32(SX, KF_ + 4, Q0 + 4, SX))
    a(f"ds_read_b128 {r(KF_,4)}, v10 offset:4096\nds_read_b128 {r(KF_+4,4)}, v10 offset:{4096+1024}")
    a(f"ds_read_b128 {r(VF_+4,4)}, v10 offset:3072\nds_read_b128 {r(VF_,4)}, v10 offset:2048")
    a("s_nop 11")
    a(f"v_max3_f32 v5, v{SX}, v{SX+1}, v{SX+2}")
    for i in range(6): a(f"v_max3_f32 v5, v{SX+3+2*i}, v{SX+4+2*i}, v5")
    a(f"""
v_max_f32 v5, v{SX+15}, v5
v_mov_b32 v6, v5
s_nop 1
v_permlane32_swap_b32 v5, v6
s_nop 1
v_max_f32 v5, v5, v6
v_add_f32 v5, {f32bits(float(MARGIN))}, v5
""")
    for i in range(16): a(f"v_sub_f32 v{NEGM+i}, 0, v5")
    for i in range(16): a(f"v_sub_f32 v{SX+i}, v{SX+i}, v5")
    tl(a, 4)
    a("s_mov_b32 s19, 0")
    a(f"L_{tag}_loop:")
    for par in range(2):
        Oold, Onew, lold, lnew = (OB, OA, LB, LA) if par == 0 else (OA, OB, LA, LB)
        for tt in range(TPS):
            X, Y = (SX, SY) if tt % 2 == 0 else (SY, SX)
            attn_tile(a, tt, X, Y, Oold if tt == 0 else Onew, Onew, lold if tt == 0 else lnew, lnew, par)
        a(f"""
s_add_u32 s24, s24, {ASTAGE}
s_cmp_ge_u32 s24, {ANS*ASTAGE}
s_cselect_b32 s24, 0, s24
s_nop 4
v_cmp_nlt_f32 vcc, v{lnew}, s28
s_nop 1
s_cbranch_vccnz L_{tag}{par}_slow
L_{tag}{par}_ret:
v_mov_b32 v10, v11
v_add_u32 v11, s24, v9
""")
    a(f"s_add_u32 s19, s19, 1\ns_cmp_lt_u32 s19, {NSTG//2}\ns_cbranch_scc1 L_{tag}_loop")
    a(f"s_nop 3\nv_rcp_f32 v7, v{LB}\ns_add_u32 s31, s26, {WS_O}")
    for i in range(16):
        a(f"v_mul_f32 v{OB+i}, v7, v{OB+i}")
    for i in range(8): a(f"v_cvt_pk_bf16_f32 v{P_+i}, v{OB+2*i}, v{OB+2*i+1}")
    a("s_nop 1")
    for p in range(2):
        a(f"v_permlane32_swap_b32 v{P_+4*p}, v{P_+4*p+2}\nv_permlane32_swap_b32 v{P_+4*p+1}, v{P_+4*p+3}")
    for p in range(2):
        a(f"buffer_store_dwordx4 {r(P_+4*p,4)}, v8, s[12:15], s31 offen offset:{p*32}")
    tl(a, 2)
    a(f"""
s_mov_b32 s23, {f32bits(VTOL)}
v_cmp_nle_f32 vcc, v{VMAX}, s23
s_lshl_b32 s23, s22, 2
s_add_u32 s23, s23, {S1B + 32768 - 64}
v_mov_b32 v4, s23
s_cmp_lg_u64 vcc, 0
s_cselect_b32 s23, 1, 0
v_mov_b32 v3, s23
ds_write_b32 v4, v3
""")
    stage1_store(a)
    a(f"""
v_mov_b32 v4, {S1B + 32768 - 64}
ds_read_b128 v[20:23], v4
ds_read_b128 v[24:27], v4 offset:16
s_lshl_b32 s23, s2, 2
s_add_u32 s23, s23, {WS_FLAG}
v_mov_b32 v4, 0
s_waitcnt lgkmcnt(0)
v_or3_b32 v20, v20, v21, v22
v_or3_b32 v24, v24, v25, v26
v_or3_b32 v20, v20, v23, v27
v_or_b32 v20, v20, v24
v_cmp_eq_u32 vcc, 0, v0
s_and_saveexec_b64 s[64:65], vcc
s_cbranch_execz L_at_nf
buffer_store_dword v20, v4, s[12:15], s23 offen
L_at_nf:
s_mov_b64 exec, s[64:65]
""")
    stamp_end(a, 196608)
    tl(a, 5, True)
    a(f"s_branch {endlabel}")
    attn_slow(a, f"{tag}0", OB, OA, LB, LA, SX)
    attn_slow(a, f"{tag}1", OA, OB, LA, LB, SX)
    verify_subs(a, 0)
    verify_subs(a, 1)


def wave_sum(a, v, t):
    for sh in (8, 4, 2, 1):
        a(f"s_nop 1\nv_add_f32_dpp v{v}, v{v}, v{v} row_ror:{sh} row_mask:0xf bank_mask:0xf")
    a(f"""
v_mov_b32 v{t}, v{v}
s_nop 1
v_permlane16_swap_b32 v{v}, v{t}
s_nop 1
v_add_f32 v{v}, v{v}, v{t}
v_mov_b32 v{t}, v{v}
s_nop 1
v_permlane32_swap_b32 v{v}, v{t}
s_nop 1
v_add_f32 v{v}, v{v}, v{t}
""")


def small_gemm(a, tag, mode, pP, pR, nsteps, kstep, pre=None):
    NS, STAGE, nu = 4, 32768, 2
    t_dma_voff(a, DV, 1, pP)
    t_dma_voff(a, DV + 1, 1, pR)
    stride = 4

    def setup():
        a("""
s_and_b32 s26, s22, 1
s_lshr_b32 s24, s22, 2
s_and_b32 s27, s22, 2
s_lshl_b32 s27, s27, 1
s_lshl_b32 s28, s24, 7
""")
        t_read_addr(a, RA, nu, 28, 27, 0, NS, STAGE, stride)
        a("s_lshl_b32 s29, s26, 5\ns_add_u32 s28, s28, s29")
        t_read_addr(a, RA + 2, nu, 28, 27, 8192, NS, STAGE, stride)
        for i in range(32):
            a(f"v_mov_b32 v{ACC+i}, 0")

    def dmas(st):
        return [[f"s_add_u32 m0, s18, {st*STAGE}", "s_nop 0", f"buffer_load_dwordx4 v{DV}, s[4:7], s16 offen lds"],
                [f"s_add_u32 m0, s18, {st*STAGE+8192}", "s_nop 0", f"buffer_load_dwordx4 v{DV+1}, s[8:11], s17 offen lds"],
                [f"s_add_u32 m0, s18, {st*STAGE+16384}", "s_nop 0", f"buffer_load_dwordx4 v{DV}, s[36:39], s40 offen lds"],
                [f"s_add_u32 m0, s18, {st*STAGE+24576}", "s_nop 0", f"buffer_load_dwordx4 v{DV+1}, s[44:47], s41 offen lds"]]

    def reads(st, ul, fs):
        f = FR[fs]
        return [f"ds_read_b128 v[{f}:{f+3}], v{RA+st*stride+ul}",
                f"ds_read_b128 v[{f+4}:{f+7}], v{RA+st*stride+ul} offset:4096",
                f"ds_read_b128 v[{f+8}:{f+11}], v{RA+st*stride+2+ul}"]

    def mfmas(fs):
        f = FR[fs]
        return [f"v_mfma_f32_32x32x16_bf16 v[{ACC+16*mb}:{ACC+16*mb+15}], v[{f+4*mb}:{f+4*mb+3}], v[{f+8}:{f+11}], v[{ACC+16*mb}:{ACC+16*mb+15}]" for mb in range(2)]

    kadv = [f"s_add_u32 s{r_}, s{r_}, {kstep}" for r_ in (16, 17, 40, 41)]
    pipeline(a, tag, nsteps, NS, nu, dmas, reads, mfmas, None, kadv, pre=pre, setup=setup)
    small_epi(a, mode, ACC)


def small_epi(a, mode, AC):
    a("s_and_b32 s26, s22, 1")
    a("s_nop 15\ns_barrier")
    a(f"""
v_lshlrev_b32 v3, 4, v2
s_lshl_b32 s23, s22, 13
v_add_u32 v4, s23, v3
s_lshr_b32 s25, s22, 1
s_lshl_b32 s23, s25, 11
s_lshl_b32 s29, s26, 13
s_add_u32 s23, s23, s29
v_add_u32 v3, s23, v3
""")
    for j in range(8):
        a(f"ds_write_b128 v4, v[{AC+4*j}:{AC+4*j+3}] offset:{j*1024}")
    a("s_waitcnt lgkmcnt(0)\ns_barrier")
    for i in range(4):
        for j in range(2):
            a(f"ds_read_b128 v[{96+8*i+4*j}:{96+8*i+4*j+3}], v3 offset:{i*16384+j*1024}")
    a("s_waitcnt lgkmcnt(4)")
    for r_ in range(8):
        a(f"v_add_f32 v{64+r_}, v{96+r_}, v{104+r_}")
    a("s_waitcnt lgkmcnt(0)")
    for r_ in range(8):
        a(f"v_add_f32 v{72+r_}, v{112+r_}, v{120+r_}")
    if mode == 1:
        for r_ in range(8):
            a(f"v_add_f32 v{64+r_}, v{64+r_}, v{72+r_}")


def pack8(a, dst, src):
    for r_ in range(4):
        a(f"v_cvt_pk_bf16_f32 v{dst+r_}, v{src+2*r_}, v{src+2*r_+1}")
    a(f"s_nop 1\nv_permlane32_swap_b32 v{dst}, v{dst+2}\nv_permlane32_swap_b32 v{dst+1}, v{dst+3}")


S1ACC, S1F, S1A, S1D = 200, 232, 24, 68
S1B = ANS_BYTES = 98304


def stage1_setup(a):
    a(f"""
s_and_b32 s30, s2, 7
s_lshr_b32 s31, s2, 3
s_and_b32 s31, s31, 15
s_and_b32 s54, s30, 3
s_lshl_b32 s54, s54, 2
s_and_b32 s55, s31, 3
s_add_u32 s54, s54, s55
s_lshr_b32 s55, s30, 2
s_lshl_b32 s55, s55, 2
s_lshr_b32 s56, s31, 2
s_add_u32 s55, s55, s56
s_cmp_ge_u32 s2, 128
s_cselect_b32 s8, s52, s50
s_cselect_b32 s9, s53, s51
s_cselect_b32 s56, {WS_XM-WS_XP}, 0
s_cselect_b32 s57, {WS_BT-WS_AT}, 0
s_add_u32 s56, s56, {WS_XP}
s_add_u32 s57, s57, {WS_AT}
s_mov_b32 s10, {1024*2048}
s_mov_b32 s11, 0x00020000
""")
    srd(a, 4, 48, 49, WS_BYTES)
    a(f"""
s_lshl_b32 s40, s54, 17
s_add_u32 s40, s40, s56
s_add_u32 s42, s40, 128
s_lshl_b32 s41, s55, 17
s_add_u32 s43, s41, 128
s_mul_i32 s21, s55, {64*ATP}
s_add_u32 s21, s21, s57
s_lshl_b32 s23, s54, 7
s_add_u32 s21, s21, s23
""")
    t_dma_voff(a, S1D, 1, 2048)


def stage1_setup2(a):
    a("""
s_lshr_b32 s25, s22, 2
s_and_b32 s27, s22, 2
s_lshl_b32 s27, s27, 1
s_lshl_b32 s25, s25, 7
""")
    t_read_addr(a, S1A, 2, 25, 27, S1B, 2, 32768, 4)
    a("s_and_b32 s23, s22, 1\ns_lshl_b32 s23, s23, 5\ns_add_u32 s25, s25, s23")
    t_read_addr(a, S1A + 2, 2, 25, 27, S1B + 8192, 2, 32768, 4)
    for i in range(32):
        a(f"v_mov_b32 v{S1ACC+i}, 0")


def s1_dma(a, buf, i):
    if os.environ.get('NOS1'): return
    sr, so = ((4, 40), (8, 41), (4, 42), (8, 43))[i]
    a(f"s_add_u32 m0, s18, {S1B + buf*32768 + i*8192}\ns_nop 0\nbuffer_load_dwordx4 v{S1D}, s[{sr}:{sr+3}], s{so} offen lds\ns_add_u32 s{so}, s{so}, 256")


def s1_reads(a, buf):
    for ul in range(2):
        f = S1F + 12 * ul
        a(f"""
ds_read_b128 v[{f}:{f+3}], v{S1A+buf*4+ul}
ds_read_b128 v[{f+4}:{f+7}], v{S1A+buf*4+ul} offset:4096
ds_read_b128 v[{f+8}:{f+11}], v{S1A+buf*4+2+ul}
""")


def s1_mfma(a, i):
    if os.environ.get('NOS1'): return
    ul, mb = i >> 1, i & 1
    f = S1F + 12 * ul
    c = S1ACC + 16 * mb
    a(f"v_mfma_f32_32x32x16_bf16 v[{c}:{c+15}], v[{f+4*mb}:{f+4*mb+3}], v[{f+8}:{f+11}], v[{c}:{c+15}]")


def stage1_store(a):
    a("s_waitcnt vmcnt(0) lgkmcnt(0)")
    small_epi(a, 1, S1ACC)
    pack8(a, 16, 64)
    a(f"""
v_and_b32 v3, 31, v2
s_lshl_b32 s23, s26, 5
v_add_u32 v3, s23, v3
s_mov_b32 s23, {ATP}
v_mul_lo_u32 v3, v3, s23
v_lshrrev_b32 v4, 5, v2
v_lshl_add_u32 v3, v4, 4, v3
s_lshl_b32 s23, s25, 5
s_add_u32 s23, s23, s21
buffer_store_dwordx4 v[16:19], v3, s[12:15], s23 offen
""")


def dot_loads(a, dst, srdA, soffA, srdB, soffB):
    for (d, sr, so) in ((dst, srdA, soffA), (dst + 12, srdB, soffB)):
        a(f"""
buffer_load_dwordx4 v[{d}:{d+3}], v6, s[{sr}:{sr+3}], s{so} offen
buffer_load_dwordx4 v[{d+4}:{d+7}], v6, s[{sr}:{sr+3}], s{so} offen offset:16
buffer_load_dwordx4 v[{d+8}:{d+11}], v7, s[{sr}:{sr+3}], s{so} offen
""")


def dot_compute(a, res, src, t):
    a(f"v_mov_b32 v{res}, 0")
    for i in range(12):
        a(f"v_dot2c_f32_bf16 v{res}, v{src+i}, v{src+12+i}")
    a("s_nop 3")
    wave_sum(a, res, t)


def stage2(a):
    a(f"""
s_and_b32 s54, s30, 3
s_lshl_b32 s54, s54, 2
s_and_b32 s55, s31, 3
s_add_u32 s54, s54, s55
s_lshr_b32 s55, s30, 2
s_lshl_b32 s55, s55, 2
s_lshr_b32 s56, s31, 2
s_add_u32 s55, s55, s56
""")
    srd(a, 4, 48, 49, WS_BYTES)
    srd(a, 36, 48, 49, WS_BYTES)
    srd(a, 8, 50, 51, 2048 * 4096)
    srd(a, 44, 52, 53, 2048 * 4096)
    srd(a, 12, 34, 35, 2048 * 4096)
    a(f"""
s_mul_i32 s16, s55, {64*ATP}
s_add_u32 s40, s16, {WS_BT}
s_add_u32 s16, s16, {WS_AT}
s_lshl_b32 s17, s54, 18
s_mov_b32 s41, s17
""")
    wave_setup(a)
    a(f"""
v_lshlrev_b32 v6, 5, v2
v_lshlrev_b32 v7, 4, v2
v_add_u32 v7, 2048, v7
v_mov_b32 v3, 0x7ffffff0
v_cmp_gt_u32 vcc, 8, v2
s_lshl_b32 s58, s54, 6
s_lshl_b32 s23, s55, 3
s_add_u32 s58, s58, s23
s_add_u32 s58, s58, s22
v_cndmask_b32 v7, v3, v7, vcc
s_lshl_b32 s59, s58, 12
s_mov_b32 s60, {WS_AT + 512*ATP}
s_lshl_b32 s61, s55, 6
s_lshl_b32 s23, s54, 2
s_add_u32 s61, s61, s23
s_add_u32 s61, s61, s22
s_cmp_ge_u32 s22, 4
s_cselect_b32 s61, 512, s61
s_mul_i32 s62, s61, {ATP}
s_add_u32 s62, s62, {WS_AT}
s_mov_b32 s63, {1024*4096}
""")
    flag_load(a, 208, 76, 48, 49)
    dot_loads(a, 160, 8, 59, 4, 60)
    dot_loads(a, 184, 8, 63, 4, 62)

    def pre():
        a("s_waitcnt vmcnt(12)")
        flag_test(a, 208)
        a("s_cbranch_scc1 L_k3_fb")
        dot_compute(a, 156, 160, 3)
        dot_compute(a, 157, 184, 3)
        a(f"""
v_cvt_pk_bf16_f32 v156, v156, v157
v_lshrrev_b32 v157, 16, v156
v_cmp_gt_u32 vcc, 2, v2
s_and_saveexec_b64 s[64:65], vcc
s_sub_u32 s23, 2048, s58
v_mov_b32 v3, s58
v_mov_b32 v4, s23
v_cmp_eq_u32 vcc, 0, v2
s_nop 1
v_cndmask_b32 v3, v4, v3, vcc
v_lshlrev_b32 v3, 12, v3
buffer_store_short v156, v3, s[12:15], 0 offen offset:3072
s_sub_u32 s23, 1024, s61
v_mov_b32 v3, s61
v_mov_b32 v4, s23
s_nop 0
v_cndmask_b32 v3, v4, v3, vcc
v_lshlrev_b32 v3, 1, v3
v_add_u32 v3, {1024*4096 + 2048}, v3
s_cmp_eq_u32 s61, 0
s_cselect_b64 s[66:67], 1, 3
s_cmp_gt_u32 s22, 4
s_cselect_b64 s[66:67], 0, s[66:67]
s_mov_b64 exec, s[66:67]
s_cbranch_execz L_s2_e1
buffer_store_short v157, v3, s[12:15], 0 offen
L_s2_e1:
s_mov_b64 exec, s[64:65]
""")

    small_gemm(a, "s2", 2, ATP, 4096, 17, 128, pre=pre)
    for r_ in range(8):
        a(f"v_sub_f32 v{80+r_}, v{64+r_}, v{72+r_}\nv_add_f32 v{88+r_}, v{64+r_}, v{72+r_}")
    pack8(a, 16, 80)
    pack8(a, 20, 88)
    a("s_nop 0")
    for r_ in range(4):
        a(f"v_alignbit_b32 v{24+r_}, v{19-r_}, v{19-r_}, 16")
        a(f"v_alignbit_b32 v{28+r_}, v{23-r_}, v{23-r_}, 16")
    a(f"""
v_and_b32 v3, 31, v2
s_lshl_b32 s23, s26, 5
s_lshl_b32 s29, s54, 6
s_add_u32 s23, s23, s29
v_add_u32 v3, s23, v3
v_sub_u32 v4, 2048, v3
v_lshlrev_b32 v3, 12, v3
v_lshlrev_b32 v4, 12, v4
v_lshrrev_b32 v5, 5, v2
v_lshlrev_b32 v5, 4, v5
s_lshl_b32 s23, s25, 5
s_lshl_b32 s29, s55, 7
s_add_u32 s23, s23, s29
v_add_u32 v5, s23, v5
v_add_u32 v6, v3, v5
v_add_u32 v7, v4, v5
v_sub_u32 v8, 4082, v5
v_add_u32 v9, v4, v8
v_add_u32 v8, v3, v8
buffer_store_dwordx4 v[16:19], v6, s[12:15], 0 offen offset:2048
buffer_store_dwordx4 v[20:23], v7, s[12:15], 0 offen offset:2048
v_cmp_ne_u32 vcc, 0, v5
s_and_saveexec_b64 s[64:65], vcc
buffer_store_dwordx4 v[28:31], v8, s[12:15], 0 offen
buffer_store_dwordx4 v[24:27], v9, s[12:15], 0 offen
s_andn2_b64 exec, s[64:65], exec
s_cbranch_execz L_s2_e2
buffer_store_dwordx3 v[28:30], v8, s[12:15], 0 offen
buffer_store_short v31, v8, s[12:15], 0 offen offset:12
buffer_store_dwordx3 v[24:26], v9, s[12:15], 0 offen
buffer_store_short v27, v9, s[12:15], 0 offen offset:12
L_s2_e2:
s_mov_b64 exec, s[64:65]
""")


def fold(a):
    wave_setup(a)
    srd(a, 4, 40, 41, 2048 * 2048)
    srd(a, 8, 44, 45, 1024 * 2048)
    a(f"""
v_lshlrev_b32 v6, 5, v2
s_lshl_b32 s16, s31, 5
s_lshl_b32 s23, s22, 2
s_add_u32 s16, s16, s23
s_mov_b32 s17, {512*2048}
buffer_load_dwordx4 v[8:11], v6, s[8:11], s17 offen
buffer_load_dwordx4 v[12:15], v6, s[8:11], s17 offen offset:16
""")
    for i in range(4):
        b = 16 + 16 * i
        a(f"""
s_add_u32 s23, s16, {i}
s_sub_u32 s24, 2048, s23
s_lshl_b32 s23, s23, 11
s_lshl_b32 s24, s24, 11
buffer_load_dwordx4 v[{b}:{b+3}], v6, s[4:7], s23 offen
buffer_load_dwordx4 v[{b+4}:{b+7}], v6, s[4:7], s23 offen offset:16
buffer_load_dwordx4 v[{b+8}:{b+11}], v6, s[4:7], s24 offen
buffer_load_dwordx4 v[{b+12}:{b+15}], v6, s[4:7], s24 offen offset:16
""")
    for i in range(4):
        b = 16 + 16 * i
        o = 96 + 16 * i
        a(f"s_waitcnt vmcnt({(3-i)*4 + 5*i})")
        a(f"v_mov_b32 v{88+i}, 0")
        for j in range(8):
            a(f"""
v_lshlrev_b32 v80, 16, v{b+j}
v_and_b32 v81, 0xffff0000, v{b+j}
v_lshlrev_b32 v82, 16, v{b+8+j}
v_and_b32 v83, 0xffff0000, v{b+8+j}
v_add_f32 v84, v80, v82
v_add_f32 v85, v81, v83
v_sub_f32 v86, v80, v82
v_sub_f32 v87, v81, v83
v_cvt_pk_bf16_f32 v{o+j}, v84, v85
v_cvt_pk_bf16_f32 v{o+8+j}, v86, v87
v_dot2c_f32_bf16 v{88+i}, v{o+j}, v{8+j}
""")
        a(f"""
s_add_u32 s23, s16, {i}
s_lshl_b32 s24, s23, 11
s_add_u32 s25, s24, {WS_XM}
s_add_u32 s24, s24, {WS_XP}
buffer_store_dwordx4 v[{o}:{o+3}], v6, s[12:15], s24 offen
buffer_store_dwordx4 v[{o+4}:{o+7}], v6, s[12:15], s24 offen offset:16
buffer_store_dwordx4 v[{o+8}:{o+11}], v6, s[12:15], s25 offen
buffer_store_dwordx4 v[{o+12}:{o+15}], v6, s[12:15], s25 offen offset:16
""")
        wave_sum(a, 88 + i, 3)
        a(f"""
v_cvt_pk_bf16_f32 v{88+i}, v{88+i}, v{88+i}
s_lshl_b32 s23, s23, 1
s_add_u32 s23, s23, {WS_AT + 512*ATP}
v_mov_b32 v4, 0
s_mov_b64 exec, 1
buffer_store_short v{88+i}, v4, s[12:15], s23 offen
s_mov_b64 exec, -1
""")


def edge_mv(a):
    wave_setup(a)
    srd(a, 4, 40, 41, 2048 * 2048)
    srd(a, 8, 44, 45, 513 * 2048)
    a(f"""
v_lshlrev_b32 v6, 5, v2
s_lshl_b32 s16, s31, 3
s_add_u32 s16, s16, s22
s_mul_i32 s16, s16, 9
s_mov_b32 s17, {1024*2048}
buffer_load_dwordx4 v[8:11], v6, s[4:7], s17 offen
buffer_load_dwordx4 v[12:15], v6, s[4:7], s17 offen offset:16
v_lshlrev_b32 v7, 2, v2
""")
    for i in range(9):
        b = 16 + 8 * i
        a(f"""
s_add_u32 s23, s16, {i}
s_lshl_b32 s23, s23, 11
buffer_load_dwordx4 v[{b}:{b+3}], v6, s[8:11], s23 offen
buffer_load_dwordx4 v[{b+4}:{b+7}], v6, s[8:11], s23 offen offset:16
""")
    a("s_waitcnt vmcnt(0)\nv_mov_b32 v5, 0")
    for i in range(9):
        b = 16 + 8 * i
        a(f"v_mov_b32 v{96+i}, 0")
        for j in range(8):
            a(f"v_dot2c_f32_bf16 v{96+i}, v{b+j}, v{8+j}")
        a("s_nop 3")
        wave_sum(a, 96 + i, 3)
        a(f"""
v_cvt_pk_bf16_f32 v{96+i}, v{96+i}, v5
v_cmp_eq_u32 vcc, 0, v2
s_add_u32 s23, s16, {i}
s_cmp_gt_u32 s23, 512
s_cbranch_scc1 L_emv_done
v_cndmask_b32 v{96+i}, v5, v{96+i}, vcc
s_mul_i32 s23, s23, {ATP}
s_add_u32 s24, s23, {WS_BT + 2048}
s_add_u32 s23, s23, {WS_AT + 2048}
s_mov_b32 exec_hi, 0
buffer_store_dword v{96+i}, v7, s[12:15], s23 offen
buffer_store_dword v5, v7, s[12:15], s24 offen
s_mov_b64 exec, -1
""")
    a("L_emv_done:")


VTOL = 2.0 ** -8 * 1.01
VMAX = 70
VB = 152


def cmp_dw(a, x, y, neg, rev=False):
    lo_y, hi_y = (f"v_and_b32 v5, 0xffff0000, v{y}", f"v_lshlrev_b32 v6, 16, v{y}") if rev else (f"v_lshlrev_b32 v5, 16, v{y}", f"v_and_b32 v6, 0xffff0000, v{y}")
    a(f"""
v_lshlrev_b32 v3, 16, v{x}
v_and_b32 v4, 0xffff0000, v{x}
{lo_y}
{hi_y}
v_fmac_f32 v3, s60, v5
v_fmac_f32 v4, s60, v6
v_max3_f32 v{VMAX}, |v3|, |v4|, v{VMAX}
""")


def verify_c_setup(a):
    a(f"""
s_bitcmp1_b32 s58, 0
s_cselect_b32 s76, s94, s92
s_cselect_b32 s77, s95, s93
s_cselect_b32 s60, 1.0, -1.0
s_mov_b32 s78, {2048*4096}
s_mov_b32 s79, 0x00020000
s_sub_u32 s62, 2048, s61
s_and_b32 s62, s62, 2047
s_lshl_b32 s61, s61, 12
s_lshl_b32 s62, s62, 12
""")


def verify_setup(a):
    a("s_lshl_b32 s58, s2, 3\ns_add_u32 s58, s58, s22\ns_lshr_b32 s61, s58, 1")
    verify_c_setup(a)


def verify_subs(a, par):
    P = par
    a(f"""
L_vload{P}:
s_cmp_eq_u32 s19, 3
s_cbranch_scc1 L_vload{P}_3
s_cmp_eq_u32 s19, 2
s_cbranch_scc1 L_vload{P}_2
s_lshl_b32 s63, s19, 11
s_add_u32 s59, s63, s62
s_add_u32 s63, s63, s61
buffer_load_dwordx4 v[{VB}:{VB+3}], v9, s[76:79], s63 offen offset:{P*1024}
buffer_load_dwordx4 v[{VB+4}:{VB+7}], v9, s[76:79], s59 offen offset:{P*1024}
s_branch L_vload{P}_ret
L_vload{P}_2:
v_sub_u32 v3, {4080 - 1024*P}, v9
buffer_load_dwordx4 v[{VB}:{VB+3}], v9, s[76:79], s61 offen offset:{P*1024+2}
buffer_load_dwordx4 v[{VB+4}:{VB+7}], v3, s[76:79], s61 offen
s_branch L_vload{P}_ret
L_vload{P}_3:
""")
    if P == 0:
        a(f"""
s_bitcmp1_b32 s58, 1
s_cselect_b32 s76, s52, s50
s_cselect_b32 s77, s53, s51
s_cselect_b32 s60, 1.0, -1.0
s_mov_b32 s78, {1024*2048}
s_lshr_b32 s61, s58, 2
s_add_u32 s61, s61, 1
s_sub_u32 s62, 1024, s61
s_lshl_b32 s61, s61, 11
s_lshl_b32 s62, s62, 11
s_and_b32 s63, s58, 1
s_lshl_b32 s63, s63, 10
s_add_u32 s61, s61, s63
s_add_u32 s62, s62, s63
buffer_load_dwordx4 v[{VB}:{VB+3}], v9, s[76:79], s61 offen
buffer_load_dwordx4 v[{VB+4}:{VB+7}], v9, s[76:79], s62 offen
""")
        srd(a, 80, 88, 89, 1024 * 2048)
        a(f"""
v_lshl_add_u32 v3, v0, 8, s2
v_lshlrev_b32 v3, 7, v3
buffer_load_dword v{VB+8}, v3, s[80:83], 0 offen
""")
    else:
        a(f"s_cmp_ge_u32 s58, 2\ns_cbranch_scc1 L_vload{P}_ret\ns_mov_b32 s61, 1024")
        verify_c_setup(a)
        a("v_sub_u32 v3, 4080, v9\nv_sub_u32 v4, 3056, v9")
        for j in range(4):
            a(f"buffer_load_dwordx4 v[{VB+4*j}:{VB+4*j+3}], v9, s[76:79], s61 offen offset:{j*1024}")
        for j in range(2):
            a(f"buffer_load_dwordx4 v[{VB+32+4*j}:{VB+32+4*j+3}], v9, s[76:79], s61 offen offset:{j*1024+2}")
            a(f"buffer_load_dwordx4 v[{VB+40+4*j}:{VB+40+4*j+3}], v{3+j}, s[76:79], s61 offen")
    a(f"""
s_branch L_vload{P}_ret
L_vcmp{P}:
s_cmp_eq_u32 s19, 2
s_cbranch_scc1 L_vcmp{P}_2
""")
    if P == 1:
        a(f"s_cmp_eq_u32 s19, 3\ns_cbranch_scc1 L_vcmp{P}_3")
    a(f"s_cmp_eq_u32 s61, 0\ns_cbranch_scc1 L_vcmp{P}_ret")
    for j in range(4):
        cmp_dw(a, VB + j, VB + 4 + j, 's')
    a(f"s_branch L_vcmp{P}_ret\nL_vcmp{P}_2:")
    for r_ in range(4):
        cmp_dw(a, VB + r_, VB + 4 + 3 - r_, 's', rev=True)
    a(f"s_branch L_vcmp{P}_ret")
    if P == 1:
        a(f"L_vcmp{P}_3:\ns_cmp_ge_u32 s58, 2\ns_cbranch_scc1 L_vcmp{P}_ret")
        for j in range(16):
            cmp_dw(a, VB + j, VB + j, 's')
        for j in range(2):
            for r_ in range(4):
                cmp_dw(a, VB + 32 + 4 * j + r_, VB + 40 + 4 * j + 3 - r_, 's', rev=True)
        a(f"s_branch L_vcmp{P}_ret")


def touch(a):
    a("""
s_load_dwordx4 s[32:35], s[0:1], 16
s_load_dwordx4 s[40:43], s[0:1], 64
s_sub_u32 s31, s2, 184
s_lshl_b32 s23, s31, 9
v_add_u32 v3, s23, v0
s_waitcnt lgkmcnt(0)
""")
    srd(a, 4, 32, 33, 65536)
    srd(a, 8, 34, 35, 65536)
    srd(a, 16, 40, 41, 513 * 2048)
    srd(a, 20, 42, 43, 512 * 2048)
    a(f"""
v_lshlrev_b32 v4, 7, v3
buffer_load_dword v12, v4, s[4:7], 0 offen
buffer_load_dword v13, v4, s[8:11], 0 offen
buffer_load_dword v10, v4, s[16:19], 0 offen
buffer_load_dword v11, v4, s[20:23], 0 offen
s_waitcnt vmcnt(0)
""")


def flag_load(a, vd, sr, lo, hi):
    srd(a, sr, lo, hi, 1024, WS_FLAG)
    a("v_and_b32 v3, 63, v0\nv_lshlrev_b32 v3, 4, v3")
    a(f"buffer_load_dwordx4 v[{vd}:{vd+3}], v3, s[{sr}:{sr+3}], 0 offen")


def flag_test(a, vd):
    for j in range(1, 4):
        a(f"v_or_b32 v{vd}, v{vd}, v{vd+j}")
    a(f"v_cmp_ne_u32 vcc, 0, v{vd}\ns_nop 1\ns_cmp_lg_u64 vcc, 0")


def g3(a):
    a("""
s_and_b32 s50, s30, 3
s_lshl_b32 s50, s50, 2
s_and_b32 s51, s31, 3
s_add_u32 s50, s50, s51
s_lshr_b32 s51, s30, 2
s_lshl_b32 s51, s51, 2
s_lshr_b32 s52, s31, 2
s_add_u32 s51, s51, s52
""")
    srd(a, 4, 40, 41, 2048 * 2048)
    a(f"""
s_cmp_ge_u32 s51, 4
s_cselect_b32 s8, s46, s44
s_cselect_b32 s9, s47, s45
s_cselect_b32 s20, {f32bits(-1.0)}, 1.0
s_mov_b32 s10, {1024*2048}
s_mov_b32 s11, 0x00020000
s_lshl_b32 s16, s50, 18
s_and_b32 s17, s51, 3
s_lshl_b32 s17, s17, 19
s_lshl_b32 s21, s51, 20
s_lshl_b32 s23, s50, 8
s_add_u32 s21, s21, s23
s_add_u32 s21, s21, {WS_AB}
""")
    gemm(a, "g3", 2, 4, 1, 'T', 2048, 2048, 16, 3, 4096, scale=True)


def touch2(a):
    a("""
v_lshl_add_u32 v3, v0, 8, s2
v_lshlrev_b32 v4, 7, v3
v_lshrrev_b32 v5, 5, v3
v_and_b32 v6, 31, v3
v_lshlrev_b32 v5, 12, v5
v_lshl_add_u32 v5, v6, 7, v5
v_mov_b32 v7, 0x7ffffff0
v_cmp_gt_u32 vcc, 17, v6
""")
    srd(a, 76, 88, 89, 1024 * 2048)
    a("v_cndmask_b32 v5, v7, v5, vcc\nbuffer_load_dword v196, v4, s[76:79], 0 offen")
    srd(a, 80, 92, 93, 1025 * 4096)
    a("buffer_load_dword v197, v5, s[80:83], 0 offen")
    srd(a, 84, 94, 95, 1025 * 4096)
    a("buffer_load_dword v198, v5, s[84:87], 0 offen")


def k1(a):
    kernel_header(a, "k1_kernel")
    a("""
s_cmp_ge_u32 s2, 256
s_cbranch_scc1 L_k1_end
s_cmp_ge_u32 s2, 184
s_cbranch_scc1 L_k1_touch
s_load_dwordx8 s[32:39], s[0:1], 0
s_load_dwordx2 s[40:41], s[0:1], 40
s_load_dwordx4 s[44:47], s[0:1], 64
s_load_dwordx2 s[48:49], s[0:1], 96
s_and_b32 s30, s2, 7
s_lshr_b32 s31, s2, 3
s_waitcnt lgkmcnt(0)
""")
    TLK[0] = 0
    tl(a, 0)
    srd(a, 12, 48, 49, WS_BYTES)
    a("""
s_cmp_ge_u32 s2, 176
s_cbranch_scc1 L_k1_emv
s_cmp_ge_u32 s2, 144
s_cbranch_scc1 L_k1_fold
s_cmp_ge_u32 s2, 128
s_cbranch_scc1 L_k1_kv
""")
    a(f"""
s_and_b32 s50, s30, 1
s_lshl_b32 s50, s50, 2
s_and_b32 s51, s31, 3
s_add_u32 s50, s50, s51
s_lshr_b32 s51, s30, 1
s_lshl_b32 s51, s51, 2
s_lshr_b32 s52, s31, 2
s_add_u32 s51, s51, s52
""")
    srd(a, 4, 34, 35, 1024 * 2048)
    srd(a, 8, 32, 33, 2048 * 2048)
    a(f"""
s_mov_b32 s20, {f32bits(QSCALE)}
s_lshl_b32 s16, s50, 8
s_lshl_b32 s17, s51, 18
s_add_u32 s21, s17, s16
""")
    tch = """
s_lshl_b32 s23, s2, 9
v_add_u32 v3, s23, v0
v_lshlrev_b32 v3, 7, v3
buffer_load_dword v160, v3, s[8:11], 0 offen
v_subrev_u32 v3, 0x400000, v3
buffer_load_dword v161, v3, s[4:7], 0 offen
"""
    gemm(a, "g1", 2, 2, 2, 'N', 2048, 2048, 16, 4, 2048, scale=True, touch=tch)
    tl(a, 5, True)
    a("s_endpgm")
    a("L_k1_kv:")
    wave_setup(a)
    a(f"""
s_cmp_ge_u32 s22, 4
s_cselect_b32 s4, s38, s36
s_cselect_b32 s5, s39, s37
s_mov_b32 s6, 65536
s_mov_b32 s7, 0x00020000
""")
    srd(a, 8, 32, 33, 2048 * 2048)
    a("""
s_mov_b32 s16, 0
s_sub_u32 s31, s2, 128
s_lshl_b32 s17, s31, 18
s_lshl_b32 s21, s31, 2
""")
    gemm_kv(a, "g2")
    tl(a, 5, True)
    a("s_endpgm\nL_k1_fold:\ns_sub_u32 s31, s2, 144")
    fold(a)
    tl(a, 5, True)
    a("s_endpgm\nL_k1_emv:\ns_sub_u32 s31, s2, 176")
    edge_mv(a)
    tl(a, 5, True)
    a("s_endpgm\nL_k1_touch:")
    touch(a)
    a("L_k1_end:\ns_endpgm")


def k2(a):
    kernel_header(a, "k2_kernel")
    a("""
s_cmp_ge_u32 s2, 256
s_cbranch_scc1 L_k2_end
s_load_dwordx2 s[50:51], s[0:1], 64
s_load_dwordx2 s[52:53], s[0:1], 72
s_load_dwordx2 s[88:89], s[0:1], 32
s_load_dwordx4 s[92:95], s[0:1], 48
s_load_dwordx2 s[48:49], s[0:1], 96
s_waitcnt lgkmcnt(0)
""")
    TLK[0] = 1
    tl(a, 0)
    srd(a, 12, 48, 49, WS_BYTES)
    a("s_lshl_b32 s26, s2, 14")
    attention(a, "at", "L_k2_end")
    a("L_k2_end:\ns_endpgm")


def k3(a):
    kernel_header(a, "k3_kernel")
    a("""
s_cmp_ge_u32 s2, 256
s_cbranch_scc1 L_k3_end
s_load_dwordx2 s[32:33], s[0:1], 32
s_load_dwordx2 s[34:35], s[0:1], 80
s_load_dwordx2 s[48:49], s[0:1], 96
s_load_dwordx4 s[56:59], s[0:1], 48
s_and_b32 s30, s2, 7
s_lshr_b32 s31, s2, 3
s_waitcnt lgkmcnt(0)
""")
    TLK[0] = 2
    tl(a, 0)
    a("""
s_cmp_ge_u32 s2, 128
s_cbranch_scc1 L_k3_s2
s_and_b32 s50, s30, 1
s_lshl_b32 s50, s50, 2
s_and_b32 s51, s31, 3
s_add_u32 s50, s50, s51
s_lshr_b32 s51, s30, 1
s_lshl_b32 s51, s51, 2
s_lshr_b32 s52, s31, 2
s_add_u32 s51, s51, s52
""")
    srd(a, 4, 32, 33, 1024 * 2048)
    srd(a, 8, 48, 49, 2048 * 2048, WS_O)
    srd(a, 12, 34, 35, 2048 * 4096)
    a("""
s_lshl_b32 s16, s50, 8
s_lshl_b32 s17, s51, 18
s_lshl_b32 s21, s51, 19
s_add_u32 s21, s21, s16
""")
    gemm(a, "g5", 2, 2, 2, 'N', 2048, 2048, 16, 4, 4096)
    tl(a, 5, True)
    a("""
s_endpgm
L_k3_s2:
s_sub_u32 s31, s31, 16
s_mov_b32 s50, s56
s_mov_b32 s51, s57
s_mov_b32 s52, s58
s_mov_b32 s53, s59
""")
    stage2(a)
    tl(a, 5, True)
    a("""
s_endpgm
L_k3_fb:
s_load_dwordx2 s[40:41], s[0:1], 40
s_load_dwordx4 s[44:47], s[0:1], 64
s_load_dwordx2 s[90:91], s[0:1], 88
s_mov_b32 s36, s34
s_mov_b32 s37, s35
s_mov_b32 s32, s50
s_mov_b32 s33, s51
s_mov_b32 s34, s52
s_mov_b32 s35, s53
s_waitcnt vmcnt(0) lgkmcnt(0)
s_barrier
""")
    srd(a, 12, 48, 49, WS_BYTES)
    g3(a)
    a("""
s_waitcnt vmcnt(0) lgkmcnt(0)
s_barrier
s_cmp_lg_u32 s22, 0
s_cbranch_scc1 L_k3_gb2
buffer_wbl2 sc1
s_waitcnt vmcnt(0)
v_mov_b32 v3, 0
v_mov_b32 v4, 1
s_mov_b64 exec, 1
global_atomic_add v3, v4, s[90:91] sc1
s_waitcnt vmcnt(0)
L_k3_gb1:
s_sleep 8
global_load_dword v5, v3, s[90:91] sc1
s_waitcnt vmcnt(0)
v_readfirstlane_b32 s23, v5
s_nop 3
s_cmp_lt_u32 s23, 128
s_cbranch_scc1 L_k3_gb1
s_mov_b64 exec, -1
buffer_inv sc1
s_waitcnt vmcnt(0)
L_k3_gb2:
s_barrier
""")
    g4(a)
    a("L_k3_end:\ns_endpgm")


def V(n):
    return 256 if os.environ.get('TL') else n


def main():
    a = Asm()
    hdr = open("cdna_kernels/" + KN + ".s.ref").read().split("; Override launch")[0]
    launches = """; @launch kernel=k1_kernel grid=(256,1,1) block=(512,1,1) lds=131072
; @launch kernel=k2_kernel grid=(256,1,1) block=(512,1,1) lds=163840
; @launch kernel=k3_kernel grid=(256,1,1) block=(512,1,1) lds=147456
"""
    k1(a)
    k2(a)
    k3(a)
    out = hdr + launches + '.amdgcn_target "amdgcn-amd-amdhsa--gfx950"\n.text\n' + a.text()
    out += '.section .rodata,"a"\n.p2align 6\n' + kernel_desc("k1_kernel", V(168)) + ".p2align 6\n" + kernel_desc("k2_kernel", V(256)) + ".p2align 6\n" + kernel_desc("k3_kernel", V(224))
    open(sys.argv[1] if len(sys.argv) > 1 else "out.s", "w").write(out)


if __name__ == "__main__":
    main()
```

```python
import sys, os
PROF = os.environ.get('PROF'); NOMFMA = os.environ.get('NOMFMA'); NODMA = os.environ.get('NODMA')

KN = "concat_heads__grouped_kv_mqa__spectral_fnet__prompt"
WS_Q = 0
WS_KF = 4 << 20
WS_VF = (4 << 20) + (128 << 10)
WS_AB = 8 << 20
WS_O = 16 << 20
WS_XP = 26 << 20
WS_XM = 29 << 20
WS_AT = 32 << 20
WS_BT = 34 << 20
WS_FLAG = 36 << 20
ATP = 2176
QSCALE = 1.4426950408889634 * 32 ** -0.5


def f32bits(x):
    import struct
    return struct.unpack("<I", struct.pack("<f", x))[0]


class Asm:
    def __init__(self):
        self.lines = []

    def __call__(self, s):
        for l in s.strip("\n").split("\n"):
            self.lines.append(l if l.endswith(":") else "    " + l.strip())

    def text(self):
        return "\n".join(self.lines) + "\n"


def srd(a, d, lo, hi, nbytes, off=0):
    if off:
        a(f"s_add_u32 s{d}, s{lo}, {off}\ns_addc_u32 s{d+1}, s{hi}, 0")
    else:
        a(f"s_mov_b32 s{d}, s{lo}\ns_mov_b32 s{d+1}, s{hi}")
    a(f"s_mov_b32 s{d+2}, {nbytes}\ns_mov_b32 s{d+3}, 0x00020000")


FR = [16, 32]
UID = [0]
PROFOFF = {'g1': 0, 'g2': 0, 'g3': 0, 'g4': 65536, 'g5': 131072, 's1': 65536, 's2': 131072}
ACC = 64
DV = 48
RA = 128


def pipeline(a, tag, nsteps, NS, nu, dmas, reads, mfmas, nreads, kadv, switch=None, pre=None, setup=None, xtra=0):
    nd = len(dmas(0))

    def issue_all(stage):
        for g in dmas(stage % NS):
            for ins in g:
                a(ins)
        for ins in kadv:
            a(ins)

    for st in range(min(NS - 1, nsteps)):
        issue_all(st)
    if setup is not None:
        setup()
    if pre is not None:
        pre()
    a(f"s_waitcnt vmcnt({(min(NS - 1, nsteps) - 1) * nd + xtra})")
    a("s_barrier")
    stamp_begin(a, 72)
    tl(a, 1)
    for ins in reads(0, 0, 0):
        a(ins)
    state = {"set": 0}

    def step(i, dyn=False):
        do_dma = (i + NS - 1) <= nsteps - 1
        groups = list(dmas((i + NS - 1) % NS)) if do_dma else []
        if do_dma and switch is not None:
            if dyn:
                a(switch[2])
            elif i + NS - 1 == switch[0]:
                a(switch[1])
        mcount = len(mfmas(0))
        half = mcount // 2
        nm = (nu - 1) * mcount + half
        slots = [[] for _ in range(nu * mcount)]
        for gi, g in enumerate(groups):
            slots[min(nm - 1, gi * nm // max(1, len(groups)))].extend(g)
        if do_dma:
            slots[nm - 1].extend(kadv)
        last_issued = min(i + NS - 1, nsteps - 1)
        mi = 0

        def emit_m(ms):
            nonlocal mi
            for m in ms:
                if not NOMFMA:
                    a(m)
                for ins in slots[mi]:
                    if NODMA and 'buffer_load' in ins:
                        continue
                    a(ins)
                mi += 1

        for ul in range(nu):
            cur = state["set"]
            nxt = 1 - cur
            ms = mfmas(cur)
            if ul + 1 < nu:
                rd = reads(i % NS, ul + 1, nxt)
                for ins in rd:
                    a(ins)
                a(f"s_waitcnt lgkmcnt({len(rd)})")
                emit_m(ms)
            else:
                a("s_waitcnt lgkmcnt(0)")
                emit_m(ms[:half])
                if i + 1 <= nsteps - 1:
                    a(f"s_waitcnt vmcnt({(last_issued - (i + 1)) * nd + (xtra if (i + 1 <= NS - 2 and not dyn) else 0)})")
                    a("s_barrier")
                    for ins in reads((i + 1) % NS, 0, nxt):
                        a(ins)
                emit_m(ms[half:])
            state["set"] = nxt

    xtra_block = False
    steady_end = nsteps - NS + 1
    unroll = NS if (nu % 2 == 0 or NS % 2 == 0) else 2 * NS
    nloop = steady_end // unroll
    if nloop >= 2 and nsteps > int(os.environ.get('LOOPMIN', '16')) and not xtra_block:
        UID[0] += 1
        lab = f"L_{tag}_loop{UID[0]}"
        a(f"s_mov_b32 s19, 0")
        a(f"{lab}:")
        for i in range(unroll):
            step(i, dyn=True)
        a(f"s_add_u32 s19, s19, 1\ns_cmp_lt_u32 s19, {nloop}\ns_cbranch_scc1 {lab}")
        start = nloop * unroll
    else:
        start = 0
    for i in range(start, nsteps):
        step(i)
    stamp_end(a, PROFOFF[tag], 72)
    tl(a, 2)


def stamp_begin(a, base=66):
    if PROF:
        a(f"s_memtime s[{base}:{base+1}]\ns_memrealtime s[{base+4}:{base+5}]\ns_waitcnt lgkmcnt(0)")


def stamp_end(a, off, base=66):
    if PROF:
        a(f"""s_memtime s[{base+2}:{base+3}]
s_memrealtime s[{base+6}:{base+7}]
s_waitcnt lgkmcnt(0)
s_sub_u32 s{base+2}, s{base+2}, s{base}
s_sub_u32 s{base+6}, s{base+6}, s{base+4}
s_load_dwordx2 s[{base}:{base+1}], s[0:1], 96
s_waitcnt lgkmcnt(0)
s_add_u32 s{base}, s{base}, {24<<20}
s_addc_u32 s{base+1}, s{base+1}, 0
v_mov_b32 v6, s{base+2}
v_mov_b32 v7, s{base+6}
s_lshl_b32 s23, s2, 6
s_lshl_b32 s{base+2}, s22, 3
s_add_u32 s23, s23, s{base+2}
s_add_u32 s23, s23, {off}
v_mov_b32 v5, s23
global_store_dwordx2 v5, v[6:7], s[{base}:{base+1}]
""")


TLK = [0]


def tl(a, slot, drain=False):
    if not os.environ.get('TL'):
        return
    if drain:
        a("s_waitcnt vmcnt(0)")
    b = 66 if TLK[0] == 1 else 80
    va, vb = (6, 7) if TLK[0] == 1 else (254, 255)
    a(f"""s_memrealtime s[{b}:{b+1}]
s_load_dwordx2 s[{b+2}:{b+3}], s[0:1], 96
s_waitcnt lgkmcnt(0)
s_add_u32 s{b+2}, s{b+2}, {(24<<20) + (512<<10) + TLK[0]*65536 + slot*4}
s_addc_u32 s{b+3}, s{b+3}, 0
s_lshl_b32 s{b+4}, s2, 6
v_mov_b32 v{va}, s{b+4}
v_mov_b32 v{vb}, s{b}
v_cmp_eq_u32 vcc, 0, v0
s_and_saveexec_b64 s[{b+6}:{b+7}], vcc
global_store_dword v{va}, v{vb}, s[{b+2}:{b+3}]
s_mov_b64 exec, s[{b+6}:{b+7}]
""")


def wave_setup(a):
    a("""
v_lshrrev_b32 v1, 6, v0
s_nop 0
v_readfirstlane_b32 s22, v1
v_and_b32 v2, 63, v0
s_nop 2
s_lshl_b32 s18, s22, 10
""")


def t_dma_voff(a, vdst, n, pitch):
    a(f"""
v_lshrrev_b32 v3, 3, v2
v_lshl_add_u32 v3, v1, 3, v3
v_bfe_u32 v4, v3, 1, 3
v_and_b32 v5, 7, v2
v_xor_b32 v4, v4, v5
v_lshlrev_b32 v4, 4, v4
s_mov_b32 s23, {pitch}
v_mul_lo_u32 v3, v3, s23
v_add_u32 v{vdst}, v3, v4
""")
    for i in range(1, n):
        a(f"v_add_u32 v{vdst+i}, {i*64*pitch}, v{vdst}")


def n_dma_voff(a, vdst, n, pitch, MT):
    lpr = MT * 2 // 16
    rows = 64 // lpr
    sh = lpr.bit_length() - 1
    a(f"""
v_lshrrev_b32 v3, {sh}, v2
v_lshl_add_u32 v3, v1, {rows.bit_length()-1}, v3
v_and_b32 v5, {lpr-1}, v2
v_lshrrev_b32 v6, 2, v5
v_and_b32 v4, 3, v3
v_xor_b32 v6, v6, v4
v_and_b32 v5, 3, v5
v_lshlrev_b32 v5, 4, v5
v_lshl_add_u32 v5, v6, 6, v5
s_mov_b32 s23, {pitch}
v_mul_lo_u32 v3, v3, s23
v_add_u32 v{vdst}, v3, v5
""")
    for i in range(1, n):
        a(f"v_add_u32 v{vdst+i}, {i*8*rows*pitch}, v{vdst}")


def t_read_addr(a, vdst, nu, srow, skg2, base, NS, STAGE, stride):
    a(f"""
v_and_b32 v3, 31, v2
v_bfe_u32 v4, v3, 1, 3
v_lshrrev_b32 v5, 5, v2
v_xor_b32 v4, v4, v5
v_xor_b32 v4, s{skg2}, v4
v_add_u32 v3, s{srow}, v3
v_lshlrev_b32 v3, 7, v3
v_lshl_add_u32 v3, v4, 4, v3
""")
    for st in range(NS):
        for ul in range(nu):
            if ul == 0:
                a(f"v_add_u32 v{vdst+st*stride}, {base+st*STAGE}, v3")
            else:
                a(f"v_xor_b32 v{vdst+st*stride+ul}, {ul*32}, v{vdst+st*stride}")


def n_read_addr(a, vdst, sunit, skrow, LP, base, NS, STAGE, stride, nblk=2):
    a(f"""
v_bfe_u32 v3, v2, 2, 2
v_lshrrev_b32 v4, 5, v2
v_lshl_add_u32 v4, v4, 3, v3
s_mov_b32 s23, {LP}
v_mul_lo_u32 v4, v4, s23
v_add_u32 v4, s{skrow}, v4
v_bfe_u32 v5, v2, 4, 1
v_lshl_add_u32 v4, v5, 5, v4
v_and_b32 v5, 3, v2
v_lshl_add_u32 v4, v5, 3, v4
""")
    for b in range(nblk):
        a(f"""
s_add_u32 s23, s{sunit}, {b}
v_xor_b32 v5, s23, v3
v_lshl_add_u32 v5, v5, 6, v4
""")
        for st in range(NS):
            a(f"v_add_u32 v{vdst+st*stride+b}, {base+st*STAGE}, v5")


def gemm(a, tag, WM, WN, KS, ptype, pP, pR, nsteps, NS, opitch, scale=False, switch=None, touch=None):
    assert WM * WN * KS == 8
    MT, NT = 64 * WM, 64 * WN
    PB, RB = MT * 128, NT * 128
    STAGE = PB + RB
    nu = 4 // KS
    ncP, ncR = PB // 8192, RB // 8192
    wave_setup(a)
    lw = (WM * WN).bit_length() - 1
    lm = WM.bit_length() - 1
    a(f"""
s_lshr_b32 s24, s22, {lw}
s_and_b32 s25, s22, {WM-1}
s_lshr_b32 s26, s22, {lm}
s_and_b32 s26, s26, {WN-1}
""")
    if ptype == 'T':
        t_dma_voff(a, DV, ncP, pP)
    else:
        n_dma_voff(a, DV, ncP, pP, MT)
    t_dma_voff(a, DV + ncP, ncR, pR)
    nP = nu if ptype == 'T' else 2
    stride = nP + nu

    def setup():
        if touch:
            touch[0]() if callable(touch[0]) else a(touch[0])
        a(f"s_mul_i32 s27, s24, {nu*2}")
        if ptype == 'T':
            a(f"s_lshl_b32 s28, s25, 6")
            t_read_addr(a, RA, nu, 28, 27, 0, NS, STAGE, stride)
        else:
            a(f"s_lshl_b32 s28, s25, 1\ns_mul_i32 s29, s24, {nu*16*MT*2}")
            n_read_addr(a, RA, 28, 29, MT * 2, 0, NS, STAGE, stride)
        a(f"s_lshl_b32 s28, s26, 6")
        t_read_addr(a, RA + nP, nu, 28, 27, PB, NS, STAGE, stride)
        for i in range(64):
            a(f"v_mov_b32 v{ACC+i}, 0")

    def dmas(st):
        r = []
        for i in range(ncP):
            r.append([f"s_add_u32 m0, s18, {st*STAGE + i*8192}", "s_nop 0",
                      f"buffer_load_dwordx4 v{DV+i}, s[4:7], s16 offen lds"])
        for i in range(ncR):
            r.append([f"s_add_u32 m0, s18, {st*STAGE + PB + i*8192}", "s_nop 0",
                      f"buffer_load_dwordx4 v{DV+ncP+i}, s[8:11], s17 offen lds"])
        return r

    def reads(st, ul, fs):
        f = FR[fs]
        r = []
        if ptype == 'T':
            for b in range(2):
                r.append(f"ds_read_b128 v[{f+4*b}:{f+4*b+3}], v{RA+st*stride+ul} offset:{b*4096}")
        else:
            for b in range(2):
                for rr in range(2):
                    r.append(f"ds_read_b64_tr_b16 v[{f+4*b+2*rr}:{f+4*b+2*rr+1}], v{RA+st*stride+b} offset:{(16*ul+4*rr)*MT*2}")
        for b in range(2):
            r.append(f"ds_read_b128 v[{f+8+4*b}:{f+8+4*b+3}], v{RA+st*stride+nP+ul} offset:{b*4096}")
        return r

    def mfmas(fs):
        f = FR[fs]
        r = []
        for nb in range(2):
            for mb in range(2):
                c = ACC + 16 * (nb * 2 + mb)
                r.append(f"v_mfma_f32_32x32x16_bf16 v[{c}:{c+15}], v[{f+4*mb}:{f+4*mb+3}], v[{f+8+4*nb}:{f+8+4*nb+3}], v[{c}:{c+15}]")
        return r

    kadv = [f"s_add_u32 s16, s16, {128 if ptype == 'T' else 64*pP}", "s_add_u32 s17, s17, 128"]
    pipeline(a, tag, nsteps, NS, nu, dmas, reads, mfmas, None, kadv, switch, setup=setup, xtra=(touch[1] if touch else 0))

    a("s_nop 15\ns_nop 3")
    blocks = [(nb, mb) for nb in range(2) for mb in range(2)]
    if KS == 2:
        a("s_barrier")
        a(f"""
v_lshlrev_b32 v3, 4, v2
s_lshl_b32 s23, s22, 13
v_add_u32 v3, s23, v3
s_xor_b32 s23, s22, 4
s_lshl_b32 s23, s23, 13
v_lshlrev_b32 v4, 4, v2
v_add_u32 v4, s23, v4
s_cmp_eq_u32 s24, 0
s_cbranch_scc1 L_{tag}_x0
""")
        for j in range(8):
            a(f"ds_write_b128 v3, v[{ACC+4*j}:{ACC+4*j+3}] offset:{j*1024}")
        for j in range(32):
            a(f"v_mov_b32 v{ACC+j}, v{ACC+32+j}")
        a(f"s_branch L_{tag}_x1\nL_{tag}_x0:")
        for j in range(8):
            a(f"ds_write_b128 v3, v[{ACC+32+4*j}:{ACC+32+4*j+3}] offset:{j*1024}")
        a(f"L_{tag}_x1:\ns_waitcnt lgkmcnt(0)\ns_barrier")
        for j in range(8):
            a(f"ds_read_b128 v[{ACC+32+4*j}:{ACC+32+4*j+3}], v4 offset:{j*1024}")
        for j in range(8):
            a(f"s_waitcnt lgkmcnt({7-j})")
            for r in range(4):
                a(f"v_add_f32 v{ACC+4*j+r}, v{ACC+4*j+r}, v{ACC+32+4*j+r}")
        blocks = [(0, 0), (0, 1)]
    a(f"""
s_lshl_b32 s23, s26, 6
v_and_b32 v3, 31, v2
v_add_u32 v3, s23, v3
""")
    if KS == 2:
        a("s_lshl_b32 s23, s24, 5\nv_add_u32 v3, s23, v3")
    a(f"""
s_mov_b32 s23, {opitch}
v_mul_lo_u32 v3, v3, s23
v_lshrrev_b32 v4, 5, v2
v_lshl_add_u32 v3, v4, 4, v3
s_lshl_b32 s23, s25, 7
s_add_u32 s23, s23, s21
v_add_u32 v3, s23, v3
v_add_u32 v4, {32*opitch}, v3
""")
    for bi, (nb, mb) in enumerate(blocks):
        c = ACC + 16 * (nb * 2 + mb)
        t = 16 + 8 * (bi % 4)
        if scale:
            for r in range(16):
                a(f"v_mul_f32 v{c+r}, s20, v{c+r}")
        for r in range(8):
            a(f"v_cvt_pk_bf16_f32 v{t+r}, v{c+2*r}, v{c+2*r+1}")
        a("s_nop 1")
        for p in range(2):
            a(f"v_permlane32_swap_b32 v{t+4*p}, v{t+4*p+2}\nv_permlane32_swap_b32 v{t+4*p+1}, v{t+4*p+3}")
        for p in range(2):
            a(f"buffer_store_dwordx4 v[{t+4*p}:{t+4*p+3}], v{3+nb}, s[12:15], 0 offen offset:{mb*64+p*32}")


def gemm_kv(a, tag, NS=4):
    PB, RB = 8192, 16384
    STAGE = PB + RB
    nu = 4
    a(f"""
v_and_b32 v3, 3, v1
v_lshlrev_b32 v3, 10, v3
v_lshl_add_u32 v{DV}, v2, 4, v3
""")
    t_dma_voff(a, DV + 1, 2, 2048)
    stride = 1 + nu

    def dmas(st):
        r_ = [[f"s_add_u32 m0, s18, {st*STAGE}", "s_nop 0", f"buffer_load_dwordx4 v{DV}, s[4:7], s16 offen lds"]]
        for i in range(2):
            r_.append([f"s_add_u32 m0, s18, {st*STAGE + PB + i*8192}", "s_nop 0",
                       f"buffer_load_dwordx4 v{DV+1+i}, s[8:11], s17 offen lds"])
        return r_

    def setup():
        a(f"""
v_bfe_u32 v3, v2, 2, 2
v_lshrrev_b32 v4, 5, v2
v_lshl_add_u32 v4, v4, 3, v3
v_lshlrev_b32 v4, 6, v4
v_bfe_u32 v5, v2, 4, 1
v_lshl_add_u32 v4, v5, 5, v4
v_and_b32 v5, 3, v2
v_lshl_add_u32 v4, v5, 3, v4
v_lshrrev_b32 v5, 2, v1
v_lshl_add_u32 v4, v5, 12, v4
""")
        for st in range(NS):
            a(f"v_add_u32 v{RA+st*stride}, {st*STAGE}, v4")
        a("s_mov_b32 s27, 0\ns_and_b32 s28, s22, 3\ns_lshl_b32 s28, s28, 5")
        t_read_addr(a, RA + 1, nu, 28, 27, PB, NS, STAGE, stride)
        for i in range(16):
            a(f"v_mov_b32 v{ACC+i}, 0")

    def reads(st, ul, fs):
        f = FR[fs]
        r_ = []
        for rr in range(2):
            r_.append(f"ds_read_b64_tr_b16 v[{f+2*rr}:{f+2*rr+1}], v{RA+st*stride} offset:{(16*ul+4*rr)*64}")
        r_.append(f"ds_read_b128 v[{f+8}:{f+11}], v{RA+st*stride+1+ul}")
        return r_

    kadv = ["s_add_u32 s16, s16, 4096", "s_add_u32 s17, s17, 128"]
    a(f"s_cmp_ge_u32 s22, 4\ns_cbranch_scc1 L_{tag}_v")
    for kv in range(2):
        if kv:
            a(f"L_{tag}_v:")

        def mfmas(fs):
            f = FR[fs]
            if kv == 0:
                return ["s_nop 0", f"v_mfma_f32_32x32x16_bf16 v[{ACC}:{ACC+15}], v[{f}:{f+3}], v[{f+8}:{f+11}], v[{ACC}:{ACC+15}]"]
            return ["s_nop 0", f"v_mfma_f32_32x32x16_bf16 v[{ACC}:{ACC+15}], v[{f+8}:{f+11}], v[{f}:{f+3}], v[{ACC}:{ACC+15}]"]

        pipeline(a, tag, 16, NS, nu, dmas, reads, mfmas, None, kadv, setup=setup)
        a("s_nop 15\ns_nop 3")
        a(f"""
s_and_b32 s23, s22, 3
s_add_u32 s23, s21, s23
s_lshl_b32 s23, s23, 12
v_lshlrev_b32 v3, 4, v2
v_add_u32 v3, s23, v3
v_add_u32 v3, {WS_KF + 2048*kv}, v3
""")
        for r_ in range(8):
            a(f"v_cvt_pk_bf16_f32 v{16+r_}, v{ACC+2*r_}, v{ACC+2*r_+1}")
        if kv == 0:
            a("s_nop 1")
            for p in range(2):
                a(f"v_permlane32_swap_b32 v{16+4*p}, v{16+4*p+2}\nv_permlane32_swap_b32 v{16+4*p+1}, v{16+4*p+3}")
        for p in range(2):
            a(f"buffer_store_dwordx4 v[{16+4*p}:{16+4*p+3}], v3, s[12:15], 0 offen offset:{p*1024}")
        if kv == 0:
            tl(a, 5, True)
            a("s_endpgm")


def kernel_header(a, name):
    a.lines.append(f".globl {name}\n.p2align 8\n.type {name},@function\n{name}:")


def kernel_desc(name, vgpr, sgpr=100):
    return f""".amdhsa_kernel {name}
  .amdhsa_next_free_vgpr {vgpr}
  .amdhsa_next_free_sgpr {sgpr}
  .amdhsa_accum_offset {(vgpr+3)//4*4}
  .amdhsa_group_segment_fixed_size 0
  .amdhsa_kernarg_size 104
  .amdhsa_user_sgpr_count 2
  .amdhsa_user_sgpr_kernarg_segment_ptr 1
  .amdhsa_system_sgpr_workgroup_id_x 1
.end_amdhsa_kernel
"""


WS_BYTES = 40 << 20


def g4(a):
    a("""
s_and_b32 s50, s30, 1
s_lshl_b32 s50, s50, 2
s_and_b32 s51, s31, 3
s_add_u32 s50, s50, s51
s_lshr_b32 s51, s30, 1
s_lshl_b32 s51, s51, 2
s_lshr_b32 s52, s31, 2
s_add_u32 s51, s51, s52
""")
    if os.environ.get('SAMETILE') == '1':
        a("s_mov_b32 s50, 0\ns_mov_b32 s51, 0")
    if os.environ.get('SAMETILE') == '2':
        a("s_and_b32 s50, s30, 7\ns_mov_b32 s51, s30")
    if os.environ.get('SAMETILE') == '3':
        a("s_and_b32 s50, s2, 7\ns_lshr_b32 s51, s2, 3")
    srd(a, 4, 48, 49, 2048 * 4096, WS_AB)
    srd(a, 8, 32, 33, 2048 * 4096)
    srd(a, 12, 36, 37, 2048 * 4096)
    a("""
s_lshl_b32 s16, s50, 19
s_lshl_b32 s17, s51, 19
s_lshl_b32 s21, s50, 8
s_add_u32 s21, s21, s17
s_add_u32 s21, s21, 2048
s_add_u32 s53, s17, 4096
""")
    sw = f"""
s_mov_b32 s8, s34
s_mov_b32 s9, s35
s_sub_u32 s17, s17, 4096
s_add_u32 s16, s16, {1024*4096 - 4096}
s_mov_b32 s53, -1
"""
    uid = [0]

    class Dyn(str):
        pass
    dyn = f"""
s_cmp_eq_u32 s17, s53
s_cselect_b32 s8, s34, s8
s_cselect_b32 s9, s35, s9
s_cselect_b32 s23, 4096, 0
s_cselect_b32 s54, {1024*4096 - 4096}, 0
s_cselect_b32 s53, -1, s53
s_sub_u32 s17, s17, s23
s_add_u32 s16, s16, s54
"""
    gemm(a, "g4", 2, 2, 2, 'T', 4096, 4096, 64, 4, 4096, switch=(32, sw, dyn))


TPS = 8
ASTAGE = TPS * 4096
ANS = 3
NSTG = 64 // TPS
Q0, KF_, VF_, P_, ONES, LA, LB, NEGM, SX, SY, OA, OB = 16, 32, 40, 48, 56, 60, 64, 72, 88, 104, 120, 136
ST, KT, VT, PT = 152, 168, 176, 184
THR1 = 2.0 ** int(os.environ.get('THR1', '60'))
THR2 = 2.0 ** 120
MARGIN = int(os.environ.get('MARGIN', '60'))


def r(b, n):
    return f"v[{b}:{b+n-1}]"


def mf32(d, a_, b_, c):
    return f"v_mfma_f32_32x32x16_bf16 {r(d,16)}, {r(a_,4)}, {r(b_,4)}, {r(c,16) if isinstance(c,int) else c}"


def mf16(d, a_, b_, c):
    return f"v_mfma_f32_16x16x32_bf16 {r(d,4)}, {r(a_,4)}, {r(b_,4)}, {r(c,4)}"


def attn_dma(a, i):
    a(f"s_add_u32 m0, s17, {i*8192}\ns_nop 0\nbuffer_load_dwordx4 v{12+i}, s[12:15], s16 offen lds")


def attn_dma_adv(a):
    a(f"""
s_add_u32 s16, s16, {ASTAGE}
s_add_u32 s17, s17, {ASTAGE}
s_sub_u32 s30, s17, {ANS*ASTAGE}
s_cmp_ge_u32 s17, {ANS*ASTAGE}
s_cselect_b32 s17, s30, s17
""")


def cap(fn, *args):
    t = Asm()
    fn(t, *args)
    return [l.strip() for l in t.lines]


def attn_tile(a, g, tt, X, Y, Oc, Od, lc, ld, H, nx):
    cur, nxt = (g % ANS) * ASTAGE, ((g + 1) % ANS) * ASTAGE

    def rd(dst, t2, part):
        if g == NSTG - 1 and t2 >= TPS:
            t2 = TPS - 1
        base = cur if t2 < TPS else nxt
        off = base + (t2 % TPS) * 4096 + part * 1024
        a(f"ds_read_b128 {r(dst,4)}, v{10 + off // 65536} offset:{off % 65536}")
    last = (tt == TPS - 1)
    E = lambda i: a(f"v_exp_f32 v{X+i}, v{X+i}")
    C = lambda i: a(f"v_cvt_pk_bf16_f32 v{P_+i}, v{X+2*i}, v{X+2*i+1}")

    def hook(k):
        for ins in H.get(k, []):
            a(ins)
    hook('pre')
    a(f"s_waitcnt lgkmcnt({2 + nx})")
    a(mf32(Y, KF_, Q0, NEGM))
    for i in range(4): E(i)
    a("s_waitcnt lgkmcnt(0)")
    hook(0)
    if tt > 0:
        a(mf32(Od, VF_ + 4, P_ + 4, Od))
    if last:
        rd(VF_ + 4, tt, 3)
    for i in range(4, 6): E(i)
    hook('m0')
    for i in range(6, 8): E(i)
    hook(1)
    if tt > 0:
        a(mf16(ld, ONES, P_ + 4, ld))
    for i in range(4): C(i)
    a(mf32(Y, KF_ + 4, Q0 + 4, Y))
    hook(2)
    rd(KF_, tt + 2, 0)
    rd(KF_ + 4, tt + 2, 1)
    for i in range(8, 10): E(i)
    hook('m1')
    for i in range(10, 12): E(i)
    a(mf32(Od, VF_, P_, Oc))
    if not last:
        rd(VF_ + 4, tt, 3)
    rd(VF_, tt + 1, 2)
    for i in range(12, 14): E(i)
    hook('m2')
    for i in range(14, 16): E(i)
    hook(3)
    a(mf16(ld, ONES, P_, lc))
    hook('end')
    for i in range(4, 8): C(i)
    hook('m3')
    if last:
        assert not H.get('end')
        a("s_waitcnt lgkmcnt(3)\ns_nop 0")
        a(mf32(Od, VF_ + 4, P_ + 4, Od))
        a(mf16(ld, ONES, P_ + 4, ld))


def attn_slow(a, tag, Oold, Onew, lold, lnew, Snext, sbase):
    a(f"L_{tag}_slow:")
    a("s_nop 15")
    a(f"v_cmp_nlt_f32 vcc, v{lnew}, s29\ns_nop 4\ns_cbranch_vccnz L_{tag}_heavy")
    a(f"""
v_frexp_exp_i32_f32 v3, v{lnew}
v_add_u32 v3, {MARGIN}, v3
v_cvt_f32_i32 v4, v3
v_sub_u32 v3, 0, v3
""")
    for i in range(16): a(f"v_ldexp_f32 v{Onew+i}, v{Onew+i}, v3")
    for i in range(4): a(f"v_ldexp_f32 v{lnew+i}, v{lnew+i}, v3")
    for i in range(16): a(f"v_sub_f32 v{NEGM+i}, v{NEGM+i}, v4")
    for i in range(16): a(f"v_sub_f32 v{Snext+i}, v{Snext+i}, v4")
    a(f"s_nop 1\ns_branch L_{tag}_ret")
    a(f"L_{tag}_heavy:")
    a(f"s_waitcnt lgkmcnt(0)\nv_log_f32 v5, v{lold}\nv_add_u32 v6, {sbase}, v10\ns_mov_b32 s30, 0")
    a(f"L_{tag}_h1:")
    a(f"ds_read_b128 {r(KT,4)}, v6\nds_read_b128 {r(KT+4,4)}, v6 offset:1024\ns_waitcnt lgkmcnt(0)")
    a(mf32(ST, KT, Q0, NEGM)); a(mf32(ST, KT + 4, Q0 + 4, ST))
    a("s_nop 15")
    for i in range(8): a(f"v_max3_f32 v5, v{ST+2*i}, v{ST+2*i+1}, v5")
    a(f"v_add_u32 v6, 4096, v6\ns_add_u32 s30, s30, 1\ns_cmp_lt_u32 s30, {TPS}\ns_cbranch_scc1 L_{tag}_h1")
    a(f"""
v_mov_b32 v6, v5
s_nop 1
v_permlane32_swap_b32 v5, v6
s_nop 1
v_max_f32 v5, v5, v6
v_ceil_f32 v4, v5
v_add_f32 v4, {f32bits(float(MARGIN))}, v4
v_cvt_i32_f32 v3, v4
v_sub_u32 v3, 0, v3
""")
    for i in range(16): a(f"v_ldexp_f32 v{Onew+i}, v{Oold+i}, v3")
    for i in range(4): a(f"v_ldexp_f32 v{lnew+i}, v{lold+i}, v3")
    for i in range(16): a(f"v_sub_f32 v{NEGM+i}, v{NEGM+i}, v4")
    for i in range(16): a(f"v_sub_f32 v{Snext+i}, v{Snext+i}, v4")
    a(f"v_add_u32 v6, {sbase}, v10\ns_mov_b32 s30, 0")
    a(f"L_{tag}_h2:")
    a(f"ds_read_b128 {r(KT,4)}, v6\nds_read_b128 {r(KT+4,4)}, v6 offset:1024\nds_read_b128 {r(VT,4)}, v6 offset:2048\nds_read_b128 {r(VT+4,4)}, v6 offset:3072\ns_waitcnt lgkmcnt(0)")
    a(mf32(ST, KT, Q0, NEGM)); a(mf32(ST, KT + 4, Q0 + 4, ST))
    a("s_nop 15")
    for i in range(16): a(f"v_exp_f32 v{ST+i}, v{ST+i}")
    a("s_nop 0")
    for i in range(8): a(f"v_cvt_pk_bf16_f32 v{PT+i}, v{ST+2*i}, v{ST+2*i+1}")
    a("s_nop 1")
    a(mf32(Onew, VT, PT, Onew)); a(mf32(Onew, VT + 4, PT + 4, Onew))
    a(mf16(lnew, ONES, PT, lnew)); a(mf16(lnew, ONES, PT + 4, lnew))
    a(f"v_add_u32 v6, 4096, v6\ns_add_u32 s30, s30, 1\ns_cmp_lt_u32 s30, {TPS}\ns_cbranch_scc1 L_{tag}_h2")
    a(f"s_nop 7\ns_branch L_{tag}_ret")


def kv_dma(a, g, i):
    a(f"s_add_u32 m0, s18, {(g % ANS)*ASTAGE + i*8192}\ns_mov_b32 s16, {g*ASTAGE}\nbuffer_load_dwordx4 v{12+i}, s[12:15], s16 offen lds")


def attention(a, tag, endlabel):
    wave_setup(a)
    stamp_begin(a)
    tl(a, 3)
    a(f"""
v_lshlrev_b32 v9, 4, v2
v_lshl_add_u32 v12, v1, 10, v9
v_add_u32 v12, {WS_KF}, v12
v_add_u32 v13, 8192, v12
v_add_u32 v14, 16384, v12
v_add_u32 v15, 24576, v12
v_and_b32 v5, 31, v2
v_lshl_add_u32 v4, v1, 5, v5
v_lshrrev_b32 v5, 5, v2
v_lshlrev_b32 v5, 4, v5
v_lshl_add_u32 v8, v4, 6, v5
""")
    a(f"buffer_load_dwordx4 {r(Q0,4)}, v8, s[12:15], s26 offen\nbuffer_load_dwordx4 {r(Q0+4,4)}, v8, s[12:15], s26 offen offset:32")
    for g in range(2):
        for i in range(4): kv_dma(a, g, i)
    stage1_setup(a)
    for b in range(2):
        for i in range(4): s1_dma(a, b, i)
    a(f"""
s_mov_b32 s28, {f32bits(THR1)}
s_mov_b32 s29, {f32bits(THR2)}
v_mov_b32 v10, v9
v_add_u32 v11, 65536, v9
""")
    stage1_setup2(a)
    verify_setup(a)
    a(f"""
v_lshrrev_b32 v4, 2, v2
v_lshrrev_b32 v5, 4, v2
v_xor_b32 v4, v4, v5
v_and_b32 v4, 1, v4
v_cmp_eq_u32 vcc, 0, v4
v_mov_b32 v5, 0x3f803f80
s_nop 1
v_cndmask_b32 v{ONES}, 0, v5, vcc
v_mov_b32 v{ONES+1}, v{ONES}
v_mov_b32 v{ONES+2}, v{ONES}
v_mov_b32 v{ONES+3}, v{ONES}
""")
    for i in range(16): a(f"v_mov_b32 v{OB+i}, 0")
    for i in range(4): a(f"v_mov_b32 v{LB+i}, 0")
    a(f"v_mov_b32 v{VMAX}, 0")
    a("s_waitcnt vmcnt(12)\ns_barrier")
    a(f"ds_read_b128 {r(KF_,4)}, v10\nds_read_b128 {r(KF_+4,4)}, v10 offset:1024")
    a("s_waitcnt lgkmcnt(0)")
    a(mf32(SX, KF_, Q0, "0")); a(mf32(SX, KF_ + 4, Q0 + 4, SX))
    a(f"ds_read_b128 {r(KF_,4)}, v10 offset:4096\nds_read_b128 {r(KF_+4,4)}, v10 offset:{4096+1024}")
    a(f"ds_read_b128 {r(VF_+4,4)}, v10 offset:3072\nds_read_b128 {r(VF_,4)}, v10 offset:2048")
    a("s_nop 11")
    a(f"v_max3_f32 v5, v{SX}, v{SX+1}, v{SX+2}")
    for i in range(6): a(f"v_max3_f32 v5, v{SX+3+2*i}, v{SX+4+2*i}, v5")
    a(f"""
v_max_f32 v5, v{SX+15}, v5
v_mov_b32 v6, v5
s_nop 1
v_permlane32_swap_b32 v5, v6
s_nop 1
v_max_f32 v5, v5, v6
v_add_f32 v5, {f32bits(float(MARGIN))}, v5
""")
    for i in range(16): a(f"v_sub_f32 v{NEGM+i}, 0, v5")
    for i in range(16): a(f"v_sub_f32 v{SX+i}, v{SX+i}, v5")
    tl(a, 4)

    HK = {}

    def add(g, tt, slot, lines):
        HK.setdefault((g, tt), {}).setdefault(slot, []).extend(lines)
    BT_ = TPS - 2
    for g in range(NSTG):
        add(g, BT_, 'pre', ["s_waitcnt vmcnt(0)" + (" lgkmcnt(0)" if g == NSTG - 1 else ""), "s_barrier"])
        if g + 2 < NSTG:
            for i in range(4): add(g, BT_, i, cap(kv_dma, g + 2, i))
    add(0, 3, 'pre', ["s_waitcnt vmcnt(0)", "s_barrier"])

    def s1_step(g, tt, buf):
        add(g, tt, 'end', cap(s1_reads, buf))
        for i in range(4): add(g, tt + 1, f"m{i}", cap(s1_mfma, i))
    s1_step(0, 3, 0)
    for j in range(7):
        s1_step(j, BT_, (j + 1) & 1)
        if j + 2 <= 7:
            for i in range(4): add(j + 1, 0, i, cap(s1_dma, j & 1, i))
    add(7, 0, 'pre', f"""
s_and_b32 s27, s22, 1
s_lshr_b32 s25, s22, 1
s_and_b32 s23, s22, 3
s_lshl_b32 s23, s23, 13
s_cmp_ge_u32 s22, 4
s_cselect_b32 s30, 0, {S1B - (5 % ANS)*ASTAGE}
s_add_u32 s30, s30, {(5 % ANS)*ASTAGE}
s_add_u32 s23, s23, s30
v_add_u32 v{S1A}, s23, v9
s_lshl_b32 s23, s25, 11
s_lshl_b32 s30, s27, 13
s_add_u32 s23, s23, s30
v_add_u32 v{S1A+2}, s23, v9
v_add_u32 v{S1A+1}, {S1B}, v{S1A+2}
v_add_u32 v{S1A+2}, {(5 % ANS)*ASTAGE}, v{S1A+2}
""".strip().split("\n"))
    for j in range(8):
        add(7, 1 + j // 3, j % 3, [f"ds_write_b128 v{S1A}, v[{S1ACC+4*j}:{S1ACC+4*j+3}] offset:{j*1024}"])
    add(7, BT_, 'end', [f"ds_read_b128 v[{S1ACC+8*i+4*j}:{S1ACC+8*i+4*j+3}], v{S1A+1+i//2} offset:{(i%2)*16384+j*1024}" for i in range(4) for j in range(2)])
    def vchk(g, loads, AM):
        for i, ld_ in enumerate(loads):
            add(g, 4 if g == 0 else 1, i, ld_)
            add(g, BT_, i, [f"v_mfma_f32_16x16x32_bf16 {r(VB+12+4*i,4)}, {r(AM,4)}, {r(VB+4*i,4)}, 0"])
            add(g, TPS - 1, i, [f"v_max3_f32 v{VMAX}, |v{VB+12+4*i}|, |v{VB+13+4*i}|, v{VMAX}", f"v_max3_f32 v{VMAX}, |v{VB+14+4*i}|, |v{VB+15+4*i}|, v{VMAX}"])
    ldn = lambda i, off: [f"buffer_load_dwordx4 v[{VB+4*i}:{VB+4*i+3}], v{VAD}, s[76:79], 0 offen offset:{off}"]
    vchk(0, [ldn(0, 0)], AMN)
    vchk(1, [ldn(0, 512), ldn(1, 1024), ldn(2, 1536)], AMN)
    vchk(2, [ldn(0, 2048), ldn(1, 2560)], AMN)
    vchk(3, [ldn(0, 3072), ldn(1, 3584)], AMN)
    add(4, 0, 'pre', cap(verify_w_switch))
    vchk(4, [[f"buffer_load_dwordx4 v[{VB+4*i}:{VB+4*i+3}], v{VAD}, s[84:87], s63 offen offset:{i*512}"] for i in range(2)]
         + [[f"buffer_load_dwordx4 v[{VB+8}:{VB+11}], v7, s[76:79], 0 offen"]], AMN)
    add(5, 0, 'pre', cap(verify_r_switch))
    ldr = lambda i: [f"buffer_load_dwordx4 v[{VB+4*i}:{VB+4*i+3}], v{VRV}, s[76:79], 0 offen", f"v_add_u32 v{VRV}, v{VRV}, v{VAD}"]
    vchk(5, [ldr(0), ldr(1), [f"buffer_load_dwordx4 v[{VB+8}:{VB+11}], v7, s[76:79], 0 offen"]], AMR)
    vchk(6, [ldr(0), ldr(1)], AMR)
    add(7, 0, 'pre', f"""
s_mov_b32 s23, {f32bits(VTOL)}
v_cmp_nle_f32 vcc, v{VMAX}, s23
s_lshl_b32 s30, s58, 2
s_add_u32 s30, s30, {WS_FLAG}
v_mov_b32 v4, 0
s_cmp_lg_u64 vcc, 0
s_cselect_b32 s23, 1, 0
v_mov_b32 v3, s23
s_mov_b64 exec, 1
buffer_store_dword v3, v4, s[12:15], s30 offen
s_mov_b64 exec, -1
""".strip().split("\n"))

    nx = 0
    for g in range(NSTG):
        Oold, Onew, lold, lnew = (OB, OA, LB, LA) if g % 2 == 0 else (OA, OB, LA, LB)
        for tt in range(TPS):
            X, Y = (SX, SY) if tt % 2 == 0 else (SY, SX)
            H = HK.get((g, tt), {})
            attn_tile(a, g, tt, X, Y, Oold if tt == 0 else Onew, Onew, lold if tt == 0 else lnew, lnew, H, nx)
            nx = sum(1 for k in ('m2', 3, 'end', 'm3') for ins in H.get(k, []) if ins.startswith("ds_"))
        a(f"""
s_nop 7
v_cmp_nlt_f32 vcc, v{lnew}, s28
s_nop 1
s_cbranch_vccnz L_{tag}{g}_slow
L_{tag}{g}_ret:
""")
    tl(a, 2)
    a(f"s_nop 3\nv_rcp_f32 v7, v{LB}\ns_add_u32 s31, s26, {WS_O}")
    for i in range(16):
        a(f"v_mul_f32 v{OB+i}, v7, v{OB+i}")
    for i in range(8): a(f"v_cvt_pk_bf16_f32 v{P_+i}, v{OB+2*i}, v{OB+2*i+1}")
    a("s_nop 1")
    for p in range(2):
        a(f"v_permlane32_swap_b32 v{P_+4*p}, v{P_+4*p+2}\nv_permlane32_swap_b32 v{P_+4*p+1}, v{P_+4*p+3}")
    for p in range(2):
        a(f"buffer_store_dwordx4 {r(P_+4*p,4)}, v8, s[12:15], s31 offen offset:{p*32}")
    for r_ in range(8):
        a(f"v_add_f32 v{S1ACC+r_}, v{S1ACC+r_}, v{S1ACC+8+r_}\nv_add_f32 v{S1ACC+16+r_}, v{S1ACC+16+r_}, v{S1ACC+24+r_}")
    for r_ in range(8):
        a(f"v_add_f32 v{S1ACC+r_}, v{S1ACC+r_}, v{S1ACC+16+r_}")
    pack8(a, 16, S1ACC)
    a(f"""
v_and_b32 v3, 31, v2
s_lshl_b32 s23, s27, 5
v_add_u32 v3, s23, v3
s_mov_b32 s23, {ATP}
v_mul_lo_u32 v3, v3, s23
v_lshrrev_b32 v4, 5, v2
v_lshl_add_u32 v3, v4, 4, v3
s_lshl_b32 s23, s25, 5
s_add_u32 s23, s23, s21
buffer_store_dwordx4 v[16:19], v3, s[12:15], s23 offen
""")
    stamp_end(a, 196608)
    tl(a, 5, True)
    a(f"s_branch {endlabel}")
    for g in range(NSTG):
        if g % 2 == 0:
            attn_slow(a, f"{tag}{g}", OB, OA, LB, LA, SX, (g % ANS) * ASTAGE)
        else:
            attn_slow(a, f"{tag}{g}", OA, OB, LA, LB, SX, (g % ANS) * ASTAGE)


def wave_sum(a, v, t):
    for sh in (8, 4, 2, 1):
        a(f"s_nop 1\nv_add_f32_dpp v{v}, v{v}, v{v} row_ror:{sh} row_mask:0xf bank_mask:0xf")
    a(f"""
v_mov_b32 v{t}, v{v}
s_nop 1
v_permlane16_swap_b32 v{v}, v{t}
s_nop 1
v_add_f32 v{v}, v{v}, v{t}
v_mov_b32 v{t}, v{v}
s_nop 1
v_permlane32_swap_b32 v{v}, v{t}
s_nop 1
v_add_f32 v{v}, v{v}, v{t}
""")


def small_gemm(a, tag, mode, pP, pR, nsteps, kstep, pre=None):
    NS, STAGE, nu = 4, 32768, 2
    t_dma_voff(a, DV, 1, pP)
    t_dma_voff(a, DV + 1, 1, pR)
    stride = 4

    def setup():
        a("""
s_and_b32 s26, s22, 1
s_lshr_b32 s24, s22, 2
s_and_b32 s27, s22, 2
s_lshl_b32 s27, s27, 1
s_lshl_b32 s28, s24, 7
""")
        t_read_addr(a, RA, nu, 28, 27, 0, NS, STAGE, stride)
        a("s_lshl_b32 s29, s26, 5\ns_add_u32 s28, s28, s29")
        t_read_addr(a, RA + 2, nu, 28, 27, 8192, NS, STAGE, stride)
        for i in range(32):
            a(f"v_mov_b32 v{ACC+i}, 0")

    def dmas(st):
        return [[f"s_add_u32 m0, s18, {st*STAGE}", "s_nop 0", f"buffer_load_dwordx4 v{DV}, s[4:7], s16 offen lds"],
                [f"s_add_u32 m0, s18, {st*STAGE+8192}", "s_nop 0", f"buffer_load_dwordx4 v{DV+1}, s[8:11], s17 offen lds"],
                [f"s_add_u32 m0, s18, {st*STAGE+16384}", "s_nop 0", f"buffer_load_dwordx4 v{DV}, s[36:39], s40 offen lds"],
                [f"s_add_u32 m0, s18, {st*STAGE+24576}", "s_nop 0", f"buffer_load_dwordx4 v{DV+1}, s[44:47], s41 offen lds"]]

    def reads(st, ul, fs):
        f = FR[fs]
        return [f"ds_read_b128 v[{f}:{f+3}], v{RA+st*stride+ul}",
                f"ds_read_b128 v[{f+4}:{f+7}], v{RA+st*stride+ul} offset:4096",
                f"ds_read_b128 v[{f+8}:{f+11}], v{RA+st*stride+2+ul}"]

    def mfmas(fs):
        f = FR[fs]
        return [f"v_mfma_f32_32x32x16_bf16 v[{ACC+16*mb}:{ACC+16*mb+15}], v[{f+4*mb}:{f+4*mb+3}], v[{f+8}:{f+11}], v[{ACC+16*mb}:{ACC+16*mb+15}]" for mb in range(2)]

    kadv = [f"s_add_u32 s{r_}, s{r_}, {kstep}" for r_ in (16, 17, 40, 41)]
    pipeline(a, tag, nsteps, NS, nu, dmas, reads, mfmas, None, kadv, pre=pre, setup=setup)
    small_epi(a, mode, ACC)


def small_epi(a, mode, AC):
    a("s_and_b32 s26, s22, 1")
    a("s_nop 15\ns_barrier")
    a(f"""
v_lshlrev_b32 v3, 4, v2
s_lshl_b32 s23, s22, 13
v_add_u32 v4, s23, v3
s_lshr_b32 s25, s22, 1
s_lshl_b32 s23, s25, 11
s_lshl_b32 s29, s26, 13
s_add_u32 s23, s23, s29
v_add_u32 v3, s23, v3
""")
    for j in range(8):
        a(f"ds_write_b128 v4, v[{AC+4*j}:{AC+4*j+3}] offset:{j*1024}")
    a("s_waitcnt lgkmcnt(0)\ns_barrier")
    for i in range(4):
        for j in range(2):
            a(f"ds_read_b128 v[{96+8*i+4*j}:{96+8*i+4*j+3}], v3 offset:{i*16384+j*1024}")
    a("s_waitcnt lgkmcnt(4)")
    for r_ in range(8):
        a(f"v_add_f32 v{64+r_}, v{96+r_}, v{104+r_}")
    a("s_waitcnt lgkmcnt(0)")
    for r_ in range(8):
        a(f"v_add_f32 v{72+r_}, v{112+r_}, v{120+r_}")
    if mode == 1:
        for r_ in range(8):
            a(f"v_add_f32 v{64+r_}, v{64+r_}, v{72+r_}")


def pack8(a, dst, src):
    for r_ in range(4):
        a(f"v_cvt_pk_bf16_f32 v{dst+r_}, v{src+2*r_}, v{src+2*r_+1}")
    a(f"s_nop 1\nv_permlane32_swap_b32 v{dst}, v{dst+2}\nv_permlane32_swap_b32 v{dst+1}, v{dst+3}")


S1ACC, S1F, S1A, S1D = 200, 232, 24, 68
S1B = ANS_BYTES = 98304


def stage1_setup(a):
    a(f"""
s_and_b32 s30, s2, 7
s_lshr_b32 s31, s2, 3
s_and_b32 s31, s31, 15
s_and_b32 s54, s30, 3
s_lshl_b32 s54, s54, 2
s_and_b32 s55, s31, 3
s_add_u32 s54, s54, s55
s_lshr_b32 s55, s30, 2
s_lshl_b32 s55, s55, 2
s_lshr_b32 s56, s31, 2
s_add_u32 s55, s55, s56
s_cmp_ge_u32 s2, 128
s_cselect_b32 s8, s52, s50
s_cselect_b32 s9, s53, s51
s_cselect_b32 s56, {WS_XM-WS_XP}, 0
s_cselect_b32 s57, {WS_BT-WS_AT}, 0
s_add_u32 s56, s56, {WS_XP}
s_add_u32 s57, s57, {WS_AT}
s_mov_b32 s10, {1024*2048}
s_mov_b32 s11, 0x00020000
""")
    srd(a, 4, 48, 49, WS_BYTES)
    a(f"""
s_lshl_b32 s40, s54, 17
s_add_u32 s40, s40, s56
s_add_u32 s42, s40, 128
s_lshl_b32 s41, s55, 17
s_add_u32 s43, s41, 128
s_mul_i32 s21, s55, {64*ATP}
s_add_u32 s21, s21, s57
s_lshl_b32 s23, s54, 7
s_add_u32 s21, s21, s23
""")
    t_dma_voff(a, S1D, 1, 2048)


def stage1_setup2(a):
    a("""
s_lshr_b32 s25, s22, 2
s_and_b32 s27, s22, 2
s_lshl_b32 s27, s27, 1
s_lshl_b32 s25, s25, 7
""")
    t_read_addr(a, S1A, 2, 25, 27, S1B, 2, 32768, 4)
    a("s_and_b32 s23, s22, 1\ns_lshl_b32 s23, s23, 5\ns_add_u32 s25, s25, s23")
    t_read_addr(a, S1A + 2, 2, 25, 27, S1B + 8192, 2, 32768, 4)
    for i in range(32):
        a(f"v_mov_b32 v{S1ACC+i}, 0")


def s1_dma(a, buf, i):
    if os.environ.get('NOS1'): return
    sr, so = ((4, 40), (8, 41), (4, 42), (8, 43))[i]
    a(f"s_add_u32 m0, s18, {S1B + buf*32768 + i*8192}\ns_nop 0\nbuffer_load_dwordx4 v{S1D}, s[{sr}:{sr+3}], s{so} offen lds\ns_add_u32 s{so}, s{so}, 256")


def s1_reads(a, buf):
    if os.environ.get('NOS1'): return
    for ul in range(2):
        f = S1F + 12 * ul
        a(f"""
ds_read_b128 v[{f}:{f+3}], v{S1A+buf*4+ul}
ds_read_b128 v[{f+4}:{f+7}], v{S1A+buf*4+ul} offset:4096
ds_read_b128 v[{f+8}:{f+11}], v{S1A+buf*4+2+ul}
""")


def s1_mfma(a, i):
    if os.environ.get('NOS1'): return
    ul, mb = i >> 1, i & 1
    f = S1F + 12 * ul
    c = S1ACC + 16 * mb
    a(f"v_mfma_f32_32x32x16_bf16 v[{c}:{c+15}], v[{f+4*mb}:{f+4*mb+3}], v[{f+8}:{f+11}], v[{c}:{c+15}]")


def stage1_store(a):
    a("s_waitcnt vmcnt(0) lgkmcnt(0)")
    small_epi(a, 1, S1ACC)
    pack8(a, 16, 64)
    a(f"""
v_and_b32 v3, 31, v2
s_lshl_b32 s23, s26, 5
v_add_u32 v3, s23, v3
s_mov_b32 s23, {ATP}
v_mul_lo_u32 v3, v3, s23
v_lshrrev_b32 v4, 5, v2
v_lshl_add_u32 v3, v4, 4, v3
s_lshl_b32 s23, s25, 5
s_add_u32 s23, s23, s21
buffer_store_dwordx4 v[16:19], v3, s[12:15], s23 offen
""")


def dot_loads(a, dst, srdA, soffA, srdB, soffB):
    for (d, sr, so) in ((dst, srdA, soffA), (dst + 12, srdB, soffB)):
        a(f"""
buffer_load_dwordx4 v[{d}:{d+3}], v10, s[{sr}:{sr+3}], s{so} offen
buffer_load_dwordx4 v[{d+4}:{d+7}], v10, s[{sr}:{sr+3}], s{so} offen offset:16
buffer_load_dwordx4 v[{d+8}:{d+11}], v11, s[{sr}:{sr+3}], s{so} offen
""")


def dot_compute(a, res, src, t):
    a(f"v_mov_b32 v{res}, 0")
    for i in range(12):
        a(f"v_dot2c_f32_bf16 v{res}, v{src+i}, v{src+12+i}")
    a("s_nop 3")
    wave_sum(a, res, t)


def edge_issue(a):
    srd(a, 64, 56, 57, 2048 * 4096)
    srd(a, 68, 48, 49, WS_BYTES)
    a(f"""
s_lshr_b32 s54, s2, 3
s_and_b32 s55, s2, 7
v_lshlrev_b32 v10, 5, v2
v_lshlrev_b32 v11, 4, v2
v_add_u32 v11, 2048, v11
v_mov_b32 v3, 0x7ffffff0
v_cmp_gt_u32 vcc, 8, v2
s_lshl_b32 s58, s54, 6
s_lshl_b32 s23, s55, 3
s_add_u32 s58, s58, s23
s_add_u32 s58, s58, s22
v_cndmask_b32 v11, v3, v11, vcc
s_lshl_b32 s59, s58, 12
s_mov_b32 s60, {WS_AT + 512*ATP}
s_lshl_b32 s61, s55, 6
s_lshl_b32 s23, s54, 2
s_add_u32 s61, s61, s23
s_add_u32 s61, s61, s22
s_cmp_ge_u32 s22, 4
s_cselect_b32 s61, 512, s61
s_mul_i32 s62, s61, {ATP}
s_add_u32 s62, s62, {WS_AT}
s_mov_b32 s63, {1024*4096}
""")


def edge_loads(a):
    flag_load(a, 212, 76, 48, 49)
    dot_loads(a, 164, 64, 59, 68, 60)
    dot_loads(a, 188, 64, 63, 68, 62)


def edge_finish(a):
    flag_test(a, 212)
    a("s_cbranch_scc1 L_edge_done")
    dot_compute(a, 160, 164, 3)
    dot_compute(a, 161, 188, 3)
    a(f"""
v_cvt_pk_bf16_f32 v160, v160, v161
v_lshrrev_b32 v161, 16, v160
s_mov_b64 exec, 3
s_sub_u32 s23, 2048, s58
v_mov_b32 v3, s58
v_mov_b32 v4, s23
v_cmp_eq_u32 vcc, 0, v2
s_nop 1
v_cndmask_b32 v3, v4, v3, vcc
v_lshlrev_b32 v3, 12, v3
buffer_store_short v160, v3, s[12:15], 0 offen offset:3072
s_sub_u32 s23, 1024, s61
v_mov_b32 v3, s61
v_mov_b32 v4, s23
s_nop 0
v_cndmask_b32 v3, v4, v3, vcc
v_lshlrev_b32 v3, 1, v3
v_add_u32 v3, {1024*4096 + 2048}, v3
s_cmp_eq_u32 s61, 0
s_cselect_b64 s[72:73], 1, 3
s_cmp_gt_u32 s22, 4
s_cselect_b64 s[72:73], 0, s[72:73]
s_mov_b64 exec, s[72:73]
s_cbranch_execz L_edge_done
buffer_store_short v161, v3, s[12:15], 0 offen
L_edge_done:
s_mov_b64 exec, -1
""")


def stage2(a):
    a(f"""
s_and_b32 s54, s30, 3
s_lshl_b32 s54, s54, 2
s_and_b32 s55, s31, 3
s_add_u32 s54, s54, s55
s_lshr_b32 s55, s30, 2
s_lshl_b32 s55, s55, 2
s_lshr_b32 s56, s31, 2
s_add_u32 s55, s55, s56
""")
    srd(a, 4, 48, 49, WS_BYTES)
    srd(a, 36, 48, 49, WS_BYTES)
    srd(a, 8, 50, 51, 2048 * 4096)
    srd(a, 44, 52, 53, 2048 * 4096)
    srd(a, 12, 34, 35, 2048 * 4096)
    a(f"""
s_mul_i32 s16, s55, {64*ATP}
s_add_u32 s40, s16, {WS_BT}
s_add_u32 s16, s16, {WS_AT}
s_lshl_b32 s17, s54, 18
s_mov_b32 s41, s17
""")
    wave_setup(a)
    flag_load(a, 208, 76, 48, 49)

    def pre():
        a("s_waitcnt vmcnt(12)")
        flag_test(a, 208)
        a("s_cbranch_scc1 L_k3_fb")

    small_gemm(a, "s2", 2, ATP, 4096, 17, 128, pre=pre)
    for r_ in range(8):
        a(f"v_sub_f32 v{80+r_}, v{64+r_}, v{72+r_}\nv_add_f32 v{88+r_}, v{64+r_}, v{72+r_}")
    pack8(a, 16, 80)
    pack8(a, 20, 88)
    a("s_nop 0")
    for r_ in range(4):
        a(f"v_alignbit_b32 v{24+r_}, v{19-r_}, v{19-r_}, 16")
        a(f"v_alignbit_b32 v{28+r_}, v{23-r_}, v{23-r_}, 16")
    a(f"""
v_and_b32 v3, 31, v2
s_lshl_b32 s23, s26, 5
s_lshl_b32 s29, s54, 6
s_add_u32 s23, s23, s29
v_add_u32 v3, s23, v3
v_sub_u32 v4, 2048, v3
v_lshlrev_b32 v3, 12, v3
v_lshlrev_b32 v4, 12, v4
v_lshrrev_b32 v5, 5, v2
v_lshlrev_b32 v5, 4, v5
s_lshl_b32 s23, s25, 5
s_lshl_b32 s29, s55, 7
s_add_u32 s23, s23, s29
v_add_u32 v5, s23, v5
v_add_u32 v6, v3, v5
v_add_u32 v7, v4, v5
v_sub_u32 v8, 4082, v5
v_add_u32 v9, v4, v8
v_add_u32 v8, v3, v8
buffer_store_dwordx4 v[16:19], v6, s[12:15], 0 offen offset:2048
buffer_store_dwordx4 v[20:23], v7, s[12:15], 0 offen offset:2048
v_cmp_ne_u32 vcc, 0, v5
s_and_saveexec_b64 s[64:65], vcc
buffer_store_dwordx4 v[28:31], v8, s[12:15], 0 offen
buffer_store_dwordx4 v[24:27], v9, s[12:15], 0 offen
s_andn2_b64 exec, s[64:65], exec
s_cbranch_execz L_s2_e2
buffer_store_dwordx3 v[28:30], v8, s[12:15], 0 offen
buffer_store_short v31, v8, s[12:15], 0 offen offset:12
buffer_store_dwordx3 v[24:26], v9, s[12:15], 0 offen
buffer_store_short v27, v9, s[12:15], 0 offen offset:12
L_s2_e2:
s_mov_b64 exec, s[64:65]
""")


def fold(a):
    wave_setup(a)
    srd(a, 4, 40, 41, 2048 * 2048)
    srd(a, 8, 44, 45, 1024 * 2048)
    a(f"""
v_lshlrev_b32 v6, 5, v2
s_lshl_b32 s16, s31, 5
s_lshl_b32 s23, s22, 2
s_add_u32 s16, s16, s23
s_mov_b32 s17, {512*2048}
buffer_load_dwordx4 v[8:11], v6, s[8:11], s17 offen
buffer_load_dwordx4 v[12:15], v6, s[8:11], s17 offen offset:16
""")
    for i in range(4):
        b = 16 + 16 * i
        a(f"""
s_add_u32 s23, s16, {i}
s_sub_u32 s24, 2048, s23
s_lshl_b32 s23, s23, 11
s_lshl_b32 s24, s24, 11
buffer_load_dwordx4 v[{b}:{b+3}], v6, s[4:7], s23 offen
buffer_load_dwordx4 v[{b+4}:{b+7}], v6, s[4:7], s23 offen offset:16
buffer_load_dwordx4 v[{b+8}:{b+11}], v6, s[4:7], s24 offen
buffer_load_dwordx4 v[{b+12}:{b+15}], v6, s[4:7], s24 offen offset:16
""")
    for i in range(4):
        b = 16 + 16 * i
        o = 96 + 16 * i
        a(f"s_waitcnt vmcnt({(3-i)*4 + 5*i})")
        a(f"v_mov_b32 v{88+i}, 0")
        for j in range(8):
            a(f"""
v_lshlrev_b32 v80, 16, v{b+j}
v_and_b32 v81, 0xffff0000, v{b+j}
v_lshlrev_b32 v82, 16, v{b+8+j}
v_and_b32 v83, 0xffff0000, v{b+8+j}
v_add_f32 v84, v80, v82
v_add_f32 v85, v81, v83
v_sub_f32 v86, v80, v82
v_sub_f32 v87, v81, v83
v_cvt_pk_bf16_f32 v{o+j}, v84, v85
v_cvt_pk_bf16_f32 v{o+8+j}, v86, v87
v_dot2c_f32_bf16 v{88+i}, v{o+j}, v{8+j}
""")
        a(f"""
s_add_u32 s23, s16, {i}
s_lshl_b32 s24, s23, 11
s_add_u32 s25, s24, {WS_XM}
s_add_u32 s24, s24, {WS_XP}
buffer_store_dwordx4 v[{o}:{o+3}], v6, s[12:15], s24 offen
buffer_store_dwordx4 v[{o+4}:{o+7}], v6, s[12:15], s24 offen offset:16
buffer_store_dwordx4 v[{o+8}:{o+11}], v6, s[12:15], s25 offen
buffer_store_dwordx4 v[{o+12}:{o+15}], v6, s[12:15], s25 offen offset:16
""")
        wave_sum(a, 88 + i, 3)
        a(f"""
v_cvt_pk_bf16_f32 v{88+i}, v{88+i}, v{88+i}
s_lshl_b32 s23, s23, 1
s_add_u32 s23, s23, {WS_AT + 512*ATP}
v_mov_b32 v4, 0
s_mov_b64 exec, 1
buffer_store_short v{88+i}, v4, s[12:15], s23 offen
s_mov_b64 exec, -1
""")


def edge_mv(a):
    wave_setup(a)
    srd(a, 4, 40, 41, 2048 * 2048)
    srd(a, 8, 44, 45, 513 * 2048)
    a(f"""
v_lshlrev_b32 v6, 5, v2
s_lshl_b32 s16, s31, 3
s_add_u32 s16, s16, s22
s_mul_i32 s16, s16, 9
s_mov_b32 s17, {1024*2048}
buffer_load_dwordx4 v[8:11], v6, s[4:7], s17 offen
buffer_load_dwordx4 v[12:15], v6, s[4:7], s17 offen offset:16
v_lshlrev_b32 v7, 2, v2
""")
    for i in range(9):
        b = 16 + 8 * i
        a(f"""
s_add_u32 s23, s16, {i}
s_lshl_b32 s23, s23, 11
buffer_load_dwordx4 v[{b}:{b+3}], v6, s[8:11], s23 offen
buffer_load_dwordx4 v[{b+4}:{b+7}], v6, s[8:11], s23 offen offset:16
""")
    a("s_waitcnt vmcnt(0)\nv_mov_b32 v5, 0")
    for i in range(9):
        b = 16 + 8 * i
        a(f"v_mov_b32 v{96+i}, 0")
        for j in range(8):
            a(f"v_dot2c_f32_bf16 v{96+i}, v{b+j}, v{8+j}")
        a("s_nop 3")
        wave_sum(a, 96 + i, 3)
        a(f"""
v_cvt_pk_bf16_f32 v{96+i}, v{96+i}, v5
v_cmp_eq_u32 vcc, 0, v2
s_add_u32 s23, s16, {i}
s_cmp_gt_u32 s23, 512
s_cbranch_scc1 L_emv_done
v_cndmask_b32 v{96+i}, v5, v{96+i}, vcc
s_mul_i32 s23, s23, {ATP}
s_add_u32 s24, s23, {WS_BT + 2048}
s_add_u32 s23, s23, {WS_AT + 2048}
s_mov_b32 exec_hi, 0
buffer_store_dword v{96+i}, v7, s[12:15], s23 offen
buffer_store_dword v5, v7, s[12:15], s24 offen
s_mov_b64 exec, -1
""")
    a("L_emv_done:")


VTOL = 2.0 ** -8 * 1.01
VMAX = 70
VB = 152


def cmp_dw(a, x, y, neg, rev=False):
    lo_y, hi_y = (f"v_and_b32 v5, 0xffff0000, v{y}", f"v_lshlrev_b32 v6, 16, v{y}") if rev else (f"v_lshlrev_b32 v5, 16, v{y}", f"v_and_b32 v6, 0xffff0000, v{y}")
    a(f"""
v_lshlrev_b32 v3, 16, v{x}
v_and_b32 v4, 0xffff0000, v{x}
{lo_y}
{hi_y}
v_fmac_f32 v3, s60, v5
v_fmac_f32 v4, s60, v6
v_max3_f32 v{VMAX}, |v3|, |v4|, v{VMAX}
""")


def verify_c_setup(a):
    a(f"""
s_bitcmp1_b32 s58, 0
s_cselect_b32 s76, s94, s92
s_cselect_b32 s77, s95, s93
s_cselect_b32 s60, 1.0, -1.0
s_mov_b32 s78, {2048*4096}
s_mov_b32 s79, 0x00020000
s_sub_u32 s62, 2048, s61
s_and_b32 s62, s62, 2047
s_lshl_b32 s61, s61, 12
s_lshl_b32 s62, s62, 12
""")


AMN, AMR, VAD, VRV = 192, 196, 69, 71


def verify_setup(a):
    a("s_lshl_b32 s58, s2, 3\ns_add_u32 s58, s58, s22\ns_lshr_b32 s61, s58, 1")
    verify_c_setup(a)
    a(f"""
s_bitcmp1_b32 s58, 0
s_mov_b32 s59, 0xbf80
s_cselect_b32 s59, 0x3f80, s59
v_and_b32 v3, 15, v2
v_bfe_u32 v4, v2, 4, 1
v_lshlrev_b32 v4, 3, v4
v_cmp_gt_u32 vcc, 32, v2
v_mov_b32 v5, s59
v_mov_b32 v6, 0x3f80
v_sub_u32 v7, 15, v3
v_cndmask_b32 v5, v5, v6, vcc
v_cndmask_b32 v7, v7, v3, vcc
v_sub_u32 v3, v3, v4
v_sub_u32 v7, v7, v4
""")
    for base, j in ((AMN, 3), (AMR, 7)):
        a(f"""
v_and_b32 v4, 1, v{j}
v_lshlrev_b32 v4, 4, v4
v_lshlrev_b32 v4, v4, v5
v_lshrrev_b32 v6, 1, v{j}
""")
        for r_ in range(4):
            a(f"v_cmp_eq_u32 vcc, {r_}, v6\ns_nop 1\nv_cndmask_b32 v{base+r_}, 0, v4, vcc")
    a(f"""
v_and_b32 v3, 15, v2
v_lshlrev_b32 v3, 5, v3
v_bfe_u32 v4, v2, 4, 1
v_lshlrev_b32 v4, 4, v4
v_add_u32 v5, v3, v4
v_sub_u32 v6, v4, v3
v_add_u32 v6, 4064, v6
v_add_u32 v7, 2, v5
v_cmp_gt_u32 vcc, 32, v2
v_mov_b32 v3, s62
v_mov_b32 v4, s61
v_cndmask_b32 v6, v6, v7, vcc
v_cndmask_b32 v3, v3, v4, vcc
v_add_u32 v{VRV}, s61, v6
v_add_u32 v{VAD}, v3, v5
s_mov_b32 s63, 0
""")


def verify_w_switch(a):
    a(f"""
s_bitcmp1_b32 s58, 0
s_cselect_b32 s84, s52, s50
s_cselect_b32 s85, s53, s51
s_mov_b32 s86, {1024*2048}
s_lshr_b32 s59, s58, 2
s_add_u32 s59, s59, 1
s_sub_u32 s63, 1024, s59
s_lshl_b32 s59, s59, 11
s_lshl_b32 s63, s63, 11
v_mov_b32 v3, s63
v_mov_b32 v4, s59
v_cmp_gt_u32 vcc, 32, v2
v_and_b32 v5, 15, v2
v_lshlrev_b32 v5, 5, v5
v_bfe_u32 v6, v2, 4, 1
v_lshl_add_u32 v5, v6, 4, v5
v_cndmask_b32 v3, v3, v4, vcc
v_add_u32 v{VAD}, v3, v5
s_and_b32 s63, s58, 2
s_lshl_b32 s63, s63, 9
""")
    srd(a, 80, 88, 89, 1024 * 2048)
    a(f"""
v_lshl_add_u32 v3, v0, 8, s2
v_lshlrev_b32 v3, 7, v3
buffer_load_dword v{VB+24}, v3, s[80:83], 0 offen
s_mov_b32 s87, 0x00020000
s_lshr_b32 s59, s58, 1
s_and_b32 s59, s59, 7
s_lshl_b32 s59, s59, 9
s_add_u32 s59, s59, {1024*4096}
v_add_u32 v7, s59, v5
""")


def verify_r_switch(a):
    a(f"""
v_mov_b32 v3, 512
v_mov_b32 v4, -512
v_cmp_gt_u32 vcc, 32, v2
s_lshr_b32 s59, s58, 1
s_sub_u32 s63, {1024*4096}, s61
s_and_b32 s23, s58, 0xfffffff9
v_cndmask_b32 v{VAD}, v4, v3, vcc
s_cmp_eq_u32 s23, 0
s_cselect_b32 s59, s59, 0
s_cselect_b32 s63, s63, 0
v_mul_lo_u32 v7, v{VAD}, s59
v_add3_u32 v7, v7, v{VRV}, s63
""")


def touch(a):
    a("""
s_load_dwordx4 s[32:35], s[0:1], 16
s_load_dwordx4 s[40:43], s[0:1], 64
s_sub_u32 s31, s2, 184
s_lshl_b32 s23, s31, 9
v_add_u32 v3, s23, v0
s_waitcnt lgkmcnt(0)
""")
    srd(a, 4, 32, 33, 65536)
    srd(a, 8, 34, 35, 65536)
    srd(a, 16, 40, 41, 513 * 2048)
    srd(a, 20, 42, 43, 512 * 2048)
    a(f"""
v_lshlrev_b32 v4, 7, v3
buffer_load_dword v12, v4, s[4:7], 0 offen
buffer_load_dword v13, v4, s[8:11], 0 offen
buffer_load_dword v10, v4, s[16:19], 0 offen
buffer_load_dword v11, v4, s[20:23], 0 offen
s_waitcnt vmcnt(0)
""")


def flag_load(a, vd, sr, lo, hi):
    srd(a, sr, lo, hi, 8192, WS_FLAG)
    a("v_and_b32 v3, 63, v0\nv_lshlrev_b32 v3, 4, v3\nv_add_u32 v4, 4096, v3")
    for j in range(8):
        a(f"buffer_load_dwordx4 v[{vd+4*j}:{vd+4*j+3}], v{3 + j//4}, s[{sr}:{sr+3}], 0 offen offset:{(j%4)*1024}")


def flag_test(a, vd):
    for j in range(1, 31, 2):
        a(f"v_or3_b32 v{vd}, v{vd}, v{vd+j}, v{vd+j+1}")
    a(f"v_or_b32 v{vd}, v{vd}, v{vd+31}")
    a(f"v_cmp_ne_u32 vcc, 0, v{vd}\ns_nop 1\ns_cmp_lg_u64 vcc, 0")


def g3(a):
    a("""
s_and_b32 s50, s30, 3
s_lshl_b32 s50, s50, 2
s_and_b32 s51, s31, 3
s_add_u32 s50, s50, s51
s_lshr_b32 s51, s30, 2
s_lshl_b32 s51, s51, 2
s_lshr_b32 s52, s31, 2
s_add_u32 s51, s51, s52
""")
    srd(a, 4, 40, 41, 2048 * 2048)
    a(f"""
s_cmp_ge_u32 s51, 4
s_cselect_b32 s8, s46, s44
s_cselect_b32 s9, s47, s45
s_cselect_b32 s20, {f32bits(-1.0)}, 1.0
s_mov_b32 s10, {1024*2048}
s_mov_b32 s11, 0x00020000
s_lshl_b32 s16, s50, 18
s_and_b32 s17, s51, 3
s_lshl_b32 s17, s17, 19
s_lshl_b32 s21, s51, 20
s_lshl_b32 s23, s50, 8
s_add_u32 s21, s21, s23
s_add_u32 s21, s21, {WS_AB}
""")
    gemm(a, "g3", 2, 4, 1, 'T', 2048, 2048, 16, 3, 4096, scale=True)


def touch2(a):
    a("""
v_lshl_add_u32 v3, v0, 8, s2
v_lshlrev_b32 v4, 7, v3
v_lshrrev_b32 v5, 5, v3
v_and_b32 v6, 31, v3
v_lshlrev_b32 v5, 12, v5
v_lshl_add_u32 v5, v6, 7, v5
v_mov_b32 v7, 0x7ffffff0
v_cmp_gt_u32 vcc, 17, v6
""")
    srd(a, 76, 88, 89, 1024 * 2048)
    a("v_cndmask_b32 v5, v7, v5, vcc\nbuffer_load_dword v196, v4, s[76:79], 0 offen")
    srd(a, 80, 92, 93, 1025 * 4096)
    a("buffer_load_dword v197, v5, s[80:83], 0 offen")
    srd(a, 84, 94, 95, 1025 * 4096)
    a("buffer_load_dword v198, v5, s[84:87], 0 offen")


def k1(a):
    kernel_header(a, "k1_kernel")
    a("""
s_cmp_ge_u32 s2, 256
s_cbranch_scc1 L_k1_end
s_cmp_ge_u32 s2, 184
s_cbranch_scc1 L_k1_touch
s_load_dwordx8 s[32:39], s[0:1], 0
s_load_dwordx2 s[40:41], s[0:1], 40
s_load_dwordx4 s[44:47], s[0:1], 64
s_load_dwordx2 s[48:49], s[0:1], 96
s_and_b32 s30, s2, 7
s_lshr_b32 s31, s2, 3
s_waitcnt lgkmcnt(0)
""")
    TLK[0] = 0
    tl(a, 0)
    srd(a, 12, 48, 49, WS_BYTES)
    a("""
s_cmp_ge_u32 s2, 176
s_cbranch_scc1 L_k1_emv
s_cmp_ge_u32 s2, 144
s_cbranch_scc1 L_k1_fold
s_cmp_ge_u32 s2, 128
s_cbranch_scc1 L_k1_kv
""")
    a(f"""
s_and_b32 s50, s30, 1
s_lshl_b32 s50, s50, 2
s_and_b32 s51, s31, 3
s_add_u32 s50, s50, s51
s_lshr_b32 s51, s30, 1
s_lshl_b32 s51, s51, 2
s_lshr_b32 s52, s31, 2
s_add_u32 s51, s51, s52
""")
    srd(a, 4, 34, 35, 1024 * 2048)
    srd(a, 8, 32, 33, 2048 * 2048)
    a(f"""
s_mov_b32 s20, {f32bits(QSCALE)}
s_lshl_b32 s16, s50, 8
s_lshl_b32 s17, s51, 18
s_add_u32 s21, s17, s16
""")
    tch = """
s_lshl_b32 s23, s2, 9
v_add_u32 v3, s23, v0
v_lshlrev_b32 v3, 7, v3
buffer_load_dword v160, v3, s[8:11], 0 offen
v_subrev_u32 v3, 0x400000, v3
buffer_load_dword v161, v3, s[4:7], 0 offen
"""
    gemm(a, "g1", 2, 2, 2, 'N', 2048, 2048, 16, 4, 2048, scale=True, touch=(tch, 2))
    tl(a, 5, True)
    a("s_endpgm")
    a("L_k1_kv:")
    wave_setup(a)
    a(f"""
s_cmp_ge_u32 s22, 4
s_cselect_b32 s4, s38, s36
s_cselect_b32 s5, s39, s37
s_mov_b32 s6, 65536
s_mov_b32 s7, 0x00020000
""")
    srd(a, 8, 32, 33, 2048 * 2048)
    a("""
s_mov_b32 s16, 0
s_sub_u32 s31, s2, 128
s_lshl_b32 s17, s31, 18
s_lshl_b32 s21, s31, 2
""")
    gemm_kv(a, "g2")
    tl(a, 5, True)
    a("s_endpgm\nL_k1_fold:\ns_sub_u32 s31, s2, 144")
    fold(a)
    tl(a, 5, True)
    a("s_endpgm\nL_k1_emv:\ns_sub_u32 s31, s2, 176")
    edge_mv(a)
    tl(a, 5, True)
    a("s_endpgm\nL_k1_touch:")
    touch(a)
    a("L_k1_end:\ns_endpgm")


def k2(a):
    kernel_header(a, "k2_kernel")
    a("""
s_cmp_ge_u32 s2, 256
s_cbranch_scc1 L_k2_end
s_load_dwordx2 s[50:51], s[0:1], 64
s_load_dwordx2 s[52:53], s[0:1], 72
s_load_dwordx2 s[88:89], s[0:1], 32
s_load_dwordx4 s[92:95], s[0:1], 48
s_load_dwordx2 s[48:49], s[0:1], 96
s_waitcnt lgkmcnt(0)
""")
    TLK[0] = 1
    tl(a, 0)
    srd(a, 12, 48, 49, WS_BYTES)
    a("s_lshl_b32 s26, s2, 14")
    attention(a, "at", "L_k2_end")
    a("L_k2_end:\ns_endpgm")


def k3(a):
    kernel_header(a, "k3_kernel")
    a("""
s_cmp_ge_u32 s2, 256
s_cbranch_scc1 L_k3_end
s_load_dwordx2 s[32:33], s[0:1], 32
s_load_dwordx2 s[34:35], s[0:1], 80
s_load_dwordx2 s[48:49], s[0:1], 96
s_load_dwordx4 s[56:59], s[0:1], 48
s_and_b32 s30, s2, 7
s_lshr_b32 s31, s2, 3
s_waitcnt lgkmcnt(0)
""")
    TLK[0] = 2
    tl(a, 0)
    a("""
s_cmp_ge_u32 s2, 128
s_cbranch_scc1 L_k3_s2
s_and_b32 s50, s30, 1
s_lshl_b32 s50, s50, 2
s_and_b32 s51, s31, 3
s_add_u32 s50, s50, s51
s_lshr_b32 s51, s30, 1
s_lshl_b32 s51, s51, 2
s_lshr_b32 s52, s31, 2
s_add_u32 s51, s51, s52
""")
    srd(a, 4, 32, 33, 1024 * 2048)
    srd(a, 8, 48, 49, 2048 * 2048, WS_O)
    srd(a, 12, 34, 35, 2048 * 4096)
    a("""
s_lshl_b32 s16, s50, 8
s_lshl_b32 s17, s51, 18
s_lshl_b32 s21, s51, 19
s_add_u32 s21, s21, s16
""")
    gemm(a, "g5", 2, 2, 2, 'N', 2048, 2048, 16, 4, 4096, touch=(lambda: (edge_issue(a), edge_loads(a)), 20))
    edge_finish(a)
    tl(a, 5, True)
    a("""
s_endpgm
L_k3_s2:
s_sub_u32 s31, s31, 16
s_mov_b32 s50, s56
s_mov_b32 s51, s57
s_mov_b32 s52, s58
s_mov_b32 s53, s59
""")
    stage2(a)
    tl(a, 5, True)
    a("""
s_endpgm
L_k3_fb:
s_load_dwordx2 s[40:41], s[0:1], 40
s_load_dwordx4 s[44:47], s[0:1], 64
s_load_dwordx2 s[90:91], s[0:1], 88
s_mov_b32 s36, s34
s_mov_b32 s37, s35
s_mov_b32 s32, s50
s_mov_b32 s33, s51
s_mov_b32 s34, s52
s_mov_b32 s35, s53
s_waitcnt vmcnt(0) lgkmcnt(0)
s_barrier
""")
    srd(a, 12, 48, 49, WS_BYTES)
    g3(a)
    a("""
s_waitcnt vmcnt(0) lgkmcnt(0)
s_barrier
s_cmp_lg_u32 s22, 0
s_cbranch_scc1 L_k3_gb2
buffer_wbl2 sc1
s_waitcnt vmcnt(0)
v_mov_b32 v3, 0
v_mov_b32 v4, 1
s_mov_b64 exec, 1
global_atomic_add v3, v4, s[90:91] sc1
s_waitcnt vmcnt(0)
L_k3_gb1:
s_sleep 8
global_load_dword v5, v3, s[90:91] sc1
s_waitcnt vmcnt(0)
v_readfirstlane_b32 s23, v5
s_nop 3
s_cmp_lt_u32 s23, 128
s_cbranch_scc1 L_k3_gb1
s_mov_b64 exec, -1
buffer_inv sc1
s_waitcnt vmcnt(0)
L_k3_gb2:
s_barrier
""")
    g4(a)
    a("L_k3_end:\ns_endpgm")


def V(n):
    return 256 if os.environ.get('TL') else n


def main():
    a = Asm()
    hdr = open("cdna_kernels/" + KN + ".s.ref").read().split("; Override launch")[0]
    launches = """; @launch kernel=k1_kernel grid=(256,1,1) block=(512,1,1) lds=131072
; @launch kernel=k2_kernel grid=(256,1,1) block=(512,1,1) lds=163840
; @launch kernel=k3_kernel grid=(256,1,1) block=(512,1,1) lds=147456
"""
    k1(a)
    k2(a)
    k3(a)
    out = hdr + launches + '.amdgcn_target "amdgcn-amd-amdhsa--gfx950"\n.text\n' + a.text()
    out += '.section .rodata,"a"\n.p2align 6\n' + kernel_desc("k1_kernel", V(168)) + ".p2align 6\n" + kernel_desc("k2_kernel", V(256)) + ".p2align 6\n" + kernel_desc("k3_kernel", V(248))
    open(sys.argv[1] if len(sys.argv) > 1 else "out.s", "w").write(out)


if __name__ == "__main__":
    main()
```

```python
import sys, os
PROF = os.environ.get('PROF'); NOMFMA = os.environ.get('NOMFMA'); NODMA = os.environ.get('NODMA')

KN = "concat_heads__grouped_kv_mqa__spectral_fnet__prompt"
WS_Q = 0
WS_KF = 4 << 20
WS_VF = (4 << 20) + (128 << 10)
WS_AB = 8 << 20
WS_O = 16 << 20
WS_XP = 26 << 20
WS_XM = 29 << 20
WS_AT = 32 << 20
WS_BT = 34 << 20
WS_FLAG = 36 << 20
WS_SY = 37 << 20
ATP = 2176
QSCALE = 1.4426950408889634 * 32 ** -0.5


def f32bits(x):
    import struct
    return struct.unpack("<I", struct.pack("<f", x))[0]


class Asm:
    def __init__(self):
        self.lines = []

    def __call__(self, s):
        for l in s.strip("\n").split("\n"):
            self.lines.append(l if l.endswith(":") else "    " + l.strip())

    def text(self):
        return "\n".join(self.lines) + "\n"


def srd(a, d, lo, hi, nbytes, off=0):
    if off:
        a(f"s_add_u32 s{d}, s{lo}, {off}\ns_addc_u32 s{d+1}, s{hi}, 0")
    else:
        a(f"s_mov_b32 s{d}, s{lo}\ns_mov_b32 s{d+1}, s{hi}")
    a(f"s_mov_b32 s{d+2}, {nbytes}\ns_mov_b32 s{d+3}, 0x00020000")


FR = [16, 32]
UID = [0]
PROFOFF = {'qg': 65536, 'g1': 0, 'g2': 0, 'g3': 0, 'g4': 65536, 'g5': 131072, 's1': 65536, 's2': 131072}
ACC = 64
DV = 48
RA = 128


def pipeline(a, tag, nsteps, NS, nu, dmas, reads, mfmas, nreads, kadv, switch=None, pre=None, setup=None, xtra=0, events=None, extras=None, prebar=None, novm=False, noprol=0):
    nd = len(dmas(0))

    def issue_all(stage):
        for g in dmas(stage % NS):
            for ins in g:
                a(ins)
        for ins in kadv:
            a(ins)

    for st in range(noprol, min(NS - 1, nsteps)):
        issue_all(st)
    if setup is not None:
        setup()
    if pre is not None:
        pre()
    if not novm:
        a(f"s_waitcnt vmcnt({(min(NS - 1, nsteps) - 1) * nd + xtra})")
    a("s_barrier")
    if TLK[0] != 1: stamp_begin(a, 72)
    tl(a, 6 if tag == 's1' else 1) if not (tag == 's2' and TLK[0] == 1) else None
    for ins in reads(0, 0, 0):
        a(ins)
    state = {"set": 0}

    def step(i, dyn=False):
        do_dma = (i + NS - 1) <= nsteps - 1
        groups = list(dmas((i + NS - 1) % NS)) if do_dma else []
        if do_dma and switch is not None:
            if dyn:
                a(switch[2])
            elif i + NS - 1 == switch[0]:
                a(switch[1])
        mcount = len(mfmas(0))
        half = mcount // 2
        nm = (nu - 1) * mcount + half
        slots = [[] for _ in range(nu * mcount)]
        for gi, g in enumerate(groups):
            slots[min(nm - 1, gi * nm // max(1, len(groups)))].extend(g)
        if do_dma:
            slots[nm - 1].extend(kadv)
        last_issued = min(i + NS - 1, nsteps - 1)
        mi = 0

        def emit_m(ms):
            nonlocal mi
            for m in ms:
                if not NOMFMA:
                    a(m)
                for ins in slots[mi]:
                    if NODMA and 'buffer_load' in ins:
                        continue
                    a(ins)
                mi += 1

        for ul in range(nu):
            cur = state["set"]
            nxt = 1 - cur
            ms = mfmas(cur)
            if ul + 1 < nu:
                rd = reads(i % NS, ul + 1, nxt)
                for ins in rd:
                    a(ins)
                a(f"s_waitcnt lgkmcnt({len(rd)})")
                emit_m(ms)
            else:
                a("s_waitcnt lgkmcnt(0)")
                emit_m(ms[:half])
                if i + 1 <= nsteps - 1:
                    ex = sum(n for i2, n in (extras or {}).items() if i + 2 - NS <= i2 < i)
                    if not novm: a(f"s_waitcnt vmcnt({(last_issued - (i + 1)) * nd + ex + (xtra if (i + 1 <= NS - 2 and not dyn) else 0)})")
                    if prebar and i in prebar:
                        prebar[i]()
                    a("s_barrier")
                    for ins in reads((i + 1) % NS, 0, nxt):
                        a(ins)
                emit_m(ms[half:])
                if events and i in events:
                    events[i]()
                if tag == 'qg' and i % 2 == 1 and os.environ.get('TLQ'):
                    tl(a, 8 + i // 2)
            state["set"] = nxt

    xtra_block = False
    steady_end = nsteps - NS + 1
    unroll = NS if (nu % 2 == 0 or NS % 2 == 0) else 2 * NS
    nloop = steady_end // unroll
    if nloop >= 2 and nsteps > int(os.environ.get('LOOPMIN', '16')) and not xtra_block:
        UID[0] += 1
        lab = f"L_{tag}_loop{UID[0]}"
        a(f"s_mov_b32 s19, 0")
        a(f"{lab}:")
        for i in range(unroll):
            step(i, dyn=True)
        a(f"s_add_u32 s19, s19, 1\ns_cmp_lt_u32 s19, {nloop}\ns_cbranch_scc1 {lab}")
        start = nloop * unroll
    else:
        start = 0
    for i in range(start, nsteps):
        step(i)
    if TLK[0] != 1: stamp_end(a, PROFOFF[tag], 72)
    tl(a, 7 if tag == 's1' else 2) if not (tag == 's2' and TLK[0] == 1) else None


def stamp_begin(a, base=66):
    if PROF:
        a(f"s_memtime s[{base}:{base+1}]\ns_memrealtime s[{base+4}:{base+5}]\ns_waitcnt lgkmcnt(0)")


def stamp_end(a, off, base=66):
    if PROF:
        a(f"""s_memtime s[{base+2}:{base+3}]
s_memrealtime s[{base+6}:{base+7}]
s_waitcnt lgkmcnt(0)
s_sub_u32 s{base+2}, s{base+2}, s{base}
s_sub_u32 s{base+6}, s{base+6}, s{base+4}
s_load_dwordx2 s[{base}:{base+1}], s[0:1], 96
s_waitcnt lgkmcnt(0)
s_add_u32 s{base}, s{base}, {24<<20}
s_addc_u32 s{base+1}, s{base+1}, 0
v_mov_b32 v6, s{base+2}
v_mov_b32 v7, s{base+6}
s_lshl_b32 s23, s2, 6
s_lshl_b32 s{base+2}, s22, 3
s_add_u32 s23, s23, s{base+2}
s_add_u32 s23, s23, {off}
v_mov_b32 v5, s23
global_store_dwordx2 v5, v[6:7], s[{base}:{base+1}]
""")


TLK = [0]


def tl(a, slot, drain=False):
    if not os.environ.get('TL'):
        return
    if drain:
        a("s_waitcnt vmcnt(0)")
    b = 66 if TLK[0] == 1 else 80
    va, vb = (6, 7) if TLK[0] == 1 else (254, 255)
    a(f"""s_memrealtime s[{b}:{b+1}]
s_load_dwordx2 s[{b+2}:{b+3}], s[0:1], 96
s_waitcnt lgkmcnt(0)
s_add_u32 s{b+2}, s{b+2}, {(24<<20) + (512<<10) + TLK[0]*65536 + slot*4}
s_addc_u32 s{b+3}, s{b+3}, 0
s_lshl_b32 s{b+4}, s2, 6
v_mov_b32 v{va}, s{b+4}
v_mov_b32 v{vb}, s{b}
v_cmp_eq_u32 vcc, 0, v0
s_and_saveexec_b64 s[{b+6}:{b+7}], vcc
global_store_dword v{va}, v{vb}, s[{b+2}:{b+3}]
s_mov_b64 exec, s[{b+6}:{b+7}]
""")


def wave_setup(a):
    a("""
v_lshrrev_b32 v1, 6, v0
s_nop 0
v_readfirstlane_b32 s22, v1
v_and_b32 v2, 63, v0
s_nop 2
s_lshl_b32 s18, s22, 10
""")


def t_dma_voff(a, vdst, n, pitch):
    a(f"""
v_lshrrev_b32 v3, 3, v2
v_lshl_add_u32 v3, v1, 3, v3
v_bfe_u32 v4, v3, 1, 3
v_and_b32 v5, 7, v2
v_xor_b32 v4, v4, v5
v_lshlrev_b32 v4, 4, v4
s_mov_b32 s23, {pitch}
v_mul_lo_u32 v3, v3, s23
v_add_u32 v{vdst}, v3, v4
""")
    for i in range(1, n):
        a(f"v_add_u32 v{vdst+i}, {i*64*pitch}, v{vdst}")


def n_dma_voff(a, vdst, n, pitch, MT):
    lpr = MT * 2 // 16
    rows = 64 // lpr
    sh = lpr.bit_length() - 1
    a(f"""
v_lshrrev_b32 v3, {sh}, v2
v_lshl_add_u32 v3, v1, {rows.bit_length()-1}, v3
v_and_b32 v5, {lpr-1}, v2
v_lshrrev_b32 v6, 2, v5
v_and_b32 v4, 3, v3
v_xor_b32 v6, v6, v4
v_and_b32 v5, 3, v5
v_lshlrev_b32 v5, 4, v5
v_lshl_add_u32 v5, v6, 6, v5
s_mov_b32 s23, {pitch}
v_mul_lo_u32 v3, v3, s23
v_add_u32 v{vdst}, v3, v5
""")
    for i in range(1, n):
        a(f"v_add_u32 v{vdst+i}, {i*8*rows*pitch}, v{vdst}")


def t_read_addr(a, vdst, nu, srow, skg2, base, NS, STAGE, stride):
    a(f"""
v_and_b32 v3, 31, v2
v_bfe_u32 v4, v3, 1, 3
v_lshrrev_b32 v5, 5, v2
v_xor_b32 v4, v4, v5
v_xor_b32 v4, s{skg2}, v4
v_add_u32 v3, s{srow}, v3
v_lshlrev_b32 v3, 7, v3
v_lshl_add_u32 v3, v4, 4, v3
""")
    for st in range(NS):
        for ul in range(nu):
            if ul == 0:
                a(f"v_add_u32 v{vdst+st*stride}, {base+st*STAGE}, v3")
            else:
                a(f"v_xor_b32 v{vdst+st*stride+ul}, {ul*32}, v{vdst+st*stride}")


def n_read_addr(a, vdst, sunit, skrow, LP, base, NS, STAGE, stride, nblk=2):
    a(f"""
v_bfe_u32 v3, v2, 2, 2
v_lshrrev_b32 v4, 5, v2
v_lshl_add_u32 v4, v4, 3, v3
s_mov_b32 s23, {LP}
v_mul_lo_u32 v4, v4, s23
v_add_u32 v4, s{skrow}, v4
v_bfe_u32 v5, v2, 4, 1
v_lshl_add_u32 v4, v5, 5, v4
v_and_b32 v5, 3, v2
v_lshl_add_u32 v4, v5, 3, v4
""")
    for b in range(nblk):
        a(f"""
s_add_u32 s23, s{sunit}, {b}
v_xor_b32 v5, s23, v3
v_lshl_add_u32 v5, v5, 6, v4
""")
        for st in range(NS):
            a(f"v_add_u32 v{vdst+st*stride+b}, {base+st*STAGE}, v5")


def gemm(a, tag, WM, WN, KS, ptype, pP, pR, nsteps, NS, opitch, scale=False, switch=None, touch=None):
    assert WM * WN * KS == 8
    MT, NT = 64 * WM, 64 * WN
    PB, RB = MT * 128, NT * 128
    STAGE = PB + RB
    nu = 4 // KS
    ncP, ncR = PB // 8192, RB // 8192
    wave_setup(a)
    lw = (WM * WN).bit_length() - 1
    lm = WM.bit_length() - 1
    a(f"""
s_lshr_b32 s24, s22, {lw}
s_and_b32 s25, s22, {WM-1}
s_lshr_b32 s26, s22, {lm}
s_and_b32 s26, s26, {WN-1}
""")
    if ptype == 'T':
        t_dma_voff(a, DV, ncP, pP)
    else:
        n_dma_voff(a, DV, ncP, pP, MT)
    t_dma_voff(a, DV + ncP, ncR, pR)
    nP = nu if ptype == 'T' else 2
    stride = nP + nu

    def setup():
        if touch:
            touch[0]() if callable(touch[0]) else a(touch[0])
        a(f"s_mul_i32 s27, s24, {nu*2}")
        if ptype == 'T':
            a(f"s_lshl_b32 s28, s25, 6")
            t_read_addr(a, RA, nu, 28, 27, 0, NS, STAGE, stride)
        else:
            a(f"s_lshl_b32 s28, s25, 1\ns_mul_i32 s29, s24, {nu*16*MT*2}")
            n_read_addr(a, RA, 28, 29, MT * 2, 0, NS, STAGE, stride)
        a(f"s_lshl_b32 s28, s26, 6")
        t_read_addr(a, RA + nP, nu, 28, 27, PB, NS, STAGE, stride)
        for i in range(64):
            a(f"v_mov_b32 v{ACC+i}, 0")

    def dmas(st):
        r = []
        for i in range(ncP):
            r.append([f"s_add_u32 m0, s18, {st*STAGE + i*8192}", "s_nop 0",
                      f"buffer_load_dwordx4 v{DV+i}, s[4:7], s16 offen lds"])
        for i in range(ncR):
            r.append([f"s_add_u32 m0, s18, {st*STAGE + PB + i*8192}", "s_nop 0",
                      f"buffer_load_dwordx4 v{DV+ncP+i}, s[8:11], s17 offen lds"])
        return r

    def reads(st, ul, fs):
        f = FR[fs]
        r = []
        if ptype == 'T':
            for b in range(2):
                r.append(f"ds_read_b128 v[{f+4*b}:{f+4*b+3}], v{RA+st*stride+ul} offset:{b*4096}")
        else:
            for b in range(2):
                for rr in range(2):
                    r.append(f"ds_read_b64_tr_b16 v[{f+4*b+2*rr}:{f+4*b+2*rr+1}], v{RA+st*stride+b} offset:{(16*ul+4*rr)*MT*2}")
        for b in range(2):
            r.append(f"ds_read_b128 v[{f+8+4*b}:{f+8+4*b+3}], v{RA+st*stride+nP+ul} offset:{b*4096}")
        return r

    def mfmas(fs):
        f = FR[fs]
        r = []
        for nb in range(2):
            for mb in range(2):
                c = ACC + 16 * (nb * 2 + mb)
                r.append(f"v_mfma_f32_32x32x16_bf16 v[{c}:{c+15}], v[{f+4*mb}:{f+4*mb+3}], v[{f+8+4*nb}:{f+8+4*nb+3}], v[{c}:{c+15}]")
        return r

    kadv = [f"s_add_u32 s16, s16, {128 if ptype == 'T' else 64*pP}", "s_add_u32 s17, s17, 128"]
    pipeline(a, tag, nsteps, NS, nu, dmas, reads, mfmas, None, kadv, switch, setup=setup, xtra=(touch[1] if touch else 0))

    a("s_nop 15\ns_nop 3")
    blocks = [(nb, mb) for nb in range(2) for mb in range(2)]
    if KS == 2:
        a("s_barrier")
        a(f"""
v_lshlrev_b32 v3, 4, v2
s_lshl_b32 s23, s22, 13
v_add_u32 v3, s23, v3
s_xor_b32 s23, s22, 4
s_lshl_b32 s23, s23, 13
v_lshlrev_b32 v4, 4, v2
v_add_u32 v4, s23, v4
s_cmp_eq_u32 s24, 0
s_cbranch_scc1 L_{tag}_x0
""")
        for j in range(8):
            a(f"ds_write_b128 v3, v[{ACC+4*j}:{ACC+4*j+3}] offset:{j*1024}")
        for j in range(32):
            a(f"v_mov_b32 v{ACC+j}, v{ACC+32+j}")
        a(f"s_branch L_{tag}_x1\nL_{tag}_x0:")
        for j in range(8):
            a(f"ds_write_b128 v3, v[{ACC+32+4*j}:{ACC+32+4*j+3}] offset:{j*1024}")
        a(f"L_{tag}_x1:\ns_waitcnt lgkmcnt(0)\ns_barrier")
        for j in range(8):
            a(f"ds_read_b128 v[{ACC+32+4*j}:{ACC+32+4*j+3}], v4 offset:{j*1024}")
        for j in range(8):
            a(f"s_waitcnt lgkmcnt({7-j})")
            for r in range(4):
                a(f"v_add_f32 v{ACC+4*j+r}, v{ACC+4*j+r}, v{ACC+32+4*j+r}")
        blocks = [(0, 0), (0, 1)]
    a(f"""
s_lshl_b32 s23, s26, 6
v_and_b32 v3, 31, v2
v_add_u32 v3, s23, v3
""")
    if KS == 2:
        a("s_lshl_b32 s23, s24, 5\nv_add_u32 v3, s23, v3")
    a(f"""
s_mov_b32 s23, {opitch}
v_mul_lo_u32 v3, v3, s23
v_lshrrev_b32 v4, 5, v2
v_lshl_add_u32 v3, v4, 4, v3
s_lshl_b32 s23, s25, 7
s_add_u32 s23, s23, s21
v_add_u32 v3, s23, v3
v_add_u32 v4, {32*opitch}, v3
""")
    for bi, (nb, mb) in enumerate(blocks):
        c = ACC + 16 * (nb * 2 + mb)
        t = 16 + 8 * (bi % 4)
        if scale:
            for r in range(16):
                a(f"v_mul_f32 v{c+r}, s20, v{c+r}")
        for r in range(8):
            a(f"v_cvt_pk_bf16_f32 v{t+r}, v{c+2*r}, v{c+2*r+1}")
        a("s_nop 1")
        for p in range(2):
            a(f"v_permlane32_swap_b32 v{t+4*p}, v{t+4*p+2}\nv_permlane32_swap_b32 v{t+4*p+1}, v{t+4*p+3}")
        for p in range(2):
            a(f"buffer_store_dwordx4 v[{t+4*p}:{t+4*p+3}], v{3+nb}, s[12:15], 0 offen offset:{mb*64+p*32}")


def gemm_kv(a, tag, NS=4):
    PB, RB = 8192, 16384
    STAGE = PB + RB
    nu = 4
    a(f"""
v_and_b32 v3, 3, v1
v_lshlrev_b32 v3, 10, v3
v_lshl_add_u32 v{DV}, v2, 4, v3
""")
    t_dma_voff(a, DV + 1, 2, 2048)
    stride = 1 + nu

    def dmas(st):
        r_ = [[f"s_add_u32 m0, s18, {st*STAGE}", "s_nop 0", f"buffer_load_dwordx4 v{DV}, s[4:7], s16 offen lds"]]
        for i in range(2):
            r_.append([f"s_add_u32 m0, s18, {st*STAGE + PB + i*8192}", "s_nop 0",
                       f"buffer_load_dwordx4 v{DV+1+i}, s[8:11], s17 offen lds"])
        return r_

    def setup():
        a(f"""
v_bfe_u32 v3, v2, 2, 2
v_lshrrev_b32 v4, 5, v2
v_lshl_add_u32 v4, v4, 3, v3
v_lshlrev_b32 v4, 6, v4
v_bfe_u32 v5, v2, 4, 1
v_lshl_add_u32 v4, v5, 5, v4
v_and_b32 v5, 3, v2
v_lshl_add_u32 v4, v5, 3, v4
v_lshrrev_b32 v5, 2, v1
v_lshl_add_u32 v4, v5, 12, v4
""")
        for st in range(NS):
            a(f"v_add_u32 v{RA+st*stride}, {st*STAGE}, v4")
        a("s_mov_b32 s27, 0\ns_and_b32 s28, s22, 3\ns_lshl_b32 s28, s28, 5")
        t_read_addr(a, RA + 1, nu, 28, 27, PB, NS, STAGE, stride)
        for i in range(16):
            a(f"v_mov_b32 v{ACC+i}, 0")

    def reads(st, ul, fs):
        f = FR[fs]
        r_ = []
        for rr in range(2):
            r_.append(f"ds_read_b64_tr_b16 v[{f+2*rr}:{f+2*rr+1}], v{RA+st*stride} offset:{(16*ul+4*rr)*64}")
        r_.append(f"ds_read_b128 v[{f+8}:{f+11}], v{RA+st*stride+1+ul}")
        return r_

    kadv = ["s_add_u32 s16, s16, 4096", "s_add_u32 s17, s17, 128"]
    a(f"s_cmp_ge_u32 s22, 4\ns_cbranch_scc1 L_{tag}_v")
    for kv in range(2):
        if kv:
            a(f"L_{tag}_v:")

        def mfmas(fs):
            f = FR[fs]
            if kv == 0:
                return ["s_nop 0", f"v_mfma_f32_32x32x16_bf16 v[{ACC}:{ACC+15}], v[{f}:{f+3}], v[{f+8}:{f+11}], v[{ACC}:{ACC+15}]"]
            return ["s_nop 0", f"v_mfma_f32_32x32x16_bf16 v[{ACC}:{ACC+15}], v[{f+8}:{f+11}], v[{f}:{f+3}], v[{ACC}:{ACC+15}]"]

        pipeline(a, tag, 16, NS, nu, dmas, reads, mfmas, None, kadv, setup=setup)
        a("s_nop 15\ns_nop 3")
        a(f"""
s_and_b32 s23, s22, 3
s_add_u32 s23, s21, s23
s_lshl_b32 s23, s23, 12
v_lshlrev_b32 v3, 4, v2
v_add_u32 v3, s23, v3
v_add_u32 v3, {WS_KF + 2048*kv}, v3
""")
        for r_ in range(8):
            a(f"v_cvt_pk_bf16_f32 v{16+r_}, v{ACC+2*r_}, v{ACC+2*r_+1}")
        for p in range(2):
            a(f"buffer_store_dwordx4 v[{16+4*p}:{16+4*p+3}], v3, s[12:15], 0 offen offset:{p*1024}")
        if kv == 0:
            tl(a, 5, True)
            a("s_endpgm")


def kernel_header(a, name):
    a.lines.append(f".globl {name}\n.p2align 8\n.type {name},@function\n{name}:")


def kernel_desc(name, vgpr, sgpr=100):
    return f""".amdhsa_kernel {name}
  .amdhsa_next_free_vgpr {vgpr}
  .amdhsa_next_free_sgpr {sgpr}
  .amdhsa_accum_offset {(vgpr+3)//4*4}
  .amdhsa_group_segment_fixed_size 0
  .amdhsa_kernarg_size 104
  .amdhsa_user_sgpr_count 2
  .amdhsa_user_sgpr_kernarg_segment_ptr 1
  .amdhsa_system_sgpr_workgroup_id_x 1
.end_amdhsa_kernel
"""


WS_BYTES = 40 << 20


def g4(a):
    a("""
s_and_b32 s50, s30, 1
s_lshl_b32 s50, s50, 2
s_and_b32 s51, s31, 3
s_add_u32 s50, s50, s51
s_lshr_b32 s51, s30, 1
s_lshl_b32 s51, s51, 2
s_lshr_b32 s52, s31, 2
s_add_u32 s51, s51, s52
""")
    if os.environ.get('SAMETILE') == '1':
        a("s_mov_b32 s50, 0\ns_mov_b32 s51, 0")
    if os.environ.get('SAMETILE') == '2':
        a("s_and_b32 s50, s30, 7\ns_mov_b32 s51, s30")
    if os.environ.get('SAMETILE') == '3':
        a("s_and_b32 s50, s2, 7\ns_lshr_b32 s51, s2, 3")
    srd(a, 4, 48, 49, 2048 * 4096, WS_AB)
    srd(a, 8, 32, 33, 2048 * 4096)
    srd(a, 12, 36, 37, 2048 * 4096)
    a("""
s_lshl_b32 s16, s50, 19
s_lshl_b32 s17, s51, 19
s_lshl_b32 s21, s50, 8
s_add_u32 s21, s21, s17
s_add_u32 s21, s21, 2048
s_add_u32 s53, s17, 4096
""")
    sw = f"""
s_mov_b32 s8, s34
s_mov_b32 s9, s35
s_sub_u32 s17, s17, 4096
s_add_u32 s16, s16, {1024*4096 - 4096}
s_mov_b32 s53, -1
"""
    uid = [0]

    class Dyn(str):
        pass
    dyn = f"""
s_cmp_eq_u32 s17, s53
s_cselect_b32 s8, s34, s8
s_cselect_b32 s9, s35, s9
s_cselect_b32 s23, 4096, 0
s_cselect_b32 s54, {1024*4096 - 4096}, 0
s_cselect_b32 s53, -1, s53
s_sub_u32 s17, s17, s23
s_add_u32 s16, s16, s54
"""
    gemm(a, "g4", 2, 2, 2, 'T', 4096, 4096, 64, 4, 4096, switch=(32, sw, dyn))


TPS = 8
ASTAGE = TPS * 4096
ANS = 3
NSTG = 64 // TPS
Q0, KF_, VF_, P_, ONES, LA, LB, NEGM, SX, SY, OA, OB = 16, 32, 40, 48, 56, 60, 64, 72, 88, 104, 120, 136
ST, KT, VT, PT = 152, 168, 176, 184
THR1 = 2.0 ** int(os.environ.get('THR1', '60'))
THR2 = 2.0 ** 120
MARGIN = int(os.environ.get('MARGIN', '60'))


def r(b, n):
    return f"v[{b}:{b+n-1}]"


def mf32(d, a_, b_, c):
    return f"v_mfma_f32_32x32x16_bf16 {r(d,16)}, {r(a_,4)}, {r(b_,4)}, {r(c,16) if isinstance(c,int) else c}"


def mf16(d, a_, b_, c):
    return f"v_mfma_f32_16x16x32_bf16 {r(d,4)}, {r(a_,4)}, {r(b_,4)}, {r(c,4)}"


def attn_dma(a, i):
    a(f"s_add_u32 m0, s17, {i*8192}\ns_nop 0\nbuffer_load_dwordx4 v{12+i}, s[12:15], s16 offen lds")


def attn_dma_adv(a):
    a(f"""
s_add_u32 s16, s16, {ASTAGE}
s_add_u32 s17, s17, {ASTAGE}
s_sub_u32 s30, s17, {ANS*ASTAGE}
s_cmp_ge_u32 s17, {ANS*ASTAGE}
s_cselect_b32 s17, s30, s17
""")


def cap(fn, *args):
    t = Asm()
    fn(t, *args)
    return [l.strip() for l in t.lines]


def attn_tile(a, g, tt, X, Y, Oc, Od, lc, ld, H, nx):
    cur, nxt = (g % ANS) * ASTAGE, ((g + 1) % ANS) * ASTAGE

    def rd(dst, t2, part):
        if g == NSTG - 1 and t2 >= TPS:
            t2 = TPS - 1
        base = cur if t2 < TPS else nxt
        off = base + (t2 % TPS) * 4096 + part * 1024
        a(f"ds_read_b128 {r(dst,4)}, v{10 + off // 65536} offset:{off % 65536}")
    last = (tt == TPS - 1)
    E = lambda i: a(f"v_exp_f32 v{X+i}, v{X+i}")
    C = lambda i: a(f"v_cvt_pk_bf16_f32 v{P_+i}, v{X+2*i}, v{X+2*i+1}")

    def hook(k):
        for ins in H.get(k, []):
            a(ins)
    hook('pre')
    a(f"s_waitcnt lgkmcnt({2 + nx})")
    a(mf32(Y, KF_, Q0, NEGM))
    for i in range(4): E(i)
    a("s_waitcnt lgkmcnt(0)")
    hook(0)
    if tt > 0:
        a(mf32(Od, VF_ + 4, P_ + 4, Od))
    if last:
        rd(VF_ + 4, tt, 3)
    for i in range(4, 6): E(i)
    hook('m0')
    for i in range(6, 8): E(i)
    hook(1)
    if tt > 0:
        a(mf16(ld, ONES, P_ + 4, ld))
    for i in range(4): C(i)
    a(mf32(Y, KF_ + 4, Q0 + 4, Y))
    hook(2)
    rd(KF_, tt + 2, 0)
    rd(KF_ + 4, tt + 2, 1)
    for i in range(8, 10): E(i)
    hook('m1')
    for i in range(10, 12): E(i)
    a(mf32(Od, VF_, P_, Oc))
    if not last:
        rd(VF_ + 4, tt, 3)
    rd(VF_, tt + 1, 2)
    for i in range(12, 14): E(i)
    hook('m2')
    for i in range(14, 16): E(i)
    hook(3)
    a(mf16(ld, ONES, P_, lc))
    hook('end')
    for i in range(4, 8): C(i)
    hook('m3')
    if last:
        assert not H.get('end')
        a("s_waitcnt lgkmcnt(3)\ns_nop 0")
        a(mf32(Od, VF_ + 4, P_ + 4, Od))
        a(mf16(ld, ONES, P_ + 4, ld))


def attn_slow(a, tag, Oold, Onew, lold, lnew, Snext, sbase):
    a(f"L_{tag}_slow:")
    a("s_nop 15")
    a(f"v_cmp_nlt_f32 vcc, v{lnew}, s29\ns_nop 4\ns_cbranch_vccnz L_{tag}_heavy")
    a(f"""
v_frexp_exp_i32_f32 v3, v{lnew}
v_add_u32 v3, {MARGIN}, v3
v_cvt_f32_i32 v4, v3
v_sub_u32 v3, 0, v3
""")
    for i in range(16): a(f"v_ldexp_f32 v{Onew+i}, v{Onew+i}, v3")
    for i in range(4): a(f"v_ldexp_f32 v{lnew+i}, v{lnew+i}, v3")
    for i in range(16): a(f"v_sub_f32 v{NEGM+i}, v{NEGM+i}, v4")
    for i in range(16): a(f"v_sub_f32 v{Snext+i}, v{Snext+i}, v4")
    a(f"s_nop 1\ns_branch L_{tag}_ret")
    a(f"L_{tag}_heavy:")
    a(f"s_waitcnt lgkmcnt(0)\nv_log_f32 v5, v{lold}\nv_add_u32 v6, {sbase}, v10\ns_mov_b32 s30, 0")
    a(f"L_{tag}_h1:")
    a(f"ds_read_b128 {r(KT,4)}, v6\nds_read_b128 {r(KT+4,4)}, v6 offset:1024\ns_waitcnt lgkmcnt(0)")
    a(mf32(ST, KT, Q0, NEGM)); a(mf32(ST, KT + 4, Q0 + 4, ST))
    a("s_nop 15")
    for i in range(8): a(f"v_max3_f32 v5, v{ST+2*i}, v{ST+2*i+1}, v5")
    a(f"v_add_u32 v6, 4096, v6\ns_add_u32 s30, s30, 1\ns_cmp_lt_u32 s30, {TPS}\ns_cbranch_scc1 L_{tag}_h1")
    a(f"""
v_mov_b32 v6, v5
s_nop 1
v_permlane32_swap_b32 v5, v6
s_nop 1
v_max_f32 v5, v5, v6
v_ceil_f32 v4, v5
v_add_f32 v4, {f32bits(float(MARGIN))}, v4
v_cvt_i32_f32 v3, v4
v_sub_u32 v3, 0, v3
""")
    for i in range(16): a(f"v_ldexp_f32 v{Onew+i}, v{Oold+i}, v3")
    for i in range(4): a(f"v_ldexp_f32 v{lnew+i}, v{lold+i}, v3")
    for i in range(16): a(f"v_sub_f32 v{NEGM+i}, v{NEGM+i}, v4")
    for i in range(16): a(f"v_sub_f32 v{Snext+i}, v{Snext+i}, v4")
    a(f"v_add_u32 v6, {sbase}, v10\ns_mov_b32 s30, 0")
    a(f"L_{tag}_h2:")
    a(f"ds_read_b128 {r(KT,4)}, v6\nds_read_b128 {r(KT+4,4)}, v6 offset:1024\nds_read_b128 {r(VT,4)}, v6 offset:2048\nds_read_b128 {r(VT+4,4)}, v6 offset:3072\ns_waitcnt lgkmcnt(0)")
    a(mf32(ST, KT, Q0, NEGM)); a(mf32(ST, KT + 4, Q0 + 4, ST))
    a("s_nop 15")
    for i in range(16): a(f"v_exp_f32 v{ST+i}, v{ST+i}")
    a("s_nop 0")
    for i in range(8): a(f"v_cvt_pk_bf16_f32 v{PT+i}, v{ST+2*i}, v{ST+2*i+1}")
    a("s_nop 1")
    a(mf32(Onew, VT, PT, Onew)); a(mf32(Onew, VT + 4, PT + 4, Onew))
    a(mf16(lnew, ONES, PT, lnew)); a(mf16(lnew, ONES, PT + 4, lnew))
    a(f"v_add_u32 v6, 4096, v6\ns_add_u32 s30, s30, 1\ns_cmp_lt_u32 s30, {TPS}\ns_cbranch_scc1 L_{tag}_h2")
    a(f"s_nop 7\ns_branch L_{tag}_ret")


def poll_issue(a, vreg, kv):
    if kv:
        a(f"v_and_b32 v3, 31, v2\nv_lshlrev_b32 v3, 2, v3\nbuffer_load_dword v{vreg}, v3, s[12:15], s65 offen sc1")
    else:
        a(f"v_mov_b32 v3, 0\nbuffer_load_dword v{vreg}, v3, s[12:15], s65 offen offset:128 sc1")


def poll(a, tag, vreg, kv, pre=True):
    a(f"s_mov_b32 s19, 0\ns_mov_b32 s31, 0x01010101")
    if pre:
        a(f"s_branch L_{tag}_chk")
    a(f"L_{tag}_spin:\ns_sleep 1")
    poll_issue(a, vreg, kv)
    a(f"""
s_add_u32 s19, s19, 1
s_cmp_gt_u32 s19, 0x100000
s_cbranch_scc1 L_{tag}_ok
s_waitcnt vmcnt(0)
L_{tag}_chk:
v_cmp_ne_u32 vcc, s31, v{vreg}
s_nop 4
s_cbranch_vccnz L_{tag}_spin
L_{tag}_ok:
""")


N0 = int(os.environ.get('N0', '12'))
TS = eval(os.environ.get('TS', '[-1,-1,0,0,2,2, 10,10,11,11,13,13,99,99]'))


def touch_j(a, j):
    if j < 6:
        sr, vo, so, inc = ((44, 252, 100, 512), (36, 253, 101, 256 * 2048))[j % 2]
    else:
        sr, vo, so, inc = ((8, 252, 54, 512), (80, 254, 55, 512))[j % 2]
    a(f"buffer_load_dword v249, v{vo}, s[{sr}:{sr+3}], s{so} offen\ns_add_u32 s{so}, s{so}, {inc}")


def q_gemm(a, setup_hook, role):
    NS = int(os.environ.get('QNS', '4'))
    STAGE = 28672
    F = [88, 104]
    F2 = [32, 40]
    D_, R_ = 152, 156
    AC, AC2 = OA, NEGM
    SV = 248
    NB = [0]
    stride = 5

    def dmas(st):
        if role == 'F':
            return []
        return [[f"s_add_u32 m0, s20, {st*STAGE + i*1024}", "s_nop 0", f"buffer_load_dwordx4 v{D_+i}, s[96:99], s16 offen lds"] for i in range(4)]

    def setup():
        setup_hook(role)
        a(f"""
v_bfe_u32 v3, v2, 2, 2
v_lshrrev_b32 v4, 5, v2
v_lshl_add_u32 v4, v4, 3, v3
v_bfe_u32 v5, v2, 4, 1
v_and_b32 v6, 3, v2
v_lshlrev_b32 v6, 3, v6
v_lshl_add_u32 v6, v5, 5, v6
v_lshl_add_u32 v7, v4, 6, v6
v_lshl_add_u32 v4, v4, 7, v6
v_lshrrev_b32 v3, 1, v3
v_lshrrev_b32 v5, 2, v1
v_xor_b32 v3, v3, v5
v_lshl_add_u32 v4, v3, 6, v4
v_add_u32 v{R_+25}, 24576, v7
v_add_u32 v{R_+26}, {24576+2*STAGE}, v7
v_add_u32 v{R_+27}, {24576+4*STAGE}, v7
""")
        for st in range(NS):
            a(f"v_add_u32 v{R_+st*stride}, {st*STAGE}, v4")
        a("s_mov_b32 s27, 0\ns_and_b32 s25, s22, 3\ns_lshl_b32 s25, s25, 5")
        t_read_addr(a, R_ + 1, 4, 25, 27, 8192, NS, STAGE, stride)
        for i in range(16):
            a(f"v_mov_b32 v{AC+i}, 0")
        if role in ('PK', 'PV'):
            for i in range(16):
                a(f"v_mov_b32 v{AC2+i}, 0")

    def reads(st, ul, fs):
        f = F[fs]
        r_ = []
        for q in range(2):
            u = 2 * ul + q
            for rr in range(2):
                r_.append(f"ds_read_b64_tr_b16 v[{f+4*q+2*rr}:{f+4*q+2*rr+1}], v{R_+st*stride} offset:{(16*u+4*rr)*128}")
            r_.append(f"ds_read_b128 v[{f+8+4*q}:{f+11+4*q}], v{R_+st*stride+1+u}")
            if role in ('PK', 'PV'):
                g = F2[fs]
                for rr in range(2):
                    r_.append(f"ds_read_b64_tr_b16 v[{g+4*q+2*rr}:{g+4*q+2*rr+1}], v{R_+25+st//2} offset:{(st%2)*STAGE+(16*u+4*rr)*64}")
        return r_

    def mfmas(fs):
        f, g = F[fs], F2[fs]
        r_ = []
        for q in range(2):
            r_.append(f"v_mfma_f32_32x32x16_bf16 v[{AC}:{AC+15}], v[{f+4*q}:{f+4*q+3}], v[{f+8+4*q}:{f+11+4*q}], v[{AC}:{AC+15}]")
            if role == 'PK':
                r_.append(f"v_mfma_f32_32x32x16_bf16 v[{AC2}:{AC2+15}], v[{g+4*q}:{g+4*q+3}], v[{f+8+4*q}:{f+11+4*q}], v[{AC2}:{AC2+15}]")
            if role == 'PV':
                r_.append(f"v_mfma_f32_32x32x16_bf16 v[{AC2}:{AC2+15}], v[{f+8+4*q}:{f+11+4*q}], v[{g+4*q}:{g+4*q+3}], v[{AC2}:{AC2+15}]")
        return r_

    kadv = ["s_add_u32 s16, s16, s17"]

    def ev_sig():
        a(f"""
s_cmp_lg_u32 s64, 0
s_cbranch_scc1 L_qsig
v_mov_b32 v3, 0
v_mov_b32 v4, 1
s_waitcnt vmcnt({1 + sum(1 for t in TS if t < 1)})
s_mov_b64 exec, 1
global_atomic_add v{SV}, v3, v4, s[90:91] sc0 sc1
s_mov_b64 exec, -1
L_qsig:
""")

    def ev_touch(js, first):
        a(f"s_cmp_lg_u32 s22, 7\ns_cbranch_scc1 L_qt{js[0]}")
        for j in js:
            touch_j(a, j)
        a(f"L_qt{js[0]}:")

    def ev_bcast():
        a(f"""
s_cmp_lg_u32 s64, 0
s_cbranch_scc1 L_qbc
s_waitcnt vmcnt({NB[0]})
v_readfirstlane_b32 s23, v{SV}
v_lshlrev_b32 v3, 8, v2
v_mov_b32 v4, 0x01010101
s_nop 1
s_cmp_lg_u32 s23, 63
s_cbranch_scc1 L_qbc
s_mov_b32 s23, {WS_SY}
buffer_store_dword v4, v3, s[12:15], s23 offen offset:128 sc1
L_qbc:
""")
    ev, ex = {}, {}
    if role == 'F':
        BCS = int(os.environ.get('BCS', '5'))
        NB[0] = sum(1 for t in TS if 1 <= t < BCS)
        acts = {1: [ev_sig], BCS: [ev_bcast]}
        st_ = sorted(set(t for t in TS if 0 <= t < 16))
        for t in st_:
            js = [j for j in range(14) if TS[j] == t]
            acts.setdefault(t, []).append(lambda js=js, t=t: ev_touch(js, t == st_[0]))
        ev = {t: (lambda l=l: [f() for f in l]) for t, l in acts.items()}
    if role in ('PK', 'PV'):
        ev, ex = {13: lambda: poll_issue(a, D_, False)}, {13: 1}
    p0 = s1_gemm(a, 'prol0')
    E0 = int(os.environ.get('E0', '12'))
    if role in ('D', 'F'):
        for k_ in range(2):
            ev[E0 + k_] = (lambda k_=k_, f0=ev.get(E0 + k_): ((f0() if f0 else None), [a(l) for l in p0[k_]]))
            ex[E0 + k_] = 3
    pipeline(a, "qg", 16, NS, 2, dmas, reads, mfmas, None, kadv, setup=setup, events=ev, extras=ex, novm=(role == 'F'))
    a(f"s_mov_b32 s23, {f32bits(QSCALE)}\ns_nop 11")
    if role in ('PK', 'PV'):
        for i in range(8):
            a(f"v_cvt_pk_bf16_f32 v{F[0]+i}, v{AC2+2*i}, v{AC2+2*i+1}")
        a(f"v_add_u32 v3, s24, v9")
        for p in range(2):
            a(f"buffer_store_dwordx4 v[{F[0]+4*p}:{F[0]+4*p+3}], v3, s[12:15], 0 offen offset:{p*1024 + (2048 if role == 'PV' else 0)} sc1")
    for i in range(16):
        a(f"v_mul_f32 v{AC+i}, s23, v{AC+i}")
    for i in range(8):
        a(f"v_cvt_pk_bf16_f32 v{Q0+i}, v{AC+2*i}, v{AC+2*i+1}")
    if role in ('PK', 'PV'):
        a("s_waitcnt vmcnt(2)")
        poll(a, f"pp{role}", D_, False)
        a("s_mov_b32 s75, 1")
        for k_ in range(2):
            for l in p0[k_]: a(l)


def side_jobs(a, role):
    T = 88
    a(f"""
v_lshlrev_b32 v6, 5, v2
s_cmp_ge_u32 s22, 4
s_cbranch_scc1 L_sj_emv{role}
s_lshl_b32 s64, s2, 2
s_add_u32 s64, s64, s22
s_sub_u32 s31, 2048, s64
s_lshl_b32 s23, s64, 11
s_lshl_b32 s31, s31, 11
s_mov_b32 s19, {512*2048}
buffer_load_dwordx4 v[{T}:{T+3}], v6, s[80:83], s23 offen
buffer_load_dwordx4 v[{T+4}:{T+7}], v6, s[80:83], s23 offen offset:16
buffer_load_dwordx4 v[{T+8}:{T+11}], v6, s[80:83], s31 offen
buffer_load_dwordx4 v[{T+12}:{T+15}], v6, s[80:83], s31 offen offset:16
buffer_load_dwordx4 v[{T+16}:{T+19}], v6, s[84:87], s19 offen
buffer_load_dwordx4 v[{T+20}:{T+23}], v6, s[84:87], s19 offen offset:16
s_branch L_sj_1{role}
L_sj_emv{role}:
s_lshl_b32 s64, s2, 1
s_add_u32 s64, s64, s22
s_sub_u32 s64, s64, 4
s_cmp_ge_u32 s22, 6
s_cselect_b32 s64, 0x10000, s64
s_lshl_b32 s31, s2, 3
s_add_u32 s31, s31, s22
s_cmp_eq_u32 s31, 6
s_cselect_b32 s64, 512, s64
s_lshl_b32 s23, s64, 11
s_mov_b32 s19, {1024*2048}
buffer_load_dwordx4 v[{T}:{T+3}], v6, s[84:87], s23 offen
buffer_load_dwordx4 v[{T+4}:{T+7}], v6, s[84:87], s23 offen offset:16
buffer_load_dwordx4 v[{T+16}:{T+19}], v6, s[80:83], s19 offen
buffer_load_dwordx4 v[{T+20}:{T+23}], v6, s[80:83], s19 offen offset:16
L_sj_1{role}:
""")


def side_jobs2(a, role):
    T = 88
    a(f"""
v_lshlrev_b32 v6, 5, v2
v_mov_b32 v7, 0
s_cmp_ge_u32 s22, 4
s_cbranch_scc1 L_sj_emv2{role}
""")
    for j in range(16):
        a(f"v_dot2c_f32_bf16 v7, v{T+j}, v{T+16+j%8}")
    a("s_nop 3")
    wave_sum(a, 7, 3)
    a(f"""
v_cvt_pk_bf16_f32 v7, v7, v7
s_lshl_b32 s23, s64, 1
s_add_u32 s23, s23, {WS_AT + 512*ATP}
v_mov_b32 v4, 0
s_mov_b64 exec, 1
buffer_store_short v7, v4, s[12:15], s23 offen
s_mov_b64 exec, -1
s_branch L_sj_done{role}
L_sj_emv2{role}:
s_cmp_gt_u32 s64, 512
s_cbranch_scc1 L_sj_done{role}
""")
    for j in range(8):
        a(f"v_dot2c_f32_bf16 v7, v{T+j}, v{T+16+j}")
    a("s_nop 3")
    wave_sum(a, 7, 3)
    a(f"""
v_mov_b32 v5, 0
v_cvt_pk_bf16_f32 v7, v7, v5
v_cmp_eq_u32 vcc, 0, v2
s_mul_i32 s23, s64, {ATP}
s_add_u32 s31, s23, {WS_BT + 2048}
s_add_u32 s23, s23, {WS_AT + 2048}
v_cndmask_b32 v7, v5, v7, vcc
v_lshlrev_b32 v4, 2, v2
s_mov_b32 exec_hi, 0
buffer_store_dword v7, v4, s[12:15], s23 offen
buffer_store_dword v5, v4, s[12:15], s31 offen
s_mov_b64 exec, -1
L_sj_done{role}:
""")


def kv_dma(a, g, i):
    a(f"s_add_u32 m0, s18, {(g % ANS)*ASTAGE + i*8192}\ns_mov_b32 s19, {g*ASTAGE}\nbuffer_load_dwordx4 v{12+i}, s[12:15], s19 offen lds")


def attention(a, tag, endlabel):
    def hook(role):
        if role == 'F':
            a(f"""
v_mov_b32 v248, 0
s_lshr_b32 s23, s2, 3
s_lshl_b32 s30, s23, 15
s_and_b32 s31, s2, 3
s_lshl_b32 s31, s31, 20
s_add_u32 s30, s30, s31
s_add_u32 s30, s30, 512
v_lshlrev_b32 v251, 7, v2
v_lshrrev_b32 v4, 2, v2
v_and_b32 v5, 3, v2
v_lshlrev_b32 v5, 7, v5
v_lshl_add_u32 v252, v4, 11, v5
v_lshrrev_b32 v4, 3, v2
v_and_b32 v5, 7, v2
v_lshlrev_b32 v5, 7, v5
v_lshl_add_u32 v253, v4, 11, v5
s_lshl_b32 s31, s23, 14
s_and_b32 s23, s2, 4
s_lshl_b32 s23, s23, 8
s_add_u32 s31, s31, s23
s_add_u32 s31, s31, {256*2048}
s_mov_b32 s100, s30
s_mov_b32 s101, s31
s_cmp_lg_u32 s22, 7
s_cbranch_scc1 L_not7
s_cmp_lg_u32 s64, 0
s_cbranch_scc1 L_noclr
v_lshlrev_b32 v3, 2, v2
buffer_store_dword v248, v3, s[12:15], s65 offen sc1
L_noclr:
s_lshr_b32 s23, s2, 3
s_and_b32 s23, s23, 7
s_lshl_b32 s23, s23, 13
buffer_load_dword v249, v251, s[96:99], s23 offen
""")
            for j in range(14):
                if TS[j] < 0:
                    touch_j(a, j)
            a(f"""
L_not7:
""")
        a(f"""
v_lshlrev_b32 v9, 4, v2
v_lshl_add_u32 v12, v1, 10, v9
v_add_u32 v12, {WS_KF}, v12
v_add_u32 v13, 8192, v12
v_add_u32 v14, 16384, v12
v_add_u32 v15, 24576, v12
""")
        stage1_setup(a)
        a(f"""
s_lshr_b32 s23, s2, 3
s_and_b32 s54, s23, 15
s_lshl_b32 s54, s54, 15
s_and_b32 s55, s2, 4
s_lshl_b32 s55, s55, 17
s_add_u32 s54, s54, s55
s_and_b32 s55, s2, 3
s_lshl_b32 s55, s55, 19
s_lshl_b32 s23, s23, 14
s_add_u32 s55, s55, s23
s_sub_u32 s56, {(2048*2048 + 2048) - 32768}, s55
v_lshrrev_b32 v4, 2, v2
v_and_b32 v5, 3, v2
v_lshlrev_b32 v5, 7, v5
v_lshl_add_u32 v252, v4, 11, v5
v_mov_b32 v4, s55
v_mov_b32 v5, s56
v_cmp_gt_u32 vcc, 32, v2
s_mov_b32 s55, 0
v_cndmask_b32 v4, v5, v4, vcc
v_add_u32 v254, v4, v252
""")
        a(f"""
v_and_b32 v5, 31, v2
v_and_b32 v4, 3, v1
v_lshl_add_u32 v4, v4, 5, v5
v_lshrrev_b32 v5, 5, v2
v_lshlrev_b32 v5, 4, v5
v_lshl_add_u32 v8, v4, 11, v5
v_lshrrev_b32 v5, 2, v1
v_lshl_add_u32 v8, v5, 6, v8
s_mov_b32 s28, {f32bits(THR1)}
s_mov_b32 s29, {f32bits(THR2)}
v_mov_b32 v10, v9
v_add_u32 v11, 65536, v9
""")
        verify_setup(a)
        a(f"""
v_lshrrev_b32 v4, 2, v2
v_lshrrev_b32 v5, 4, v2
v_xor_b32 v4, v4, v5
v_and_b32 v4, 1, v4
v_cmp_eq_u32 vcc, 0, v4
v_mov_b32 v5, 0x3f803f80
s_nop 1
v_cndmask_b32 v{ONES}, 0, v5, vcc
v_mov_b32 v{ONES+1}, v{ONES}
v_mov_b32 v{ONES+2}, v{ONES}
v_mov_b32 v{ONES+3}, v{ONES}
""")
        for i in range(16): a(f"v_mov_b32 v{OB+i}, 0")
        for i in range(4): a(f"v_mov_b32 v{LB+i}, 0")
        a(f"v_mov_b32 v{VMAX}, 0")
    a(f"""
s_cmp_ge_u32 s55, 8
s_cselect_b32 s23, 6, 7
s_cmp_ge_u32 s22, s23
s_cbranch_scc1 L_qg_F
s_cmp_ge_u32 s55, 8
s_cbranch_scc1 L_qg_D
s_and_b32 s23, s55, 3
s_cmp_lg_u32 s22, s23
s_cbranch_scc1 L_qg_D
s_cmp_ge_u32 s55, 4
s_cbranch_scc1 L_qg_PV
""")
    for role in ('PK', 'PV', 'F', 'D'):
        a(f"L_qg_{role}:")
        q_gemm(a, hook, role)
        if role != 'D':
            a("s_branch L_qg_done")
    a("L_qg_done:")
    tl(a, 3)
    a("s_barrier")
    s1_gemm(a, 0)
    a("s_waitcnt vmcnt(4)\ns_barrier")
    a(f"ds_read_b128 {r(KF_,4)}, v10\nds_read_b128 {r(KF_+4,4)}, v10 offset:1024")
    a("s_waitcnt lgkmcnt(0)")
    a(mf32(SX, KF_, Q0, "0")); a(mf32(SX, KF_ + 4, Q0 + 4, SX))
    a(f"ds_read_b128 {r(KF_,4)}, v10 offset:4096\nds_read_b128 {r(KF_+4,4)}, v10 offset:{4096+1024}")
    a(f"ds_read_b128 {r(VF_+4,4)}, v10 offset:3072\nds_read_b128 {r(VF_,4)}, v10 offset:2048")
    a("s_nop 11")
    a(f"v_max3_f32 v5, v{SX}, v{SX+1}, v{SX+2}")
    for i in range(6): a(f"v_max3_f32 v5, v{SX+3+2*i}, v{SX+4+2*i}, v5")
    a(f"""
v_max_f32 v5, v{SX+15}, v5
v_mov_b32 v6, v5
s_nop 1
v_permlane32_swap_b32 v5, v6
s_nop 1
v_max_f32 v5, v5, v6
v_add_f32 v5, {f32bits(float(MARGIN))}, v5
""")
    for i in range(16): a(f"v_sub_f32 v{NEGM+i}, 0, v5")
    for i in range(16): a(f"v_sub_f32 v{SX+i}, v{SX+i}, v5")
    tl(a, 4)
    stamp_begin(a)

    HK = {}

    def add(g, tt, slot, lines):
        HK.setdefault((g, tt), {}).setdefault(slot, []).extend(lines)
    BT_ = TPS - 2
    for g in range(NSTG):
        add(g, BT_, 'pre', ["s_waitcnt vmcnt(0)" + (" lgkmcnt(0)" if g == NSTG - 1 else ""), "s_barrier"])
        if g + 2 < NSTG:
            for i in range(4): add(g, BT_, i, cap(kv_dma, g + 2, i))
    for st, ls in enumerate(s1_gemm(a, 'prol')):
        add(7, 1 + st, 0, ls)
    ng = (16 - N0 + 3) // 4
    add(int(os.environ.get("TG", "5")), 7, 3, f"""s_and_b32 s23, s22, {ng-1 if ng in (1, 2, 4) else 3}
s_lshl_b32 s23, s23, 9
s_add_u32 s23, s23, {(4-ng)*512}
s_and_b32 s30, s54, 0xfffff000
s_add_u32 s30, s30, s23
buffer_load_dword v249, v252, s[8:11], s30 offen
buffer_load_dword v249, v254, s[80:83], s23 offen""".split("\n"))
    if os.environ.get('NOVER'):
        add(int(os.environ.get("CG", "4")), 7, 2, f"""v_lshlrev_b32 v3, 7, v2
v_mov_b32 v4, 0x7ffffff0
v_cmp_gt_u32 vcc, 17, v2
s_nop 1
v_cndmask_b32 v3, v4, v3, vcc
buffer_load_dword v{VB}, v3, s[76:79], s61 offen""".split("\n"))
    def vchk(g, loads, AM):
        for i, ld_ in enumerate(loads):
            if os.environ.get('NOVER'): continue
            add(*((0, 0) if g == 0 else (g - 1, 7)), i, ld_)
            add(g, BT_, i, [f"v_mfma_f32_16x16x32_bf16 {r(VB+12+4*i,4)}, {r(AM,4)}, {r(VB+4*i,4)}, 0"])
            add(g, TPS - 1, i, [f"v_max3_f32 v{VMAX}, |v{VB+12+4*i}|, |v{VB+13+4*i}|, v{VMAX}", f"v_max3_f32 v{VMAX}, |v{VB+14+4*i}|, |v{VB+15+4*i}|, v{VMAX}"])
    ldn = lambda i, off: [f"buffer_load_dwordx4 v[{VB+4*i}:{VB+4*i+3}], v{VAD}, s[76:79], 0 offen offset:{off}"]
    vchk(0, [ldn(0, 0)], AMN)
    vchk(1, [ldn(0, 512), ldn(1, 1024), ldn(2, 1536)], AMN)
    vchk(2, [ldn(0, 2048), ldn(1, 2560)], AMN)
    vchk(3, [ldn(0, 3072), ldn(1, 3584)], AMN)
    add(3, 7, 'pre', cap(verify_w_switch))
    vchk(4, [[f"buffer_load_dwordx4 v[{VB+4*i}:{VB+4*i+3}], v{VAD}, s[84:87], s63 offen offset:{i*512}"] for i in range(2)]
         + [[f"buffer_load_dwordx4 v[{VB+8}:{VB+11}], v7, s[76:79], 0 offen"]], AMN)
    add(4, 7, 'pre', cap(verify_r_switch))
    ldr = lambda i: [f"buffer_load_dwordx4 v[{VB+4*i}:{VB+4*i+3}], v{VRV}, s[76:79], 0 offen", f"v_add_u32 v{VRV}, v{VRV}, v{VAD}"]
    vchk(5, [ldr(0), ldr(1), [f"buffer_load_dwordx4 v[{VB+8}:{VB+11}], v7, s[76:79], 0 offen"]], AMR)
    vchk(6, [ldr(0), ldr(1)], AMR)
    add(7, 0, 'pre', f"""
s_mov_b32 s23, {f32bits(VTOL)}
v_cmp_nle_f32 vcc, v{VMAX}, s23
s_lshl_b32 s30, s58, 2
s_add_u32 s30, s30, {WS_FLAG}
v_mov_b32 v4, 0
s_cmp_lg_u64 vcc, 0
s_cselect_b32 s23, 1, 0
v_mov_b32 v3, s23
s_mov_b64 exec, 1
buffer_store_dword v3, v4, s[12:15], s30 offen
s_mov_b64 exec, -1
""".strip().split("\n"))

    nx = 0
    for g in range(NSTG):
        Oold, Onew, lold, lnew = (OB, OA, LB, LA) if g % 2 == 0 else (OA, OB, LA, LB)
        for tt in range(TPS):
            X, Y = (SX, SY) if tt % 2 == 0 else (SY, SX)
            H = HK.get((g, tt), {})
            attn_tile(a, g, tt, X, Y, Oold if tt == 0 else Onew, Onew, lold if tt == 0 else lnew, lnew, H, nx)
            nx = sum(1 for k in ('m2', 3, 'end', 'm3') for ins in H.get(k, []) if ins.startswith("ds_"))
        a(f"""
s_nop 7
v_cmp_nlt_f32 vcc, v{lnew}, s28
s_nop 1
s_cbranch_vccnz L_{tag}{g}_slow
L_{tag}{g}_ret:
""")
    tl(a, 2)
    stamp_end(a, 196608)
    a(f"s_nop 3\nv_rcp_f32 v7, v{LB}\ns_add_u32 s31, s26, {WS_O}")
    for i in range(16):
        a(f"v_mul_f32 v{OB+i}, v7, v{OB+i}")
    for i in range(8): a(f"v_cvt_pk_bf16_f32 v{P_+i}, v{OB+2*i}, v{OB+2*i+1}")
    a("s_nop 1")
    for p in range(2):
        a(f"v_permlane32_swap_b32 v{P_+4*p}, v{P_+4*p+2}\nv_permlane32_swap_b32 v{P_+4*p+1}, v{P_+4*p+3}")
    for p in range(2):
        a(f"buffer_store_dwordx4 {r(P_+4*p,4)}, v8, s[12:15], s31 offen offset:{p*32}")
    s1_gemm(a, 1)
    tl(a, 5, True)
    a(f"s_branch {endlabel}")
    for g in range(NSTG):
        if g % 2 == 0:
            attn_slow(a, f"{tag}{g}", OB, OA, LB, LA, SX, (g % ANS) * ASTAGE)
        else:
            attn_slow(a, f"{tag}{g}", OA, OB, LA, LB, SX, (g % ANS) * ASTAGE)


def wave_sum(a, v, t):
    for sh in (8, 4, 2, 1):
        a(f"s_nop 1\nv_add_f32_dpp v{v}, v{v}, v{v} row_ror:{sh} row_mask:0xf bank_mask:0xf")
    a(f"""
v_mov_b32 v{t}, v{v}
s_nop 1
v_permlane16_swap_b32 v{v}, v{t}
s_nop 1
v_add_f32 v{v}, v{v}, v{t}
v_mov_b32 v{t}, v{v}
s_nop 1
v_permlane32_swap_b32 v{v}, v{t}
s_nop 1
v_add_f32 v{v}, v{v}, v{t}
""")


def small_gemm(a, tag, mode, pP, pR, nsteps, kstep, pre=None):
    NS, STAGE, nu = 4, 32768, 2
    t_dma_voff(a, DV, 1, pP)
    t_dma_voff(a, DV + 1, 1, pR)
    stride = 4

    def setup():
        a("""
s_and_b32 s26, s22, 1
s_lshr_b32 s24, s22, 2
s_and_b32 s27, s22, 2
s_lshl_b32 s27, s27, 1
s_lshl_b32 s28, s24, 7
""")
        t_read_addr(a, RA, nu, 28, 27, 0, NS, STAGE, stride)
        a("s_lshl_b32 s29, s26, 5\ns_add_u32 s28, s28, s29")
        t_read_addr(a, RA + 2, nu, 28, 27, 8192, NS, STAGE, stride)
        for i in range(32):
            a(f"v_mov_b32 v{ACC+i}, 0")

    def dmas(st):
        return [[f"s_add_u32 m0, s18, {st*STAGE}", "s_nop 0", f"buffer_load_dwordx4 v{DV}, s[4:7], s16 offen lds"],
                [f"s_add_u32 m0, s18, {st*STAGE+8192}", "s_nop 0", f"buffer_load_dwordx4 v{DV+1}, s[8:11], s17 offen lds"],
                [f"s_add_u32 m0, s18, {st*STAGE+16384}", "s_nop 0", f"buffer_load_dwordx4 v{DV}, s[36:39], s40 offen lds"],
                [f"s_add_u32 m0, s18, {st*STAGE+24576}", "s_nop 0", f"buffer_load_dwordx4 v{DV+1}, s[44:47], s41 offen lds"]]

    def reads(st, ul, fs):
        f = FR[fs]
        return [f"ds_read_b128 v[{f}:{f+3}], v{RA+st*stride+ul}",
                f"ds_read_b128 v[{f+4}:{f+7}], v{RA+st*stride+ul} offset:4096",
                f"ds_read_b128 v[{f+8}:{f+11}], v{RA+st*stride+2+ul}"]

    def mfmas(fs):
        f = FR[fs]
        return [f"v_mfma_f32_32x32x16_bf16 v[{ACC+16*mb}:{ACC+16*mb+15}], v[{f+4*mb}:{f+4*mb+3}], v[{f+8}:{f+11}], v[{ACC+16*mb}:{ACC+16*mb+15}]" for mb in range(2)]

    kadv = [f"s_add_u32 s{r_}, s{r_}, {kstep}" for r_ in (16, 17, 40, 41)]
    pipeline(a, tag, nsteps, NS, nu, dmas, reads, mfmas, None, kadv, pre=pre, setup=setup)
    small_epi(a, mode, ACC)


def small_epi(a, mode, AC):
    a("s_and_b32 s26, s22, 1")
    a("s_nop 15\ns_barrier")
    a(f"""
v_lshlrev_b32 v3, 4, v2
s_lshl_b32 s23, s22, 13
v_add_u32 v4, s23, v3
s_lshr_b32 s25, s22, 1
s_lshl_b32 s23, s25, 11
s_lshl_b32 s29, s26, 13
s_add_u32 s23, s23, s29
v_add_u32 v3, s23, v3
""")
    for j in range(8):
        a(f"ds_write_b128 v4, v[{AC+4*j}:{AC+4*j+3}] offset:{j*1024}")
    a("s_waitcnt lgkmcnt(0)\ns_barrier")
    for i in range(4):
        for j in range(2):
            a(f"ds_read_b128 v[{96+8*i+4*j}:{96+8*i+4*j+3}], v3 offset:{i*16384+j*1024}")
    a("s_waitcnt lgkmcnt(4)")
    for r_ in range(8):
        a(f"v_add_f32 v{64+r_}, v{96+r_}, v{104+r_}")
    a("s_waitcnt lgkmcnt(0)")
    for r_ in range(8):
        a(f"v_add_f32 v{72+r_}, v{112+r_}, v{120+r_}")
    if mode == 1:
        for r_ in range(8):
            a(f"v_add_f32 v{64+r_}, v{64+r_}, v{72+r_}")


def pack8(a, dst, src):
    for r_ in range(4):
        a(f"v_cvt_pk_bf16_f32 v{dst+r_}, v{src+2*r_}, v{src+2*r_+1}")
    a(f"s_nop 1\nv_permlane32_swap_b32 v{dst}, v{dst+2}\nv_permlane32_swap_b32 v{dst+1}, v{dst+3}")


S1ACC, S1F, S1A, S1D = 200, 156, 32, 68
S1B = 65536
S1D2 = 255
S1ST = 24576


def stage1_setup(a):
    a(f"""
s_and_b32 s30, s2, 7
s_lshr_b32 s31, s2, 3
s_and_b32 s31, s31, 15
s_and_b32 s54, s30, 3
s_lshl_b32 s54, s54, 2
s_and_b32 s55, s31, 3
s_add_u32 s54, s54, s55
s_lshr_b32 s55, s30, 2
s_lshl_b32 s55, s55, 2
s_lshr_b32 s56, s31, 2
s_add_u32 s55, s55, s56
s_cmp_ge_u32 s2, 128
s_cselect_b32 s8, s52, s50
s_cselect_b32 s9, s53, s51
s_cselect_b32 s43, -1.0, 1.0
s_cselect_b32 s57, {WS_BT-WS_AT}, 0
s_add_u32 s57, s57, {WS_AT}
s_mov_b32 s10, {1024*2048}
s_mov_b32 s11, 0x00020000
""")
    a(f"""
s_lshl_b32 s40, s54, 17
s_sub_u32 s42, {(2048-63)*2048}, s40
s_lshl_b32 s41, s55, 17
s_mul_i32 s21, s55, {64*ATP}
s_add_u32 s21, s21, s57
s_lshl_b32 s23, s54, 7
s_add_u32 s21, s21, s23
""")
    t_dma_voff(a, S1D, 1, 2048)
    a(f"v_sub_u32 v3, {63*2048}, v3\nv_add_u32 v{S1D2}, v3, v4")


def stage1_setup2(a, zero=True):
    a("""
s_lshr_b32 s25, s22, 2
s_and_b32 s27, s22, 2
s_lshl_b32 s27, s27, 1
s_lshl_b32 s25, s25, 7
""")
    t_read_addr(a, S1A, 2, 25, 27, S1B, 4, S1ST, 4)
    a("s_and_b32 s25, s22, 1\ns_lshl_b32 s25, s25, 5")
    t_read_addr(a, S1A + 2, 2, 25, 27, S1B + 8192, 4, S1ST, 4)
    for i in range(32 if zero else 0):
        a(f"v_mov_b32 v{S1ACC+i}, 0")


def s1_dma(a, buf, i):
    if os.environ.get('NOS1'): return
    sr, so, vd = ((80, 40, S1D), (8, 41, S1D), (80, 42, S1D2))[i]
    a(f"s_add_u32 m0, s18, {S1B + buf*S1ST + i*8192}\ns_add_u32 s4, s{so}, s5\nbuffer_load_dwordx4 v{vd}, s[{sr}:{sr+3}], s4 offen lds")


def s1_reads(a, buf):
    if os.environ.get('NOS1'): return
    for ul in range(2):
        f = S1F + 12 * ul
        a(f"""
ds_read_b128 v[{f}:{f+3}], v{S1A+buf*4+ul}
ds_read_b128 v[{f+4}:{f+7}], v{S1A+buf*4+ul} offset:4096
ds_read_b128 v[{f+8}:{f+11}], v{S1A+buf*4+2+ul}
""")


def s1_mfma(a, i):
    if os.environ.get('NOS1'): return
    ul, mb = i >> 1, i & 1
    f = S1F + 12 * ul
    c = S1ACC + 16 * mb
    a(f"v_mfma_f32_32x32x16_bf16 v[{c}:{c+15}], v[{f+4*mb}:{f+4*mb+3}], v[{f+8}:{f+11}], v[{c}:{c+15}]")


def s1_gemm(a, part):
    rot = 2 if part in (0, 'prol0') else 0

    def dmas(st):
        return [cap(s1_dma, (st + rot) % 4, i) for i in range(3)]

    def reads(st, ul, fs):
        f = S1F + 12 * fs
        st = (st + rot) % 4
        return [f"ds_read_b128 v[{f}:{f+3}], v{S1A+st*4+ul}", f"ds_read_b128 v[{f+4}:{f+7}], v{S1A+st*4+ul} offset:4096",
                f"ds_read_b128 v[{f+8}:{f+11}], v{S1A+st*4+2+ul}"]

    def mfmas(fs):
        return cap(s1_mfma, 2 * fs) + cap(s1_mfma, 2 * fs + 1)

    def pb():
        a("s_cmp_lg_u32 s22, 0\ns_cbranch_scc1 L_pk_ok")
        poll(a, "pk", 152, True, pre=False)

    def ev_kv():
        for g in range(2):
            for i in range(4): kv_dma(a, g, i)
    def su():
        a(f"""
s_cmp_eq_u32 s75, 0
s_cbranch_scc1 L_noflag
v_lshlrev_b32 v3, 8, v2
v_mov_b32 v4, 1
s_waitcnt vmcnt(9)
buffer_store_byte v4, v3, s[12:15], s74 offen sc1
L_noflag:
""")
        side_jobs(a, '')
        stage1_setup2(a)
    kadv = ["s_add_u32 s5, s5, 128"]
    if part in ('prol', 'prol0'):
        return [[l for g in dmas(st) for l in g] + kadv for st in range(3)]
    if part == 0:
        KS_ = int(os.environ.get('KVSTEP', str(N0 - 4)))
        pipeline(a, "s1", N0, 4, 2, dmas, reads, mfmas, None, kadv, setup=su, xtra=4, noprol=2, prebar={KS_: pb},
                 events={KS_: ev_kv, KS_ + 1: lambda: side_jobs2(a, '')}, extras={KS_: 8})
        return
    pipeline(a, "s2", 16 - N0, 4, 2, dmas, reads, mfmas, None, kadv, setup=lambda: stage1_setup2(a, False), xtra=2, noprol=3)
    a(f"""
s_and_b32 s27, s22, 1
s_lshr_b32 s25, s22, 1
s_lshl_b32 s23, s22, 13
s_add_u32 s23, s23, {S1B}
v_add_u32 v{S1A}, s23, v9
s_lshl_b32 s23, s25, 11
s_lshl_b32 s30, s27, 13
s_add_u32 s23, s23, s30
s_add_u32 s23, s23, {S1B}
v_add_u32 v{S1A+1}, s23, v9
s_barrier
s_nop 7
""")
    for j in range(8):
        a(f"ds_write_b128 v{S1A}, v[{S1ACC+4*j}:{S1ACC+4*j+3}] offset:{j*1024}")
    a("s_waitcnt lgkmcnt(0)\ns_barrier")
    for i in range(4):
        for j in range(2):
            a(f"ds_read_b128 v[{S1ACC+8*i+4*j}:{S1ACC+8*i+4*j+3}], v{S1A+1} offset:{i*16384+j*1024}")
    a(f"""
v_and_b32 v3, 31, v2
s_lshl_b32 s23, s27, 5
v_add_u32 v3, s23, v3
s_mov_b32 s23, {ATP}
v_mul_lo_u32 v3, v3, s23
v_lshrrev_b32 v4, 5, v2
v_lshl_add_u32 v3, v4, 4, v3
s_lshl_b32 s23, s25, 5
s_add_u32 s23, s23, s21
s_waitcnt lgkmcnt(0)
""")
    for r_ in range(8):
        a(f"v_add_f32 v{S1ACC+r_}, v{S1ACC+r_}, v{S1ACC+8+r_}\nv_add_f32 v{S1ACC+16+r_}, v{S1ACC+16+r_}, v{S1ACC+24+r_}")
    for r_ in range(8):
        a(f"v_fma_f32 v{S1ACC+r_}, s43, v{S1ACC+16+r_}, v{S1ACC+r_}")
    pack8(a, S1F, S1ACC)
    a(f"buffer_store_dwordx4 v[{S1F}:{S1F+3}], v3, s[12:15], s23 offen")


def stage1_store(a):
    a("s_waitcnt vmcnt(0) lgkmcnt(0)")
    small_epi(a, 1, S1ACC)
    pack8(a, 16, 64)
    a(f"""
v_and_b32 v3, 31, v2
s_lshl_b32 s23, s26, 5
v_add_u32 v3, s23, v3
s_mov_b32 s23, {ATP}
v_mul_lo_u32 v3, v3, s23
v_lshrrev_b32 v4, 5, v2
v_lshl_add_u32 v3, v4, 4, v3
s_lshl_b32 s23, s25, 5
s_add_u32 s23, s23, s21
buffer_store_dwordx4 v[16:19], v3, s[12:15], s23 offen
""")


def dot_loads(a, dst, srdA, soffA, srdB, soffB):
    for (d, sr, so) in ((dst, srdA, soffA), (dst + 12, srdB, soffB)):
        a(f"""
buffer_load_dwordx4 v[{d}:{d+3}], v10, s[{sr}:{sr+3}], s{so} offen
buffer_load_dwordx4 v[{d+4}:{d+7}], v10, s[{sr}:{sr+3}], s{so} offen offset:16
buffer_load_dwordx4 v[{d+8}:{d+11}], v11, s[{sr}:{sr+3}], s{so} offen
""")


def dot_compute(a, res, src, t):
    a(f"v_mov_b32 v{res}, 0")
    for i in range(12):
        a(f"v_dot2c_f32_bf16 v{res}, v{src+i}, v{src+12+i}")
    a("s_nop 3")
    wave_sum(a, res, t)


def edge_issue(a):
    srd(a, 64, 56, 57, 2048 * 4096)
    srd(a, 68, 48, 49, WS_BYTES)
    a(f"""
s_lshr_b32 s54, s2, 3
s_and_b32 s55, s2, 7
v_lshlrev_b32 v10, 5, v2
v_lshlrev_b32 v11, 4, v2
v_add_u32 v11, 2048, v11
v_mov_b32 v3, 0x7ffffff0
v_cmp_gt_u32 vcc, 8, v2
s_lshl_b32 s58, s54, 6
s_lshl_b32 s23, s55, 3
s_add_u32 s58, s58, s23
s_add_u32 s58, s58, s22
v_cndmask_b32 v11, v3, v11, vcc
s_lshl_b32 s59, s58, 12
s_mov_b32 s60, {WS_AT + 512*ATP}
s_lshl_b32 s61, s55, 6
s_lshl_b32 s23, s54, 2
s_add_u32 s61, s61, s23
s_add_u32 s61, s61, s22
s_cmp_ge_u32 s22, 4
s_cselect_b32 s61, 512, s61
s_mul_i32 s62, s61, {ATP}
s_add_u32 s62, s62, {WS_AT}
s_mov_b32 s63, {1024*4096}
""")


def edge_loads(a):
    flag_load(a, 212, 76, 48, 49)
    dot_loads(a, 164, 64, 59, 68, 60)
    dot_loads(a, 188, 64, 63, 68, 62)


def edge_finish(a):
    flag_test(a, 212)
    a("s_cbranch_scc1 L_edge_done")
    dot_compute(a, 160, 164, 3)
    dot_compute(a, 161, 188, 3)
    a(f"""
v_cvt_pk_bf16_f32 v160, v160, v161
v_lshrrev_b32 v161, 16, v160
s_mov_b64 exec, 3
s_sub_u32 s23, 2048, s58
v_mov_b32 v3, s58
v_mov_b32 v4, s23
v_cmp_eq_u32 vcc, 0, v2
s_nop 1
v_cndmask_b32 v3, v4, v3, vcc
v_lshlrev_b32 v3, 12, v3
buffer_store_short v160, v3, s[12:15], 0 offen offset:3072
s_sub_u32 s23, 1024, s61
v_mov_b32 v3, s61
v_mov_b32 v4, s23
s_nop 0
v_cndmask_b32 v3, v4, v3, vcc
v_lshlrev_b32 v3, 1, v3
v_add_u32 v3, {1024*4096 + 2048}, v3
s_cmp_eq_u32 s61, 0
s_cselect_b64 s[72:73], 1, 3
s_cmp_gt_u32 s22, 4
s_cselect_b64 s[72:73], 0, s[72:73]
s_mov_b64 exec, s[72:73]
s_cbranch_execz L_edge_done
buffer_store_short v161, v3, s[12:15], 0 offen
L_edge_done:
s_mov_b64 exec, -1
""")


def stage2(a):
    a(f"""
s_and_b32 s54, s30, 3
s_lshl_b32 s54, s54, 2
s_and_b32 s55, s31, 3
s_add_u32 s54, s54, s55
s_lshr_b32 s55, s30, 2
s_lshl_b32 s55, s55, 2
s_lshr_b32 s56, s31, 2
s_add_u32 s55, s55, s56
""")
    srd(a, 4, 48, 49, WS_BYTES)
    srd(a, 36, 48, 49, WS_BYTES)
    srd(a, 8, 50, 51, 2048 * 4096)
    srd(a, 44, 52, 53, 2048 * 4096)
    srd(a, 12, 34, 35, 2048 * 4096)
    a(f"""
s_mul_i32 s16, s55, {64*ATP}
s_add_u32 s40, s16, {WS_BT}
s_add_u32 s16, s16, {WS_AT}
s_lshl_b32 s17, s54, 18
s_mov_b32 s41, s17
""")
    wave_setup(a)
    flag_load(a, 208, 76, 48, 49)

    def pre():
        a("s_waitcnt vmcnt(12)")
        flag_test(a, 208)
        a("s_cbranch_scc1 L_k3_fb")

    small_gemm(a, "s2", 2, ATP, 4096, 17, 128, pre=pre)
    for r_ in range(8):
        a(f"v_sub_f32 v{80+r_}, v{64+r_}, v{72+r_}\nv_add_f32 v{88+r_}, v{64+r_}, v{72+r_}")
    pack8(a, 16, 80)
    pack8(a, 20, 88)
    a("s_nop 0")
    for r_ in range(4):
        a(f"v_alignbit_b32 v{24+r_}, v{19-r_}, v{19-r_}, 16")
        a(f"v_alignbit_b32 v{28+r_}, v{23-r_}, v{23-r_}, 16")
    a(f"""
v_and_b32 v3, 31, v2
s_lshl_b32 s23, s26, 5
s_lshl_b32 s29, s54, 6
s_add_u32 s23, s23, s29
v_add_u32 v3, s23, v3
v_sub_u32 v4, 2048, v3
v_lshlrev_b32 v3, 12, v3
v_lshlrev_b32 v4, 12, v4
v_lshrrev_b32 v5, 5, v2
v_lshlrev_b32 v5, 4, v5
s_lshl_b32 s23, s25, 5
s_lshl_b32 s29, s55, 7
s_add_u32 s23, s23, s29
v_add_u32 v5, s23, v5
v_add_u32 v6, v3, v5
v_add_u32 v7, v4, v5
v_sub_u32 v8, 4082, v5
v_add_u32 v9, v4, v8
v_add_u32 v8, v3, v8
buffer_store_dwordx4 v[16:19], v6, s[12:15], 0 offen offset:2048
buffer_store_dwordx4 v[20:23], v7, s[12:15], 0 offen offset:2048
v_cmp_ne_u32 vcc, 0, v5
s_and_saveexec_b64 s[64:65], vcc
buffer_store_dwordx4 v[28:31], v8, s[12:15], 0 offen
buffer_store_dwordx4 v[24:27], v9, s[12:15], 0 offen
s_andn2_b64 exec, s[64:65], exec
s_cbranch_execz L_s2_e2
buffer_store_dwordx3 v[28:30], v8, s[12:15], 0 offen
buffer_store_short v31, v8, s[12:15], 0 offen offset:12
buffer_store_dwordx3 v[24:26], v9, s[12:15], 0 offen
buffer_store_short v27, v9, s[12:15], 0 offen offset:12
L_s2_e2:
s_mov_b64 exec, s[64:65]
""")


def fold(a):
    wave_setup(a)
    srd(a, 4, 40, 41, 2048 * 2048)
    srd(a, 8, 44, 45, 1024 * 2048)
    a(f"""
v_lshlrev_b32 v6, 5, v2
s_lshl_b32 s16, s31, 5
s_lshl_b32 s23, s22, 2
s_add_u32 s16, s16, s23
s_mov_b32 s17, {512*2048}
buffer_load_dwordx4 v[8:11], v6, s[8:11], s17 offen
buffer_load_dwordx4 v[12:15], v6, s[8:11], s17 offen offset:16
""")
    for i in range(4):
        b = 16 + 16 * i
        a(f"""
s_add_u32 s23, s16, {i}
s_sub_u32 s24, 2048, s23
s_lshl_b32 s23, s23, 11
s_lshl_b32 s24, s24, 11
buffer_load_dwordx4 v[{b}:{b+3}], v6, s[4:7], s23 offen
buffer_load_dwordx4 v[{b+4}:{b+7}], v6, s[4:7], s23 offen offset:16
buffer_load_dwordx4 v[{b+8}:{b+11}], v6, s[4:7], s24 offen
buffer_load_dwordx4 v[{b+12}:{b+15}], v6, s[4:7], s24 offen offset:16
""")
    for i in range(4):
        b = 16 + 16 * i
        o = 96 + 16 * i
        a(f"s_waitcnt vmcnt({(3-i)*4 + 5*i})")
        a(f"v_mov_b32 v{88+i}, 0")
        for j in range(8):
            a(f"""
v_lshlrev_b32 v80, 16, v{b+j}
v_and_b32 v81, 0xffff0000, v{b+j}
v_lshlrev_b32 v82, 16, v{b+8+j}
v_and_b32 v83, 0xffff0000, v{b+8+j}
v_add_f32 v84, v80, v82
v_add_f32 v85, v81, v83
v_sub_f32 v86, v80, v82
v_sub_f32 v87, v81, v83
v_cvt_pk_bf16_f32 v{o+j}, v84, v85
v_cvt_pk_bf16_f32 v{o+8+j}, v86, v87
v_dot2c_f32_bf16 v{88+i}, v{o+j}, v{8+j}
""")
        a(f"""
s_add_u32 s23, s16, {i}
s_lshl_b32 s24, s23, 11
s_add_u32 s25, s24, {WS_XM}
s_add_u32 s24, s24, {WS_XP}
buffer_store_dwordx4 v[{o}:{o+3}], v6, s[12:15], s24 offen
buffer_store_dwordx4 v[{o+4}:{o+7}], v6, s[12:15], s24 offen offset:16
buffer_store_dwordx4 v[{o+8}:{o+11}], v6, s[12:15], s25 offen
buffer_store_dwordx4 v[{o+12}:{o+15}], v6, s[12:15], s25 offen offset:16
""")
        wave_sum(a, 88 + i, 3)
        a(f"""
v_cvt_pk_bf16_f32 v{88+i}, v{88+i}, v{88+i}
s_lshl_b32 s23, s23, 1
s_add_u32 s23, s23, {WS_AT + 512*ATP}
v_mov_b32 v4, 0
s_mov_b64 exec, 1
buffer_store_short v{88+i}, v4, s[12:15], s23 offen
s_mov_b64 exec, -1
""")


def edge_mv(a):
    wave_setup(a)
    srd(a, 4, 40, 41, 2048 * 2048)
    srd(a, 8, 44, 45, 513 * 2048)
    a(f"""
v_lshlrev_b32 v6, 5, v2
s_lshl_b32 s16, s31, 3
s_add_u32 s16, s16, s22
s_mul_i32 s16, s16, 9
s_mov_b32 s17, {1024*2048}
buffer_load_dwordx4 v[8:11], v6, s[4:7], s17 offen
buffer_load_dwordx4 v[12:15], v6, s[4:7], s17 offen offset:16
v_lshlrev_b32 v7, 2, v2
""")
    for i in range(9):
        b = 16 + 8 * i
        a(f"""
s_add_u32 s23, s16, {i}
s_lshl_b32 s23, s23, 11
buffer_load_dwordx4 v[{b}:{b+3}], v6, s[8:11], s23 offen
buffer_load_dwordx4 v[{b+4}:{b+7}], v6, s[8:11], s23 offen offset:16
""")
    a("s_waitcnt vmcnt(0)\nv_mov_b32 v5, 0")
    for i in range(9):
        b = 16 + 8 * i
        a(f"v_mov_b32 v{96+i}, 0")
        for j in range(8):
            a(f"v_dot2c_f32_bf16 v{96+i}, v{b+j}, v{8+j}")
        a("s_nop 3")
        wave_sum(a, 96 + i, 3)
        a(f"""
v_cvt_pk_bf16_f32 v{96+i}, v{96+i}, v5
v_cmp_eq_u32 vcc, 0, v2
s_add_u32 s23, s16, {i}
s_cmp_gt_u32 s23, 512
s_cbranch_scc1 L_emv_done
v_cndmask_b32 v{96+i}, v5, v{96+i}, vcc
s_mul_i32 s23, s23, {ATP}
s_add_u32 s24, s23, {WS_BT + 2048}
s_add_u32 s23, s23, {WS_AT + 2048}
s_mov_b32 exec_hi, 0
buffer_store_dword v{96+i}, v7, s[12:15], s23 offen
buffer_store_dword v5, v7, s[12:15], s24 offen
s_mov_b64 exec, -1
""")
    a("L_emv_done:")


VTOL = 2.0 ** -8 * 1.01
VMAX = 70
VB = 152


def cmp_dw(a, x, y, neg, rev=False):
    lo_y, hi_y = (f"v_and_b32 v5, 0xffff0000, v{y}", f"v_lshlrev_b32 v6, 16, v{y}") if rev else (f"v_lshlrev_b32 v5, 16, v{y}", f"v_and_b32 v6, 0xffff0000, v{y}")
    a(f"""
v_lshlrev_b32 v3, 16, v{x}
v_and_b32 v4, 0xffff0000, v{x}
{lo_y}
{hi_y}
v_fmac_f32 v3, s60, v5
v_fmac_f32 v4, s60, v6
v_max3_f32 v{VMAX}, |v3|, |v4|, v{VMAX}
""")


def verify_c_setup(a):
    a(f"""
s_bitcmp1_b32 s58, 0
s_cselect_b32 s76, s94, s92
s_cselect_b32 s77, s95, s93
s_cselect_b32 s60, 1.0, -1.0
s_mov_b32 s78, {2048*4096}
s_mov_b32 s79, 0x00020000
s_sub_u32 s62, 2048, s61
s_and_b32 s62, s62, 2047
s_lshl_b32 s61, s61, 12
s_lshl_b32 s62, s62, 12
""")


AMN, AMR, VAD, VRV = 192, 196, 69, 71


def verify_setup(a):
    a("s_lshl_b32 s58, s2, 3\ns_add_u32 s58, s58, s22\ns_lshr_b32 s61, s58, 1")
    verify_c_setup(a)
    a(f"""
s_bitcmp1_b32 s58, 0
s_mov_b32 s59, 0xbf80
s_cselect_b32 s59, 0x3f80, s59
v_and_b32 v3, 15, v2
v_bfe_u32 v4, v2, 4, 1
v_lshlrev_b32 v4, 3, v4
v_cmp_gt_u32 vcc, 32, v2
v_mov_b32 v5, s59
v_mov_b32 v6, 0x3f80
v_sub_u32 v7, 15, v3
v_cndmask_b32 v5, v5, v6, vcc
v_cndmask_b32 v7, v7, v3, vcc
v_sub_u32 v3, v3, v4
v_sub_u32 v7, v7, v4
""")
    for base, j in ((AMN, 3), (AMR, 7)):
        a(f"""
v_and_b32 v4, 1, v{j}
v_lshlrev_b32 v4, 4, v4
v_lshlrev_b32 v4, v4, v5
v_lshrrev_b32 v6, 1, v{j}
""")
        for r_ in range(4):
            a(f"v_cmp_eq_u32 vcc, {r_}, v6\ns_nop 1\nv_cndmask_b32 v{base+r_}, 0, v4, vcc")
    a(f"""
v_and_b32 v3, 15, v2
v_lshlrev_b32 v3, 5, v3
v_bfe_u32 v4, v2, 4, 1
v_lshlrev_b32 v4, 4, v4
v_add_u32 v5, v3, v4
v_sub_u32 v6, v4, v3
v_add_u32 v6, 4064, v6
v_add_u32 v7, 2, v5
v_cmp_gt_u32 vcc, 32, v2
v_mov_b32 v3, s62
v_mov_b32 v4, s61
v_cndmask_b32 v6, v6, v7, vcc
v_cndmask_b32 v3, v3, v4, vcc
v_add_u32 v{VRV}, s61, v6
v_add_u32 v{VAD}, v3, v5
s_mov_b32 s63, 0
""")


def verify_w_switch(a):
    a(f"""
s_bitcmp1_b32 s58, 0
s_cselect_b32 s84, s52, s50
s_cselect_b32 s85, s53, s51
s_mov_b32 s86, {1024*2048}
s_lshr_b32 s59, s58, 2
s_add_u32 s59, s59, 1
s_sub_u32 s63, 1024, s59
s_lshl_b32 s59, s59, 11
s_lshl_b32 s63, s63, 11
v_mov_b32 v3, s63
v_mov_b32 v4, s59
v_cmp_gt_u32 vcc, 32, v2
v_and_b32 v5, 15, v2
v_lshlrev_b32 v5, 5, v5
v_bfe_u32 v6, v2, 4, 1
v_lshl_add_u32 v5, v6, 4, v5
v_cndmask_b32 v3, v3, v4, vcc
v_add_u32 v{VAD}, v3, v5
s_and_b32 s63, s58, 2
s_lshl_b32 s63, s63, 9
""")
    srd(a, 36, 88, 89, 1024 * 2048)
    a(f"""
v_lshl_add_u32 v3, v0, 8, s2
v_lshlrev_b32 v3, 7, v3
buffer_load_dword v{VB+24}, v3, s[36:39], 0 offen
s_mov_b32 s87, 0x00020000
s_lshr_b32 s59, s58, 1
s_and_b32 s59, s59, 7
s_lshl_b32 s59, s59, 9
s_add_u32 s59, s59, {1024*4096}
v_add_u32 v7, s59, v5
""")


def verify_r_switch(a):
    a(f"""
v_mov_b32 v3, 512
v_mov_b32 v4, -512
v_cmp_gt_u32 vcc, 32, v2
s_lshr_b32 s59, s58, 1
s_sub_u32 s63, {1024*4096}, s61
s_and_b32 s23, s58, 0xfffffff9
v_cndmask_b32 v{VAD}, v4, v3, vcc
s_cmp_eq_u32 s23, 0
s_cselect_b32 s59, s59, 0
s_cselect_b32 s63, s63, 0
v_mul_lo_u32 v7, v{VAD}, s59
v_add3_u32 v7, v7, v{VRV}, s63
""")


def touch(a):
    a("""
s_load_dwordx8 s[32:39], s[0:1], 0
s_load_dwordx4 s[40:43], s[0:1], 64
s_sub_u32 s31, s2, 56
s_lshl_b32 s23, s31, 9
v_add_u32 v3, s23, v0
v_lshlrev_b32 v4, 7, v3
s_waitcnt lgkmcnt(0)
""")
    off = 0
    for i, (lo, nb) in enumerate(((36, 65536), (38, 65536), (32, 2048 * 2048), (34, 1024 * 2048), (40, 513 * 2048), (42, 512 * 2048))):
        srd(a, 4 + 4 * i, lo, lo + 1, nb)
        a(f"v_subrev_u32 v5, {off}, v4\nbuffer_load_dword v{10+i}, v5, s[{4+4*i}:{7+4*i}], 0 offen")
        off += (nb + 127) // 128 * 128
    assert off <= 200 * 512 * 128
    a("s_waitcnt vmcnt(0)")


def flag_load(a, vd, sr, lo, hi):
    srd(a, sr, lo, hi, 8192, WS_FLAG)
    a("v_and_b32 v3, 63, v0\nv_lshlrev_b32 v3, 4, v3\nv_add_u32 v4, 4096, v3")
    for j in range(8):
        a(f"buffer_load_dwordx4 v[{vd+4*j}:{vd+4*j+3}], v{3 + j//4}, s[{sr}:{sr+3}], 0 offen offset:{(j%4)*1024}")


def flag_test(a, vd):
    for j in range(1, 31, 2):
        a(f"v_or3_b32 v{vd}, v{vd}, v{vd+j}, v{vd+j+1}")
    a(f"v_or_b32 v{vd}, v{vd}, v{vd+31}")
    a(f"v_cmp_ne_u32 vcc, 0, v{vd}\ns_nop 1\ns_cmp_lg_u64 vcc, 0")


def g3(a):
    a("""
s_and_b32 s50, s30, 3
s_lshl_b32 s50, s50, 2
s_and_b32 s51, s31, 3
s_add_u32 s50, s50, s51
s_lshr_b32 s51, s30, 2
s_lshl_b32 s51, s51, 2
s_lshr_b32 s52, s31, 2
s_add_u32 s51, s51, s52
""")
    srd(a, 4, 40, 41, 2048 * 2048)
    a(f"""
s_cmp_ge_u32 s51, 4
s_cselect_b32 s8, s46, s44
s_cselect_b32 s9, s47, s45
s_cselect_b32 s20, {f32bits(-1.0)}, 1.0
s_mov_b32 s10, {1024*2048}
s_mov_b32 s11, 0x00020000
s_lshl_b32 s16, s50, 18
s_and_b32 s17, s51, 3
s_lshl_b32 s17, s17, 19
s_lshl_b32 s21, s51, 20
s_lshl_b32 s23, s50, 8
s_add_u32 s21, s21, s23
s_add_u32 s21, s21, {WS_AB}
""")
    gemm(a, "g3", 2, 4, 1, 'T', 2048, 2048, 16, 3, 4096, scale=True)


def touch2(a):
    a("""
v_lshl_add_u32 v3, v0, 8, s2
v_lshlrev_b32 v4, 7, v3
v_lshrrev_b32 v5, 5, v3
v_and_b32 v6, 31, v3
v_lshlrev_b32 v5, 12, v5
v_lshl_add_u32 v5, v6, 7, v5
v_mov_b32 v7, 0x7ffffff0
v_cmp_gt_u32 vcc, 17, v6
""")
    srd(a, 76, 88, 89, 1024 * 2048)
    a("v_cndmask_b32 v5, v7, v5, vcc\nbuffer_load_dword v196, v4, s[76:79], 0 offen")
    srd(a, 80, 92, 93, 1025 * 4096)
    a("buffer_load_dword v197, v5, s[80:83], 0 offen")
    srd(a, 84, 94, 95, 1025 * 4096)
    a("buffer_load_dword v198, v5, s[84:87], 0 offen")


def k1(a):
    kernel_header(a, "k1_kernel")
    a("""
s_cmp_ge_u32 s2, 256
s_cbranch_scc1 L_k1_end
s_cmp_ge_u32 s2, 56
s_cbranch_scc1 L_k1_touch
s_load_dwordx8 s[32:39], s[0:1], 0
s_load_dwordx2 s[40:41], s[0:1], 40
s_load_dwordx4 s[44:47], s[0:1], 64
s_load_dwordx2 s[48:49], s[0:1], 96
s_waitcnt lgkmcnt(0)
""")
    TLK[0] = 0
    tl(a, 0)
    srd(a, 12, 48, 49, WS_BYTES)
    a("""
s_cmp_ge_u32 s2, 48
s_cbranch_scc1 L_k1_emv
s_cmp_ge_u32 s2, 16
s_cbranch_scc1 L_k1_fold
""")
    wave_setup(a)
    a(f"""
s_cmp_ge_u32 s22, 4
s_cselect_b32 s4, s38, s36
s_cselect_b32 s5, s39, s37
s_mov_b32 s6, 65536
s_mov_b32 s7, 0x00020000
""")
    srd(a, 8, 32, 33, 2048 * 2048)
    a("""
s_mov_b32 s16, 0
s_lshl_b32 s17, s2, 18
s_lshl_b32 s21, s2, 2
""")
    gemm_kv(a, "g2")
    tl(a, 5, True)
    a("s_endpgm\nL_k1_fold:\ns_sub_u32 s31, s2, 16")
    fold(a)
    tl(a, 5, True)
    a("s_endpgm\nL_k1_emv:\ns_sub_u32 s31, s2, 48")
    edge_mv(a)
    tl(a, 5, True)
    a("s_endpgm\nL_k1_touch:")
    touch(a)
    a("L_k1_end:\ns_endpgm")


def k2(a):
    kernel_header(a, "k2_kernel")
    a("""
s_cmp_ge_u32 s2, 256
s_cbranch_scc1 L_k2_end
s_load_dwordx4 s[32:35], s[0:1], 0
s_load_dwordx2 s[50:51], s[0:1], 64
s_load_dwordx2 s[52:53], s[0:1], 72
s_load_dwordx2 s[88:89], s[0:1], 32
s_load_dwordx4 s[92:95], s[0:1], 48
s_load_dwordx2 s[48:49], s[0:1], 96
s_load_dwordx4 s[64:67], s[0:1], 16
s_load_dwordx2 s[74:75], s[0:1], 40
s_load_dwordx2 s[90:91], s[0:1], 88
""")
    wave_setup(a)
    a(f"""
v_lshrrev_b32 v3, 3, v2
v_lshl_add_u32 v3, v1, 5, v3
v_bfe_u32 v4, v3, 1, 1
v_bfe_u32 v5, v2, 2, 1
v_xor_b32 v4, v4, v5
v_and_b32 v5, 3, v2
v_lshlrev_b32 v5, 4, v5
v_lshl_add_u32 v5, v4, 6, v5
v_lshl_add_u32 v6, v3, 11, v5
v_subrev_u32 v3, 64, v3
v_bfe_u32 v4, v3, 1, 3
v_and_b32 v5, 7, v2
v_xor_b32 v4, v4, v5
v_lshlrev_b32 v4, 4, v4
v_lshl_add_u32 v7, v3, 11, v4
v_lshlrev_b32 v8, 4, v2
v_cmp_gt_u32 vcc, 2, v1
v_mov_b32 v9, 64
v_mov_b32 v10, {8*2048}
v_cndmask_b32 v152, v7, v6, vcc
v_cndmask_b32 v9, v9, 0, vcc
v_cmp_lt_u32 vcc, 5, v1
v_mov_b32 v11, 1024
s_lshl_b32 s20, s22, 12
v_cndmask_b32 v152, v152, v8, vcc
v_cndmask_b32 v9, v9, 0, vcc
v_cndmask_b32 v10, v10, v11, vcc
v_xor_b32 v153, v152, v9
v_add_u32 v153, v153, v10
v_lshl_add_u32 v154, v10, 1, v152
v_lshl_add_u32 v155, v10, 1, v153
s_waitcnt lgkmcnt(0)
s_cmp_ge_u32 s2, 128
s_cselect_b32 s96, s66, s64
s_cselect_b32 s97, s67, s65
s_mov_b32 s98, 65536
s_mov_b32 s99, 0x00020000
s_cmp_lt_u32 s22, 6
s_cselect_b32 s96, s32, s96
s_cselect_b32 s97, s33, s97
s_cselect_b32 s98, {2048*2048}, s98
s_cmp_lt_u32 s22, 2
s_cselect_b32 s96, s34, s96
s_cselect_b32 s97, s35, s97
s_cselect_b32 s98, {1024*2048}, s98
""")
    TLK[0] = 1
    srd(a, 12, 48, 49, WS_BYTES)
    srd(a, 36, 34, 35, 1024 * 2048)
    srd(a, 44, 32, 33, 2048 * 2048)
    srd(a, 80, 74, 75, 2048 * 2048)
    srd(a, 84, 50, 51, 513 * 2048)
    tl(a, 0)
    a(f"""
s_and_b32 s30, s2, 7
s_lshr_b32 s31, s2, 3
s_and_b32 s54, s30, 3
s_lshl_b32 s54, s54, 2
s_and_b32 s55, s31, 3
s_add_u32 s54, s54, s55
s_lshr_b32 s55, s30, 2
s_lshl_b32 s55, s55, 3
s_lshr_b32 s56, s31, 2
s_add_u32 s55, s55, s56
s_lshl_b32 s16, s55, 7
s_lshl_b32 s17, s54, 18
s_add_u32 s26, s17, s16
s_cmp_lt_u32 s22, 2
s_cselect_b32 s16, s16, s17
s_mov_b32 s23, 128
s_cselect_b32 s17, {64*2048}, s23
s_cmp_ge_u32 s22, 6
s_cselect_b32 s16, 0, s16
s_cselect_b32 s17, 4096, s17
s_mov_b32 s5, 0
s_and_b32 s64, s2, 3
s_lshl_b32 s64, s64, 3
s_add_u32 s64, s64, s22
s_sub_u32 s64, s64, 7
s_and_b32 s24, s55, 3
s_lshl_b32 s23, s54, 2
s_add_u32 s24, s24, s23
s_lshl_b32 s24, s24, 12
s_add_u32 s24, s24, {WS_KF}
s_lshr_b32 s65, s2, 2
s_lshl_b32 s65, s65, 8
s_add_u32 s65, s65, {WS_SY}
s_lshl_b32 s74, s54, 3
s_and_b32 s23, s55, 7
s_add_u32 s74, s74, s23
s_add_u32 s74, s74, {WS_SY}
s_mov_b32 s75, 0
""")
    attention(a, "at", "L_k2_end")
    a("L_k2_end:\ns_endpgm")


def k3(a):
    kernel_header(a, "k3_kernel")
    a("""
s_cmp_ge_u32 s2, 256
s_cbranch_scc1 L_k3_end
s_load_dwordx2 s[32:33], s[0:1], 32
s_load_dwordx2 s[34:35], s[0:1], 80
s_load_dwordx2 s[48:49], s[0:1], 96
s_load_dwordx4 s[56:59], s[0:1], 48
s_and_b32 s30, s2, 7
s_lshr_b32 s31, s2, 3
s_waitcnt lgkmcnt(0)
""")
    TLK[0] = 2
    tl(a, 0)
    a("""
s_cmp_ge_u32 s2, 128
s_cbranch_scc1 L_k3_s2
s_and_b32 s50, s30, 1
s_lshl_b32 s50, s50, 2
s_and_b32 s51, s31, 3
s_add_u32 s50, s50, s51
s_lshr_b32 s51, s30, 1
s_lshl_b32 s51, s51, 2
s_lshr_b32 s52, s31, 2
s_add_u32 s51, s51, s52
""")
    srd(a, 4, 32, 33, 1024 * 2048)
    srd(a, 8, 48, 49, 2048 * 2048, WS_O)
    srd(a, 12, 34, 35, 2048 * 4096)
    a("""
s_lshl_b32 s16, s50, 8
s_lshl_b32 s17, s51, 18
s_lshl_b32 s21, s51, 19
s_add_u32 s21, s21, s16
""")
    gemm(a, "g5", 2, 2, 2, 'N', 2048, 2048, 16, 4, 4096, touch=(lambda: (edge_issue(a), edge_loads(a)), 20))
    edge_finish(a)
    tl(a, 5, True)
    a("""
s_endpgm
L_k3_s2:
s_sub_u32 s31, s31, 16
s_mov_b32 s50, s56
s_mov_b32 s51, s57
s_mov_b32 s52, s58
s_mov_b32 s53, s59
""")
    stage2(a)
    tl(a, 5, True)
    a("""
s_endpgm
L_k3_fb:
s_load_dwordx2 s[40:41], s[0:1], 40
s_load_dwordx4 s[44:47], s[0:1], 64
s_load_dwordx2 s[90:91], s[0:1], 88
s_mov_b32 s36, s34
s_mov_b32 s37, s35
s_mov_b32 s32, s50
s_mov_b32 s33, s51
s_mov_b32 s34, s52
s_mov_b32 s35, s53
s_waitcnt vmcnt(0) lgkmcnt(0)
s_barrier
""")
    srd(a, 12, 48, 49, WS_BYTES)
    g3(a)
    a("""
s_waitcnt vmcnt(0) lgkmcnt(0)
s_barrier
s_cmp_lg_u32 s22, 0
s_cbranch_scc1 L_k3_gb2
buffer_wbl2 sc1
s_waitcnt vmcnt(0)
v_mov_b32 v3, 0
v_mov_b32 v4, 1
s_mov_b64 exec, 1
global_atomic_add v3, v4, s[90:91] sc1
s_waitcnt vmcnt(0)
L_k3_gb1:
s_sleep 8
global_load_dword v5, v3, s[90:91] sc1
s_waitcnt vmcnt(0)
v_readfirstlane_b32 s23, v5
s_nop 3
s_cmp_lt_u32 s23, 128
s_cbranch_scc1 L_k3_gb1
s_mov_b64 exec, -1
buffer_inv sc1
s_waitcnt vmcnt(0)
L_k3_gb2:
s_barrier
""")
    g4(a)
    a("L_k3_end:\ns_endpgm")


def V(n):
    return 256 if os.environ.get('TL') else n


def main():
    a = Asm()
    hdr = open("cdna_kernels/" + KN + ".s.ref").read().split("; Override launch")[0]
    launches = """; @launch kernel=k2_kernel grid=(256,1,1) block=(512,1,1) lds=163840
; @launch kernel=k3_kernel grid=(256,1,1) block=(512,1,1) lds=147456
"""
    k2(a)
    k3(a)
    out = hdr + launches + '.amdgcn_target "amdgcn-amd-amdhsa--gfx950"\n.text\n' + a.text()
    out += '.section .rodata,"a"\n.p2align 6\n' + kernel_desc("k2_kernel", V(256), 102) + ".p2align 6\n" + kernel_desc("k3_kernel", V(248))
    open(sys.argv[1] if len(sys.argv) > 1 else "out.s", "w").write(out)


if __name__ == "__main__":
    main()
```

```python
import sys, os
PROF = os.environ.get('PROF'); NOMFMA = os.environ.get('NOMFMA'); NODMA = os.environ.get('NODMA')

KN = "concat_heads__grouped_kv_mqa__spectral_fnet__prompt"
WS_Q = 0
WS_KF = 4 << 20
WS_VF = (4 << 20) + (128 << 10)
WS_AB = 8 << 20
WS_O = 16 << 20
WS_XP = 26 << 20
WS_XM = 29 << 20
WS_AT = 32 << 20
WS_BT = 34 << 20
WS_FLAG = 36 << 20
WS_SY = 37 << 20
if os.environ.get('CMP', '1') == '1':
    WS_SY = (4 << 20) + (512 << 10); WS_FLAG = (4 << 20) + (768 << 10); WS_AT = 5 << 20; WS_BT = WS_AT + 0x118000
ATP = 2176
QSCALE = 1.4426950408889634 * 32 ** -0.5


def f32bits(x):
    import struct
    return struct.unpack("<I", struct.pack("<f", x))[0]


class Asm:
    def __init__(self):
        self.lines = []

    def __call__(self, s):
        for l in s.strip("\n").split("\n"):
            self.lines.append(l if l.endswith(":") else "    " + l.strip())

    def text(self):
        return "\n".join(self.lines) + "\n"


def srd(a, d, lo, hi, nbytes, off=0):
    if off:
        a(f"s_add_u32 s{d}, s{lo}, {off}\ns_addc_u32 s{d+1}, s{hi}, 0")
    else:
        a(f"s_mov_b32 s{d}, s{lo}\ns_mov_b32 s{d+1}, s{hi}")
    a(f"s_mov_b32 s{d+2}, {nbytes}\ns_mov_b32 s{d+3}, 0x00020000")


FR = [16, 32]
UID = [0]
PROFOFF = {'qg': 65536, 'g1': 0, 'g2': 0, 'g3': 0, 'g4': 65536, 'g5': 131072, 's1': 65536, 's2': 131072}
ACC = 64
DV = 48
RA = 128


def pipeline(a, tag, nsteps, NS, nu, dmas, reads, mfmas, nreads, kadv, switch=None, pre=None, setup=None, xtra=0, events=None, extras=None, prebar=None, novm=False, noprol=0):
    nd = len(dmas(0))

    def issue_all(stage):
        for g in dmas(stage % NS):
            for ins in g:
                a(ins)
        for ins in kadv:
            a(ins)

    for st in range(noprol, min(NS - 1, nsteps)):
        issue_all(st)
    if setup is not None:
        setup()
    if pre is not None:
        pre()
    if not novm:
        a(f"s_waitcnt vmcnt({(min(NS - 1, nsteps) - 1) * nd + xtra})")
    a("s_barrier")
    if TLK[0] != 1: stamp_begin(a, 72)
    tl(a, 6 if tag == 's1' else 1) if not (tag == 's2' and TLK[0] == 1) else None
    for ins in reads(0, 0, 0):
        a(ins)
    state = {"set": 0}

    def step(i, dyn=False):
        do_dma = (i + NS - 1) <= nsteps - 1
        groups = list(dmas((i + NS - 1) % NS)) if do_dma else []
        if do_dma and switch is not None:
            if dyn:
                a(switch[2])
            elif i + NS - 1 == switch[0]:
                a(switch[1])
        mcount = len(mfmas(0))
        half = mcount // 2
        nm = (nu - 1) * mcount + half
        slots = [[] for _ in range(nu * mcount)]
        for gi, g in enumerate(groups):
            slots[min(nm - 1, gi * nm // max(1, len(groups)))].extend(g)
        if do_dma:
            slots[nm - 1].extend(kadv)
        last_issued = min(i + NS - 1, nsteps - 1)
        mi = 0

        def emit_m(ms):
            nonlocal mi
            for m in ms:
                if not NOMFMA:
                    a(m)
                for ins in slots[mi]:
                    if NODMA and 'buffer_load' in ins:
                        continue
                    a(ins)
                mi += 1

        for ul in range(nu):
            cur = state["set"]
            nxt = 1 - cur
            ms = mfmas(cur)
            if ul + 1 < nu:
                rd = reads(i % NS, ul + 1, nxt)
                for ins in rd:
                    a(ins)
                a(f"s_waitcnt lgkmcnt({len(rd)})")
                emit_m(ms)
            else:
                a("s_waitcnt lgkmcnt(0)")
                emit_m(ms[:half])
                if i + 1 <= nsteps - 1:
                    ex = sum(n for i2, n in (extras or {}).items() if i + 2 - NS <= i2 < i)
                    if not novm: a(f"s_waitcnt vmcnt({(last_issued - (i + 1)) * nd + ex + (xtra if (i + 1 <= NS - 2 and not dyn) else 0)})")
                    if prebar and i in prebar:
                        prebar[i]()
                    a("s_barrier")
                    for ins in reads((i + 1) % NS, 0, nxt):
                        a(ins)
                emit_m(ms[half:])
                if events and i in events:
                    events[i]()
                if tag == 'qg' and i % 2 == 1 and os.environ.get('TLQ'):
                    tl(a, 8 + i // 2)
            state["set"] = nxt

    xtra_block = False
    steady_end = nsteps - NS + 1
    unroll = NS if (nu % 2 == 0 or NS % 2 == 0) else 2 * NS
    nloop = steady_end // unroll
    if nloop >= 2 and nsteps > int(os.environ.get('LOOPMIN', '16')) and not xtra_block:
        UID[0] += 1
        lab = f"L_{tag}_loop{UID[0]}"
        a(f"s_mov_b32 s19, 0")
        a(f"{lab}:")
        for i in range(unroll):
            step(i, dyn=True)
        a(f"s_add_u32 s19, s19, 1\ns_cmp_lt_u32 s19, {nloop}\ns_cbranch_scc1 {lab}")
        start = nloop * unroll
    else:
        start = 0
    for i in range(start, nsteps):
        step(i)
    if TLK[0] != 1: stamp_end(a, PROFOFF[tag], 72)
    tl(a, 7 if tag == 's1' else 2) if not (tag == 's2' and TLK[0] == 1) else None


def stamp_begin(a, base=66):
    if PROF:
        a(f"s_memtime s[{base}:{base+1}]\ns_memrealtime s[{base+4}:{base+5}]\ns_waitcnt lgkmcnt(0)")


def stamp_end(a, off, base=66):
    if PROF:
        a(f"""s_memtime s[{base+2}:{base+3}]
s_memrealtime s[{base+6}:{base+7}]
s_waitcnt lgkmcnt(0)
s_sub_u32 s{base+2}, s{base+2}, s{base}
s_sub_u32 s{base+6}, s{base+6}, s{base+4}
s_load_dwordx2 s[{base}:{base+1}], s[0:1], 96
s_waitcnt lgkmcnt(0)
s_add_u32 s{base}, s{base}, {24<<20}
s_addc_u32 s{base+1}, s{base+1}, 0
v_mov_b32 v6, s{base+2}
v_mov_b32 v7, s{base+6}
s_lshl_b32 s23, s2, 6
s_lshl_b32 s{base+2}, s22, 3
s_add_u32 s23, s23, s{base+2}
s_add_u32 s23, s23, {off}
v_mov_b32 v5, s23
global_store_dwordx2 v5, v[6:7], s[{base}:{base+1}]
""")


TLK = [0]


def tl(a, slot, drain=False):
    if not os.environ.get('TL'):
        return
    if drain:
        a("s_waitcnt vmcnt(0)")
    b = 66 if TLK[0] == 1 else 80
    va, vb = (6, 7) if TLK[0] == 1 else (254, 255)
    a(f"""s_memrealtime s[{b}:{b+1}]
s_load_dwordx2 s[{b+2}:{b+3}], s[0:1], 96
s_waitcnt lgkmcnt(0)
s_add_u32 s{b+2}, s{b+2}, {(24<<20) + (512<<10) + TLK[0]*65536 + slot*4}
s_addc_u32 s{b+3}, s{b+3}, 0
s_lshl_b32 s{b+4}, s2, 6
v_mov_b32 v{va}, s{b+4}
v_mov_b32 v{vb}, s{b}
v_cmp_eq_u32 vcc, 0, v0
s_and_saveexec_b64 s[{b+6}:{b+7}], vcc
global_store_dword v{va}, v{vb}, s[{b+2}:{b+3}]
s_mov_b64 exec, s[{b+6}:{b+7}]
""")


def wave_setup(a):
    a("""
v_lshrrev_b32 v1, 6, v0
s_nop 0
v_readfirstlane_b32 s22, v1
v_and_b32 v2, 63, v0
s_nop 2
s_lshl_b32 s18, s22, 10
""")


def t_dma_voff(a, vdst, n, pitch):
    a(f"""
v_lshrrev_b32 v3, 3, v2
v_lshl_add_u32 v3, v1, 3, v3
v_bfe_u32 v4, v3, 1, 3
v_and_b32 v5, 7, v2
v_xor_b32 v4, v4, v5
v_lshlrev_b32 v4, 4, v4
s_mov_b32 s23, {pitch}
v_mul_lo_u32 v3, v3, s23
v_add_u32 v{vdst}, v3, v4
""")
    for i in range(1, n):
        a(f"v_add_u32 v{vdst+i}, {i*64*pitch}, v{vdst}")


def n_dma_voff(a, vdst, n, pitch, MT):
    lpr = MT * 2 // 16
    rows = 64 // lpr
    sh = lpr.bit_length() - 1
    a(f"""
v_lshrrev_b32 v3, {sh}, v2
v_lshl_add_u32 v3, v1, {rows.bit_length()-1}, v3
v_and_b32 v5, {lpr-1}, v2
v_lshrrev_b32 v6, 2, v5
v_and_b32 v4, 3, v3
v_xor_b32 v6, v6, v4
v_and_b32 v5, 3, v5
v_lshlrev_b32 v5, 4, v5
v_lshl_add_u32 v5, v6, 6, v5
s_mov_b32 s23, {pitch}
v_mul_lo_u32 v3, v3, s23
v_add_u32 v{vdst}, v3, v5
""")
    for i in range(1, n):
        a(f"v_add_u32 v{vdst+i}, {i*8*rows*pitch}, v{vdst}")


def t_read_addr(a, vdst, nu, srow, skg2, base, NS, STAGE, stride):
    a(f"""
v_and_b32 v3, 31, v2
v_bfe_u32 v4, v3, 1, 3
v_lshrrev_b32 v5, 5, v2
v_xor_b32 v4, v4, v5
v_xor_b32 v4, s{skg2}, v4
v_add_u32 v3, s{srow}, v3
v_lshlrev_b32 v3, 7, v3
v_lshl_add_u32 v3, v4, 4, v3
""")
    for st in range(NS):
        for ul in range(nu):
            if ul == 0:
                a(f"v_add_u32 v{vdst+st*stride}, {base+st*STAGE}, v3")
            else:
                a(f"v_xor_b32 v{vdst+st*stride+ul}, {ul*32}, v{vdst+st*stride}")


def n_read_addr(a, vdst, sunit, skrow, LP, base, NS, STAGE, stride, nblk=2):
    a(f"""
v_bfe_u32 v3, v2, 2, 2
v_lshrrev_b32 v4, 5, v2
v_lshl_add_u32 v4, v4, 3, v3
s_mov_b32 s23, {LP}
v_mul_lo_u32 v4, v4, s23
v_add_u32 v4, s{skrow}, v4
v_bfe_u32 v5, v2, 4, 1
v_lshl_add_u32 v4, v5, 5, v4
v_and_b32 v5, 3, v2
v_lshl_add_u32 v4, v5, 3, v4
""")
    for b in range(nblk):
        a(f"""
s_add_u32 s23, s{sunit}, {b}
v_xor_b32 v5, s23, v3
v_lshl_add_u32 v5, v5, 6, v4
""")
        for st in range(NS):
            a(f"v_add_u32 v{vdst+st*stride+b}, {base+st*STAGE}, v5")


def gemm(a, tag, WM, WN, KS, ptype, pP, pR, nsteps, NS, opitch, scale=False, switch=None, touch=None):
    assert WM * WN * KS == 8
    MT, NT = 64 * WM, 64 * WN
    PB, RB = MT * 128, NT * 128
    STAGE = PB + RB
    nu = 4 // KS
    ncP, ncR = PB // 8192, RB // 8192
    wave_setup(a)
    lw = (WM * WN).bit_length() - 1
    lm = WM.bit_length() - 1
    a(f"""
s_lshr_b32 s24, s22, {lw}
s_and_b32 s25, s22, {WM-1}
s_lshr_b32 s26, s22, {lm}
s_and_b32 s26, s26, {WN-1}
""")
    if ptype == 'T':
        t_dma_voff(a, DV, ncP, pP)
    else:
        n_dma_voff(a, DV, ncP, pP, MT)
    t_dma_voff(a, DV + ncP, ncR, pR)
    nP = nu if ptype == 'T' else 2
    stride = nP + nu

    def setup():
        if touch:
            touch[0]() if callable(touch[0]) else a(touch[0])
        a(f"s_mul_i32 s27, s24, {nu*2}")
        if ptype == 'T':
            a(f"s_lshl_b32 s28, s25, 6")
            t_read_addr(a, RA, nu, 28, 27, 0, NS, STAGE, stride)
        else:
            a(f"s_lshl_b32 s28, s25, 1\ns_mul_i32 s29, s24, {nu*16*MT*2}")
            n_read_addr(a, RA, 28, 29, MT * 2, 0, NS, STAGE, stride)
        a(f"s_lshl_b32 s28, s26, 6")
        t_read_addr(a, RA + nP, nu, 28, 27, PB, NS, STAGE, stride)
        for i in range(64):
            a(f"v_mov_b32 v{ACC+i}, 0")

    def dmas(st):
        r = []
        for i in range(ncP):
            r.append([f"s_add_u32 m0, s18, {st*STAGE + i*8192}", "s_nop 0",
                      f"buffer_load_dwordx4 v{DV+i}, s[4:7], s16 offen lds"])
        for i in range(ncR):
            r.append([f"s_add_u32 m0, s18, {st*STAGE + PB + i*8192}", "s_nop 0",
                      f"buffer_load_dwordx4 v{DV+ncP+i}, s[8:11], s17 offen lds"])
        return r

    def reads(st, ul, fs):
        f = FR[fs]
        r = []
        if ptype == 'T':
            for b in range(2):
                r.append(f"ds_read_b128 v[{f+4*b}:{f+4*b+3}], v{RA+st*stride+ul} offset:{b*4096}")
        else:
            for b in range(2):
                for rr in range(2):
                    r.append(f"ds_read_b64_tr_b16 v[{f+4*b+2*rr}:{f+4*b+2*rr+1}], v{RA+st*stride+b} offset:{(16*ul+4*rr)*MT*2}")
        for b in range(2):
            r.append(f"ds_read_b128 v[{f+8+4*b}:{f+8+4*b+3}], v{RA+st*stride+nP+ul} offset:{b*4096}")
        return r

    def mfmas(fs):
        f = FR[fs]
        r = []
        for nb in range(2):
            for mb in range(2):
                c = ACC + 16 * (nb * 2 + mb)
                r.append(f"v_mfma_f32_32x32x16_bf16 v[{c}:{c+15}], v[{f+4*mb}:{f+4*mb+3}], v[{f+8+4*nb}:{f+8+4*nb+3}], v[{c}:{c+15}]")
        return r

    kadv = [f"s_add_u32 s16, s16, {128 if ptype == 'T' else 64*pP}", "s_add_u32 s17, s17, 128"]
    pipeline(a, tag, nsteps, NS, nu, dmas, reads, mfmas, None, kadv, switch, setup=setup, xtra=(touch[1] if touch else 0))

    a("s_nop 15\ns_nop 3")
    blocks = [(nb, mb) for nb in range(2) for mb in range(2)]
    if KS == 2:
        a("s_barrier")
        a(f"""
v_lshlrev_b32 v3, 4, v2
s_lshl_b32 s23, s22, 13
v_add_u32 v3, s23, v3
s_xor_b32 s23, s22, 4
s_lshl_b32 s23, s23, 13
v_lshlrev_b32 v4, 4, v2
v_add_u32 v4, s23, v4
s_cmp_eq_u32 s24, 0
s_cbranch_scc1 L_{tag}_x0
""")
        for j in range(8):
            a(f"ds_write_b128 v3, v[{ACC+4*j}:{ACC+4*j+3}] offset:{j*1024}")
        for j in range(32):
            a(f"v_mov_b32 v{ACC+j}, v{ACC+32+j}")
        a(f"s_branch L_{tag}_x1\nL_{tag}_x0:")
        for j in range(8):
            a(f"ds_write_b128 v3, v[{ACC+32+4*j}:{ACC+32+4*j+3}] offset:{j*1024}")
        a(f"L_{tag}_x1:\ns_waitcnt lgkmcnt(0)\ns_barrier")
        for j in range(8):
            a(f"ds_read_b128 v[{ACC+32+4*j}:{ACC+32+4*j+3}], v4 offset:{j*1024}")
        for j in range(8):
            a(f"s_waitcnt lgkmcnt({7-j})")
            for r in range(4):
                a(f"v_add_f32 v{ACC+4*j+r}, v{ACC+4*j+r}, v{ACC+32+4*j+r}")
        blocks = [(0, 0), (0, 1)]
    a(f"""
s_lshl_b32 s23, s26, 6
v_and_b32 v3, 31, v2
v_add_u32 v3, s23, v3
""")
    if KS == 2:
        a("s_lshl_b32 s23, s24, 5\nv_add_u32 v3, s23, v3")
    a(f"""
s_mov_b32 s23, {opitch}
v_mul_lo_u32 v3, v3, s23
v_lshrrev_b32 v4, 5, v2
v_lshl_add_u32 v3, v4, 4, v3
s_lshl_b32 s23, s25, 7
s_add_u32 s23, s23, s21
v_add_u32 v3, s23, v3
v_add_u32 v4, {32*opitch}, v3
""")
    for bi, (nb, mb) in enumerate(blocks):
        c = ACC + 16 * (nb * 2 + mb)
        t = 16 + 8 * (bi % 4)
        if scale:
            for r in range(16):
                a(f"v_mul_f32 v{c+r}, s20, v{c+r}")
        for r in range(8):
            a(f"v_cvt_pk_bf16_f32 v{t+r}, v{c+2*r}, v{c+2*r+1}")
        a("s_nop 1")
        for p in range(2):
            a(f"v_permlane32_swap_b32 v{t+4*p}, v{t+4*p+2}\nv_permlane32_swap_b32 v{t+4*p+1}, v{t+4*p+3}")
        for p in range(2):
            a(f"buffer_store_dwordx4 v[{t+4*p}:{t+4*p+3}], v{3+nb}, s[12:15], 0 offen offset:{mb*64+p*32}")


def gemm_kv(a, tag, NS=4):
    PB, RB = 8192, 16384
    STAGE = PB + RB
    nu = 4
    a(f"""
v_and_b32 v3, 3, v1
v_lshlrev_b32 v3, 10, v3
v_lshl_add_u32 v{DV}, v2, 4, v3
""")
    t_dma_voff(a, DV + 1, 2, 2048)
    stride = 1 + nu

    def dmas(st):
        r_ = [[f"s_add_u32 m0, s18, {st*STAGE}", "s_nop 0", f"buffer_load_dwordx4 v{DV}, s[4:7], s16 offen lds"]]
        for i in range(2):
            r_.append([f"s_add_u32 m0, s18, {st*STAGE + PB + i*8192}", "s_nop 0",
                       f"buffer_load_dwordx4 v{DV+1+i}, s[8:11], s17 offen lds"])
        return r_

    def setup():
        a(f"""
v_bfe_u32 v3, v2, 2, 2
v_lshrrev_b32 v4, 5, v2
v_lshl_add_u32 v4, v4, 3, v3
v_lshlrev_b32 v4, 6, v4
v_bfe_u32 v5, v2, 4, 1
v_lshl_add_u32 v4, v5, 5, v4
v_and_b32 v5, 3, v2
v_lshl_add_u32 v4, v5, 3, v4
v_lshrrev_b32 v5, 2, v1
v_lshl_add_u32 v4, v5, 12, v4
""")
        for st in range(NS):
            a(f"v_add_u32 v{RA+st*stride}, {st*STAGE}, v4")
        a("s_mov_b32 s27, 0\ns_and_b32 s28, s22, 3\ns_lshl_b32 s28, s28, 5")
        t_read_addr(a, RA + 1, nu, 28, 27, PB, NS, STAGE, stride)
        for i in range(16):
            a(f"v_mov_b32 v{ACC+i}, 0")

    def reads(st, ul, fs):
        f = FR[fs]
        r_ = []
        for rr in range(2):
            r_.append(f"ds_read_b64_tr_b16 v[{f+2*rr}:{f+2*rr+1}], v{RA+st*stride} offset:{(16*ul+4*rr)*64}")
        r_.append(f"ds_read_b128 v[{f+8}:{f+11}], v{RA+st*stride+1+ul}")
        return r_

    kadv = ["s_add_u32 s16, s16, 4096", "s_add_u32 s17, s17, 128"]
    a(f"s_cmp_ge_u32 s22, 4\ns_cbranch_scc1 L_{tag}_v")
    for kv in range(2):
        if kv:
            a(f"L_{tag}_v:")

        def mfmas(fs):
            f = FR[fs]
            if kv == 0:
                return ["s_nop 0", f"v_mfma_f32_32x32x16_bf16 v[{ACC}:{ACC+15}], v[{f}:{f+3}], v[{f+8}:{f+11}], v[{ACC}:{ACC+15}]"]
            return ["s_nop 0", f"v_mfma_f32_32x32x16_bf16 v[{ACC}:{ACC+15}], v[{f+8}:{f+11}], v[{f}:{f+3}], v[{ACC}:{ACC+15}]"]

        pipeline(a, tag, 16, NS, nu, dmas, reads, mfmas, None, kadv, setup=setup)
        a("s_nop 15\ns_nop 3")
        a(f"""
s_and_b32 s23, s22, 3
s_add_u32 s23, s21, s23
s_lshl_b32 s23, s23, 12
v_lshlrev_b32 v3, 4, v2
v_add_u32 v3, s23, v3
v_add_u32 v3, {WS_KF + 2048*kv}, v3
""")
        for r_ in range(8):
            a(f"v_cvt_pk_bf16_f32 v{16+r_}, v{ACC+2*r_}, v{ACC+2*r_+1}")
        for p in range(2):
            a(f"buffer_store_dwordx4 v[{16+4*p}:{16+4*p+3}], v3, s[12:15], 0 offen offset:{p*1024}")
        if kv == 0:
            tl(a, 5, True)
            a("s_endpgm")


def kernel_header(a, name):
    a.lines.append(f".globl {name}\n.p2align 8\n.type {name},@function\n{name}:")


def kernel_desc(name, vgpr, sgpr=100):
    return f""".amdhsa_kernel {name}
  .amdhsa_next_free_vgpr {vgpr}
  .amdhsa_next_free_sgpr {sgpr}
  .amdhsa_accum_offset {(vgpr+3)//4*4}
  .amdhsa_group_segment_fixed_size 0
  .amdhsa_kernarg_size 104
  .amdhsa_user_sgpr_count 2
  .amdhsa_user_sgpr_kernarg_segment_ptr 1
  .amdhsa_system_sgpr_workgroup_id_x 1
.end_amdhsa_kernel
"""


WS_BYTES = 40 << 20


def g4(a):
    a("""
s_and_b32 s50, s30, 1
s_lshl_b32 s50, s50, 2
s_and_b32 s51, s31, 3
s_add_u32 s50, s50, s51
s_lshr_b32 s51, s30, 1
s_lshl_b32 s51, s51, 2
s_lshr_b32 s52, s31, 2
s_add_u32 s51, s51, s52
""")
    if os.environ.get('SAMETILE') == '1':
        a("s_mov_b32 s50, 0\ns_mov_b32 s51, 0")
    if os.environ.get('SAMETILE') == '2':
        a("s_and_b32 s50, s30, 7\ns_mov_b32 s51, s30")
    if os.environ.get('SAMETILE') == '3':
        a("s_and_b32 s50, s2, 7\ns_lshr_b32 s51, s2, 3")
    srd(a, 4, 48, 49, 2048 * 4096, WS_AB)
    srd(a, 8, 32, 33, 2048 * 4096)
    srd(a, 12, 36, 37, 2048 * 4096)
    a("""
s_lshl_b32 s16, s50, 19
s_lshl_b32 s17, s51, 19
s_lshl_b32 s21, s50, 8
s_add_u32 s21, s21, s17
s_add_u32 s21, s21, 2048
s_add_u32 s53, s17, 4096
""")
    sw = f"""
s_mov_b32 s8, s34
s_mov_b32 s9, s35
s_sub_u32 s17, s17, 4096
s_add_u32 s16, s16, {1024*4096 - 4096}
s_mov_b32 s53, -1
"""
    uid = [0]

    class Dyn(str):
        pass
    dyn = f"""
s_cmp_eq_u32 s17, s53
s_cselect_b32 s8, s34, s8
s_cselect_b32 s9, s35, s9
s_cselect_b32 s23, 4096, 0
s_cselect_b32 s54, {1024*4096 - 4096}, 0
s_cselect_b32 s53, -1, s53
s_sub_u32 s17, s17, s23
s_add_u32 s16, s16, s54
"""
    gemm(a, "g4", 2, 2, 2, 'T', 4096, 4096, 64, 4, 4096, switch=(32, sw, dyn))


TPS = 8
ASTAGE = TPS * 4096
ANS = 3
NSTG = 64 // TPS
Q0, KF_, VF_, P_, ONES, LA, LB, NEGM, SX, SY, OA, OB = 16, 32, 40, 48, 56, 60, 64, 72, 88, 104, 120, 136
ST, KT, VT, PT = 152, 168, 176, 184
THR1 = 2.0 ** int(os.environ.get('THR1', '60'))
THR2 = 2.0 ** 120
MARGIN = int(os.environ.get('MARGIN', '60'))


def r(b, n):
    return f"v[{b}:{b+n-1}]"


def mf32(d, a_, b_, c):
    return f"v_mfma_f32_32x32x16_bf16 {r(d,16)}, {r(a_,4)}, {r(b_,4)}, {r(c,16) if isinstance(c,int) else c}"


def mf16(d, a_, b_, c):
    return f"v_mfma_f32_16x16x32_bf16 {r(d,4)}, {r(a_,4)}, {r(b_,4)}, {r(c,4)}"


def attn_dma(a, i):
    a(f"s_add_u32 m0, s17, {i*8192}\ns_nop 0\nbuffer_load_dwordx4 v{12+i}, s[12:15], s16 offen lds")


def attn_dma_adv(a):
    a(f"""
s_add_u32 s16, s16, {ASTAGE}
s_add_u32 s17, s17, {ASTAGE}
s_sub_u32 s30, s17, {ANS*ASTAGE}
s_cmp_ge_u32 s17, {ANS*ASTAGE}
s_cselect_b32 s17, s30, s17
""")


def cap(fn, *args):
    t = Asm()
    fn(t, *args)
    return [l.strip() for l in t.lines]


def attn_tile(a, g, tt, X, Y, Oc, Od, lc, ld, H, nx):
    cur, nxt = (g % ANS) * ASTAGE, ((g + 1) % ANS) * ASTAGE

    def rd(dst, t2, part):
        if g == NSTG - 1 and t2 >= TPS:
            t2 = TPS - 1
        base = cur if t2 < TPS else nxt
        off = base + (t2 % TPS) * 4096 + part * 1024
        a(f"ds_read_b128 {r(dst,4)}, v{10 + off // 65536} offset:{off % 65536}")
    last = (tt == TPS - 1)
    E = lambda i: a(f"v_exp_f32 v{X+i}, v{X+i}")
    C = lambda i: a(f"v_cvt_pk_bf16_f32 v{P_+i}, v{X+2*i}, v{X+2*i+1}")

    def hook(k):
        for ins in H.get(k, []):
            a(ins)
    hook('pre')
    a(f"s_waitcnt lgkmcnt({2 + nx})")
    a(mf32(Y, KF_, Q0, NEGM))
    for i in range(4): E(i)
    a("s_waitcnt lgkmcnt(0)")
    hook(0)
    if tt > 0:
        a(mf32(Od, VF_ + 4, P_ + 4, Od))
    if last:
        rd(VF_ + 4, tt, 3)
    for i in range(4, 6): E(i)
    hook('m0')
    for i in range(6, 8): E(i)
    hook(1)
    if tt > 0:
        a(mf16(ld, ONES, P_ + 4, ld))
    for i in range(4): C(i)
    a(mf32(Y, KF_ + 4, Q0 + 4, Y))
    hook(2)
    rd(KF_, tt + 2, 0)
    rd(KF_ + 4, tt + 2, 1)
    for i in range(8, 10): E(i)
    hook('m1')
    for i in range(10, 12): E(i)
    a(mf32(Od, VF_, P_, Oc))
    if not last:
        rd(VF_ + 4, tt, 3)
    rd(VF_, tt + 1, 2)
    for i in range(12, 14): E(i)
    hook('m2')
    for i in range(14, 16): E(i)
    hook(3)
    a(mf16(ld, ONES, P_, lc))
    hook('end')
    for i in range(4, 8): C(i)
    hook('m3')
    if last:
        assert not H.get('end')
        a("s_waitcnt lgkmcnt(3)\ns_nop 0")
        a(mf32(Od, VF_ + 4, P_ + 4, Od))
        a(mf16(ld, ONES, P_ + 4, ld))


def attn_slow(a, tag, Oold, Onew, lold, lnew, Snext, sbase):
    a(f"L_{tag}_slow:")
    a("s_nop 15")
    a(f"v_cmp_nlt_f32 vcc, v{lnew}, s29\ns_nop 4\ns_cbranch_vccnz L_{tag}_heavy")
    a(f"""
v_frexp_exp_i32_f32 v3, v{lnew}
v_add_u32 v3, {MARGIN}, v3
v_cvt_f32_i32 v4, v3
v_sub_u32 v3, 0, v3
""")
    for i in range(16): a(f"v_ldexp_f32 v{Onew+i}, v{Onew+i}, v3")
    for i in range(4): a(f"v_ldexp_f32 v{lnew+i}, v{lnew+i}, v3")
    for i in range(16): a(f"v_sub_f32 v{NEGM+i}, v{NEGM+i}, v4")
    for i in range(16): a(f"v_sub_f32 v{Snext+i}, v{Snext+i}, v4")
    a(f"s_nop 1\ns_branch L_{tag}_ret")
    a(f"L_{tag}_heavy:")
    a(f"s_waitcnt lgkmcnt(0)\nv_log_f32 v5, v{lold}\nv_add_u32 v6, {sbase}, v10\ns_mov_b32 s30, 0")
    a(f"L_{tag}_h1:")
    a(f"ds_read_b128 {r(KT,4)}, v6\nds_read_b128 {r(KT+4,4)}, v6 offset:1024\ns_waitcnt lgkmcnt(0)")
    a(mf32(ST, KT, Q0, NEGM)); a(mf32(ST, KT + 4, Q0 + 4, ST))
    a("s_nop 15")
    for i in range(8): a(f"v_max3_f32 v5, v{ST+2*i}, v{ST+2*i+1}, v5")
    a(f"v_add_u32 v6, 4096, v6\ns_add_u32 s30, s30, 1\ns_cmp_lt_u32 s30, {TPS}\ns_cbranch_scc1 L_{tag}_h1")
    a(f"""
v_mov_b32 v6, v5
s_nop 1
v_permlane32_swap_b32 v5, v6
s_nop 1
v_max_f32 v5, v5, v6
v_ceil_f32 v4, v5
v_add_f32 v4, {f32bits(float(MARGIN))}, v4
v_cvt_i32_f32 v3, v4
v_sub_u32 v3, 0, v3
""")
    for i in range(16): a(f"v_ldexp_f32 v{Onew+i}, v{Oold+i}, v3")
    for i in range(4): a(f"v_ldexp_f32 v{lnew+i}, v{lold+i}, v3")
    for i in range(16): a(f"v_sub_f32 v{NEGM+i}, v{NEGM+i}, v4")
    for i in range(16): a(f"v_sub_f32 v{Snext+i}, v{Snext+i}, v4")
    a(f"v_add_u32 v6, {sbase}, v10\ns_mov_b32 s30, 0")
    a(f"L_{tag}_h2:")
    a(f"ds_read_b128 {r(KT,4)}, v6\nds_read_b128 {r(KT+4,4)}, v6 offset:1024\nds_read_b128 {r(VT,4)}, v6 offset:2048\nds_read_b128 {r(VT+4,4)}, v6 offset:3072\ns_waitcnt lgkmcnt(0)")
    a(mf32(ST, KT, Q0, NEGM)); a(mf32(ST, KT + 4, Q0 + 4, ST))
    a("s_nop 15")
    for i in range(16): a(f"v_exp_f32 v{ST+i}, v{ST+i}")
    a("s_nop 0")
    for i in range(8): a(f"v_cvt_pk_bf16_f32 v{PT+i}, v{ST+2*i}, v{ST+2*i+1}")
    a("s_nop 1")
    a(mf32(Onew, VT, PT, Onew)); a(mf32(Onew, VT + 4, PT + 4, Onew))
    a(mf16(lnew, ONES, PT, lnew)); a(mf16(lnew, ONES, PT + 4, lnew))
    a(f"v_add_u32 v6, 4096, v6\ns_add_u32 s30, s30, 1\ns_cmp_lt_u32 s30, {TPS}\ns_cbranch_scc1 L_{tag}_h2")
    a(f"s_nop 7\ns_branch L_{tag}_ret")


def poll_issue(a, vreg, kv):
    if kv:
        a(f"v_and_b32 v3, 31, v2\nv_lshlrev_b32 v3, 2, v3\nbuffer_load_dword v{vreg}, v3, s[12:15], s65 offen sc1")
    else:
        a(f"v_mov_b32 v3, 0\nbuffer_load_dword v{vreg}, v3, s[12:15], s65 offen offset:128 sc1")


def poll(a, tag, vreg, kv, pre=True):
    a(f"s_mov_b32 s19, 0\ns_mov_b32 s31, 0x01010101")
    if pre:
        a(f"s_branch L_{tag}_chk")
    a(f"L_{tag}_spin:\ns_sleep 1")
    poll_issue(a, vreg, kv)
    a(f"""
s_add_u32 s19, s19, 1
s_cmp_gt_u32 s19, 0x100000
s_cbranch_scc1 L_{tag}_ok
s_waitcnt vmcnt(0)
L_{tag}_chk:
v_cmp_ne_u32 vcc, s31, v{vreg}
s_nop 4
s_cbranch_vccnz L_{tag}_spin
L_{tag}_ok:
""")


N0 = int(os.environ.get('N0', '12'))
TS = eval(os.environ.get('TS', '[-1,-1,0,0,2,2, 8,8,10,10,12,12,99,99]'))


def touch_j(a, j):
    if j < 6:
        sr, vo, so, inc = ((44, 252, 100, 512), (36, 253, 101, 256 * 2048))[j % 2]
    else:
        sr, vo, so, inc = ((8, 252, 54, 512), (80, 254, 55, 512))[j % 2]
    a(f"buffer_load_dword v249, v{vo}, s[{sr}:{sr+3}], s{so} offen\ns_add_u32 s{so}, s{so}, {inc}")


def q_gemm(a, setup_hook, role):
    NS = int(os.environ.get('QNS', '4'))
    STAGE = 28672
    F = [88, 104]
    F2 = [32, 40]
    D_, R_ = 152, 156
    AC, AC2 = OA, NEGM
    SV = 248
    NB = [0]
    stride = 5

    def dmas(st):
        if role == 'F':
            return []
        return [[f"s_add_u32 m0, s20, {st*STAGE + i*1024}", "s_nop 0", f"buffer_load_dwordx4 v{D_+i}, s[96:99], s16 offen lds"] for i in range(4)]

    def setup():
        setup_hook(role)
        a(f"""
v_bfe_u32 v3, v2, 2, 2
v_lshrrev_b32 v4, 5, v2
v_lshl_add_u32 v4, v4, 3, v3
v_bfe_u32 v5, v2, 4, 1
v_and_b32 v6, 3, v2
v_lshlrev_b32 v6, 3, v6
v_lshl_add_u32 v6, v5, 5, v6
v_lshl_add_u32 v7, v4, 6, v6
v_lshl_add_u32 v4, v4, 7, v6
v_lshrrev_b32 v3, 1, v3
v_lshrrev_b32 v5, 2, v1
v_xor_b32 v3, v3, v5
v_lshl_add_u32 v4, v3, 6, v4
v_add_u32 v{R_+25}, 24576, v7
v_add_u32 v{R_+26}, {24576+2*STAGE}, v7
v_add_u32 v{R_+27}, {24576+4*STAGE}, v7
""")
        for st in range(NS):
            a(f"v_add_u32 v{R_+st*stride}, {st*STAGE}, v4")
        a("s_mov_b32 s27, 0\ns_and_b32 s25, s22, 3\ns_lshl_b32 s25, s25, 5")
        t_read_addr(a, R_ + 1, 4, 25, 27, 8192, NS, STAGE, stride)
        for i in range(16):
            a(f"v_mov_b32 v{AC+i}, 0")
        if role in ('PK', 'PV'):
            for i in range(16):
                a(f"v_mov_b32 v{AC2+i}, 0")

    def reads(st, ul, fs):
        f = F[fs]
        r_ = []
        for q in range(2):
            u = 2 * ul + q
            for rr in range(2):
                r_.append(f"ds_read_b64_tr_b16 v[{f+4*q+2*rr}:{f+4*q+2*rr+1}], v{R_+st*stride} offset:{(16*u+4*rr)*128}")
            r_.append(f"ds_read_b128 v[{f+8+4*q}:{f+11+4*q}], v{R_+st*stride+1+u}")
            if role in ('PK', 'PV'):
                g = F2[fs]
                for rr in range(2):
                    r_.append(f"ds_read_b64_tr_b16 v[{g+4*q+2*rr}:{g+4*q+2*rr+1}], v{R_+25+st//2} offset:{(st%2)*STAGE+(16*u+4*rr)*64}")
        return r_

    def mfmas(fs):
        f, g = F[fs], F2[fs]
        r_ = []
        for q in range(2):
            r_.append(f"v_mfma_f32_32x32x16_bf16 v[{AC}:{AC+15}], v[{f+4*q}:{f+4*q+3}], v[{f+8+4*q}:{f+11+4*q}], v[{AC}:{AC+15}]")
            if role == 'PK':
                r_.append(f"v_mfma_f32_32x32x16_bf16 v[{AC2}:{AC2+15}], v[{g+4*q}:{g+4*q+3}], v[{f+8+4*q}:{f+11+4*q}], v[{AC2}:{AC2+15}]")
            if role == 'PV':
                r_.append(f"v_mfma_f32_32x32x16_bf16 v[{AC2}:{AC2+15}], v[{f+8+4*q}:{f+11+4*q}], v[{g+4*q}:{g+4*q+3}], v[{AC2}:{AC2+15}]")
        return r_

    kadv = ["s_add_u32 s16, s16, s17"]

    def ev_sig():
        a(f"""
s_cmp_lg_u32 s64, 0
s_cbranch_scc1 L_qsig
v_mov_b32 v3, 0
v_mov_b32 v4, 1
s_waitcnt vmcnt({1 + sum(1 for t in TS if t < 1)})
s_mov_b64 exec, 1
global_atomic_add v{SV}, v3, v4, s[90:91] sc0 sc1
s_mov_b64 exec, -1
L_qsig:
""")

    def ev_touch(js, first):
        a(f"s_cmp_lg_u32 s22, 7\ns_cbranch_scc1 L_qt{js[0]}")
        for j in js:
            touch_j(a, j)
        a(f"L_qt{js[0]}:")

    def ev_bcast():
        a(f"""
s_cmp_lg_u32 s64, 0
s_cbranch_scc1 L_qbc
s_waitcnt vmcnt({NB[0]})
v_readfirstlane_b32 s23, v{SV}
v_lshlrev_b32 v3, 8, v2
v_mov_b32 v4, 0x01010101
s_nop 1
s_cmp_lg_u32 s23, 63
s_cbranch_scc1 L_qbc
s_mov_b32 s23, {WS_SY}
buffer_store_dword v4, v3, s[12:15], s23 offen offset:128 sc1
L_qbc:
""")
    ev, ex = {}, {}
    if role == 'F':
        BCS = int(os.environ.get('BCS', '5'))
        NB[0] = sum(1 for t in TS if 1 <= t < BCS)
        acts = {1: [ev_sig], BCS: [ev_bcast]}
        st_ = sorted(set(t for t in TS if 0 <= t < 16))
        for t in st_:
            js = [j for j in range(14) if TS[j] == t]
            acts.setdefault(t, []).append(lambda js=js, t=t: ev_touch(js, t == st_[0]))
        ev = {t: (lambda l=l: [f() for f in l]) for t, l in acts.items()}
    if role in ('PK', 'PV'):
        ev, ex = {13: lambda: poll_issue(a, D_, False)}, {13: 1}
    p0 = s1_gemm(a, 'prol0')
    E0 = int(os.environ.get('E0', '11'))
    if role in ('D', 'F'):
        for k_ in range(2):
            ev[E0 + k_] = (lambda k_=k_, f0=ev.get(E0 + k_): ((f0() if f0 else None), [a(l) for l in p0[k_]]))
            ex[E0 + k_] = 3
    pipeline(a, "qg", 16, NS, 2, dmas, reads, mfmas, None, kadv, setup=setup, events=ev, extras=ex, novm=(role == 'F'))
    a(f"s_mov_b32 s23, {f32bits(QSCALE)}\ns_nop 11")
    if role in ('PK', 'PV'):
        for i in range(8):
            a(f"v_cvt_pk_bf16_f32 v{F[0]+i}, v{AC2+2*i}, v{AC2+2*i+1}")
        a(f"v_add_u32 v3, s24, v9")
        for p in range(2):
            a(f"buffer_store_dwordx4 v[{F[0]+4*p}:{F[0]+4*p+3}], v3, s[12:15], 0 offen offset:{p*1024 + (2048 if role == 'PV' else 0)} sc1")
    for i in range(16):
        a(f"v_mul_f32 v{AC+i}, s23, v{AC+i}")
    for i in range(8):
        a(f"v_cvt_pk_bf16_f32 v{Q0+i}, v{AC+2*i}, v{AC+2*i+1}")
    if role in ('PK', 'PV'):
        a("s_waitcnt vmcnt(2)")
        poll(a, f"pp{role}", D_, False)
        a("s_mov_b32 s75, 1")
        for k_ in range(2):
            for l in p0[k_]: a(l)


def side_jobs(a, role):
    T = 88
    a(f"""
v_lshlrev_b32 v6, 5, v2
s_cmp_ge_u32 s22, 4
s_cbranch_scc1 L_sj_emv{role}
s_lshl_b32 s64, s2, 2
s_add_u32 s64, s64, s22
s_sub_u32 s31, 2048, s64
s_lshl_b32 s23, s64, 11
s_lshl_b32 s31, s31, 11
s_mov_b32 s19, {512*2048}
buffer_load_dwordx4 v[{T}:{T+3}], v6, s[80:83], s23 offen
buffer_load_dwordx4 v[{T+4}:{T+7}], v6, s[80:83], s23 offen offset:16
buffer_load_dwordx4 v[{T+8}:{T+11}], v6, s[80:83], s31 offen
buffer_load_dwordx4 v[{T+12}:{T+15}], v6, s[80:83], s31 offen offset:16
buffer_load_dwordx4 v[{T+16}:{T+19}], v6, s[84:87], s19 offen
buffer_load_dwordx4 v[{T+20}:{T+23}], v6, s[84:87], s19 offen offset:16
s_branch L_sj_1{role}
L_sj_emv{role}:
s_lshl_b32 s64, s2, 1
s_add_u32 s64, s64, s22
s_sub_u32 s64, s64, 4
s_cmp_ge_u32 s22, 6
s_cselect_b32 s64, 0x10000, s64
s_lshl_b32 s31, s2, 3
s_add_u32 s31, s31, s22
s_cmp_eq_u32 s31, 6
s_cselect_b32 s64, 512, s64
s_lshl_b32 s23, s64, 11
s_mov_b32 s19, {1024*2048}
buffer_load_dwordx4 v[{T}:{T+3}], v6, s[84:87], s23 offen
buffer_load_dwordx4 v[{T+4}:{T+7}], v6, s[84:87], s23 offen offset:16
buffer_load_dwordx4 v[{T+16}:{T+19}], v6, s[80:83], s19 offen
buffer_load_dwordx4 v[{T+20}:{T+23}], v6, s[80:83], s19 offen offset:16
L_sj_1{role}:
""")


def side_jobs2(a, role):
    T = 88
    a(f"""
v_lshlrev_b32 v6, 5, v2
v_mov_b32 v7, 0
s_cmp_ge_u32 s22, 4
s_cbranch_scc1 L_sj_emv2{role}
""")
    for j in range(16):
        a(f"v_dot2c_f32_bf16 v7, v{T+j}, v{T+16+j%8}")
    a("s_nop 3")
    wave_sum(a, 7, 3)
    a(f"""
v_cvt_pk_bf16_f32 v7, v7, v7
s_lshl_b32 s23, s64, 1
s_add_u32 s23, s23, {WS_AT + 512*ATP}
v_mov_b32 v4, 0
s_mov_b64 exec, 1
buffer_store_short v7, v4, s[12:15], s23 offen
s_mov_b64 exec, -1
s_branch L_sj_done{role}
L_sj_emv2{role}:
s_cmp_gt_u32 s64, 512
s_cbranch_scc1 L_sj_done{role}
""")
    for j in range(8):
        a(f"v_dot2c_f32_bf16 v7, v{T+j}, v{T+16+j}")
    a("s_nop 3")
    wave_sum(a, 7, 3)
    a(f"""
v_mov_b32 v5, 0
v_cvt_pk_bf16_f32 v7, v7, v5
v_cmp_eq_u32 vcc, 0, v2
s_mul_i32 s23, s64, {ATP}
s_add_u32 s31, s23, {WS_BT + 2048}
s_add_u32 s23, s23, {WS_AT + 2048}
v_cndmask_b32 v7, v5, v7, vcc
v_lshlrev_b32 v4, 2, v2
s_mov_b32 exec_hi, 0
buffer_store_dword v7, v4, s[12:15], s23 offen
buffer_store_dword v5, v4, s[12:15], s31 offen
s_mov_b64 exec, -1
L_sj_done{role}:
""")


def kv_dma(a, g, i):
    a(f"s_add_u32 m0, s18, {(g % ANS)*ASTAGE + i*8192}\ns_mov_b32 s19, {g*ASTAGE}\nbuffer_load_dwordx4 v{12+i}, s[12:15], s19 offen lds")


def attention(a, tag, endlabel):
    def hook(role):
        if role == 'F':
            a(f"""
v_mov_b32 v248, 0
s_lshr_b32 s23, s2, 3
s_lshl_b32 s30, s23, 15
s_and_b32 s31, s2, 3
s_lshl_b32 s31, s31, 20
s_add_u32 s30, s30, s31
s_add_u32 s30, s30, 512
v_lshlrev_b32 v251, 7, v2
v_lshrrev_b32 v4, 2, v2
v_and_b32 v5, 3, v2
v_lshlrev_b32 v5, 7, v5
v_lshl_add_u32 v252, v4, 11, v5
v_lshrrev_b32 v4, 3, v2
v_and_b32 v5, 7, v2
v_lshlrev_b32 v5, 7, v5
v_lshl_add_u32 v253, v4, 11, v5
s_lshl_b32 s31, s23, 14
s_and_b32 s23, s2, 4
s_lshl_b32 s23, s23, 8
s_add_u32 s31, s31, s23
s_add_u32 s31, s31, {256*2048}
s_mov_b32 s100, s30
s_mov_b32 s101, s31
s_cmp_lg_u32 s22, 7
s_cbranch_scc1 L_not7
s_cmp_lg_u32 s64, 0
s_cbranch_scc1 L_noclr
v_lshlrev_b32 v3, 2, v2
buffer_store_dword v248, v3, s[12:15], s65 offen sc1
L_noclr:
s_lshr_b32 s23, s2, 3
s_and_b32 s23, s23, 7
s_lshl_b32 s23, s23, 13
buffer_load_dword v249, v251, s[96:99], s23 offen
""")
            for j in range(14):
                if TS[j] < 0:
                    touch_j(a, j)
            a(f"""
L_not7:
""")
        a(f"""
v_lshlrev_b32 v9, 4, v2
v_lshl_add_u32 v12, v1, 10, v9
v_add_u32 v12, {WS_KF}, v12
v_add_u32 v13, 8192, v12
v_add_u32 v14, 16384, v12
v_add_u32 v15, 24576, v12
""")
        stage1_setup(a)
        a(f"""
s_lshr_b32 s23, s2, 3
s_and_b32 s54, s23, 15
s_lshl_b32 s54, s54, 15
s_and_b32 s55, s2, 4
s_lshl_b32 s55, s55, 17
s_add_u32 s54, s54, s55
s_and_b32 s55, s2, 3
s_lshl_b32 s55, s55, 19
s_lshl_b32 s23, s23, 14
s_add_u32 s55, s55, s23
s_sub_u32 s56, {(2048*2048 + 2048) - 32768}, s55
v_lshrrev_b32 v4, 2, v2
v_and_b32 v5, 3, v2
v_lshlrev_b32 v5, 7, v5
v_lshl_add_u32 v252, v4, 11, v5
v_mov_b32 v4, s55
v_mov_b32 v5, s56
v_cmp_gt_u32 vcc, 32, v2
s_mov_b32 s55, 0
v_cndmask_b32 v4, v5, v4, vcc
v_add_u32 v254, v4, v252
""")
        a(f"""
v_and_b32 v5, 31, v2
v_and_b32 v4, 3, v1
v_lshl_add_u32 v4, v4, 5, v5
v_lshrrev_b32 v5, 5, v2
v_lshlrev_b32 v5, 4, v5
v_lshl_add_u32 v8, v4, 11, v5
v_lshrrev_b32 v5, 2, v1
v_lshl_add_u32 v8, v5, 6, v8
s_mov_b32 s28, {f32bits(THR1)}
s_mov_b32 s29, {f32bits(THR2)}
v_mov_b32 v10, v9
v_add_u32 v11, 65536, v9
""")
        verify_setup(a)
        a(f"""
v_lshrrev_b32 v4, 2, v2
v_lshrrev_b32 v5, 4, v2
v_xor_b32 v4, v4, v5
v_and_b32 v4, 1, v4
v_cmp_eq_u32 vcc, 0, v4
v_mov_b32 v5, 0x3f803f80
s_nop 1
v_cndmask_b32 v{ONES}, 0, v5, vcc
v_mov_b32 v{ONES+1}, v{ONES}
v_mov_b32 v{ONES+2}, v{ONES}
v_mov_b32 v{ONES+3}, v{ONES}
""")
        for i in range(16): a(f"v_mov_b32 v{OB+i}, 0")
        for i in range(4): a(f"v_mov_b32 v{LB+i}, 0")
        a(f"v_mov_b32 v{VMAX}, 0")
    a(f"""
s_cmp_ge_u32 s55, 8
s_cselect_b32 s23, 6, 7
s_cmp_ge_u32 s22, s23
s_cbranch_scc1 L_qg_F
s_cmp_ge_u32 s55, 8
s_cbranch_scc1 L_qg_D
s_and_b32 s23, s55, 3
s_cmp_lg_u32 s22, s23
s_cbranch_scc1 L_qg_D
s_cmp_ge_u32 s55, 4
s_cbranch_scc1 L_qg_PV
""")
    for role in ('PK', 'PV', 'F', 'D'):
        a(f"L_qg_{role}:")
        q_gemm(a, hook, role)
        if role != 'D':
            a("s_branch L_qg_done")
    a("L_qg_done:")
    tl(a, 3)
    a("s_barrier")
    s1_gemm(a, 0)
    a("s_waitcnt vmcnt(4)\ns_barrier")
    a(f"ds_read_b128 {r(KF_,4)}, v10\nds_read_b128 {r(KF_+4,4)}, v10 offset:1024")
    a("s_waitcnt lgkmcnt(0)")
    a(mf32(SX, KF_, Q0, "0")); a(mf32(SX, KF_ + 4, Q0 + 4, SX))
    a(f"ds_read_b128 {r(KF_,4)}, v10 offset:4096\nds_read_b128 {r(KF_+4,4)}, v10 offset:{4096+1024}")
    a(f"ds_read_b128 {r(VF_+4,4)}, v10 offset:3072\nds_read_b128 {r(VF_,4)}, v10 offset:2048")
    a("s_nop 11")
    a(f"v_max3_f32 v5, v{SX}, v{SX+1}, v{SX+2}")
    for i in range(6): a(f"v_max3_f32 v5, v{SX+3+2*i}, v{SX+4+2*i}, v5")
    a(f"""
v_max_f32 v5, v{SX+15}, v5
v_mov_b32 v6, v5
s_nop 1
v_permlane32_swap_b32 v5, v6
s_nop 1
v_max_f32 v5, v5, v6
v_add_f32 v5, {f32bits(float(MARGIN))}, v5
""")
    for i in range(16): a(f"v_sub_f32 v{NEGM+i}, 0, v5")
    for i in range(16): a(f"v_sub_f32 v{SX+i}, v{SX+i}, v5")
    tl(a, 4)
    stamp_begin(a)

    HK = {}

    def add(g, tt, slot, lines):
        HK.setdefault((g, tt), {}).setdefault(slot, []).extend(lines)
    BT_ = TPS - 2
    for g in range(NSTG):
        add(g, BT_, 'pre', ["s_waitcnt vmcnt(0)" + (" lgkmcnt(0)" if g == NSTG - 1 else ""), "s_barrier"])
        if g + 2 < NSTG:
            for i in range(4): add(g, BT_, i, cap(kv_dma, g + 2, i))
    for st, ls in enumerate(s1_gemm(a, 'prol')):
        add(7, 1 + st, 0, ls)
    ng = (16 - N0 + 3) // 4
    add(int(os.environ.get("TG", "5")), 7, 3, f"""s_and_b32 s23, s22, {ng-1 if ng in (1, 2, 4) else 3}
s_lshl_b32 s23, s23, 9
s_add_u32 s23, s23, {(4-ng)*512}
s_and_b32 s30, s54, 0xfffff000
s_add_u32 s30, s30, s23
buffer_load_dword v249, v252, s[8:11], s30 offen
buffer_load_dword v249, v254, s[80:83], s23 offen""".split("\n"))
    if os.environ.get('NOVER'):
        add(int(os.environ.get("CG", "4")), 7, 2, f"""v_lshlrev_b32 v3, 7, v2
v_mov_b32 v4, 0x7ffffff0
v_cmp_gt_u32 vcc, 17, v2
s_nop 1
v_cndmask_b32 v3, v4, v3, vcc
buffer_load_dword v{VB}, v3, s[76:79], s61 offen""".split("\n"))
    def vchk(g, loads, AM):
        for i, ld_ in enumerate(loads):
            if os.environ.get('NOVER'): continue
            add(*((0, 0) if g == 0 else (g - 1, 7)), i, ld_)
            add(g, BT_, i, [f"v_mfma_f32_16x16x32_bf16 {r(VB+12+4*i,4)}, {r(AM,4)}, {r(VB+4*i,4)}, 0"])
            add(g, TPS - 1, i, [f"v_max3_f32 v{VMAX}, |v{VB+12+4*i}|, |v{VB+13+4*i}|, v{VMAX}", f"v_max3_f32 v{VMAX}, |v{VB+14+4*i}|, |v{VB+15+4*i}|, v{VMAX}"])
    ldn = lambda i, off: [f"buffer_load_dwordx4 v[{VB+4*i}:{VB+4*i+3}], v{VAD}, s[76:79], 0 offen offset:{off}"]
    vchk(0, [ldn(0, 0)], AMN)
    vchk(1, [ldn(0, 512), ldn(1, 1024), ldn(2, 1536)], AMN)
    vchk(2, [ldn(0, 2048), ldn(1, 2560)], AMN)
    vchk(3, [ldn(0, 3072), ldn(1, 3584)], AMN)
    add(3, 7, 'pre', cap(verify_w_switch))
    vchk(4, [[f"buffer_load_dwordx4 v[{VB+4*i}:{VB+4*i+3}], v{VAD}, s[84:87], s63 offen offset:{i*512}"] for i in range(2)]
         + [[f"buffer_load_dwordx4 v[{VB+8}:{VB+11}], v7, s[76:79], 0 offen"]], AMN)
    add(4, 7, 'pre', cap(verify_r_switch))
    ldr = lambda i: [f"buffer_load_dwordx4 v[{VB+4*i}:{VB+4*i+3}], v{VRV}, s[76:79], 0 offen", f"v_add_u32 v{VRV}, v{VRV}, v{VAD}"]
    vchk(5, [ldr(0), ldr(1), [f"buffer_load_dwordx4 v[{VB+8}:{VB+11}], v7, s[76:79], 0 offen"]], AMR)
    vchk(6, [ldr(0), ldr(1)], AMR)
    add(7, 0, 'pre', f"""
s_mov_b32 s23, {f32bits(VTOL)}
v_cmp_nle_f32 vcc, v{VMAX}, s23
s_lshl_b32 s30, s58, 2
s_add_u32 s30, s30, {WS_FLAG}
v_mov_b32 v4, 0
s_cmp_lg_u64 vcc, 0
s_cselect_b32 s23, 1, 0
v_mov_b32 v3, s23
s_mov_b64 exec, 1
buffer_store_dword v3, v4, s[12:15], s30 offen
s_mov_b64 exec, -1
""".strip().split("\n"))

    nx = 0
    for g in range(NSTG):
        Oold, Onew, lold, lnew = (OB, OA, LB, LA) if g % 2 == 0 else (OA, OB, LA, LB)
        for tt in range(TPS):
            X, Y = (SX, SY) if tt % 2 == 0 else (SY, SX)
            H = HK.get((g, tt), {})
            attn_tile(a, g, tt, X, Y, Oold if tt == 0 else Onew, Onew, lold if tt == 0 else lnew, lnew, H, nx)
            nx = sum(1 for k in ('m2', 3, 'end', 'm3') for ins in H.get(k, []) if ins.startswith("ds_"))
        a(f"""
s_nop 7
v_cmp_nlt_f32 vcc, v{lnew}, s28
s_nop 1
s_cbranch_vccnz L_{tag}{g}_slow
L_{tag}{g}_ret:
""")
    tl(a, 2)
    stamp_end(a, 196608)
    a(f"s_nop 3\nv_rcp_f32 v7, v{LB}\ns_add_u32 s31, s26, {WS_O}")
    for i in range(16):
        a(f"v_mul_f32 v{OB+i}, v7, v{OB+i}")
    for i in range(8): a(f"v_cvt_pk_bf16_f32 v{P_+i}, v{OB+2*i}, v{OB+2*i+1}")
    a("s_nop 1")
    for p in range(2):
        a(f"v_permlane32_swap_b32 v{P_+4*p}, v{P_+4*p+2}\nv_permlane32_swap_b32 v{P_+4*p+1}, v{P_+4*p+3}")
    for p in range(2):
        a(f"buffer_store_dwordx4 {r(P_+4*p,4)}, v8, s[12:15], s31 offen offset:{p*32}")
    s1_gemm(a, 1)
    tl(a, 5, True)
    a(f"s_branch {endlabel}")
    for g in range(NSTG):
        if g % 2 == 0:
            attn_slow(a, f"{tag}{g}", OB, OA, LB, LA, SX, (g % ANS) * ASTAGE)
        else:
            attn_slow(a, f"{tag}{g}", OA, OB, LA, LB, SX, (g % ANS) * ASTAGE)


def wave_sum(a, v, t):
    for sh in (8, 4, 2, 1):
        a(f"s_nop 1\nv_add_f32_dpp v{v}, v{v}, v{v} row_ror:{sh} row_mask:0xf bank_mask:0xf")
    a(f"""
v_mov_b32 v{t}, v{v}
s_nop 1
v_permlane16_swap_b32 v{v}, v{t}
s_nop 1
v_add_f32 v{v}, v{v}, v{t}
v_mov_b32 v{t}, v{v}
s_nop 1
v_permlane32_swap_b32 v{v}, v{t}
s_nop 1
v_add_f32 v{v}, v{v}, v{t}
""")


def small_gemm(a, tag, mode, pP, pR, nsteps, kstep, pre=None):
    NS, STAGE, nu = 4, 32768, 2
    t_dma_voff(a, DV, 1, pP)
    t_dma_voff(a, DV + 1, 1, pR)
    stride = 4

    def setup():
        a("""
s_and_b32 s26, s22, 1
s_lshr_b32 s24, s22, 2
s_and_b32 s27, s22, 2
s_lshl_b32 s27, s27, 1
s_lshl_b32 s28, s24, 7
""")
        t_read_addr(a, RA, nu, 28, 27, 0, NS, STAGE, stride)
        a("s_lshl_b32 s29, s26, 5\ns_add_u32 s28, s28, s29")
        t_read_addr(a, RA + 2, nu, 28, 27, 8192, NS, STAGE, stride)
        for i in range(32):
            a(f"v_mov_b32 v{ACC+i}, 0")

    def dmas(st):
        return [[f"s_add_u32 m0, s18, {st*STAGE}", "s_nop 0", f"buffer_load_dwordx4 v{DV}, s[4:7], s16 offen lds"],
                [f"s_add_u32 m0, s18, {st*STAGE+8192}", "s_nop 0", f"buffer_load_dwordx4 v{DV+1}, s[8:11], s17 offen lds"],
                [f"s_add_u32 m0, s18, {st*STAGE+16384}", "s_nop 0", f"buffer_load_dwordx4 v{DV}, s[36:39], s40 offen lds"],
                [f"s_add_u32 m0, s18, {st*STAGE+24576}", "s_nop 0", f"buffer_load_dwordx4 v{DV+1}, s[44:47], s41 offen lds"]]

    def reads(st, ul, fs):
        f = FR[fs]
        return [f"ds_read_b128 v[{f}:{f+3}], v{RA+st*stride+ul}",
                f"ds_read_b128 v[{f+4}:{f+7}], v{RA+st*stride+ul} offset:4096",
                f"ds_read_b128 v[{f+8}:{f+11}], v{RA+st*stride+2+ul}"]

    def mfmas(fs):
        f = FR[fs]
        return [f"v_mfma_f32_32x32x16_bf16 v[{ACC+16*mb}:{ACC+16*mb+15}], v[{f+4*mb}:{f+4*mb+3}], v[{f+8}:{f+11}], v[{ACC+16*mb}:{ACC+16*mb+15}]" for mb in range(2)]

    kadv = [f"s_add_u32 s{r_}, s{r_}, {kstep}" for r_ in (16, 17, 40, 41)]
    pipeline(a, tag, nsteps, NS, nu, dmas, reads, mfmas, None, kadv, pre=pre, setup=setup)
    small_epi(a, mode, ACC)


def small_epi(a, mode, AC):
    a("s_and_b32 s26, s22, 1")
    a("s_nop 15\ns_barrier")
    a(f"""
v_lshlrev_b32 v3, 4, v2
s_lshl_b32 s23, s22, 13
v_add_u32 v4, s23, v3
s_lshr_b32 s25, s22, 1
s_lshl_b32 s23, s25, 11
s_lshl_b32 s29, s26, 13
s_add_u32 s23, s23, s29
v_add_u32 v3, s23, v3
""")
    for j in range(8):
        a(f"ds_write_b128 v4, v[{AC+4*j}:{AC+4*j+3}] offset:{j*1024}")
    a("s_waitcnt lgkmcnt(0)\ns_barrier")
    for i in range(4):
        for j in range(2):
            a(f"ds_read_b128 v[{96+8*i+4*j}:{96+8*i+4*j+3}], v3 offset:{i*16384+j*1024}")
    a("s_waitcnt lgkmcnt(4)")
    for r_ in range(8):
        a(f"v_add_f32 v{64+r_}, v{96+r_}, v{104+r_}")
    a("s_waitcnt lgkmcnt(0)")
    for r_ in range(8):
        a(f"v_add_f32 v{72+r_}, v{112+r_}, v{120+r_}")
    if mode == 1:
        for r_ in range(8):
            a(f"v_add_f32 v{64+r_}, v{64+r_}, v{72+r_}")


def pack8(a, dst, src):
    for r_ in range(4):
        a(f"v_cvt_pk_bf16_f32 v{dst+r_}, v{src+2*r_}, v{src+2*r_+1}")
    a(f"s_nop 1\nv_permlane32_swap_b32 v{dst}, v{dst+2}\nv_permlane32_swap_b32 v{dst+1}, v{dst+3}")


S1ACC, S1F, S1A, S1D = 200, 156, 32, 68
S1B = 65536
S1D2 = 255
S1ST = 24576


def stage1_setup(a):
    a(f"""
s_and_b32 s30, s2, 7
s_lshr_b32 s31, s2, 3
s_and_b32 s31, s31, 15
s_and_b32 s54, s30, 3
s_lshl_b32 s54, s54, 2
s_and_b32 s55, s31, 3
s_add_u32 s54, s54, s55
s_lshr_b32 s55, s30, 2
s_lshl_b32 s55, s55, 2
s_lshr_b32 s56, s31, 2
s_add_u32 s55, s55, s56
s_cmp_ge_u32 s2, 128
s_cselect_b32 s8, s52, s50
s_cselect_b32 s9, s53, s51
s_cselect_b32 s43, -1.0, 1.0
s_cselect_b32 s57, {WS_BT-WS_AT}, 0
s_add_u32 s57, s57, {WS_AT}
s_mov_b32 s10, {1024*2048}
s_mov_b32 s11, 0x00020000
""")
    a(f"""
s_lshl_b32 s40, s54, 17
s_sub_u32 s42, {(2048-63)*2048}, s40
s_lshl_b32 s41, s55, 17
s_mul_i32 s21, s55, {64*ATP}
s_add_u32 s21, s21, s57
s_lshl_b32 s23, s54, 7
s_add_u32 s21, s21, s23
""")
    t_dma_voff(a, S1D, 1, 2048)
    a(f"v_sub_u32 v3, {63*2048}, v3\nv_add_u32 v{S1D2}, v3, v4")


def stage1_setup2(a, zero=True):
    a("""
s_lshr_b32 s25, s22, 2
s_and_b32 s27, s22, 2
s_lshl_b32 s27, s27, 1
s_lshl_b32 s25, s25, 7
""")
    t_read_addr(a, S1A, 2, 25, 27, S1B, 4, S1ST, 4)
    a("s_and_b32 s25, s22, 1\ns_lshl_b32 s25, s25, 5")
    t_read_addr(a, S1A + 2, 2, 25, 27, S1B + 8192, 4, S1ST, 4)
    for i in range(32 if zero else 0):
        a(f"v_mov_b32 v{S1ACC+i}, 0")


def s1_dma(a, buf, i):
    if os.environ.get('NOS1'): return
    sr, so, vd = ((80, 40, S1D), (8, 41, S1D), (80, 42, S1D2))[i]
    a(f"s_add_u32 m0, s18, {S1B + buf*S1ST + i*8192}\ns_add_u32 s4, s{so}, s5\nbuffer_load_dwordx4 v{vd}, s[{sr}:{sr+3}], s4 offen lds")


def s1_reads(a, buf):
    if os.environ.get('NOS1'): return
    for ul in range(2):
        f = S1F + 12 * ul
        a(f"""
ds_read_b128 v[{f}:{f+3}], v{S1A+buf*4+ul}
ds_read_b128 v[{f+4}:{f+7}], v{S1A+buf*4+ul} offset:4096
ds_read_b128 v[{f+8}:{f+11}], v{S1A+buf*4+2+ul}
""")


def s1_mfma(a, i):
    if os.environ.get('NOS1'): return
    ul, mb = i >> 1, i & 1
    f = S1F + 12 * ul
    c = S1ACC + 16 * mb
    a(f"v_mfma_f32_32x32x16_bf16 v[{c}:{c+15}], v[{f+4*mb}:{f+4*mb+3}], v[{f+8}:{f+11}], v[{c}:{c+15}]")


def s1_gemm(a, part):
    rot = 2 if part in (0, 'prol0') else 0

    def dmas(st):
        return [cap(s1_dma, (st + rot) % 4, i) for i in range(3)]

    def reads(st, ul, fs):
        f = S1F + 12 * fs
        st = (st + rot) % 4
        return [f"ds_read_b128 v[{f}:{f+3}], v{S1A+st*4+ul}", f"ds_read_b128 v[{f+4}:{f+7}], v{S1A+st*4+ul} offset:4096",
                f"ds_read_b128 v[{f+8}:{f+11}], v{S1A+st*4+2+ul}"]

    def mfmas(fs):
        return cap(s1_mfma, 2 * fs) + cap(s1_mfma, 2 * fs + 1)

    def pb():
        a("s_cmp_lg_u32 s22, 0\ns_cbranch_scc1 L_pk_ok")
        poll(a, "pk", 152, True, pre=False)

    def ev_kv():
        for g in range(2):
            for i in range(4): kv_dma(a, g, i)
    def su():
        a(f"""
s_cmp_eq_u32 s75, 0
s_cbranch_scc1 L_noflag
v_lshlrev_b32 v3, 8, v2
v_mov_b32 v4, 1
s_waitcnt vmcnt(9)
buffer_store_byte v4, v3, s[12:15], s74 offen sc1
L_noflag:
""")
        side_jobs(a, '')
        stage1_setup2(a)
    kadv = ["s_add_u32 s5, s5, 128"]
    if part in ('prol', 'prol0'):
        return [[l for g in dmas(st) for l in g] + kadv for st in range(3)]
    if part == 0:
        KS_ = int(os.environ.get('KVSTEP', str(N0 - 4)))
        pipeline(a, "s1", N0, 4, 2, dmas, reads, mfmas, None, kadv, setup=su, xtra=4, noprol=2, prebar={KS_: pb},
                 events={KS_: ev_kv, KS_ + 1: lambda: side_jobs2(a, '')}, extras={KS_: 8})
        return
    pipeline(a, "s2", 16 - N0, 4, 2, dmas, reads, mfmas, None, kadv, setup=lambda: stage1_setup2(a, False), xtra=2, noprol=3)
    a(f"""
s_and_b32 s27, s22, 1
s_lshr_b32 s25, s22, 1
s_lshl_b32 s23, s22, 13
s_add_u32 s23, s23, {S1B}
v_add_u32 v{S1A}, s23, v9
s_lshl_b32 s23, s25, 11
s_lshl_b32 s30, s27, 13
s_add_u32 s23, s23, s30
s_add_u32 s23, s23, {S1B}
v_add_u32 v{S1A+1}, s23, v9
s_barrier
s_nop 7
""")
    for j in range(8):
        a(f"ds_write_b128 v{S1A}, v[{S1ACC+4*j}:{S1ACC+4*j+3}] offset:{j*1024}")
    a("s_waitcnt lgkmcnt(0)\ns_barrier")
    for i in range(4):
        for j in range(2):
            a(f"ds_read_b128 v[{S1ACC+8*i+4*j}:{S1ACC+8*i+4*j+3}], v{S1A+1} offset:{i*16384+j*1024}")
    a(f"""
v_and_b32 v3, 31, v2
s_lshl_b32 s23, s27, 5
v_add_u32 v3, s23, v3
s_mov_b32 s23, {ATP}
v_mul_lo_u32 v3, v3, s23
v_lshrrev_b32 v4, 5, v2
v_lshl_add_u32 v3, v4, 4, v3
s_lshl_b32 s23, s25, 5
s_add_u32 s23, s23, s21
s_waitcnt lgkmcnt(0)
""")
    for r_ in range(8):
        a(f"v_add_f32 v{S1ACC+r_}, v{S1ACC+r_}, v{S1ACC+8+r_}\nv_add_f32 v{S1ACC+16+r_}, v{S1ACC+16+r_}, v{S1ACC+24+r_}")
    for r_ in range(8):
        a(f"v_fma_f32 v{S1ACC+r_}, s43, v{S1ACC+16+r_}, v{S1ACC+r_}")
    pack8(a, S1F, S1ACC)
    a(f"buffer_store_dwordx4 v[{S1F}:{S1F+3}], v3, s[12:15], s23 offen")


def stage1_store(a):
    a("s_waitcnt vmcnt(0) lgkmcnt(0)")
    small_epi(a, 1, S1ACC)
    pack8(a, 16, 64)
    a(f"""
v_and_b32 v3, 31, v2
s_lshl_b32 s23, s26, 5
v_add_u32 v3, s23, v3
s_mov_b32 s23, {ATP}
v_mul_lo_u32 v3, v3, s23
v_lshrrev_b32 v4, 5, v2
v_lshl_add_u32 v3, v4, 4, v3
s_lshl_b32 s23, s25, 5
s_add_u32 s23, s23, s21
buffer_store_dwordx4 v[16:19], v3, s[12:15], s23 offen
""")


def dot_loads(a, dst, srdA, soffA, srdB, soffB):
    for (d, sr, so) in ((dst, srdA, soffA), (dst + 12, srdB, soffB)):
        a(f"""
buffer_load_dwordx4 v[{d}:{d+3}], v10, s[{sr}:{sr+3}], s{so} offen
buffer_load_dwordx4 v[{d+4}:{d+7}], v10, s[{sr}:{sr+3}], s{so} offen offset:16
buffer_load_dwordx4 v[{d+8}:{d+11}], v11, s[{sr}:{sr+3}], s{so} offen
""")


def dot_compute(a, res, src, t):
    a(f"v_mov_b32 v{res}, 0")
    for i in range(12):
        a(f"v_dot2c_f32_bf16 v{res}, v{src+i}, v{src+12+i}")
    a("s_nop 3")
    wave_sum(a, res, t)


def edge_issue(a):
    srd(a, 64, 56, 57, 2048 * 4096)
    srd(a, 68, 48, 49, WS_BYTES)
    a(f"""
s_lshr_b32 s54, s2, 3
s_and_b32 s55, s2, 7
v_lshlrev_b32 v10, 5, v2
v_lshlrev_b32 v11, 4, v2
v_add_u32 v11, 2048, v11
v_mov_b32 v3, 0x7ffffff0
v_cmp_gt_u32 vcc, 8, v2
s_lshl_b32 s58, s54, 6
s_lshl_b32 s23, s55, 3
s_add_u32 s58, s58, s23
s_add_u32 s58, s58, s22
v_cndmask_b32 v11, v3, v11, vcc
s_lshl_b32 s59, s58, 12
s_mov_b32 s60, {WS_AT + 512*ATP}
s_lshl_b32 s61, s55, 6
s_lshl_b32 s23, s54, 2
s_add_u32 s61, s61, s23
s_add_u32 s61, s61, s22
s_cmp_ge_u32 s22, 4
s_cselect_b32 s61, 512, s61
s_mul_i32 s62, s61, {ATP}
s_add_u32 s62, s62, {WS_AT}
s_mov_b32 s63, {1024*4096}
""")


def edge_loads(a):
    flag_load(a, 212, 76, 48, 49)
    dot_loads(a, 164, 64, 59, 68, 60)
    dot_loads(a, 188, 64, 63, 68, 62)


def edge_finish(a):
    flag_test(a, 212)
    a("s_cbranch_scc1 L_edge_done")
    dot_compute(a, 160, 164, 3)
    dot_compute(a, 161, 188, 3)
    a(f"""
v_cvt_pk_bf16_f32 v160, v160, v161
v_lshrrev_b32 v161, 16, v160
s_mov_b64 exec, 3
s_sub_u32 s23, 2048, s58
v_mov_b32 v3, s58
v_mov_b32 v4, s23
v_cmp_eq_u32 vcc, 0, v2
s_nop 1
v_cndmask_b32 v3, v4, v3, vcc
v_lshlrev_b32 v3, 12, v3
buffer_store_short v160, v3, s[12:15], 0 offen offset:3072
s_sub_u32 s23, 1024, s61
v_mov_b32 v3, s61
v_mov_b32 v4, s23
s_nop 0
v_cndmask_b32 v3, v4, v3, vcc
v_lshlrev_b32 v3, 1, v3
v_add_u32 v3, {1024*4096 + 2048}, v3
s_cmp_eq_u32 s61, 0
s_cselect_b64 s[72:73], 1, 3
s_cmp_gt_u32 s22, 4
s_cselect_b64 s[72:73], 0, s[72:73]
s_mov_b64 exec, s[72:73]
s_cbranch_execz L_edge_done
buffer_store_short v161, v3, s[12:15], 0 offen
L_edge_done:
s_mov_b64 exec, -1
""")


def stage2(a):
    a(f"""
s_and_b32 s54, s30, 3
s_lshl_b32 s54, s54, 2
s_and_b32 s55, s31, 3
s_add_u32 s54, s54, s55
s_lshr_b32 s55, s30, 2
s_lshl_b32 s55, s55, 2
s_lshr_b32 s56, s31, 2
s_add_u32 s55, s55, s56
""")
    srd(a, 4, 48, 49, WS_BYTES)
    srd(a, 36, 48, 49, WS_BYTES)
    srd(a, 8, 50, 51, 2048 * 4096)
    srd(a, 44, 52, 53, 2048 * 4096)
    srd(a, 12, 34, 35, 2048 * 4096)
    a(f"""
s_mul_i32 s16, s55, {64*ATP}
s_add_u32 s40, s16, {WS_BT}
s_add_u32 s16, s16, {WS_AT}
s_lshl_b32 s17, s54, 18
s_mov_b32 s41, s17
""")
    wave_setup(a)
    flag_load(a, 208, 76, 48, 49)

    def pre():
        a("s_waitcnt vmcnt(12)")
        flag_test(a, 208)
        a("s_cbranch_scc1 L_k3_fb")

    small_gemm(a, "s2", 2, ATP, 4096, 17, 128, pre=pre)
    for r_ in range(8):
        a(f"v_sub_f32 v{80+r_}, v{64+r_}, v{72+r_}\nv_add_f32 v{88+r_}, v{64+r_}, v{72+r_}")
    pack8(a, 16, 80)
    pack8(a, 20, 88)
    a("s_nop 0")
    for r_ in range(4):
        a(f"v_alignbit_b32 v{24+r_}, v{19-r_}, v{19-r_}, 16")
        a(f"v_alignbit_b32 v{28+r_}, v{23-r_}, v{23-r_}, 16")
    a(f"""
v_and_b32 v3, 31, v2
s_lshl_b32 s23, s26, 5
s_lshl_b32 s29, s54, 6
s_add_u32 s23, s23, s29
v_add_u32 v3, s23, v3
v_sub_u32 v4, 2048, v3
v_lshlrev_b32 v3, 12, v3
v_lshlrev_b32 v4, 12, v4
v_lshrrev_b32 v5, 5, v2
v_lshlrev_b32 v5, 4, v5
s_lshl_b32 s23, s25, 5
s_lshl_b32 s29, s55, 7
s_add_u32 s23, s23, s29
v_add_u32 v5, s23, v5
v_add_u32 v6, v3, v5
v_add_u32 v7, v4, v5
v_sub_u32 v8, 4082, v5
v_add_u32 v9, v4, v8
v_add_u32 v8, v3, v8
buffer_store_dwordx4 v[16:19], v6, s[12:15], 0 offen offset:2048
buffer_store_dwordx4 v[20:23], v7, s[12:15], 0 offen offset:2048
v_cmp_ne_u32 vcc, 0, v5
s_and_saveexec_b64 s[64:65], vcc
buffer_store_dwordx4 v[28:31], v8, s[12:15], 0 offen
buffer_store_dwordx4 v[24:27], v9, s[12:15], 0 offen
s_andn2_b64 exec, s[64:65], exec
s_cbranch_execz L_s2_e2
buffer_store_dwordx3 v[28:30], v8, s[12:15], 0 offen
buffer_store_short v31, v8, s[12:15], 0 offen offset:12
buffer_store_dwordx3 v[24:26], v9, s[12:15], 0 offen
buffer_store_short v27, v9, s[12:15], 0 offen offset:12
L_s2_e2:
s_mov_b64 exec, s[64:65]
""")


def fold(a):
    wave_setup(a)
    srd(a, 4, 40, 41, 2048 * 2048)
    srd(a, 8, 44, 45, 1024 * 2048)
    a(f"""
v_lshlrev_b32 v6, 5, v2
s_lshl_b32 s16, s31, 5
s_lshl_b32 s23, s22, 2
s_add_u32 s16, s16, s23
s_mov_b32 s17, {512*2048}
buffer_load_dwordx4 v[8:11], v6, s[8:11], s17 offen
buffer_load_dwordx4 v[12:15], v6, s[8:11], s17 offen offset:16
""")
    for i in range(4):
        b = 16 + 16 * i
        a(f"""
s_add_u32 s23, s16, {i}
s_sub_u32 s24, 2048, s23
s_lshl_b32 s23, s23, 11
s_lshl_b32 s24, s24, 11
buffer_load_dwordx4 v[{b}:{b+3}], v6, s[4:7], s23 offen
buffer_load_dwordx4 v[{b+4}:{b+7}], v6, s[4:7], s23 offen offset:16
buffer_load_dwordx4 v[{b+8}:{b+11}], v6, s[4:7], s24 offen
buffer_load_dwordx4 v[{b+12}:{b+15}], v6, s[4:7], s24 offen offset:16
""")
    for i in range(4):
        b = 16 + 16 * i
        o = 96 + 16 * i
        a(f"s_waitcnt vmcnt({(3-i)*4 + 5*i})")
        a(f"v_mov_b32 v{88+i}, 0")
        for j in range(8):
            a(f"""
v_lshlrev_b32 v80, 16, v{b+j}
v_and_b32 v81, 0xffff0000, v{b+j}
v_lshlrev_b32 v82, 16, v{b+8+j}
v_and_b32 v83, 0xffff0000, v{b+8+j}
v_add_f32 v84, v80, v82
v_add_f32 v85, v81, v83
v_sub_f32 v86, v80, v82
v_sub_f32 v87, v81, v83
v_cvt_pk_bf16_f32 v{o+j}, v84, v85
v_cvt_pk_bf16_f32 v{o+8+j}, v86, v87
v_dot2c_f32_bf16 v{88+i}, v{o+j}, v{8+j}
""")
        a(f"""
s_add_u32 s23, s16, {i}
s_lshl_b32 s24, s23, 11
s_add_u32 s25, s24, {WS_XM}
s_add_u32 s24, s24, {WS_XP}
buffer_store_dwordx4 v[{o}:{o+3}], v6, s[12:15], s24 offen
buffer_store_dwordx4 v[{o+4}:{o+7}], v6, s[12:15], s24 offen offset:16
buffer_store_dwordx4 v[{o+8}:{o+11}], v6, s[12:15], s25 offen
buffer_store_dwordx4 v[{o+12}:{o+15}], v6, s[12:15], s25 offen offset:16
""")
        wave_sum(a, 88 + i, 3)
        a(f"""
v_cvt_pk_bf16_f32 v{88+i}, v{88+i}, v{88+i}
s_lshl_b32 s23, s23, 1
s_add_u32 s23, s23, {WS_AT + 512*ATP}
v_mov_b32 v4, 0
s_mov_b64 exec, 1
buffer_store_short v{88+i}, v4, s[12:15], s23 offen
s_mov_b64 exec, -1
""")


def edge_mv(a):
    wave_setup(a)
    srd(a, 4, 40, 41, 2048 * 2048)
    srd(a, 8, 44, 45, 513 * 2048)
    a(f"""
v_lshlrev_b32 v6, 5, v2
s_lshl_b32 s16, s31, 3
s_add_u32 s16, s16, s22
s_mul_i32 s16, s16, 9
s_mov_b32 s17, {1024*2048}
buffer_load_dwordx4 v[8:11], v6, s[4:7], s17 offen
buffer_load_dwordx4 v[12:15], v6, s[4:7], s17 offen offset:16
v_lshlrev_b32 v7, 2, v2
""")
    for i in range(9):
        b = 16 + 8 * i
        a(f"""
s_add_u32 s23, s16, {i}
s_lshl_b32 s23, s23, 11
buffer_load_dwordx4 v[{b}:{b+3}], v6, s[8:11], s23 offen
buffer_load_dwordx4 v[{b+4}:{b+7}], v6, s[8:11], s23 offen offset:16
""")
    a("s_waitcnt vmcnt(0)\nv_mov_b32 v5, 0")
    for i in range(9):
        b = 16 + 8 * i
        a(f"v_mov_b32 v{96+i}, 0")
        for j in range(8):
            a(f"v_dot2c_f32_bf16 v{96+i}, v{b+j}, v{8+j}")
        a("s_nop 3")
        wave_sum(a, 96 + i, 3)
        a(f"""
v_cvt_pk_bf16_f32 v{96+i}, v{96+i}, v5
v_cmp_eq_u32 vcc, 0, v2
s_add_u32 s23, s16, {i}
s_cmp_gt_u32 s23, 512
s_cbranch_scc1 L_emv_done
v_cndmask_b32 v{96+i}, v5, v{96+i}, vcc
s_mul_i32 s23, s23, {ATP}
s_add_u32 s24, s23, {WS_BT + 2048}
s_add_u32 s23, s23, {WS_AT + 2048}
s_mov_b32 exec_hi, 0
buffer_store_dword v{96+i}, v7, s[12:15], s23 offen
buffer_store_dword v5, v7, s[12:15], s24 offen
s_mov_b64 exec, -1
""")
    a("L_emv_done:")


VTOL = 2.0 ** -8 * 1.01
VMAX = 70
VB = 152


def cmp_dw(a, x, y, neg, rev=False):
    lo_y, hi_y = (f"v_and_b32 v5, 0xffff0000, v{y}", f"v_lshlrev_b32 v6, 16, v{y}") if rev else (f"v_lshlrev_b32 v5, 16, v{y}", f"v_and_b32 v6, 0xffff0000, v{y}")
    a(f"""
v_lshlrev_b32 v3, 16, v{x}
v_and_b32 v4, 0xffff0000, v{x}
{lo_y}
{hi_y}
v_fmac_f32 v3, s60, v5
v_fmac_f32 v4, s60, v6
v_max3_f32 v{VMAX}, |v3|, |v4|, v{VMAX}
""")


def verify_c_setup(a):
    a(f"""
s_bitcmp1_b32 s58, 0
s_cselect_b32 s76, s94, s92
s_cselect_b32 s77, s95, s93
s_cselect_b32 s60, 1.0, -1.0
s_mov_b32 s78, {2048*4096}
s_mov_b32 s79, 0x00020000
s_sub_u32 s62, 2048, s61
s_and_b32 s62, s62, 2047
s_lshl_b32 s61, s61, 12
s_lshl_b32 s62, s62, 12
""")


AMN, AMR, VAD, VRV = 192, 196, 69, 71


def verify_setup(a):
    a("s_lshl_b32 s58, s2, 3\ns_add_u32 s58, s58, s22\ns_lshr_b32 s61, s58, 1")
    verify_c_setup(a)
    a(f"""
s_bitcmp1_b32 s58, 0
s_mov_b32 s59, 0xbf80
s_cselect_b32 s59, 0x3f80, s59
v_and_b32 v3, 15, v2
v_bfe_u32 v4, v2, 4, 1
v_lshlrev_b32 v4, 3, v4
v_cmp_gt_u32 vcc, 32, v2
v_mov_b32 v5, s59
v_mov_b32 v6, 0x3f80
v_sub_u32 v7, 15, v3
v_cndmask_b32 v5, v5, v6, vcc
v_cndmask_b32 v7, v7, v3, vcc
v_sub_u32 v3, v3, v4
v_sub_u32 v7, v7, v4
""")
    for base, j in ((AMN, 3), (AMR, 7)):
        a(f"""
v_and_b32 v4, 1, v{j}
v_lshlrev_b32 v4, 4, v4
v_lshlrev_b32 v4, v4, v5
v_lshrrev_b32 v6, 1, v{j}
""")
        for r_ in range(4):
            a(f"v_cmp_eq_u32 vcc, {r_}, v6\ns_nop 1\nv_cndmask_b32 v{base+r_}, 0, v4, vcc")
    a(f"""
v_and_b32 v3, 15, v2
v_lshlrev_b32 v3, 5, v3
v_bfe_u32 v4, v2, 4, 1
v_lshlrev_b32 v4, 4, v4
v_add_u32 v5, v3, v4
v_sub_u32 v6, v4, v3
v_add_u32 v6, 4064, v6
v_add_u32 v7, 2, v5
v_cmp_gt_u32 vcc, 32, v2
v_mov_b32 v3, s62
v_mov_b32 v4, s61
v_cndmask_b32 v6, v6, v7, vcc
v_cndmask_b32 v3, v3, v4, vcc
v_add_u32 v{VRV}, s61, v6
v_add_u32 v{VAD}, v3, v5
s_mov_b32 s63, 0
""")


def verify_w_switch(a):
    a(f"""
s_bitcmp1_b32 s58, 0
s_cselect_b32 s84, s52, s50
s_cselect_b32 s85, s53, s51
s_mov_b32 s86, {1024*2048}
s_lshr_b32 s59, s58, 2
s_add_u32 s59, s59, 1
s_sub_u32 s63, 1024, s59
s_lshl_b32 s59, s59, 11
s_lshl_b32 s63, s63, 11
v_mov_b32 v3, s63
v_mov_b32 v4, s59
v_cmp_gt_u32 vcc, 32, v2
v_and_b32 v5, 15, v2
v_lshlrev_b32 v5, 5, v5
v_bfe_u32 v6, v2, 4, 1
v_lshl_add_u32 v5, v6, 4, v5
v_cndmask_b32 v3, v3, v4, vcc
v_add_u32 v{VAD}, v3, v5
s_and_b32 s63, s58, 2
s_lshl_b32 s63, s63, 9
""")
    srd(a, 36, 88, 89, 1024 * 2048)
    a(f"""
v_lshl_add_u32 v3, v0, 8, s2
v_lshlrev_b32 v3, 7, v3
buffer_load_dword v{VB+24}, v3, s[36:39], 0 offen
s_mov_b32 s87, 0x00020000
s_lshr_b32 s59, s58, 1
s_and_b32 s59, s59, 7
s_lshl_b32 s59, s59, 9
s_add_u32 s59, s59, {1024*4096}
v_add_u32 v7, s59, v5
""")


def verify_r_switch(a):
    a(f"""
v_mov_b32 v3, 512
v_mov_b32 v4, -512
v_cmp_gt_u32 vcc, 32, v2
s_lshr_b32 s59, s58, 1
s_sub_u32 s63, {1024*4096}, s61
s_and_b32 s23, s58, 0xfffffff9
v_cndmask_b32 v{VAD}, v4, v3, vcc
s_cmp_eq_u32 s23, 0
s_cselect_b32 s59, s59, 0
s_cselect_b32 s63, s63, 0
v_mul_lo_u32 v7, v{VAD}, s59
v_add3_u32 v7, v7, v{VRV}, s63
""")


def touch(a):
    a("""
s_load_dwordx8 s[32:39], s[0:1], 0
s_load_dwordx4 s[40:43], s[0:1], 64
s_sub_u32 s31, s2, 56
s_lshl_b32 s23, s31, 9
v_add_u32 v3, s23, v0
v_lshlrev_b32 v4, 7, v3
s_waitcnt lgkmcnt(0)
""")
    off = 0
    for i, (lo, nb) in enumerate(((36, 65536), (38, 65536), (32, 2048 * 2048), (34, 1024 * 2048), (40, 513 * 2048), (42, 512 * 2048))):
        srd(a, 4 + 4 * i, lo, lo + 1, nb)
        a(f"v_subrev_u32 v5, {off}, v4\nbuffer_load_dword v{10+i}, v5, s[{4+4*i}:{7+4*i}], 0 offen")
        off += (nb + 127) // 128 * 128
    assert off <= 200 * 512 * 128
    a("s_waitcnt vmcnt(0)")


def flag_load(a, vd, sr, lo, hi):
    srd(a, sr, lo, hi, 8192, WS_FLAG)
    a("v_and_b32 v3, 63, v0\nv_lshlrev_b32 v3, 4, v3\nv_add_u32 v4, 4096, v3")
    for j in range(8):
        a(f"buffer_load_dwordx4 v[{vd+4*j}:{vd+4*j+3}], v{3 + j//4}, s[{sr}:{sr+3}], 0 offen offset:{(j%4)*1024}")


def flag_test(a, vd):
    for j in range(1, 31, 2):
        a(f"v_or3_b32 v{vd}, v{vd}, v{vd+j}, v{vd+j+1}")
    a(f"v_or_b32 v{vd}, v{vd}, v{vd+31}")
    a(f"v_cmp_ne_u32 vcc, 0, v{vd}\ns_nop 1\ns_cmp_lg_u64 vcc, 0")


def g3(a):
    a("""
s_and_b32 s50, s30, 3
s_lshl_b32 s50, s50, 2
s_and_b32 s51, s31, 3
s_add_u32 s50, s50, s51
s_lshr_b32 s51, s30, 2
s_lshl_b32 s51, s51, 2
s_lshr_b32 s52, s31, 2
s_add_u32 s51, s51, s52
""")
    srd(a, 4, 40, 41, 2048 * 2048)
    a(f"""
s_cmp_ge_u32 s51, 4
s_cselect_b32 s8, s46, s44
s_cselect_b32 s9, s47, s45
s_cselect_b32 s20, {f32bits(-1.0)}, 1.0
s_mov_b32 s10, {1024*2048}
s_mov_b32 s11, 0x00020000
s_lshl_b32 s16, s50, 18
s_and_b32 s17, s51, 3
s_lshl_b32 s17, s17, 19
s_lshl_b32 s21, s51, 20
s_lshl_b32 s23, s50, 8
s_add_u32 s21, s21, s23
s_add_u32 s21, s21, {WS_AB}
""")
    gemm(a, "g3", 2, 4, 1, 'T', 2048, 2048, 16, 3, 4096, scale=True)


def touch2(a):
    a("""
v_lshl_add_u32 v3, v0, 8, s2
v_lshlrev_b32 v4, 7, v3
v_lshrrev_b32 v5, 5, v3
v_and_b32 v6, 31, v3
v_lshlrev_b32 v5, 12, v5
v_lshl_add_u32 v5, v6, 7, v5
v_mov_b32 v7, 0x7ffffff0
v_cmp_gt_u32 vcc, 17, v6
""")
    srd(a, 76, 88, 89, 1024 * 2048)
    a("v_cndmask_b32 v5, v7, v5, vcc\nbuffer_load_dword v196, v4, s[76:79], 0 offen")
    srd(a, 80, 92, 93, 1025 * 4096)
    a("buffer_load_dword v197, v5, s[80:83], 0 offen")
    srd(a, 84, 94, 95, 1025 * 4096)
    a("buffer_load_dword v198, v5, s[84:87], 0 offen")


def k1(a):
    kernel_header(a, "k1_kernel")
    a("""
s_cmp_ge_u32 s2, 256
s_cbranch_scc1 L_k1_end
s_cmp_ge_u32 s2, 56
s_cbranch_scc1 L_k1_touch
s_load_dwordx8 s[32:39], s[0:1], 0
s_load_dwordx2 s[40:41], s[0:1], 40
s_load_dwordx4 s[44:47], s[0:1], 64
s_load_dwordx2 s[48:49], s[0:1], 96
s_waitcnt lgkmcnt(0)
""")
    TLK[0] = 0
    tl(a, 0)
    srd(a, 12, 48, 49, WS_BYTES)
    a("""
s_cmp_ge_u32 s2, 48
s_cbranch_scc1 L_k1_emv
s_cmp_ge_u32 s2, 16
s_cbranch_scc1 L_k1_fold
""")
    wave_setup(a)
    a(f"""
s_cmp_ge_u32 s22, 4
s_cselect_b32 s4, s38, s36
s_cselect_b32 s5, s39, s37
s_mov_b32 s6, 65536
s_mov_b32 s7, 0x00020000
""")
    srd(a, 8, 32, 33, 2048 * 2048)
    a("""
s_mov_b32 s16, 0
s_lshl_b32 s17, s2, 18
s_lshl_b32 s21, s2, 2
""")
    gemm_kv(a, "g2")
    tl(a, 5, True)
    a("s_endpgm\nL_k1_fold:\ns_sub_u32 s31, s2, 16")
    fold(a)
    tl(a, 5, True)
    a("s_endpgm\nL_k1_emv:\ns_sub_u32 s31, s2, 48")
    edge_mv(a)
    tl(a, 5, True)
    a("s_endpgm\nL_k1_touch:")
    touch(a)
    a("L_k1_end:\ns_endpgm")


def k2(a):
    kernel_header(a, "k2_kernel")
    a("""
s_cmp_ge_u32 s2, 256
s_cbranch_scc1 L_k2_end
s_load_dwordx4 s[32:35], s[0:1], 0
s_load_dwordx2 s[50:51], s[0:1], 64
s_load_dwordx2 s[52:53], s[0:1], 72
s_load_dwordx2 s[88:89], s[0:1], 32
s_load_dwordx4 s[92:95], s[0:1], 48
s_load_dwordx2 s[48:49], s[0:1], 96
s_load_dwordx4 s[64:67], s[0:1], 16
s_load_dwordx2 s[74:75], s[0:1], 40
s_load_dwordx2 s[90:91], s[0:1], 88
""")
    wave_setup(a)
    a(f"""
v_lshrrev_b32 v3, 3, v2
v_lshl_add_u32 v3, v1, 5, v3
v_bfe_u32 v4, v3, 1, 1
v_bfe_u32 v5, v2, 2, 1
v_xor_b32 v4, v4, v5
v_and_b32 v5, 3, v2
v_lshlrev_b32 v5, 4, v5
v_lshl_add_u32 v5, v4, 6, v5
v_lshl_add_u32 v6, v3, 11, v5
v_subrev_u32 v3, 64, v3
v_bfe_u32 v4, v3, 1, 3
v_and_b32 v5, 7, v2
v_xor_b32 v4, v4, v5
v_lshlrev_b32 v4, 4, v4
v_lshl_add_u32 v7, v3, 11, v4
v_lshlrev_b32 v8, 4, v2
v_cmp_gt_u32 vcc, 2, v1
v_mov_b32 v9, 64
v_mov_b32 v10, {8*2048}
v_cndmask_b32 v152, v7, v6, vcc
v_cndmask_b32 v9, v9, 0, vcc
v_cmp_lt_u32 vcc, 5, v1
v_mov_b32 v11, 1024
s_lshl_b32 s20, s22, 12
v_cndmask_b32 v152, v152, v8, vcc
v_cndmask_b32 v9, v9, 0, vcc
v_cndmask_b32 v10, v10, v11, vcc
v_xor_b32 v153, v152, v9
v_add_u32 v153, v153, v10
v_lshl_add_u32 v154, v10, 1, v152
v_lshl_add_u32 v155, v10, 1, v153
s_waitcnt lgkmcnt(0)
s_cmp_ge_u32 s2, 128
s_cselect_b32 s96, s66, s64
s_cselect_b32 s97, s67, s65
s_mov_b32 s98, 65536
s_mov_b32 s99, 0x00020000
s_cmp_lt_u32 s22, 6
s_cselect_b32 s96, s32, s96
s_cselect_b32 s97, s33, s97
s_cselect_b32 s98, {2048*2048}, s98
s_cmp_lt_u32 s22, 2
s_cselect_b32 s96, s34, s96
s_cselect_b32 s97, s35, s97
s_cselect_b32 s98, {1024*2048}, s98
""")
    TLK[0] = 1
    srd(a, 12, 48, 49, WS_BYTES)
    srd(a, 36, 34, 35, 1024 * 2048)
    srd(a, 44, 32, 33, 2048 * 2048)
    srd(a, 80, 74, 75, 2048 * 2048)
    srd(a, 84, 50, 51, 513 * 2048)
    tl(a, 0)
    a(f"""
s_and_b32 s30, s2, 7
s_lshr_b32 s31, s2, 3
s_and_b32 s54, s30, 3
s_lshl_b32 s54, s54, 2
s_and_b32 s55, s31, 3
s_add_u32 s54, s54, s55
s_lshr_b32 s55, s30, 2
s_lshl_b32 s55, s55, 3
s_lshr_b32 s56, s31, 2
s_add_u32 s55, s55, s56
s_lshl_b32 s16, s55, 7
s_lshl_b32 s17, s54, 18
s_add_u32 s26, s17, s16
s_cmp_lt_u32 s22, 2
s_cselect_b32 s16, s16, s17
s_mov_b32 s23, 128
s_cselect_b32 s17, {64*2048}, s23
s_cmp_ge_u32 s22, 6
s_cselect_b32 s16, 0, s16
s_cselect_b32 s17, 4096, s17
s_mov_b32 s5, 0
s_and_b32 s64, s2, 3
s_lshl_b32 s64, s64, 3
s_add_u32 s64, s64, s22
s_sub_u32 s64, s64, 7
s_and_b32 s24, s55, 3
s_lshl_b32 s23, s54, 2
s_add_u32 s24, s24, s23
s_lshl_b32 s24, s24, 12
s_add_u32 s24, s24, {WS_KF}
s_lshr_b32 s65, s2, 2
s_lshl_b32 s65, s65, 8
s_add_u32 s65, s65, {WS_SY}
s_lshl_b32 s74, s54, 3
s_and_b32 s23, s55, 7
s_add_u32 s74, s74, s23
s_add_u32 s74, s74, {WS_SY}
s_mov_b32 s75, 0
""")
    attention(a, "at", "L_k2_end")
    a("L_k2_end:\ns_endpgm")


def k3(a):
    kernel_header(a, "k3_kernel")
    a("""
s_cmp_ge_u32 s2, 256
s_cbranch_scc1 L_k3_end
s_load_dwordx2 s[32:33], s[0:1], 32
s_load_dwordx2 s[34:35], s[0:1], 80
s_load_dwordx2 s[48:49], s[0:1], 96
s_load_dwordx4 s[56:59], s[0:1], 48
s_and_b32 s30, s2, 7
s_lshr_b32 s31, s2, 3
s_waitcnt lgkmcnt(0)
""")
    TLK[0] = 2
    tl(a, 0)
    a("""
s_cmp_ge_u32 s2, 128
s_cbranch_scc1 L_k3_s2
s_and_b32 s50, s30, 1
s_lshl_b32 s50, s50, 2
s_and_b32 s51, s31, 3
s_add_u32 s50, s50, s51
s_lshr_b32 s51, s30, 1
s_lshl_b32 s51, s51, 2
s_lshr_b32 s52, s31, 2
s_add_u32 s51, s51, s52
""")
    srd(a, 4, 32, 33, 1024 * 2048)
    srd(a, 8, 48, 49, 2048 * 2048, WS_O)
    srd(a, 12, 34, 35, 2048 * 4096)
    a("""
s_lshl_b32 s16, s50, 8
s_lshl_b32 s17, s51, 18
s_lshl_b32 s21, s51, 19
s_add_u32 s21, s21, s16
""")
    gemm(a, "g5", 2, 2, 2, 'N', 2048, 2048, 16, 4, 4096, touch=(lambda: (edge_issue(a), edge_loads(a)), 20))
    edge_finish(a)
    tl(a, 5, True)
    a("""
s_endpgm
L_k3_s2:
s_sub_u32 s31, s31, 16
s_mov_b32 s50, s56
s_mov_b32 s51, s57
s_mov_b32 s52, s58
s_mov_b32 s53, s59
""")
    stage2(a)
    tl(a, 5, True)
    a("""
s_endpgm
L_k3_fb:
s_load_dwordx2 s[40:41], s[0:1], 40
s_load_dwordx4 s[44:47], s[0:1], 64
s_load_dwordx2 s[90:91], s[0:1], 88
s_mov_b32 s36, s34
s_mov_b32 s37, s35
s_mov_b32 s32, s50
s_mov_b32 s33, s51
s_mov_b32 s34, s52
s_mov_b32 s35, s53
s_waitcnt vmcnt(0) lgkmcnt(0)
s_barrier
""")
    srd(a, 12, 48, 49, WS_BYTES)
    g3(a)
    a("""
s_waitcnt vmcnt(0) lgkmcnt(0)
s_barrier
s_cmp_lg_u32 s22, 0
s_cbranch_scc1 L_k3_gb2
buffer_wbl2 sc1
s_waitcnt vmcnt(0)
v_mov_b32 v3, 0
v_mov_b32 v4, 1
s_mov_b64 exec, 1
global_atomic_add v3, v4, s[90:91] sc1
s_waitcnt vmcnt(0)
L_k3_gb1:
s_sleep 8
global_load_dword v5, v3, s[90:91] sc1
s_waitcnt vmcnt(0)
v_readfirstlane_b32 s23, v5
s_nop 3
s_cmp_lt_u32 s23, 128
s_cbranch_scc1 L_k3_gb1
s_mov_b64 exec, -1
buffer_inv sc1
s_waitcnt vmcnt(0)
L_k3_gb2:
s_barrier
""")
    g4(a)
    a("L_k3_end:\ns_endpgm")


def V(n):
    return 256 if os.environ.get('TL') else n


def main():
    a = Asm()
    hdr = open("cdna_kernels/" + KN + ".s.ref").read().split("; Override launch")[0]
    launches = """; @launch kernel=k2_kernel grid=(256,1,1) block=(512,1,1) lds=163840
; @launch kernel=k3_kernel grid=(256,1,1) block=(512,1,1) lds=147456
"""
    k2(a)
    k3(a)
    out = hdr + launches + '.amdgcn_target "amdgcn-amd-amdhsa--gfx950"\n.text\n' + a.text()
    out += '.section .rodata,"a"\n.p2align 6\n' + kernel_desc("k2_kernel", V(256), 102) + ".p2align 6\n" + kernel_desc("k3_kernel", V(248))
    open(sys.argv[1] if len(sys.argv) > 1 else "out.s", "w").write(out)


if __name__ == "__main__":
    main()
```

```python
import sys, os
PROF = os.environ.get('PROF'); NOMFMA = os.environ.get('NOMFMA'); NODMA = os.environ.get('NODMA')

KN = "concat_heads__grouped_kv_mqa__spectral_fnet__prompt"
WS_Q = 0
WS_KF = 4 << 20
WS_VF = (4 << 20) + (128 << 10)
WS_AB = 8 << 20
WS_O = 16 << 20
WS_XP = 26 << 20
WS_XM = 29 << 20
WS_AT = 32 << 20
WS_BT = 34 << 20
WS_FLAG = 36 << 20
ATP = 2176
QSCALE = 1.4426950408889634 * 32 ** -0.5


def f32bits(x):
    import struct
    return struct.unpack("<I", struct.pack("<f", x))[0]


class Asm:
    def __init__(self):
        self.lines = []

    def __call__(self, s):
        for l in s.strip("\n").split("\n"):
            self.lines.append(l if l.endswith(":") else "    " + l.strip())

    def text(self):
        return "\n".join(self.lines) + "\n"


def srd(a, d, lo, hi, nbytes, off=0):
    if off:
        a(f"s_add_u32 s{d}, s{lo}, {off}\ns_addc_u32 s{d+1}, s{hi}, 0")
    else:
        a(f"s_mov_b32 s{d}, s{lo}\ns_mov_b32 s{d+1}, s{hi}")
    a(f"s_mov_b32 s{d+2}, {nbytes}\ns_mov_b32 s{d+3}, 0x00020000")


FR = [16, 32]
UID = [0]
PROFOFF = {'g1': 0, 'g2': 0, 'g3': 0, 'g4': 65536, 'g5': 131072, 's1': 65536, 's2': 131072}
ACC = 64
DV = 48
RA = 128


def pipeline(a, tag, nsteps, NS, nu, dmas, reads, mfmas, nreads, kadv, switch=None, pre=None, setup=None, xtra=0):
    nd = len(dmas(0))

    def issue_all(stage):
        for g in dmas(stage % NS):
            for ins in g:
                a(ins)
        for ins in kadv:
            a(ins)

    for st in range(min(NS - 1, nsteps)):
        issue_all(st)
    if setup is not None:
        setup()
    if pre is not None:
        pre()
    a(f"s_waitcnt vmcnt({(min(NS - 1, nsteps) - 1) * nd + xtra})")
    a("s_barrier")
    stamp_begin(a, 72)
    tl(a, 1)
    for ins in reads(0, 0, 0):
        a(ins)
    state = {"set": 0}

    def step(i, dyn=False):
        do_dma = (i + NS - 1) <= nsteps - 1
        groups = list(dmas((i + NS - 1) % NS)) if do_dma else []
        if do_dma and switch is not None:
            if dyn:
                a(switch[2])
            elif i + NS - 1 == switch[0]:
                a(switch[1])
        mcount = len(mfmas(0))
        half = mcount // 2
        nm = (nu - 1) * mcount + half
        slots = [[] for _ in range(nu * mcount)]
        for gi, g in enumerate(groups):
            slots[min(nm - 1, gi * nm // max(1, len(groups)))].extend(g)
        if do_dma:
            slots[nm - 1].extend(kadv)
        last_issued = min(i + NS - 1, nsteps - 1)
        mi = 0

        def emit_m(ms):
            nonlocal mi
            for m in ms:
                if not NOMFMA:
                    a(m)
                for ins in slots[mi]:
                    if NODMA and 'buffer_load' in ins:
                        continue
                    a(ins)
                mi += 1

        for ul in range(nu):
            cur = state["set"]
            nxt = 1 - cur
            ms = mfmas(cur)
            if ul + 1 < nu:
                rd = reads(i % NS, ul + 1, nxt)
                for ins in rd:
                    a(ins)
                a(f"s_waitcnt lgkmcnt({len(rd)})")
                emit_m(ms)
            else:
                a("s_waitcnt lgkmcnt(0)")
                emit_m(ms[:half])
                if i + 1 <= nsteps - 1:
                    a(f"s_waitcnt vmcnt({(last_issued - (i + 1)) * nd + (xtra if (i + 1 <= NS - 2 and not dyn) else 0)})")
                    a("s_barrier")
                    for ins in reads((i + 1) % NS, 0, nxt):
                        a(ins)
                emit_m(ms[half:])
            state["set"] = nxt

    xtra_block = False
    steady_end = nsteps - NS + 1
    unroll = NS if (nu % 2 == 0 or NS % 2 == 0) else 2 * NS
    nloop = steady_end // unroll
    if nloop >= 2 and nsteps > int(os.environ.get('LOOPMIN', '16')) and not xtra_block:
        UID[0] += 1
        lab = f"L_{tag}_loop{UID[0]}"
        a(f"s_mov_b32 s19, 0")
        a(f"{lab}:")
        for i in range(unroll):
            step(i, dyn=True)
        a(f"s_add_u32 s19, s19, 1\ns_cmp_lt_u32 s19, {nloop}\ns_cbranch_scc1 {lab}")
        start = nloop * unroll
    else:
        start = 0
    for i in range(start, nsteps):
        step(i)
    stamp_end(a, PROFOFF[tag], 72)
    tl(a, 2)


def stamp_begin(a, base=66):
    if PROF:
        a(f"s_memtime s[{base}:{base+1}]\ns_memrealtime s[{base+4}:{base+5}]\ns_waitcnt lgkmcnt(0)")


def stamp_end(a, off, base=66):
    if PROF:
        a(f"""s_memtime s[{base+2}:{base+3}]
s_memrealtime s[{base+6}:{base+7}]
s_waitcnt lgkmcnt(0)
s_sub_u32 s{base+2}, s{base+2}, s{base}
s_sub_u32 s{base+6}, s{base+6}, s{base+4}
s_load_dwordx2 s[{base}:{base+1}], s[0:1], 96
s_waitcnt lgkmcnt(0)
s_add_u32 s{base}, s{base}, {24<<20}
s_addc_u32 s{base+1}, s{base+1}, 0
v_mov_b32 v6, s{base+2}
v_mov_b32 v7, s{base+6}
s_lshl_b32 s23, s2, 6
s_lshl_b32 s{base+2}, s22, 3
s_add_u32 s23, s23, s{base+2}
s_add_u32 s23, s23, {off}
v_mov_b32 v5, s23
global_store_dwordx2 v5, v[6:7], s[{base}:{base+1}]
""")


TLK = [0]


def tl(a, slot, drain=False):
    if not os.environ.get('TL'):
        return
    if drain:
        a("s_waitcnt vmcnt(0)")
    b = 66 if TLK[0] == 1 else 80
    va, vb = (6, 7) if TLK[0] == 1 else (254, 255)
    a(f"""s_memrealtime s[{b}:{b+1}]
s_load_dwordx2 s[{b+2}:{b+3}], s[0:1], 96
s_waitcnt lgkmcnt(0)
s_add_u32 s{b+2}, s{b+2}, {(24<<20) + (512<<10) + TLK[0]*65536 + slot*4}
s_addc_u32 s{b+3}, s{b+3}, 0
s_lshl_b32 s{b+4}, s2, 6
v_mov_b32 v{va}, s{b+4}
v_mov_b32 v{vb}, s{b}
v_cmp_eq_u32 vcc, 0, v0
s_and_saveexec_b64 s[{b+6}:{b+7}], vcc
global_store_dword v{va}, v{vb}, s[{b+2}:{b+3}]
s_mov_b64 exec, s[{b+6}:{b+7}]
""")


def wave_setup(a):
    a("""
v_lshrrev_b32 v1, 6, v0
s_nop 0
v_readfirstlane_b32 s22, v1
v_and_b32 v2, 63, v0
s_nop 2
s_lshl_b32 s18, s22, 10
""")


def t_dma_voff(a, vdst, n, pitch):
    a(f"""
v_lshrrev_b32 v3, 3, v2
v_lshl_add_u32 v3, v1, 3, v3
v_bfe_u32 v4, v3, 1, 3
v_and_b32 v5, 7, v2
v_xor_b32 v4, v4, v5
v_lshlrev_b32 v4, 4, v4
s_mov_b32 s23, {pitch}
v_mul_lo_u32 v3, v3, s23
v_add_u32 v{vdst}, v3, v4
""")
    for i in range(1, n):
        a(f"v_add_u32 v{vdst+i}, {i*64*pitch}, v{vdst}")


def n_dma_voff(a, vdst, n, pitch, MT):
    lpr = MT * 2 // 16
    rows = 64 // lpr
    sh = lpr.bit_length() - 1
    a(f"""
v_lshrrev_b32 v3, {sh}, v2
v_lshl_add_u32 v3, v1, {rows.bit_length()-1}, v3
v_and_b32 v5, {lpr-1}, v2
v_lshrrev_b32 v6, 2, v5
v_and_b32 v4, 3, v3
v_xor_b32 v6, v6, v4
v_and_b32 v5, 3, v5
v_lshlrev_b32 v5, 4, v5
v_lshl_add_u32 v5, v6, 6, v5
s_mov_b32 s23, {pitch}
v_mul_lo_u32 v3, v3, s23
v_add_u32 v{vdst}, v3, v5
""")
    for i in range(1, n):
        a(f"v_add_u32 v{vdst+i}, {i*8*rows*pitch}, v{vdst}")


def t_read_addr(a, vdst, nu, srow, skg2, base, NS, STAGE, stride):
    a(f"""
v_and_b32 v3, 31, v2
v_bfe_u32 v4, v3, 1, 3
v_lshrrev_b32 v5, 5, v2
v_xor_b32 v4, v4, v5
v_xor_b32 v4, s{skg2}, v4
v_add_u32 v3, s{srow}, v3
v_lshlrev_b32 v3, 7, v3
v_lshl_add_u32 v3, v4, 4, v3
""")
    for st in range(NS):
        for ul in range(nu):
            if ul == 0:
                a(f"v_add_u32 v{vdst+st*stride}, {base+st*STAGE}, v3")
            else:
                a(f"v_xor_b32 v{vdst+st*stride+ul}, {ul*32}, v{vdst+st*stride}")


def n_read_addr(a, vdst, sunit, skrow, LP, base, NS, STAGE, stride, nblk=2):
    a(f"""
v_bfe_u32 v3, v2, 2, 2
v_lshrrev_b32 v4, 5, v2
v_lshl_add_u32 v4, v4, 3, v3
s_mov_b32 s23, {LP}
v_mul_lo_u32 v4, v4, s23
v_add_u32 v4, s{skrow}, v4
v_bfe_u32 v5, v2, 4, 1
v_lshl_add_u32 v4, v5, 5, v4
v_and_b32 v5, 3, v2
v_lshl_add_u32 v4, v5, 3, v4
""")
    for b in range(nblk):
        a(f"""
s_add_u32 s23, s{sunit}, {b}
v_xor_b32 v5, s23, v3
v_lshl_add_u32 v5, v5, 6, v4
""")
        for st in range(NS):
            a(f"v_add_u32 v{vdst+st*stride+b}, {base+st*STAGE}, v5")


def gemm(a, tag, WM, WN, KS, ptype, pP, pR, nsteps, NS, opitch, scale=False, switch=None, touch=None):
    assert WM * WN * KS == 8
    MT, NT = 64 * WM, 64 * WN
    PB, RB = MT * 128, NT * 128
    STAGE = PB + RB
    nu = 4 // KS
    ncP, ncR = PB // 8192, RB // 8192
    wave_setup(a)
    lw = (WM * WN).bit_length() - 1
    lm = WM.bit_length() - 1
    a(f"""
s_lshr_b32 s24, s22, {lw}
s_and_b32 s25, s22, {WM-1}
s_lshr_b32 s26, s22, {lm}
s_and_b32 s26, s26, {WN-1}
""")
    if ptype == 'T':
        t_dma_voff(a, DV, ncP, pP)
    else:
        n_dma_voff(a, DV, ncP, pP, MT)
    t_dma_voff(a, DV + ncP, ncR, pR)
    nP = nu if ptype == 'T' else 2
    stride = nP + nu

    def setup():
        if touch:
            touch[0]() if callable(touch[0]) else a(touch[0])
        a(f"s_mul_i32 s27, s24, {nu*2}")
        if ptype == 'T':
            a(f"s_lshl_b32 s28, s25, 6")
            t_read_addr(a, RA, nu, 28, 27, 0, NS, STAGE, stride)
        else:
            a(f"s_lshl_b32 s28, s25, 1\ns_mul_i32 s29, s24, {nu*16*MT*2}")
            n_read_addr(a, RA, 28, 29, MT * 2, 0, NS, STAGE, stride)
        a(f"s_lshl_b32 s28, s26, 6")
        t_read_addr(a, RA + nP, nu, 28, 27, PB, NS, STAGE, stride)
        for i in range(64):
            a(f"v_mov_b32 v{ACC+i}, 0")

    def dmas(st):
        r = []
        for i in range(ncP):
            r.append([f"s_add_u32 m0, s18, {st*STAGE + i*8192}", "s_nop 0",
                      f"buffer_load_dwordx4 v{DV+i}, s[4:7], s16 offen lds"])
        for i in range(ncR):
            r.append([f"s_add_u32 m0, s18, {st*STAGE + PB + i*8192}", "s_nop 0",
                      f"buffer_load_dwordx4 v{DV+ncP+i}, s[8:11], s17 offen lds"])
        return r

    def reads(st, ul, fs):
        f = FR[fs]
        r = []
        if ptype == 'T':
            for b in range(2):
                r.append(f"ds_read_b128 v[{f+4*b}:{f+4*b+3}], v{RA+st*stride+ul} offset:{b*4096}")
        else:
            for b in range(2):
                for rr in range(2):
                    r.append(f"ds_read_b64_tr_b16 v[{f+4*b+2*rr}:{f+4*b+2*rr+1}], v{RA+st*stride+b} offset:{(16*ul+4*rr)*MT*2}")
        for b in range(2):
            r.append(f"ds_read_b128 v[{f+8+4*b}:{f+8+4*b+3}], v{RA+st*stride+nP+ul} offset:{b*4096}")
        return r

    def mfmas(fs):
        f = FR[fs]
        r = []
        for nb in range(2):
            for mb in range(2):
                c = ACC + 16 * (nb * 2 + mb)
                r.append(f"v_mfma_f32_32x32x16_bf16 v[{c}:{c+15}], v[{f+4*mb}:{f+4*mb+3}], v[{f+8+4*nb}:{f+8+4*nb+3}], v[{c}:{c+15}]")
        return r

    kadv = [f"s_add_u32 s16, s16, {128 if ptype == 'T' else 64*pP}", "s_add_u32 s17, s17, 128"]
    pipeline(a, tag, nsteps, NS, nu, dmas, reads, mfmas, None, kadv, switch, setup=setup, xtra=(touch[1] if touch else 0))

    a("s_nop 15\ns_nop 3")
    blocks = [(nb, mb) for nb in range(2) for mb in range(2)]
    if KS == 2:
        a("s_barrier")
        a(f"""
v_lshlrev_b32 v3, 4, v2
s_lshl_b32 s23, s22, 13
v_add_u32 v3, s23, v3
s_xor_b32 s23, s22, 4
s_lshl_b32 s23, s23, 13
v_lshlrev_b32 v4, 4, v2
v_add_u32 v4, s23, v4
s_cmp_eq_u32 s24, 0
s_cbranch_scc1 L_{tag}_x0
""")
        for j in range(8):
            a(f"ds_write_b128 v3, v[{ACC+4*j}:{ACC+4*j+3}] offset:{j*1024}")
        for j in range(32):
            a(f"v_mov_b32 v{ACC+j}, v{ACC+32+j}")
        a(f"s_branch L_{tag}_x1\nL_{tag}_x0:")
        for j in range(8):
            a(f"ds_write_b128 v3, v[{ACC+32+4*j}:{ACC+32+4*j+3}] offset:{j*1024}")
        a(f"L_{tag}_x1:\ns_waitcnt lgkmcnt(0)\ns_barrier")
        for j in range(8):
            a(f"ds_read_b128 v[{ACC+32+4*j}:{ACC+32+4*j+3}], v4 offset:{j*1024}")
        for j in range(8):
            a(f"s_waitcnt lgkmcnt({7-j})")
            for r in range(4):
                a(f"v_add_f32 v{ACC+4*j+r}, v{ACC+4*j+r}, v{ACC+32+4*j+r}")
        blocks = [(0, 0), (0, 1)]
    a(f"""
s_lshl_b32 s23, s26, 6
v_and_b32 v3, 31, v2
v_add_u32 v3, s23, v3
""")
    if KS == 2:
        a("s_lshl_b32 s23, s24, 5\nv_add_u32 v3, s23, v3")
    a(f"""
s_mov_b32 s23, {opitch}
v_mul_lo_u32 v3, v3, s23
v_lshrrev_b32 v4, 5, v2
v_lshl_add_u32 v3, v4, 4, v3
s_lshl_b32 s23, s25, 7
s_add_u32 s23, s23, s21
v_add_u32 v3, s23, v3
v_add_u32 v4, {32*opitch}, v3
""")
    for bi, (nb, mb) in enumerate(blocks):
        c = ACC + 16 * (nb * 2 + mb)
        t = 16 + 8 * (bi % 4)
        if scale:
            for r in range(16):
                a(f"v_mul_f32 v{c+r}, s20, v{c+r}")
        for r in range(8):
            a(f"v_cvt_pk_bf16_f32 v{t+r}, v{c+2*r}, v{c+2*r+1}")
        a("s_nop 1")
        for p in range(2):
            a(f"v_permlane32_swap_b32 v{t+4*p}, v{t+4*p+2}\nv_permlane32_swap_b32 v{t+4*p+1}, v{t+4*p+3}")
        for p in range(2):
            a(f"buffer_store_dwordx4 v[{t+4*p}:{t+4*p+3}], v{3+nb}, s[12:15], 0 offen offset:{mb*64+p*32}")


def gemm_kv(a, tag, NS=4):
    PB, RB = 8192, 16384
    STAGE = PB + RB
    nu = 4
    a(f"""
v_and_b32 v3, 3, v1
v_lshlrev_b32 v3, 10, v3
v_lshl_add_u32 v{DV}, v2, 4, v3
""")
    t_dma_voff(a, DV + 1, 2, 2048)
    stride = 1 + nu

    def dmas(st):
        r_ = [[f"s_add_u32 m0, s18, {st*STAGE}", "s_nop 0", f"buffer_load_dwordx4 v{DV}, s[4:7], s16 offen lds"]]
        for i in range(2):
            r_.append([f"s_add_u32 m0, s18, {st*STAGE + PB + i*8192}", "s_nop 0",
                       f"buffer_load_dwordx4 v{DV+1+i}, s[8:11], s17 offen lds"])
        return r_

    def setup():
        a(f"""
v_bfe_u32 v3, v2, 2, 2
v_lshrrev_b32 v4, 5, v2
v_lshl_add_u32 v4, v4, 3, v3
v_lshlrev_b32 v4, 6, v4
v_bfe_u32 v5, v2, 4, 1
v_lshl_add_u32 v4, v5, 5, v4
v_and_b32 v5, 3, v2
v_lshl_add_u32 v4, v5, 3, v4
v_lshrrev_b32 v5, 2, v1
v_lshl_add_u32 v4, v5, 12, v4
""")
        for st in range(NS):
            a(f"v_add_u32 v{RA+st*stride}, {st*STAGE}, v4")
        a("s_mov_b32 s27, 0\ns_and_b32 s28, s22, 3\ns_lshl_b32 s28, s28, 5")
        t_read_addr(a, RA + 1, nu, 28, 27, PB, NS, STAGE, stride)
        for i in range(16):
            a(f"v_mov_b32 v{ACC+i}, 0")

    def reads(st, ul, fs):
        f = FR[fs]
        r_ = []
        for rr in range(2):
            r_.append(f"ds_read_b64_tr_b16 v[{f+2*rr}:{f+2*rr+1}], v{RA+st*stride} offset:{(16*ul+4*rr)*64}")
        r_.append(f"ds_read_b128 v[{f+8}:{f+11}], v{RA+st*stride+1+ul}")
        return r_

    kadv = ["s_add_u32 s16, s16, 4096", "s_add_u32 s17, s17, 128"]
    a(f"s_cmp_ge_u32 s22, 4\ns_cbranch_scc1 L_{tag}_v")
    for kv in range(2):
        if kv:
            a(f"L_{tag}_v:")

        def mfmas(fs):
            f = FR[fs]
            if kv == 0:
                return ["s_nop 0", f"v_mfma_f32_32x32x16_bf16 v[{ACC}:{ACC+15}], v[{f}:{f+3}], v[{f+8}:{f+11}], v[{ACC}:{ACC+15}]"]
            return ["s_nop 0", f"v_mfma_f32_32x32x16_bf16 v[{ACC}:{ACC+15}], v[{f+8}:{f+11}], v[{f}:{f+3}], v[{ACC}:{ACC+15}]"]

        pipeline(a, tag, 16, NS, nu, dmas, reads, mfmas, None, kadv, setup=setup)
        a("s_nop 15\ns_nop 3")
        a(f"""
s_and_b32 s23, s22, 3
s_add_u32 s23, s21, s23
s_lshl_b32 s23, s23, 12
v_lshlrev_b32 v3, 4, v2
v_add_u32 v3, s23, v3
v_add_u32 v3, {WS_KF + 2048*kv}, v3
""")
        for r_ in range(8):
            a(f"v_cvt_pk_bf16_f32 v{16+r_}, v{ACC+2*r_}, v{ACC+2*r_+1}")
        if kv == 0:
            a("s_nop 1")
            for p in range(2):
                a(f"v_permlane32_swap_b32 v{16+4*p}, v{16+4*p+2}\nv_permlane32_swap_b32 v{16+4*p+1}, v{16+4*p+3}")
        for p in range(2):
            a(f"buffer_store_dwordx4 v[{16+4*p}:{16+4*p+3}], v3, s[12:15], 0 offen offset:{p*1024}")
        if kv == 0:
            tl(a, 5, True)
            a("s_endpgm")


def kernel_header(a, name):
    a.lines.append(f".globl {name}\n.p2align 8\n.type {name},@function\n{name}:")


def kernel_desc(name, vgpr, sgpr=100):
    return f""".amdhsa_kernel {name}
  .amdhsa_next_free_vgpr {vgpr}
  .amdhsa_next_free_sgpr {sgpr}
  .amdhsa_accum_offset {(vgpr+3)//4*4}
  .amdhsa_group_segment_fixed_size 0
  .amdhsa_kernarg_size 104
  .amdhsa_user_sgpr_count 2
  .amdhsa_user_sgpr_kernarg_segment_ptr 1
  .amdhsa_system_sgpr_workgroup_id_x 1
.end_amdhsa_kernel
"""


WS_BYTES = 40 << 20


def g4(a):
    a("""
s_and_b32 s50, s30, 1
s_lshl_b32 s50, s50, 2
s_and_b32 s51, s31, 3
s_add_u32 s50, s50, s51
s_lshr_b32 s51, s30, 1
s_lshl_b32 s51, s51, 2
s_lshr_b32 s52, s31, 2
s_add_u32 s51, s51, s52
""")
    if os.environ.get('SAMETILE') == '1':
        a("s_mov_b32 s50, 0\ns_mov_b32 s51, 0")
    if os.environ.get('SAMETILE') == '2':
        a("s_and_b32 s50, s30, 7\ns_mov_b32 s51, s30")
    if os.environ.get('SAMETILE') == '3':
        a("s_and_b32 s50, s2, 7\ns_lshr_b32 s51, s2, 3")
    srd(a, 4, 48, 49, 2048 * 4096, WS_AB)
    srd(a, 8, 32, 33, 2048 * 4096)
    srd(a, 12, 36, 37, 2048 * 4096)
    a("""
s_lshl_b32 s16, s50, 19
s_lshl_b32 s17, s51, 19
s_lshl_b32 s21, s50, 8
s_add_u32 s21, s21, s17
s_add_u32 s21, s21, 2048
s_add_u32 s53, s17, 4096
""")
    sw = f"""
s_mov_b32 s8, s34
s_mov_b32 s9, s35
s_sub_u32 s17, s17, 4096
s_add_u32 s16, s16, {1024*4096 - 4096}
s_mov_b32 s53, -1
"""
    uid = [0]

    class Dyn(str):
        pass
    dyn = f"""
s_cmp_eq_u32 s17, s53
s_cselect_b32 s8, s34, s8
s_cselect_b32 s9, s35, s9
s_cselect_b32 s23, 4096, 0
s_cselect_b32 s54, {1024*4096 - 4096}, 0
s_cselect_b32 s53, -1, s53
s_sub_u32 s17, s17, s23
s_add_u32 s16, s16, s54
"""
    gemm(a, "g4", 2, 2, 2, 'T', 4096, 4096, 64, 4, 4096, switch=(32, sw, dyn))


TPS = 8
ASTAGE = TPS * 4096
ANS = 3
NSTG = 64 // TPS
Q0, KF_, VF_, P_, ONES, LA, LB, NEGM, SX, SY, OA, OB = 16, 32, 40, 48, 56, 60, 64, 72, 88, 104, 120, 136
ST, KT, VT, PT = 152, 168, 176, 184
THR1 = 2.0 ** int(os.environ.get('THR1', '60'))
THR2 = 2.0 ** 120
MARGIN = int(os.environ.get('MARGIN', '60'))


def r(b, n):
    return f"v[{b}:{b+n-1}]"


def mf32(d, a_, b_, c):
    return f"v_mfma_f32_32x32x16_bf16 {r(d,16)}, {r(a_,4)}, {r(b_,4)}, {r(c,16) if isinstance(c,int) else c}"


def mf16(d, a_, b_, c):
    return f"v_mfma_f32_16x16x32_bf16 {r(d,4)}, {r(a_,4)}, {r(b_,4)}, {r(c,4)}"


def attn_dma(a, i):
    a(f"s_add_u32 m0, s17, {i*8192}\ns_nop 0\nbuffer_load_dwordx4 v{12+i}, s[12:15], s16 offen lds")


def attn_dma_adv(a):
    a(f"""
s_add_u32 s16, s16, {ASTAGE}
s_add_u32 s17, s17, {ASTAGE}
s_sub_u32 s30, s17, {ANS*ASTAGE}
s_cmp_ge_u32 s17, {ANS*ASTAGE}
s_cselect_b32 s17, s30, s17
""")


def cap(fn, *args):
    t = Asm()
    fn(t, *args)
    return [l.strip() for l in t.lines]


def attn_tile(a, g, tt, X, Y, Oc, Od, lc, ld, H, nx):
    cur, nxt = (g % ANS) * ASTAGE, ((g + 1) % ANS) * ASTAGE

    def rd(dst, t2, part):
        if g == NSTG - 1 and t2 >= TPS:
            t2 = TPS - 1
        base = cur if t2 < TPS else nxt
        off = base + (t2 % TPS) * 4096 + part * 1024
        a(f"ds_read_b128 {r(dst,4)}, v{10 + off // 65536} offset:{off % 65536}")
    last = (tt == TPS - 1)
    E = lambda i: a(f"v_exp_f32 v{X+i}, v{X+i}")
    C = lambda i: a(f"v_cvt_pk_bf16_f32 v{P_+i}, v{X+2*i}, v{X+2*i+1}")

    def hook(k):
        for ins in H.get(k, []):
            a(ins)
    hook('pre')
    a(f"s_waitcnt lgkmcnt({2 + nx})")
    a(mf32(Y, KF_, Q0, NEGM))
    for i in range(4): E(i)
    a("s_waitcnt lgkmcnt(0)")
    hook(0)
    if tt > 0:
        a(mf32(Od, VF_ + 4, P_ + 4, Od))
    if last:
        rd(VF_ + 4, tt, 3)
    for i in range(4, 6): E(i)
    hook('m0')
    for i in range(6, 8): E(i)
    hook(1)
    if tt > 0:
        a(mf16(ld, ONES, P_ + 4, ld))
    for i in range(4): C(i)
    a(mf32(Y, KF_ + 4, Q0 + 4, Y))
    hook(2)
    rd(KF_, tt + 2, 0)
    rd(KF_ + 4, tt + 2, 1)
    for i in range(8, 10): E(i)
    hook('m1')
    for i in range(10, 12): E(i)
    a(mf32(Od, VF_, P_, Oc))
    if not last:
        rd(VF_ + 4, tt, 3)
    rd(VF_, tt + 1, 2)
    for i in range(12, 14): E(i)
    hook('m2')
    for i in range(14, 16): E(i)
    hook(3)
    a(mf16(ld, ONES, P_, lc))
    hook('end')
    for i in range(4, 8): C(i)
    hook('m3')
    if last:
        assert not H.get('end')
        a("s_waitcnt lgkmcnt(3)\ns_nop 0")
        a(mf32(Od, VF_ + 4, P_ + 4, Od))
        a(mf16(ld, ONES, P_ + 4, ld))


def attn_slow(a, tag, Oold, Onew, lold, lnew, Snext, sbase):
    a(f"L_{tag}_slow:")
    a("s_nop 15")
    a(f"v_cmp_nlt_f32 vcc, v{lnew}, s29\ns_nop 4\ns_cbranch_vccnz L_{tag}_heavy")
    a(f"""
v_frexp_exp_i32_f32 v3, v{lnew}
v_add_u32 v3, {MARGIN}, v3
v_cvt_f32_i32 v4, v3
v_sub_u32 v3, 0, v3
""")
    for i in range(16): a(f"v_ldexp_f32 v{Onew+i}, v{Onew+i}, v3")
    for i in range(4): a(f"v_ldexp_f32 v{lnew+i}, v{lnew+i}, v3")
    for i in range(16): a(f"v_sub_f32 v{NEGM+i}, v{NEGM+i}, v4")
    for i in range(16): a(f"v_sub_f32 v{Snext+i}, v{Snext+i}, v4")
    a(f"s_nop 1\ns_branch L_{tag}_ret")
    a(f"L_{tag}_heavy:")
    a(f"s_waitcnt lgkmcnt(0)\nv_log_f32 v5, v{lold}\nv_add_u32 v6, {sbase}, v10\ns_mov_b32 s30, 0")
    a(f"L_{tag}_h1:")
    a(f"ds_read_b128 {r(KT,4)}, v6\nds_read_b128 {r(KT+4,4)}, v6 offset:1024\ns_waitcnt lgkmcnt(0)")
    a(mf32(ST, KT, Q0, NEGM)); a(mf32(ST, KT + 4, Q0 + 4, ST))
    a("s_nop 15")
    for i in range(8): a(f"v_max3_f32 v5, v{ST+2*i}, v{ST+2*i+1}, v5")
    a(f"v_add_u32 v6, 4096, v6\ns_add_u32 s30, s30, 1\ns_cmp_lt_u32 s30, {TPS}\ns_cbranch_scc1 L_{tag}_h1")
    a(f"""
v_mov_b32 v6, v5
s_nop 1
v_permlane32_swap_b32 v5, v6
s_nop 1
v_max_f32 v5, v5, v6
v_ceil_f32 v4, v5
v_add_f32 v4, {f32bits(float(MARGIN))}, v4
v_cvt_i32_f32 v3, v4
v_sub_u32 v3, 0, v3
""")
    for i in range(16): a(f"v_ldexp_f32 v{Onew+i}, v{Oold+i}, v3")
    for i in range(4): a(f"v_ldexp_f32 v{lnew+i}, v{lold+i}, v3")
    for i in range(16): a(f"v_sub_f32 v{NEGM+i}, v{NEGM+i}, v4")
    for i in range(16): a(f"v_sub_f32 v{Snext+i}, v{Snext+i}, v4")
    a(f"v_add_u32 v6, {sbase}, v10\ns_mov_b32 s30, 0")
    a(f"L_{tag}_h2:")
    a(f"ds_read_b128 {r(KT,4)}, v6\nds_read_b128 {r(KT+4,4)}, v6 offset:1024\nds_read_b128 {r(VT,4)}, v6 offset:2048\nds_read_b128 {r(VT+4,4)}, v6 offset:3072\ns_waitcnt lgkmcnt(0)")
    a(mf32(ST, KT, Q0, NEGM)); a(mf32(ST, KT + 4, Q0 + 4, ST))
    a("s_nop 15")
    for i in range(16): a(f"v_exp_f32 v{ST+i}, v{ST+i}")
    a("s_nop 0")
    for i in range(8): a(f"v_cvt_pk_bf16_f32 v{PT+i}, v{ST+2*i}, v{ST+2*i+1}")
    a("s_nop 1")
    a(mf32(Onew, VT, PT, Onew)); a(mf32(Onew, VT + 4, PT + 4, Onew))
    a(mf16(lnew, ONES, PT, lnew)); a(mf16(lnew, ONES, PT + 4, lnew))
    a(f"v_add_u32 v6, 4096, v6\ns_add_u32 s30, s30, 1\ns_cmp_lt_u32 s30, {TPS}\ns_cbranch_scc1 L_{tag}_h2")
    a(f"s_nop 7\ns_branch L_{tag}_ret")


def kv_dma(a, g, i):
    a(f"s_add_u32 m0, s18, {(g % ANS)*ASTAGE + i*8192}\ns_mov_b32 s16, {g*ASTAGE}\nbuffer_load_dwordx4 v{12+i}, s[12:15], s16 offen lds")


def attention(a, tag, endlabel):
    wave_setup(a)
    stamp_begin(a)
    tl(a, 3)
    a(f"""
v_lshlrev_b32 v9, 4, v2
v_lshl_add_u32 v12, v1, 10, v9
v_add_u32 v12, {WS_KF}, v12
v_add_u32 v13, 8192, v12
v_add_u32 v14, 16384, v12
v_add_u32 v15, 24576, v12
v_and_b32 v5, 31, v2
v_lshl_add_u32 v4, v1, 5, v5
v_lshrrev_b32 v5, 5, v2
v_lshlrev_b32 v5, 4, v5
v_lshl_add_u32 v8, v4, 6, v5
""")
    a(f"buffer_load_dwordx4 {r(Q0,4)}, v8, s[12:15], s26 offen\nbuffer_load_dwordx4 {r(Q0+4,4)}, v8, s[12:15], s26 offen offset:32")
    for g in range(2):
        for i in range(4): kv_dma(a, g, i)
    stage1_setup(a)
    for b in range(2):
        for i in range(4): s1_dma(a, b, i)
    a(f"""
s_mov_b32 s28, {f32bits(THR1)}
s_mov_b32 s29, {f32bits(THR2)}
v_mov_b32 v10, v9
v_add_u32 v11, 65536, v9
""")
    stage1_setup2(a)
    verify_setup(a)
    a(f"""
v_lshrrev_b32 v4, 2, v2
v_lshrrev_b32 v5, 4, v2
v_xor_b32 v4, v4, v5
v_and_b32 v4, 1, v4
v_cmp_eq_u32 vcc, 0, v4
v_mov_b32 v5, 0x3f803f80
s_nop 1
v_cndmask_b32 v{ONES}, 0, v5, vcc
v_mov_b32 v{ONES+1}, v{ONES}
v_mov_b32 v{ONES+2}, v{ONES}
v_mov_b32 v{ONES+3}, v{ONES}
""")
    for i in range(16): a(f"v_mov_b32 v{OB+i}, 0")
    for i in range(4): a(f"v_mov_b32 v{LB+i}, 0")
    a(f"v_mov_b32 v{VMAX}, 0")
    a("s_waitcnt vmcnt(12)\ns_barrier")
    a(f"ds_read_b128 {r(KF_,4)}, v10\nds_read_b128 {r(KF_+4,4)}, v10 offset:1024")
    a("s_waitcnt lgkmcnt(0)")
    a(mf32(SX, KF_, Q0, "0")); a(mf32(SX, KF_ + 4, Q0 + 4, SX))
    a(f"ds_read_b128 {r(KF_,4)}, v10 offset:4096\nds_read_b128 {r(KF_+4,4)}, v10 offset:{4096+1024}")
    a(f"ds_read_b128 {r(VF_+4,4)}, v10 offset:3072\nds_read_b128 {r(VF_,4)}, v10 offset:2048")
    a("s_nop 11")
    a(f"v_max3_f32 v5, v{SX}, v{SX+1}, v{SX+2}")
    for i in range(6): a(f"v_max3_f32 v5, v{SX+3+2*i}, v{SX+4+2*i}, v5")
    a(f"""
v_max_f32 v5, v{SX+15}, v5
v_mov_b32 v6, v5
s_nop 1
v_permlane32_swap_b32 v5, v6
s_nop 1
v_max_f32 v5, v5, v6
v_add_f32 v5, {f32bits(float(MARGIN))}, v5
""")
    for i in range(16): a(f"v_sub_f32 v{NEGM+i}, 0, v5")
    for i in range(16): a(f"v_sub_f32 v{SX+i}, v{SX+i}, v5")
    tl(a, 4)

    HK = {}

    def add(g, tt, slot, lines):
        HK.setdefault((g, tt), {}).setdefault(slot, []).extend(lines)
    BT_ = TPS - 2
    for g in range(NSTG):
        add(g, BT_, 'pre', ["s_waitcnt vmcnt(0)" + (" lgkmcnt(0)" if g == NSTG - 1 else ""), "s_barrier"])
        if g + 2 < NSTG:
            for i in range(4): add(g, BT_, i, cap(kv_dma, g + 2, i))
    add(0, 3, 'pre', ["s_waitcnt vmcnt(0)", "s_barrier"])

    def s1_step(g, tt, buf):
        add(g, tt, 'end', cap(s1_reads, buf))
        for i in range(4): add(g, tt + 1, f"m{i}", cap(s1_mfma, i))
    s1_step(0, 3, 0)
    for j in range(7):
        s1_step(j, BT_, (j + 1) & 1)
        if j + 2 <= 7:
            for i in range(4): add(j + 1, 0, i, cap(s1_dma, j & 1, i))
    add(7, 0, 'pre', f"""
s_and_b32 s27, s22, 1
s_lshr_b32 s25, s22, 1
s_and_b32 s23, s22, 3
s_lshl_b32 s23, s23, 13
s_cmp_ge_u32 s22, 4
s_cselect_b32 s30, 0, {S1B - (5 % ANS)*ASTAGE}
s_add_u32 s30, s30, {(5 % ANS)*ASTAGE}
s_add_u32 s23, s23, s30
v_add_u32 v{S1A}, s23, v9
s_lshl_b32 s23, s25, 11
s_lshl_b32 s30, s27, 13
s_add_u32 s23, s23, s30
v_add_u32 v{S1A+2}, s23, v9
v_add_u32 v{S1A+1}, {S1B}, v{S1A+2}
v_add_u32 v{S1A+2}, {(5 % ANS)*ASTAGE}, v{S1A+2}
""".strip().split("\n"))
    for j in range(8):
        add(7, 1 + j // 3, j % 3, [f"ds_write_b128 v{S1A}, v[{S1ACC+4*j}:{S1ACC+4*j+3}] offset:{j*1024}"])
    add(7, BT_, 'end', [f"ds_read_b128 v[{S1ACC+8*i+4*j}:{S1ACC+8*i+4*j+3}], v{S1A+1+i//2} offset:{(i%2)*16384+j*1024}" for i in range(4) for j in range(2)])
    def vchk(g, loads, AM):
        for i, ld_ in enumerate(loads):
            add(*((0, 4) if g == 0 else (g - 1, 7)), i, ld_)
            add(g, BT_, i, [f"v_mfma_f32_16x16x32_bf16 {r(VB+12+4*i,4)}, {r(AM,4)}, {r(VB+4*i,4)}, 0"])
            add(g, TPS - 1, i, [f"v_max3_f32 v{VMAX}, |v{VB+12+4*i}|, |v{VB+13+4*i}|, v{VMAX}", f"v_max3_f32 v{VMAX}, |v{VB+14+4*i}|, |v{VB+15+4*i}|, v{VMAX}"])
    ldn = lambda i, off: [f"buffer_load_dwordx4 v[{VB+4*i}:{VB+4*i+3}], v{VAD}, s[76:79], 0 offen offset:{off}"]
    vchk(0, [ldn(0, 0)], AMN)
    vchk(1, [ldn(0, 512), ldn(1, 1024), ldn(2, 1536)], AMN)
    vchk(2, [ldn(0, 2048), ldn(1, 2560)], AMN)
    vchk(3, [ldn(0, 3072), ldn(1, 3584)], AMN)
    add(3, 7, 'pre', cap(verify_w_switch))
    vchk(4, [[f"buffer_load_dwordx4 v[{VB+4*i}:{VB+4*i+3}], v{VAD}, s[84:87], s63 offen offset:{i*512}"] for i in range(2)]
         + [[f"buffer_load_dwordx4 v[{VB+8}:{VB+11}], v7, s[76:79], 0 offen"]], AMN)
    add(4, 7, 'pre', cap(verify_r_switch))
    ldr = lambda i: [f"buffer_load_dwordx4 v[{VB+4*i}:{VB+4*i+3}], v{VRV}, s[76:79], 0 offen", f"v_add_u32 v{VRV}, v{VRV}, v{VAD}"]
    vchk(5, [ldr(0), ldr(1), [f"buffer_load_dwordx4 v[{VB+8}:{VB+11}], v7, s[76:79], 0 offen"]], AMR)
    vchk(6, [ldr(0), ldr(1)], AMR)
    add(7, 0, 'pre', f"""
s_mov_b32 s23, {f32bits(VTOL)}
v_cmp_nle_f32 vcc, v{VMAX}, s23
s_lshl_b32 s30, s58, 2
s_add_u32 s30, s30, {WS_FLAG}
v_mov_b32 v4, 0
s_cmp_lg_u64 vcc, 0
s_cselect_b32 s23, 1, 0
v_mov_b32 v3, s23
s_mov_b64 exec, 1
buffer_store_dword v3, v4, s[12:15], s30 offen
s_mov_b64 exec, -1
""".strip().split("\n"))

    nx = 0
    for g in range(NSTG):
        Oold, Onew, lold, lnew = (OB, OA, LB, LA) if g % 2 == 0 else (OA, OB, LA, LB)
        for tt in range(TPS):
            X, Y = (SX, SY) if tt % 2 == 0 else (SY, SX)
            H = HK.get((g, tt), {})
            attn_tile(a, g, tt, X, Y, Oold if tt == 0 else Onew, Onew, lold if tt == 0 else lnew, lnew, H, nx)
            nx = sum(1 for k in ('m2', 3, 'end', 'm3') for ins in H.get(k, []) if ins.startswith("ds_"))
        a(f"""
s_nop 7
v_cmp_nlt_f32 vcc, v{lnew}, s28
s_nop 1
s_cbranch_vccnz L_{tag}{g}_slow
L_{tag}{g}_ret:
""")
    tl(a, 2)
    a(f"s_nop 3\nv_rcp_f32 v7, v{LB}\ns_add_u32 s31, s26, {WS_O}")
    for i in range(16):
        a(f"v_mul_f32 v{OB+i}, v7, v{OB+i}")
    for i in range(8): a(f"v_cvt_pk_bf16_f32 v{P_+i}, v{OB+2*i}, v{OB+2*i+1}")
    a("s_nop 1")
    for p in range(2):
        a(f"v_permlane32_swap_b32 v{P_+4*p}, v{P_+4*p+2}\nv_permlane32_swap_b32 v{P_+4*p+1}, v{P_+4*p+3}")
    for p in range(2):
        a(f"buffer_store_dwordx4 {r(P_+4*p,4)}, v8, s[12:15], s31 offen offset:{p*32}")
    for r_ in range(8):
        a(f"v_add_f32 v{S1ACC+r_}, v{S1ACC+r_}, v{S1ACC+8+r_}\nv_add_f32 v{S1ACC+16+r_}, v{S1ACC+16+r_}, v{S1ACC+24+r_}")
    for r_ in range(8):
        a(f"v_add_f32 v{S1ACC+r_}, v{S1ACC+r_}, v{S1ACC+16+r_}")
    pack8(a, 16, S1ACC)
    a(f"""
v_and_b32 v3, 31, v2
s_lshl_b32 s23, s27, 5
v_add_u32 v3, s23, v3
s_mov_b32 s23, {ATP}
v_mul_lo_u32 v3, v3, s23
v_lshrrev_b32 v4, 5, v2
v_lshl_add_u32 v3, v4, 4, v3
s_lshl_b32 s23, s25, 5
s_add_u32 s23, s23, s21
buffer_store_dwordx4 v[16:19], v3, s[12:15], s23 offen
""")
    stamp_end(a, 196608)
    tl(a, 5, True)
    a(f"s_branch {endlabel}")
    for g in range(NSTG):
        if g % 2 == 0:
            attn_slow(a, f"{tag}{g}", OB, OA, LB, LA, SX, (g % ANS) * ASTAGE)
        else:
            attn_slow(a, f"{tag}{g}", OA, OB, LA, LB, SX, (g % ANS) * ASTAGE)


def wave_sum(a, v, t):
    for sh in (8, 4, 2, 1):
        a(f"s_nop 1\nv_add_f32_dpp v{v}, v{v}, v{v} row_ror:{sh} row_mask:0xf bank_mask:0xf")
    a(f"""
v_mov_b32 v{t}, v{v}
s_nop 1
v_permlane16_swap_b32 v{v}, v{t}
s_nop 1
v_add_f32 v{v}, v{v}, v{t}
v_mov_b32 v{t}, v{v}
s_nop 1
v_permlane32_swap_b32 v{v}, v{t}
s_nop 1
v_add_f32 v{v}, v{v}, v{t}
""")


def small_gemm(a, tag, mode, pP, pR, nsteps, kstep, pre=None):
    NS, STAGE, nu = 4, 32768, 2
    t_dma_voff(a, DV, 1, pP)
    t_dma_voff(a, DV + 1, 1, pR)
    stride = 4

    def setup():
        a("""
s_and_b32 s26, s22, 1
s_lshr_b32 s24, s22, 2
s_and_b32 s27, s22, 2
s_lshl_b32 s27, s27, 1
s_lshl_b32 s28, s24, 7
""")
        t_read_addr(a, RA, nu, 28, 27, 0, NS, STAGE, stride)
        a("s_lshl_b32 s29, s26, 5\ns_add_u32 s28, s28, s29")
        t_read_addr(a, RA + 2, nu, 28, 27, 8192, NS, STAGE, stride)
        for i in range(32):
            a(f"v_mov_b32 v{ACC+i}, 0")

    def dmas(st):
        return [[f"s_add_u32 m0, s18, {st*STAGE}", "s_nop 0", f"buffer_load_dwordx4 v{DV}, s[4:7], s16 offen lds"],
                [f"s_add_u32 m0, s18, {st*STAGE+8192}", "s_nop 0", f"buffer_load_dwordx4 v{DV+1}, s[8:11], s17 offen lds"],
                [f"s_add_u32 m0, s18, {st*STAGE+16384}", "s_nop 0", f"buffer_load_dwordx4 v{DV}, s[36:39], s40 offen lds"],
                [f"s_add_u32 m0, s18, {st*STAGE+24576}", "s_nop 0", f"buffer_load_dwordx4 v{DV+1}, s[44:47], s41 offen lds"]]

    def reads(st, ul, fs):
        f = FR[fs]
        return [f"ds_read_b128 v[{f}:{f+3}], v{RA+st*stride+ul}",
                f"ds_read_b128 v[{f+4}:{f+7}], v{RA+st*stride+ul} offset:4096",
                f"ds_read_b128 v[{f+8}:{f+11}], v{RA+st*stride+2+ul}"]

    def mfmas(fs):
        f = FR[fs]
        return [f"v_mfma_f32_32x32x16_bf16 v[{ACC+16*mb}:{ACC+16*mb+15}], v[{f+4*mb}:{f+4*mb+3}], v[{f+8}:{f+11}], v[{ACC+16*mb}:{ACC+16*mb+15}]" for mb in range(2)]

    kadv = [f"s_add_u32 s{r_}, s{r_}, {kstep}" for r_ in (16, 17, 40, 41)]
    pipeline(a, tag, nsteps, NS, nu, dmas, reads, mfmas, None, kadv, pre=pre, setup=setup)
    small_epi(a, mode, ACC)


def small_epi(a, mode, AC):
    a("s_and_b32 s26, s22, 1")
    a("s_nop 15\ns_barrier")
    a(f"""
v_lshlrev_b32 v3, 4, v2
s_lshl_b32 s23, s22, 13
v_add_u32 v4, s23, v3
s_lshr_b32 s25, s22, 1
s_lshl_b32 s23, s25, 11
s_lshl_b32 s29, s26, 13
s_add_u32 s23, s23, s29
v_add_u32 v3, s23, v3
""")
    for j in range(8):
        a(f"ds_write_b128 v4, v[{AC+4*j}:{AC+4*j+3}] offset:{j*1024}")
    a("s_waitcnt lgkmcnt(0)\ns_barrier")
    for i in range(4):
        for j in range(2):
            a(f"ds_read_b128 v[{96+8*i+4*j}:{96+8*i+4*j+3}], v3 offset:{i*16384+j*1024}")
    a("s_waitcnt lgkmcnt(4)")
    for r_ in range(8):
        a(f"v_add_f32 v{64+r_}, v{96+r_}, v{104+r_}")
    a("s_waitcnt lgkmcnt(0)")
    for r_ in range(8):
        a(f"v_add_f32 v{72+r_}, v{112+r_}, v{120+r_}")
    if mode == 1:
        for r_ in range(8):
            a(f"v_add_f32 v{64+r_}, v{64+r_}, v{72+r_}")


def pack8(a, dst, src):
    for r_ in range(4):
        a(f"v_cvt_pk_bf16_f32 v{dst+r_}, v{src+2*r_}, v{src+2*r_+1}")
    a(f"s_nop 1\nv_permlane32_swap_b32 v{dst}, v{dst+2}\nv_permlane32_swap_b32 v{dst+1}, v{dst+3}")


S1ACC, S1F, S1A, S1D = 200, 232, 24, 68
S1B = ANS_BYTES = 98304


def stage1_setup(a):
    a(f"""
s_and_b32 s30, s2, 7
s_lshr_b32 s31, s2, 3
s_and_b32 s31, s31, 15
s_and_b32 s54, s30, 3
s_lshl_b32 s54, s54, 2
s_and_b32 s55, s31, 3
s_add_u32 s54, s54, s55
s_lshr_b32 s55, s30, 2
s_lshl_b32 s55, s55, 2
s_lshr_b32 s56, s31, 2
s_add_u32 s55, s55, s56
s_cmp_ge_u32 s2, 128
s_cselect_b32 s8, s52, s50
s_cselect_b32 s9, s53, s51
s_cselect_b32 s56, {WS_XM-WS_XP}, 0
s_cselect_b32 s57, {WS_BT-WS_AT}, 0
s_add_u32 s56, s56, {WS_XP}
s_add_u32 s57, s57, {WS_AT}
s_mov_b32 s10, {1024*2048}
s_mov_b32 s11, 0x00020000
""")
    srd(a, 4, 48, 49, WS_BYTES)
    a(f"""
s_lshl_b32 s40, s54, 17
s_add_u32 s40, s40, s56
s_add_u32 s42, s40, 128
s_lshl_b32 s41, s55, 17
s_add_u32 s43, s41, 128
s_mul_i32 s21, s55, {64*ATP}
s_add_u32 s21, s21, s57
s_lshl_b32 s23, s54, 7
s_add_u32 s21, s21, s23
""")
    t_dma_voff(a, S1D, 1, 2048)


def stage1_setup2(a):
    a("""
s_lshr_b32 s25, s22, 2
s_and_b32 s27, s22, 2
s_lshl_b32 s27, s27, 1
s_lshl_b32 s25, s25, 7
""")
    t_read_addr(a, S1A, 2, 25, 27, S1B, 2, 32768, 4)
    a("s_and_b32 s23, s22, 1\ns_lshl_b32 s23, s23, 5\ns_add_u32 s25, s25, s23")
    t_read_addr(a, S1A + 2, 2, 25, 27, S1B + 8192, 2, 32768, 4)
    for i in range(32):
        a(f"v_mov_b32 v{S1ACC+i}, 0")


def s1_dma(a, buf, i):
    if os.environ.get('NOS1'): return
    sr, so = ((4, 40), (8, 41), (4, 42), (8, 43))[i]
    a(f"s_add_u32 m0, s18, {S1B + buf*32768 + i*8192}\ns_nop 0\nbuffer_load_dwordx4 v{S1D}, s[{sr}:{sr+3}], s{so} offen lds\ns_add_u32 s{so}, s{so}, 256")


def s1_reads(a, buf):
    if os.environ.get('NOS1'): return
    for ul in range(2):
        f = S1F + 12 * ul
        a(f"""
ds_read_b128 v[{f}:{f+3}], v{S1A+buf*4+ul}
ds_read_b128 v[{f+4}:{f+7}], v{S1A+buf*4+ul} offset:4096
ds_read_b128 v[{f+8}:{f+11}], v{S1A+buf*4+2+ul}
""")


def s1_mfma(a, i):
    if os.environ.get('NOS1'): return
    ul, mb = i >> 1, i & 1
    f = S1F + 12 * ul
    c = S1ACC + 16 * mb
    a(f"v_mfma_f32_32x32x16_bf16 v[{c}:{c+15}], v[{f+4*mb}:{f+4*mb+3}], v[{f+8}:{f+11}], v[{c}:{c+15}]")


def stage1_store(a):
    a("s_waitcnt vmcnt(0) lgkmcnt(0)")
    small_epi(a, 1, S1ACC)
    pack8(a, 16, 64)
    a(f"""
v_and_b32 v3, 31, v2
s_lshl_b32 s23, s26, 5
v_add_u32 v3, s23, v3
s_mov_b32 s23, {ATP}
v_mul_lo_u32 v3, v3, s23
v_lshrrev_b32 v4, 5, v2
v_lshl_add_u32 v3, v4, 4, v3
s_lshl_b32 s23, s25, 5
s_add_u32 s23, s23, s21
buffer_store_dwordx4 v[16:19], v3, s[12:15], s23 offen
""")


def dot_loads(a, dst, srdA, soffA, srdB, soffB):
    for (d, sr, so) in ((dst, srdA, soffA), (dst + 12, srdB, soffB)):
        a(f"""
buffer_load_dwordx4 v[{d}:{d+3}], v10, s[{sr}:{sr+3}], s{so} offen
buffer_load_dwordx4 v[{d+4}:{d+7}], v10, s[{sr}:{sr+3}], s{so} offen offset:16
buffer_load_dwordx4 v[{d+8}:{d+11}], v11, s[{sr}:{sr+3}], s{so} offen
""")


def dot_compute(a, res, src, t):
    a(f"v_mov_b32 v{res}, 0")
    for i in range(12):
        a(f"v_dot2c_f32_bf16 v{res}, v{src+i}, v{src+12+i}")
    a("s_nop 3")
    wave_sum(a, res, t)


def edge_issue(a):
    srd(a, 64, 56, 57, 2048 * 4096)
    srd(a, 68, 48, 49, WS_BYTES)
    a(f"""
s_lshr_b32 s54, s2, 3
s_and_b32 s55, s2, 7
v_lshlrev_b32 v10, 5, v2
v_lshlrev_b32 v11, 4, v2
v_add_u32 v11, 2048, v11
v_mov_b32 v3, 0x7ffffff0
v_cmp_gt_u32 vcc, 8, v2
s_lshl_b32 s58, s54, 6
s_lshl_b32 s23, s55, 3
s_add_u32 s58, s58, s23
s_add_u32 s58, s58, s22
v_cndmask_b32 v11, v3, v11, vcc
s_lshl_b32 s59, s58, 12
s_mov_b32 s60, {WS_AT + 512*ATP}
s_lshl_b32 s61, s55, 6
s_lshl_b32 s23, s54, 2
s_add_u32 s61, s61, s23
s_add_u32 s61, s61, s22
s_cmp_ge_u32 s22, 4
s_cselect_b32 s61, 512, s61
s_mul_i32 s62, s61, {ATP}
s_add_u32 s62, s62, {WS_AT}
s_mov_b32 s63, {1024*4096}
""")


def edge_loads(a):
    flag_load(a, 212, 76, 48, 49)
    dot_loads(a, 164, 64, 59, 68, 60)
    dot_loads(a, 188, 64, 63, 68, 62)


def edge_finish(a):
    flag_test(a, 212)
    a("s_cbranch_scc1 L_edge_done")
    dot_compute(a, 160, 164, 3)
    dot_compute(a, 161, 188, 3)
    a(f"""
v_cvt_pk_bf16_f32 v160, v160, v161
v_lshrrev_b32 v161, 16, v160
s_mov_b64 exec, 3
s_sub_u32 s23, 2048, s58
v_mov_b32 v3, s58
v_mov_b32 v4, s23
v_cmp_eq_u32 vcc, 0, v2
s_nop 1
v_cndmask_b32 v3, v4, v3, vcc
v_lshlrev_b32 v3, 12, v3
buffer_store_short v160, v3, s[12:15], 0 offen offset:3072
s_sub_u32 s23, 1024, s61
v_mov_b32 v3, s61
v_mov_b32 v4, s23
s_nop 0
v_cndmask_b32 v3, v4, v3, vcc
v_lshlrev_b32 v3, 1, v3
v_add_u32 v3, {1024*4096 + 2048}, v3
s_cmp_eq_u32 s61, 0
s_cselect_b64 s[72:73], 1, 3
s_cmp_gt_u32 s22, 4
s_cselect_b64 s[72:73], 0, s[72:73]
s_mov_b64 exec, s[72:73]
s_cbranch_execz L_edge_done
buffer_store_short v161, v3, s[12:15], 0 offen
L_edge_done:
s_mov_b64 exec, -1
""")


def stage2(a):
    a(f"""
s_and_b32 s54, s30, 3
s_lshl_b32 s54, s54, 2
s_and_b32 s55, s31, 3
s_add_u32 s54, s54, s55
s_lshr_b32 s55, s30, 2
s_lshl_b32 s55, s55, 2
s_lshr_b32 s56, s31, 2
s_add_u32 s55, s55, s56
""")
    srd(a, 4, 48, 49, WS_BYTES)
    srd(a, 36, 48, 49, WS_BYTES)
    srd(a, 8, 50, 51, 2048 * 4096)
    srd(a, 44, 52, 53, 2048 * 4096)
    srd(a, 12, 34, 35, 2048 * 4096)
    a(f"""
s_mul_i32 s16, s55, {64*ATP}
s_add_u32 s40, s16, {WS_BT}
s_add_u32 s16, s16, {WS_AT}
s_lshl_b32 s17, s54, 18
s_mov_b32 s41, s17
""")
    wave_setup(a)
    flag_load(a, 208, 76, 48, 49)

    def pre():
        a("s_waitcnt vmcnt(12)")
        flag_test(a, 208)
        a("s_cbranch_scc1 L_k3_fb")

    small_gemm(a, "s2", 2, ATP, 4096, 17, 128, pre=pre)
    for r_ in range(8):
        a(f"v_sub_f32 v{80+r_}, v{64+r_}, v{72+r_}\nv_add_f32 v{88+r_}, v{64+r_}, v{72+r_}")
    pack8(a, 16, 80)
    pack8(a, 20, 88)
    a("s_nop 0")
    for r_ in range(4):
        a(f"v_alignbit_b32 v{24+r_}, v{19-r_}, v{19-r_}, 16")
        a(f"v_alignbit_b32 v{28+r_}, v{23-r_}, v{23-r_}, 16")
    a(f"""
v_and_b32 v3, 31, v2
s_lshl_b32 s23, s26, 5
s_lshl_b32 s29, s54, 6
s_add_u32 s23, s23, s29
v_add_u32 v3, s23, v3
v_sub_u32 v4, 2048, v3
v_lshlrev_b32 v3, 12, v3
v_lshlrev_b32 v4, 12, v4
v_lshrrev_b32 v5, 5, v2
v_lshlrev_b32 v5, 4, v5
s_lshl_b32 s23, s25, 5
s_lshl_b32 s29, s55, 7
s_add_u32 s23, s23, s29
v_add_u32 v5, s23, v5
v_add_u32 v6, v3, v5
v_add_u32 v7, v4, v5
v_sub_u32 v8, 4082, v5
v_add_u32 v9, v4, v8
v_add_u32 v8, v3, v8
buffer_store_dwordx4 v[16:19], v6, s[12:15], 0 offen offset:2048
buffer_store_dwordx4 v[20:23], v7, s[12:15], 0 offen offset:2048
v_cmp_ne_u32 vcc, 0, v5
s_and_saveexec_b64 s[64:65], vcc
buffer_store_dwordx4 v[28:31], v8, s[12:15], 0 offen
buffer_store_dwordx4 v[24:27], v9, s[12:15], 0 offen
s_andn2_b64 exec, s[64:65], exec
s_cbranch_execz L_s2_e2
buffer_store_dwordx3 v[28:30], v8, s[12:15], 0 offen
buffer_store_short v31, v8, s[12:15], 0 offen offset:12
buffer_store_dwordx3 v[24:26], v9, s[12:15], 0 offen
buffer_store_short v27, v9, s[12:15], 0 offen offset:12
L_s2_e2:
s_mov_b64 exec, s[64:65]
""")


def fold(a):
    wave_setup(a)
    srd(a, 4, 40, 41, 2048 * 2048)
    srd(a, 8, 44, 45, 1024 * 2048)
    a(f"""
v_lshlrev_b32 v6, 5, v2
s_lshl_b32 s16, s31, 5
s_lshl_b32 s23, s22, 2
s_add_u32 s16, s16, s23
s_mov_b32 s17, {512*2048}
buffer_load_dwordx4 v[8:11], v6, s[8:11], s17 offen
buffer_load_dwordx4 v[12:15], v6, s[8:11], s17 offen offset:16
""")
    for i in range(4):
        b = 16 + 16 * i
        a(f"""
s_add_u32 s23, s16, {i}
s_sub_u32 s24, 2048, s23
s_lshl_b32 s23, s23, 11
s_lshl_b32 s24, s24, 11
buffer_load_dwordx4 v[{b}:{b+3}], v6, s[4:7], s23 offen
buffer_load_dwordx4 v[{b+4}:{b+7}], v6, s[4:7], s23 offen offset:16
buffer_load_dwordx4 v[{b+8}:{b+11}], v6, s[4:7], s24 offen
buffer_load_dwordx4 v[{b+12}:{b+15}], v6, s[4:7], s24 offen offset:16
""")
    for i in range(4):
        b = 16 + 16 * i
        o = 96 + 16 * i
        a(f"s_waitcnt vmcnt({(3-i)*4 + 5*i})")
        a(f"v_mov_b32 v{88+i}, 0")
        for j in range(8):
            a(f"""
v_lshlrev_b32 v80, 16, v{b+j}
v_and_b32 v81, 0xffff0000, v{b+j}
v_lshlrev_b32 v82, 16, v{b+8+j}
v_and_b32 v83, 0xffff0000, v{b+8+j}
v_add_f32 v84, v80, v82
v_add_f32 v85, v81, v83
v_sub_f32 v86, v80, v82
v_sub_f32 v87, v81, v83
v_cvt_pk_bf16_f32 v{o+j}, v84, v85
v_cvt_pk_bf16_f32 v{o+8+j}, v86, v87
v_dot2c_f32_bf16 v{88+i}, v{o+j}, v{8+j}
""")
        a(f"""
s_add_u32 s23, s16, {i}
s_lshl_b32 s24, s23, 11
s_add_u32 s25, s24, {WS_XM}
s_add_u32 s24, s24, {WS_XP}
buffer_store_dwordx4 v[{o}:{o+3}], v6, s[12:15], s24 offen
buffer_store_dwordx4 v[{o+4}:{o+7}], v6, s[12:15], s24 offen offset:16
buffer_store_dwordx4 v[{o+8}:{o+11}], v6, s[12:15], s25 offen
buffer_store_dwordx4 v[{o+12}:{o+15}], v6, s[12:15], s25 offen offset:16
""")
        wave_sum(a, 88 + i, 3)
        a(f"""
v_cvt_pk_bf16_f32 v{88+i}, v{88+i}, v{88+i}
s_lshl_b32 s23, s23, 1
s_add_u32 s23, s23, {WS_AT + 512*ATP}
v_mov_b32 v4, 0
s_mov_b64 exec, 1
buffer_store_short v{88+i}, v4, s[12:15], s23 offen
s_mov_b64 exec, -1
""")


def edge_mv(a):
    wave_setup(a)
    srd(a, 4, 40, 41, 2048 * 2048)
    srd(a, 8, 44, 45, 513 * 2048)
    a(f"""
v_lshlrev_b32 v6, 5, v2
s_lshl_b32 s16, s31, 3
s_add_u32 s16, s16, s22
s_mul_i32 s16, s16, 9
s_mov_b32 s17, {1024*2048}
buffer_load_dwordx4 v[8:11], v6, s[4:7], s17 offen
buffer_load_dwordx4 v[12:15], v6, s[4:7], s17 offen offset:16
v_lshlrev_b32 v7, 2, v2
""")
    for i in range(9):
        b = 16 + 8 * i
        a(f"""
s_add_u32 s23, s16, {i}
s_lshl_b32 s23, s23, 11
buffer_load_dwordx4 v[{b}:{b+3}], v6, s[8:11], s23 offen
buffer_load_dwordx4 v[{b+4}:{b+7}], v6, s[8:11], s23 offen offset:16
""")
    a("s_waitcnt vmcnt(0)\nv_mov_b32 v5, 0")
    for i in range(9):
        b = 16 + 8 * i
        a(f"v_mov_b32 v{96+i}, 0")
        for j in range(8):
            a(f"v_dot2c_f32_bf16 v{96+i}, v{b+j}, v{8+j}")
        a("s_nop 3")
        wave_sum(a, 96 + i, 3)
        a(f"""
v_cvt_pk_bf16_f32 v{96+i}, v{96+i}, v5
v_cmp_eq_u32 vcc, 0, v2
s_add_u32 s23, s16, {i}
s_cmp_gt_u32 s23, 512
s_cbranch_scc1 L_emv_done
v_cndmask_b32 v{96+i}, v5, v{96+i}, vcc
s_mul_i32 s23, s23, {ATP}
s_add_u32 s24, s23, {WS_BT + 2048}
s_add_u32 s23, s23, {WS_AT + 2048}
s_mov_b32 exec_hi, 0
buffer_store_dword v{96+i}, v7, s[12:15], s23 offen
buffer_store_dword v5, v7, s[12:15], s24 offen
s_mov_b64 exec, -1
""")
    a("L_emv_done:")


VTOL = 2.0 ** -8 * 1.01
VMAX = 70
VB = 152


def cmp_dw(a, x, y, neg, rev=False):
    lo_y, hi_y = (f"v_and_b32 v5, 0xffff0000, v{y}", f"v_lshlrev_b32 v6, 16, v{y}") if rev else (f"v_lshlrev_b32 v5, 16, v{y}", f"v_and_b32 v6, 0xffff0000, v{y}")
    a(f"""
v_lshlrev_b32 v3, 16, v{x}
v_and_b32 v4, 0xffff0000, v{x}
{lo_y}
{hi_y}
v_fmac_f32 v3, s60, v5
v_fmac_f32 v4, s60, v6
v_max3_f32 v{VMAX}, |v3|, |v4|, v{VMAX}
""")


def verify_c_setup(a):
    a(f"""
s_bitcmp1_b32 s58, 0
s_cselect_b32 s76, s94, s92
s_cselect_b32 s77, s95, s93
s_cselect_b32 s60, 1.0, -1.0
s_mov_b32 s78, {2048*4096}
s_mov_b32 s79, 0x00020000
s_sub_u32 s62, 2048, s61
s_and_b32 s62, s62, 2047
s_lshl_b32 s61, s61, 12
s_lshl_b32 s62, s62, 12
""")


AMN, AMR, VAD, VRV = 192, 196, 69, 71


def verify_setup(a):
    a("s_lshl_b32 s58, s2, 3\ns_add_u32 s58, s58, s22\ns_lshr_b32 s61, s58, 1")
    verify_c_setup(a)
    a(f"""
s_bitcmp1_b32 s58, 0
s_mov_b32 s59, 0xbf80
s_cselect_b32 s59, 0x3f80, s59
v_and_b32 v3, 15, v2
v_bfe_u32 v4, v2, 4, 1
v_lshlrev_b32 v4, 3, v4
v_cmp_gt_u32 vcc, 32, v2
v_mov_b32 v5, s59
v_mov_b32 v6, 0x3f80
v_sub_u32 v7, 15, v3
v_cndmask_b32 v5, v5, v6, vcc
v_cndmask_b32 v7, v7, v3, vcc
v_sub_u32 v3, v3, v4
v_sub_u32 v7, v7, v4
""")
    for base, j in ((AMN, 3), (AMR, 7)):
        a(f"""
v_and_b32 v4, 1, v{j}
v_lshlrev_b32 v4, 4, v4
v_lshlrev_b32 v4, v4, v5
v_lshrrev_b32 v6, 1, v{j}
""")
        for r_ in range(4):
            a(f"v_cmp_eq_u32 vcc, {r_}, v6\ns_nop 1\nv_cndmask_b32 v{base+r_}, 0, v4, vcc")
    a(f"""
v_and_b32 v3, 15, v2
v_lshlrev_b32 v3, 5, v3
v_bfe_u32 v4, v2, 4, 1
v_lshlrev_b32 v4, 4, v4
v_add_u32 v5, v3, v4
v_sub_u32 v6, v4, v3
v_add_u32 v6, 4064, v6
v_add_u32 v7, 2, v5
v_cmp_gt_u32 vcc, 32, v2
v_mov_b32 v3, s62
v_mov_b32 v4, s61
v_cndmask_b32 v6, v6, v7, vcc
v_cndmask_b32 v3, v3, v4, vcc
v_add_u32 v{VRV}, s61, v6
v_add_u32 v{VAD}, v3, v5
s_mov_b32 s63, 0
""")


def verify_w_switch(a):
    a(f"""
s_bitcmp1_b32 s58, 0
s_cselect_b32 s84, s52, s50
s_cselect_b32 s85, s53, s51
s_mov_b32 s86, {1024*2048}
s_lshr_b32 s59, s58, 2
s_add_u32 s59, s59, 1
s_sub_u32 s63, 1024, s59
s_lshl_b32 s59, s59, 11
s_lshl_b32 s63, s63, 11
v_mov_b32 v3, s63
v_mov_b32 v4, s59
v_cmp_gt_u32 vcc, 32, v2
v_and_b32 v5, 15, v2
v_lshlrev_b32 v5, 5, v5
v_bfe_u32 v6, v2, 4, 1
v_lshl_add_u32 v5, v6, 4, v5
v_cndmask_b32 v3, v3, v4, vcc
v_add_u32 v{VAD}, v3, v5
s_and_b32 s63, s58, 2
s_lshl_b32 s63, s63, 9
""")
    srd(a, 80, 88, 89, 1024 * 2048)
    a(f"""
v_lshl_add_u32 v3, v0, 8, s2
v_lshlrev_b32 v3, 7, v3
buffer_load_dword v{VB+24}, v3, s[80:83], 0 offen
s_mov_b32 s87, 0x00020000
s_lshr_b32 s59, s58, 1
s_and_b32 s59, s59, 7
s_lshl_b32 s59, s59, 9
s_add_u32 s59, s59, {1024*4096}
v_add_u32 v7, s59, v5
""")


def verify_r_switch(a):
    a(f"""
v_mov_b32 v3, 512
v_mov_b32 v4, -512
v_cmp_gt_u32 vcc, 32, v2
s_lshr_b32 s59, s58, 1
s_sub_u32 s63, {1024*4096}, s61
s_and_b32 s23, s58, 0xfffffff9
v_cndmask_b32 v{VAD}, v4, v3, vcc
s_cmp_eq_u32 s23, 0
s_cselect_b32 s59, s59, 0
s_cselect_b32 s63, s63, 0
v_mul_lo_u32 v7, v{VAD}, s59
v_add3_u32 v7, v7, v{VRV}, s63
""")


def touch(a):
    a("""
s_load_dwordx4 s[32:35], s[0:1], 16
s_load_dwordx4 s[40:43], s[0:1], 64
s_sub_u32 s31, s2, 184
s_lshl_b32 s23, s31, 9
v_add_u32 v3, s23, v0
s_waitcnt lgkmcnt(0)
""")
    srd(a, 4, 32, 33, 65536)
    srd(a, 8, 34, 35, 65536)
    srd(a, 16, 40, 41, 513 * 2048)
    srd(a, 20, 42, 43, 512 * 2048)
    a(f"""
v_lshlrev_b32 v4, 7, v3
buffer_load_dword v12, v4, s[4:7], 0 offen
buffer_load_dword v13, v4, s[8:11], 0 offen
buffer_load_dword v10, v4, s[16:19], 0 offen
buffer_load_dword v11, v4, s[20:23], 0 offen
s_cmp_lt_u32 s2, 248
s_cbranch_scc1 L_nocode
s_getpc_b64 s[24:25]
L_pc0:
s_add_u32 s24, s24, k2_kernel-L_pc0
s_addc_u32 s25, s25, 0
v_lshlrev_b32 v5, 7, v0
v_min_u32 v6, L_text_end-k2_kernel-4, v5
global_load_dword v14, v6, s[24:25]
v_add_u32 v5, 65536, v5
v_min_u32 v6, L_text_end-k2_kernel-4, v5
global_load_dword v15, v6, s[24:25]
L_nocode:
s_waitcnt vmcnt(0)
""")


def flag_load(a, vd, sr, lo, hi):
    srd(a, sr, lo, hi, 8192, WS_FLAG)
    a("v_and_b32 v3, 63, v0\nv_lshlrev_b32 v3, 4, v3\nv_add_u32 v4, 4096, v3")
    for j in range(8):
        a(f"buffer_load_dwordx4 v[{vd+4*j}:{vd+4*j+3}], v{3 + j//4}, s[{sr}:{sr+3}], 0 offen offset:{(j%4)*1024}")


def flag_test(a, vd):
    for j in range(1, 31, 2):
        a(f"v_or3_b32 v{vd}, v{vd}, v{vd+j}, v{vd+j+1}")
    a(f"v_or_b32 v{vd}, v{vd}, v{vd+31}")
    a(f"v_cmp_ne_u32 vcc, 0, v{vd}\ns_nop 1\ns_cmp_lg_u64 vcc, 0")


def g3(a):
    a("""
s_and_b32 s50, s30, 3
s_lshl_b32 s50, s50, 2
s_and_b32 s51, s31, 3
s_add_u32 s50, s50, s51
s_lshr_b32 s51, s30, 2
s_lshl_b32 s51, s51, 2
s_lshr_b32 s52, s31, 2
s_add_u32 s51, s51, s52
""")
    srd(a, 4, 40, 41, 2048 * 2048)
    a(f"""
s_cmp_ge_u32 s51, 4
s_cselect_b32 s8, s46, s44
s_cselect_b32 s9, s47, s45
s_cselect_b32 s20, {f32bits(-1.0)}, 1.0
s_mov_b32 s10, {1024*2048}
s_mov_b32 s11, 0x00020000
s_lshl_b32 s16, s50, 18
s_and_b32 s17, s51, 3
s_lshl_b32 s17, s17, 19
s_lshl_b32 s21, s51, 20
s_lshl_b32 s23, s50, 8
s_add_u32 s21, s21, s23
s_add_u32 s21, s21, {WS_AB}
""")
    gemm(a, "g3", 2, 4, 1, 'T', 2048, 2048, 16, 3, 4096, scale=True)


def touch2(a):
    a("""
v_lshl_add_u32 v3, v0, 8, s2
v_lshlrev_b32 v4, 7, v3
v_lshrrev_b32 v5, 5, v3
v_and_b32 v6, 31, v3
v_lshlrev_b32 v5, 12, v5
v_lshl_add_u32 v5, v6, 7, v5
v_mov_b32 v7, 0x7ffffff0
v_cmp_gt_u32 vcc, 17, v6
""")
    srd(a, 76, 88, 89, 1024 * 2048)
    a("v_cndmask_b32 v5, v7, v5, vcc\nbuffer_load_dword v196, v4, s[76:79], 0 offen")
    srd(a, 80, 92, 93, 1025 * 4096)
    a("buffer_load_dword v197, v5, s[80:83], 0 offen")
    srd(a, 84, 94, 95, 1025 * 4096)
    a("buffer_load_dword v198, v5, s[84:87], 0 offen")


def k1(a):
    kernel_header(a, "k1_kernel")
    a("""
s_cmp_ge_u32 s2, 256
s_cbranch_scc1 L_k1_end
s_cmp_ge_u32 s2, 184
s_cbranch_scc1 L_k1_touch
s_load_dwordx8 s[32:39], s[0:1], 0
s_load_dwordx2 s[40:41], s[0:1], 40
s_load_dwordx4 s[44:47], s[0:1], 64
s_load_dwordx2 s[48:49], s[0:1], 96
s_and_b32 s30, s2, 7
s_lshr_b32 s31, s2, 3
s_waitcnt lgkmcnt(0)
""")
    TLK[0] = 0
    tl(a, 0)
    srd(a, 12, 48, 49, WS_BYTES)
    a("""
s_cmp_ge_u32 s2, 176
s_cbranch_scc1 L_k1_emv
s_cmp_ge_u32 s2, 144
s_cbranch_scc1 L_k1_fold
s_cmp_ge_u32 s2, 128
s_cbranch_scc1 L_k1_kv
""")
    a(f"""
s_and_b32 s50, s30, 1
s_lshl_b32 s50, s50, 2
s_and_b32 s51, s31, 3
s_add_u32 s50, s50, s51
s_lshr_b32 s51, s30, 1
s_lshl_b32 s51, s51, 2
s_lshr_b32 s52, s31, 2
s_add_u32 s51, s51, s52
""")
    srd(a, 4, 34, 35, 1024 * 2048)
    srd(a, 8, 32, 33, 2048 * 2048)
    a(f"""
s_mov_b32 s20, {f32bits(QSCALE)}
s_lshl_b32 s16, s50, 8
s_lshl_b32 s17, s51, 18
s_add_u32 s21, s17, s16
""")
    tch = """
s_lshl_b32 s23, s2, 9
v_add_u32 v3, s23, v0
v_lshlrev_b32 v3, 7, v3
buffer_load_dword v160, v3, s[8:11], 0 offen
v_subrev_u32 v3, 0x400000, v3
buffer_load_dword v161, v3, s[4:7], 0 offen
"""
    gemm(a, "g1", 2, 2, 2, 'N', 2048, 2048, 16, 4, 2048, scale=True, touch=(tch, 2))
    tl(a, 5, True)
    a("s_endpgm")
    a("L_k1_kv:")
    wave_setup(a)
    a(f"""
s_cmp_ge_u32 s22, 4
s_cselect_b32 s4, s38, s36
s_cselect_b32 s5, s39, s37
s_mov_b32 s6, 65536
s_mov_b32 s7, 0x00020000
""")
    srd(a, 8, 32, 33, 2048 * 2048)
    a("""
s_mov_b32 s16, 0
s_sub_u32 s31, s2, 128
s_lshl_b32 s17, s31, 18
s_lshl_b32 s21, s31, 2
""")
    gemm_kv(a, "g2")
    tl(a, 5, True)
    a("s_endpgm\nL_k1_fold:\ns_sub_u32 s31, s2, 144")
    fold(a)
    tl(a, 5, True)
    a("s_endpgm\nL_k1_emv:\ns_sub_u32 s31, s2, 176")
    edge_mv(a)
    tl(a, 5, True)
    a("s_endpgm\nL_k1_touch:")
    touch(a)
    a("L_k1_end:\ns_endpgm")


def k2(a):
    kernel_header(a, "k2_kernel")
    a("""
s_cmp_ge_u32 s2, 256
s_cbranch_scc1 L_k2_end
s_load_dwordx2 s[50:51], s[0:1], 64
s_load_dwordx2 s[52:53], s[0:1], 72
s_load_dwordx2 s[88:89], s[0:1], 32
s_load_dwordx4 s[92:95], s[0:1], 48
s_load_dwordx2 s[48:49], s[0:1], 96
s_waitcnt lgkmcnt(0)
""")
    TLK[0] = 1
    tl(a, 0)
    srd(a, 12, 48, 49, WS_BYTES)
    a("s_lshl_b32 s26, s2, 14")
    attention(a, "at", "L_k2_end")
    a("L_k2_end:\ns_endpgm")


def k3(a):
    kernel_header(a, "k3_kernel")
    a("""
s_cmp_ge_u32 s2, 256
s_cbranch_scc1 L_k3_end
s_load_dwordx2 s[32:33], s[0:1], 32
s_load_dwordx2 s[34:35], s[0:1], 80
s_load_dwordx2 s[48:49], s[0:1], 96
s_load_dwordx4 s[56:59], s[0:1], 48
s_and_b32 s30, s2, 7
s_lshr_b32 s31, s2, 3
s_waitcnt lgkmcnt(0)
""")
    TLK[0] = 2
    tl(a, 0)
    a("""
s_cmp_ge_u32 s2, 128
s_cbranch_scc1 L_k3_s2
s_and_b32 s50, s30, 1
s_lshl_b32 s50, s50, 2
s_and_b32 s51, s31, 3
s_add_u32 s50, s50, s51
s_lshr_b32 s51, s30, 1
s_lshl_b32 s51, s51, 2
s_lshr_b32 s52, s31, 2
s_add_u32 s51, s51, s52
""")
    srd(a, 4, 32, 33, 1024 * 2048)
    srd(a, 8, 48, 49, 2048 * 2048, WS_O)
    srd(a, 12, 34, 35, 2048 * 4096)
    a("""
s_lshl_b32 s16, s50, 8
s_lshl_b32 s17, s51, 18
s_lshl_b32 s21, s51, 19
s_add_u32 s21, s21, s16
""")
    gemm(a, "g5", 2, 2, 2, 'N', 2048, 2048, 16, 4, 4096, touch=(lambda: (edge_issue(a), edge_loads(a)), 20))
    edge_finish(a)
    tl(a, 5, True)
    a("""
s_endpgm
L_k3_s2:
s_sub_u32 s31, s31, 16
s_mov_b32 s50, s56
s_mov_b32 s51, s57
s_mov_b32 s52, s58
s_mov_b32 s53, s59
""")
    stage2(a)
    tl(a, 5, True)
    a("""
s_endpgm
L_k3_fb:
s_load_dwordx2 s[40:41], s[0:1], 40
s_load_dwordx4 s[44:47], s[0:1], 64
s_load_dwordx2 s[90:91], s[0:1], 88
s_mov_b32 s36, s34
s_mov_b32 s37, s35
s_mov_b32 s32, s50
s_mov_b32 s33, s51
s_mov_b32 s34, s52
s_mov_b32 s35, s53
s_waitcnt vmcnt(0) lgkmcnt(0)
s_barrier
""")
    srd(a, 12, 48, 49, WS_BYTES)
    g3(a)
    a("""
s_waitcnt vmcnt(0) lgkmcnt(0)
s_barrier
s_cmp_lg_u32 s22, 0
s_cbranch_scc1 L_k3_gb2
buffer_wbl2 sc1
s_waitcnt vmcnt(0)
v_mov_b32 v3, 0
v_mov_b32 v4, 1
s_mov_b64 exec, 1
global_atomic_add v3, v4, s[90:91] sc1
s_waitcnt vmcnt(0)
L_k3_gb1:
s_sleep 8
global_load_dword v5, v3, s[90:91] sc1
s_waitcnt vmcnt(0)
v_readfirstlane_b32 s23, v5
s_nop 3
s_cmp_lt_u32 s23, 128
s_cbranch_scc1 L_k3_gb1
s_mov_b64 exec, -1
buffer_inv sc1
s_waitcnt vmcnt(0)
L_k3_gb2:
s_barrier
""")
    g4(a)
    a("L_k3_end:\ns_endpgm\nL_text_end:")


def V(n):
    return 256 if os.environ.get('TL') else n


def main():
    a = Asm()
    hdr = open("cdna_kernels/" + KN + ".s.ref").read().split("; Override launch")[0]
    launches = """; @launch kernel=k1_kernel grid=(256,1,1) block=(512,1,1) lds=131072
; @launch kernel=k2_kernel grid=(256,1,1) block=(512,1,1) lds=163840
; @launch kernel=k3_kernel grid=(256,1,1) block=(512,1,1) lds=147456
"""
    k1(a)
    k2(a)
    k3(a)
    out = hdr + launches + '.amdgcn_target "amdgcn-amd-amdhsa--gfx950"\n.text\n' + a.text()
    out += '.section .rodata,"a"\n.p2align 6\n' + kernel_desc("k1_kernel", V(168)) + ".p2align 6\n" + kernel_desc("k2_kernel", V(256)) + ".p2align 6\n" + kernel_desc("k3_kernel", V(248))
    open(sys.argv[1] if len(sys.argv) > 1 else "out.s", "w").write(out)


if __name__ == "__main__":
    main()
```

```python
import sys, os
PROF = os.environ.get('PROF'); NOMFMA = os.environ.get('NOMFMA'); NODMA = os.environ.get('NODMA')

KN = "concat_heads__grouped_kv_mqa__spectral_fnet__prompt"
WS_Q = 0
WS_KF = 4 << 20
WS_VF = (4 << 20) + (128 << 10)
WS_AB = 8 << 20
WS_O = 16 << 20
WS_XP = 26 << 20
WS_XM = 29 << 20
WS_AT = 32 << 20
WS_BT = 34 << 20
WS_FLAG = 36 << 20
ATP = 2176
QSCALE = 1.4426950408889634 * 32 ** -0.5


def f32bits(x):
    import struct
    return struct.unpack("<I", struct.pack("<f", x))[0]


class Asm:
    def __init__(self):
        self.lines = []

    def __call__(self, s):
        for l in s.strip("\n").split("\n"):
            self.lines.append(l if l.endswith(":") else "    " + l.strip())

    def text(self):
        return "\n".join(self.lines) + "\n"


def srd(a, d, lo, hi, nbytes, off=0):
    if off:
        a(f"s_add_u32 s{d}, s{lo}, {off}\ns_addc_u32 s{d+1}, s{hi}, 0")
    else:
        a(f"s_mov_b32 s{d}, s{lo}\ns_mov_b32 s{d+1}, s{hi}")
    a(f"s_mov_b32 s{d+2}, {nbytes}\ns_mov_b32 s{d+3}, 0x00020000")


FR = [16, 32]
UID = [0]
PROFOFF = {'qg': 65536, 'g1': 0, 'g2': 0, 'g3': 0, 'g4': 65536, 'g5': 131072, 's1': 65536, 's2': 131072}
ACC = 64
DV = 48
RA = 128


def pipeline(a, tag, nsteps, NS, nu, dmas, reads, mfmas, nreads, kadv, switch=None, pre=None, setup=None, xtra=0, events=None, extras=None, prebar=None, novm=False, noprol=0):
    nd = len(dmas(0))

    def issue_all(stage):
        for g in dmas(stage % NS):
            for ins in g:
                a(ins)
        for ins in kadv:
            a(ins)

    for st in range(noprol, min(NS - 1, nsteps)):
        issue_all(st)
    if setup is not None:
        setup()
    if pre is not None:
        pre()
    if not novm:
        a(f"s_waitcnt vmcnt({(min(NS - 1, nsteps) - 1) * nd + xtra})")
    a("s_barrier")
    if TLK[0] != 1: stamp_begin(a, 72)
    tl(a, 6 if tag == 's1' else 1) if not (tag == 's2' and TLK[0] == 1) else None
    for ins in reads(0, 0, 0):
        a(ins)
    state = {"set": 0}

    def step(i, dyn=False):
        do_dma = (i + NS - 1) <= nsteps - 1
        groups = list(dmas((i + NS - 1) % NS)) if do_dma else []
        if do_dma and switch is not None:
            if dyn:
                a(switch[2])
            elif i + NS - 1 == switch[0]:
                a(switch[1])
        mcount = len(mfmas(0))
        half = mcount // 2
        nm = (nu - 1) * mcount + half
        slots = [[] for _ in range(nu * mcount)]
        for gi, g in enumerate(groups):
            slots[min(nm - 1, gi * nm // max(1, len(groups)))].extend(g)
        if do_dma:
            slots[nm - 1].extend(kadv)
        last_issued = min(i + NS - 1, nsteps - 1)
        mi = 0

        def emit_m(ms):
            nonlocal mi
            for m in ms:
                if not NOMFMA:
                    a(m)
                for ins in slots[mi]:
                    if NODMA and 'buffer_load' in ins:
                        continue
                    a(ins)
                mi += 1

        for ul in range(nu):
            cur = state["set"]
            nxt = 1 - cur
            ms = mfmas(cur)
            if ul + 1 < nu:
                rd = reads(i % NS, ul + 1, nxt)
                for ins in rd:
                    a(ins)
                a(f"s_waitcnt lgkmcnt({len(rd)})")
                emit_m(ms)
            else:
                a("s_waitcnt lgkmcnt(0)")
                emit_m(ms[:half])
                if i + 1 <= nsteps - 1:
                    ex = sum(n for i2, n in (extras or {}).items() if i + 2 - NS <= i2 < i)
                    if not novm: a(f"s_waitcnt vmcnt({(last_issued - (i + 1)) * nd + ex + (xtra if (i + 1 <= NS - 2 and not dyn) else 0)})")
                    if prebar and i in prebar:
                        prebar[i]()
                    a("s_barrier")
                    for ins in reads((i + 1) % NS, 0, nxt):
                        a(ins)
                emit_m(ms[half:])
                if events and i in events:
                    events[i]()
                if tag == 'qg' and i % 2 == 1 and os.environ.get('TLQ'):
                    tl(a, 8 + i // 2)
            state["set"] = nxt

    xtra_block = False
    steady_end = nsteps - NS + 1
    unroll = NS if (nu % 2 == 0 or NS % 2 == 0) else 2 * NS
    nloop = steady_end // unroll
    if nloop >= 2 and nsteps > int(os.environ.get('LOOPMIN', '16')) and not xtra_block:
        UID[0] += 1
        lab = f"L_{tag}_loop{UID[0]}"
        a(f"s_mov_b32 s19, 0")
        a(f"{lab}:")
        for i in range(unroll):
            step(i, dyn=True)
        a(f"s_add_u32 s19, s19, 1\ns_cmp_lt_u32 s19, {nloop}\ns_cbranch_scc1 {lab}")
        start = nloop * unroll
    else:
        start = 0
    for i in range(start, nsteps):
        step(i)
    if TLK[0] != 1: stamp_end(a, PROFOFF[tag], 72)
    tl(a, 7 if tag == 's1' else 2) if not (tag == 's2' and TLK[0] == 1) else None


def stamp_begin(a, base=66):
    if PROF:
        a(f"s_memtime s[{base}:{base+1}]\ns_memrealtime s[{base+4}:{base+5}]\ns_waitcnt lgkmcnt(0)")


def stamp_end(a, off, base=66):
    if PROF:
        a(f"""s_memtime s[{base+2}:{base+3}]
s_memrealtime s[{base+6}:{base+7}]
s_waitcnt lgkmcnt(0)
s_sub_u32 s{base+2}, s{base+2}, s{base}
s_sub_u32 s{base+6}, s{base+6}, s{base+4}
s_load_dwordx2 s[{base}:{base+1}], s[0:1], 96
s_waitcnt lgkmcnt(0)
s_add_u32 s{base}, s{base}, {24<<20}
s_addc_u32 s{base+1}, s{base+1}, 0
v_mov_b32 v6, s{base+2}
v_mov_b32 v7, s{base+6}
s_lshl_b32 s23, s2, 6
s_lshl_b32 s{base+2}, s22, 3
s_add_u32 s23, s23, s{base+2}
s_add_u32 s23, s23, {off}
v_mov_b32 v5, s23
global_store_dwordx2 v5, v[6:7], s[{base}:{base+1}]
""")


TLK = [0]


def tl(a, slot, drain=False):
    if not os.environ.get('TL'):
        return
    if drain:
        a("s_waitcnt vmcnt(0)")
    b = 66 if TLK[0] <= 1 else 80
    va, vb = (6, 7) if TLK[0] <= 1 else (254, 255)
    a(f"""s_memrealtime s[{b}:{b+1}]
s_load_dwordx2 s[{b+2}:{b+3}], s[0:1], 96
s_waitcnt lgkmcnt(0)
s_add_u32 s{b+2}, s{b+2}, {(24<<20) + (512<<10) + TLK[0]*65536 + slot*4}
s_addc_u32 s{b+3}, s{b+3}, 0
s_lshl_b32 s{b+4}, s2, 6
v_mov_b32 v{va}, s{b+4}
v_mov_b32 v{vb}, s{b}
v_cmp_eq_u32 vcc, 0, v0
s_and_saveexec_b64 s[{b+6}:{b+7}], vcc
global_store_dword v{va}, v{vb}, s[{b+2}:{b+3}]
s_mov_b64 exec, s[{b+6}:{b+7}]
""")


def wave_setup(a):
    a("""
v_lshrrev_b32 v1, 6, v0
s_nop 0
v_readfirstlane_b32 s22, v1
v_and_b32 v2, 63, v0
s_nop 2
s_lshl_b32 s18, s22, 10
""")


def t_dma_voff(a, vdst, n, pitch):
    a(f"""
v_lshrrev_b32 v3, 3, v2
v_lshl_add_u32 v3, v1, 3, v3
v_bfe_u32 v4, v3, 1, 3
v_and_b32 v5, 7, v2
v_xor_b32 v4, v4, v5
v_lshlrev_b32 v4, 4, v4
s_mov_b32 s23, {pitch}
v_mul_lo_u32 v3, v3, s23
v_add_u32 v{vdst}, v3, v4
""")
    for i in range(1, n):
        a(f"v_add_u32 v{vdst+i}, {i*64*pitch}, v{vdst}")


def n_dma_voff(a, vdst, n, pitch, MT):
    lpr = MT * 2 // 16
    rows = 64 // lpr
    sh = lpr.bit_length() - 1
    a(f"""
v_lshrrev_b32 v3, {sh}, v2
v_lshl_add_u32 v3, v1, {rows.bit_length()-1}, v3
v_and_b32 v5, {lpr-1}, v2
v_lshrrev_b32 v6, 2, v5
v_and_b32 v4, 3, v3
v_xor_b32 v6, v6, v4
v_and_b32 v5, 3, v5
v_lshlrev_b32 v5, 4, v5
v_lshl_add_u32 v5, v6, 6, v5
s_mov_b32 s23, {pitch}
v_mul_lo_u32 v3, v3, s23
v_add_u32 v{vdst}, v3, v5
""")
    for i in range(1, n):
        a(f"v_add_u32 v{vdst+i}, {i*8*rows*pitch}, v{vdst}")


def t_read_addr(a, vdst, nu, srow, skg2, base, NS, STAGE, stride):
    a(f"""
v_and_b32 v3, 31, v2
v_bfe_u32 v4, v3, 1, 3
v_lshrrev_b32 v5, 5, v2
v_xor_b32 v4, v4, v5
v_xor_b32 v4, s{skg2}, v4
v_add_u32 v3, s{srow}, v3
v_lshlrev_b32 v3, 7, v3
v_lshl_add_u32 v3, v4, 4, v3
""")
    for st in range(NS):
        for ul in range(nu):
            if ul == 0:
                a(f"v_add_u32 v{vdst+st*stride}, {base+st*STAGE}, v3")
            else:
                a(f"v_xor_b32 v{vdst+st*stride+ul}, {ul*32}, v{vdst+st*stride}")


def n_read_addr(a, vdst, sunit, skrow, LP, base, NS, STAGE, stride, nblk=2):
    a(f"""
v_bfe_u32 v3, v2, 2, 2
v_lshrrev_b32 v4, 5, v2
v_lshl_add_u32 v4, v4, 3, v3
s_mov_b32 s23, {LP}
v_mul_lo_u32 v4, v4, s23
v_add_u32 v4, s{skrow}, v4
v_bfe_u32 v5, v2, 4, 1
v_lshl_add_u32 v4, v5, 5, v4
v_and_b32 v5, 3, v2
v_lshl_add_u32 v4, v5, 3, v4
""")
    for b in range(nblk):
        a(f"""
s_add_u32 s23, s{sunit}, {b}
v_xor_b32 v5, s23, v3
v_lshl_add_u32 v5, v5, 6, v4
""")
        for st in range(NS):
            a(f"v_add_u32 v{vdst+st*stride+b}, {base+st*STAGE}, v5")


def gemm(a, tag, WM, WN, KS, ptype, pP, pR, nsteps, NS, opitch, scale=False, switch=None, touch=None):
    assert WM * WN * KS == 8
    MT, NT = 64 * WM, 64 * WN
    PB, RB = MT * 128, NT * 128
    STAGE = PB + RB
    nu = 4 // KS
    ncP, ncR = PB // 8192, RB // 8192
    wave_setup(a)
    lw = (WM * WN).bit_length() - 1
    lm = WM.bit_length() - 1
    a(f"""
s_lshr_b32 s24, s22, {lw}
s_and_b32 s25, s22, {WM-1}
s_lshr_b32 s26, s22, {lm}
s_and_b32 s26, s26, {WN-1}
""")
    if ptype == 'T':
        t_dma_voff(a, DV, ncP, pP)
    else:
        n_dma_voff(a, DV, ncP, pP, MT)
    t_dma_voff(a, DV + ncP, ncR, pR)
    nP = nu if ptype == 'T' else 2
    stride = nP + nu

    def setup():
        if touch:
            touch[0]() if callable(touch[0]) else a(touch[0])
        a(f"s_mul_i32 s27, s24, {nu*2}")
        if ptype == 'T':
            a(f"s_lshl_b32 s28, s25, 6")
            t_read_addr(a, RA, nu, 28, 27, 0, NS, STAGE, stride)
        else:
            a(f"s_lshl_b32 s28, s25, 1\ns_mul_i32 s29, s24, {nu*16*MT*2}")
            n_read_addr(a, RA, 28, 29, MT * 2, 0, NS, STAGE, stride)
        a(f"s_lshl_b32 s28, s26, 6")
        t_read_addr(a, RA + nP, nu, 28, 27, PB, NS, STAGE, stride)
        for i in range(64):
            a(f"v_mov_b32 v{ACC+i}, 0")

    def dmas(st):
        r = []
        for i in range(ncP):
            r.append([f"s_add_u32 m0, s18, {st*STAGE + i*8192}", "s_nop 0",
                      f"buffer_load_dwordx4 v{DV+i}, s[4:7], s16 offen lds"])
        for i in range(ncR):
            r.append([f"s_add_u32 m0, s18, {st*STAGE + PB + i*8192}", "s_nop 0",
                      f"buffer_load_dwordx4 v{DV+ncP+i}, s[8:11], s17 offen lds"])
        return r

    def reads(st, ul, fs):
        f = FR[fs]
        r = []
        if ptype == 'T':
            for b in range(2):
                r.append(f"ds_read_b128 v[{f+4*b}:{f+4*b+3}], v{RA+st*stride+ul} offset:{b*4096}")
        else:
            for b in range(2):
                for rr in range(2):
                    r.append(f"ds_read_b64_tr_b16 v[{f+4*b+2*rr}:{f+4*b+2*rr+1}], v{RA+st*stride+b} offset:{(16*ul+4*rr)*MT*2}")
        for b in range(2):
            r.append(f"ds_read_b128 v[{f+8+4*b}:{f+8+4*b+3}], v{RA+st*stride+nP+ul} offset:{b*4096}")
        return r

    def mfmas(fs):
        f = FR[fs]
        r = []
        for nb in range(2):
            for mb in range(2):
                c = ACC + 16 * (nb * 2 + mb)
                r.append(f"v_mfma_f32_32x32x16_bf16 v[{c}:{c+15}], v[{f+4*mb}:{f+4*mb+3}], v[{f+8+4*nb}:{f+8+4*nb+3}], v[{c}:{c+15}]")
        return r

    kadv = [f"s_add_u32 s16, s16, {128 if ptype == 'T' else 64*pP}", "s_add_u32 s17, s17, 128"]
    pipeline(a, tag, nsteps, NS, nu, dmas, reads, mfmas, None, kadv, switch, setup=setup, xtra=(touch[1] if touch else 0))

    a("s_nop 15\ns_nop 3")
    blocks = [(nb, mb) for nb in range(2) for mb in range(2)]
    if KS == 2:
        a("s_barrier")
        a(f"""
v_lshlrev_b32 v3, 4, v2
s_lshl_b32 s23, s22, 13
v_add_u32 v3, s23, v3
s_xor_b32 s23, s22, 4
s_lshl_b32 s23, s23, 13
v_lshlrev_b32 v4, 4, v2
v_add_u32 v4, s23, v4
s_cmp_eq_u32 s24, 0
s_cbranch_scc1 L_{tag}_x0
""")
        for j in range(8):
            a(f"ds_write_b128 v3, v[{ACC+4*j}:{ACC+4*j+3}] offset:{j*1024}")
        for j in range(32):
            a(f"v_mov_b32 v{ACC+j}, v{ACC+32+j}")
        a(f"s_branch L_{tag}_x1\nL_{tag}_x0:")
        for j in range(8):
            a(f"ds_write_b128 v3, v[{ACC+32+4*j}:{ACC+32+4*j+3}] offset:{j*1024}")
        a(f"L_{tag}_x1:\ns_waitcnt lgkmcnt(0)\ns_barrier")
        for j in range(8):
            a(f"ds_read_b128 v[{ACC+32+4*j}:{ACC+32+4*j+3}], v4 offset:{j*1024}")
        for j in range(8):
            a(f"s_waitcnt lgkmcnt({7-j})")
            for r in range(4):
                a(f"v_add_f32 v{ACC+4*j+r}, v{ACC+4*j+r}, v{ACC+32+4*j+r}")
        blocks = [(0, 0), (0, 1)]
    a(f"""
s_lshl_b32 s23, s26, 6
v_and_b32 v3, 31, v2
v_add_u32 v3, s23, v3
""")
    if KS == 2:
        a("s_lshl_b32 s23, s24, 5\nv_add_u32 v3, s23, v3")
    a(f"""
s_mov_b32 s23, {opitch}
v_mul_lo_u32 v3, v3, s23
v_lshrrev_b32 v4, 5, v2
v_lshl_add_u32 v3, v4, 4, v3
s_lshl_b32 s23, s25, 7
s_add_u32 s23, s23, s21
v_add_u32 v3, s23, v3
v_add_u32 v4, {32*opitch}, v3
""")
    for bi, (nb, mb) in enumerate(blocks):
        c = ACC + 16 * (nb * 2 + mb)
        t = 16 + 8 * (bi % 4)
        if scale:
            for r in range(16):
                a(f"v_mul_f32 v{c+r}, s20, v{c+r}")
        for r in range(8):
            a(f"v_cvt_pk_bf16_f32 v{t+r}, v{c+2*r}, v{c+2*r+1}")
        a("s_nop 1")
        for p in range(2):
            a(f"v_permlane32_swap_b32 v{t+4*p}, v{t+4*p+2}\nv_permlane32_swap_b32 v{t+4*p+1}, v{t+4*p+3}")
        for p in range(2):
            a(f"buffer_store_dwordx4 v[{t+4*p}:{t+4*p+3}], v{3+nb}, s[12:15], 0 offen offset:{mb*64+p*32}")


def gemm_kv(a, tag, NS=4):
    PB, RB = 8192, 16384
    STAGE = PB + RB
    nu = 4
    a(f"""
v_and_b32 v3, 3, v1
v_lshlrev_b32 v3, 10, v3
v_lshl_add_u32 v{DV}, v2, 4, v3
""")
    t_dma_voff(a, DV + 1, 2, 2048)
    stride = 1 + nu

    def dmas(st):
        r_ = [[f"s_add_u32 m0, s18, {st*STAGE}", "s_nop 0", f"buffer_load_dwordx4 v{DV}, s[4:7], s16 offen lds"]]
        for i in range(2):
            r_.append([f"s_add_u32 m0, s18, {st*STAGE + PB + i*8192}", "s_nop 0",
                       f"buffer_load_dwordx4 v{DV+1+i}, s[8:11], s17 offen lds"])
        return r_

    def setup():
        a(f"""
v_bfe_u32 v3, v2, 2, 2
v_lshrrev_b32 v4, 5, v2
v_lshl_add_u32 v4, v4, 3, v3
v_lshlrev_b32 v4, 6, v4
v_bfe_u32 v5, v2, 4, 1
v_lshl_add_u32 v4, v5, 5, v4
v_and_b32 v5, 3, v2
v_lshl_add_u32 v4, v5, 3, v4
v_lshrrev_b32 v5, 2, v1
v_lshl_add_u32 v4, v5, 12, v4
""")
        for st in range(NS):
            a(f"v_add_u32 v{RA+st*stride}, {st*STAGE}, v4")
        a("s_mov_b32 s27, 0\ns_and_b32 s28, s22, 3\ns_lshl_b32 s28, s28, 5")
        t_read_addr(a, RA + 1, nu, 28, 27, PB, NS, STAGE, stride)
        for i in range(16):
            a(f"v_mov_b32 v{ACC+i}, 0")

    def reads(st, ul, fs):
        f = FR[fs]
        r_ = []
        for rr in range(2):
            r_.append(f"ds_read_b64_tr_b16 v[{f+2*rr}:{f+2*rr+1}], v{RA+st*stride} offset:{(16*ul+4*rr)*64}")
        r_.append(f"ds_read_b128 v[{f+8}:{f+11}], v{RA+st*stride+1+ul}")
        return r_

    kadv = ["s_add_u32 s16, s16, 4096", "s_add_u32 s17, s17, 128"]
    a(f"s_cmp_ge_u32 s22, 4\ns_cbranch_scc1 L_{tag}_v")
    for kv in range(2):
        if kv:
            a(f"L_{tag}_v:")

        def mfmas(fs):
            f = FR[fs]
            if kv == 0:
                return ["s_nop 0", f"v_mfma_f32_32x32x16_bf16 v[{ACC}:{ACC+15}], v[{f}:{f+3}], v[{f+8}:{f+11}], v[{ACC}:{ACC+15}]"]
            return ["s_nop 0", f"v_mfma_f32_32x32x16_bf16 v[{ACC}:{ACC+15}], v[{f+8}:{f+11}], v[{f}:{f+3}], v[{ACC}:{ACC+15}]"]

        pipeline(a, tag, 16, NS, nu, dmas, reads, mfmas, None, kadv, setup=setup)
        a("s_nop 15\ns_nop 3")
        a(f"""
s_and_b32 s23, s22, 3
s_add_u32 s23, s21, s23
s_lshl_b32 s23, s23, 12
v_lshlrev_b32 v3, 4, v2
v_add_u32 v3, s23, v3
v_add_u32 v3, {WS_KF + 2048*kv}, v3
""")
        for r_ in range(8):
            a(f"v_cvt_pk_bf16_f32 v{16+r_}, v{ACC+2*r_}, v{ACC+2*r_+1}")
        for p in range(2):
            a(f"buffer_store_dwordx4 v[{16+4*p}:{16+4*p+3}], v3, s[12:15], 0 offen offset:{p*1024}")
        if kv == 0:
            tl(a, 5, True)
            a("s_endpgm")


def kernel_header(a, name):
    a.lines.append(f".globl {name}\n.p2align 8\n.type {name},@function\n{name}:")


def kernel_desc(name, vgpr, sgpr=100):
    return f""".amdhsa_kernel {name}
  .amdhsa_next_free_vgpr {vgpr}
  .amdhsa_next_free_sgpr {sgpr}
  .amdhsa_accum_offset {(vgpr+3)//4*4}
  .amdhsa_group_segment_fixed_size 0
  .amdhsa_kernarg_size 104
  .amdhsa_user_sgpr_count 2
  .amdhsa_user_sgpr_kernarg_segment_ptr 1
  .amdhsa_system_sgpr_workgroup_id_x 1
.end_amdhsa_kernel
"""


WS_BYTES = 40 << 20


def g4(a):
    a("""
s_and_b32 s50, s30, 1
s_lshl_b32 s50, s50, 2
s_and_b32 s51, s31, 3
s_add_u32 s50, s50, s51
s_lshr_b32 s51, s30, 1
s_lshl_b32 s51, s51, 2
s_lshr_b32 s52, s31, 2
s_add_u32 s51, s51, s52
""")
    if os.environ.get('SAMETILE') == '1':
        a("s_mov_b32 s50, 0\ns_mov_b32 s51, 0")
    if os.environ.get('SAMETILE') == '2':
        a("s_and_b32 s50, s30, 7\ns_mov_b32 s51, s30")
    if os.environ.get('SAMETILE') == '3':
        a("s_and_b32 s50, s2, 7\ns_lshr_b32 s51, s2, 3")
    srd(a, 4, 48, 49, 2048 * 4096, WS_AB)
    srd(a, 8, 32, 33, 2048 * 4096)
    srd(a, 12, 36, 37, 2048 * 4096)
    a("""
s_lshl_b32 s16, s50, 19
s_lshl_b32 s17, s51, 19
s_lshl_b32 s21, s50, 8
s_add_u32 s21, s21, s17
s_add_u32 s21, s21, 2048
s_add_u32 s53, s17, 4096
""")
    sw = f"""
s_mov_b32 s8, s34
s_mov_b32 s9, s35
s_sub_u32 s17, s17, 4096
s_add_u32 s16, s16, {1024*4096 - 4096}
s_mov_b32 s53, -1
"""
    uid = [0]

    class Dyn(str):
        pass
    dyn = f"""
s_cmp_eq_u32 s17, s53
s_cselect_b32 s8, s34, s8
s_cselect_b32 s9, s35, s9
s_cselect_b32 s23, 4096, 0
s_cselect_b32 s54, {1024*4096 - 4096}, 0
s_cselect_b32 s53, -1, s53
s_sub_u32 s17, s17, s23
s_add_u32 s16, s16, s54
"""
    gemm(a, "g4", 2, 2, 2, 'T', 4096, 4096, 64, 4, 4096, switch=(32, sw, dyn))


TPS = 8
ASTAGE = TPS * 4096
ANS = 3
NSTG = 64 // TPS
Q0, KF_, VF_, P_, ONES, LA, LB, NEGM, SX, SY, OA, OB = 16, 32, 40, 48, 56, 60, 64, 72, 88, 104, 120, 136
ST, KT, VT, PT = 152, 168, 176, 184
THR1 = 2.0 ** int(os.environ.get('THR1', '60'))
THR2 = 2.0 ** 120
MARGIN = int(os.environ.get('MARGIN', '60'))


def r(b, n):
    return f"v[{b}:{b+n-1}]"


def mf32(d, a_, b_, c):
    return f"v_mfma_f32_32x32x16_bf16 {r(d,16)}, {r(a_,4)}, {r(b_,4)}, {r(c,16) if isinstance(c,int) else c}"


def mf16(d, a_, b_, c):
    return f"v_mfma_f32_16x16x32_bf16 {r(d,4)}, {r(a_,4)}, {r(b_,4)}, {r(c,4)}"


def attn_dma(a, i):
    a(f"s_add_u32 m0, s17, {i*8192}\ns_nop 0\nbuffer_load_dwordx4 v{12+i}, s[12:15], s16 offen lds")


def attn_dma_adv(a):
    a(f"""
s_add_u32 s16, s16, {ASTAGE}
s_add_u32 s17, s17, {ASTAGE}
s_sub_u32 s30, s17, {ANS*ASTAGE}
s_cmp_ge_u32 s17, {ANS*ASTAGE}
s_cselect_b32 s17, s30, s17
""")


def cap(fn, *args):
    t = Asm()
    fn(t, *args)
    return [l.strip() for l in t.lines]


def attn_tile(a, g, tt, X, Y, Oc, Od, lc, ld, H, nx):
    cur, nxt = (g % ANS) * ASTAGE, ((g + 1) % ANS) * ASTAGE

    def rd(dst, t2, part):
        if g == NSTG - 1 and t2 >= TPS:
            t2 = TPS - 1
        base = cur if t2 < TPS else nxt
        off = base + (t2 % TPS) * 4096 + part * 1024
        a(f"ds_read_b128 {r(dst,4)}, v{10 + off // 65536} offset:{off % 65536}")
    last = (tt == TPS - 1)
    E = lambda i: a(f"v_exp_f32 v{X+i}, v{X+i}")
    C = lambda i: a(f"v_cvt_pk_bf16_f32 v{P_+i}, v{X+2*i}, v{X+2*i+1}")

    def hook(k):
        for ins in H.get(k, []):
            a(ins)
    hook('pre')
    a(f"s_waitcnt lgkmcnt({2 + nx})")
    a(mf32(Y, KF_, Q0, NEGM))
    for i in range(4): E(i)
    a("s_waitcnt lgkmcnt(0)")
    hook(0)
    if tt > 0:
        a(mf32(Od, VF_ + 4, P_ + 4, Od))
    if last:
        rd(VF_ + 4, tt, 3)
    for i in range(4, 6): E(i)
    hook('m0')
    for i in range(6, 8): E(i)
    hook(1)
    if tt > 0:
        a(mf16(ld, ONES, P_ + 4, ld))
    for i in range(4): C(i)
    a(mf32(Y, KF_ + 4, Q0 + 4, Y))
    hook(2)
    rd(KF_, tt + 2, 0)
    rd(KF_ + 4, tt + 2, 1)
    for i in range(8, 10): E(i)
    hook('m1')
    for i in range(10, 12): E(i)
    a(mf32(Od, VF_, P_, Oc))
    if not last:
        rd(VF_ + 4, tt, 3)
    rd(VF_, tt + 1, 2)
    for i in range(12, 14): E(i)
    hook('m2')
    for i in range(14, 16): E(i)
    hook(3)
    a(mf16(ld, ONES, P_, lc))
    hook('end')
    for i in range(4, 8): C(i)
    hook('m3')
    if last:
        assert not H.get('end')
        a("s_waitcnt lgkmcnt(3)\ns_nop 0")
        a(mf32(Od, VF_ + 4, P_ + 4, Od))
        a(mf16(ld, ONES, P_ + 4, ld))


PEND = {}


def attn_slow(a, tag, Oold, Onew, lold, lnew, Snext, sbase, pend=None):
    a(f"L_{tag}_slow:")
    a("s_nop 15")
    a(f"v_cmp_nlt_f32 vcc, v{lnew}, s29\ns_nop 4\ns_cbranch_vccnz L_{tag}_heavy")
    a(f"""
v_frexp_exp_i32_f32 v3, v{lnew}
v_add_u32 v3, {MARGIN}, v3
v_cvt_f32_i32 v4, v3
v_sub_u32 v3, 0, v3
""")
    for i in range(16): a(f"v_ldexp_f32 v{Onew+i}, v{Onew+i}, v3")
    for i in range(4): a(f"v_ldexp_f32 v{lnew+i}, v{lnew+i}, v3")
    for i in range(16): a(f"v_sub_f32 v{NEGM+i}, v{NEGM+i}, v4")
    for i in range(16): a(f"v_sub_f32 v{Snext+i}, v{Snext+i}, v4")
    a(f"s_nop 1\ns_branch L_{tag}_ret")
    a(f"L_{tag}_heavy:")
    a("s_waitcnt vmcnt(0)")
    np_, AM = pend or (0, 0)
    for i in range(np_):
        a(f"v_mfma_f32_16x16x32_bf16 {r(VB+12+4*i,4)}, {r(AM,4)}, {r(VB+4*i,4)}, 0")
    a("s_nop 15")
    for i in range(np_):
        a(f"v_max3_f32 v{VMAX}, |v{VB+12+4*i}|, |v{VB+13+4*i}|, v{VMAX}\nv_max3_f32 v{VMAX}, |v{VB+14+4*i}|, |v{VB+15+4*i}|, v{VMAX}")
    a(f"s_waitcnt lgkmcnt(0)\nv_log_f32 v5, v{lold}\nv_add_u32 v6, {sbase}, v10\ns_mov_b32 s30, 0")
    a(f"L_{tag}_h1:")
    a(f"ds_read_b128 {r(KT,4)}, v6\nds_read_b128 {r(KT+4,4)}, v6 offset:1024\ns_waitcnt lgkmcnt(0)")
    a(mf32(ST, KT, Q0, NEGM)); a(mf32(ST, KT + 4, Q0 + 4, ST))
    a("s_nop 15")
    for i in range(8): a(f"v_max3_f32 v5, v{ST+2*i}, v{ST+2*i+1}, v5")
    a(f"v_add_u32 v6, 4096, v6\ns_add_u32 s30, s30, 1\ns_cmp_lt_u32 s30, {TPS}\ns_cbranch_scc1 L_{tag}_h1")
    a(f"""
v_mov_b32 v6, v5
s_nop 1
v_permlane32_swap_b32 v5, v6
s_nop 1
v_max_f32 v5, v5, v6
v_ceil_f32 v4, v5
v_add_f32 v4, {f32bits(float(MARGIN))}, v4
v_cvt_i32_f32 v3, v4
v_sub_u32 v3, 0, v3
""")
    for i in range(16): a(f"v_ldexp_f32 v{Onew+i}, v{Oold+i}, v3")
    for i in range(4): a(f"v_ldexp_f32 v{lnew+i}, v{lold+i}, v3")
    for i in range(16): a(f"v_sub_f32 v{NEGM+i}, v{NEGM+i}, v4")
    for i in range(16): a(f"v_sub_f32 v{Snext+i}, v{Snext+i}, v4")
    a(f"v_add_u32 v6, {sbase}, v10\ns_mov_b32 s30, 0")
    a(f"L_{tag}_h2:")
    a(f"ds_read_b128 {r(KT,4)}, v6\nds_read_b128 {r(KT+4,4)}, v6 offset:1024\nds_read_b128 {r(VT,4)}, v6 offset:2048\nds_read_b128 {r(VT+4,4)}, v6 offset:3072\ns_waitcnt lgkmcnt(0)")
    a(mf32(ST, KT, Q0, NEGM)); a(mf32(ST, KT + 4, Q0 + 4, ST))
    a("s_nop 15")
    for i in range(16): a(f"v_exp_f32 v{ST+i}, v{ST+i}")
    a("s_nop 0")
    for i in range(8): a(f"v_cvt_pk_bf16_f32 v{PT+i}, v{ST+2*i}, v{ST+2*i+1}")
    a("s_nop 1")
    a(mf32(Onew, VT, PT, Onew)); a(mf32(Onew, VT + 4, PT + 4, Onew))
    a(mf16(lnew, ONES, PT, lnew)); a(mf16(lnew, ONES, PT + 4, lnew))
    a(f"v_add_u32 v6, 4096, v6\ns_add_u32 s30, s30, 1\ns_cmp_lt_u32 s30, {TPS}\ns_cbranch_scc1 L_{tag}_h2")
    a("s_nop 7")
    for i in range(4 * np_):
        a(f"v_mov_b32 v{VB+i}, 0")
    a(f"s_branch L_{tag}_ret")


N0 = int(os.environ.get('N0', '12'))
TS = eval(os.environ.get('TS', '[-1,-1,-1,-1,-1,-1, 13]'))


def touch_j(a, j):
    if j < 6:
        sr, vo, so, inc = ((44, 252, 100, 512), (36, 253, 101, 256 * 2048))[j % 2]
    else:
        sr, vo, so, inc = (8, 251, 54, 0)
    a(f"buffer_load_dword v249, v{vo}, s[{sr}:{sr+3}], s{so} offen\ns_add_u32 s{so}, s{so}, {inc}")


def q_gemm(a, setup_hook, role):
    NS = int(os.environ.get('QNS', '4'))
    STAGE = 28672
    F = [88, 104]
    F2 = [32, 40]
    D_, R_ = 152, 156
    AC, AC2 = OA, NEGM
    SV = 248
    NB = [0]
    stride = 5

    def dmas(st):
        if role == 'F':
            return []
        return [[f"s_add_u32 m0, s20, {st*STAGE + i*1024}", "s_nop 0", f"buffer_load_dwordx4 v{D_+i}, s[96:99], s16 offen lds"] for i in range(4)]

    def setup():
        setup_hook(role)
        a(f"""
v_bfe_u32 v3, v2, 2, 2
v_lshrrev_b32 v4, 5, v2
v_lshl_add_u32 v4, v4, 3, v3
v_bfe_u32 v5, v2, 4, 1
v_and_b32 v6, 3, v2
v_lshlrev_b32 v6, 3, v6
v_lshl_add_u32 v6, v5, 5, v6
v_lshl_add_u32 v7, v4, 6, v6
v_lshl_add_u32 v4, v4, 7, v6
v_lshrrev_b32 v3, 1, v3
v_lshrrev_b32 v5, 2, v1
v_xor_b32 v3, v3, v5
v_lshl_add_u32 v4, v3, 6, v4
v_add_u32 v{R_+25}, 24576, v7
v_add_u32 v{R_+26}, {24576+2*STAGE}, v7
v_add_u32 v{R_+27}, {24576+4*STAGE}, v7
""")
        for st in range(NS):
            a(f"v_add_u32 v{R_+st*stride}, {st*STAGE}, v4")
        a("s_mov_b32 s27, 0\ns_and_b32 s25, s22, 3\ns_lshl_b32 s25, s25, 5")
        t_read_addr(a, R_ + 1, 4, 25, 27, 8192, NS, STAGE, stride)
        for i in range(16):
            a(f"v_mov_b32 v{AC+i}, 0")
        if role in ('PK', 'PV'):
            for i in range(16):
                a(f"v_mov_b32 v{AC2+i}, 0")

    def reads(st, ul, fs):
        f = F[fs]
        r_ = []
        for q in range(2):
            u = 2 * ul + q
            for rr in range(2):
                r_.append(f"ds_read_b64_tr_b16 v[{f+4*q+2*rr}:{f+4*q+2*rr+1}], v{R_+st*stride} offset:{(16*u+4*rr)*128}")
            r_.append(f"ds_read_b128 v[{f+8+4*q}:{f+11+4*q}], v{R_+st*stride+1+u}")
            if role in ('PK', 'PV'):
                g = F2[fs]
                for rr in range(2):
                    r_.append(f"ds_read_b64_tr_b16 v[{g+4*q+2*rr}:{g+4*q+2*rr+1}], v{R_+25+st//2} offset:{(st%2)*STAGE+(16*u+4*rr)*64}")
        return r_

    def mfmas(fs):
        f, g = F[fs], F2[fs]
        r_ = []
        for q in range(2):
            r_.append(f"v_mfma_f32_32x32x16_bf16 v[{AC}:{AC+15}], v[{f+4*q}:{f+4*q+3}], v[{f+8+4*q}:{f+11+4*q}], v[{AC}:{AC+15}]")
            if role == 'PK':
                r_.append(f"v_mfma_f32_32x32x16_bf16 v[{AC2}:{AC2+15}], v[{g+4*q}:{g+4*q+3}], v[{f+8+4*q}:{f+11+4*q}], v[{AC2}:{AC2+15}]")
            if role == 'PV':
                r_.append(f"v_mfma_f32_32x32x16_bf16 v[{AC2}:{AC2+15}], v[{f+8+4*q}:{f+11+4*q}], v[{g+4*q}:{g+4*q+3}], v[{AC2}:{AC2+15}]")
        return r_

    kadv = ["s_add_u32 s16, s16, s17"]

    def ev_touch(js, first):
        a(f"s_cmp_lg_u32 s22, 7\ns_cbranch_scc1 L_qt{js[0]}")
        for j in js:
            touch_j(a, j)
        a(f"L_qt{js[0]}:")

    ev, ex = {}, {}
    SJ = int(os.environ.get('SJ', '12'))
    acts = {SJ: [lambda: side_jobs(a, role)]}
    ex[SJ] = 4
    if role == 'F':
        for t in sorted(set(t for t in TS if 0 <= t < 16)):
            js = [j for j in range(len(TS)) if TS[j] == t]
            acts.setdefault(t, []).append(lambda js=js: ev_touch(js, False))
    ev = {t: (lambda l=l: [f() for f in l]) for t, l in acts.items()}
    pipeline(a, "qg", 16, NS, 2, dmas, reads, mfmas, None, kadv, setup=setup, events=ev, extras=ex, novm=(role == 'F'))
    a(f"s_mov_b32 s23, {f32bits(QSCALE)}\ns_nop 11")
    if role in ('PK', 'PV'):
        for i in range(8):
            a(f"v_cvt_pk_bf16_f32 v{F[0]+i}, v{AC2+2*i}, v{AC2+2*i+1}")
        a(f"v_add_u32 v3, s24, v9")
        for p in range(2):
            a(f"buffer_store_dwordx4 v[{F[0]+4*p}:{F[0]+4*p+3}], v3, s[12:15], 0 offen offset:{p*1024 + (2048 if role == 'PV' else 0)}")
    for i in range(16):
        a(f"v_mul_f32 v{AC+i}, s23, v{AC+i}")
    for i in range(8):
        a(f"v_cvt_pk_bf16_f32 v{Q0+i}, v{AC+2*i}, v{AC+2*i+1}")
    a(f"""
buffer_store_dwordx4 v[{Q0}:{Q0+3}], v9, s[12:15], s26 offen
buffer_store_dwordx4 v[{Q0+4}:{Q0+7}], v9, s[12:15], s26 offen offset:1024
s_waitcnt vmcnt({4 if role in ('PK', 'PV') else 2})
""")
    side_jobs2(a, role)


def side_jobs(a, role):
    T = 200
    a(f"""
v_lshlrev_b32 v6, 5, v2
s_cmp_ge_u32 s22, 4
s_cbranch_scc1 L_sj_emv{role}
s_lshl_b32 s64, s2, 2
s_add_u32 s64, s64, s22
s_sub_u32 s31, 2048, s64
s_lshl_b32 s23, s64, 11
s_lshl_b32 s31, s31, 11
s_mov_b32 s19, {512*2048}
buffer_load_dwordx4 v[{T}:{T+3}], v6, s[80:83], s23 offen
buffer_load_dwordx4 v[{T+4}:{T+7}], v6, s[80:83], s23 offen offset:16
buffer_load_dwordx4 v[{T+8}:{T+11}], v6, s[80:83], s31 offen
buffer_load_dwordx4 v[{T+12}:{T+15}], v6, s[80:83], s31 offen offset:16
buffer_load_dwordx4 v[{T+16}:{T+19}], v6, s[84:87], s19 offen
buffer_load_dwordx4 v[{T+20}:{T+23}], v6, s[84:87], s19 offen offset:16
s_branch L_sj_1{role}
L_sj_emv{role}:
s_lshl_b32 s64, s2, 1
s_add_u32 s64, s64, s22
s_sub_u32 s64, s64, 4
s_cmp_ge_u32 s22, 6
s_cselect_b32 s64, 0x10000, s64
s_lshl_b32 s31, s2, 3
s_add_u32 s31, s31, s22
s_cmp_eq_u32 s31, 6
s_cselect_b32 s64, 512, s64
s_lshl_b32 s23, s64, 11
s_mov_b32 s19, {1024*2048}
buffer_load_dwordx4 v[{T}:{T+3}], v6, s[84:87], s23 offen
buffer_load_dwordx4 v[{T+4}:{T+7}], v6, s[84:87], s23 offen offset:16
buffer_load_dwordx4 v[{T+16}:{T+19}], v6, s[80:83], s19 offen
buffer_load_dwordx4 v[{T+20}:{T+23}], v6, s[80:83], s19 offen offset:16
L_sj_1{role}:
""")


def side_jobs2(a, role):
    T = 200
    o = T + 24
    a(f"""
v_lshlrev_b32 v6, 5, v2
v_mov_b32 v7, 0
s_cmp_ge_u32 s22, 4
s_cbranch_scc1 L_sj_emv2{role}
""")
    for j in range(8):
        a(f"""
v_lshlrev_b32 v{o+16}, 16, v{T+j}
v_and_b32 v{o+17}, 0xffff0000, v{T+j}
v_lshlrev_b32 v{o+18}, 16, v{T+8+j}
v_and_b32 v{o+19}, 0xffff0000, v{T+8+j}
v_add_f32 v{o+20}, v{o+16}, v{o+18}
v_add_f32 v{o+21}, v{o+17}, v{o+19}
v_sub_f32 v{o+22}, v{o+16}, v{o+18}
v_sub_f32 v{o+23}, v{o+17}, v{o+19}
v_cvt_pk_bf16_f32 v{o+j}, v{o+20}, v{o+21}
v_cvt_pk_bf16_f32 v{o+8+j}, v{o+22}, v{o+23}
v_dot2c_f32_bf16 v7, v{o+j}, v{T+16+j}
""")
    a(f"""
s_lshl_b32 s23, s64, 11
s_add_u32 s31, s23, {WS_XM}
s_add_u32 s23, s23, {WS_XP}
buffer_store_dwordx4 v[{o}:{o+3}], v6, s[12:15], s23 offen
buffer_store_dwordx4 v[{o+4}:{o+7}], v6, s[12:15], s23 offen offset:16
buffer_store_dwordx4 v[{o+8}:{o+11}], v6, s[12:15], s31 offen
buffer_store_dwordx4 v[{o+12}:{o+15}], v6, s[12:15], s31 offen offset:16
""")
    wave_sum(a, 7, 3)
    a(f"""
v_cvt_pk_bf16_f32 v7, v7, v7
s_lshl_b32 s23, s64, 1
s_add_u32 s23, s23, {WS_AT + 512*ATP}
v_mov_b32 v4, 0
s_mov_b64 exec, 1
buffer_store_short v7, v4, s[12:15], s23 offen
s_mov_b64 exec, -1
s_branch L_sj_done{role}
L_sj_emv2{role}:
s_cmp_gt_u32 s64, 512
s_cbranch_scc1 L_sj_done{role}
""")
    for j in range(8):
        a(f"v_dot2c_f32_bf16 v7, v{T+j}, v{T+16+j}")
    a("s_nop 3")
    wave_sum(a, 7, 3)
    a(f"""
v_mov_b32 v5, 0
v_cvt_pk_bf16_f32 v7, v7, v5
v_cmp_eq_u32 vcc, 0, v2
s_mul_i32 s23, s64, {ATP}
s_add_u32 s31, s23, {WS_BT + 2048}
s_add_u32 s23, s23, {WS_AT + 2048}
v_cndmask_b32 v7, v5, v7, vcc
v_lshlrev_b32 v4, 2, v2
s_mov_b32 exec_hi, 0
buffer_store_dword v7, v4, s[12:15], s23 offen
buffer_store_dword v5, v4, s[12:15], s31 offen
s_mov_b64 exec, -1
L_sj_done{role}:
""")


def kv_dma(a, g, i):
    a(f"s_add_u32 m0, s18, {(g % ANS)*ASTAGE + i*8192}\ns_mov_b32 s19, {g*ASTAGE}\nbuffer_load_dwordx4 v{12+i}, s[12:15], s19 offen lds")


def attention(a, tag, endlabel):
    wave_setup(a)
    stamp_begin(a)
    tl(a, 3)
    def hook():
        a(f"""
v_lshlrev_b32 v9, 4, v2
v_lshl_add_u32 v12, v1, 10, v9
v_add_u32 v12, {WS_KF}, v12
v_add_u32 v13, 8192, v12
v_add_u32 v14, 16384, v12
v_add_u32 v15, 24576, v12
""")
        for g in range(2):
            for i in range(4): kv_dma(a, g, i)
        a(f"""
v_and_b32 v5, 31, v2
v_and_b32 v4, 3, v1
v_lshl_add_u32 v4, v4, 5, v5
v_lshrrev_b32 v5, 5, v2
v_lshlrev_b32 v5, 4, v5
v_lshl_add_u32 v8, v4, 11, v5
v_lshrrev_b32 v5, 2, v1
v_lshl_add_u32 v8, v5, 6, v8
s_mov_b32 s28, {f32bits(THR1)}
s_mov_b32 s29, {f32bits(THR2)}
v_mov_b32 v10, v9
v_add_u32 v11, 65536, v9
""")
        stage1_setup(a)
        stage1_setup2(a)
        verify_setup(a)
        a(f"""
v_lshrrev_b32 v4, 2, v2
v_lshrrev_b32 v5, 4, v2
v_xor_b32 v4, v4, v5
v_and_b32 v4, 1, v4
v_cmp_eq_u32 vcc, 0, v4
v_mov_b32 v5, 0x3f803f80
s_nop 1
v_cndmask_b32 v{ONES}, 0, v5, vcc
v_mov_b32 v{ONES+1}, v{ONES}
v_mov_b32 v{ONES+2}, v{ONES}
v_mov_b32 v{ONES+3}, v{ONES}
""")
        for i in range(16): a(f"v_mov_b32 v{OB+i}, 0")
        for i in range(4): a(f"v_mov_b32 v{LB+i}, 0")
        a(f"v_mov_b32 v{VMAX}, 0")
    a(f"""
v_lshlrev_b32 v3, 4, v2
s_lshl_b32 s23, s2, 14
s_lshl_b32 s30, s22, 11
s_add_u32 s23, s23, s30
buffer_load_dwordx4 v[{Q0}:{Q0+3}], v3, s[12:15], s23 offen
buffer_load_dwordx4 v[{Q0+4}:{Q0+7}], v3, s[12:15], s23 offen offset:1024
""")
    hook()
    for b in range(2):
        for i in range(4): s1_dma(a, b, i)
    a("s_waitcnt vmcnt(12)\ns_barrier")
    a(f"ds_read_b128 {r(KF_,4)}, v10\nds_read_b128 {r(KF_+4,4)}, v10 offset:1024")
    a("s_waitcnt lgkmcnt(0)")
    a(mf32(SX, KF_, Q0, "0")); a(mf32(SX, KF_ + 4, Q0 + 4, SX))
    a(f"ds_read_b128 {r(KF_,4)}, v10 offset:4096\nds_read_b128 {r(KF_+4,4)}, v10 offset:{4096+1024}")
    a(f"ds_read_b128 {r(VF_+4,4)}, v10 offset:3072\nds_read_b128 {r(VF_,4)}, v10 offset:2048")
    a("s_nop 11")
    a(f"v_max3_f32 v5, v{SX}, v{SX+1}, v{SX+2}")
    for i in range(6): a(f"v_max3_f32 v5, v{SX+3+2*i}, v{SX+4+2*i}, v5")
    a(f"""
v_max_f32 v5, v{SX+15}, v5
v_mov_b32 v6, v5
s_nop 1
v_permlane32_swap_b32 v5, v6
s_nop 1
v_max_f32 v5, v5, v6
v_add_f32 v5, {f32bits(float(MARGIN))}, v5
""")
    for i in range(16): a(f"v_sub_f32 v{NEGM+i}, 0, v5")
    for i in range(16): a(f"v_sub_f32 v{SX+i}, v{SX+i}, v5")
    tl(a, 4)

    HK = {}

    def add(g, tt, slot, lines):
        HK.setdefault((g, tt), {}).setdefault(slot, []).extend(lines)
    BT_ = TPS - 2
    for g in range(NSTG):
        add(g, BT_, 'pre', ["s_waitcnt vmcnt(0)" + (" lgkmcnt(0)" if g == NSTG - 1 else ""), "s_barrier"])
        if g + 2 < NSTG:
            for i in range(4): add(g, BT_, i, cap(kv_dma, g + 2, i))
    add(0, 3, 'pre', ["s_waitcnt vmcnt(0)", "s_barrier"])

    def s1_step(g, tt, buf):
        add(g, tt, 'end', cap(s1_reads, buf))
        for i in range(4): add(g, tt + 1, f"m{i}", cap(s1_mfma, i))
    s1_step(0, 3, 0)
    for j in range(7):
        s1_step(j, BT_, (j + 1) & 1)
        if j + 2 <= 7:
            for i in range(4): add(j + 1, 0, i, cap(s1_dma, j & 1, i))
    add(7, 0, 'pre', f"""
s_and_b32 s27, s22, 1
s_lshr_b32 s25, s22, 1
s_and_b32 s23, s22, 3
s_lshl_b32 s23, s23, 13
s_cmp_ge_u32 s22, 4
s_cselect_b32 s30, 0, {S1B - (5 % ANS)*ASTAGE}
s_add_u32 s30, s30, {(5 % ANS)*ASTAGE}
s_add_u32 s23, s23, s30
v_add_u32 v{S1A}, s23, v9
s_lshl_b32 s23, s25, 11
s_lshl_b32 s30, s27, 13
s_add_u32 s23, s23, s30
v_add_u32 v{S1A+2}, s23, v9
v_add_u32 v{S1A+1}, {S1B}, v{S1A+2}
v_add_u32 v{S1A+2}, {(5 % ANS)*ASTAGE}, v{S1A+2}
""".strip().split("\n"))
    for j in range(8):
        add(7, 1 + j // 3, j % 3, [f"ds_write_b128 v{S1A}, v[{S1ACC+4*j}:{S1ACC+4*j+3}] offset:{j*1024}"])
    add(7, BT_, 'end', [f"ds_read_b128 v[{S1ACC+8*i+4*j}:{S1ACC+8*i+4*j+3}], v{S1A+1+i//2} offset:{(i%2)*16384+j*1024}" for i in range(4) for j in range(2)])
    def vchk(g, loads, AM):
        PEND[g] = (len(loads), AM)
        for i, ld_ in enumerate(loads):
            add(*((0, 4) if g == 0 else (g - 1, 7)), i, ld_)
            add(g, BT_, i, [f"v_mfma_f32_16x16x32_bf16 {r(VB+12+4*i,4)}, {r(AM,4)}, {r(VB+4*i,4)}, 0"])
            add(g, TPS - 1, i, [f"v_max3_f32 v{VMAX}, |v{VB+12+4*i}|, |v{VB+13+4*i}|, v{VMAX}", f"v_max3_f32 v{VMAX}, |v{VB+14+4*i}|, |v{VB+15+4*i}|, v{VMAX}"])
    ldn = lambda i, off: [f"buffer_load_dwordx4 v[{VB+4*i}:{VB+4*i+3}], v{VAD}, s[76:79], 0 offen offset:{off}"]
    vchk(0, [ldn(0, 0)], AMN)
    vchk(1, [ldn(0, 512), ldn(1, 1024), ldn(2, 1536)], AMN)
    vchk(2, [ldn(0, 2048), ldn(1, 2560)], AMN)
    vchk(3, [ldn(0, 3072), ldn(1, 3584)], AMN)
    add(3, 7, 'pre', cap(verify_w_switch))
    vchk(4, [[f"buffer_load_dwordx4 v[{VB+4*i}:{VB+4*i+3}], v{VAD}, s[84:87], s63 offen offset:{i*512}"] for i in range(2)]
         + [[f"buffer_load_dwordx4 v[{VB+8}:{VB+11}], v7, s[76:79], 0 offen"]], AMN)
    add(4, 7, 'pre', cap(verify_r_switch))
    ldr = lambda i: [f"buffer_load_dwordx4 v[{VB+4*i}:{VB+4*i+3}], v{VRV}, s[76:79], 0 offen", f"v_add_u32 v{VRV}, v{VRV}, v{VAD}"]
    vchk(5, [ldr(0), ldr(1), [f"buffer_load_dwordx4 v[{VB+8}:{VB+11}], v7, s[76:79], 0 offen"]], AMR)
    vchk(6, [ldr(0), ldr(1)], AMR)
    add(7, 0, 'pre', f"""
s_mov_b32 s23, {f32bits(VTOL)}
v_cmp_nle_f32 vcc, v{VMAX}, s23
s_lshl_b32 s30, s58, 2
s_add_u32 s30, s30, {WS_FLAG}
v_mov_b32 v4, 0
s_cmp_lg_u64 vcc, 0
s_cselect_b32 s23, 1, 0
v_mov_b32 v3, s23
s_mov_b64 exec, 1
buffer_store_dword v3, v4, s[12:15], s30 offen
s_mov_b64 exec, -1
""".strip().split("\n"))

    nx = 0
    for g in range(NSTG):
        Oold, Onew, lold, lnew = (OB, OA, LB, LA) if g % 2 == 0 else (OA, OB, LA, LB)
        for tt in range(TPS):
            X, Y = (SX, SY) if tt % 2 == 0 else (SY, SX)
            H = HK.get((g, tt), {})
            attn_tile(a, g, tt, X, Y, Oold if tt == 0 else Onew, Onew, lold if tt == 0 else lnew, lnew, H, nx)
            nx = sum(1 for k in ('m2', 3, 'end', 'm3') for ins in H.get(k, []) if ins.startswith("ds_"))
        a(f"""
s_nop 7
v_cmp_nlt_f32 vcc, v{lnew}, s28
s_nop 1
s_cbranch_vccnz L_{tag}{g}_slow
L_{tag}{g}_ret:
""")
    tl(a, 2)
    a(f"s_nop 3\nv_rcp_f32 v7, v{LB}\ns_add_u32 s31, s26, {WS_O}")
    for i in range(16):
        a(f"v_mul_f32 v{OB+i}, v7, v{OB+i}")
    for i in range(8): a(f"v_cvt_pk_bf16_f32 v{P_+i}, v{OB+2*i}, v{OB+2*i+1}")
    a("s_nop 1")
    for p in range(2):
        a(f"v_permlane32_swap_b32 v{P_+4*p}, v{P_+4*p+2}\nv_permlane32_swap_b32 v{P_+4*p+1}, v{P_+4*p+3}")
    for p in range(2):
        a(f"buffer_store_dwordx4 {r(P_+4*p,4)}, v8, s[12:15], s31 offen offset:{p*32}")
    for r_ in range(8):
        a(f"v_add_f32 v{S1ACC+r_}, v{S1ACC+r_}, v{S1ACC+8+r_}\nv_add_f32 v{S1ACC+16+r_}, v{S1ACC+16+r_}, v{S1ACC+24+r_}")
    for r_ in range(8):
        a(f"v_add_f32 v{S1ACC+r_}, v{S1ACC+r_}, v{S1ACC+16+r_}")
    pack8(a, 16, S1ACC)
    a(f"""
v_and_b32 v3, 31, v2
s_lshl_b32 s23, s27, 5
v_add_u32 v3, s23, v3
s_mov_b32 s23, {ATP}
v_mul_lo_u32 v3, v3, s23
v_lshrrev_b32 v4, 5, v2
v_lshl_add_u32 v3, v4, 4, v3
s_lshl_b32 s23, s25, 5
s_add_u32 s23, s23, s21
buffer_store_dwordx4 v[16:19], v3, s[12:15], s23 offen
""")
    stamp_end(a, 196608)
    tl(a, 5, True)
    a(f"s_branch {endlabel}")
    for g in range(NSTG):
        if g % 2 == 0:
            attn_slow(a, f"{tag}{g}", OB, OA, LB, LA, SX, (g % ANS) * ASTAGE, PEND.get(g + 1))
        else:
            attn_slow(a, f"{tag}{g}", OA, OB, LA, LB, SX, (g % ANS) * ASTAGE, PEND.get(g + 1))


def wave_sum(a, v, t):
    for sh in (8, 4, 2, 1):
        a(f"s_nop 1\nv_add_f32_dpp v{v}, v{v}, v{v} row_ror:{sh} row_mask:0xf bank_mask:0xf")
    a(f"""
v_mov_b32 v{t}, v{v}
s_nop 1
v_permlane16_swap_b32 v{v}, v{t}
s_nop 1
v_add_f32 v{v}, v{v}, v{t}
v_mov_b32 v{t}, v{v}
s_nop 1
v_permlane32_swap_b32 v{v}, v{t}
s_nop 1
v_add_f32 v{v}, v{v}, v{t}
""")


def small_gemm(a, tag, mode, pP, pR, nsteps, kstep, pre=None):
    NS, STAGE, nu = 4, 32768, 2
    t_dma_voff(a, DV, 1, pP)
    t_dma_voff(a, DV + 1, 1, pR)
    stride = 4

    def setup():
        a("""
s_and_b32 s26, s22, 1
s_lshr_b32 s24, s22, 2
s_and_b32 s27, s22, 2
s_lshl_b32 s27, s27, 1
s_lshl_b32 s28, s24, 7
""")
        t_read_addr(a, RA, nu, 28, 27, 0, NS, STAGE, stride)
        a("s_lshl_b32 s29, s26, 5\ns_add_u32 s28, s28, s29")
        t_read_addr(a, RA + 2, nu, 28, 27, 8192, NS, STAGE, stride)
        for i in range(32):
            a(f"v_mov_b32 v{ACC+i}, 0")

    def dmas(st):
        return [[f"s_add_u32 m0, s18, {st*STAGE}", "s_nop 0", f"buffer_load_dwordx4 v{DV}, s[4:7], s16 offen lds"],
                [f"s_add_u32 m0, s18, {st*STAGE+8192}", "s_nop 0", f"buffer_load_dwordx4 v{DV+1}, s[8:11], s17 offen lds"],
                [f"s_add_u32 m0, s18, {st*STAGE+16384}", "s_nop 0", f"buffer_load_dwordx4 v{DV}, s[36:39], s40 offen lds"],
                [f"s_add_u32 m0, s18, {st*STAGE+24576}", "s_nop 0", f"buffer_load_dwordx4 v{DV+1}, s[44:47], s41 offen lds"]]

    def reads(st, ul, fs):
        f = FR[fs]
        return [f"ds_read_b128 v[{f}:{f+3}], v{RA+st*stride+ul}",
                f"ds_read_b128 v[{f+4}:{f+7}], v{RA+st*stride+ul} offset:4096",
                f"ds_read_b128 v[{f+8}:{f+11}], v{RA+st*stride+2+ul}"]

    def mfmas(fs):
        f = FR[fs]
        return [f"v_mfma_f32_32x32x16_bf16 v[{ACC+16*mb}:{ACC+16*mb+15}], v[{f+4*mb}:{f+4*mb+3}], v[{f+8}:{f+11}], v[{ACC+16*mb}:{ACC+16*mb+15}]" for mb in range(2)]

    kadv = [f"s_add_u32 s{r_}, s{r_}, {kstep}" for r_ in (16, 17, 40, 41)]
    pipeline(a, tag, nsteps, NS, nu, dmas, reads, mfmas, None, kadv, pre=pre, setup=setup)
    small_epi(a, mode, ACC)


def small_epi(a, mode, AC):
    a("s_and_b32 s26, s22, 1")
    a("s_nop 15\ns_barrier")
    a(f"""
v_lshlrev_b32 v3, 4, v2
s_lshl_b32 s23, s22, 13
v_add_u32 v4, s23, v3
s_lshr_b32 s25, s22, 1
s_lshl_b32 s23, s25, 11
s_lshl_b32 s29, s26, 13
s_add_u32 s23, s23, s29
v_add_u32 v3, s23, v3
""")
    for j in range(8):
        a(f"ds_write_b128 v4, v[{AC+4*j}:{AC+4*j+3}] offset:{j*1024}")
    a("s_waitcnt lgkmcnt(0)\ns_barrier")
    for i in range(4):
        for j in range(2):
            a(f"ds_read_b128 v[{96+8*i+4*j}:{96+8*i+4*j+3}], v3 offset:{i*16384+j*1024}")
    a("s_waitcnt lgkmcnt(4)")
    for r_ in range(8):
        a(f"v_add_f32 v{64+r_}, v{96+r_}, v{104+r_}")
    a("s_waitcnt lgkmcnt(0)")
    for r_ in range(8):
        a(f"v_add_f32 v{72+r_}, v{112+r_}, v{120+r_}")
    if mode == 1:
        for r_ in range(8):
            a(f"v_add_f32 v{64+r_}, v{64+r_}, v{72+r_}")


def pack8(a, dst, src):
    for r_ in range(4):
        a(f"v_cvt_pk_bf16_f32 v{dst+r_}, v{src+2*r_}, v{src+2*r_+1}")
    a(f"s_nop 1\nv_permlane32_swap_b32 v{dst}, v{dst+2}\nv_permlane32_swap_b32 v{dst+1}, v{dst+3}")


S1ACC, S1F, S1A, S1D = 200, 232, 24, 68
S1B = ANS_BYTES = 98304


def stage1_setup(a):
    a(f"""
s_and_b32 s30, s2, 7
s_lshr_b32 s31, s2, 3
s_and_b32 s31, s31, 15
s_and_b32 s54, s30, 3
s_lshl_b32 s54, s54, 2
s_and_b32 s55, s31, 3
s_add_u32 s54, s54, s55
s_lshr_b32 s55, s30, 2
s_lshl_b32 s55, s55, 2
s_lshr_b32 s56, s31, 2
s_add_u32 s55, s55, s56
s_cmp_ge_u32 s2, 128
s_cselect_b32 s8, s52, s50
s_cselect_b32 s9, s53, s51
s_cselect_b32 s56, {WS_XM-WS_XP}, 0
s_cselect_b32 s57, {WS_BT-WS_AT}, 0
s_add_u32 s56, s56, {WS_XP}
s_add_u32 s57, s57, {WS_AT}
s_mov_b32 s10, {1024*2048}
s_mov_b32 s11, 0x00020000
""")
    srd(a, 4, 48, 49, WS_BYTES)
    a(f"""
s_lshl_b32 s40, s54, 17
s_add_u32 s40, s40, s56
s_add_u32 s42, s40, 128
s_lshl_b32 s41, s55, 17
s_add_u32 s43, s41, 128
s_mul_i32 s21, s55, {64*ATP}
s_add_u32 s21, s21, s57
s_lshl_b32 s23, s54, 7
s_add_u32 s21, s21, s23
""")
    t_dma_voff(a, S1D, 1, 2048)


def stage1_setup2(a):
    a("""
s_lshr_b32 s25, s22, 2
s_and_b32 s27, s22, 2
s_lshl_b32 s27, s27, 1
s_lshl_b32 s25, s25, 7
""")
    t_read_addr(a, S1A, 2, 25, 27, S1B, 2, 32768, 4)
    a("s_and_b32 s23, s22, 1\ns_lshl_b32 s23, s23, 5\ns_add_u32 s25, s25, s23")
    t_read_addr(a, S1A + 2, 2, 25, 27, S1B + 8192, 2, 32768, 4)
    for i in range(32):
        a(f"v_mov_b32 v{S1ACC+i}, 0")


def s1_dma(a, buf, i):
    if os.environ.get('NOS1'): return
    sr, so = ((4, 40), (8, 41), (4, 42), (8, 43))[i]
    a(f"s_add_u32 m0, s18, {S1B + buf*32768 + i*8192}\ns_nop 0\nbuffer_load_dwordx4 v{S1D}, s[{sr}:{sr+3}], s{so} offen lds\ns_add_u32 s{so}, s{so}, 256")


def s1_reads(a, buf):
    if os.environ.get('NOS1'): return
    for ul in range(2):
        f = S1F + 12 * ul
        a(f"""
ds_read_b128 v[{f}:{f+3}], v{S1A+buf*4+ul}
ds_read_b128 v[{f+4}:{f+7}], v{S1A+buf*4+ul} offset:4096
ds_read_b128 v[{f+8}:{f+11}], v{S1A+buf*4+2+ul}
""")


def s1_mfma(a, i):
    if os.environ.get('NOS1'): return
    ul, mb = i >> 1, i & 1
    f = S1F + 12 * ul
    c = S1ACC + 16 * mb
    a(f"v_mfma_f32_32x32x16_bf16 v[{c}:{c+15}], v[{f+4*mb}:{f+4*mb+3}], v[{f+8}:{f+11}], v[{c}:{c+15}]")


def stage1_store(a):
    a("s_waitcnt vmcnt(0) lgkmcnt(0)")
    small_epi(a, 1, S1ACC)
    pack8(a, 16, 64)
    a(f"""
v_and_b32 v3, 31, v2
s_lshl_b32 s23, s26, 5
v_add_u32 v3, s23, v3
s_mov_b32 s23, {ATP}
v_mul_lo_u32 v3, v3, s23
v_lshrrev_b32 v4, 5, v2
v_lshl_add_u32 v3, v4, 4, v3
s_lshl_b32 s23, s25, 5
s_add_u32 s23, s23, s21
buffer_store_dwordx4 v[16:19], v3, s[12:15], s23 offen
""")


def dot_loads(a, dst, srdA, soffA, srdB, soffB):
    for (d, sr, so) in ((dst, srdA, soffA), (dst + 12, srdB, soffB)):
        a(f"""
buffer_load_dwordx4 v[{d}:{d+3}], v10, s[{sr}:{sr+3}], s{so} offen
buffer_load_dwordx4 v[{d+4}:{d+7}], v10, s[{sr}:{sr+3}], s{so} offen offset:16
buffer_load_dwordx4 v[{d+8}:{d+11}], v11, s[{sr}:{sr+3}], s{so} offen
""")


def dot_compute(a, res, src, t):
    a(f"v_mov_b32 v{res}, 0")
    for i in range(12):
        a(f"v_dot2c_f32_bf16 v{res}, v{src+i}, v{src+12+i}")
    a("s_nop 3")
    wave_sum(a, res, t)


def edge_issue(a):
    srd(a, 64, 56, 57, 2048 * 4096)
    srd(a, 68, 48, 49, WS_BYTES)
    a(f"""
s_lshr_b32 s54, s2, 3
s_and_b32 s55, s2, 7
v_lshlrev_b32 v10, 5, v2
v_lshlrev_b32 v11, 4, v2
v_add_u32 v11, 2048, v11
v_mov_b32 v3, 0x7ffffff0
v_cmp_gt_u32 vcc, 8, v2
s_lshl_b32 s58, s54, 6
s_lshl_b32 s23, s55, 3
s_add_u32 s58, s58, s23
s_add_u32 s58, s58, s22
v_cndmask_b32 v11, v3, v11, vcc
s_lshl_b32 s59, s58, 12
s_mov_b32 s60, {WS_AT + 512*ATP}
s_lshl_b32 s61, s55, 6
s_lshl_b32 s23, s54, 2
s_add_u32 s61, s61, s23
s_add_u32 s61, s61, s22
s_cmp_ge_u32 s22, 4
s_cselect_b32 s61, 512, s61
s_mul_i32 s62, s61, {ATP}
s_add_u32 s62, s62, {WS_AT}
s_mov_b32 s63, {1024*4096}
""")


def edge_loads(a):
    flag_load(a, 212, 76, 48, 49)
    dot_loads(a, 164, 64, 59, 68, 60)
    dot_loads(a, 188, 64, 63, 68, 62)


def edge_finish(a):
    flag_test(a, 212)
    a("s_cbranch_scc1 L_edge_done")
    dot_compute(a, 160, 164, 3)
    dot_compute(a, 161, 188, 3)
    a(f"""
v_cvt_pk_bf16_f32 v160, v160, v161
v_lshrrev_b32 v161, 16, v160
s_mov_b64 exec, 3
s_sub_u32 s23, 2048, s58
v_mov_b32 v3, s58
v_mov_b32 v4, s23
v_cmp_eq_u32 vcc, 0, v2
s_nop 1
v_cndmask_b32 v3, v4, v3, vcc
v_lshlrev_b32 v3, 12, v3
buffer_store_short v160, v3, s[12:15], 0 offen offset:3072
s_sub_u32 s23, 1024, s61
v_mov_b32 v3, s61
v_mov_b32 v4, s23
s_nop 0
v_cndmask_b32 v3, v4, v3, vcc
v_lshlrev_b32 v3, 1, v3
v_add_u32 v3, {1024*4096 + 2048}, v3
s_cmp_eq_u32 s61, 0
s_cselect_b64 s[72:73], 1, 3
s_cmp_gt_u32 s22, 4
s_cselect_b64 s[72:73], 0, s[72:73]
s_mov_b64 exec, s[72:73]
s_cbranch_execz L_edge_done
buffer_store_short v161, v3, s[12:15], 0 offen
L_edge_done:
s_mov_b64 exec, -1
""")


def stage2(a):
    a(f"""
s_and_b32 s54, s30, 3
s_lshl_b32 s54, s54, 2
s_and_b32 s55, s31, 3
s_add_u32 s54, s54, s55
s_lshr_b32 s55, s30, 2
s_lshl_b32 s55, s55, 2
s_lshr_b32 s56, s31, 2
s_add_u32 s55, s55, s56
""")
    srd(a, 4, 48, 49, WS_BYTES)
    srd(a, 36, 48, 49, WS_BYTES)
    srd(a, 8, 50, 51, 2048 * 4096)
    srd(a, 44, 52, 53, 2048 * 4096)
    srd(a, 12, 34, 35, 2048 * 4096)
    a(f"""
s_mul_i32 s16, s55, {64*ATP}
s_add_u32 s40, s16, {WS_BT}
s_add_u32 s16, s16, {WS_AT}
s_lshl_b32 s17, s54, 18
s_mov_b32 s41, s17
""")
    wave_setup(a)
    flag_load(a, 208, 76, 48, 49)

    def pre():
        a("s_waitcnt vmcnt(12)")
        flag_test(a, 208)
        a("s_cbranch_scc1 L_k3_fb")

    small_gemm(a, "s2", 2, ATP, 4096, 17, 128, pre=pre)
    for r_ in range(8):
        a(f"v_sub_f32 v{80+r_}, v{64+r_}, v{72+r_}\nv_add_f32 v{88+r_}, v{64+r_}, v{72+r_}")
    pack8(a, 16, 80)
    pack8(a, 20, 88)
    a("s_nop 0")
    for r_ in range(4):
        a(f"v_alignbit_b32 v{24+r_}, v{19-r_}, v{19-r_}, 16")
        a(f"v_alignbit_b32 v{28+r_}, v{23-r_}, v{23-r_}, 16")
    a(f"""
v_and_b32 v3, 31, v2
s_lshl_b32 s23, s26, 5
s_lshl_b32 s29, s54, 6
s_add_u32 s23, s23, s29
v_add_u32 v3, s23, v3
v_sub_u32 v4, 2048, v3
v_lshlrev_b32 v3, 12, v3
v_lshlrev_b32 v4, 12, v4
v_lshrrev_b32 v5, 5, v2
v_lshlrev_b32 v5, 4, v5
s_lshl_b32 s23, s25, 5
s_lshl_b32 s29, s55, 7
s_add_u32 s23, s23, s29
v_add_u32 v5, s23, v5
v_add_u32 v6, v3, v5
v_add_u32 v7, v4, v5
v_sub_u32 v8, 4082, v5
v_add_u32 v9, v4, v8
v_add_u32 v8, v3, v8
buffer_store_dwordx4 v[16:19], v6, s[12:15], 0 offen offset:2048
buffer_store_dwordx4 v[20:23], v7, s[12:15], 0 offen offset:2048
v_cmp_ne_u32 vcc, 0, v5
s_and_saveexec_b64 s[64:65], vcc
buffer_store_dwordx4 v[28:31], v8, s[12:15], 0 offen
buffer_store_dwordx4 v[24:27], v9, s[12:15], 0 offen
s_andn2_b64 exec, s[64:65], exec
s_cbranch_execz L_s2_e2
buffer_store_dwordx3 v[28:30], v8, s[12:15], 0 offen
buffer_store_short v31, v8, s[12:15], 0 offen offset:12
buffer_store_dwordx3 v[24:26], v9, s[12:15], 0 offen
buffer_store_short v27, v9, s[12:15], 0 offen offset:12
L_s2_e2:
s_mov_b64 exec, s[64:65]
""")


def fold(a):
    wave_setup(a)
    srd(a, 4, 40, 41, 2048 * 2048)
    srd(a, 8, 44, 45, 1024 * 2048)
    a(f"""
v_lshlrev_b32 v6, 5, v2
s_lshl_b32 s16, s31, 5
s_lshl_b32 s23, s22, 2
s_add_u32 s16, s16, s23
s_mov_b32 s17, {512*2048}
buffer_load_dwordx4 v[8:11], v6, s[8:11], s17 offen
buffer_load_dwordx4 v[12:15], v6, s[8:11], s17 offen offset:16
""")
    for i in range(4):
        b = 16 + 16 * i
        a(f"""
s_add_u32 s23, s16, {i}
s_sub_u32 s24, 2048, s23
s_lshl_b32 s23, s23, 11
s_lshl_b32 s24, s24, 11
buffer_load_dwordx4 v[{b}:{b+3}], v6, s[4:7], s23 offen
buffer_load_dwordx4 v[{b+4}:{b+7}], v6, s[4:7], s23 offen offset:16
buffer_load_dwordx4 v[{b+8}:{b+11}], v6, s[4:7], s24 offen
buffer_load_dwordx4 v[{b+12}:{b+15}], v6, s[4:7], s24 offen offset:16
""")
    for i in range(4):
        b = 16 + 16 * i
        o = 96 + 16 * i
        a(f"s_waitcnt vmcnt({(3-i)*4 + 5*i})")
        a(f"v_mov_b32 v{88+i}, 0")
        for j in range(8):
            a(f"""
v_lshlrev_b32 v80, 16, v{b+j}
v_and_b32 v81, 0xffff0000, v{b+j}
v_lshlrev_b32 v82, 16, v{b+8+j}
v_and_b32 v83, 0xffff0000, v{b+8+j}
v_add_f32 v84, v80, v82
v_add_f32 v85, v81, v83
v_sub_f32 v86, v80, v82
v_sub_f32 v87, v81, v83
v_cvt_pk_bf16_f32 v{o+j}, v84, v85
v_cvt_pk_bf16_f32 v{o+8+j}, v86, v87
v_dot2c_f32_bf16 v{88+i}, v{o+j}, v{8+j}
""")
        a(f"""
s_add_u32 s23, s16, {i}
s_lshl_b32 s24, s23, 11
s_add_u32 s25, s24, {WS_XM}
s_add_u32 s24, s24, {WS_XP}
buffer_store_dwordx4 v[{o}:{o+3}], v6, s[12:15], s24 offen
buffer_store_dwordx4 v[{o+4}:{o+7}], v6, s[12:15], s24 offen offset:16
buffer_store_dwordx4 v[{o+8}:{o+11}], v6, s[12:15], s25 offen
buffer_store_dwordx4 v[{o+12}:{o+15}], v6, s[12:15], s25 offen offset:16
""")
        wave_sum(a, 88 + i, 3)
        a(f"""
v_cvt_pk_bf16_f32 v{88+i}, v{88+i}, v{88+i}
s_lshl_b32 s23, s23, 1
s_add_u32 s23, s23, {WS_AT + 512*ATP}
v_mov_b32 v4, 0
s_mov_b64 exec, 1
buffer_store_short v{88+i}, v4, s[12:15], s23 offen
s_mov_b64 exec, -1
""")


def edge_mv(a):
    wave_setup(a)
    srd(a, 4, 40, 41, 2048 * 2048)
    srd(a, 8, 44, 45, 513 * 2048)
    a(f"""
v_lshlrev_b32 v6, 5, v2
s_lshl_b32 s16, s31, 3
s_add_u32 s16, s16, s22
s_mul_i32 s16, s16, 9
s_mov_b32 s17, {1024*2048}
buffer_load_dwordx4 v[8:11], v6, s[4:7], s17 offen
buffer_load_dwordx4 v[12:15], v6, s[4:7], s17 offen offset:16
v_lshlrev_b32 v7, 2, v2
""")
    for i in range(9):
        b = 16 + 8 * i
        a(f"""
s_add_u32 s23, s16, {i}
s_lshl_b32 s23, s23, 11
buffer_load_dwordx4 v[{b}:{b+3}], v6, s[8:11], s23 offen
buffer_load_dwordx4 v[{b+4}:{b+7}], v6, s[8:11], s23 offen offset:16
""")
    a("s_waitcnt vmcnt(0)\nv_mov_b32 v5, 0")
    for i in range(9):
        b = 16 + 8 * i
        a(f"v_mov_b32 v{96+i}, 0")
        for j in range(8):
            a(f"v_dot2c_f32_bf16 v{96+i}, v{b+j}, v{8+j}")
        a("s_nop 3")
        wave_sum(a, 96 + i, 3)
        a(f"""
v_cvt_pk_bf16_f32 v{96+i}, v{96+i}, v5
v_cmp_eq_u32 vcc, 0, v2
s_add_u32 s23, s16, {i}
s_cmp_gt_u32 s23, 512
s_cbranch_scc1 L_emv_done
v_cndmask_b32 v{96+i}, v5, v{96+i}, vcc
s_mul_i32 s23, s23, {ATP}
s_add_u32 s24, s23, {WS_BT + 2048}
s_add_u32 s23, s23, {WS_AT + 2048}
s_mov_b32 exec_hi, 0
buffer_store_dword v{96+i}, v7, s[12:15], s23 offen
buffer_store_dword v5, v7, s[12:15], s24 offen
s_mov_b64 exec, -1
""")
    a("L_emv_done:")


VTOL = 2.0 ** -8 * 1.01
VMAX = 70
VB = 152


def cmp_dw(a, x, y, neg, rev=False):
    lo_y, hi_y = (f"v_and_b32 v5, 0xffff0000, v{y}", f"v_lshlrev_b32 v6, 16, v{y}") if rev else (f"v_lshlrev_b32 v5, 16, v{y}", f"v_and_b32 v6, 0xffff0000, v{y}")
    a(f"""
v_lshlrev_b32 v3, 16, v{x}
v_and_b32 v4, 0xffff0000, v{x}
{lo_y}
{hi_y}
v_fmac_f32 v3, s60, v5
v_fmac_f32 v4, s60, v6
v_max3_f32 v{VMAX}, |v3|, |v4|, v{VMAX}
""")


def verify_c_setup(a):
    a(f"""
s_bitcmp1_b32 s58, 0
s_cselect_b32 s76, s94, s92
s_cselect_b32 s77, s95, s93
s_cselect_b32 s60, 1.0, -1.0
s_mov_b32 s78, {2048*4096}
s_mov_b32 s79, 0x00020000
s_sub_u32 s62, 2048, s61
s_and_b32 s62, s62, 2047
s_lshl_b32 s61, s61, 12
s_lshl_b32 s62, s62, 12
""")


AMN, AMR, VAD, VRV = 192, 196, 69, 71


def verify_setup(a):
    a("s_lshl_b32 s58, s2, 3\ns_add_u32 s58, s58, s22\ns_lshr_b32 s61, s58, 1")
    verify_c_setup(a)
    a(f"""
s_bitcmp1_b32 s58, 0
s_mov_b32 s59, 0xbf80
s_cselect_b32 s59, 0x3f80, s59
v_and_b32 v3, 15, v2
v_bfe_u32 v4, v2, 4, 1
v_lshlrev_b32 v4, 3, v4
v_cmp_gt_u32 vcc, 32, v2
v_mov_b32 v5, s59
v_mov_b32 v6, 0x3f80
v_sub_u32 v7, 15, v3
v_cndmask_b32 v5, v5, v6, vcc
v_cndmask_b32 v7, v7, v3, vcc
v_sub_u32 v3, v3, v4
v_sub_u32 v7, v7, v4
""")
    for base, j in ((AMN, 3), (AMR, 7)):
        a(f"""
v_and_b32 v4, 1, v{j}
v_lshlrev_b32 v4, 4, v4
v_lshlrev_b32 v4, v4, v5
v_lshrrev_b32 v6, 1, v{j}
""")
        for r_ in range(4):
            a(f"v_cmp_eq_u32 vcc, {r_}, v6\ns_nop 1\nv_cndmask_b32 v{base+r_}, 0, v4, vcc")
    a(f"""
v_and_b32 v3, 15, v2
v_lshlrev_b32 v3, 5, v3
v_bfe_u32 v4, v2, 4, 1
v_lshlrev_b32 v4, 4, v4
v_add_u32 v5, v3, v4
v_sub_u32 v6, v4, v3
v_add_u32 v6, 4064, v6
v_add_u32 v7, 2, v5
v_cmp_gt_u32 vcc, 32, v2
v_mov_b32 v3, s62
v_mov_b32 v4, s61
v_cndmask_b32 v6, v6, v7, vcc
v_cndmask_b32 v3, v3, v4, vcc
v_add_u32 v{VRV}, s61, v6
v_add_u32 v{VAD}, v3, v5
s_mov_b32 s63, 0
""")


def verify_w_switch(a):
    a(f"""
s_bitcmp1_b32 s58, 0
s_cselect_b32 s84, s52, s50
s_cselect_b32 s85, s53, s51
s_mov_b32 s86, {1024*2048}
s_lshr_b32 s59, s58, 2
s_add_u32 s59, s59, 1
s_sub_u32 s63, 1024, s59
s_lshl_b32 s59, s59, 11
s_lshl_b32 s63, s63, 11
v_mov_b32 v3, s63
v_mov_b32 v4, s59
v_cmp_gt_u32 vcc, 32, v2
v_and_b32 v5, 15, v2
v_lshlrev_b32 v5, 5, v5
v_bfe_u32 v6, v2, 4, 1
v_lshl_add_u32 v5, v6, 4, v5
v_cndmask_b32 v3, v3, v4, vcc
v_add_u32 v{VAD}, v3, v5
s_and_b32 s63, s58, 2
s_lshl_b32 s63, s63, 9
""")
    srd(a, 80, 88, 89, 1024 * 2048)
    a(f"""
v_lshl_add_u32 v3, v0, 8, s2
v_lshlrev_b32 v3, 7, v3
buffer_load_dword v{VB+24}, v3, s[80:83], 0 offen
s_mov_b32 s87, 0x00020000
s_lshr_b32 s59, s58, 1
s_and_b32 s59, s59, 7
s_lshl_b32 s59, s59, 9
s_add_u32 s59, s59, {1024*4096}
v_add_u32 v7, s59, v5
""")


def verify_r_switch(a):
    a(f"""
v_mov_b32 v3, 512
v_mov_b32 v4, -512
v_cmp_gt_u32 vcc, 32, v2
s_lshr_b32 s59, s58, 1
s_sub_u32 s63, {1024*4096}, s61
s_and_b32 s23, s58, 0xfffffff9
v_cndmask_b32 v{VAD}, v4, v3, vcc
s_cmp_eq_u32 s23, 0
s_cselect_b32 s59, s59, 0
s_cselect_b32 s63, s63, 0
v_mul_lo_u32 v7, v{VAD}, s59
v_add3_u32 v7, v7, v{VRV}, s63
""")


def touch(a):
    a("""
s_load_dwordx8 s[32:39], s[0:1], 0
s_load_dwordx4 s[40:43], s[0:1], 64
s_sub_u32 s31, s2, 56
s_lshl_b32 s23, s31, 9
v_add_u32 v3, s23, v0
v_lshlrev_b32 v4, 7, v3
s_waitcnt lgkmcnt(0)
""")
    off = 0
    for i, (lo, nb) in enumerate(((36, 65536), (38, 65536), (32, 2048 * 2048), (34, 1024 * 2048), (40, 513 * 2048), (42, 512 * 2048))):
        srd(a, 4 + 4 * i, lo, lo + 1, nb)
        a(f"v_subrev_u32 v5, {off}, v4\nbuffer_load_dword v{10+i}, v5, s[{4+4*i}:{7+4*i}], 0 offen")
        off += (nb + 127) // 128 * 128
    assert off <= 200 * 512 * 128
    a("s_waitcnt vmcnt(0)")


def flag_load(a, vd, sr, lo, hi):
    srd(a, sr, lo, hi, 8192, WS_FLAG)
    a("v_and_b32 v3, 63, v0\nv_lshlrev_b32 v3, 4, v3\nv_add_u32 v4, 4096, v3")
    for j in range(8):
        a(f"buffer_load_dwordx4 v[{vd+4*j}:{vd+4*j+3}], v{3 + j//4}, s[{sr}:{sr+3}], 0 offen offset:{(j%4)*1024}")


def flag_test(a, vd):
    for j in range(1, 31, 2):
        a(f"v_or3_b32 v{vd}, v{vd}, v{vd+j}, v{vd+j+1}")
    a(f"v_or_b32 v{vd}, v{vd}, v{vd+31}")
    a(f"v_cmp_ne_u32 vcc, 0, v{vd}\ns_nop 1\ns_cmp_lg_u64 vcc, 0")


def g3(a):
    a("""
s_and_b32 s50, s30, 3
s_lshl_b32 s50, s50, 2
s_and_b32 s51, s31, 3
s_add_u32 s50, s50, s51
s_lshr_b32 s51, s30, 2
s_lshl_b32 s51, s51, 2
s_lshr_b32 s52, s31, 2
s_add_u32 s51, s51, s52
""")
    srd(a, 4, 40, 41, 2048 * 2048)
    a(f"""
s_cmp_ge_u32 s51, 4
s_cselect_b32 s8, s46, s44
s_cselect_b32 s9, s47, s45
s_cselect_b32 s20, {f32bits(-1.0)}, 1.0
s_mov_b32 s10, {1024*2048}
s_mov_b32 s11, 0x00020000
s_lshl_b32 s16, s50, 18
s_and_b32 s17, s51, 3
s_lshl_b32 s17, s17, 19
s_lshl_b32 s21, s51, 20
s_lshl_b32 s23, s50, 8
s_add_u32 s21, s21, s23
s_add_u32 s21, s21, {WS_AB}
""")
    gemm(a, "g3", 2, 4, 1, 'T', 2048, 2048, 16, 3, 4096, scale=True)


def touch2(a):
    a("""
v_lshl_add_u32 v3, v0, 8, s2
v_lshlrev_b32 v4, 7, v3
v_lshrrev_b32 v5, 5, v3
v_and_b32 v6, 31, v3
v_lshlrev_b32 v5, 12, v5
v_lshl_add_u32 v5, v6, 7, v5
v_mov_b32 v7, 0x7ffffff0
v_cmp_gt_u32 vcc, 17, v6
""")
    srd(a, 76, 88, 89, 1024 * 2048)
    a("v_cndmask_b32 v5, v7, v5, vcc\nbuffer_load_dword v196, v4, s[76:79], 0 offen")
    srd(a, 80, 92, 93, 1025 * 4096)
    a("buffer_load_dword v197, v5, s[80:83], 0 offen")
    srd(a, 84, 94, 95, 1025 * 4096)
    a("buffer_load_dword v198, v5, s[84:87], 0 offen")


def k1(a):
    kernel_header(a, "k1_kernel")
    a("""
s_cmp_ge_u32 s2, 256
s_cbranch_scc1 L_k1_end
s_load_dwordx4 s[32:35], s[0:1], 0
s_load_dwordx2 s[50:51], s[0:1], 64
s_load_dwordx2 s[52:53], s[0:1], 72
s_load_dwordx2 s[88:89], s[0:1], 32
s_load_dwordx4 s[92:95], s[0:1], 48
s_load_dwordx2 s[48:49], s[0:1], 96
s_load_dwordx4 s[64:67], s[0:1], 16
s_load_dwordx2 s[74:75], s[0:1], 40
s_load_dwordx2 s[90:91], s[0:1], 88
""")
    wave_setup(a)
    a(f"""
v_lshrrev_b32 v3, 3, v2
v_lshl_add_u32 v3, v1, 5, v3
v_bfe_u32 v4, v3, 1, 1
v_bfe_u32 v5, v2, 2, 1
v_xor_b32 v4, v4, v5
v_and_b32 v5, 3, v2
v_lshlrev_b32 v5, 4, v5
v_lshl_add_u32 v5, v4, 6, v5
v_lshl_add_u32 v6, v3, 11, v5
v_subrev_u32 v3, 64, v3
v_bfe_u32 v4, v3, 1, 3
v_and_b32 v5, 7, v2
v_xor_b32 v4, v4, v5
v_lshlrev_b32 v4, 4, v4
v_lshl_add_u32 v7, v3, 11, v4
v_lshlrev_b32 v8, 4, v2
v_cmp_gt_u32 vcc, 2, v1
v_mov_b32 v9, 64
v_mov_b32 v10, {8*2048}
v_cndmask_b32 v152, v7, v6, vcc
v_cndmask_b32 v9, v9, 0, vcc
v_cmp_lt_u32 vcc, 5, v1
v_mov_b32 v11, 1024
s_lshl_b32 s20, s22, 12
v_cndmask_b32 v152, v152, v8, vcc
v_cndmask_b32 v9, v9, 0, vcc
v_cndmask_b32 v10, v10, v11, vcc
v_xor_b32 v153, v152, v9
v_add_u32 v153, v153, v10
v_lshl_add_u32 v154, v10, 1, v152
v_lshl_add_u32 v155, v10, 1, v153
s_waitcnt lgkmcnt(0)
s_cmp_ge_u32 s2, 128
s_cselect_b32 s96, s66, s64
s_cselect_b32 s97, s67, s65
s_mov_b32 s98, 65536
s_mov_b32 s99, 0x00020000
s_cmp_lt_u32 s22, 6
s_cselect_b32 s96, s32, s96
s_cselect_b32 s97, s33, s97
s_cselect_b32 s98, {2048*2048}, s98
s_cmp_lt_u32 s22, 2
s_cselect_b32 s96, s34, s96
s_cselect_b32 s97, s35, s97
s_cselect_b32 s98, {1024*2048}, s98
""")
    TLK[0] = 0
    srd(a, 12, 48, 49, WS_BYTES)
    srd(a, 36, 34, 35, 1024 * 2048)
    srd(a, 44, 32, 33, 2048 * 2048)
    srd(a, 80, 74, 75, 2048 * 2048)
    srd(a, 84, 50, 51, 513 * 2048)
    tl(a, 0)
    a(f"""
s_and_b32 s30, s2, 7
s_lshr_b32 s31, s2, 3
s_and_b32 s54, s30, 3
s_lshl_b32 s54, s54, 2
s_and_b32 s55, s31, 3
s_add_u32 s54, s54, s55
s_lshr_b32 s55, s30, 2
s_lshl_b32 s55, s55, 3
s_lshr_b32 s56, s31, 2
s_add_u32 s55, s55, s56
s_lshl_b32 s16, s55, 7
s_lshl_b32 s17, s54, 18
s_add_u32 s26, s17, s16
s_cmp_lt_u32 s22, 2
s_cselect_b32 s16, s16, s17
s_mov_b32 s23, 128
s_cselect_b32 s17, {64*2048}, s23
s_cmp_ge_u32 s22, 6
s_cselect_b32 s16, 0, s16
s_cselect_b32 s17, 4096, s17
s_mov_b32 s5, 0
s_and_b32 s24, s55, 3
s_lshl_b32 s23, s54, 2
s_add_u32 s24, s24, s23
s_lshl_b32 s24, s24, 12
s_add_u32 s24, s24, {WS_KF}
s_lshl_b32 s26, s2, 14
s_lshl_b32 s23, s22, 11
s_add_u32 s26, s26, s23
s_cmp_ge_u32 s2, 128
s_cselect_b32 s8, s52, s50
s_cselect_b32 s9, s53, s51
s_mov_b32 s10, {512*2048}
s_mov_b32 s11, 0x00020000
""")

    def hook(role):
        if role == 'F':
            a(f"""
v_mov_b32 v248, 0
s_lshr_b32 s23, s2, 3
s_lshl_b32 s30, s23, 15
s_and_b32 s31, s2, 3
s_lshl_b32 s31, s31, 20
s_add_u32 s30, s30, s31
s_add_u32 s30, s30, 512
v_lshlrev_b32 v251, 7, v2
v_lshrrev_b32 v4, 2, v2
v_and_b32 v5, 3, v2
v_lshlrev_b32 v5, 7, v5
v_lshl_add_u32 v252, v4, 11, v5
v_lshrrev_b32 v4, 3, v2
v_and_b32 v5, 7, v2
v_lshlrev_b32 v5, 7, v5
v_lshl_add_u32 v253, v4, 11, v5
s_lshl_b32 s31, s23, 14
s_and_b32 s23, s2, 4
s_lshl_b32 s23, s23, 8
s_add_u32 s31, s31, s23
s_add_u32 s31, s31, {256*2048}
s_mov_b32 s100, s30
s_mov_b32 s101, s31
s_cmp_lg_u32 s22, 7
s_cbranch_scc1 L_not7
s_and_b32 s54, s2, 127
s_lshl_b32 s54, s54, 13
s_lshr_b32 s23, s2, 3
s_and_b32 s23, s23, 7
s_lshl_b32 s23, s23, 13
buffer_load_dword v249, v251, s[96:99], s23 offen
""")
            for j in range(len(TS)):
                if TS[j] < 0:
                    touch_j(a, j)
            a(f"""
L_not7:
""")
        a("v_lshlrev_b32 v9, 4, v2")
    a(f"""
s_cmp_ge_u32 s55, 8
s_cselect_b32 s23, 6, 7
s_cmp_ge_u32 s22, s23
s_cbranch_scc1 L_qg_F
s_cmp_ge_u32 s55, 8
s_cbranch_scc1 L_qg_D
s_and_b32 s23, s55, 3
s_cmp_lg_u32 s22, s23
s_cbranch_scc1 L_qg_D
s_cmp_ge_u32 s55, 4
s_cbranch_scc1 L_qg_PV
""")
    for role in ('PK', 'PV', 'F', 'D'):
        a(f"L_qg_{role}:")
        q_gemm(a, hook, role)
        if role != 'D':
            a("s_branch L_qg_done")
    a("L_qg_done:")
    tl(a, 5, True)
    a("L_k1_end:\ns_endpgm")


def k2(a):
    kernel_header(a, "k2_kernel")
    a("""
s_cmp_ge_u32 s2, 256
s_cbranch_scc1 L_k2_end
s_load_dwordx4 s[32:35], s[0:1], 0
s_load_dwordx2 s[50:51], s[0:1], 64
s_load_dwordx2 s[52:53], s[0:1], 72
s_load_dwordx2 s[88:89], s[0:1], 32
s_load_dwordx4 s[92:95], s[0:1], 48
s_load_dwordx2 s[48:49], s[0:1], 96
s_waitcnt lgkmcnt(0)
""")
    TLK[0] = 1
    tl(a, 0)
    srd(a, 12, 48, 49, WS_BYTES)
    srd(a, 36, 34, 35, 1024 * 2048)
    srd(a, 44, 32, 33, 2048 * 2048)
    a("""
s_and_b32 s30, s2, 7
s_lshr_b32 s31, s2, 3
s_and_b32 s54, s30, 3
s_lshl_b32 s54, s54, 2
s_and_b32 s55, s31, 3
s_add_u32 s54, s54, s55
s_lshr_b32 s55, s30, 2
s_lshl_b32 s55, s55, 3
s_lshr_b32 s56, s31, 2
s_add_u32 s55, s55, s56
s_lshl_b32 s16, s55, 7
s_lshl_b32 s17, s54, 18
s_add_u32 s26, s17, s16
""")
    attention(a, "at", "L_k2_end")
    a("L_k2_end:\ns_endpgm")


def k3(a):
    kernel_header(a, "k3_kernel")
    a("""
s_cmp_ge_u32 s2, 256
s_cbranch_scc1 L_k3_end
s_load_dwordx2 s[32:33], s[0:1], 32
s_load_dwordx2 s[34:35], s[0:1], 80
s_load_dwordx2 s[48:49], s[0:1], 96
s_load_dwordx4 s[56:59], s[0:1], 48
s_and_b32 s30, s2, 7
s_lshr_b32 s31, s2, 3
s_waitcnt lgkmcnt(0)
""")
    TLK[0] = 2
    tl(a, 0)
    a("""
s_cmp_ge_u32 s2, 128
s_cbranch_scc1 L_k3_s2
s_and_b32 s50, s30, 1
s_lshl_b32 s50, s50, 2
s_and_b32 s51, s31, 3
s_add_u32 s50, s50, s51
s_lshr_b32 s51, s30, 1
s_lshl_b32 s51, s51, 2
s_lshr_b32 s52, s31, 2
s_add_u32 s51, s51, s52
""")
    srd(a, 4, 32, 33, 1024 * 2048)
    srd(a, 8, 48, 49, 2048 * 2048, WS_O)
    srd(a, 12, 34, 35, 2048 * 4096)
    a("""
s_lshl_b32 s16, s50, 8
s_lshl_b32 s17, s51, 18
s_lshl_b32 s21, s51, 19
s_add_u32 s21, s21, s16
""")
    gemm(a, "g5", 2, 2, 2, 'N', 2048, 2048, 16, 4, 4096, touch=(lambda: (edge_issue(a), edge_loads(a)), 20))
    edge_finish(a)
    tl(a, 5, True)
    a("""
s_endpgm
L_k3_s2:
s_sub_u32 s31, s31, 16
s_mov_b32 s50, s56
s_mov_b32 s51, s57
s_mov_b32 s52, s58
s_mov_b32 s53, s59
""")
    stage2(a)
    tl(a, 5, True)
    a("""
s_endpgm
L_k3_fb:
s_load_dwordx2 s[40:41], s[0:1], 40
s_load_dwordx4 s[44:47], s[0:1], 64
s_load_dwordx2 s[90:91], s[0:1], 88
s_mov_b32 s36, s34
s_mov_b32 s37, s35
s_mov_b32 s32, s50
s_mov_b32 s33, s51
s_mov_b32 s34, s52
s_mov_b32 s35, s53
s_waitcnt vmcnt(0) lgkmcnt(0)
s_barrier
""")
    srd(a, 12, 48, 49, WS_BYTES)
    g3(a)
    a("""
s_waitcnt vmcnt(0) lgkmcnt(0)
s_barrier
s_cmp_lg_u32 s22, 0
s_cbranch_scc1 L_k3_gb2
buffer_wbl2 sc1
s_waitcnt vmcnt(0)
v_mov_b32 v3, 0
v_mov_b32 v4, 1
s_mov_b64 exec, 1
global_atomic_add v3, v4, s[90:91] sc1
s_waitcnt vmcnt(0)
L_k3_gb1:
s_sleep 8
global_load_dword v5, v3, s[90:91] sc1
s_waitcnt vmcnt(0)
v_readfirstlane_b32 s23, v5
s_nop 3
s_cmp_lt_u32 s23, 128
s_cbranch_scc1 L_k3_gb1
s_mov_b64 exec, -1
buffer_inv sc1
s_waitcnt vmcnt(0)
L_k3_gb2:
s_barrier
""")
    g4(a)
    a("L_k3_end:\ns_endpgm")


def V(n):
    return 256 if os.environ.get('TL') else n


def main():
    a = Asm()
    hdr = open("cdna_kernels/" + KN + ".s.ref").read().split("; Override launch")[0]
    launches = """; @launch kernel=k1_kernel grid=(256,1,1) block=(512,1,1) lds=131072
; @launch kernel=k2_kernel grid=(256,1,1) block=(512,1,1) lds=163840
; @launch kernel=k3_kernel grid=(256,1,1) block=(512,1,1) lds=147456
"""
    k1(a)
    k2(a)
    k3(a)
    out = hdr + launches + '.amdgcn_target "amdgcn-amd-amdhsa--gfx950"\n.text\n' + a.text()
    out += '.section .rodata,"a"\n.p2align 6\n' + kernel_desc("k1_kernel", V(256), 102) + ".p2align 6\n" + kernel_desc("k2_kernel", V(256)) + ".p2align 6\n" + kernel_desc("k3_kernel", V(248))
    open(sys.argv[1] if len(sys.argv) > 1 else "out.s", "w").write(out)


if __name__ == "__main__":
    main()
```

```python
import sys, os
PROF = os.environ.get('PROF'); NOMFMA = os.environ.get('NOMFMA'); NODMA = os.environ.get('NODMA')

KN = "concat_heads__grouped_kv_mqa__spectral_fnet__prompt"
WS_Q = 0
WS_KF = 4 << 20
WS_VF = (4 << 20) + (128 << 10)
WS_AB = 8 << 20
WS_O = 16 << 20
WS_XP = 26 << 20
WS_XM = 29 << 20
WS_AT = 32 << 20
WS_BT = 34 << 20
WS_FLAG = 36 << 20
ATP = 2176
QSCALE = 1.4426950408889634 * 32 ** -0.5


def f32bits(x):
    import struct
    return struct.unpack("<I", struct.pack("<f", x))[0]


class Asm:
    def __init__(self):
        self.lines = []

    def __call__(self, s):
        for l in s.strip("\n").split("\n"):
            self.lines.append(l if l.endswith(":") else "    " + l.strip())

    def text(self):
        return "\n".join(self.lines) + "\n"


def srd(a, d, lo, hi, nbytes, off=0):
    if off:
        a(f"s_add_u32 s{d}, s{lo}, {off}\ns_addc_u32 s{d+1}, s{hi}, 0")
    else:
        a(f"s_mov_b32 s{d}, s{lo}\ns_mov_b32 s{d+1}, s{hi}")
    a(f"s_mov_b32 s{d+2}, {nbytes}\ns_mov_b32 s{d+3}, 0x00020000")


FR = [16, 32]
UID = [0]
PROFOFF = {'qg': 65536, 'g1': 0, 'g2': 0, 'g3': 0, 'g4': 65536, 'g5': 131072, 's1': 65536, 's2': 131072}
ACC = 64
DV = 48
RA = 128


def pipeline(a, tag, nsteps, NS, nu, dmas, reads, mfmas, nreads, kadv, switch=None, pre=None, setup=None, xtra=0, events=None, extras=None, prebar=None, novm=False, noprol=0):
    nd = len(dmas(0))

    def issue_all(stage):
        for g in dmas(stage % NS):
            for ins in g:
                a(ins)
        for ins in kadv:
            a(ins)

    for st in range(noprol, min(NS - 1, nsteps)):
        issue_all(st)
    if setup is not None:
        setup()
    if pre is not None:
        pre()
    if not novm:
        a(f"s_waitcnt vmcnt({(min(NS - 1, nsteps) - 1) * nd + xtra})")
    a("s_barrier")
    if TLK[0] != 1: stamp_begin(a, 72)
    tl(a, 6 if tag == 's1' else 1) if not (tag == 's2' and TLK[0] == 1) else None
    for ins in reads(0, 0, 0):
        a(ins)
    state = {"set": 0}

    def step(i, dyn=False):
        do_dma = (i + NS - 1) <= nsteps - 1
        groups = list(dmas((i + NS - 1) % NS)) if do_dma else []
        if do_dma and switch is not None:
            if dyn:
                a(switch[2])
            elif i + NS - 1 == switch[0]:
                a(switch[1])
        mcount = len(mfmas(0))
        half = mcount // 2
        nm = (nu - 1) * mcount + half
        slots = [[] for _ in range(nu * mcount)]
        for gi, g in enumerate(groups):
            slots[min(nm - 1, gi * nm // max(1, len(groups)))].extend(g)
        if do_dma:
            slots[nm - 1].extend(kadv)
        last_issued = min(i + NS - 1, nsteps - 1)
        mi = 0

        def emit_m(ms):
            nonlocal mi
            for m in ms:
                if not NOMFMA:
                    a(m)
                for ins in slots[mi]:
                    if NODMA and 'buffer_load' in ins:
                        continue
                    a(ins)
                mi += 1

        for ul in range(nu):
            cur = state["set"]
            nxt = 1 - cur
            ms = mfmas(cur)
            if ul + 1 < nu:
                rd = reads(i % NS, ul + 1, nxt)
                for ins in rd:
                    a(ins)
                a(f"s_waitcnt lgkmcnt({len(rd)})")
                emit_m(ms)
            else:
                a("s_waitcnt lgkmcnt(0)")
                emit_m(ms[:half])
                if i + 1 <= nsteps - 1:
                    ex = sum(n for i2, n in (extras or {}).items() if i + 2 - NS <= i2 < i)
                    if not novm: a(f"s_waitcnt vmcnt({(last_issued - (i + 1)) * nd + ex + (xtra if (i + 1 <= NS - 2 and not dyn) else 0)})")
                    if prebar and i in prebar:
                        prebar[i]()
                    a("s_barrier")
                    for ins in reads((i + 1) % NS, 0, nxt):
                        a(ins)
                emit_m(ms[half:])
                if events and i in events:
                    events[i]()
                if tag == 'qg' and i % 2 == 1 and os.environ.get('TLQ'):
                    tl(a, 8 + i // 2)
            state["set"] = nxt

    xtra_block = False
    steady_end = nsteps - NS + 1
    unroll = NS if (nu % 2 == 0 or NS % 2 == 0) else 2 * NS
    nloop = steady_end // unroll
    if nloop >= 2 and nsteps > int(os.environ.get('LOOPMIN', '16')) and not xtra_block:
        UID[0] += 1
        lab = f"L_{tag}_loop{UID[0]}"
        a(f"s_mov_b32 s19, 0")
        a(f"{lab}:")
        for i in range(unroll):
            step(i, dyn=True)
        a(f"s_add_u32 s19, s19, 1\ns_cmp_lt_u32 s19, {nloop}\ns_cbranch_scc1 {lab}")
        start = nloop * unroll
    else:
        start = 0
    for i in range(start, nsteps):
        step(i)
    if TLK[0] != 1: stamp_end(a, PROFOFF[tag], 72)
    tl(a, 7 if tag == 's1' else 2) if not (tag == 's2' and TLK[0] == 1) else None


def stamp_begin(a, base=66):
    if PROF:
        a(f"s_memtime s[{base}:{base+1}]\ns_memrealtime s[{base+4}:{base+5}]\ns_waitcnt lgkmcnt(0)")


def stamp_end(a, off, base=66):
    if PROF:
        a(f"""s_memtime s[{base+2}:{base+3}]
s_memrealtime s[{base+6}:{base+7}]
s_waitcnt lgkmcnt(0)
s_sub_u32 s{base+2}, s{base+2}, s{base}
s_sub_u32 s{base+6}, s{base+6}, s{base+4}
s_load_dwordx2 s[{base}:{base+1}], s[0:1], 96
s_waitcnt lgkmcnt(0)
s_add_u32 s{base}, s{base}, {24<<20}
s_addc_u32 s{base+1}, s{base+1}, 0
v_mov_b32 v6, s{base+2}
v_mov_b32 v7, s{base+6}
s_lshl_b32 s23, s2, 6
s_lshl_b32 s{base+2}, s22, 3
s_add_u32 s23, s23, s{base+2}
s_add_u32 s23, s23, {off}
v_mov_b32 v5, s23
global_store_dwordx2 v5, v[6:7], s[{base}:{base+1}]
""")


TLK = [0]


def tl(a, slot, drain=False):
    if not os.environ.get('TL'):
        return
    if drain:
        a("s_waitcnt vmcnt(0)")
    b = 66 if TLK[0] <= 1 else 80
    va, vb = (6, 7) if TLK[0] <= 1 else (254, 255)
    a(f"""s_memrealtime s[{b}:{b+1}]
s_load_dwordx2 s[{b+2}:{b+3}], s[0:1], 96
s_waitcnt lgkmcnt(0)
s_add_u32 s{b+2}, s{b+2}, {(24<<20) + (512<<10) + TLK[0]*65536 + slot*4}
s_addc_u32 s{b+3}, s{b+3}, 0
s_lshl_b32 s{b+4}, s2, 6
v_mov_b32 v{va}, s{b+4}
v_mov_b32 v{vb}, s{b}
v_cmp_eq_u32 vcc, 0, v0
s_and_saveexec_b64 s[{b+6}:{b+7}], vcc
global_store_dword v{va}, v{vb}, s[{b+2}:{b+3}]
s_mov_b64 exec, s[{b+6}:{b+7}]
""")


def wave_setup(a):
    a("""
v_lshrrev_b32 v1, 6, v0
s_nop 0
v_readfirstlane_b32 s22, v1
v_and_b32 v2, 63, v0
s_nop 2
s_lshl_b32 s18, s22, 10
""")


def t_dma_voff(a, vdst, n, pitch):
    a(f"""
v_lshrrev_b32 v3, 3, v2
v_lshl_add_u32 v3, v1, 3, v3
v_bfe_u32 v4, v3, 1, 3
v_and_b32 v5, 7, v2
v_xor_b32 v4, v4, v5
v_lshlrev_b32 v4, 4, v4
s_mov_b32 s23, {pitch}
v_mul_lo_u32 v3, v3, s23
v_add_u32 v{vdst}, v3, v4
""")
    for i in range(1, n):
        a(f"v_add_u32 v{vdst+i}, {i*64*pitch}, v{vdst}")


def n_dma_voff(a, vdst, n, pitch, MT):
    lpr = MT * 2 // 16
    rows = 64 // lpr
    sh = lpr.bit_length() - 1
    a(f"""
v_lshrrev_b32 v3, {sh}, v2
v_lshl_add_u32 v3, v1, {rows.bit_length()-1}, v3
v_and_b32 v5, {lpr-1}, v2
v_lshrrev_b32 v6, 2, v5
v_and_b32 v4, 3, v3
v_xor_b32 v6, v6, v4
v_and_b32 v5, 3, v5
v_lshlrev_b32 v5, 4, v5
v_lshl_add_u32 v5, v6, 6, v5
s_mov_b32 s23, {pitch}
v_mul_lo_u32 v3, v3, s23
v_add_u32 v{vdst}, v3, v5
""")
    for i in range(1, n):
        a(f"v_add_u32 v{vdst+i}, {i*8*rows*pitch}, v{vdst}")


def t_read_addr(a, vdst, nu, srow, skg2, base, NS, STAGE, stride):
    a(f"""
v_and_b32 v3, 31, v2
v_bfe_u32 v4, v3, 1, 3
v_lshrrev_b32 v5, 5, v2
v_xor_b32 v4, v4, v5
v_xor_b32 v4, s{skg2}, v4
v_add_u32 v3, s{srow}, v3
v_lshlrev_b32 v3, 7, v3
v_lshl_add_u32 v3, v4, 4, v3
""")
    for st in range(NS):
        for ul in range(nu):
            if ul == 0:
                a(f"v_add_u32 v{vdst+st*stride}, {base+st*STAGE}, v3")
            else:
                a(f"v_xor_b32 v{vdst+st*stride+ul}, {ul*32}, v{vdst+st*stride}")


def n_read_addr(a, vdst, sunit, skrow, LP, base, NS, STAGE, stride, nblk=2):
    a(f"""
v_bfe_u32 v3, v2, 2, 2
v_lshrrev_b32 v4, 5, v2
v_lshl_add_u32 v4, v4, 3, v3
s_mov_b32 s23, {LP}
v_mul_lo_u32 v4, v4, s23
v_add_u32 v4, s{skrow}, v4
v_bfe_u32 v5, v2, 4, 1
v_lshl_add_u32 v4, v5, 5, v4
v_and_b32 v5, 3, v2
v_lshl_add_u32 v4, v5, 3, v4
""")
    for b in range(nblk):
        a(f"""
s_add_u32 s23, s{sunit}, {b}
v_xor_b32 v5, s23, v3
v_lshl_add_u32 v5, v5, 6, v4
""")
        for st in range(NS):
            a(f"v_add_u32 v{vdst+st*stride+b}, {base+st*STAGE}, v5")


def gemm(a, tag, WM, WN, KS, ptype, pP, pR, nsteps, NS, opitch, scale=False, switch=None, touch=None):
    assert WM * WN * KS == 8
    MT, NT = 64 * WM, 64 * WN
    PB, RB = MT * 128, NT * 128
    STAGE = PB + RB
    nu = 4 // KS
    ncP, ncR = PB // 8192, RB // 8192
    wave_setup(a)
    lw = (WM * WN).bit_length() - 1
    lm = WM.bit_length() - 1
    a(f"""
s_lshr_b32 s24, s22, {lw}
s_and_b32 s25, s22, {WM-1}
s_lshr_b32 s26, s22, {lm}
s_and_b32 s26, s26, {WN-1}
""")
    if ptype == 'T':
        t_dma_voff(a, DV, ncP, pP)
    else:
        n_dma_voff(a, DV, ncP, pP, MT)
    t_dma_voff(a, DV + ncP, ncR, pR)
    nP = nu if ptype == 'T' else 2
    stride = nP + nu

    def setup():
        if touch:
            touch[0]() if callable(touch[0]) else a(touch[0])
        a(f"s_mul_i32 s27, s24, {nu*2}")
        if ptype == 'T':
            a(f"s_lshl_b32 s28, s25, 6")
            t_read_addr(a, RA, nu, 28, 27, 0, NS, STAGE, stride)
        else:
            a(f"s_lshl_b32 s28, s25, 1\ns_mul_i32 s29, s24, {nu*16*MT*2}")
            n_read_addr(a, RA, 28, 29, MT * 2, 0, NS, STAGE, stride)
        a(f"s_lshl_b32 s28, s26, 6")
        t_read_addr(a, RA + nP, nu, 28, 27, PB, NS, STAGE, stride)
        for i in range(64):
            a(f"v_mov_b32 v{ACC+i}, 0")

    def dmas(st):
        r = []
        for i in range(ncP):
            r.append([f"s_add_u32 m0, s18, {st*STAGE + i*8192}", "s_nop 0",
                      f"buffer_load_dwordx4 v{DV+i}, s[4:7], s16 offen lds"])
        for i in range(ncR):
            r.append([f"s_add_u32 m0, s18, {st*STAGE + PB + i*8192}", "s_nop 0",
                      f"buffer_load_dwordx4 v{DV+ncP+i}, s[8:11], s17 offen lds"])
        return r

    def reads(st, ul, fs):
        f = FR[fs]
        r = []
        if ptype == 'T':
            for b in range(2):
                r.append(f"ds_read_b128 v[{f+4*b}:{f+4*b+3}], v{RA+st*stride+ul} offset:{b*4096}")
        else:
            for b in range(2):
                for rr in range(2):
                    r.append(f"ds_read_b64_tr_b16 v[{f+4*b+2*rr}:{f+4*b+2*rr+1}], v{RA+st*stride+b} offset:{(16*ul+4*rr)*MT*2}")
        for b in range(2):
            r.append(f"ds_read_b128 v[{f+8+4*b}:{f+8+4*b+3}], v{RA+st*stride+nP+ul} offset:{b*4096}")
        return r

    def mfmas(fs):
        f = FR[fs]
        r = []
        for nb in range(2):
            for mb in range(2):
                c = ACC + 16 * (nb * 2 + mb)
                r.append(f"v_mfma_f32_32x32x16_bf16 v[{c}:{c+15}], v[{f+4*mb}:{f+4*mb+3}], v[{f+8+4*nb}:{f+8+4*nb+3}], v[{c}:{c+15}]")
        return r

    kadv = [f"s_add_u32 s16, s16, {128 if ptype == 'T' else 64*pP}", "s_add_u32 s17, s17, 128"]
    pipeline(a, tag, nsteps, NS, nu, dmas, reads, mfmas, None, kadv, switch, setup=setup, xtra=(touch[1] if touch else 0))

    a("s_nop 15\ns_nop 3")
    blocks = [(nb, mb) for nb in range(2) for mb in range(2)]
    if KS == 2:
        a("s_barrier")
        a(f"""
v_lshlrev_b32 v3, 4, v2
s_lshl_b32 s23, s22, 13
v_add_u32 v3, s23, v3
s_xor_b32 s23, s22, 4
s_lshl_b32 s23, s23, 13
v_lshlrev_b32 v4, 4, v2
v_add_u32 v4, s23, v4
s_cmp_eq_u32 s24, 0
s_cbranch_scc1 L_{tag}_x0
""")
        for j in range(8):
            a(f"ds_write_b128 v3, v[{ACC+4*j}:{ACC+4*j+3}] offset:{j*1024}")
        for j in range(32):
            a(f"v_mov_b32 v{ACC+j}, v{ACC+32+j}")
        a(f"s_branch L_{tag}_x1\nL_{tag}_x0:")
        for j in range(8):
            a(f"ds_write_b128 v3, v[{ACC+32+4*j}:{ACC+32+4*j+3}] offset:{j*1024}")
        a(f"L_{tag}_x1:\ns_waitcnt lgkmcnt(0)\ns_barrier")
        for j in range(8):
            a(f"ds_read_b128 v[{ACC+32+4*j}:{ACC+32+4*j+3}], v4 offset:{j*1024}")
        for j in range(8):
            a(f"s_waitcnt lgkmcnt({7-j})")
            for r in range(4):
                a(f"v_add_f32 v{ACC+4*j+r}, v{ACC+4*j+r}, v{ACC+32+4*j+r}")
        blocks = [(0, 0), (0, 1)]
    a(f"""
s_lshl_b32 s23, s26, 6
v_and_b32 v3, 31, v2
v_add_u32 v3, s23, v3
""")
    if KS == 2:
        a("s_lshl_b32 s23, s24, 5\nv_add_u32 v3, s23, v3")
    a(f"""
s_mov_b32 s23, {opitch}
v_mul_lo_u32 v3, v3, s23
v_lshrrev_b32 v4, 5, v2
v_lshl_add_u32 v3, v4, 4, v3
s_lshl_b32 s23, s25, 7
s_add_u32 s23, s23, s21
v_add_u32 v3, s23, v3
v_add_u32 v4, {32*opitch}, v3
""")
    for bi, (nb, mb) in enumerate(blocks):
        c = ACC + 16 * (nb * 2 + mb)
        t = 16 + 8 * (bi % 4)
        if scale:
            for r in range(16):
                a(f"v_mul_f32 v{c+r}, s20, v{c+r}")
        for r in range(8):
            a(f"v_cvt_pk_bf16_f32 v{t+r}, v{c+2*r}, v{c+2*r+1}")
        a("s_nop 1")
        for p in range(2):
            a(f"v_permlane32_swap_b32 v{t+4*p}, v{t+4*p+2}\nv_permlane32_swap_b32 v{t+4*p+1}, v{t+4*p+3}")
        for p in range(2):
            a(f"buffer_store_dwordx4 v[{t+4*p}:{t+4*p+3}], v{3+nb}, s[12:15], 0 offen offset:{mb*64+p*32}")


def gemm_kv(a, tag, NS=4):
    PB, RB = 8192, 16384
    STAGE = PB + RB
    nu = 4
    a(f"""
v_and_b32 v3, 3, v1
v_lshlrev_b32 v3, 10, v3
v_lshl_add_u32 v{DV}, v2, 4, v3
""")
    t_dma_voff(a, DV + 1, 2, 2048)
    stride = 1 + nu

    def dmas(st):
        r_ = [[f"s_add_u32 m0, s18, {st*STAGE}", "s_nop 0", f"buffer_load_dwordx4 v{DV}, s[4:7], s16 offen lds"]]
        for i in range(2):
            r_.append([f"s_add_u32 m0, s18, {st*STAGE + PB + i*8192}", "s_nop 0",
                       f"buffer_load_dwordx4 v{DV+1+i}, s[8:11], s17 offen lds"])
        return r_

    def setup():
        a(f"""
v_bfe_u32 v3, v2, 2, 2
v_lshrrev_b32 v4, 5, v2
v_lshl_add_u32 v4, v4, 3, v3
v_lshlrev_b32 v4, 6, v4
v_bfe_u32 v5, v2, 4, 1
v_lshl_add_u32 v4, v5, 5, v4
v_and_b32 v5, 3, v2
v_lshl_add_u32 v4, v5, 3, v4
v_lshrrev_b32 v5, 2, v1
v_lshl_add_u32 v4, v5, 12, v4
""")
        for st in range(NS):
            a(f"v_add_u32 v{RA+st*stride}, {st*STAGE}, v4")
        a("s_mov_b32 s27, 0\ns_and_b32 s28, s22, 3\ns_lshl_b32 s28, s28, 5")
        t_read_addr(a, RA + 1, nu, 28, 27, PB, NS, STAGE, stride)
        for i in range(16):
            a(f"v_mov_b32 v{ACC+i}, 0")

    def reads(st, ul, fs):
        f = FR[fs]
        r_ = []
        for rr in range(2):
            r_.append(f"ds_read_b64_tr_b16 v[{f+2*rr}:{f+2*rr+1}], v{RA+st*stride} offset:{(16*ul+4*rr)*64}")
        r_.append(f"ds_read_b128 v[{f+8}:{f+11}], v{RA+st*stride+1+ul}")
        return r_

    kadv = ["s_add_u32 s16, s16, 4096", "s_add_u32 s17, s17, 128"]
    a(f"s_cmp_ge_u32 s22, 4\ns_cbranch_scc1 L_{tag}_v")
    for kv in range(2):
        if kv:
            a(f"L_{tag}_v:")

        def mfmas(fs):
            f = FR[fs]
            if kv == 0:
                return ["s_nop 0", f"v_mfma_f32_32x32x16_bf16 v[{ACC}:{ACC+15}], v[{f}:{f+3}], v[{f+8}:{f+11}], v[{ACC}:{ACC+15}]"]
            return ["s_nop 0", f"v_mfma_f32_32x32x16_bf16 v[{ACC}:{ACC+15}], v[{f+8}:{f+11}], v[{f}:{f+3}], v[{ACC}:{ACC+15}]"]

        pipeline(a, tag, 16, NS, nu, dmas, reads, mfmas, None, kadv, setup=setup)
        a("s_nop 15\ns_nop 3")
        a(f"""
s_and_b32 s23, s22, 3
s_add_u32 s23, s21, s23
s_lshl_b32 s23, s23, 12
v_lshlrev_b32 v3, 4, v2
v_add_u32 v3, s23, v3
v_add_u32 v3, {WS_KF + 2048*kv}, v3
""")
        for r_ in range(8):
            a(f"v_cvt_pk_bf16_f32 v{16+r_}, v{ACC+2*r_}, v{ACC+2*r_+1}")
        for p in range(2):
            a(f"buffer_store_dwordx4 v[{16+4*p}:{16+4*p+3}], v3, s[12:15], 0 offen offset:{p*1024}")
        if kv == 0:
            tl(a, 5, True)
            a("s_endpgm")


def kernel_header(a, name):
    a.lines.append(f".globl {name}\n.p2align 8\n.type {name},@function\n{name}:")


def kernel_desc(name, vgpr, sgpr=100):
    return f""".amdhsa_kernel {name}
  .amdhsa_next_free_vgpr {vgpr}
  .amdhsa_next_free_sgpr {sgpr}
  .amdhsa_accum_offset {(vgpr+3)//4*4}
  .amdhsa_group_segment_fixed_size 0
  .amdhsa_kernarg_size 104
  .amdhsa_user_sgpr_count 2
  .amdhsa_user_sgpr_kernarg_segment_ptr 1
  .amdhsa_system_sgpr_workgroup_id_x 1
.end_amdhsa_kernel
"""


WS_BYTES = 40 << 20


def g4(a):
    a("""
s_and_b32 s50, s30, 1
s_lshl_b32 s50, s50, 2
s_and_b32 s51, s31, 3
s_add_u32 s50, s50, s51
s_lshr_b32 s51, s30, 1
s_lshl_b32 s51, s51, 2
s_lshr_b32 s52, s31, 2
s_add_u32 s51, s51, s52
""")
    if os.environ.get('SAMETILE') == '1':
        a("s_mov_b32 s50, 0\ns_mov_b32 s51, 0")
    if os.environ.get('SAMETILE') == '2':
        a("s_and_b32 s50, s30, 7\ns_mov_b32 s51, s30")
    if os.environ.get('SAMETILE') == '3':
        a("s_and_b32 s50, s2, 7\ns_lshr_b32 s51, s2, 3")
    srd(a, 4, 48, 49, 2048 * 4096, WS_AB)
    srd(a, 8, 32, 33, 2048 * 4096)
    srd(a, 12, 36, 37, 2048 * 4096)
    a("""
s_lshl_b32 s16, s50, 19
s_lshl_b32 s17, s51, 19
s_lshl_b32 s21, s50, 8
s_add_u32 s21, s21, s17
s_add_u32 s21, s21, 2048
s_add_u32 s53, s17, 4096
""")
    sw = f"""
s_mov_b32 s8, s34
s_mov_b32 s9, s35
s_sub_u32 s17, s17, 4096
s_add_u32 s16, s16, {1024*4096 - 4096}
s_mov_b32 s53, -1
"""
    uid = [0]

    class Dyn(str):
        pass
    dyn = f"""
s_cmp_eq_u32 s17, s53
s_cselect_b32 s8, s34, s8
s_cselect_b32 s9, s35, s9
s_cselect_b32 s23, 4096, 0
s_cselect_b32 s54, {1024*4096 - 4096}, 0
s_cselect_b32 s53, -1, s53
s_sub_u32 s17, s17, s23
s_add_u32 s16, s16, s54
"""
    gemm(a, "g4", 2, 2, 2, 'T', 4096, 4096, 64, 4, 4096, switch=(32, sw, dyn))


TPS = 8
ASTAGE = TPS * 4096
ANS = 3
NSTG = 64 // TPS
Q0, KF_, VF_, P_, ONES, LA, LB, NEGM, SX, SY, OA, OB = 16, 32, 40, 48, 56, 60, 64, 72, 88, 104, 120, 136
ST, KT, VT, PT = 152, 168, 176, 184
THR1 = 2.0 ** int(os.environ.get('THR1', '92'))
THR2 = 2.0 ** 120
MARGIN = int(os.environ.get('MARGIN', '100'))


def r(b, n):
    return f"v[{b}:{b+n-1}]"


def mf32(d, a_, b_, c):
    return f"v_mfma_f32_32x32x16_bf16 {r(d,16)}, {r(a_,4)}, {r(b_,4)}, {r(c,16) if isinstance(c,int) else c}"


def mf16(d, a_, b_, c):
    return f"v_mfma_f32_16x16x32_bf16 {r(d,4)}, {r(a_,4)}, {r(b_,4)}, {r(c,4)}"


def attn_dma(a, i):
    a(f"s_add_u32 m0, s17, {i*8192}\ns_nop 0\nbuffer_load_dwordx4 v{12+i}, s[12:15], s16 offen lds")


def attn_dma_adv(a):
    a(f"""
s_add_u32 s16, s16, {ASTAGE}
s_add_u32 s17, s17, {ASTAGE}
s_sub_u32 s30, s17, {ANS*ASTAGE}
s_cmp_ge_u32 s17, {ANS*ASTAGE}
s_cselect_b32 s17, s30, s17
""")


def cap(fn, *args):
    t = Asm()
    fn(t, *args)
    return [l.strip() for l in t.lines]


def attn_tile(a, g, tt, X, Y, Oc, Od, lc, ld, H, nx):
    cur, nxt = (g % ANS) * ASTAGE, ((g + 1) % ANS) * ASTAGE

    def rd(dst, t2, part):
        if g == NSTG - 1 and t2 >= TPS:
            t2 = TPS - 1
        base = cur if t2 < TPS else nxt
        off = base + (t2 % TPS) * 4096 + part * 1024
        a(f"ds_read_b128 {r(dst,4)}, v{10 + off // 65536} offset:{off % 65536}")
    last = (tt == TPS - 1)
    E = lambda i: a(f"v_exp_f32 v{X+i}, v{X+i}")
    C = lambda i: a(f"v_cvt_pk_bf16_f32 v{P_+i}, v{X+2*i}, v{X+2*i+1}")

    def hook(k):
        for ins in H.get(k, []):
            a(ins)
    hook('pre')
    a(f"s_waitcnt lgkmcnt({2 + nx})")
    a(mf32(Y, KF_, Q0, NEGM))
    for i in range(4): E(i)
    a("s_waitcnt lgkmcnt(0)")
    hook(0)
    if tt > 0:
        a(mf32(Od, VF_ + 4, P_ + 4, Od))
    if last:
        rd(VF_ + 4, tt, 3)
    for i in range(4, 6): E(i)
    hook('m0')
    for i in range(6, 8): E(i)
    hook(1)
    if tt > 0:
        a(mf16(ld, ONES, P_ + 4, ld))
    for i in range(4): C(i)
    a(mf32(Y, KF_ + 4, Q0 + 4, Y))
    hook(2)
    rd(KF_, tt + 2, 0)
    rd(KF_ + 4, tt + 2, 1)
    for i in range(8, 10): E(i)
    hook('m1')
    for i in range(10, 12): E(i)
    a(mf32(Od, VF_, P_, Oc))
    if not last:
        rd(VF_ + 4, tt, 3)
    rd(VF_, tt + 1, 2)
    for i in range(12, 14): E(i)
    hook('m2')
    for i in range(14, 16): E(i)
    hook(3)
    a(mf16(ld, ONES, P_, lc))
    hook('end')
    for i in range(4, 8): C(i)
    hook('m3')
    if last:
        assert not H.get('end')
        a("s_waitcnt lgkmcnt(3)\ns_nop 0")
        a(mf32(Od, VF_ + 4, P_ + 4, Od))
        a(mf16(ld, ONES, P_ + 4, ld))


PEND = {}


def attn_slow(a, tag, Oold, Onew, lold, lnew, Snext, sbase, pend=None):
    a(f"L_{tag}_slow:")
    a("s_nop 15")
    a(f"v_cmp_nlt_f32 vcc, v{lnew}, s29\ns_nop 4\ns_cbranch_vccnz L_{tag}_heavy")
    a(f"""
v_frexp_exp_i32_f32 v3, v{lnew}
v_add_u32 v3, {MARGIN}, v3
v_cvt_f32_i32 v4, v3
v_sub_u32 v3, 0, v3
""")
    for i in range(16): a(f"v_ldexp_f32 v{Onew+i}, v{Onew+i}, v3")
    for i in range(4): a(f"v_ldexp_f32 v{lnew+i}, v{lnew+i}, v3")
    for i in range(16): a(f"v_sub_f32 v{NEGM+i}, v{NEGM+i}, v4")
    for i in range(16): a(f"v_sub_f32 v{Snext+i}, v{Snext+i}, v4")
    a(f"s_nop 1\ns_branch L_{tag}_ret")
    a(f"L_{tag}_heavy:")
    a("s_waitcnt vmcnt(0)")
    np_, AM = pend or (0, 0)
    for i in range(np_):
        a(f"v_mfma_f32_16x16x32_bf16 {r(VB+12+4*i,4)}, {r(AM,4)}, {r(VB+4*i,4)}, 0")
    a("s_nop 15")
    for i in range(np_):
        a(f"v_max3_f32 v{VMAX}, |v{VB+12+4*i}|, |v{VB+13+4*i}|, v{VMAX}\nv_max3_f32 v{VMAX}, |v{VB+14+4*i}|, |v{VB+15+4*i}|, v{VMAX}")
    a(f"s_waitcnt lgkmcnt(0)\nv_log_f32 v5, v{lold}\nv_add_u32 v6, {sbase}, v10\ns_mov_b32 s30, 0")
    a(f"L_{tag}_h1:")
    a(f"ds_read_b128 {r(KT,4)}, v6\nds_read_b128 {r(KT+4,4)}, v6 offset:1024\ns_waitcnt lgkmcnt(0)")
    a(mf32(ST, KT, Q0, NEGM)); a(mf32(ST, KT + 4, Q0 + 4, ST))
    a("s_nop 15")
    for i in range(8): a(f"v_max3_f32 v5, v{ST+2*i}, v{ST+2*i+1}, v5")
    a(f"v_add_u32 v6, 4096, v6\ns_add_u32 s30, s30, 1\ns_cmp_lt_u32 s30, {TPS}\ns_cbranch_scc1 L_{tag}_h1")
    a(f"""
v_mov_b32 v6, v5
s_nop 1
v_permlane32_swap_b32 v5, v6
s_nop 1
v_max_f32 v5, v5, v6
v_ceil_f32 v4, v5
v_add_f32 v4, {f32bits(float(MARGIN))}, v4
v_cvt_i32_f32 v3, v4
v_sub_u32 v3, 0, v3
""")
    for i in range(16): a(f"v_ldexp_f32 v{Onew+i}, v{Oold+i}, v3")
    for i in range(4): a(f"v_ldexp_f32 v{lnew+i}, v{lold+i}, v3")
    for i in range(16): a(f"v_sub_f32 v{NEGM+i}, v{NEGM+i}, v4")
    for i in range(16): a(f"v_sub_f32 v{Snext+i}, v{Snext+i}, v4")
    a(f"v_add_u32 v6, {sbase}, v10\ns_mov_b32 s30, 0")
    a(f"L_{tag}_h2:")
    a(f"ds_read_b128 {r(KT,4)}, v6\nds_read_b128 {r(KT+4,4)}, v6 offset:1024\nds_read_b128 {r(VT,4)}, v6 offset:2048\nds_read_b128 {r(VT+4,4)}, v6 offset:3072\ns_waitcnt lgkmcnt(0)")
    a(mf32(ST, KT, Q0, NEGM)); a(mf32(ST, KT + 4, Q0 + 4, ST))
    a("s_nop 15")
    for i in range(16): a(f"v_exp_f32 v{ST+i}, v{ST+i}")
    a("s_nop 0")
    for i in range(8): a(f"v_cvt_pk_bf16_f32 v{PT+i}, v{ST+2*i}, v{ST+2*i+1}")
    a("s_nop 1")
    a(mf32(Onew, VT, PT, Onew)); a(mf32(Onew, VT + 4, PT + 4, Onew))
    a(mf16(lnew, ONES, PT, lnew)); a(mf16(lnew, ONES, PT + 4, lnew))
    a(f"v_add_u32 v6, 4096, v6\ns_add_u32 s30, s30, 1\ns_cmp_lt_u32 s30, {TPS}\ns_cbranch_scc1 L_{tag}_h2")
    a("s_nop 7")
    for i in range(4 * np_):
        a(f"v_mov_b32 v{VB+i}, 0")
    a(f"s_branch L_{tag}_ret")


N0 = int(os.environ.get('N0', '12'))
TS = eval(os.environ.get('TS', '[-1,-1,-1,-1,-1,-1, 13]'))


def touch_j(a, j):
    if j < 6:
        sr, vo, so, inc = ((44, 252, 100, 512), (36, 253, 101, 256 * 2048))[j % 2]
    else:
        sr, vo, so, inc = (8, 251, 54, 0)
    a(f"buffer_load_dword v249, v{vo}, s[{sr}:{sr+3}], s{so} offen\ns_add_u32 s{so}, s{so}, {inc}")


def q_gemm(a, setup_hook, role):
    NS = int(os.environ.get('QNS', '4'))
    STAGE = 28672
    F = [88, 104]
    F2 = [32, 40]
    D_, R_ = 152, 156
    AC, AC2 = OA, NEGM
    SV = 248
    NB = [0]
    stride = 5

    def dmas(st):
        if role == 'F':
            return []
        return [[f"s_add_u32 m0, s20, {st*STAGE + i*1024}", "s_nop 0", f"buffer_load_dwordx4 v{D_+i}, s[96:99], s16 offen lds"] for i in range(4)]

    def setup():
        setup_hook(role)
        a(f"""
v_bfe_u32 v3, v2, 2, 2
v_lshrrev_b32 v4, 5, v2
v_lshl_add_u32 v4, v4, 3, v3
v_bfe_u32 v5, v2, 4, 1
v_and_b32 v6, 3, v2
v_lshlrev_b32 v6, 3, v6
v_lshl_add_u32 v6, v5, 5, v6
v_lshl_add_u32 v7, v4, 6, v6
v_lshl_add_u32 v4, v4, 7, v6
v_lshrrev_b32 v3, 1, v3
v_lshrrev_b32 v5, 2, v1
v_xor_b32 v3, v3, v5
v_lshl_add_u32 v4, v3, 6, v4
v_add_u32 v{R_+25}, 24576, v7
v_add_u32 v{R_+26}, {24576+2*STAGE}, v7
v_add_u32 v{R_+27}, {24576+4*STAGE}, v7
""")
        for st in range(NS):
            a(f"v_add_u32 v{R_+st*stride}, {st*STAGE}, v4")
        a("s_mov_b32 s27, 0\ns_and_b32 s25, s22, 3\ns_lshl_b32 s25, s25, 5")
        t_read_addr(a, R_ + 1, 4, 25, 27, 8192, NS, STAGE, stride)
        for i in range(16):
            a(f"v_mov_b32 v{AC+i}, 0")
        if role in ('PK', 'PV'):
            for i in range(16):
                a(f"v_mov_b32 v{AC2+i}, 0")

    def reads(st, ul, fs):
        f = F[fs]
        r_ = []
        for q in range(2):
            u = 2 * ul + q
            for rr in range(2):
                r_.append(f"ds_read_b64_tr_b16 v[{f+4*q+2*rr}:{f+4*q+2*rr+1}], v{R_+st*stride} offset:{(16*u+4*rr)*128}")
            r_.append(f"ds_read_b128 v[{f+8+4*q}:{f+11+4*q}], v{R_+st*stride+1+u}")
            if role in ('PK', 'PV'):
                g = F2[fs]
                for rr in range(2):
                    r_.append(f"ds_read_b64_tr_b16 v[{g+4*q+2*rr}:{g+4*q+2*rr+1}], v{R_+25+st//2} offset:{(st%2)*STAGE+(16*u+4*rr)*64}")
        return r_

    def mfmas(fs):
        f, g = F[fs], F2[fs]
        r_ = []
        for q in range(2):
            r_.append(f"v_mfma_f32_32x32x16_bf16 v[{AC}:{AC+15}], v[{f+4*q}:{f+4*q+3}], v[{f+8+4*q}:{f+11+4*q}], v[{AC}:{AC+15}]")
            if role == 'PK':
                r_.append(f"v_mfma_f32_32x32x16_bf16 v[{AC2}:{AC2+15}], v[{g+4*q}:{g+4*q+3}], v[{f+8+4*q}:{f+11+4*q}], v[{AC2}:{AC2+15}]")
            if role == 'PV':
                r_.append(f"v_mfma_f32_32x32x16_bf16 v[{AC2}:{AC2+15}], v[{f+8+4*q}:{f+11+4*q}], v[{g+4*q}:{g+4*q+3}], v[{AC2}:{AC2+15}]")
        return r_

    kadv = ["s_add_u32 s16, s16, s17"]

    def ev_touch(js, first):
        a(f"s_cmp_lg_u32 s22, 7\ns_cbranch_scc1 L_qt{js[0]}")
        for j in js:
            touch_j(a, j)
        a(f"L_qt{js[0]}:")

    ev, ex = {}, {}
    SJ = int(os.environ.get('SJ', '12'))
    acts = {SJ: [lambda: side_jobs(a, role)]}
    ex[SJ] = 4
    if role == 'F':
        for t in sorted(set(t for t in TS if 0 <= t < 16)):
            js = [j for j in range(len(TS)) if TS[j] == t]
            acts.setdefault(t, []).append(lambda js=js: ev_touch(js, False))
    ev = {t: (lambda l=l: [f() for f in l]) for t, l in acts.items()}
    pipeline(a, "qg", 16, NS, 2, dmas, reads, mfmas, None, kadv, setup=setup, events=ev, extras=ex, novm=(role == 'F'))
    a(f"s_mov_b32 s23, {f32bits(QSCALE)}\ns_nop 11")
    if role in ('PK', 'PV'):
        for i in range(8):
            a(f"v_cvt_pk_bf16_f32 v{F[0]+i}, v{AC2+2*i}, v{AC2+2*i+1}")
        a(f"v_add_u32 v3, s24, v9")
        for p in range(2):
            a(f"buffer_store_dwordx4 v[{F[0]+4*p}:{F[0]+4*p+3}], v3, s[12:15], 0 offen offset:{p*1024 + (2048 if role == 'PV' else 0)}")
    for i in range(16):
        a(f"v_mul_f32 v{AC+i}, s23, v{AC+i}")
    for i in range(8):
        a(f"v_cvt_pk_bf16_f32 v{Q0+i}, v{AC+2*i}, v{AC+2*i+1}")
    a(f"""
buffer_store_dwordx4 v[{Q0}:{Q0+3}], v9, s[12:15], s26 offen
buffer_store_dwordx4 v[{Q0+4}:{Q0+7}], v9, s[12:15], s26 offen offset:1024
s_waitcnt vmcnt({4 if role in ('PK', 'PV') else 2})
""")
    side_jobs2(a, role)


def side_jobs(a, role):
    T = 200
    a(f"""
v_lshlrev_b32 v6, 5, v2
s_cmp_ge_u32 s22, 4
s_cbranch_scc1 L_sj_emv{role}
s_lshl_b32 s64, s2, 2
s_add_u32 s64, s64, s22
s_sub_u32 s31, 2048, s64
s_lshl_b32 s23, s64, 11
s_lshl_b32 s31, s31, 11
s_mov_b32 s19, {512*2048}
buffer_load_dwordx4 v[{T}:{T+3}], v6, s[80:83], s23 offen
buffer_load_dwordx4 v[{T+4}:{T+7}], v6, s[80:83], s23 offen offset:16
buffer_load_dwordx4 v[{T+8}:{T+11}], v6, s[80:83], s31 offen
buffer_load_dwordx4 v[{T+12}:{T+15}], v6, s[80:83], s31 offen offset:16
buffer_load_dwordx4 v[{T+16}:{T+19}], v6, s[84:87], s19 offen
buffer_load_dwordx4 v[{T+20}:{T+23}], v6, s[84:87], s19 offen offset:16
s_branch L_sj_1{role}
L_sj_emv{role}:
s_lshl_b32 s64, s2, 1
s_add_u32 s64, s64, s22
s_sub_u32 s64, s64, 4
s_cmp_ge_u32 s22, 6
s_cselect_b32 s64, 0x10000, s64
s_lshl_b32 s31, s2, 3
s_add_u32 s31, s31, s22
s_cmp_eq_u32 s31, 6
s_cselect_b32 s64, 512, s64
s_lshl_b32 s23, s64, 11
s_mov_b32 s19, {1024*2048}
buffer_load_dwordx4 v[{T}:{T+3}], v6, s[84:87], s23 offen
buffer_load_dwordx4 v[{T+4}:{T+7}], v6, s[84:87], s23 offen offset:16
buffer_load_dwordx4 v[{T+16}:{T+19}], v6, s[80:83], s19 offen
buffer_load_dwordx4 v[{T+20}:{T+23}], v6, s[80:83], s19 offen offset:16
L_sj_1{role}:
""")


def side_jobs2(a, role):
    T = 200
    o = T + 24
    a(f"""
v_lshlrev_b32 v6, 5, v2
v_mov_b32 v7, 0
s_cmp_ge_u32 s22, 4
s_cbranch_scc1 L_sj_emv2{role}
""")
    for j in range(8):
        a(f"""
v_lshlrev_b32 v{o+16}, 16, v{T+j}
v_and_b32 v{o+17}, 0xffff0000, v{T+j}
v_lshlrev_b32 v{o+18}, 16, v{T+8+j}
v_and_b32 v{o+19}, 0xffff0000, v{T+8+j}
v_add_f32 v{o+20}, v{o+16}, v{o+18}
v_add_f32 v{o+21}, v{o+17}, v{o+19}
v_sub_f32 v{o+22}, v{o+16}, v{o+18}
v_sub_f32 v{o+23}, v{o+17}, v{o+19}
v_cvt_pk_bf16_f32 v{o+j}, v{o+20}, v{o+21}
v_cvt_pk_bf16_f32 v{o+8+j}, v{o+22}, v{o+23}
v_dot2c_f32_bf16 v7, v{o+j}, v{T+16+j}
""")
    a(f"""
s_lshl_b32 s23, s64, 11
s_add_u32 s31, s23, {WS_XM}
s_add_u32 s23, s23, {WS_XP}
buffer_store_dwordx4 v[{o}:{o+3}], v6, s[12:15], s23 offen
buffer_store_dwordx4 v[{o+4}:{o+7}], v6, s[12:15], s23 offen offset:16
buffer_store_dwordx4 v[{o+8}:{o+11}], v6, s[12:15], s31 offen
buffer_store_dwordx4 v[{o+12}:{o+15}], v6, s[12:15], s31 offen offset:16
""")
    wave_sum(a, 7, 3)
    a(f"""
v_cvt_pk_bf16_f32 v7, v7, v7
s_lshl_b32 s23, s64, 1
s_add_u32 s23, s23, {WS_AT + 512*ATP}
v_mov_b32 v4, 0
s_mov_b64 exec, 1
buffer_store_short v7, v4, s[12:15], s23 offen
s_mov_b64 exec, -1
s_branch L_sj_done{role}
L_sj_emv2{role}:
s_cmp_gt_u32 s64, 512
s_cbranch_scc1 L_sj_done{role}
""")
    for j in range(8):
        a(f"v_dot2c_f32_bf16 v7, v{T+j}, v{T+16+j}")
    a("s_nop 3")
    wave_sum(a, 7, 3)
    a(f"""
v_mov_b32 v5, 0
v_cvt_pk_bf16_f32 v7, v7, v5
v_cmp_eq_u32 vcc, 0, v2
s_mul_i32 s23, s64, {ATP}
s_add_u32 s31, s23, {WS_BT + 2048}
s_add_u32 s23, s23, {WS_AT + 2048}
v_cndmask_b32 v7, v5, v7, vcc
v_lshlrev_b32 v4, 2, v2
s_mov_b32 exec_hi, 0
buffer_store_dword v7, v4, s[12:15], s23 offen
buffer_store_dword v5, v4, s[12:15], s31 offen
s_mov_b64 exec, -1
L_sj_done{role}:
""")


def kv_dma(a, g, i):
    a(f"s_add_u32 m0, s18, {(g % ANS)*ASTAGE + i*8192}\ns_mov_b32 s19, {g*ASTAGE}\nbuffer_load_dwordx4 v{12+i}, s[12:15], s19 offen lds")


def attention(a, tag, endlabel):
    wave_setup(a)
    stamp_begin(a)
    tl(a, 3)
    def hook():
        a(f"""
v_lshlrev_b32 v9, 4, v2
v_lshl_add_u32 v12, v1, 10, v9
v_add_u32 v12, {WS_KF}, v12
v_add_u32 v13, 8192, v12
v_add_u32 v14, 16384, v12
v_add_u32 v15, 24576, v12
""")
        for g in range(2):
            for i in range(4): kv_dma(a, g, i)
        a(f"""
v_and_b32 v5, 31, v2
v_and_b32 v4, 3, v1
v_lshl_add_u32 v4, v4, 5, v5
v_lshrrev_b32 v5, 5, v2
v_lshlrev_b32 v5, 4, v5
v_lshl_add_u32 v8, v4, 11, v5
v_lshrrev_b32 v5, 2, v1
v_lshl_add_u32 v8, v5, 6, v8
s_mov_b32 s28, {f32bits(THR1)}
s_mov_b32 s29, {f32bits(THR2)}
v_mov_b32 v10, v9
v_add_u32 v11, 65536, v9
""")
        stage1_setup(a)
        stage1_setup2(a)
        verify_setup(a)
        a(f"""
v_lshrrev_b32 v4, 2, v2
v_lshrrev_b32 v5, 4, v2
v_xor_b32 v4, v4, v5
v_and_b32 v4, 1, v4
v_cmp_eq_u32 vcc, 0, v4
v_mov_b32 v5, 0x3f803f80
s_nop 1
v_cndmask_b32 v{ONES}, 0, v5, vcc
v_mov_b32 v{ONES+1}, v{ONES}
v_mov_b32 v{ONES+2}, v{ONES}
v_mov_b32 v{ONES+3}, v{ONES}
""")
        for i in range(16): a(f"v_mov_b32 v{OB+i}, 0")
        for i in range(4): a(f"v_mov_b32 v{LB+i}, 0")
        a(f"v_mov_b32 v{VMAX}, 0")
    a(f"""
v_lshlrev_b32 v3, 4, v2
s_lshl_b32 s23, s2, 14
s_lshl_b32 s30, s22, 11
s_add_u32 s23, s23, s30
buffer_load_dwordx4 v[{Q0}:{Q0+3}], v3, s[12:15], s23 offen
buffer_load_dwordx4 v[{Q0+4}:{Q0+7}], v3, s[12:15], s23 offen offset:1024
""")
    hook()
    for b in range(2):
        for i in range(4): s1_dma(a, b, i)
    a("s_waitcnt vmcnt(12)\ns_barrier")
    a(f"ds_read_b128 {r(KF_,4)}, v10\nds_read_b128 {r(KF_+4,4)}, v10 offset:1024")
    a("s_waitcnt lgkmcnt(0)")
    a(mf32(SX, KF_, Q0, "0")); a(mf32(SX, KF_ + 4, Q0 + 4, SX))
    a(f"ds_read_b128 {r(KF_,4)}, v10 offset:4096\nds_read_b128 {r(KF_+4,4)}, v10 offset:{4096+1024}")
    a(f"ds_read_b128 {r(VF_+4,4)}, v10 offset:3072\nds_read_b128 {r(VF_,4)}, v10 offset:2048")
    a("s_nop 11")
    a(f"v_max3_f32 v5, v{SX}, v{SX+1}, v{SX+2}")
    for i in range(6): a(f"v_max3_f32 v5, v{SX+3+2*i}, v{SX+4+2*i}, v5")
    a(f"""
v_max_f32 v5, v{SX+15}, v5
v_mov_b32 v6, v5
s_nop 1
v_permlane32_swap_b32 v5, v6
s_nop 1
v_max_f32 v5, v5, v6
v_add_f32 v5, {f32bits(float(MARGIN))}, v5
""")
    for i in range(16): a(f"v_sub_f32 v{NEGM+i}, 0, v5")
    for i in range(16): a(f"v_sub_f32 v{SX+i}, v{SX+i}, v5")
    tl(a, 4)

    HK = {}

    def add(g, tt, slot, lines):
        HK.setdefault((g, tt), {}).setdefault(slot, []).extend(lines)
    BT_ = TPS - 2
    for g in range(NSTG):
        add(g, BT_, 'pre', ["s_waitcnt vmcnt(0)" + (" lgkmcnt(0)" if g == NSTG - 1 else ""), "s_barrier"])
        if g + 2 < NSTG:
            for i in range(4): add(g, BT_, i, cap(kv_dma, g + 2, i))
    add(0, 3, 'pre', ["s_waitcnt vmcnt(0)", "s_barrier"])

    def s1_step(g, tt, buf):
        add(g, tt, 'end', cap(s1_reads, buf))
        for i in range(4): add(g, tt + 1, f"m{i}", cap(s1_mfma, i))
    s1_step(0, 3, 0)
    for j in range(7):
        s1_step(j, BT_, (j + 1) & 1)
        if j + 2 <= 7:
            for i in range(4): add(j + 1, 0, i, cap(s1_dma, j & 1, i))
    add(7, 0, 'pre', f"""
s_and_b32 s27, s22, 1
s_lshr_b32 s25, s22, 1
s_and_b32 s23, s22, 3
s_lshl_b32 s23, s23, 13
s_cmp_ge_u32 s22, 4
s_cselect_b32 s30, 0, {S1B - (5 % ANS)*ASTAGE}
s_add_u32 s30, s30, {(5 % ANS)*ASTAGE}
s_add_u32 s23, s23, s30
v_add_u32 v{S1A}, s23, v9
s_lshl_b32 s23, s25, 11
s_lshl_b32 s30, s27, 13
s_add_u32 s23, s23, s30
v_add_u32 v{S1A+2}, s23, v9
v_add_u32 v{S1A+1}, {S1B}, v{S1A+2}
v_add_u32 v{S1A+2}, {(5 % ANS)*ASTAGE}, v{S1A+2}
""".strip().split("\n"))
    for j in range(8):
        add(7, 1 + j // 3, j % 3, [f"ds_write_b128 v{S1A}, v[{S1ACC+4*j}:{S1ACC+4*j+3}] offset:{j*1024}"])
    add(7, BT_, 'end', [f"ds_read_b128 v[{S1ACC+8*i+4*j}:{S1ACC+8*i+4*j+3}], v{S1A+1+i//2} offset:{(i%2)*16384+j*1024}" for i in range(4) for j in range(2)])
    def vchk(g, loads, AM):
        PEND[g] = (len(loads), AM)
        for i, ld_ in enumerate(loads):
            add(*((0, 4) if g == 0 else (g - 1, 7)), i, ld_)
            add(g, BT_, i, [f"v_mfma_f32_16x16x32_bf16 {r(VB+12+4*i,4)}, {r(AM,4)}, {r(VB+4*i,4)}, 0"])
            add(g, TPS - 1, i, [f"v_max3_f32 v{VMAX}, |v{VB+12+4*i}|, |v{VB+13+4*i}|, v{VMAX}", f"v_max3_f32 v{VMAX}, |v{VB+14+4*i}|, |v{VB+15+4*i}|, v{VMAX}"])
    ldn = lambda i, off: [f"buffer_load_dwordx4 v[{VB+4*i}:{VB+4*i+3}], v{VAD}, s[76:79], 0 offen offset:{off}"]
    vchk(0, [ldn(0, 0)], AMN)
    vchk(1, [ldn(0, 512), ldn(1, 1024), ldn(2, 1536)], AMN)
    vchk(2, [ldn(0, 2048), ldn(1, 2560)], AMN)
    vchk(3, [ldn(0, 3072), ldn(1, 3584)], AMN)
    add(3, 7, 'pre', cap(verify_w_switch))
    vchk(4, [[f"buffer_load_dwordx4 v[{VB+4*i}:{VB+4*i+3}], v{VAD}, s[84:87], s63 offen offset:{i*512}"] for i in range(2)]
         + [[f"buffer_load_dwordx4 v[{VB+8}:{VB+11}], v7, s[76:79], 0 offen"]], AMN)
    add(4, 7, 'pre', cap(verify_r_switch))
    ldr = lambda i: [f"buffer_load_dwordx4 v[{VB+4*i}:{VB+4*i+3}], v{VRV}, s[76:79], 0 offen", f"v_add_u32 v{VRV}, v{VRV}, v{VAD}"]
    vchk(5, [ldr(0), ldr(1), [f"buffer_load_dwordx4 v[{VB+8}:{VB+11}], v7, s[76:79], 0 offen"]], AMR)
    vchk(6, [ldr(0), ldr(1)], AMR)
    add(7, 0, 'pre', f"""
s_mov_b32 s23, {f32bits(VTOL)}
v_cmp_nle_f32 vcc, v{VMAX}, s23
s_lshl_b32 s30, s58, 2
s_add_u32 s30, s30, {WS_FLAG}
v_mov_b32 v4, 0
s_cmp_lg_u64 vcc, 0
s_cselect_b32 s23, 1, 0
v_mov_b32 v3, s23
s_mov_b64 exec, 1
buffer_store_dword v3, v4, s[12:15], s30 offen
s_mov_b64 exec, -1
""".strip().split("\n"))

    nx = 0
    for g in range(NSTG):
        Oold, Onew, lold, lnew = (OB, OA, LB, LA) if g % 2 == 0 else (OA, OB, LA, LB)
        for tt in range(TPS):
            X, Y = (SX, SY) if tt % 2 == 0 else (SY, SX)
            H = HK.get((g, tt), {})
            attn_tile(a, g, tt, X, Y, Oold if tt == 0 else Onew, Onew, lold if tt == 0 else lnew, lnew, H, nx)
            nx = sum(1 for k in ('m2', 3, 'end', 'm3') for ins in H.get(k, []) if ins.startswith("ds_"))
        a(f"""
s_nop 7
v_cmp_nlt_f32 vcc, v{lnew}, s28
s_nop 1
s_cbranch_vccnz L_{tag}{g}_slow
L_{tag}{g}_ret:
""")
    tl(a, 2)
    a(f"s_nop 3\nv_rcp_f32 v7, v{LB}\ns_add_u32 s31, s26, {WS_O}")
    for i in range(16):
        a(f"v_mul_f32 v{OB+i}, v7, v{OB+i}")
    for i in range(8): a(f"v_cvt_pk_bf16_f32 v{P_+i}, v{OB+2*i}, v{OB+2*i+1}")
    a("s_nop 1")
    for p in range(2):
        a(f"v_permlane32_swap_b32 v{P_+4*p}, v{P_+4*p+2}\nv_permlane32_swap_b32 v{P_+4*p+1}, v{P_+4*p+3}")
    for p in range(2):
        a(f"buffer_store_dwordx4 {r(P_+4*p,4)}, v8, s[12:15], s31 offen offset:{p*32}")
    for r_ in range(8):
        a(f"v_add_f32 v{S1ACC+r_}, v{S1ACC+r_}, v{S1ACC+8+r_}\nv_add_f32 v{S1ACC+16+r_}, v{S1ACC+16+r_}, v{S1ACC+24+r_}")
    for r_ in range(8):
        a(f"v_add_f32 v{S1ACC+r_}, v{S1ACC+r_}, v{S1ACC+16+r_}")
    pack8(a, 16, S1ACC)
    a(f"""
v_and_b32 v3, 31, v2
s_lshl_b32 s23, s27, 5
v_add_u32 v3, s23, v3
s_mov_b32 s23, {ATP}
v_mul_lo_u32 v3, v3, s23
v_lshrrev_b32 v4, 5, v2
v_lshl_add_u32 v3, v4, 4, v3
s_lshl_b32 s23, s25, 5
s_add_u32 s23, s23, s21
buffer_store_dwordx4 v[16:19], v3, s[12:15], s23 offen
""")
    stamp_end(a, 196608)
    tl(a, 5, True)
    a(f"s_branch {endlabel}")
    for g in range(NSTG):
        if g % 2 == 0:
            attn_slow(a, f"{tag}{g}", OB, OA, LB, LA, SX, (g % ANS) * ASTAGE, PEND.get(g + 1))
        else:
            attn_slow(a, f"{tag}{g}", OA, OB, LA, LB, SX, (g % ANS) * ASTAGE, PEND.get(g + 1))


def wave_sum(a, v, t):
    for sh in (8, 4, 2, 1):
        a(f"s_nop 1\nv_add_f32_dpp v{v}, v{v}, v{v} row_ror:{sh} row_mask:0xf bank_mask:0xf")
    a(f"""
v_mov_b32 v{t}, v{v}
s_nop 1
v_permlane16_swap_b32 v{v}, v{t}
s_nop 1
v_add_f32 v{v}, v{v}, v{t}
v_mov_b32 v{t}, v{v}
s_nop 1
v_permlane32_swap_b32 v{v}, v{t}
s_nop 1
v_add_f32 v{v}, v{v}, v{t}
""")


def small_gemm(a, tag, mode, pP, pR, nsteps, kstep, pre=None):
    NS, STAGE, nu = 4, 32768, 2
    t_dma_voff(a, DV, 1, pP)
    t_dma_voff(a, DV + 1, 1, pR)
    stride = 4

    def setup():
        a("""
s_and_b32 s26, s22, 1
s_lshr_b32 s24, s22, 2
s_and_b32 s27, s22, 2
s_lshl_b32 s27, s27, 1
s_lshl_b32 s28, s24, 7
""")
        t_read_addr(a, RA, nu, 28, 27, 0, NS, STAGE, stride)
        a("s_lshl_b32 s29, s26, 5\ns_add_u32 s28, s28, s29")
        t_read_addr(a, RA + 2, nu, 28, 27, 8192, NS, STAGE, stride)
        for i in range(32):
            a(f"v_mov_b32 v{ACC+i}, 0")

    def dmas(st):
        return [[f"s_add_u32 m0, s18, {st*STAGE}", "s_nop 0", f"buffer_load_dwordx4 v{DV}, s[4:7], s16 offen lds"],
                [f"s_add_u32 m0, s18, {st*STAGE+8192}", "s_nop 0", f"buffer_load_dwordx4 v{DV+1}, s[8:11], s17 offen lds"],
                [f"s_add_u32 m0, s18, {st*STAGE+16384}", "s_nop 0", f"buffer_load_dwordx4 v{DV}, s[36:39], s40 offen lds"],
                [f"s_add_u32 m0, s18, {st*STAGE+24576}", "s_nop 0", f"buffer_load_dwordx4 v{DV+1}, s[44:47], s41 offen lds"]]

    def reads(st, ul, fs):
        f = FR[fs]
        return [f"ds_read_b128 v[{f}:{f+3}], v{RA+st*stride+ul}",
                f"ds_read_b128 v[{f+4}:{f+7}], v{RA+st*stride+ul} offset:4096",
                f"ds_read_b128 v[{f+8}:{f+11}], v{RA+st*stride+2+ul}"]

    def mfmas(fs):
        f = FR[fs]
        return [f"v_mfma_f32_32x32x16_bf16 v[{ACC+16*mb}:{ACC+16*mb+15}], v[{f+4*mb}:{f+4*mb+3}], v[{f+8}:{f+11}], v[{ACC+16*mb}:{ACC+16*mb+15}]" for mb in range(2)]

    kadv = [f"s_add_u32 s{r_}, s{r_}, {kstep}" for r_ in (16, 17, 40, 41)]
    pipeline(a, tag, nsteps, NS, nu, dmas, reads, mfmas, None, kadv, pre=pre, setup=setup)
    small_epi(a, mode, ACC)


def small_epi(a, mode, AC):
    a("s_and_b32 s26, s22, 1")
    a("s_nop 15\ns_barrier")
    a(f"""
v_lshlrev_b32 v3, 4, v2
s_lshl_b32 s23, s22, 13
v_add_u32 v4, s23, v3
s_lshr_b32 s25, s22, 1
s_lshl_b32 s23, s25, 11
s_lshl_b32 s29, s26, 13
s_add_u32 s23, s23, s29
v_add_u32 v3, s23, v3
""")
    for j in range(8):
        a(f"ds_write_b128 v4, v[{AC+4*j}:{AC+4*j+3}] offset:{j*1024}")
    a("s_waitcnt lgkmcnt(0)\ns_barrier")
    for i in range(4):
        for j in range(2):
            a(f"ds_read_b128 v[{96+8*i+4*j}:{96+8*i+4*j+3}], v3 offset:{i*16384+j*1024}")
    a("s_waitcnt lgkmcnt(4)")
    for r_ in range(8):
        a(f"v_add_f32 v{64+r_}, v{96+r_}, v{104+r_}")
    a("s_waitcnt lgkmcnt(0)")
    for r_ in range(8):
        a(f"v_add_f32 v{72+r_}, v{112+r_}, v{120+r_}")
    if mode == 1:
        for r_ in range(8):
            a(f"v_add_f32 v{64+r_}, v{64+r_}, v{72+r_}")


def pack8(a, dst, src):
    for r_ in range(4):
        a(f"v_cvt_pk_bf16_f32 v{dst+r_}, v{src+2*r_}, v{src+2*r_+1}")
    a(f"s_nop 1\nv_permlane32_swap_b32 v{dst}, v{dst+2}\nv_permlane32_swap_b32 v{dst+1}, v{dst+3}")


S1ACC, S1F, S1A, S1D = 200, 232, 24, 68
S1B = ANS_BYTES = 98304


def stage1_setup(a):
    a(f"""
s_and_b32 s30, s2, 7
s_lshr_b32 s31, s2, 3
s_and_b32 s31, s31, 15
s_and_b32 s54, s30, 3
s_lshl_b32 s54, s54, 2
s_and_b32 s55, s31, 3
s_add_u32 s54, s54, s55
s_lshr_b32 s55, s30, 2
s_lshl_b32 s55, s55, 2
s_lshr_b32 s56, s31, 2
s_add_u32 s55, s55, s56
s_cmp_ge_u32 s2, 128
s_cselect_b32 s8, s52, s50
s_cselect_b32 s9, s53, s51
s_cselect_b32 s56, {WS_XM-WS_XP}, 0
s_cselect_b32 s57, {WS_BT-WS_AT}, 0
s_add_u32 s56, s56, {WS_XP}
s_add_u32 s57, s57, {WS_AT}
s_mov_b32 s10, {1024*2048}
s_mov_b32 s11, 0x00020000
""")
    srd(a, 4, 48, 49, WS_BYTES)
    a(f"""
s_lshl_b32 s40, s54, 17
s_add_u32 s40, s40, s56
s_add_u32 s42, s40, 128
s_lshl_b32 s41, s55, 17
s_add_u32 s43, s41, 128
s_mul_i32 s21, s55, {64*ATP}
s_add_u32 s21, s21, s57
s_lshl_b32 s23, s54, 7
s_add_u32 s21, s21, s23
""")
    t_dma_voff(a, S1D, 1, 2048)


def stage1_setup2(a):
    a("""
s_lshr_b32 s25, s22, 2
s_and_b32 s27, s22, 2
s_lshl_b32 s27, s27, 1
s_lshl_b32 s25, s25, 7
""")
    t_read_addr(a, S1A, 2, 25, 27, S1B, 2, 32768, 4)
    a("s_and_b32 s23, s22, 1\ns_lshl_b32 s23, s23, 5\ns_add_u32 s25, s25, s23")
    t_read_addr(a, S1A + 2, 2, 25, 27, S1B + 8192, 2, 32768, 4)
    for i in range(32):
        a(f"v_mov_b32 v{S1ACC+i}, 0")


def s1_dma(a, buf, i):
    if os.environ.get('NOS1'): return
    sr, so = ((4, 40), (8, 41), (4, 42), (8, 43))[i]
    a(f"s_add_u32 m0, s18, {S1B + buf*32768 + i*8192}\ns_nop 0\nbuffer_load_dwordx4 v{S1D}, s[{sr}:{sr+3}], s{so} offen lds\ns_add_u32 s{so}, s{so}, 256")


def s1_reads(a, buf):
    if os.environ.get('NOS1'): return
    for ul in range(2):
        f = S1F + 12 * ul
        a(f"""
ds_read_b128 v[{f}:{f+3}], v{S1A+buf*4+ul}
ds_read_b128 v[{f+4}:{f+7}], v{S1A+buf*4+ul} offset:4096
ds_read_b128 v[{f+8}:{f+11}], v{S1A+buf*4+2+ul}
""")


def s1_mfma(a, i):
    if os.environ.get('NOS1'): return
    ul, mb = i >> 1, i & 1
    f = S1F + 12 * ul
    c = S1ACC + 16 * mb
    a(f"v_mfma_f32_32x32x16_bf16 v[{c}:{c+15}], v[{f+4*mb}:{f+4*mb+3}], v[{f+8}:{f+11}], v[{c}:{c+15}]")


def stage1_store(a):
    a("s_waitcnt vmcnt(0) lgkmcnt(0)")
    small_epi(a, 1, S1ACC)
    pack8(a, 16, 64)
    a(f"""
v_and_b32 v3, 31, v2
s_lshl_b32 s23, s26, 5
v_add_u32 v3, s23, v3
s_mov_b32 s23, {ATP}
v_mul_lo_u32 v3, v3, s23
v_lshrrev_b32 v4, 5, v2
v_lshl_add_u32 v3, v4, 4, v3
s_lshl_b32 s23, s25, 5
s_add_u32 s23, s23, s21
buffer_store_dwordx4 v[16:19], v3, s[12:15], s23 offen
""")


def dot_loads(a, dst, srdA, soffA, srdB, soffB):
    for (d, sr, so) in ((dst, srdA, soffA), (dst + 12, srdB, soffB)):
        a(f"""
buffer_load_dwordx4 v[{d}:{d+3}], v10, s[{sr}:{sr+3}], s{so} offen
buffer_load_dwordx4 v[{d+4}:{d+7}], v10, s[{sr}:{sr+3}], s{so} offen offset:16
buffer_load_dwordx4 v[{d+8}:{d+11}], v11, s[{sr}:{sr+3}], s{so} offen
""")


def dot_compute(a, res, src, t):
    a(f"v_mov_b32 v{res}, 0")
    for i in range(12):
        a(f"v_dot2c_f32_bf16 v{res}, v{src+i}, v{src+12+i}")
    a("s_nop 3")
    wave_sum(a, res, t)


def edge_issue(a):
    srd(a, 64, 56, 57, 2048 * 4096)
    srd(a, 68, 48, 49, WS_BYTES)
    a(f"""
s_lshr_b32 s54, s2, 3
s_and_b32 s55, s2, 7
v_lshlrev_b32 v10, 5, v2
v_lshlrev_b32 v11, 4, v2
v_add_u32 v11, 2048, v11
v_mov_b32 v3, 0x7ffffff0
v_cmp_gt_u32 vcc, 8, v2
s_lshl_b32 s58, s54, 6
s_lshl_b32 s23, s55, 3
s_add_u32 s58, s58, s23
s_add_u32 s58, s58, s22
v_cndmask_b32 v11, v3, v11, vcc
s_lshl_b32 s59, s58, 12
s_mov_b32 s60, {WS_AT + 512*ATP}
s_lshl_b32 s61, s55, 6
s_lshl_b32 s23, s54, 2
s_add_u32 s61, s61, s23
s_add_u32 s61, s61, s22
s_cmp_ge_u32 s22, 4
s_cselect_b32 s61, 512, s61
s_mul_i32 s62, s61, {ATP}
s_add_u32 s62, s62, {WS_AT}
s_mov_b32 s63, {1024*4096}
""")


def edge_loads(a):
    flag_load(a, 212, 76, 48, 49)
    dot_loads(a, 164, 64, 59, 68, 60)
    dot_loads(a, 188, 64, 63, 68, 62)


def edge_finish(a):
    flag_test(a, 212)
    a("s_cbranch_scc1 L_edge_done")
    dot_compute(a, 160, 164, 3)
    dot_compute(a, 161, 188, 3)
    a(f"""
v_cvt_pk_bf16_f32 v160, v160, v161
v_lshrrev_b32 v161, 16, v160
s_mov_b64 exec, 3
s_sub_u32 s23, 2048, s58
v_mov_b32 v3, s58
v_mov_b32 v4, s23
v_cmp_eq_u32 vcc, 0, v2
s_nop 1
v_cndmask_b32 v3, v4, v3, vcc
v_lshlrev_b32 v3, 12, v3
buffer_store_short v160, v3, s[12:15], 0 offen offset:3072
s_sub_u32 s23, 1024, s61
v_mov_b32 v3, s61
v_mov_b32 v4, s23
s_nop 0
v_cndmask_b32 v3, v4, v3, vcc
v_lshlrev_b32 v3, 1, v3
v_add_u32 v3, {1024*4096 + 2048}, v3
s_cmp_eq_u32 s61, 0
s_cselect_b64 s[72:73], 1, 3
s_cmp_gt_u32 s22, 4
s_cselect_b64 s[72:73], 0, s[72:73]
s_mov_b64 exec, s[72:73]
s_cbranch_execz L_edge_done
buffer_store_short v161, v3, s[12:15], 0 offen
L_edge_done:
s_mov_b64 exec, -1
""")


def stage2(a):
    a(f"""
s_and_b32 s54, s30, 3
s_lshl_b32 s54, s54, 2
s_and_b32 s55, s31, 3
s_add_u32 s54, s54, s55
s_lshr_b32 s55, s30, 2
s_lshl_b32 s55, s55, 2
s_lshr_b32 s56, s31, 2
s_add_u32 s55, s55, s56
""")
    srd(a, 4, 48, 49, WS_BYTES)
    srd(a, 36, 48, 49, WS_BYTES)
    srd(a, 8, 50, 51, 2048 * 4096)
    srd(a, 44, 52, 53, 2048 * 4096)
    srd(a, 12, 34, 35, 2048 * 4096)
    a(f"""
s_mul_i32 s16, s55, {64*ATP}
s_add_u32 s40, s16, {WS_BT}
s_add_u32 s16, s16, {WS_AT}
s_lshl_b32 s17, s54, 18
s_mov_b32 s41, s17
""")
    wave_setup(a)
    flag_load(a, 208, 76, 48, 49)

    def pre():
        a("s_waitcnt vmcnt(12)")
        flag_test(a, 208)
        a("s_cbranch_scc1 L_k3_fb")

    small_gemm(a, "s2", 2, ATP, 4096, 17, 128, pre=pre)
    for r_ in range(8):
        a(f"v_sub_f32 v{80+r_}, v{64+r_}, v{72+r_}\nv_add_f32 v{88+r_}, v{64+r_}, v{72+r_}")
    pack8(a, 16, 80)
    pack8(a, 20, 88)
    a("s_nop 0")
    for r_ in range(4):
        a(f"v_alignbit_b32 v{24+r_}, v{19-r_}, v{19-r_}, 16")
        a(f"v_alignbit_b32 v{28+r_}, v{23-r_}, v{23-r_}, 16")
    a(f"""
v_and_b32 v3, 31, v2
s_lshl_b32 s23, s26, 5
s_lshl_b32 s29, s54, 6
s_add_u32 s23, s23, s29
v_add_u32 v3, s23, v3
v_sub_u32 v4, 2048, v3
v_lshlrev_b32 v3, 12, v3
v_lshlrev_b32 v4, 12, v4
v_lshrrev_b32 v5, 5, v2
v_lshlrev_b32 v5, 4, v5
s_lshl_b32 s23, s25, 5
s_lshl_b32 s29, s55, 7
s_add_u32 s23, s23, s29
v_add_u32 v5, s23, v5
v_add_u32 v6, v3, v5
v_add_u32 v7, v4, v5
v_sub_u32 v8, 4082, v5
v_add_u32 v9, v4, v8
v_add_u32 v8, v3, v8
buffer_store_dwordx4 v[16:19], v6, s[12:15], 0 offen offset:2048
buffer_store_dwordx4 v[20:23], v7, s[12:15], 0 offen offset:2048
v_cmp_ne_u32 vcc, 0, v5
s_and_saveexec_b64 s[64:65], vcc
buffer_store_dwordx4 v[28:31], v8, s[12:15], 0 offen
buffer_store_dwordx4 v[24:27], v9, s[12:15], 0 offen
s_andn2_b64 exec, s[64:65], exec
s_cbranch_execz L_s2_e2
buffer_store_dwordx3 v[28:30], v8, s[12:15], 0 offen
buffer_store_short v31, v8, s[12:15], 0 offen offset:12
buffer_store_dwordx3 v[24:26], v9, s[12:15], 0 offen
buffer_store_short v27, v9, s[12:15], 0 offen offset:12
L_s2_e2:
s_mov_b64 exec, s[64:65]
""")


def fold(a):
    wave_setup(a)
    srd(a, 4, 40, 41, 2048 * 2048)
    srd(a, 8, 44, 45, 1024 * 2048)
    a(f"""
v_lshlrev_b32 v6, 5, v2
s_lshl_b32 s16, s31, 5
s_lshl_b32 s23, s22, 2
s_add_u32 s16, s16, s23
s_mov_b32 s17, {512*2048}
buffer_load_dwordx4 v[8:11], v6, s[8:11], s17 offen
buffer_load_dwordx4 v[12:15], v6, s[8:11], s17 offen offset:16
""")
    for i in range(4):
        b = 16 + 16 * i
        a(f"""
s_add_u32 s23, s16, {i}
s_sub_u32 s24, 2048, s23
s_lshl_b32 s23, s23, 11
s_lshl_b32 s24, s24, 11
buffer_load_dwordx4 v[{b}:{b+3}], v6, s[4:7], s23 offen
buffer_load_dwordx4 v[{b+4}:{b+7}], v6, s[4:7], s23 offen offset:16
buffer_load_dwordx4 v[{b+8}:{b+11}], v6, s[4:7], s24 offen
buffer_load_dwordx4 v[{b+12}:{b+15}], v6, s[4:7], s24 offen offset:16
""")
    for i in range(4):
        b = 16 + 16 * i
        o = 96 + 16 * i
        a(f"s_waitcnt vmcnt({(3-i)*4 + 5*i})")
        a(f"v_mov_b32 v{88+i}, 0")
        for j in range(8):
            a(f"""
v_lshlrev_b32 v80, 16, v{b+j}
v_and_b32 v81, 0xffff0000, v{b+j}
v_lshlrev_b32 v82, 16, v{b+8+j}
v_and_b32 v83, 0xffff0000, v{b+8+j}
v_add_f32 v84, v80, v82
v_add_f32 v85, v81, v83
v_sub_f32 v86, v80, v82
v_sub_f32 v87, v81, v83
v_cvt_pk_bf16_f32 v{o+j}, v84, v85
v_cvt_pk_bf16_f32 v{o+8+j}, v86, v87
v_dot2c_f32_bf16 v{88+i}, v{o+j}, v{8+j}
""")
        a(f"""
s_add_u32 s23, s16, {i}
s_lshl_b32 s24, s23, 11
s_add_u32 s25, s24, {WS_XM}
s_add_u32 s24, s24, {WS_XP}
buffer_store_dwordx4 v[{o}:{o+3}], v6, s[12:15], s24 offen
buffer_store_dwordx4 v[{o+4}:{o+7}], v6, s[12:15], s24 offen offset:16
buffer_store_dwordx4 v[{o+8}:{o+11}], v6, s[12:15], s25 offen
buffer_store_dwordx4 v[{o+12}:{o+15}], v6, s[12:15], s25 offen offset:16
""")
        wave_sum(a, 88 + i, 3)
        a(f"""
v_cvt_pk_bf16_f32 v{88+i}, v{88+i}, v{88+i}
s_lshl_b32 s23, s23, 1
s_add_u32 s23, s23, {WS_AT + 512*ATP}
v_mov_b32 v4, 0
s_mov_b64 exec, 1
buffer_store_short v{88+i}, v4, s[12:15], s23 offen
s_mov_b64 exec, -1
""")


def edge_mv(a):
    wave_setup(a)
    srd(a, 4, 40, 41, 2048 * 2048)
    srd(a, 8, 44, 45, 513 * 2048)
    a(f"""
v_lshlrev_b32 v6, 5, v2
s_lshl_b32 s16, s31, 3
s_add_u32 s16, s16, s22
s_mul_i32 s16, s16, 9
s_mov_b32 s17, {1024*2048}
buffer_load_dwordx4 v[8:11], v6, s[4:7], s17 offen
buffer_load_dwordx4 v[12:15], v6, s[4:7], s17 offen offset:16
v_lshlrev_b32 v7, 2, v2
""")
    for i in range(9):
        b = 16 + 8 * i
        a(f"""
s_add_u32 s23, s16, {i}
s_lshl_b32 s23, s23, 11
buffer_load_dwordx4 v[{b}:{b+3}], v6, s[8:11], s23 offen
buffer_load_dwordx4 v[{b+4}:{b+7}], v6, s[8:11], s23 offen offset:16
""")
    a("s_waitcnt vmcnt(0)\nv_mov_b32 v5, 0")
    for i in range(9):
        b = 16 + 8 * i
        a(f"v_mov_b32 v{96+i}, 0")
        for j in range(8):
            a(f"v_dot2c_f32_bf16 v{96+i}, v{b+j}, v{8+j}")
        a("s_nop 3")
        wave_sum(a, 96 + i, 3)
        a(f"""
v_cvt_pk_bf16_f32 v{96+i}, v{96+i}, v5
v_cmp_eq_u32 vcc, 0, v2
s_add_u32 s23, s16, {i}
s_cmp_gt_u32 s23, 512
s_cbranch_scc1 L_emv_done
v_cndmask_b32 v{96+i}, v5, v{96+i}, vcc
s_mul_i32 s23, s23, {ATP}
s_add_u32 s24, s23, {WS_BT + 2048}
s_add_u32 s23, s23, {WS_AT + 2048}
s_mov_b32 exec_hi, 0
buffer_store_dword v{96+i}, v7, s[12:15], s23 offen
buffer_store_dword v5, v7, s[12:15], s24 offen
s_mov_b64 exec, -1
""")
    a("L_emv_done:")


VTOL = 2.0 ** -8 * 1.01
VMAX = 70
VB = 152


def cmp_dw(a, x, y, neg, rev=False):
    lo_y, hi_y = (f"v_and_b32 v5, 0xffff0000, v{y}", f"v_lshlrev_b32 v6, 16, v{y}") if rev else (f"v_lshlrev_b32 v5, 16, v{y}", f"v_and_b32 v6, 0xffff0000, v{y}")
    a(f"""
v_lshlrev_b32 v3, 16, v{x}
v_and_b32 v4, 0xffff0000, v{x}
{lo_y}
{hi_y}
v_fmac_f32 v3, s60, v5
v_fmac_f32 v4, s60, v6
v_max3_f32 v{VMAX}, |v3|, |v4|, v{VMAX}
""")


def verify_c_setup(a):
    a(f"""
s_bitcmp1_b32 s58, 0
s_cselect_b32 s76, s94, s92
s_cselect_b32 s77, s95, s93
s_cselect_b32 s60, 1.0, -1.0
s_mov_b32 s78, {2048*4096}
s_mov_b32 s79, 0x00020000
s_sub_u32 s62, 2048, s61
s_and_b32 s62, s62, 2047
s_lshl_b32 s61, s61, 12
s_lshl_b32 s62, s62, 12
""")


AMN, AMR, VAD, VRV = 192, 196, 69, 71


def verify_setup(a):
    a("s_lshl_b32 s58, s2, 3\ns_add_u32 s58, s58, s22\ns_lshr_b32 s61, s58, 1")
    verify_c_setup(a)
    a(f"""
s_bitcmp1_b32 s58, 0
s_mov_b32 s59, 0xbf80
s_cselect_b32 s59, 0x3f80, s59
v_and_b32 v3, 15, v2
v_bfe_u32 v4, v2, 4, 1
v_lshlrev_b32 v4, 3, v4
v_cmp_gt_u32 vcc, 32, v2
v_mov_b32 v5, s59
v_mov_b32 v6, 0x3f80
v_sub_u32 v7, 15, v3
v_cndmask_b32 v5, v5, v6, vcc
v_cndmask_b32 v7, v7, v3, vcc
v_sub_u32 v3, v3, v4
v_sub_u32 v7, v7, v4
""")
    for base, j in ((AMN, 3), (AMR, 7)):
        a(f"""
v_and_b32 v4, 1, v{j}
v_lshlrev_b32 v4, 4, v4
v_lshlrev_b32 v4, v4, v5
v_lshrrev_b32 v6, 1, v{j}
""")
        for r_ in range(4):
            a(f"v_cmp_eq_u32 vcc, {r_}, v6\ns_nop 1\nv_cndmask_b32 v{base+r_}, 0, v4, vcc")
    a(f"""
v_and_b32 v3, 15, v2
v_lshlrev_b32 v3, 5, v3
v_bfe_u32 v4, v2, 4, 1
v_lshlrev_b32 v4, 4, v4
v_add_u32 v5, v3, v4
v_sub_u32 v6, v4, v3
v_add_u32 v6, 4064, v6
v_add_u32 v7, 2, v5
v_cmp_gt_u32 vcc, 32, v2
v_mov_b32 v3, s62
v_mov_b32 v4, s61
v_cndmask_b32 v6, v6, v7, vcc
v_cndmask_b32 v3, v3, v4, vcc
v_add_u32 v{VRV}, s61, v6
v_add_u32 v{VAD}, v3, v5
s_mov_b32 s63, 0
""")


def verify_w_switch(a):
    a(f"""
s_bitcmp1_b32 s58, 0
s_cselect_b32 s84, s52, s50
s_cselect_b32 s85, s53, s51
s_mov_b32 s86, {1024*2048}
s_lshr_b32 s59, s58, 2
s_add_u32 s59, s59, 1
s_sub_u32 s63, 1024, s59
s_lshl_b32 s59, s59, 11
s_lshl_b32 s63, s63, 11
v_mov_b32 v3, s63
v_mov_b32 v4, s59
v_cmp_gt_u32 vcc, 32, v2
v_and_b32 v5, 15, v2
v_lshlrev_b32 v5, 5, v5
v_bfe_u32 v6, v2, 4, 1
v_lshl_add_u32 v5, v6, 4, v5
v_cndmask_b32 v3, v3, v4, vcc
v_add_u32 v{VAD}, v3, v5
s_and_b32 s63, s58, 2
s_lshl_b32 s63, s63, 9
""")
    srd(a, 80, 88, 89, 1024 * 2048)
    a(f"""
v_lshl_add_u32 v3, v0, 8, s2
v_lshlrev_b32 v3, 7, v3
buffer_load_dword v{VB+24}, v3, s[80:83], 0 offen
s_mov_b32 s87, 0x00020000
s_lshr_b32 s59, s58, 1
s_and_b32 s59, s59, 7
s_lshl_b32 s59, s59, 9
s_add_u32 s59, s59, {1024*4096}
v_add_u32 v7, s59, v5
""")


def verify_r_switch(a):
    a(f"""
v_mov_b32 v3, 512
v_mov_b32 v4, -512
v_cmp_gt_u32 vcc, 32, v2
s_lshr_b32 s59, s58, 1
s_sub_u32 s63, {1024*4096}, s61
s_and_b32 s23, s58, 0xfffffff9
v_cndmask_b32 v{VAD}, v4, v3, vcc
s_cmp_eq_u32 s23, 0
s_cselect_b32 s59, s59, 0
s_cselect_b32 s63, s63, 0
v_mul_lo_u32 v7, v{VAD}, s59
v_add3_u32 v7, v7, v{VRV}, s63
""")


def touch(a):
    a("""
s_load_dwordx8 s[32:39], s[0:1], 0
s_load_dwordx4 s[40:43], s[0:1], 64
s_sub_u32 s31, s2, 56
s_lshl_b32 s23, s31, 9
v_add_u32 v3, s23, v0
v_lshlrev_b32 v4, 7, v3
s_waitcnt lgkmcnt(0)
""")
    off = 0
    for i, (lo, nb) in enumerate(((36, 65536), (38, 65536), (32, 2048 * 2048), (34, 1024 * 2048), (40, 513 * 2048), (42, 512 * 2048))):
        srd(a, 4 + 4 * i, lo, lo + 1, nb)
        a(f"v_subrev_u32 v5, {off}, v4\nbuffer_load_dword v{10+i}, v5, s[{4+4*i}:{7+4*i}], 0 offen")
        off += (nb + 127) // 128 * 128
    assert off <= 200 * 512 * 128
    a("s_waitcnt vmcnt(0)")


def flag_load(a, vd, sr, lo, hi):
    srd(a, sr, lo, hi, 8192, WS_FLAG)
    a("v_and_b32 v3, 63, v0\nv_lshlrev_b32 v3, 4, v3\nv_add_u32 v4, 4096, v3")
    for j in range(8):
        a(f"buffer_load_dwordx4 v[{vd+4*j}:{vd+4*j+3}], v{3 + j//4}, s[{sr}:{sr+3}], 0 offen offset:{(j%4)*1024}")


def flag_test(a, vd):
    for j in range(1, 31, 2):
        a(f"v_or3_b32 v{vd}, v{vd}, v{vd+j}, v{vd+j+1}")
    a(f"v_or_b32 v{vd}, v{vd}, v{vd+31}")
    a(f"v_cmp_ne_u32 vcc, 0, v{vd}\ns_nop 1\ns_cmp_lg_u64 vcc, 0")


def g3(a):
    a("""
s_and_b32 s50, s30, 3
s_lshl_b32 s50, s50, 2
s_and_b32 s51, s31, 3
s_add_u32 s50, s50, s51
s_lshr_b32 s51, s30, 2
s_lshl_b32 s51, s51, 2
s_lshr_b32 s52, s31, 2
s_add_u32 s51, s51, s52
""")
    srd(a, 4, 40, 41, 2048 * 2048)
    a(f"""
s_cmp_ge_u32 s51, 4
s_cselect_b32 s8, s46, s44
s_cselect_b32 s9, s47, s45
s_cselect_b32 s20, {f32bits(-1.0)}, 1.0
s_mov_b32 s10, {1024*2048}
s_mov_b32 s11, 0x00020000
s_lshl_b32 s16, s50, 18
s_and_b32 s17, s51, 3
s_lshl_b32 s17, s17, 19
s_lshl_b32 s21, s51, 20
s_lshl_b32 s23, s50, 8
s_add_u32 s21, s21, s23
s_add_u32 s21, s21, {WS_AB}
""")
    gemm(a, "g3", 2, 4, 1, 'T', 2048, 2048, 16, 3, 4096, scale=True)


def touch2(a):
    a("""
v_lshl_add_u32 v3, v0, 8, s2
v_lshlrev_b32 v4, 7, v3
v_lshrrev_b32 v5, 5, v3
v_and_b32 v6, 31, v3
v_lshlrev_b32 v5, 12, v5
v_lshl_add_u32 v5, v6, 7, v5
v_mov_b32 v7, 0x7ffffff0
v_cmp_gt_u32 vcc, 17, v6
""")
    srd(a, 76, 88, 89, 1024 * 2048)
    a("v_cndmask_b32 v5, v7, v5, vcc\nbuffer_load_dword v196, v4, s[76:79], 0 offen")
    srd(a, 80, 92, 93, 1025 * 4096)
    a("buffer_load_dword v197, v5, s[80:83], 0 offen")
    srd(a, 84, 94, 95, 1025 * 4096)
    a("buffer_load_dword v198, v5, s[84:87], 0 offen")


def k1(a):
    kernel_header(a, "k1_kernel")
    a("""
s_cmp_ge_u32 s2, 256
s_cbranch_scc1 L_k1_end
s_load_dwordx4 s[32:35], s[0:1], 0
s_load_dwordx2 s[50:51], s[0:1], 64
s_load_dwordx2 s[52:53], s[0:1], 72
s_load_dwordx2 s[88:89], s[0:1], 32
s_load_dwordx4 s[92:95], s[0:1], 48
s_load_dwordx2 s[48:49], s[0:1], 96
s_load_dwordx4 s[64:67], s[0:1], 16
s_load_dwordx2 s[74:75], s[0:1], 40
s_load_dwordx2 s[90:91], s[0:1], 80
""")
    wave_setup(a)
    a(f"""
v_lshrrev_b32 v3, 3, v2
v_lshl_add_u32 v3, v1, 5, v3
v_bfe_u32 v4, v3, 1, 1
v_bfe_u32 v5, v2, 2, 1
v_xor_b32 v4, v4, v5
v_and_b32 v5, 3, v2
v_lshlrev_b32 v5, 4, v5
v_lshl_add_u32 v5, v4, 6, v5
v_lshl_add_u32 v6, v3, 11, v5
v_subrev_u32 v3, 64, v3
v_bfe_u32 v4, v3, 1, 3
v_and_b32 v5, 7, v2
v_xor_b32 v4, v4, v5
v_lshlrev_b32 v4, 4, v4
v_lshl_add_u32 v7, v3, 11, v4
v_lshlrev_b32 v8, 4, v2
v_cmp_gt_u32 vcc, 2, v1
v_mov_b32 v9, 64
v_mov_b32 v10, {8*2048}
v_cndmask_b32 v152, v7, v6, vcc
v_cndmask_b32 v9, v9, 0, vcc
v_cmp_lt_u32 vcc, 5, v1
v_mov_b32 v11, 1024
s_lshl_b32 s20, s22, 12
v_cndmask_b32 v152, v152, v8, vcc
v_cndmask_b32 v9, v9, 0, vcc
v_cndmask_b32 v10, v10, v11, vcc
v_xor_b32 v153, v152, v9
v_add_u32 v153, v153, v10
v_lshl_add_u32 v154, v10, 1, v152
v_lshl_add_u32 v155, v10, 1, v153
s_waitcnt lgkmcnt(0)
s_cmp_ge_u32 s2, 128
s_cselect_b32 s96, s66, s64
s_cselect_b32 s97, s67, s65
s_mov_b32 s98, 65536
s_mov_b32 s99, 0x00020000
s_cmp_lt_u32 s22, 6
s_cselect_b32 s96, s32, s96
s_cselect_b32 s97, s33, s97
s_cselect_b32 s98, {2048*2048}, s98
s_cmp_lt_u32 s22, 2
s_cselect_b32 s96, s34, s96
s_cselect_b32 s97, s35, s97
s_cselect_b32 s98, {1024*2048}, s98
""")
    TLK[0] = 0
    srd(a, 12, 48, 49, WS_BYTES)
    srd(a, 36, 34, 35, 1024 * 2048)
    srd(a, 44, 32, 33, 2048 * 2048)
    srd(a, 80, 74, 75, 2048 * 2048)
    srd(a, 84, 50, 51, 513 * 2048)
    tl(a, 0)
    a(f"""
s_and_b32 s30, s2, 7
s_lshr_b32 s31, s2, 3
s_and_b32 s54, s30, 3
s_lshl_b32 s54, s54, 2
s_and_b32 s55, s31, 3
s_add_u32 s54, s54, s55
s_lshr_b32 s55, s30, 2
s_lshl_b32 s55, s55, 3
s_lshr_b32 s56, s31, 2
s_add_u32 s55, s55, s56
s_lshl_b32 s16, s55, 7
s_lshl_b32 s17, s54, 18
s_add_u32 s26, s17, s16
s_cmp_lt_u32 s22, 2
s_cselect_b32 s16, s16, s17
s_mov_b32 s23, 128
s_cselect_b32 s17, {64*2048}, s23
s_cmp_ge_u32 s22, 6
s_cselect_b32 s16, 0, s16
s_cselect_b32 s17, 4096, s17
s_mov_b32 s5, 0
s_and_b32 s24, s55, 3
s_lshl_b32 s23, s54, 2
s_add_u32 s24, s24, s23
s_lshl_b32 s24, s24, 12
s_add_u32 s24, s24, {WS_KF}
s_lshl_b32 s26, s2, 14
s_lshl_b32 s23, s22, 11
s_add_u32 s26, s26, s23
s_cmp_ge_u32 s2, 128
s_cselect_b32 s8, s52, s50
s_cselect_b32 s9, s53, s51
s_mov_b32 s10, {512*2048}
s_mov_b32 s11, 0x00020000
""")

    def hook(role):
        if role == 'F':
            a(f"""
v_mov_b32 v248, 0
s_lshr_b32 s23, s2, 3
s_lshl_b32 s30, s23, 15
s_and_b32 s31, s2, 3
s_lshl_b32 s31, s31, 20
s_add_u32 s30, s30, s31
s_add_u32 s30, s30, 512
v_lshlrev_b32 v251, 7, v2
v_lshrrev_b32 v4, 2, v2
v_and_b32 v5, 3, v2
v_lshlrev_b32 v5, 7, v5
v_lshl_add_u32 v252, v4, 11, v5
v_lshrrev_b32 v4, 3, v2
v_and_b32 v5, 7, v2
v_lshlrev_b32 v5, 7, v5
v_lshl_add_u32 v253, v4, 11, v5
s_lshl_b32 s31, s23, 14
s_and_b32 s23, s2, 4
s_lshl_b32 s23, s23, 8
s_add_u32 s31, s31, s23
s_add_u32 s31, s31, {256*2048}
s_mov_b32 s100, s30
s_mov_b32 s101, s31
s_cmp_lg_u32 s22, 7
s_cbranch_scc1 L_not7
s_and_b32 s54, s2, 127
s_lshl_b32 s54, s54, 13
s_lshr_b32 s23, s2, 3
s_and_b32 s23, s23, 7
s_lshl_b32 s23, s23, 13
buffer_load_dword v249, v251, s[96:99], s23 offen
""")
            for j in range(len(TS)):
                if TS[j] < 0:
                    touch_j(a, j)
            PG = int(os.environ.get('PG', '19'))
            a(f"v_lshlrev_b32 v250, {PG}, v2")
            for lo, nb in ((74, 4 << 20), (50, 2 << 20), (52, 2 << 20), (88, 2 << 20), (92, 8 << 20), (94, 8 << 20), (90, 8 << 20)):
                srd(a, 4, lo, lo + 1, nb)
                for c in range((nb + (64 << PG) - 1) // (64 << PG)):
                    a(f"s_mov_b32 s23, {c * (64 << PG)}\nbuffer_load_dword v249, v250, s[4:7], s23 offen")
            for c in range((WS_BYTES + (64 << PG) - 1) // (64 << PG)):
                a(f"s_mov_b32 s23, {c * (64 << PG)}\nbuffer_load_dword v249, v250, s[12:15], s23 offen")
            a(f"""
L_not7:
""")
        a("v_lshlrev_b32 v9, 4, v2")
    a(f"""
s_cmp_ge_u32 s55, 8
s_cselect_b32 s23, 6, 7
s_cmp_ge_u32 s22, s23
s_cbranch_scc1 L_qg_F
s_cmp_ge_u32 s55, 8
s_cbranch_scc1 L_qg_D
s_and_b32 s23, s55, 3
s_cmp_lg_u32 s22, s23
s_cbranch_scc1 L_qg_D
s_cmp_ge_u32 s55, 4
s_cbranch_scc1 L_qg_PV
""")
    for role in ('PK', 'PV', 'F', 'D'):
        a(f"L_qg_{role}:")
        q_gemm(a, hook, role)
        if role != 'D':
            a("s_branch L_qg_done")
    a("L_qg_done:")
    tl(a, 5, True)
    a("L_k1_end:\ns_endpgm")


def k2(a):
    kernel_header(a, "k2_kernel")
    a("""
s_cmp_ge_u32 s2, 256
s_cbranch_scc1 L_k2_end
s_load_dwordx4 s[32:35], s[0:1], 0
s_load_dwordx2 s[50:51], s[0:1], 64
s_load_dwordx2 s[52:53], s[0:1], 72
s_load_dwordx2 s[88:89], s[0:1], 32
s_load_dwordx4 s[92:95], s[0:1], 48
s_load_dwordx2 s[48:49], s[0:1], 96
s_waitcnt lgkmcnt(0)
""")
    TLK[0] = 1
    tl(a, 0)
    srd(a, 12, 48, 49, WS_BYTES)
    srd(a, 36, 34, 35, 1024 * 2048)
    srd(a, 44, 32, 33, 2048 * 2048)
    a("""
s_and_b32 s30, s2, 7
s_lshr_b32 s31, s2, 3
s_and_b32 s54, s30, 3
s_lshl_b32 s54, s54, 2
s_and_b32 s55, s31, 3
s_add_u32 s54, s54, s55
s_lshr_b32 s55, s30, 2
s_lshl_b32 s55, s55, 3
s_lshr_b32 s56, s31, 2
s_add_u32 s55, s55, s56
s_lshl_b32 s16, s55, 7
s_lshl_b32 s17, s54, 18
s_add_u32 s26, s17, s16
""")
    attention(a, "at", "L_k2_end")
    a("L_k2_end:\ns_endpgm")


def k3(a):
    kernel_header(a, "k3_kernel")
    a("""
s_cmp_ge_u32 s2, 256
s_cbranch_scc1 L_k3_end
s_load_dwordx2 s[32:33], s[0:1], 32
s_load_dwordx2 s[34:35], s[0:1], 80
s_load_dwordx2 s[48:49], s[0:1], 96
s_load_dwordx4 s[56:59], s[0:1], 48
s_and_b32 s30, s2, 7
s_lshr_b32 s31, s2, 3
s_waitcnt lgkmcnt(0)
""")
    TLK[0] = 2
    tl(a, 0)
    a("""
s_cmp_ge_u32 s2, 128
s_cbranch_scc1 L_k3_s2
s_and_b32 s50, s30, 1
s_lshl_b32 s50, s50, 2
s_and_b32 s51, s31, 3
s_add_u32 s50, s50, s51
s_lshr_b32 s51, s30, 1
s_lshl_b32 s51, s51, 2
s_lshr_b32 s52, s31, 2
s_add_u32 s51, s51, s52
""")
    srd(a, 4, 32, 33, 1024 * 2048)
    srd(a, 8, 48, 49, 2048 * 2048, WS_O)
    srd(a, 12, 34, 35, 2048 * 4096)
    a("""
s_lshl_b32 s16, s50, 8
s_lshl_b32 s17, s51, 18
s_lshl_b32 s21, s51, 19
s_add_u32 s21, s21, s16
""")
    gemm(a, "g5", 2, 2, 2, 'N', 2048, 2048, 16, 4, 4096, touch=(lambda: (edge_issue(a), edge_loads(a)), 20))
    edge_finish(a)
    tl(a, 5, True)
    a("""
s_endpgm
L_k3_s2:
s_sub_u32 s31, s31, 16
s_mov_b32 s50, s56
s_mov_b32 s51, s57
s_mov_b32 s52, s58
s_mov_b32 s53, s59
""")
    stage2(a)
    tl(a, 5, True)
    a("""
s_endpgm
L_k3_fb:
s_load_dwordx2 s[40:41], s[0:1], 40
s_load_dwordx4 s[44:47], s[0:1], 64
s_load_dwordx2 s[90:91], s[0:1], 88
s_mov_b32 s36, s34
s_mov_b32 s37, s35
s_mov_b32 s32, s50
s_mov_b32 s33, s51
s_mov_b32 s34, s52
s_mov_b32 s35, s53
s_waitcnt vmcnt(0) lgkmcnt(0)
s_barrier
""")
    srd(a, 12, 48, 49, WS_BYTES)
    g3(a)
    a("""
s_waitcnt vmcnt(0) lgkmcnt(0)
s_barrier
s_cmp_lg_u32 s22, 0
s_cbranch_scc1 L_k3_gb2
buffer_wbl2 sc1
s_waitcnt vmcnt(0)
v_mov_b32 v3, 0
v_mov_b32 v4, 1
s_mov_b64 exec, 1
global_atomic_add v3, v4, s[90:91] sc1
s_waitcnt vmcnt(0)
L_k3_gb1:
s_sleep 8
global_load_dword v5, v3, s[90:91] sc1
s_waitcnt vmcnt(0)
v_readfirstlane_b32 s23, v5
s_nop 3
s_cmp_lt_u32 s23, 128
s_cbranch_scc1 L_k3_gb1
s_mov_b64 exec, -1
buffer_inv sc1
s_waitcnt vmcnt(0)
L_k3_gb2:
s_barrier
""")
    g4(a)
    a("L_k3_end:\ns_endpgm")


def V(n):
    return 256 if os.environ.get('TL') else n


def main():
    a = Asm()
    hdr = open("cdna_kernels/" + KN + ".s.ref").read().split("; Override launch")[0]
    launches = """; @launch kernel=k1_kernel grid=(256,1,1) block=(512,1,1) lds=131072
; @launch kernel=k2_kernel grid=(256,1,1) block=(512,1,1) lds=163840
; @launch kernel=k3_kernel grid=(256,1,1) block=(512,1,1) lds=147456
"""
    k1(a)
    k2(a)
    k3(a)
    out = hdr + launches + '.amdgcn_target "amdgcn-amd-amdhsa--gfx950"\n.text\n' + a.text()
    out += '.section .rodata,"a"\n.p2align 6\n' + kernel_desc("k1_kernel", V(256), 102) + ".p2align 6\n" + kernel_desc("k2_kernel", V(256)) + ".p2align 6\n" + kernel_desc("k3_kernel", V(248))
    open(sys.argv[1] if len(sys.argv) > 1 else "out.s", "w").write(out)


if __name__ == "__main__":
    main()
```

```python
import sys, os
PROF = os.environ.get('PROF'); NOMFMA = os.environ.get('NOMFMA'); NODMA = os.environ.get('NODMA')

KN = "concat_heads__grouped_kv_mqa__spectral_fnet__prompt"
WS_Q = 0
WS_KF = 4 << 20
WS_VF = (4 << 20) + (128 << 10)
WS_AB = 8 << 20
WS_O = 16 << 20
WS_XP = 26 << 20
WS_XM = 29 << 20
WS_AT = 32 << 20
WS_BT = 34 << 20
WS_FLAG = 36 << 20
ATP = 2176
QSCALE = 1.4426950408889634 * 32 ** -0.5


def f32bits(x):
    import struct
    return struct.unpack("<I", struct.pack("<f", x))[0]


class Asm:
    def __init__(self):
        self.lines = []

    def __call__(self, s):
        for l in s.strip("\n").split("\n"):
            self.lines.append(l if l.endswith(":") else "    " + l.strip())

    def text(self):
        return "\n".join(self.lines) + "\n"


def srd(a, d, lo, hi, nbytes, off=0):
    if off:
        a(f"s_add_u32 s{d}, s{lo}, {off}\ns_addc_u32 s{d+1}, s{hi}, 0")
    else:
        a(f"s_mov_b32 s{d}, s{lo}\ns_mov_b32 s{d+1}, s{hi}")
    a(f"s_mov_b32 s{d+2}, {nbytes}\ns_mov_b32 s{d+3}, 0x00020000")


FR = [16, 32]
UID = [0]
PROFOFF = {'qg': 65536, 'g1': 0, 'g2': 0, 'g3': 0, 'g4': 65536, 'g5': 131072, 's1': 65536, 's2': 131072}
ACC = 64
DV = 48
RA = 128


def pipeline(a, tag, nsteps, NS, nu, dmas, reads, mfmas, nreads, kadv, switch=None, pre=None, setup=None, xtra=0, events=None, extras=None, prebar=None, novm=False, noprol=0):
    nd = len(dmas(0))

    def issue_all(stage):
        for g in dmas(stage % NS):
            for ins in g:
                a(ins)
        for ins in kadv:
            a(ins)

    for st in range(noprol, min(NS - 1, nsteps)):
        issue_all(st)
    if setup is not None:
        setup()
    if pre is not None:
        pre()
    if not novm:
        a(f"s_waitcnt vmcnt({(min(NS - 1, nsteps) - 1) * nd + xtra})")
    a("s_barrier")
    if TLK[0] != 1: stamp_begin(a, 72)
    tl(a, 6 if tag == 's1' else 1) if not (tag == 's2' and TLK[0] == 1) else None
    for ins in reads(0, 0, 0):
        a(ins)
    state = {"set": 0}

    def step(i, dyn=False):
        do_dma = (i + NS - 1) <= nsteps - 1
        groups = list(dmas((i + NS - 1) % NS)) if do_dma else []
        if do_dma and switch is not None:
            if dyn:
                a(switch[2])
            elif i + NS - 1 == switch[0]:
                a(switch[1])
        mcount = len(mfmas(0))
        half = mcount // 2
        nm = (nu - 1) * mcount + half
        slots = [[] for _ in range(nu * mcount)]
        for gi, g in enumerate(groups):
            slots[min(nm - 1, gi * nm // max(1, len(groups)))].extend(g)
        if do_dma:
            slots[nm - 1].extend(kadv)
        last_issued = min(i + NS - 1, nsteps - 1)
        mi = 0

        def emit_m(ms):
            nonlocal mi
            for m in ms:
                if not NOMFMA:
                    a(m)
                for ins in slots[mi]:
                    if NODMA and 'buffer_load' in ins:
                        continue
                    a(ins)
                mi += 1

        for ul in range(nu):
            cur = state["set"]
            nxt = 1 - cur
            ms = mfmas(cur)
            if ul + 1 < nu:
                rd = reads(i % NS, ul + 1, nxt)
                for ins in rd:
                    a(ins)
                a(f"s_waitcnt lgkmcnt({len(rd)})")
                emit_m(ms)
            else:
                a("s_waitcnt lgkmcnt(0)")
                emit_m(ms[:half])
                if i + 1 <= nsteps - 1:
                    ex = sum(n for i2, n in (extras or {}).items() if i + 2 - NS <= i2 < i)
                    if not novm: a(f"s_waitcnt vmcnt({(last_issued - (i + 1)) * nd + ex + (xtra if (i + 1 <= NS - 2 and not dyn) else 0)})")
                    if prebar and i in prebar:
                        prebar[i]()
                    a("s_barrier")
                    for ins in reads((i + 1) % NS, 0, nxt):
                        a(ins)
                emit_m(ms[half:])
                if events and i in events:
                    events[i]()
                if tag == 'qg' and i % 2 == 1 and os.environ.get('TLQ'):
                    tl(a, 8 + i // 2)
            state["set"] = nxt

    xtra_block = False
    steady_end = nsteps - NS + 1
    unroll = NS if (nu % 2 == 0 or NS % 2 == 0) else 2 * NS
    nloop = steady_end // unroll
    if nloop >= 2 and nsteps > int(os.environ.get('LOOPMIN', '16')) and not xtra_block:
        UID[0] += 1
        lab = f"L_{tag}_loop{UID[0]}"
        a(f"s_mov_b32 s19, 0")
        a(f"{lab}:")
        for i in range(unroll):
            step(i, dyn=True)
        a(f"s_add_u32 s19, s19, 1\ns_cmp_lt_u32 s19, {nloop}\ns_cbranch_scc1 {lab}")
        start = nloop * unroll
    else:
        start = 0
    for i in range(start, nsteps):
        step(i)
    if TLK[0] != 1: stamp_end(a, PROFOFF[tag], 72)
    tl(a, 7 if tag == 's1' else 2) if not (tag == 's2' and TLK[0] == 1) else None


def stamp_begin(a, base=66):
    if PROF:
        a(f"s_memtime s[{base}:{base+1}]\ns_memrealtime s[{base+4}:{base+5}]\ns_waitcnt lgkmcnt(0)")


def stamp_end(a, off, base=66):
    if PROF:
        a(f"""s_memtime s[{base+2}:{base+3}]
s_memrealtime s[{base+6}:{base+7}]
s_waitcnt lgkmcnt(0)
s_sub_u32 s{base+2}, s{base+2}, s{base}
s_sub_u32 s{base+6}, s{base+6}, s{base+4}
s_load_dwordx2 s[{base}:{base+1}], s[0:1], 96
s_waitcnt lgkmcnt(0)
s_add_u32 s{base}, s{base}, {24<<20}
s_addc_u32 s{base+1}, s{base+1}, 0
v_mov_b32 v6, s{base+2}
v_mov_b32 v7, s{base+6}
s_lshl_b32 s23, s2, 6
s_lshl_b32 s{base+2}, s22, 3
s_add_u32 s23, s23, s{base+2}
s_add_u32 s23, s23, {off}
v_mov_b32 v5, s23
global_store_dwordx2 v5, v[6:7], s[{base}:{base+1}]
""")


TLK = [0]


def tl(a, slot, drain=False):
    if not os.environ.get('TL'):
        return
    if drain:
        a("s_waitcnt vmcnt(0)")
    b = 66 if TLK[0] <= 1 else 80
    va, vb = (6, 7) if TLK[0] <= 1 else (254, 255)
    a(f"""s_memrealtime s[{b}:{b+1}]
s_load_dwordx2 s[{b+2}:{b+3}], s[0:1], 96
s_waitcnt lgkmcnt(0)
s_add_u32 s{b+2}, s{b+2}, {(24<<20) + (512<<10) + TLK[0]*65536 + slot*4}
s_addc_u32 s{b+3}, s{b+3}, 0
s_lshl_b32 s{b+4}, s2, 6
v_mov_b32 v{va}, s{b+4}
v_mov_b32 v{vb}, s{b}
v_cmp_eq_u32 vcc, 0, v0
s_and_saveexec_b64 s[{b+6}:{b+7}], vcc
global_store_dword v{va}, v{vb}, s[{b+2}:{b+3}]
s_mov_b64 exec, s[{b+6}:{b+7}]
""")


def wave_setup(a):
    a("""
v_lshrrev_b32 v1, 6, v0
s_nop 0
v_readfirstlane_b32 s22, v1
v_and_b32 v2, 63, v0
s_nop 2
s_lshl_b32 s18, s22, 10
""")


def t_dma_voff(a, vdst, n, pitch):
    a(f"""
v_lshrrev_b32 v3, 3, v2
v_lshl_add_u32 v3, v1, 3, v3
v_bfe_u32 v4, v3, 1, 3
v_and_b32 v5, 7, v2
v_xor_b32 v4, v4, v5
v_lshlrev_b32 v4, 4, v4
s_mov_b32 s23, {pitch}
v_mul_lo_u32 v3, v3, s23
v_add_u32 v{vdst}, v3, v4
""")
    for i in range(1, n):
        a(f"v_add_u32 v{vdst+i}, {i*64*pitch}, v{vdst}")


def n_dma_voff(a, vdst, n, pitch, MT):
    lpr = MT * 2 // 16
    rows = 64 // lpr
    sh = lpr.bit_length() - 1
    a(f"""
v_lshrrev_b32 v3, {sh}, v2
v_lshl_add_u32 v3, v1, {rows.bit_length()-1}, v3
v_and_b32 v5, {lpr-1}, v2
v_lshrrev_b32 v6, 2, v5
v_and_b32 v4, 3, v3
v_xor_b32 v6, v6, v4
v_and_b32 v5, 3, v5
v_lshlrev_b32 v5, 4, v5
v_lshl_add_u32 v5, v6, 6, v5
s_mov_b32 s23, {pitch}
v_mul_lo_u32 v3, v3, s23
v_add_u32 v{vdst}, v3, v5
""")
    for i in range(1, n):
        a(f"v_add_u32 v{vdst+i}, {i*8*rows*pitch}, v{vdst}")


def t_read_addr(a, vdst, nu, srow, skg2, base, NS, STAGE, stride):
    a(f"""
v_and_b32 v3, 31, v2
v_bfe_u32 v4, v3, 1, 3
v_lshrrev_b32 v5, 5, v2
v_xor_b32 v4, v4, v5
v_xor_b32 v4, s{skg2}, v4
v_add_u32 v3, s{srow}, v3
v_lshlrev_b32 v3, 7, v3
v_lshl_add_u32 v3, v4, 4, v3
""")
    for st in range(NS):
        for ul in range(nu):
            if ul == 0:
                a(f"v_add_u32 v{vdst+st*stride}, {base+st*STAGE}, v3")
            else:
                a(f"v_xor_b32 v{vdst+st*stride+ul}, {ul*32}, v{vdst+st*stride}")


def n_read_addr(a, vdst, sunit, skrow, LP, base, NS, STAGE, stride, nblk=2):
    a(f"""
v_bfe_u32 v3, v2, 2, 2
v_lshrrev_b32 v4, 5, v2
v_lshl_add_u32 v4, v4, 3, v3
s_mov_b32 s23, {LP}
v_mul_lo_u32 v4, v4, s23
v_add_u32 v4, s{skrow}, v4
v_bfe_u32 v5, v2, 4, 1
v_lshl_add_u32 v4, v5, 5, v4
v_and_b32 v5, 3, v2
v_lshl_add_u32 v4, v5, 3, v4
""")
    for b in range(nblk):
        a(f"""
s_add_u32 s23, s{sunit}, {b}
v_xor_b32 v5, s23, v3
v_lshl_add_u32 v5, v5, 6, v4
""")
        for st in range(NS):
            a(f"v_add_u32 v{vdst+st*stride+b}, {base+st*STAGE}, v5")


def gemm(a, tag, WM, WN, KS, ptype, pP, pR, nsteps, NS, opitch, scale=False, switch=None, touch=None):
    assert WM * WN * KS == 8
    MT, NT = 64 * WM, 64 * WN
    PB, RB = MT * 128, NT * 128
    STAGE = PB + RB
    nu = 4 // KS
    ncP, ncR = PB // 8192, RB // 8192
    wave_setup(a)
    lw = (WM * WN).bit_length() - 1
    lm = WM.bit_length() - 1
    a(f"""
s_lshr_b32 s24, s22, {lw}
s_and_b32 s25, s22, {WM-1}
s_lshr_b32 s26, s22, {lm}
s_and_b32 s26, s26, {WN-1}
""")
    if ptype == 'T':
        t_dma_voff(a, DV, ncP, pP)
    else:
        n_dma_voff(a, DV, ncP, pP, MT)
    t_dma_voff(a, DV + ncP, ncR, pR)
    nP = nu if ptype == 'T' else 2
    stride = nP + nu

    def setup():
        if touch:
            touch[0]() if callable(touch[0]) else a(touch[0])
        a(f"s_mul_i32 s27, s24, {nu*2}")
        if ptype == 'T':
            a(f"s_lshl_b32 s28, s25, 6")
            t_read_addr(a, RA, nu, 28, 27, 0, NS, STAGE, stride)
        else:
            a(f"s_lshl_b32 s28, s25, 1\ns_mul_i32 s29, s24, {nu*16*MT*2}")
            n_read_addr(a, RA, 28, 29, MT * 2, 0, NS, STAGE, stride)
        a(f"s_lshl_b32 s28, s26, 6")
        t_read_addr(a, RA + nP, nu, 28, 27, PB, NS, STAGE, stride)
        for i in range(64):
            a(f"v_mov_b32 v{ACC+i}, 0")

    def dmas(st):
        r = []
        for i in range(ncP):
            r.append([f"s_add_u32 m0, s18, {st*STAGE + i*8192}", "s_nop 0",
                      f"buffer_load_dwordx4 v{DV+i}, s[4:7], s16 offen lds"])
        for i in range(ncR):
            r.append([f"s_add_u32 m0, s18, {st*STAGE + PB + i*8192}", "s_nop 0",
                      f"buffer_load_dwordx4 v{DV+ncP+i}, s[8:11], s17 offen lds"])
        return r

    def reads(st, ul, fs):
        f = FR[fs]
        r = []
        if ptype == 'T':
            for b in range(2):
                r.append(f"ds_read_b128 v[{f+4*b}:{f+4*b+3}], v{RA+st*stride+ul} offset:{b*4096}")
        else:
            for b in range(2):
                for rr in range(2):
                    r.append(f"ds_read_b64_tr_b16 v[{f+4*b+2*rr}:{f+4*b+2*rr+1}], v{RA+st*stride+b} offset:{(16*ul+4*rr)*MT*2}")
        for b in range(2):
            r.append(f"ds_read_b128 v[{f+8+4*b}:{f+8+4*b+3}], v{RA+st*stride+nP+ul} offset:{b*4096}")
        return r

    def mfmas(fs):
        f = FR[fs]
        r = []
        for nb in range(2):
            for mb in range(2):
                c = ACC + 16 * (nb * 2 + mb)
                r.append(f"v_mfma_f32_32x32x16_bf16 v[{c}:{c+15}], v[{f+4*mb}:{f+4*mb+3}], v[{f+8+4*nb}:{f+8+4*nb+3}], v[{c}:{c+15}]")
        return r

    kadv = [f"s_add_u32 s16, s16, {128 if ptype == 'T' else 64*pP}", "s_add_u32 s17, s17, 128"]
    pipeline(a, tag, nsteps, NS, nu, dmas, reads, mfmas, None, kadv, switch, setup=setup, xtra=(touch[1] if touch else 0))

    a("s_nop 15\ns_nop 3")
    blocks = [(nb, mb) for nb in range(2) for mb in range(2)]
    if KS == 2:
        a("s_barrier")
        a(f"""
v_lshlrev_b32 v3, 4, v2
s_lshl_b32 s23, s22, 13
v_add_u32 v3, s23, v3
s_xor_b32 s23, s22, 4
s_lshl_b32 s23, s23, 13
v_lshlrev_b32 v4, 4, v2
v_add_u32 v4, s23, v4
s_cmp_eq_u32 s24, 0
s_cbranch_scc1 L_{tag}_x0
""")
        for j in range(8):
            a(f"ds_write_b128 v3, v[{ACC+4*j}:{ACC+4*j+3}] offset:{j*1024}")
        for j in range(32):
            a(f"v_mov_b32 v{ACC+j}, v{ACC+32+j}")
        a(f"s_branch L_{tag}_x1\nL_{tag}_x0:")
        for j in range(8):
            a(f"ds_write_b128 v3, v[{ACC+32+4*j}:{ACC+32+4*j+3}] offset:{j*1024}")
        a(f"L_{tag}_x1:\ns_waitcnt lgkmcnt(0)\ns_barrier")
        for j in range(8):
            a(f"ds_read_b128 v[{ACC+32+4*j}:{ACC+32+4*j+3}], v4 offset:{j*1024}")
        for j in range(8):
            a(f"s_waitcnt lgkmcnt({7-j})")
            for r in range(4):
                a(f"v_add_f32 v{ACC+4*j+r}, v{ACC+4*j+r}, v{ACC+32+4*j+r}")
        blocks = [(0, 0), (0, 1)]
    a(f"""
s_lshl_b32 s23, s26, 6
v_and_b32 v3, 31, v2
v_add_u32 v3, s23, v3
""")
    if KS == 2:
        a("s_lshl_b32 s23, s24, 5\nv_add_u32 v3, s23, v3")
    a(f"""
s_mov_b32 s23, {opitch}
v_mul_lo_u32 v3, v3, s23
v_lshrrev_b32 v4, 5, v2
v_lshl_add_u32 v3, v4, 4, v3
s_lshl_b32 s23, s25, 7
s_add_u32 s23, s23, s21
v_add_u32 v3, s23, v3
v_add_u32 v4, {32*opitch}, v3
""")
    for bi, (nb, mb) in enumerate(blocks):
        c = ACC + 16 * (nb * 2 + mb)
        t = 16 + 8 * (bi % 4)
        if scale:
            for r in range(16):
                a(f"v_mul_f32 v{c+r}, s20, v{c+r}")
        for r in range(8):
            a(f"v_cvt_pk_bf16_f32 v{t+r}, v{c+2*r}, v{c+2*r+1}")
        a("s_nop 1")
        for p in range(2):
            a(f"v_permlane32_swap_b32 v{t+4*p}, v{t+4*p+2}\nv_permlane32_swap_b32 v{t+4*p+1}, v{t+4*p+3}")
        for p in range(2):
            a(f"buffer_store_dwordx4 v[{t+4*p}:{t+4*p+3}], v{3+nb}, s[12:15], 0 offen offset:{mb*64+p*32}")


def gemm_kv(a, tag, NS=4):
    PB, RB = 8192, 16384
    STAGE = PB + RB
    nu = 4
    a(f"""
v_and_b32 v3, 3, v1
v_lshlrev_b32 v3, 10, v3
v_lshl_add_u32 v{DV}, v2, 4, v3
""")
    t_dma_voff(a, DV + 1, 2, 2048)
    stride = 1 + nu

    def dmas(st):
        r_ = [[f"s_add_u32 m0, s18, {st*STAGE}", "s_nop 0", f"buffer_load_dwordx4 v{DV}, s[4:7], s16 offen lds"]]
        for i in range(2):
            r_.append([f"s_add_u32 m0, s18, {st*STAGE + PB + i*8192}", "s_nop 0",
                       f"buffer_load_dwordx4 v{DV+1+i}, s[8:11], s17 offen lds"])
        return r_

    def setup():
        a(f"""
v_bfe_u32 v3, v2, 2, 2
v_lshrrev_b32 v4, 5, v2
v_lshl_add_u32 v4, v4, 3, v3
v_lshlrev_b32 v4, 6, v4
v_bfe_u32 v5, v2, 4, 1
v_lshl_add_u32 v4, v5, 5, v4
v_and_b32 v5, 3, v2
v_lshl_add_u32 v4, v5, 3, v4
v_lshrrev_b32 v5, 2, v1
v_lshl_add_u32 v4, v5, 12, v4
""")
        for st in range(NS):
            a(f"v_add_u32 v{RA+st*stride}, {st*STAGE}, v4")
        a("s_mov_b32 s27, 0\ns_and_b32 s28, s22, 3\ns_lshl_b32 s28, s28, 5")
        t_read_addr(a, RA + 1, nu, 28, 27, PB, NS, STAGE, stride)
        for i in range(16):
            a(f"v_mov_b32 v{ACC+i}, 0")

    def reads(st, ul, fs):
        f = FR[fs]
        r_ = []
        for rr in range(2):
            r_.append(f"ds_read_b64_tr_b16 v[{f+2*rr}:{f+2*rr+1}], v{RA+st*stride} offset:{(16*ul+4*rr)*64}")
        r_.append(f"ds_read_b128 v[{f+8}:{f+11}], v{RA+st*stride+1+ul}")
        return r_

    kadv = ["s_add_u32 s16, s16, 4096", "s_add_u32 s17, s17, 128"]
    a(f"s_cmp_ge_u32 s22, 4\ns_cbranch_scc1 L_{tag}_v")
    for kv in range(2):
        if kv:
            a(f"L_{tag}_v:")

        def mfmas(fs):
            f = FR[fs]
            if kv == 0:
                return ["s_nop 0", f"v_mfma_f32_32x32x16_bf16 v[{ACC}:{ACC+15}], v[{f}:{f+3}], v[{f+8}:{f+11}], v[{ACC}:{ACC+15}]"]
            return ["s_nop 0", f"v_mfma_f32_32x32x16_bf16 v[{ACC}:{ACC+15}], v[{f+8}:{f+11}], v[{f}:{f+3}], v[{ACC}:{ACC+15}]"]

        pipeline(a, tag, 16, NS, nu, dmas, reads, mfmas, None, kadv, setup=setup)
        a("s_nop 15\ns_nop 3")
        a(f"""
s_and_b32 s23, s22, 3
s_add_u32 s23, s21, s23
s_lshl_b32 s23, s23, 12
v_lshlrev_b32 v3, 4, v2
v_add_u32 v3, s23, v3
v_add_u32 v3, {WS_KF + 2048*kv}, v3
""")
        for r_ in range(8):
            a(f"v_cvt_pk_bf16_f32 v{16+r_}, v{ACC+2*r_}, v{ACC+2*r_+1}")
        for p in range(2):
            a(f"buffer_store_dwordx4 v[{16+4*p}:{16+4*p+3}], v3, s[12:15], 0 offen offset:{p*1024}")
        if kv == 0:
            tl(a, 5, True)
            a("s_endpgm")


def kernel_header(a, name):
    a.lines.append(f".globl {name}\n.p2align 8\n.type {name},@function\n{name}:")


def kernel_desc(name, vgpr, sgpr=100):
    return f""".amdhsa_kernel {name}
  .amdhsa_next_free_vgpr {vgpr}
  .amdhsa_next_free_sgpr {sgpr}
  .amdhsa_accum_offset {(vgpr+3)//4*4}
  .amdhsa_group_segment_fixed_size 0
  .amdhsa_kernarg_size 104
  .amdhsa_user_sgpr_count 2
  .amdhsa_user_sgpr_kernarg_segment_ptr 1
  .amdhsa_system_sgpr_workgroup_id_x 1
.end_amdhsa_kernel
"""


WS_BYTES = 40 << 20


def g4(a):
    a("""
s_and_b32 s50, s30, 1
s_lshl_b32 s50, s50, 2
s_and_b32 s51, s31, 3
s_add_u32 s50, s50, s51
s_lshr_b32 s51, s30, 1
s_lshl_b32 s51, s51, 2
s_lshr_b32 s52, s31, 2
s_add_u32 s51, s51, s52
""")
    if os.environ.get('SAMETILE') == '1':
        a("s_mov_b32 s50, 0\ns_mov_b32 s51, 0")
    if os.environ.get('SAMETILE') == '2':
        a("s_and_b32 s50, s30, 7\ns_mov_b32 s51, s30")
    if os.environ.get('SAMETILE') == '3':
        a("s_and_b32 s50, s2, 7\ns_lshr_b32 s51, s2, 3")
    srd(a, 4, 48, 49, 2048 * 4096, WS_AB)
    srd(a, 8, 32, 33, 2048 * 4096)
    srd(a, 12, 36, 37, 2048 * 4096)
    a("""
s_lshl_b32 s16, s50, 19
s_lshl_b32 s17, s51, 19
s_lshl_b32 s21, s50, 8
s_add_u32 s21, s21, s17
s_add_u32 s21, s21, 2048
s_add_u32 s53, s17, 4096
""")
    sw = f"""
s_mov_b32 s8, s34
s_mov_b32 s9, s35
s_sub_u32 s17, s17, 4096
s_add_u32 s16, s16, {1024*4096 - 4096}
s_mov_b32 s53, -1
"""
    uid = [0]

    class Dyn(str):
        pass
    dyn = f"""
s_cmp_eq_u32 s17, s53
s_cselect_b32 s8, s34, s8
s_cselect_b32 s9, s35, s9
s_cselect_b32 s23, 4096, 0
s_cselect_b32 s54, {1024*4096 - 4096}, 0
s_cselect_b32 s53, -1, s53
s_sub_u32 s17, s17, s23
s_add_u32 s16, s16, s54
"""
    gemm(a, "g4", 2, 2, 2, 'T', 4096, 4096, 64, 4, 4096, switch=(32, sw, dyn))


TPS = 8
ASTAGE = TPS * 4096
ANS = 3
NSTG = 64 // TPS
Q0, KF_, VF_, P_, ONES, LA, LB, NEGM, SX, SY, OA, OB = 16, 32, 40, 48, 56, 60, 64, 72, 88, 104, 120, 136
ST, KT, VT, PT = 152, 168, 176, 184
THR1 = 2.0 ** int(os.environ.get('THR1', '92'))
THR2 = 2.0 ** 120
MARGIN = int(os.environ.get('MARGIN', '100'))


def r(b, n):
    return f"v[{b}:{b+n-1}]"


def mf32(d, a_, b_, c):
    return f"v_mfma_f32_32x32x16_bf16 {r(d,16)}, {r(a_,4)}, {r(b_,4)}, {r(c,16) if isinstance(c,int) else c}"


def mf16(d, a_, b_, c):
    return f"v_mfma_f32_16x16x32_bf16 {r(d,4)}, {r(a_,4)}, {r(b_,4)}, {r(c,4)}"


def attn_dma(a, i):
    a(f"s_add_u32 m0, s17, {i*8192}\ns_nop 0\nbuffer_load_dwordx4 v{12+i}, s[12:15], s16 offen lds")


def attn_dma_adv(a):
    a(f"""
s_add_u32 s16, s16, {ASTAGE}
s_add_u32 s17, s17, {ASTAGE}
s_sub_u32 s30, s17, {ANS*ASTAGE}
s_cmp_ge_u32 s17, {ANS*ASTAGE}
s_cselect_b32 s17, s30, s17
""")


def cap(fn, *args):
    t = Asm()
    fn(t, *args)
    return [l.strip() for l in t.lines]


def attn_tile(a, g, tt, X, Y, Oc, Od, lc, ld, H, nx):
    cur, nxt = (g % ANS) * ASTAGE, ((g + 1) % ANS) * ASTAGE

    def rd(dst, t2, part):
        if g == NSTG - 1 and t2 >= TPS:
            t2 = TPS - 1
        base = cur if t2 < TPS else nxt
        off = base + (t2 % TPS) * 4096 + part * 1024
        a(f"ds_read_b128 {r(dst,4)}, v{10 + off // 65536} offset:{off % 65536}")
    last = (tt == TPS - 1)
    E = lambda i: a(f"v_exp_f32 v{X+i}, v{X+i}")
    C = lambda i: a(f"v_cvt_pk_bf16_f32 v{P_+i}, v{X+2*i}, v{X+2*i+1}")

    def hook(k):
        for ins in H.get(k, []):
            a(ins)
    hook('pre')
    a(f"s_waitcnt lgkmcnt({2 + nx})")
    a(mf32(Y, KF_, Q0, NEGM))
    for i in range(4): E(i)
    a("s_waitcnt lgkmcnt(0)")
    hook(0)
    if tt > 0:
        a(mf32(Od, VF_ + 4, P_ + 4, Od))
    if last:
        rd(VF_ + 4, tt, 3)
    for i in range(4, 6): E(i)
    hook('m0')
    for i in range(6, 8): E(i)
    hook(1)
    if tt > 0:
        a(mf16(ld, ONES, P_ + 4, ld))
    for i in range(4): C(i)
    a(mf32(Y, KF_ + 4, Q0 + 4, Y))
    hook(2)
    rd(KF_, tt + 2, 0)
    rd(KF_ + 4, tt + 2, 1)
    for i in range(8, 10): E(i)
    hook('m1')
    for i in range(10, 12): E(i)
    a(mf32(Od, VF_, P_, Oc))
    if not last:
        rd(VF_ + 4, tt, 3)
    rd(VF_, tt + 1, 2)
    for i in range(12, 14): E(i)
    hook('m2')
    for i in range(14, 16): E(i)
    hook(3)
    a(mf16(ld, ONES, P_, lc))
    hook('end')
    for i in range(4, 8): C(i)
    hook('m3')
    if last:
        assert not H.get('end')
        a("s_waitcnt lgkmcnt(3)\ns_nop 0")
        a(mf32(Od, VF_ + 4, P_ + 4, Od))
        a(mf16(ld, ONES, P_ + 4, ld))


PEND = {}


def attn_slow(a, tag, Oold, Onew, lold, lnew, Snext, sbase, pend=None):
    a(f"L_{tag}_slow:")
    a("s_nop 15")
    a(f"v_cmp_nlt_f32 vcc, v{lnew}, s29\ns_nop 4\ns_cbranch_vccnz L_{tag}_heavy")
    a(f"""
v_frexp_exp_i32_f32 v3, v{lnew}
v_add_u32 v3, {MARGIN}, v3
v_cvt_f32_i32 v4, v3
v_sub_u32 v3, 0, v3
""")
    for i in range(16): a(f"v_ldexp_f32 v{Onew+i}, v{Onew+i}, v3")
    for i in range(4): a(f"v_ldexp_f32 v{lnew+i}, v{lnew+i}, v3")
    for i in range(16): a(f"v_sub_f32 v{NEGM+i}, v{NEGM+i}, v4")
    for i in range(16): a(f"v_sub_f32 v{Snext+i}, v{Snext+i}, v4")
    a(f"s_nop 1\ns_branch L_{tag}_ret")
    a(f"L_{tag}_heavy:")
    a("s_waitcnt vmcnt(0)")
    np_, AM = pend or (0, 0)
    for i in range(np_):
        a(f"v_mfma_f32_16x16x32_bf16 {r(VB+12+4*i,4)}, {r(AM,4)}, {r(VB+4*i,4)}, 0")
    a("s_nop 15")
    for i in range(np_):
        a(f"v_max3_f32 v{VMAX}, |v{VB+12+4*i}|, |v{VB+13+4*i}|, v{VMAX}\nv_max3_f32 v{VMAX}, |v{VB+14+4*i}|, |v{VB+15+4*i}|, v{VMAX}")
    a(f"s_waitcnt lgkmcnt(0)\nv_log_f32 v5, v{lold}\nv_add_u32 v6, {sbase}, v10\ns_mov_b32 s30, 0")
    a(f"L_{tag}_h1:")
    a(f"ds_read_b128 {r(KT,4)}, v6\nds_read_b128 {r(KT+4,4)}, v6 offset:1024\ns_waitcnt lgkmcnt(0)")
    a(mf32(ST, KT, Q0, NEGM)); a(mf32(ST, KT + 4, Q0 + 4, ST))
    a("s_nop 15")
    for i in range(8): a(f"v_max3_f32 v5, v{ST+2*i}, v{ST+2*i+1}, v5")
    a(f"v_add_u32 v6, 4096, v6\ns_add_u32 s30, s30, 1\ns_cmp_lt_u32 s30, {TPS}\ns_cbranch_scc1 L_{tag}_h1")
    a(f"""
v_mov_b32 v6, v5
s_nop 1
v_permlane32_swap_b32 v5, v6
s_nop 1
v_max_f32 v5, v5, v6
v_ceil_f32 v4, v5
v_add_f32 v4, {f32bits(float(MARGIN))}, v4
v_cvt_i32_f32 v3, v4
v_sub_u32 v3, 0, v3
""")
    for i in range(16): a(f"v_ldexp_f32 v{Onew+i}, v{Oold+i}, v3")
    for i in range(4): a(f"v_ldexp_f32 v{lnew+i}, v{lold+i}, v3")
    for i in range(16): a(f"v_sub_f32 v{NEGM+i}, v{NEGM+i}, v4")
    for i in range(16): a(f"v_sub_f32 v{Snext+i}, v{Snext+i}, v4")
    a(f"v_add_u32 v6, {sbase}, v10\ns_mov_b32 s30, 0")
    a(f"L_{tag}_h2:")
    a(f"ds_read_b128 {r(KT,4)}, v6\nds_read_b128 {r(KT+4,4)}, v6 offset:1024\nds_read_b128 {r(VT,4)}, v6 offset:2048\nds_read_b128 {r(VT+4,4)}, v6 offset:3072\ns_waitcnt lgkmcnt(0)")
    a(mf32(ST, KT, Q0, NEGM)); a(mf32(ST, KT + 4, Q0 + 4, ST))
    a("s_nop 15")
    for i in range(16): a(f"v_exp_f32 v{ST+i}, v{ST+i}")
    a("s_nop 0")
    for i in range(8): a(f"v_cvt_pk_bf16_f32 v{PT+i}, v{ST+2*i}, v{ST+2*i+1}")
    a("s_nop 1")
    a(mf32(Onew, VT, PT, Onew)); a(mf32(Onew, VT + 4, PT + 4, Onew))
    a(mf16(lnew, ONES, PT, lnew)); a(mf16(lnew, ONES, PT + 4, lnew))
    a(f"v_add_u32 v6, 4096, v6\ns_add_u32 s30, s30, 1\ns_cmp_lt_u32 s30, {TPS}\ns_cbranch_scc1 L_{tag}_h2")
    a("s_nop 7")
    for i in range(4 * np_):
        a(f"v_mov_b32 v{VB+i}, 0")
    a(f"s_branch L_{tag}_ret")


N0 = int(os.environ.get('N0', '12'))
TS = eval(os.environ.get('TS', '[-1,-1,-1,-1,-1,-1, 13]'))


def touch_j(a, j):
    if j < 6:
        sr, vo, so, inc = ((44, 252, 100, 512), (36, 253, 101, 256 * 2048))[j % 2]
    else:
        sr, vo, so, inc = (8, 251, 54, 0)
    a(f"buffer_load_dword v249, v{vo}, s[{sr}:{sr+3}], s{so} offen\ns_add_u32 s{so}, s{so}, {inc}")


def q_gemm(a, setup_hook, role):
    NS = int(os.environ.get('QNS', '4'))
    STAGE = 28672
    F = [88, 104]
    F2 = [32, 40]
    D_, R_ = 152, 156
    AC, AC2 = OA, NEGM
    SV = 248
    NB = [0]
    stride = 5

    def dmas(st):
        if role == 'F':
            return []
        return [[f"s_add_u32 m0, s20, {st*STAGE + i*1024}", "s_nop 0", f"buffer_load_dwordx4 v{D_+i}, s[96:99], s16 offen lds"] for i in range(4)]

    def setup():
        setup_hook(role)
        a(f"""
v_bfe_u32 v3, v2, 2, 2
v_lshrrev_b32 v4, 5, v2
v_lshl_add_u32 v4, v4, 3, v3
v_bfe_u32 v5, v2, 4, 1
v_and_b32 v6, 3, v2
v_lshlrev_b32 v6, 3, v6
v_lshl_add_u32 v6, v5, 5, v6
v_lshl_add_u32 v7, v4, 6, v6
v_lshl_add_u32 v4, v4, 7, v6
v_lshrrev_b32 v3, 1, v3
v_lshrrev_b32 v5, 2, v1
v_xor_b32 v3, v3, v5
v_lshl_add_u32 v4, v3, 6, v4
v_add_u32 v{R_+25}, 24576, v7
v_add_u32 v{R_+26}, {24576+2*STAGE}, v7
v_add_u32 v{R_+27}, {24576+4*STAGE}, v7
""")
        for st in range(NS):
            a(f"v_add_u32 v{R_+st*stride}, {st*STAGE}, v4")
        a("s_mov_b32 s27, 0\ns_and_b32 s25, s22, 3\ns_lshl_b32 s25, s25, 5")
        t_read_addr(a, R_ + 1, 4, 25, 27, 8192, NS, STAGE, stride)
        for i in range(16):
            a(f"v_mov_b32 v{AC+i}, 0")
        if role in ('PK', 'PV'):
            for i in range(16):
                a(f"v_mov_b32 v{AC2+i}, 0")

    def reads(st, ul, fs):
        f = F[fs]
        r_ = []
        for q in range(2):
            u = 2 * ul + q
            for rr in range(2):
                r_.append(f"ds_read_b64_tr_b16 v[{f+4*q+2*rr}:{f+4*q+2*rr+1}], v{R_+st*stride} offset:{(16*u+4*rr)*128}")
            r_.append(f"ds_read_b128 v[{f+8+4*q}:{f+11+4*q}], v{R_+st*stride+1+u}")
            if role in ('PK', 'PV'):
                g = F2[fs]
                for rr in range(2):
                    r_.append(f"ds_read_b64_tr_b16 v[{g+4*q+2*rr}:{g+4*q+2*rr+1}], v{R_+25+st//2} offset:{(st%2)*STAGE+(16*u+4*rr)*64}")
        return r_

    def mfmas(fs):
        f, g = F[fs], F2[fs]
        r_ = []
        for q in range(2):
            r_.append(f"v_mfma_f32_32x32x16_bf16 v[{AC}:{AC+15}], v[{f+4*q}:{f+4*q+3}], v[{f+8+4*q}:{f+11+4*q}], v[{AC}:{AC+15}]")
            if role == 'PK':
                r_.append(f"v_mfma_f32_32x32x16_bf16 v[{AC2}:{AC2+15}], v[{g+4*q}:{g+4*q+3}], v[{f+8+4*q}:{f+11+4*q}], v[{AC2}:{AC2+15}]")
            if role == 'PV':
                r_.append(f"v_mfma_f32_32x32x16_bf16 v[{AC2}:{AC2+15}], v[{f+8+4*q}:{f+11+4*q}], v[{g+4*q}:{g+4*q+3}], v[{AC2}:{AC2+15}]")
        return r_

    kadv = ["s_add_u32 s16, s16, s17"]

    def ev_touch(js, first):
        a(f"s_cmp_lg_u32 s22, 7\ns_cbranch_scc1 L_qt{js[0]}")
        for j in js:
            touch_j(a, j)
        a(f"L_qt{js[0]}:")

    ev, ex = {}, {}
    SJ = int(os.environ.get('SJ', '12'))
    acts = {SJ: [lambda: side_jobs(a, role)]}
    ex[SJ] = 4
    if role == 'F':
        for t in sorted(set(t for t in TS if 0 <= t < 16)):
            js = [j for j in range(len(TS)) if TS[j] == t]
            acts.setdefault(t, []).append(lambda js=js: ev_touch(js, False))
    ev = {t: (lambda l=l: [f() for f in l]) for t, l in acts.items()}
    pipeline(a, "qg", 16, NS, 2, dmas, reads, mfmas, None, kadv, setup=setup, events=ev, extras=ex, novm=(role == 'F'))
    a(f"s_mov_b32 s23, {f32bits(QSCALE)}\ns_nop 11")
    if role in ('PK', 'PV'):
        for i in range(8):
            a(f"v_cvt_pk_bf16_f32 v{F[0]+i}, v{AC2+2*i}, v{AC2+2*i+1}")
        a(f"v_add_u32 v3, s24, v9")
        for p in range(2):
            a(f"buffer_store_dwordx4 v[{F[0]+4*p}:{F[0]+4*p+3}], v3, s[12:15], 0 offen offset:{p*1024 + (2048 if role == 'PV' else 0)}")
    for i in range(16):
        a(f"v_mul_f32 v{AC+i}, s23, v{AC+i}")
    for i in range(8):
        a(f"v_cvt_pk_bf16_f32 v{Q0+i}, v{AC+2*i}, v{AC+2*i+1}")
    a(f"""
buffer_store_dwordx4 v[{Q0}:{Q0+3}], v9, s[12:15], s26 offen
buffer_store_dwordx4 v[{Q0+4}:{Q0+7}], v9, s[12:15], s26 offen offset:1024
s_waitcnt vmcnt({4 if role in ('PK', 'PV') else 2})
""")
    side_jobs2(a, role)


def side_jobs(a, role):
    T = 200
    a(f"""
v_lshlrev_b32 v6, 5, v2
s_cmp_ge_u32 s22, 4
s_cbranch_scc1 L_sj_emv{role}
s_lshl_b32 s64, s2, 2
s_add_u32 s64, s64, s22
s_sub_u32 s31, 2048, s64
s_lshl_b32 s23, s64, 11
s_lshl_b32 s31, s31, 11
s_mov_b32 s19, {512*2048}
buffer_load_dwordx4 v[{T}:{T+3}], v6, s[80:83], s23 offen
buffer_load_dwordx4 v[{T+4}:{T+7}], v6, s[80:83], s23 offen offset:16
buffer_load_dwordx4 v[{T+8}:{T+11}], v6, s[80:83], s31 offen
buffer_load_dwordx4 v[{T+12}:{T+15}], v6, s[80:83], s31 offen offset:16
buffer_load_dwordx4 v[{T+16}:{T+19}], v6, s[84:87], s19 offen
buffer_load_dwordx4 v[{T+20}:{T+23}], v6, s[84:87], s19 offen offset:16
s_branch L_sj_1{role}
L_sj_emv{role}:
s_lshl_b32 s64, s2, 1
s_add_u32 s64, s64, s22
s_sub_u32 s64, s64, 4
s_cmp_ge_u32 s22, 6
s_cselect_b32 s64, 0x10000, s64
s_lshl_b32 s31, s2, 3
s_add_u32 s31, s31, s22
s_cmp_eq_u32 s31, 6
s_cselect_b32 s64, 512, s64
s_lshl_b32 s23, s64, 11
s_mov_b32 s19, {1024*2048}
buffer_load_dwordx4 v[{T}:{T+3}], v6, s[84:87], s23 offen
buffer_load_dwordx4 v[{T+4}:{T+7}], v6, s[84:87], s23 offen offset:16
buffer_load_dwordx4 v[{T+16}:{T+19}], v6, s[80:83], s19 offen
buffer_load_dwordx4 v[{T+20}:{T+23}], v6, s[80:83], s19 offen offset:16
L_sj_1{role}:
""")


def side_jobs2(a, role):
    T = 200
    o = T + 24
    a(f"""
v_lshlrev_b32 v6, 5, v2
v_mov_b32 v7, 0
s_cmp_ge_u32 s22, 4
s_cbranch_scc1 L_sj_emv2{role}
""")
    for j in range(8):
        a(f"""
v_lshlrev_b32 v{o+16}, 16, v{T+j}
v_and_b32 v{o+17}, 0xffff0000, v{T+j}
v_lshlrev_b32 v{o+18}, 16, v{T+8+j}
v_and_b32 v{o+19}, 0xffff0000, v{T+8+j}
v_add_f32 v{o+20}, v{o+16}, v{o+18}
v_add_f32 v{o+21}, v{o+17}, v{o+19}
v_sub_f32 v{o+22}, v{o+16}, v{o+18}
v_sub_f32 v{o+23}, v{o+17}, v{o+19}
v_cvt_pk_bf16_f32 v{o+j}, v{o+20}, v{o+21}
v_cvt_pk_bf16_f32 v{o+8+j}, v{o+22}, v{o+23}
v_dot2c_f32_bf16 v7, v{o+j}, v{T+16+j}
""")
    a(f"""
s_lshl_b32 s23, s64, 11
s_add_u32 s31, s23, {WS_XM}
s_add_u32 s23, s23, {WS_XP}
buffer_store_dwordx4 v[{o}:{o+3}], v6, s[12:15], s23 offen
buffer_store_dwordx4 v[{o+4}:{o+7}], v6, s[12:15], s23 offen offset:16
buffer_store_dwordx4 v[{o+8}:{o+11}], v6, s[12:15], s31 offen
buffer_store_dwordx4 v[{o+12}:{o+15}], v6, s[12:15], s31 offen offset:16
""")
    wave_sum(a, 7, 3)
    a(f"""
v_cvt_pk_bf16_f32 v7, v7, v7
s_lshl_b32 s23, s64, 1
s_add_u32 s23, s23, {WS_AT + 512*ATP}
v_mov_b32 v4, 0
s_mov_b64 exec, 1
buffer_store_short v7, v4, s[12:15], s23 offen
s_mov_b64 exec, -1
s_branch L_sj_done{role}
L_sj_emv2{role}:
s_cmp_gt_u32 s64, 512
s_cbranch_scc1 L_sj_done{role}
""")
    for j in range(8):
        a(f"v_dot2c_f32_bf16 v7, v{T+j}, v{T+16+j}")
    a("s_nop 3")
    wave_sum(a, 7, 3)
    a(f"""
v_mov_b32 v5, 0
v_cvt_pk_bf16_f32 v7, v7, v5
v_cmp_eq_u32 vcc, 0, v2
s_mul_i32 s23, s64, {ATP}
s_add_u32 s31, s23, {WS_BT + 2048}
s_add_u32 s23, s23, {WS_AT + 2048}
v_cndmask_b32 v7, v5, v7, vcc
v_lshlrev_b32 v4, 2, v2
s_mov_b32 exec_hi, 0
buffer_store_dword v7, v4, s[12:15], s23 offen
buffer_store_dword v5, v4, s[12:15], s31 offen
s_mov_b64 exec, -1
L_sj_done{role}:
""")


def kv_dma(a, g, i):
    a(f"s_add_u32 m0, s18, {(g % ANS)*ASTAGE + i*8192}\ns_mov_b32 s19, {g*ASTAGE}\nbuffer_load_dwordx4 v{12+i}, s[12:15], s19 offen lds")


def attention(a, tag, endlabel):
    wave_setup(a)
    stamp_begin(a)
    tl(a, 3)
    def hook():
        a(f"""
v_lshlrev_b32 v9, 4, v2
v_lshl_add_u32 v12, v1, 10, v9
v_add_u32 v12, {WS_KF}, v12
v_add_u32 v13, 8192, v12
v_add_u32 v14, 16384, v12
v_add_u32 v15, 24576, v12
""")
        for g in range(2):
            for i in range(4): kv_dma(a, g, i)
        a(f"""
v_and_b32 v5, 31, v2
v_and_b32 v4, 3, v1
v_lshl_add_u32 v4, v4, 5, v5
v_lshrrev_b32 v5, 5, v2
v_lshlrev_b32 v5, 4, v5
v_lshl_add_u32 v8, v4, 11, v5
v_lshrrev_b32 v5, 2, v1
v_lshl_add_u32 v8, v5, 6, v8
s_mov_b32 s28, {f32bits(THR1)}
s_mov_b32 s29, {f32bits(THR2)}
v_mov_b32 v10, v9
v_add_u32 v11, 65536, v9
""")
        stage1_setup(a)
        stage1_setup2(a)
        verify_setup(a)
        a(f"""
v_lshrrev_b32 v4, 2, v2
v_lshrrev_b32 v5, 4, v2
v_xor_b32 v4, v4, v5
v_and_b32 v4, 1, v4
v_cmp_eq_u32 vcc, 0, v4
v_mov_b32 v5, 0x3f803f80
s_nop 1
v_cndmask_b32 v{ONES}, 0, v5, vcc
v_mov_b32 v{ONES+1}, v{ONES}
v_mov_b32 v{ONES+2}, v{ONES}
v_mov_b32 v{ONES+3}, v{ONES}
""")
        for i in range(16): a(f"v_mov_b32 v{OB+i}, 0")
        for i in range(4): a(f"v_mov_b32 v{LB+i}, 0")
        a(f"v_mov_b32 v{VMAX}, 0")
    a(f"""
v_lshlrev_b32 v3, 4, v2
s_lshl_b32 s23, s2, 14
s_lshl_b32 s30, s22, 11
s_add_u32 s23, s23, s30
buffer_load_dwordx4 v[{Q0}:{Q0+3}], v3, s[12:15], s23 offen
buffer_load_dwordx4 v[{Q0+4}:{Q0+7}], v3, s[12:15], s23 offen offset:1024
""")
    hook()
    for b in range(2):
        for i in range(4): s1_dma(a, b, i)
    a("s_waitcnt vmcnt(12)\ns_barrier")
    a(f"ds_read_b128 {r(KF_,4)}, v10\nds_read_b128 {r(KF_+4,4)}, v10 offset:1024")
    a("s_waitcnt lgkmcnt(0)")
    a(mf32(SX, KF_, Q0, "0")); a(mf32(SX, KF_ + 4, Q0 + 4, SX))
    a(f"ds_read_b128 {r(KF_,4)}, v10 offset:4096\nds_read_b128 {r(KF_+4,4)}, v10 offset:{4096+1024}")
    a(f"ds_read_b128 {r(VF_+4,4)}, v10 offset:3072\nds_read_b128 {r(VF_,4)}, v10 offset:2048")
    a("s_nop 11")
    a(f"v_max3_f32 v5, v{SX}, v{SX+1}, v{SX+2}")
    for i in range(6): a(f"v_max3_f32 v5, v{SX+3+2*i}, v{SX+4+2*i}, v5")
    a(f"""
v_max_f32 v5, v{SX+15}, v5
v_mov_b32 v6, v5
s_nop 1
v_permlane32_swap_b32 v5, v6
s_nop 1
v_max_f32 v5, v5, v6
v_add_f32 v5, {f32bits(float(MARGIN))}, v5
""")
    for i in range(16): a(f"v_sub_f32 v{NEGM+i}, 0, v5")
    for i in range(16): a(f"v_sub_f32 v{SX+i}, v{SX+i}, v5")
    tl(a, 4)

    HK = {}

    def add(g, tt, slot, lines):
        HK.setdefault((g, tt), {}).setdefault(slot, []).extend(lines)
    BT_ = TPS - 2
    for g in range(NSTG):
        add(g, BT_, 'pre', ["s_waitcnt vmcnt(0)" + (" lgkmcnt(0)" if g == NSTG - 1 else ""), "s_barrier"])
        if g + 2 < NSTG:
            for i in range(4): add(g, BT_, i, cap(kv_dma, g + 2, i))
    add(0, 3, 'pre', ["s_waitcnt vmcnt(0)", "s_barrier"])

    def s1_step(g, tt, buf):
        add(g, tt, 'end', cap(s1_reads, buf))
        for i in range(4): add(g, tt + 1, f"m{i}", cap(s1_mfma, i))
    s1_step(0, 3, 0)
    for j in range(7):
        s1_step(j, BT_, (j + 1) & 1)
        if j + 2 <= 7:
            for i in range(4): add(j + 1, 0, i, cap(s1_dma, j & 1, i))
    add(7, 0, 'pre', f"""
s_and_b32 s27, s22, 1
s_lshr_b32 s25, s22, 1
s_and_b32 s23, s22, 3
s_lshl_b32 s23, s23, 13
s_cmp_ge_u32 s22, 4
s_cselect_b32 s30, 0, {S1B - (5 % ANS)*ASTAGE}
s_add_u32 s30, s30, {(5 % ANS)*ASTAGE}
s_add_u32 s23, s23, s30
v_add_u32 v{S1A}, s23, v9
s_lshl_b32 s23, s25, 11
s_lshl_b32 s30, s27, 13
s_add_u32 s23, s23, s30
v_add_u32 v{S1A+2}, s23, v9
v_add_u32 v{S1A+1}, {S1B}, v{S1A+2}
v_add_u32 v{S1A+2}, {(5 % ANS)*ASTAGE}, v{S1A+2}
""".strip().split("\n"))
    for j in range(8):
        add(7, 1 + j // 3, j % 3, [f"ds_write_b128 v{S1A}, v[{S1ACC+4*j}:{S1ACC+4*j+3}] offset:{j*1024}"])
    add(7, BT_, 'end', [f"ds_read_b128 v[{S1ACC+8*i+4*j}:{S1ACC+8*i+4*j+3}], v{S1A+1+i//2} offset:{(i%2)*16384+j*1024}" for i in range(4) for j in range(2)])
    def vchk(g, loads, AM):
        PEND[g] = (len(loads), AM)
        for i, ld_ in enumerate(loads):
            add(*((0, 4) if g == 0 else (g - 1, 7)), i, ld_)
            add(g, BT_, i, [f"v_mfma_f32_16x16x32_bf16 {r(VB+12+4*i,4)}, {r(AM,4)}, {r(VB+4*i,4)}, 0"])
            add(g, TPS - 1, i, [f"v_max3_f32 v{VMAX}, |v{VB+12+4*i}|, |v{VB+13+4*i}|, v{VMAX}", f"v_max3_f32 v{VMAX}, |v{VB+14+4*i}|, |v{VB+15+4*i}|, v{VMAX}"])
    ldn = lambda i, off: [f"buffer_load_dwordx4 v[{VB+4*i}:{VB+4*i+3}], v{VAD}, s[76:79], 0 offen offset:{off}"]
    vchk(0, [ldn(0, 0)], AMN)
    vchk(1, [ldn(0, 512), ldn(1, 1024), ldn(2, 1536)], AMN)
    vchk(2, [ldn(0, 2048), ldn(1, 2560)], AMN)
    vchk(3, [ldn(0, 3072), ldn(1, 3584)], AMN)
    add(3, 7, 'pre', cap(verify_w_switch))
    vchk(4, [[f"buffer_load_dwordx4 v[{VB+4*i}:{VB+4*i+3}], v{VAD}, s[84:87], s63 offen offset:{i*512}"] for i in range(2)]
         + [[f"buffer_load_dwordx4 v[{VB+8}:{VB+11}], v7, s[76:79], 0 offen"]], AMN)
    add(4, 7, 'pre', cap(verify_r_switch))
    ldr = lambda i: [f"buffer_load_dwordx4 v[{VB+4*i}:{VB+4*i+3}], v{VRV}, s[76:79], 0 offen", f"v_add_u32 v{VRV}, v{VRV}, v{VAD}"]
    vchk(5, [ldr(0), ldr(1), [f"buffer_load_dwordx4 v[{VB+8}:{VB+11}], v7, s[76:79], 0 offen"]], AMR)
    vchk(6, [ldr(0), ldr(1)], AMR)
    add(7, 0, 'pre', f"""
s_mov_b32 s23, {f32bits(VTOL)}
v_cmp_nle_f32 vcc, v{VMAX}, s23
s_lshl_b32 s30, s58, 2
s_add_u32 s30, s30, {WS_FLAG}
v_mov_b32 v4, 0
s_cmp_lg_u64 vcc, 0
s_cselect_b32 s23, 1, 0
v_mov_b32 v3, s23
s_mov_b64 exec, 1
buffer_store_dword v3, v4, s[12:15], s30 offen
s_mov_b64 exec, -1
""".strip().split("\n"))

    nx = 0
    for g in range(NSTG):
        Oold, Onew, lold, lnew = (OB, OA, LB, LA) if g % 2 == 0 else (OA, OB, LA, LB)
        for tt in range(TPS):
            X, Y = (SX, SY) if tt % 2 == 0 else (SY, SX)
            H = HK.get((g, tt), {})
            attn_tile(a, g, tt, X, Y, Oold if tt == 0 else Onew, Onew, lold if tt == 0 else lnew, lnew, H, nx)
            nx = sum(1 for k in ('m2', 3, 'end', 'm3') for ins in H.get(k, []) if ins.startswith("ds_"))
        a(f"""
s_nop 7
v_cmp_nlt_f32 vcc, v{lnew}, s28
s_nop 1
s_cbranch_vccnz L_{tag}{g}_slow
L_{tag}{g}_ret:
""")
    tl(a, 2)
    a(f"s_nop 3\nv_rcp_f32 v7, v{LB}\ns_add_u32 s31, s26, {WS_O}")
    for i in range(16):
        a(f"v_mul_f32 v{OB+i}, v7, v{OB+i}")
    for i in range(8): a(f"v_cvt_pk_bf16_f32 v{P_+i}, v{OB+2*i}, v{OB+2*i+1}")
    a("s_nop 1")
    for p in range(2):
        a(f"v_permlane32_swap_b32 v{P_+4*p}, v{P_+4*p+2}\nv_permlane32_swap_b32 v{P_+4*p+1}, v{P_+4*p+3}")
    for p in range(2):
        a(f"buffer_store_dwordx4 {r(P_+4*p,4)}, v8, s[12:15], s31 offen offset:{p*32}")
    for r_ in range(8):
        a(f"v_add_f32 v{S1ACC+r_}, v{S1ACC+r_}, v{S1ACC+8+r_}\nv_add_f32 v{S1ACC+16+r_}, v{S1ACC+16+r_}, v{S1ACC+24+r_}")
    for r_ in range(8):
        a(f"v_add_f32 v{S1ACC+r_}, v{S1ACC+r_}, v{S1ACC+16+r_}")
    pack8(a, 16, S1ACC)
    a(f"""
v_and_b32 v3, 31, v2
s_lshl_b32 s23, s27, 5
v_add_u32 v3, s23, v3
s_mov_b32 s23, {ATP}
v_mul_lo_u32 v3, v3, s23
v_lshrrev_b32 v4, 5, v2
v_lshl_add_u32 v3, v4, 4, v3
s_lshl_b32 s23, s25, 5
s_add_u32 s23, s23, s21
buffer_store_dwordx4 v[16:19], v3, s[12:15], s23 offen
""")
    stamp_end(a, 196608)
    tl(a, 5, True)
    a(f"s_branch {endlabel}")
    for g in range(NSTG):
        if g % 2 == 0:
            attn_slow(a, f"{tag}{g}", OB, OA, LB, LA, SX, (g % ANS) * ASTAGE, PEND.get(g + 1))
        else:
            attn_slow(a, f"{tag}{g}", OA, OB, LA, LB, SX, (g % ANS) * ASTAGE, PEND.get(g + 1))


def wave_sum(a, v, t):
    for sh in (8, 4, 2, 1):
        a(f"s_nop 1\nv_add_f32_dpp v{v}, v{v}, v{v} row_ror:{sh} row_mask:0xf bank_mask:0xf")
    a(f"""
v_mov_b32 v{t}, v{v}
s_nop 1
v_permlane16_swap_b32 v{v}, v{t}
s_nop 1
v_add_f32 v{v}, v{v}, v{t}
v_mov_b32 v{t}, v{v}
s_nop 1
v_permlane32_swap_b32 v{v}, v{t}
s_nop 1
v_add_f32 v{v}, v{v}, v{t}
""")


def small_gemm(a, tag, mode, pP, pR, nsteps, kstep, pre=None):
    NS, STAGE, nu = 4, 32768, 2
    t_dma_voff(a, DV, 1, pP)
    t_dma_voff(a, DV + 1, 1, pR)
    stride = 4

    def setup():
        a("""
s_and_b32 s26, s22, 1
s_lshr_b32 s24, s22, 2
s_and_b32 s27, s22, 2
s_lshl_b32 s27, s27, 1
s_lshl_b32 s28, s24, 7
""")
        t_read_addr(a, RA, nu, 28, 27, 0, NS, STAGE, stride)
        a("s_lshl_b32 s29, s26, 5\ns_add_u32 s28, s28, s29")
        t_read_addr(a, RA + 2, nu, 28, 27, 8192, NS, STAGE, stride)
        for i in range(32):
            a(f"v_mov_b32 v{ACC+i}, 0")

    def dmas(st):
        return [[f"s_add_u32 m0, s18, {st*STAGE}", "s_nop 0", f"buffer_load_dwordx4 v{DV}, s[4:7], s16 offen lds"],
                [f"s_add_u32 m0, s18, {st*STAGE+8192}", "s_nop 0", f"buffer_load_dwordx4 v{DV+1}, s[8:11], s17 offen lds"],
                [f"s_add_u32 m0, s18, {st*STAGE+16384}", "s_nop 0", f"buffer_load_dwordx4 v{DV}, s[36:39], s40 offen lds"],
                [f"s_add_u32 m0, s18, {st*STAGE+24576}", "s_nop 0", f"buffer_load_dwordx4 v{DV+1}, s[44:47], s41 offen lds"]]

    def reads(st, ul, fs):
        f = FR[fs]
        return [f"ds_read_b128 v[{f}:{f+3}], v{RA+st*stride+ul}",
                f"ds_read_b128 v[{f+4}:{f+7}], v{RA+st*stride+ul} offset:4096",
                f"ds_read_b128 v[{f+8}:{f+11}], v{RA+st*stride+2+ul}"]

    def mfmas(fs):
        f = FR[fs]
        return [f"v_mfma_f32_32x32x16_bf16 v[{ACC+16*mb}:{ACC+16*mb+15}], v[{f+4*mb}:{f+4*mb+3}], v[{f+8}:{f+11}], v[{ACC+16*mb}:{ACC+16*mb+15}]" for mb in range(2)]

    kadv = [f"s_add_u32 s{r_}, s{r_}, {kstep}" for r_ in (16, 17, 40, 41)]
    pipeline(a, tag, nsteps, NS, nu, dmas, reads, mfmas, None, kadv, pre=pre, setup=setup)
    small_epi(a, mode, ACC)


def small_epi(a, mode, AC):
    a("s_and_b32 s26, s22, 1")
    a("s_nop 15\ns_barrier")
    a(f"""
v_lshlrev_b32 v3, 4, v2
s_lshl_b32 s23, s22, 13
v_add_u32 v4, s23, v3
s_lshr_b32 s25, s22, 1
s_lshl_b32 s23, s25, 11
s_lshl_b32 s29, s26, 13
s_add_u32 s23, s23, s29
v_add_u32 v3, s23, v3
""")
    for j in range(8):
        a(f"ds_write_b128 v4, v[{AC+4*j}:{AC+4*j+3}] offset:{j*1024}")
    a("s_waitcnt lgkmcnt(0)\ns_barrier")
    for i in range(4):
        for j in range(2):
            a(f"ds_read_b128 v[{96+8*i+4*j}:{96+8*i+4*j+3}], v3 offset:{i*16384+j*1024}")
    a("s_waitcnt lgkmcnt(4)")
    for r_ in range(8):
        a(f"v_add_f32 v{64+r_}, v{96+r_}, v{104+r_}")
    a("s_waitcnt lgkmcnt(0)")
    for r_ in range(8):
        a(f"v_add_f32 v{72+r_}, v{112+r_}, v{120+r_}")
    if mode == 1:
        for r_ in range(8):
            a(f"v_add_f32 v{64+r_}, v{64+r_}, v{72+r_}")


def pack8(a, dst, src):
    for r_ in range(4):
        a(f"v_cvt_pk_bf16_f32 v{dst+r_}, v{src+2*r_}, v{src+2*r_+1}")
    a(f"s_nop 1\nv_permlane32_swap_b32 v{dst}, v{dst+2}\nv_permlane32_swap_b32 v{dst+1}, v{dst+3}")


S1ACC, S1F, S1A, S1D = 200, 232, 24, 68
S1B = ANS_BYTES = 98304


def stage1_setup(a):
    a(f"""
s_and_b32 s30, s2, 7
s_lshr_b32 s31, s2, 3
s_and_b32 s31, s31, 15
s_and_b32 s54, s30, 3
s_lshl_b32 s54, s54, 2
s_and_b32 s55, s31, 3
s_add_u32 s54, s54, s55
s_lshr_b32 s55, s30, 2
s_lshl_b32 s55, s55, 2
s_lshr_b32 s56, s31, 2
s_add_u32 s55, s55, s56
s_cmp_ge_u32 s2, 128
s_cselect_b32 s8, s52, s50
s_cselect_b32 s9, s53, s51
s_cselect_b32 s56, {WS_XM-WS_XP}, 0
s_cselect_b32 s57, {WS_BT-WS_AT}, 0
s_add_u32 s56, s56, {WS_XP}
s_add_u32 s57, s57, {WS_AT}
s_mov_b32 s10, {1024*2048}
s_mov_b32 s11, 0x00020000
""")
    srd(a, 4, 48, 49, WS_BYTES)
    a(f"""
s_lshl_b32 s40, s54, 17
s_add_u32 s40, s40, s56
s_add_u32 s42, s40, 128
s_lshl_b32 s41, s55, 17
s_add_u32 s43, s41, 128
s_mul_i32 s21, s55, {64*ATP}
s_add_u32 s21, s21, s57
s_lshl_b32 s23, s54, 7
s_add_u32 s21, s21, s23
""")
    t_dma_voff(a, S1D, 1, 2048)


def stage1_setup2(a):
    a("""
s_lshr_b32 s25, s22, 2
s_and_b32 s27, s22, 2
s_lshl_b32 s27, s27, 1
s_lshl_b32 s25, s25, 7
""")
    t_read_addr(a, S1A, 2, 25, 27, S1B, 2, 32768, 4)
    a("s_and_b32 s23, s22, 1\ns_lshl_b32 s23, s23, 5\ns_add_u32 s25, s25, s23")
    t_read_addr(a, S1A + 2, 2, 25, 27, S1B + 8192, 2, 32768, 4)
    for i in range(32):
        a(f"v_mov_b32 v{S1ACC+i}, 0")


def s1_dma(a, buf, i):
    if os.environ.get('NOS1'): return
    sr, so = ((4, 40), (8, 41), (4, 42), (8, 43))[i]
    a(f"s_add_u32 m0, s18, {S1B + buf*32768 + i*8192}\ns_nop 0\nbuffer_load_dwordx4 v{S1D}, s[{sr}:{sr+3}], s{so} offen lds\ns_add_u32 s{so}, s{so}, 256")


def s1_reads(a, buf):
    if os.environ.get('NOS1'): return
    for ul in range(2):
        f = S1F + 12 * ul
        a(f"""
ds_read_b128 v[{f}:{f+3}], v{S1A+buf*4+ul}
ds_read_b128 v[{f+4}:{f+7}], v{S1A+buf*4+ul} offset:4096
ds_read_b128 v[{f+8}:{f+11}], v{S1A+buf*4+2+ul}
""")


def s1_mfma(a, i):
    if os.environ.get('NOS1'): return
    ul, mb = i >> 1, i & 1
    f = S1F + 12 * ul
    c = S1ACC + 16 * mb
    a(f"v_mfma_f32_32x32x16_bf16 v[{c}:{c+15}], v[{f+4*mb}:{f+4*mb+3}], v[{f+8}:{f+11}], v[{c}:{c+15}]")


def stage1_store(a):
    a("s_waitcnt vmcnt(0) lgkmcnt(0)")
    small_epi(a, 1, S1ACC)
    pack8(a, 16, 64)
    a(f"""
v_and_b32 v3, 31, v2
s_lshl_b32 s23, s26, 5
v_add_u32 v3, s23, v3
s_mov_b32 s23, {ATP}
v_mul_lo_u32 v3, v3, s23
v_lshrrev_b32 v4, 5, v2
v_lshl_add_u32 v3, v4, 4, v3
s_lshl_b32 s23, s25, 5
s_add_u32 s23, s23, s21
buffer_store_dwordx4 v[16:19], v3, s[12:15], s23 offen
""")


def dot_loads(a, dst, srdA, soffA, srdB, soffB):
    for (d, sr, so) in ((dst, srdA, soffA), (dst + 12, srdB, soffB)):
        a(f"""
buffer_load_dwordx4 v[{d}:{d+3}], v10, s[{sr}:{sr+3}], s{so} offen
buffer_load_dwordx4 v[{d+4}:{d+7}], v10, s[{sr}:{sr+3}], s{so} offen offset:16
buffer_load_dwordx4 v[{d+8}:{d+11}], v11, s[{sr}:{sr+3}], s{so} offen
""")


def dot_compute(a, res, src, t):
    a(f"v_mov_b32 v{res}, 0")
    for i in range(12):
        a(f"v_dot2c_f32_bf16 v{res}, v{src+i}, v{src+12+i}")
    a("s_nop 3")
    wave_sum(a, res, t)


def edge_issue(a):
    srd(a, 64, 56, 57, 2048 * 4096)
    srd(a, 68, 48, 49, WS_BYTES)
    a(f"""
s_lshr_b32 s54, s2, 3
s_and_b32 s55, s2, 7
v_lshlrev_b32 v10, 5, v2
v_lshlrev_b32 v11, 4, v2
v_add_u32 v11, 2048, v11
v_mov_b32 v3, 0x7ffffff0
v_cmp_gt_u32 vcc, 8, v2
s_lshl_b32 s58, s54, 6
s_lshl_b32 s23, s55, 3
s_add_u32 s58, s58, s23
s_add_u32 s58, s58, s22
v_cndmask_b32 v11, v3, v11, vcc
s_lshl_b32 s59, s58, 12
s_mov_b32 s60, {WS_AT + 512*ATP}
s_lshl_b32 s61, s55, 6
s_lshl_b32 s23, s54, 2
s_add_u32 s61, s61, s23
s_add_u32 s61, s61, s22
s_cmp_ge_u32 s22, 4
s_cselect_b32 s61, 512, s61
s_mul_i32 s62, s61, {ATP}
s_add_u32 s62, s62, {WS_AT}
s_mov_b32 s63, {1024*4096}
""")


def edge_loads(a):
    flag_load(a, 212, 76, 48, 49)
    dot_loads(a, 164, 64, 59, 68, 60)
    dot_loads(a, 188, 64, 63, 68, 62)


def edge_finish(a):
    flag_test(a, 212)
    a("s_cbranch_scc1 L_edge_done")
    dot_compute(a, 160, 164, 3)
    dot_compute(a, 161, 188, 3)
    a(f"""
v_cvt_pk_bf16_f32 v160, v160, v161
v_lshrrev_b32 v161, 16, v160
s_mov_b64 exec, 3
s_sub_u32 s23, 2048, s58
v_mov_b32 v3, s58
v_mov_b32 v4, s23
v_cmp_eq_u32 vcc, 0, v2
s_nop 1
v_cndmask_b32 v3, v4, v3, vcc
v_lshlrev_b32 v3, 12, v3
buffer_store_short v160, v3, s[12:15], 0 offen offset:3072
s_sub_u32 s23, 1024, s61
v_mov_b32 v3, s61
v_mov_b32 v4, s23
s_nop 0
v_cndmask_b32 v3, v4, v3, vcc
v_lshlrev_b32 v3, 1, v3
v_add_u32 v3, {1024*4096 + 2048}, v3
s_cmp_eq_u32 s61, 0
s_cselect_b64 s[72:73], 1, 3
s_cmp_gt_u32 s22, 4
s_cselect_b64 s[72:73], 0, s[72:73]
s_mov_b64 exec, s[72:73]
s_cbranch_execz L_edge_done
buffer_store_short v161, v3, s[12:15], 0 offen
L_edge_done:
s_mov_b64 exec, -1
""")


def stage2(a):
    a(f"""
s_and_b32 s54, s30, 3
s_lshl_b32 s54, s54, 2
s_and_b32 s55, s31, 3
s_add_u32 s54, s54, s55
s_lshr_b32 s55, s30, 2
s_lshl_b32 s55, s55, 2
s_lshr_b32 s56, s31, 2
s_add_u32 s55, s55, s56
""")
    srd(a, 4, 48, 49, WS_BYTES)
    srd(a, 36, 48, 49, WS_BYTES)
    srd(a, 8, 50, 51, 2048 * 4096)
    srd(a, 44, 52, 53, 2048 * 4096)
    srd(a, 12, 34, 35, 2048 * 4096)
    a(f"""
s_mul_i32 s16, s55, {64*ATP}
s_add_u32 s40, s16, {WS_BT}
s_add_u32 s16, s16, {WS_AT}
s_lshl_b32 s17, s54, 18
s_mov_b32 s41, s17
""")
    wave_setup(a)
    flag_load(a, 208, 76, 48, 49)

    def pre():
        a("s_waitcnt vmcnt(12)")
        flag_test(a, 208)
        a("s_cbranch_scc1 L_k3_fb")

    small_gemm(a, "s2", 2, ATP, 4096, 17, 128, pre=pre)
    for r_ in range(8):
        a(f"v_sub_f32 v{80+r_}, v{64+r_}, v{72+r_}\nv_add_f32 v{88+r_}, v{64+r_}, v{72+r_}")
    pack8(a, 16, 80)
    pack8(a, 20, 88)
    a("s_nop 0")
    for r_ in range(4):
        a(f"v_alignbit_b32 v{24+r_}, v{19-r_}, v{19-r_}, 16")
        a(f"v_alignbit_b32 v{28+r_}, v{23-r_}, v{23-r_}, 16")
    a(f"""
v_and_b32 v3, 31, v2
s_lshl_b32 s23, s26, 5
s_lshl_b32 s29, s54, 6
s_add_u32 s23, s23, s29
v_add_u32 v3, s23, v3
v_sub_u32 v4, 2048, v3
v_lshlrev_b32 v3, 12, v3
v_lshlrev_b32 v4, 12, v4
v_lshrrev_b32 v5, 5, v2
v_lshlrev_b32 v5, 4, v5
s_lshl_b32 s23, s25, 5
s_lshl_b32 s29, s55, 7
s_add_u32 s23, s23, s29
v_add_u32 v5, s23, v5
v_add_u32 v6, v3, v5
v_add_u32 v7, v4, v5
v_sub_u32 v8, 4082, v5
v_add_u32 v9, v4, v8
v_add_u32 v8, v3, v8
buffer_store_dwordx4 v[16:19], v6, s[12:15], 0 offen offset:2048
buffer_store_dwordx4 v[20:23], v7, s[12:15], 0 offen offset:2048
v_cmp_ne_u32 vcc, 0, v5
s_and_saveexec_b64 s[64:65], vcc
buffer_store_dwordx4 v[28:31], v8, s[12:15], 0 offen
buffer_store_dwordx4 v[24:27], v9, s[12:15], 0 offen
s_andn2_b64 exec, s[64:65], exec
s_cbranch_execz L_s2_e2
buffer_store_dwordx3 v[28:30], v8, s[12:15], 0 offen
buffer_store_short v31, v8, s[12:15], 0 offen offset:12
buffer_store_dwordx3 v[24:26], v9, s[12:15], 0 offen
buffer_store_short v27, v9, s[12:15], 0 offen offset:12
L_s2_e2:
s_mov_b64 exec, s[64:65]
""")


def fold(a):
    wave_setup(a)
    srd(a, 4, 40, 41, 2048 * 2048)
    srd(a, 8, 44, 45, 1024 * 2048)
    a(f"""
v_lshlrev_b32 v6, 5, v2
s_lshl_b32 s16, s31, 5
s_lshl_b32 s23, s22, 2
s_add_u32 s16, s16, s23
s_mov_b32 s17, {512*2048}
buffer_load_dwordx4 v[8:11], v6, s[8:11], s17 offen
buffer_load_dwordx4 v[12:15], v6, s[8:11], s17 offen offset:16
""")
    for i in range(4):
        b = 16 + 16 * i
        a(f"""
s_add_u32 s23, s16, {i}
s_sub_u32 s24, 2048, s23
s_lshl_b32 s23, s23, 11
s_lshl_b32 s24, s24, 11
buffer_load_dwordx4 v[{b}:{b+3}], v6, s[4:7], s23 offen
buffer_load_dwordx4 v[{b+4}:{b+7}], v6, s[4:7], s23 offen offset:16
buffer_load_dwordx4 v[{b+8}:{b+11}], v6, s[4:7], s24 offen
buffer_load_dwordx4 v[{b+12}:{b+15}], v6, s[4:7], s24 offen offset:16
""")
    for i in range(4):
        b = 16 + 16 * i
        o = 96 + 16 * i
        a(f"s_waitcnt vmcnt({(3-i)*4 + 5*i})")
        a(f"v_mov_b32 v{88+i}, 0")
        for j in range(8):
            a(f"""
v_lshlrev_b32 v80, 16, v{b+j}
v_and_b32 v81, 0xffff0000, v{b+j}
v_lshlrev_b32 v82, 16, v{b+8+j}
v_and_b32 v83, 0xffff0000, v{b+8+j}
v_add_f32 v84, v80, v82
v_add_f32 v85, v81, v83
v_sub_f32 v86, v80, v82
v_sub_f32 v87, v81, v83
v_cvt_pk_bf16_f32 v{o+j}, v84, v85
v_cvt_pk_bf16_f32 v{o+8+j}, v86, v87
v_dot2c_f32_bf16 v{88+i}, v{o+j}, v{8+j}
""")
        a(f"""
s_add_u32 s23, s16, {i}
s_lshl_b32 s24, s23, 11
s_add_u32 s25, s24, {WS_XM}
s_add_u32 s24, s24, {WS_XP}
buffer_store_dwordx4 v[{o}:{o+3}], v6, s[12:15], s24 offen
buffer_store_dwordx4 v[{o+4}:{o+7}], v6, s[12:15], s24 offen offset:16
buffer_store_dwordx4 v[{o+8}:{o+11}], v6, s[12:15], s25 offen
buffer_store_dwordx4 v[{o+12}:{o+15}], v6, s[12:15], s25 offen offset:16
""")
        wave_sum(a, 88 + i, 3)
        a(f"""
v_cvt_pk_bf16_f32 v{88+i}, v{88+i}, v{88+i}
s_lshl_b32 s23, s23, 1
s_add_u32 s23, s23, {WS_AT + 512*ATP}
v_mov_b32 v4, 0
s_mov_b64 exec, 1
buffer_store_short v{88+i}, v4, s[12:15], s23 offen
s_mov_b64 exec, -1
""")


def edge_mv(a):
    wave_setup(a)
    srd(a, 4, 40, 41, 2048 * 2048)
    srd(a, 8, 44, 45, 513 * 2048)
    a(f"""
v_lshlrev_b32 v6, 5, v2
s_lshl_b32 s16, s31, 3
s_add_u32 s16, s16, s22
s_mul_i32 s16, s16, 9
s_mov_b32 s17, {1024*2048}
buffer_load_dwordx4 v[8:11], v6, s[4:7], s17 offen
buffer_load_dwordx4 v[12:15], v6, s[4:7], s17 offen offset:16
v_lshlrev_b32 v7, 2, v2
""")
    for i in range(9):
        b = 16 + 8 * i
        a(f"""
s_add_u32 s23, s16, {i}
s_lshl_b32 s23, s23, 11
buffer_load_dwordx4 v[{b}:{b+3}], v6, s[8:11], s23 offen
buffer_load_dwordx4 v[{b+4}:{b+7}], v6, s[8:11], s23 offen offset:16
""")
    a("s_waitcnt vmcnt(0)\nv_mov_b32 v5, 0")
    for i in range(9):
        b = 16 + 8 * i
        a(f"v_mov_b32 v{96+i}, 0")
        for j in range(8):
            a(f"v_dot2c_f32_bf16 v{96+i}, v{b+j}, v{8+j}")
        a("s_nop 3")
        wave_sum(a, 96 + i, 3)
        a(f"""
v_cvt_pk_bf16_f32 v{96+i}, v{96+i}, v5
v_cmp_eq_u32 vcc, 0, v2
s_add_u32 s23, s16, {i}
s_cmp_gt_u32 s23, 512
s_cbranch_scc1 L_emv_done
v_cndmask_b32 v{96+i}, v5, v{96+i}, vcc
s_mul_i32 s23, s23, {ATP}
s_add_u32 s24, s23, {WS_BT + 2048}
s_add_u32 s23, s23, {WS_AT + 2048}
s_mov_b32 exec_hi, 0
buffer_store_dword v{96+i}, v7, s[12:15], s23 offen
buffer_store_dword v5, v7, s[12:15], s24 offen
s_mov_b64 exec, -1
""")
    a("L_emv_done:")


VTOL = 2.0 ** -8 * 1.01
VMAX = 70
VB = 152


def cmp_dw(a, x, y, neg, rev=False):
    lo_y, hi_y = (f"v_and_b32 v5, 0xffff0000, v{y}", f"v_lshlrev_b32 v6, 16, v{y}") if rev else (f"v_lshlrev_b32 v5, 16, v{y}", f"v_and_b32 v6, 0xffff0000, v{y}")
    a(f"""
v_lshlrev_b32 v3, 16, v{x}
v_and_b32 v4, 0xffff0000, v{x}
{lo_y}
{hi_y}
v_fmac_f32 v3, s60, v5
v_fmac_f32 v4, s60, v6
v_max3_f32 v{VMAX}, |v3|, |v4|, v{VMAX}
""")


def verify_c_setup(a):
    a(f"""
s_bitcmp1_b32 s58, 0
s_cselect_b32 s76, s94, s92
s_cselect_b32 s77, s95, s93
s_cselect_b32 s60, 1.0, -1.0
s_mov_b32 s78, {2048*4096}
s_mov_b32 s79, 0x00020000
s_sub_u32 s62, 2048, s61
s_and_b32 s62, s62, 2047
s_lshl_b32 s61, s61, 12
s_lshl_b32 s62, s62, 12
""")


AMN, AMR, VAD, VRV = 192, 196, 69, 71


def verify_setup(a):
    a("s_lshl_b32 s58, s2, 3\ns_add_u32 s58, s58, s22\ns_lshr_b32 s61, s58, 1")
    verify_c_setup(a)
    a(f"""
s_bitcmp1_b32 s58, 0
s_mov_b32 s59, 0xbf80
s_cselect_b32 s59, 0x3f80, s59
v_and_b32 v3, 15, v2
v_bfe_u32 v4, v2, 4, 1
v_lshlrev_b32 v4, 3, v4
v_cmp_gt_u32 vcc, 32, v2
v_mov_b32 v5, s59
v_mov_b32 v6, 0x3f80
v_sub_u32 v7, 15, v3
v_cndmask_b32 v5, v5, v6, vcc
v_cndmask_b32 v7, v7, v3, vcc
v_sub_u32 v3, v3, v4
v_sub_u32 v7, v7, v4
""")
    for base, j in ((AMN, 3), (AMR, 7)):
        a(f"""
v_and_b32 v4, 1, v{j}
v_lshlrev_b32 v4, 4, v4
v_lshlrev_b32 v4, v4, v5
v_lshrrev_b32 v6, 1, v{j}
""")
        for r_ in range(4):
            a(f"v_cmp_eq_u32 vcc, {r_}, v6\ns_nop 1\nv_cndmask_b32 v{base+r_}, 0, v4, vcc")
    a(f"""
v_and_b32 v3, 15, v2
v_lshlrev_b32 v3, 5, v3
v_bfe_u32 v4, v2, 4, 1
v_lshlrev_b32 v4, 4, v4
v_add_u32 v5, v3, v4
v_sub_u32 v6, v4, v3
v_add_u32 v6, 4064, v6
v_add_u32 v7, 2, v5
v_cmp_gt_u32 vcc, 32, v2
v_mov_b32 v3, s62
v_mov_b32 v4, s61
v_cndmask_b32 v6, v6, v7, vcc
v_cndmask_b32 v3, v3, v4, vcc
v_add_u32 v{VRV}, s61, v6
v_add_u32 v{VAD}, v3, v5
s_mov_b32 s63, 0
""")


def verify_w_switch(a):
    a(f"""
s_bitcmp1_b32 s58, 0
s_cselect_b32 s84, s52, s50
s_cselect_b32 s85, s53, s51
s_mov_b32 s86, {1024*2048}
s_lshr_b32 s59, s58, 2
s_add_u32 s59, s59, 1
s_sub_u32 s63, 1024, s59
s_lshl_b32 s59, s59, 11
s_lshl_b32 s63, s63, 11
v_mov_b32 v3, s63
v_mov_b32 v4, s59
v_cmp_gt_u32 vcc, 32, v2
v_and_b32 v5, 15, v2
v_lshlrev_b32 v5, 5, v5
v_bfe_u32 v6, v2, 4, 1
v_lshl_add_u32 v5, v6, 4, v5
v_cndmask_b32 v3, v3, v4, vcc
v_add_u32 v{VAD}, v3, v5
s_and_b32 s63, s58, 2
s_lshl_b32 s63, s63, 9
""")
    srd(a, 80, 88, 89, 1024 * 2048)
    a(f"""
v_lshl_add_u32 v3, v0, 8, s2
v_lshlrev_b32 v3, 7, v3
buffer_load_dword v{VB+24}, v3, s[80:83], 0 offen
s_mov_b32 s87, 0x00020000
s_lshr_b32 s59, s58, 1
s_and_b32 s59, s59, 7
s_lshl_b32 s59, s59, 9
s_add_u32 s59, s59, {1024*4096}
v_add_u32 v7, s59, v5
""")


def verify_r_switch(a):
    a(f"""
v_mov_b32 v3, 512
v_mov_b32 v4, -512
v_cmp_gt_u32 vcc, 32, v2
s_lshr_b32 s59, s58, 1
s_sub_u32 s63, {1024*4096}, s61
s_and_b32 s23, s58, 0xfffffff9
v_cndmask_b32 v{VAD}, v4, v3, vcc
s_cmp_eq_u32 s23, 0
s_cselect_b32 s59, s59, 0
s_cselect_b32 s63, s63, 0
v_mul_lo_u32 v7, v{VAD}, s59
v_add3_u32 v7, v7, v{VRV}, s63
""")


def touch(a):
    a("""
s_load_dwordx8 s[32:39], s[0:1], 0
s_load_dwordx4 s[40:43], s[0:1], 64
s_sub_u32 s31, s2, 56
s_lshl_b32 s23, s31, 9
v_add_u32 v3, s23, v0
v_lshlrev_b32 v4, 7, v3
s_waitcnt lgkmcnt(0)
""")
    off = 0
    for i, (lo, nb) in enumerate(((36, 65536), (38, 65536), (32, 2048 * 2048), (34, 1024 * 2048), (40, 513 * 2048), (42, 512 * 2048))):
        srd(a, 4 + 4 * i, lo, lo + 1, nb)
        a(f"v_subrev_u32 v5, {off}, v4\nbuffer_load_dword v{10+i}, v5, s[{4+4*i}:{7+4*i}], 0 offen")
        off += (nb + 127) // 128 * 128
    assert off <= 200 * 512 * 128
    a("s_waitcnt vmcnt(0)")


def flag_load(a, vd, sr, lo, hi):
    srd(a, sr, lo, hi, 8192, WS_FLAG)
    a("v_and_b32 v3, 63, v0\nv_lshlrev_b32 v3, 4, v3\nv_add_u32 v4, 4096, v3")
    for j in range(8):
        a(f"buffer_load_dwordx4 v[{vd+4*j}:{vd+4*j+3}], v{3 + j//4}, s[{sr}:{sr+3}], 0 offen offset:{(j%4)*1024}")


def flag_test(a, vd):
    for j in range(1, 31, 2):
        a(f"v_or3_b32 v{vd}, v{vd}, v{vd+j}, v{vd+j+1}")
    a(f"v_or_b32 v{vd}, v{vd}, v{vd+31}")
    a(f"v_cmp_ne_u32 vcc, 0, v{vd}\ns_nop 1\ns_cmp_lg_u64 vcc, 0")


def g3(a):
    a("""
s_and_b32 s50, s30, 3
s_lshl_b32 s50, s50, 2
s_and_b32 s51, s31, 3
s_add_u32 s50, s50, s51
s_lshr_b32 s51, s30, 2
s_lshl_b32 s51, s51, 2
s_lshr_b32 s52, s31, 2
s_add_u32 s51, s51, s52
""")
    srd(a, 4, 40, 41, 2048 * 2048)
    a(f"""
s_cmp_ge_u32 s51, 4
s_cselect_b32 s8, s46, s44
s_cselect_b32 s9, s47, s45
s_cselect_b32 s20, {f32bits(-1.0)}, 1.0
s_mov_b32 s10, {1024*2048}
s_mov_b32 s11, 0x00020000
s_lshl_b32 s16, s50, 18
s_and_b32 s17, s51, 3
s_lshl_b32 s17, s17, 19
s_lshl_b32 s21, s51, 20
s_lshl_b32 s23, s50, 8
s_add_u32 s21, s21, s23
s_add_u32 s21, s21, {WS_AB}
""")
    gemm(a, "g3", 2, 4, 1, 'T', 2048, 2048, 16, 3, 4096, scale=True)


def touch2(a):
    a("""
v_lshl_add_u32 v3, v0, 8, s2
v_lshlrev_b32 v4, 7, v3
v_lshrrev_b32 v5, 5, v3
v_and_b32 v6, 31, v3
v_lshlrev_b32 v5, 12, v5
v_lshl_add_u32 v5, v6, 7, v5
v_mov_b32 v7, 0x7ffffff0
v_cmp_gt_u32 vcc, 17, v6
""")
    srd(a, 76, 88, 89, 1024 * 2048)
    a("v_cndmask_b32 v5, v7, v5, vcc\nbuffer_load_dword v196, v4, s[76:79], 0 offen")
    srd(a, 80, 92, 93, 1025 * 4096)
    a("buffer_load_dword v197, v5, s[80:83], 0 offen")
    srd(a, 84, 94, 95, 1025 * 4096)
    a("buffer_load_dword v198, v5, s[84:87], 0 offen")


def k1(a):
    kernel_header(a, "k1_kernel")
    a("""
s_cmp_ge_u32 s2, 256
s_cbranch_scc1 L_k1_end
s_load_dwordx4 s[32:35], s[0:1], 0
s_load_dwordx2 s[50:51], s[0:1], 64
s_load_dwordx2 s[52:53], s[0:1], 72
s_load_dwordx2 s[88:89], s[0:1], 32
s_load_dwordx4 s[92:95], s[0:1], 48
s_load_dwordx2 s[48:49], s[0:1], 96
s_load_dwordx4 s[64:67], s[0:1], 16
s_load_dwordx2 s[74:75], s[0:1], 40
s_load_dwordx2 s[90:91], s[0:1], 88
""")
    wave_setup(a)
    a(f"""
v_lshrrev_b32 v3, 3, v2
v_lshl_add_u32 v3, v1, 5, v3
v_bfe_u32 v4, v3, 1, 1
v_bfe_u32 v5, v2, 2, 1
v_xor_b32 v4, v4, v5
v_and_b32 v5, 3, v2
v_lshlrev_b32 v5, 4, v5
v_lshl_add_u32 v5, v4, 6, v5
v_lshl_add_u32 v6, v3, 11, v5
v_subrev_u32 v3, 64, v3
v_bfe_u32 v4, v3, 1, 3
v_and_b32 v5, 7, v2
v_xor_b32 v4, v4, v5
v_lshlrev_b32 v4, 4, v4
v_lshl_add_u32 v7, v3, 11, v4
v_lshlrev_b32 v8, 4, v2
v_cmp_gt_u32 vcc, 2, v1
v_mov_b32 v9, 64
v_mov_b32 v10, {8*2048}
v_cndmask_b32 v152, v7, v6, vcc
v_cndmask_b32 v9, v9, 0, vcc
v_cmp_lt_u32 vcc, 5, v1
v_mov_b32 v11, 1024
s_lshl_b32 s20, s22, 12
v_cndmask_b32 v152, v152, v8, vcc
v_cndmask_b32 v9, v9, 0, vcc
v_cndmask_b32 v10, v10, v11, vcc
v_xor_b32 v153, v152, v9
v_add_u32 v153, v153, v10
v_lshl_add_u32 v154, v10, 1, v152
v_lshl_add_u32 v155, v10, 1, v153
s_waitcnt lgkmcnt(0)
s_cmp_ge_u32 s2, 128
s_cselect_b32 s96, s66, s64
s_cselect_b32 s97, s67, s65
s_mov_b32 s98, 65536
s_mov_b32 s99, 0x00020000
s_cmp_lt_u32 s22, 6
s_cselect_b32 s96, s32, s96
s_cselect_b32 s97, s33, s97
s_cselect_b32 s98, {2048*2048}, s98
s_cmp_lt_u32 s22, 2
s_cselect_b32 s96, s34, s96
s_cselect_b32 s97, s35, s97
s_cselect_b32 s98, {1024*2048}, s98
""")
    TLK[0] = 0
    srd(a, 12, 48, 49, WS_BYTES)
    srd(a, 36, 34, 35, 1024 * 2048)
    srd(a, 44, 32, 33, 2048 * 2048)
    srd(a, 80, 74, 75, 2048 * 2048)
    srd(a, 84, 50, 51, 513 * 2048)
    tl(a, 0)
    a(f"""
s_and_b32 s30, s2, 7
s_lshr_b32 s31, s2, 3
s_and_b32 s54, s30, 3
s_lshl_b32 s54, s54, 2
s_and_b32 s55, s31, 3
s_add_u32 s54, s54, s55
s_lshr_b32 s55, s30, 2
s_lshl_b32 s55, s55, 3
s_lshr_b32 s56, s31, 2
s_add_u32 s55, s55, s56
s_lshl_b32 s16, s55, 7
s_lshl_b32 s17, s54, 18
s_add_u32 s26, s17, s16
s_cmp_lt_u32 s22, 2
s_cselect_b32 s16, s16, s17
s_mov_b32 s23, 128
s_cselect_b32 s17, {64*2048}, s23
s_cmp_ge_u32 s22, 6
s_cselect_b32 s16, 0, s16
s_cselect_b32 s17, 4096, s17
s_mov_b32 s5, 0
s_and_b32 s24, s55, 3
s_lshl_b32 s23, s54, 2
s_add_u32 s24, s24, s23
s_lshl_b32 s24, s24, 12
s_add_u32 s24, s24, {WS_KF}
s_lshl_b32 s26, s2, 14
s_lshl_b32 s23, s22, 11
s_add_u32 s26, s26, s23
s_cmp_ge_u32 s2, 128
s_cselect_b32 s8, s52, s50
s_cselect_b32 s9, s53, s51
s_mov_b32 s10, {512*2048}
s_mov_b32 s11, 0x00020000
""")

    def hook(role):
        if role == 'F':
            a(f"""
v_mov_b32 v248, 0
s_lshr_b32 s23, s2, 3
s_lshl_b32 s30, s23, 15
s_and_b32 s31, s2, 3
s_lshl_b32 s31, s31, 20
s_add_u32 s30, s30, s31
s_add_u32 s30, s30, 512
v_lshlrev_b32 v251, 7, v2
v_lshrrev_b32 v4, 2, v2
v_and_b32 v5, 3, v2
v_lshlrev_b32 v5, 7, v5
v_lshl_add_u32 v252, v4, 11, v5
v_lshrrev_b32 v4, 3, v2
v_and_b32 v5, 7, v2
v_lshlrev_b32 v5, 7, v5
v_lshl_add_u32 v253, v4, 11, v5
s_lshl_b32 s31, s23, 14
s_and_b32 s23, s2, 4
s_lshl_b32 s23, s23, 8
s_add_u32 s31, s31, s23
s_add_u32 s31, s31, {256*2048}
s_mov_b32 s100, s30
s_mov_b32 s101, s31
s_cmp_lg_u32 s22, 7
s_cbranch_scc1 L_not7
s_and_b32 s54, s2, 127
s_lshl_b32 s54, s54, 13
s_lshr_b32 s23, s2, 3
s_and_b32 s23, s23, 7
s_lshl_b32 s23, s23, 13
buffer_load_dword v249, v251, s[96:99], s23 offen
""")
            for j in range(len(TS)):
                if TS[j] < 0:
                    touch_j(a, j)
            a(f"""
L_not7:
""")
        a("v_lshlrev_b32 v9, 4, v2")
    a(f"""
s_cmp_ge_u32 s55, 8
s_cselect_b32 s23, 6, 7
s_cmp_ge_u32 s22, s23
s_cbranch_scc1 L_qg_F
s_cmp_ge_u32 s55, 8
s_cbranch_scc1 L_qg_D
s_and_b32 s23, s55, 3
s_cmp_lg_u32 s22, s23
s_cbranch_scc1 L_qg_D
s_cmp_ge_u32 s55, 4
s_cbranch_scc1 L_qg_PV
""")
    for role in ('PK', 'PV', 'F', 'D'):
        a(f"L_qg_{role}:")
        q_gemm(a, hook, role)
        if role != 'D':
            a("s_branch L_qg_done")
    a("L_qg_done:")
    tl(a, 5, True)
    a("L_k1_end:\ns_endpgm")


def k2(a):
    kernel_header(a, "k2_kernel")
    a("""
s_cmp_ge_u32 s2, 256
s_cbranch_scc1 L_k2_end
s_load_dwordx4 s[32:35], s[0:1], 0
s_load_dwordx2 s[50:51], s[0:1], 64
s_load_dwordx2 s[52:53], s[0:1], 72
s_load_dwordx2 s[88:89], s[0:1], 32
s_load_dwordx4 s[92:95], s[0:1], 48
s_load_dwordx2 s[48:49], s[0:1], 96
s_waitcnt lgkmcnt(0)
""")
    TLK[0] = 1
    tl(a, 0)
    srd(a, 12, 48, 49, WS_BYTES)
    srd(a, 36, 34, 35, 1024 * 2048)
    srd(a, 44, 32, 33, 2048 * 2048)
    a("""
s_and_b32 s30, s2, 7
s_lshr_b32 s31, s2, 3
s_and_b32 s54, s30, 3
s_lshl_b32 s54, s54, 2
s_and_b32 s55, s31, 3
s_add_u32 s54, s54, s55
s_lshr_b32 s55, s30, 2
s_lshl_b32 s55, s55, 3
s_lshr_b32 s56, s31, 2
s_add_u32 s55, s55, s56
s_lshl_b32 s16, s55, 7
s_lshl_b32 s17, s54, 18
s_add_u32 s26, s17, s16
""")
    attention(a, "at", "L_k2_end")
    a("L_k2_end:\ns_endpgm")


def k3(a):
    kernel_header(a, "k3_kernel")
    a("""
s_cmp_ge_u32 s2, 256
s_cbranch_scc1 L_k3_end
s_load_dwordx2 s[32:33], s[0:1], 32
s_and_b32 s30, s2, 1
s_and_b32 s31, s2, 2
s_lshl_b32 s31, s31, 1
s_or_b32 s30, s30, s31
s_lshr_b32 s31, s2, 7
s_lshl_b32 s31, s31, 1
s_or_b32 s30, s30, s31
s_and_b32 s31, s2, 0x78
s_or_b32 s30, s30, s31
s_and_b32 s31, s2, 4
s_lshl_b32 s31, s31, 5
s_or_b32 s2, s30, s31
s_load_dwordx2 s[34:35], s[0:1], 80
s_load_dwordx2 s[48:49], s[0:1], 96
s_load_dwordx4 s[56:59], s[0:1], 48
s_and_b32 s30, s2, 7
s_lshr_b32 s31, s2, 3
s_waitcnt lgkmcnt(0)
""")
    TLK[0] = 2
    tl(a, 0)
    a("""
s_cmp_ge_u32 s2, 128
s_cbranch_scc1 L_k3_s2
s_and_b32 s50, s30, 1
s_lshl_b32 s50, s50, 2
s_and_b32 s51, s31, 3
s_add_u32 s50, s50, s51
s_lshr_b32 s51, s30, 1
s_lshl_b32 s51, s51, 2
s_lshr_b32 s52, s31, 2
s_add_u32 s51, s51, s52
""")
    srd(a, 4, 32, 33, 1024 * 2048)
    srd(a, 8, 48, 49, 2048 * 2048, WS_O)
    srd(a, 12, 34, 35, 2048 * 4096)
    a("""
s_lshl_b32 s16, s50, 8
s_lshl_b32 s17, s51, 18
s_lshl_b32 s21, s51, 19
s_add_u32 s21, s21, s16
""")
    gemm(a, "g5", 2, 2, 2, 'N', 2048, 2048, 16, 4, 4096, touch=(lambda: (edge_issue(a), edge_loads(a)), 20))
    edge_finish(a)
    tl(a, 5, True)
    a("""
s_endpgm
L_k3_s2:
s_sub_u32 s31, s31, 16
s_mov_b32 s50, s56
s_mov_b32 s51, s57
s_mov_b32 s52, s58
s_mov_b32 s53, s59
""")
    stage2(a)
    tl(a, 5, True)
    a("""
s_endpgm
L_k3_fb:
s_load_dwordx2 s[40:41], s[0:1], 40
s_load_dwordx4 s[44:47], s[0:1], 64
s_load_dwordx2 s[90:91], s[0:1], 88
s_mov_b32 s36, s34
s_mov_b32 s37, s35
s_mov_b32 s32, s50
s_mov_b32 s33, s51
s_mov_b32 s34, s52
s_mov_b32 s35, s53
s_waitcnt vmcnt(0) lgkmcnt(0)
s_barrier
""")
    srd(a, 12, 48, 49, WS_BYTES)
    g3(a)
    a("""
s_waitcnt vmcnt(0) lgkmcnt(0)
s_barrier
s_cmp_lg_u32 s22, 0
s_cbranch_scc1 L_k3_gb2
buffer_wbl2 sc1
s_waitcnt vmcnt(0)
v_mov_b32 v3, 0
v_mov_b32 v4, 1
s_mov_b64 exec, 1
global_atomic_add v3, v4, s[90:91] sc1
s_waitcnt vmcnt(0)
L_k3_gb1:
s_sleep 8
global_load_dword v5, v3, s[90:91] sc1
s_waitcnt vmcnt(0)
v_readfirstlane_b32 s23, v5
s_nop 3
s_cmp_lt_u32 s23, 128
s_cbranch_scc1 L_k3_gb1
s_mov_b64 exec, -1
buffer_inv sc1
s_waitcnt vmcnt(0)
L_k3_gb2:
s_barrier
""")
    g4(a)
    a("L_k3_end:\ns_endpgm")


def V(n):
    return 256 if os.environ.get('TL') else n


def main():
    a = Asm()
    hdr = open("cdna_kernels/" + KN + ".s.ref").read().split("; Override launch")[0]
    launches = """; @launch kernel=k1_kernel grid=(256,1,1) block=(512,1,1) lds=131072
; @launch kernel=k2_kernel grid=(256,1,1) block=(512,1,1) lds=163840
; @launch kernel=k3_kernel grid=(256,1,1) block=(512,1,1) lds=147456
"""
    k1(a)
    k2(a)
    k3(a)
    out = hdr + launches + '.amdgcn_target "amdgcn-amd-amdhsa--gfx950"\n.text\n' + a.text()
    out += '.section .rodata,"a"\n.p2align 6\n' + kernel_desc("k1_kernel", V(256), 102) + ".p2align 6\n" + kernel_desc("k2_kernel", V(256)) + ".p2align 6\n" + kernel_desc("k3_kernel", V(248))
    open(sys.argv[1] if len(sys.argv) > 1 else "out.s", "w").write(out)


if __name__ == "__main__":
    main()
```

```python
import sys, os
PROF = os.environ.get('PROF'); NOMFMA = os.environ.get('NOMFMA'); NODMA = os.environ.get('NODMA')

KN = "concat_heads__grouped_kv_mqa__spectral_fnet__prompt"
WS_Q = 0
WS_KF = 4 << 20
WS_VF = (4 << 20) + (128 << 10)
WS_AB = 8 << 20
WS_O = 16 << 20
WS_XP = 26 << 20
WS_XM = 29 << 20
WS_AT = 32 << 20
WS_BT = 34 << 20
WS_FLAG = 36 << 20
ATP = 2176
QSCALE = 1.4426950408889634 * 32 ** -0.5


def f32bits(x):
    import struct
    return struct.unpack("<I", struct.pack("<f", x))[0]


class Asm:
    def __init__(self):
        self.lines = []

    def __call__(self, s):
        for l in s.strip("\n").split("\n"):
            self.lines.append(l if l.endswith(":") else "    " + l.strip())

    def text(self):
        return "\n".join(self.lines) + "\n"


def srd(a, d, lo, hi, nbytes, off=0):
    if off:
        a(f"s_add_u32 s{d}, s{lo}, {off}\ns_addc_u32 s{d+1}, s{hi}, 0")
    else:
        a(f"s_mov_b32 s{d}, s{lo}\ns_mov_b32 s{d+1}, s{hi}")
    a(f"s_mov_b32 s{d+2}, {nbytes}\ns_mov_b32 s{d+3}, 0x00020000")


FR = [16, 32]
UID = [0]
PROFOFF = {'qg': 65536, 'g1': 0, 'g2': 0, 'g3': 0, 'g4': 65536, 'g5': 131072, 's1': 65536, 's2': 131072}
ACC = 64
DV = 48
RA = 128


def pipeline(a, tag, nsteps, NS, nu, dmas, reads, mfmas, nreads, kadv, switch=None, pre=None, setup=None, xtra=0, events=None, extras=None, prebar=None, novm=False, noprol=0):
    nd = len(dmas(0))

    def issue_all(stage):
        for g in dmas(stage % NS):
            for ins in g:
                a(ins)
        for ins in kadv:
            a(ins)

    for st in range(noprol, min(NS - 1, nsteps)):
        issue_all(st)
    if setup is not None:
        setup()
    if pre is not None:
        pre()
    if not novm:
        a(f"s_waitcnt vmcnt({(min(NS - 1, nsteps) - 1) * nd + xtra})")
    a("s_barrier")
    if TLK[0] != 1: stamp_begin(a, 72)
    tl(a, 6 if tag == 's1' else 1) if not (tag == 's2' and TLK[0] == 1) else None
    for ins in reads(0, 0, 0):
        a(ins)
    state = {"set": 0}

    def step(i, dyn=False):
        do_dma = (i + NS - 1) <= nsteps - 1
        groups = list(dmas((i + NS - 1) % NS)) if do_dma else []
        if do_dma and switch is not None:
            if dyn:
                a(switch[2])
            elif i + NS - 1 == switch[0]:
                a(switch[1])
        mcount = len(mfmas(0))
        half = mcount // 2
        nm = (nu - 1) * mcount + half
        slots = [[] for _ in range(nu * mcount)]
        for gi, g in enumerate(groups):
            slots[min(nm - 1, gi * nm // max(1, len(groups)))].extend(g)
        if do_dma:
            slots[nm - 1].extend(kadv)
        last_issued = min(i + NS - 1, nsteps - 1)
        mi = 0

        def emit_m(ms):
            nonlocal mi
            for m in ms:
                if not NOMFMA:
                    a(m)
                for ins in slots[mi]:
                    if NODMA and 'buffer_load' in ins:
                        continue
                    a(ins)
                mi += 1

        for ul in range(nu):
            cur = state["set"]
            nxt = 1 - cur
            ms = mfmas(cur)
            if ul + 1 < nu:
                rd = reads(i % NS, ul + 1, nxt)
                for ins in rd:
                    a(ins)
                a(f"s_waitcnt lgkmcnt({len(rd)})")
                emit_m(ms)
            else:
                a("s_waitcnt lgkmcnt(0)")
                emit_m(ms[:half])
                if i + 1 <= nsteps - 1:
                    ex = sum(n for i2, n in (extras or {}).items() if i + 2 - NS <= i2 < i)
                    if not novm: a(f"s_waitcnt vmcnt({(last_issued - (i + 1)) * nd + ex + (xtra if (i + 1 <= NS - 2 and not dyn) else 0)})")
                    if prebar and i in prebar:
                        prebar[i]()
                    a("s_barrier")
                    for ins in reads((i + 1) % NS, 0, nxt):
                        a(ins)
                emit_m(ms[half:])
                if events and i in events:
                    events[i]()
                if tag == 'qg' and i % 2 == 1 and os.environ.get('TLQ'):
                    tl(a, 8 + i // 2)
            state["set"] = nxt

    xtra_block = False
    steady_end = nsteps - NS + 1
    unroll = NS if (nu % 2 == 0 or NS % 2 == 0) else 2 * NS
    nloop = steady_end // unroll
    if nloop >= 2 and nsteps > int(os.environ.get('LOOPMIN', '16')) and not xtra_block:
        UID[0] += 1
        lab = f"L_{tag}_loop{UID[0]}"
        a(f"s_mov_b32 s19, 0")
        a(f"{lab}:")
        for i in range(unroll):
            step(i, dyn=True)
        a(f"s_add_u32 s19, s19, 1\ns_cmp_lt_u32 s19, {nloop}\ns_cbranch_scc1 {lab}")
        start = nloop * unroll
    else:
        start = 0
    for i in range(start, nsteps):
        step(i)
    if TLK[0] != 1: stamp_end(a, PROFOFF[tag], 72)
    tl(a, 7 if tag == 's1' else 2) if not (tag == 's2' and TLK[0] == 1) else None


def stamp_begin(a, base=66):
    if PROF:
        a(f"s_memtime s[{base}:{base+1}]\ns_memrealtime s[{base+4}:{base+5}]\ns_waitcnt lgkmcnt(0)")


def stamp_end(a, off, base=66):
    if PROF:
        a(f"""s_memtime s[{base+2}:{base+3}]
s_memrealtime s[{base+6}:{base+7}]
s_waitcnt lgkmcnt(0)
s_sub_u32 s{base+2}, s{base+2}, s{base}
s_sub_u32 s{base+6}, s{base+6}, s{base+4}
s_load_dwordx2 s[{base}:{base+1}], s[0:1], 96
s_waitcnt lgkmcnt(0)
s_add_u32 s{base}, s{base}, {24<<20}
s_addc_u32 s{base+1}, s{base+1}, 0
v_mov_b32 v6, s{base+2}
v_mov_b32 v7, s{base+6}
s_lshl_b32 s23, s2, 6
s_lshl_b32 s{base+2}, s22, 3
s_add_u32 s23, s23, s{base+2}
s_add_u32 s23, s23, {off}
v_mov_b32 v5, s23
global_store_dwordx2 v5, v[6:7], s[{base}:{base+1}]
""")


TLK = [0]


def tl(a, slot, drain=False):
    if not os.environ.get('TL'):
        return
    if drain:
        a("s_waitcnt vmcnt(0)")
    b = 66 if TLK[0] <= 1 else 80
    va, vb = (6, 7) if TLK[0] <= 1 else (254, 255)
    a(f"""s_memrealtime s[{b}:{b+1}]
s_load_dwordx2 s[{b+2}:{b+3}], s[0:1], 96
s_waitcnt lgkmcnt(0)
s_add_u32 s{b+2}, s{b+2}, {(24<<20) + (512<<10) + TLK[0]*65536 + slot*4}
s_addc_u32 s{b+3}, s{b+3}, 0
s_lshl_b32 s{b+4}, s2, 6
v_mov_b32 v{va}, s{b+4}
v_mov_b32 v{vb}, s{b}
v_cmp_eq_u32 vcc, 0, v0
s_and_saveexec_b64 s[{b+6}:{b+7}], vcc
global_store_dword v{va}, v{vb}, s[{b+2}:{b+3}]
s_mov_b64 exec, s[{b+6}:{b+7}]
""")


def wave_setup(a):
    a("""
v_lshrrev_b32 v1, 6, v0
s_nop 0
v_readfirstlane_b32 s22, v1
v_and_b32 v2, 63, v0
s_nop 2
s_lshl_b32 s18, s22, 10
""")


def t_dma_voff(a, vdst, n, pitch):
    a(f"""
v_lshrrev_b32 v3, 3, v2
v_lshl_add_u32 v3, v1, 3, v3
v_bfe_u32 v4, v3, 1, 3
v_and_b32 v5, 7, v2
v_xor_b32 v4, v4, v5
v_lshlrev_b32 v4, 4, v4
s_mov_b32 s23, {pitch}
v_mul_lo_u32 v3, v3, s23
v_add_u32 v{vdst}, v3, v4
""")
    for i in range(1, n):
        a(f"v_add_u32 v{vdst+i}, {i*64*pitch}, v{vdst}")


def n_dma_voff(a, vdst, n, pitch, MT):
    lpr = MT * 2 // 16
    rows = 64 // lpr
    sh = lpr.bit_length() - 1
    a(f"""
v_lshrrev_b32 v3, {sh}, v2
v_lshl_add_u32 v3, v1, {rows.bit_length()-1}, v3
v_and_b32 v5, {lpr-1}, v2
v_lshrrev_b32 v6, 2, v5
v_and_b32 v4, 3, v3
v_xor_b32 v6, v6, v4
v_and_b32 v5, 3, v5
v_lshlrev_b32 v5, 4, v5
v_lshl_add_u32 v5, v6, 6, v5
s_mov_b32 s23, {pitch}
v_mul_lo_u32 v3, v3, s23
v_add_u32 v{vdst}, v3, v5
""")
    for i in range(1, n):
        a(f"v_add_u32 v{vdst+i}, {i*8*rows*pitch}, v{vdst}")


def t_read_addr(a, vdst, nu, srow, skg2, base, NS, STAGE, stride):
    a(f"""
v_and_b32 v3, 31, v2
v_bfe_u32 v4, v3, 1, 3
v_lshrrev_b32 v5, 5, v2
v_xor_b32 v4, v4, v5
v_xor_b32 v4, s{skg2}, v4
v_add_u32 v3, s{srow}, v3
v_lshlrev_b32 v3, 7, v3
v_lshl_add_u32 v3, v4, 4, v3
""")
    for st in range(NS):
        for ul in range(nu):
            if ul == 0:
                a(f"v_add_u32 v{vdst+st*stride}, {base+st*STAGE}, v3")
            else:
                a(f"v_xor_b32 v{vdst+st*stride+ul}, {ul*32}, v{vdst+st*stride}")


def n_read_addr(a, vdst, sunit, skrow, LP, base, NS, STAGE, stride, nblk=2):
    a(f"""
v_bfe_u32 v3, v2, 2, 2
v_lshrrev_b32 v4, 5, v2
v_lshl_add_u32 v4, v4, 3, v3
s_mov_b32 s23, {LP}
v_mul_lo_u32 v4, v4, s23
v_add_u32 v4, s{skrow}, v4
v_bfe_u32 v5, v2, 4, 1
v_lshl_add_u32 v4, v5, 5, v4
v_and_b32 v5, 3, v2
v_lshl_add_u32 v4, v5, 3, v4
""")
    for b in range(nblk):
        a(f"""
s_add_u32 s23, s{sunit}, {b}
v_xor_b32 v5, s23, v3
v_lshl_add_u32 v5, v5, 6, v4
""")
        for st in range(NS):
            a(f"v_add_u32 v{vdst+st*stride+b}, {base+st*STAGE}, v5")


def gemm(a, tag, WM, WN, KS, ptype, pP, pR, nsteps, NS, opitch, scale=False, switch=None, touch=None):
    assert WM * WN * KS == 8
    MT, NT = 64 * WM, 64 * WN
    PB, RB = MT * 128, NT * 128
    STAGE = PB + RB
    nu = 4 // KS
    ncP, ncR = PB // 8192, RB // 8192
    wave_setup(a)
    lw = (WM * WN).bit_length() - 1
    lm = WM.bit_length() - 1
    a(f"""
s_lshr_b32 s24, s22, {lw}
s_and_b32 s25, s22, {WM-1}
s_lshr_b32 s26, s22, {lm}
s_and_b32 s26, s26, {WN-1}
""")
    if ptype == 'T':
        t_dma_voff(a, DV, ncP, pP)
    else:
        n_dma_voff(a, DV, ncP, pP, MT)
    t_dma_voff(a, DV + ncP, ncR, pR)
    nP = nu if ptype == 'T' else 2
    stride = nP + nu

    def setup():
        if touch:
            touch[0]() if callable(touch[0]) else a(touch[0])
        a(f"s_mul_i32 s27, s24, {nu*2}")
        if ptype == 'T':
            a(f"s_lshl_b32 s28, s25, 6")
            t_read_addr(a, RA, nu, 28, 27, 0, NS, STAGE, stride)
        else:
            a(f"s_lshl_b32 s28, s25, 1\ns_mul_i32 s29, s24, {nu*16*MT*2}")
            n_read_addr(a, RA, 28, 29, MT * 2, 0, NS, STAGE, stride)
        a(f"s_lshl_b32 s28, s26, 6")
        t_read_addr(a, RA + nP, nu, 28, 27, PB, NS, STAGE, stride)
        for i in range(64):
            a(f"v_mov_b32 v{ACC+i}, 0")

    def dmas(st):
        r = []
        for i in range(ncP):
            r.append([f"s_add_u32 m0, s18, {st*STAGE + i*8192}", "s_nop 0",
                      f"buffer_load_dwordx4 v{DV+i}, s[4:7], s16 offen lds"])
        for i in range(ncR):
            r.append([f"s_add_u32 m0, s18, {st*STAGE + PB + i*8192}", "s_nop 0",
                      f"buffer_load_dwordx4 v{DV+ncP+i}, s[8:11], s17 offen lds"])
        return r

    def reads(st, ul, fs):
        f = FR[fs]
        r = []
        if ptype == 'T':
            for b in range(2):
                r.append(f"ds_read_b128 v[{f+4*b}:{f+4*b+3}], v{RA+st*stride+ul} offset:{b*4096}")
        else:
            for b in range(2):
                for rr in range(2):
                    r.append(f"ds_read_b64_tr_b16 v[{f+4*b+2*rr}:{f+4*b+2*rr+1}], v{RA+st*stride+b} offset:{(16*ul+4*rr)*MT*2}")
        for b in range(2):
            r.append(f"ds_read_b128 v[{f+8+4*b}:{f+8+4*b+3}], v{RA+st*stride+nP+ul} offset:{b*4096}")
        return r

    def mfmas(fs):
        f = FR[fs]
        r = []
        for nb in range(2):
            for mb in range(2):
                c = ACC + 16 * (nb * 2 + mb)
                r.append(f"v_mfma_f32_32x32x16_bf16 v[{c}:{c+15}], v[{f+4*mb}:{f+4*mb+3}], v[{f+8+4*nb}:{f+8+4*nb+3}], v[{c}:{c+15}]")
        return r

    kadv = [f"s_add_u32 s16, s16, {128 if ptype == 'T' else 64*pP}", "s_add_u32 s17, s17, 128"]
    pipeline(a, tag, nsteps, NS, nu, dmas, reads, mfmas, None, kadv, switch, setup=setup, xtra=(touch[1] if touch else 0))

    a("s_nop 15\ns_nop 3")
    blocks = [(nb, mb) for nb in range(2) for mb in range(2)]
    if KS == 2:
        a("s_barrier")
        a(f"""
v_lshlrev_b32 v3, 4, v2
s_lshl_b32 s23, s22, 13
v_add_u32 v3, s23, v3
s_xor_b32 s23, s22, 4
s_lshl_b32 s23, s23, 13
v_lshlrev_b32 v4, 4, v2
v_add_u32 v4, s23, v4
s_cmp_eq_u32 s24, 0
s_cbranch_scc1 L_{tag}_x0
""")
        for j in range(8):
            a(f"ds_write_b128 v3, v[{ACC+4*j}:{ACC+4*j+3}] offset:{j*1024}")
        for j in range(32):
            a(f"v_mov_b32 v{ACC+j}, v{ACC+32+j}")
        a(f"s_branch L_{tag}_x1\nL_{tag}_x0:")
        for j in range(8):
            a(f"ds_write_b128 v3, v[{ACC+32+4*j}:{ACC+32+4*j+3}] offset:{j*1024}")
        a(f"L_{tag}_x1:\ns_waitcnt lgkmcnt(0)\ns_barrier")
        for j in range(8):
            a(f"ds_read_b128 v[{ACC+32+4*j}:{ACC+32+4*j+3}], v4 offset:{j*1024}")
        for j in range(8):
            a(f"s_waitcnt lgkmcnt({7-j})")
            for r in range(4):
                a(f"v_add_f32 v{ACC+4*j+r}, v{ACC+4*j+r}, v{ACC+32+4*j+r}")
        blocks = [(0, 0), (0, 1)]
    a(f"""
s_lshl_b32 s23, s26, 6
v_and_b32 v3, 31, v2
v_add_u32 v3, s23, v3
""")
    if KS == 2:
        a("s_lshl_b32 s23, s24, 5\nv_add_u32 v3, s23, v3")
    a(f"""
s_mov_b32 s23, {opitch}
v_mul_lo_u32 v3, v3, s23
v_lshrrev_b32 v4, 5, v2
v_lshl_add_u32 v3, v4, 4, v3
s_lshl_b32 s23, s25, 7
s_add_u32 s23, s23, s21
v_add_u32 v3, s23, v3
v_add_u32 v4, {32*opitch}, v3
""")
    for bi, (nb, mb) in enumerate(blocks):
        c = ACC + 16 * (nb * 2 + mb)
        t = 16 + 8 * (bi % 4)
        if scale:
            for r in range(16):
                a(f"v_mul_f32 v{c+r}, s20, v{c+r}")
        for r in range(8):
            a(f"v_cvt_pk_bf16_f32 v{t+r}, v{c+2*r}, v{c+2*r+1}")
        a("s_nop 1")
        for p in range(2):
            a(f"v_permlane32_swap_b32 v{t+4*p}, v{t+4*p+2}\nv_permlane32_swap_b32 v{t+4*p+1}, v{t+4*p+3}")
        for p in range(2):
            a(f"buffer_store_dwordx4 v[{t+4*p}:{t+4*p+3}], v{3+nb}, s[12:15], 0 offen offset:{mb*64+p*32}")


def gemm_kv(a, tag, NS=4):
    PB, RB = 8192, 16384
    STAGE = PB + RB
    nu = 4
    a(f"""
v_and_b32 v3, 3, v1
v_lshlrev_b32 v3, 10, v3
v_lshl_add_u32 v{DV}, v2, 4, v3
""")
    t_dma_voff(a, DV + 1, 2, 2048)
    stride = 1 + nu

    def dmas(st):
        r_ = [[f"s_add_u32 m0, s18, {st*STAGE}", "s_nop 0", f"buffer_load_dwordx4 v{DV}, s[4:7], s16 offen lds"]]
        for i in range(2):
            r_.append([f"s_add_u32 m0, s18, {st*STAGE + PB + i*8192}", "s_nop 0",
                       f"buffer_load_dwordx4 v{DV+1+i}, s[8:11], s17 offen lds"])
        return r_

    def setup():
        a(f"""
v_bfe_u32 v3, v2, 2, 2
v_lshrrev_b32 v4, 5, v2
v_lshl_add_u32 v4, v4, 3, v3
v_lshlrev_b32 v4, 6, v4
v_bfe_u32 v5, v2, 4, 1
v_lshl_add_u32 v4, v5, 5, v4
v_and_b32 v5, 3, v2
v_lshl_add_u32 v4, v5, 3, v4
v_lshrrev_b32 v5, 2, v1
v_lshl_add_u32 v4, v5, 12, v4
""")
        for st in range(NS):
            a(f"v_add_u32 v{RA+st*stride}, {st*STAGE}, v4")
        a("s_mov_b32 s27, 0\ns_and_b32 s28, s22, 3\ns_lshl_b32 s28, s28, 5")
        t_read_addr(a, RA + 1, nu, 28, 27, PB, NS, STAGE, stride)
        for i in range(16):
            a(f"v_mov_b32 v{ACC+i}, 0")

    def reads(st, ul, fs):
        f = FR[fs]
        r_ = []
        for rr in range(2):
            r_.append(f"ds_read_b64_tr_b16 v[{f+2*rr}:{f+2*rr+1}], v{RA+st*stride} offset:{(16*ul+4*rr)*64}")
        r_.append(f"ds_read_b128 v[{f+8}:{f+11}], v{RA+st*stride+1+ul}")
        return r_

    kadv = ["s_add_u32 s16, s16, 4096", "s_add_u32 s17, s17, 128"]
    a(f"s_cmp_ge_u32 s22, 4\ns_cbranch_scc1 L_{tag}_v")
    for kv in range(2):
        if kv:
            a(f"L_{tag}_v:")

        def mfmas(fs):
            f = FR[fs]
            if kv == 0:
                return ["s_nop 0", f"v_mfma_f32_32x32x16_bf16 v[{ACC}:{ACC+15}], v[{f}:{f+3}], v[{f+8}:{f+11}], v[{ACC}:{ACC+15}]"]
            return ["s_nop 0", f"v_mfma_f32_32x32x16_bf16 v[{ACC}:{ACC+15}], v[{f+8}:{f+11}], v[{f}:{f+3}], v[{ACC}:{ACC+15}]"]

        pipeline(a, tag, 16, NS, nu, dmas, reads, mfmas, None, kadv, setup=setup)
        a("s_nop 15\ns_nop 3")
        a(f"""
s_and_b32 s23, s22, 3
s_add_u32 s23, s21, s23
s_lshl_b32 s23, s23, 12
v_lshlrev_b32 v3, 4, v2
v_add_u32 v3, s23, v3
v_add_u32 v3, {WS_KF + 2048*kv}, v3
""")
        for r_ in range(8):
            a(f"v_cvt_pk_bf16_f32 v{16+r_}, v{ACC+2*r_}, v{ACC+2*r_+1}")
        for p in range(2):
            a(f"buffer_store_dwordx4 v[{16+4*p}:{16+4*p+3}], v3, s[12:15], 0 offen offset:{p*1024}")
        if kv == 0:
            tl(a, 5, True)
            a("s_endpgm")


def kernel_header(a, name):
    a.lines.append(f".globl {name}\n.p2align 8\n.type {name},@function\n{name}:")


def kernel_desc(name, vgpr, sgpr=100):
    return f""".amdhsa_kernel {name}
  .amdhsa_next_free_vgpr {vgpr}
  .amdhsa_next_free_sgpr {sgpr}
  .amdhsa_accum_offset {(vgpr+3)//4*4}
  .amdhsa_group_segment_fixed_size 0
  .amdhsa_kernarg_size 104
  .amdhsa_user_sgpr_count 2
  .amdhsa_user_sgpr_kernarg_segment_ptr 1
  .amdhsa_system_sgpr_workgroup_id_x 1
.end_amdhsa_kernel
"""


WS_BYTES = 40 << 20


def g4(a):
    a("""
s_and_b32 s50, s30, 1
s_lshl_b32 s50, s50, 2
s_and_b32 s51, s31, 3
s_add_u32 s50, s50, s51
s_lshr_b32 s51, s30, 1
s_lshl_b32 s51, s51, 2
s_lshr_b32 s52, s31, 2
s_add_u32 s51, s51, s52
""")
    if os.environ.get('SAMETILE') == '1':
        a("s_mov_b32 s50, 0\ns_mov_b32 s51, 0")
    if os.environ.get('SAMETILE') == '2':
        a("s_and_b32 s50, s30, 7\ns_mov_b32 s51, s30")
    if os.environ.get('SAMETILE') == '3':
        a("s_and_b32 s50, s2, 7\ns_lshr_b32 s51, s2, 3")
    srd(a, 4, 48, 49, 2048 * 4096, WS_AB)
    srd(a, 8, 32, 33, 2048 * 4096)
    srd(a, 12, 36, 37, 2048 * 4096)
    a("""
s_lshl_b32 s16, s50, 19
s_lshl_b32 s17, s51, 19
s_lshl_b32 s21, s50, 8
s_add_u32 s21, s21, s17
s_add_u32 s21, s21, 2048
s_add_u32 s53, s17, 4096
""")
    sw = f"""
s_mov_b32 s8, s34
s_mov_b32 s9, s35
s_sub_u32 s17, s17, 4096
s_add_u32 s16, s16, {1024*4096 - 4096}
s_mov_b32 s53, -1
"""
    uid = [0]

    class Dyn(str):
        pass
    dyn = f"""
s_cmp_eq_u32 s17, s53
s_cselect_b32 s8, s34, s8
s_cselect_b32 s9, s35, s9
s_cselect_b32 s23, 4096, 0
s_cselect_b32 s54, {1024*4096 - 4096}, 0
s_cselect_b32 s53, -1, s53
s_sub_u32 s17, s17, s23
s_add_u32 s16, s16, s54
"""
    gemm(a, "g4", 2, 2, 2, 'T', 4096, 4096, 64, 4, 4096, switch=(32, sw, dyn))


TPS = 8
ASTAGE = TPS * 4096
ANS = 3
NSTG = 64 // TPS
Q0, KF_, VF_, P_, ONES, LA, LB, NEGM, SX, SY, OA, OB = 16, 32, 40, 48, 56, 60, 64, 72, 88, 104, 120, 136
ST, KT, VT, PT = 152, 168, 176, 184
THR1 = 2.0 ** int(os.environ.get('THR1', '92'))
THR2 = 2.0 ** 120
MARGIN = int(os.environ.get('MARGIN', '100'))


def r(b, n):
    return f"v[{b}:{b+n-1}]"


def mf32(d, a_, b_, c):
    return f"v_mfma_f32_32x32x16_bf16 {r(d,16)}, {r(a_,4)}, {r(b_,4)}, {r(c,16) if isinstance(c,int) else c}"


def mf16(d, a_, b_, c):
    return f"v_mfma_f32_16x16x32_bf16 {r(d,4)}, {r(a_,4)}, {r(b_,4)}, {r(c,4)}"


def attn_dma(a, i):
    a(f"s_add_u32 m0, s17, {i*8192}\ns_nop 0\nbuffer_load_dwordx4 v{12+i}, s[12:15], s16 offen lds")


def attn_dma_adv(a):
    a(f"""
s_add_u32 s16, s16, {ASTAGE}
s_add_u32 s17, s17, {ASTAGE}
s_sub_u32 s30, s17, {ANS*ASTAGE}
s_cmp_ge_u32 s17, {ANS*ASTAGE}
s_cselect_b32 s17, s30, s17
""")


def cap(fn, *args):
    t = Asm()
    fn(t, *args)
    return [l.strip() for l in t.lines]


def attn_tile(a, g, tt, X, Y, Oc, Od, lc, ld, H, nx):
    cur, nxt = (g % ANS) * ASTAGE, ((g + 1) % ANS) * ASTAGE

    def rd(dst, t2, part):
        if g == NSTG - 1 and t2 >= TPS:
            t2 = TPS - 1
        base = cur if t2 < TPS else nxt
        off = base + (t2 % TPS) * 4096 + part * 1024
        a(f"ds_read_b128 {r(dst,4)}, v{10 + off // 65536} offset:{off % 65536}")
    last = (tt == TPS - 1)
    E = lambda i: a(f"v_exp_f32 v{X+i}, v{X+i}")
    C = lambda i: a(f"v_cvt_pk_bf16_f32 v{P_+i}, v{X+2*i}, v{X+2*i+1}")

    def hook(k):
        for ins in H.get(k, []):
            a(ins)
    hook('pre')
    a(f"s_waitcnt lgkmcnt({2 + nx})")
    a(mf32(Y, KF_, Q0, NEGM))
    for i in range(4): E(i)
    a("s_waitcnt lgkmcnt(0)")
    hook(0)
    if tt > 0:
        a(mf32(Od, VF_ + 4, P_ + 4, Od))
    if last:
        rd(VF_ + 4, tt, 3)
    for i in range(4, 6): E(i)
    hook('m0')
    for i in range(6, 8): E(i)
    hook(1)
    if tt > 0:
        a(mf16(ld, ONES, P_ + 4, ld))
    for i in range(4): C(i)
    a(mf32(Y, KF_ + 4, Q0 + 4, Y))
    hook(2)
    rd(KF_, tt + 2, 0)
    rd(KF_ + 4, tt + 2, 1)
    for i in range(8, 10): E(i)
    hook('m1')
    for i in range(10, 12): E(i)
    a(mf32(Od, VF_, P_, Oc))
    if not last:
        rd(VF_ + 4, tt, 3)
    rd(VF_, tt + 1, 2)
    for i in range(12, 14): E(i)
    hook('m2')
    for i in range(14, 16): E(i)
    hook(3)
    a(mf16(ld, ONES, P_, lc))
    hook('end')
    for i in range(4, 8): C(i)
    hook('m3')
    if last:
        assert not H.get('end')
        a("s_waitcnt lgkmcnt(3)\ns_nop 0")
        a(mf32(Od, VF_ + 4, P_ + 4, Od))
        a(mf16(ld, ONES, P_ + 4, ld))


PEND = {}


def attn_slow(a, tag, Oold, Onew, lold, lnew, Snext, sbase, pend=None):
    a(f"L_{tag}_slow:")
    a("s_nop 15")
    a(f"v_cmp_nlt_f32 vcc, v{lnew}, s29\ns_nop 4\ns_cbranch_vccnz L_{tag}_heavy")
    a(f"""
v_frexp_exp_i32_f32 v3, v{lnew}
v_add_u32 v3, {MARGIN}, v3
v_cvt_f32_i32 v4, v3
v_sub_u32 v3, 0, v3
""")
    for i in range(16): a(f"v_ldexp_f32 v{Onew+i}, v{Onew+i}, v3")
    for i in range(4): a(f"v_ldexp_f32 v{lnew+i}, v{lnew+i}, v3")
    for i in range(16): a(f"v_sub_f32 v{NEGM+i}, v{NEGM+i}, v4")
    for i in range(16): a(f"v_sub_f32 v{Snext+i}, v{Snext+i}, v4")
    a(f"s_nop 1\ns_branch L_{tag}_ret")
    a(f"L_{tag}_heavy:")
    a("s_waitcnt vmcnt(0)")
    np_, AM = pend or (0, 0)
    for i in range(np_):
        a(f"v_mfma_f32_16x16x32_bf16 {r(VB+12+4*i,4)}, {r(AM,4)}, {r(VB+4*i,4)}, 0")
    a("s_nop 15")
    for i in range(np_):
        a(f"v_max3_f32 v{VMAX}, |v{VB+12+4*i}|, |v{VB+13+4*i}|, v{VMAX}\nv_max3_f32 v{VMAX}, |v{VB+14+4*i}|, |v{VB+15+4*i}|, v{VMAX}")
    a(f"s_waitcnt lgkmcnt(0)\nv_log_f32 v5, v{lold}\nv_add_u32 v6, {sbase}, v10\ns_mov_b32 s30, 0")
    a(f"L_{tag}_h1:")
    a(f"ds_read_b128 {r(KT,4)}, v6\nds_read_b128 {r(KT+4,4)}, v6 offset:1024\ns_waitcnt lgkmcnt(0)")
    a(mf32(ST, KT, Q0, NEGM)); a(mf32(ST, KT + 4, Q0 + 4, ST))
    a("s_nop 15")
    for i in range(8): a(f"v_max3_f32 v5, v{ST+2*i}, v{ST+2*i+1}, v5")
    a(f"v_add_u32 v6, 4096, v6\ns_add_u32 s30, s30, 1\ns_cmp_lt_u32 s30, {TPS}\ns_cbranch_scc1 L_{tag}_h1")
    a(f"""
v_mov_b32 v6, v5
s_nop 1
v_permlane32_swap_b32 v5, v6
s_nop 1
v_max_f32 v5, v5, v6
v_ceil_f32 v4, v5
v_add_f32 v4, {f32bits(float(MARGIN))}, v4
v_cvt_i32_f32 v3, v4
v_sub_u32 v3, 0, v3
""")
    for i in range(16): a(f"v_ldexp_f32 v{Onew+i}, v{Oold+i}, v3")
    for i in range(4): a(f"v_ldexp_f32 v{lnew+i}, v{lold+i}, v3")
    for i in range(16): a(f"v_sub_f32 v{NEGM+i}, v{NEGM+i}, v4")
    for i in range(16): a(f"v_sub_f32 v{Snext+i}, v{Snext+i}, v4")
    a(f"v_add_u32 v6, {sbase}, v10\ns_mov_b32 s30, 0")
    a(f"L_{tag}_h2:")
    a(f"ds_read_b128 {r(KT,4)}, v6\nds_read_b128 {r(KT+4,4)}, v6 offset:1024\nds_read_b128 {r(VT,4)}, v6 offset:2048\nds_read_b128 {r(VT+4,4)}, v6 offset:3072\ns_waitcnt lgkmcnt(0)")
    a(mf32(ST, KT, Q0, NEGM)); a(mf32(ST, KT + 4, Q0 + 4, ST))
    a("s_nop 15")
    for i in range(16): a(f"v_exp_f32 v{ST+i}, v{ST+i}")
    a("s_nop 0")
    for i in range(8): a(f"v_cvt_pk_bf16_f32 v{PT+i}, v{ST+2*i}, v{ST+2*i+1}")
    a("s_nop 1")
    a(mf32(Onew, VT, PT, Onew)); a(mf32(Onew, VT + 4, PT + 4, Onew))
    a(mf16(lnew, ONES, PT, lnew)); a(mf16(lnew, ONES, PT + 4, lnew))
    a(f"v_add_u32 v6, 4096, v6\ns_add_u32 s30, s30, 1\ns_cmp_lt_u32 s30, {TPS}\ns_cbranch_scc1 L_{tag}_h2")
    a("s_nop 7")
    for i in range(4 * np_):
        a(f"v_mov_b32 v{VB+i}, 0")
    a(f"s_branch L_{tag}_ret")


N0 = int(os.environ.get('N0', '12'))
TS = eval(os.environ.get('TS', '[-1,-1,-1,-1,-1,-1, 13]'))


def touch_j(a, j):
    if j < 6:
        sr, vo, so, inc = ((44, 252, 100, 512), (36, 253, 101, 256 * 2048))[j % 2]
    else:
        sr, vo, so, inc = (8, 251, 54, 0)
    a(f"buffer_load_dword v249, v{vo}, s[{sr}:{sr+3}], s{so} offen\ns_add_u32 s{so}, s{so}, {inc}")


def q_gemm(a, setup_hook, role):
    NS = int(os.environ.get('QNS', '4'))
    STAGE = 28672
    F = [88, 104]
    F2 = [32, 40]
    D_, R_ = 152, 156
    AC, AC2 = OA, NEGM
    SV = 248
    NB = [0]
    stride = 5

    def dmas(st):
        if role == 'F':
            return []
        return [[f"s_add_u32 m0, s20, {st*STAGE + i*1024}", "s_nop 0", f"buffer_load_dwordx4 v{D_+i}, s[96:99], s16 offen lds"] for i in range(4)]

    def setup():
        setup_hook(role)
        a(f"""
v_bfe_u32 v3, v2, 2, 2
v_lshrrev_b32 v4, 5, v2
v_lshl_add_u32 v4, v4, 3, v3
v_bfe_u32 v5, v2, 4, 1
v_and_b32 v6, 3, v2
v_lshlrev_b32 v6, 3, v6
v_lshl_add_u32 v6, v5, 5, v6
v_lshl_add_u32 v7, v4, 6, v6
v_lshl_add_u32 v4, v4, 7, v6
v_lshrrev_b32 v3, 1, v3
v_lshrrev_b32 v5, 2, v1
v_xor_b32 v3, v3, v5
v_lshl_add_u32 v4, v3, 6, v4
v_add_u32 v{R_+25}, 24576, v7
v_add_u32 v{R_+26}, {24576+2*STAGE}, v7
v_add_u32 v{R_+27}, {24576+4*STAGE}, v7
""")
        for st in range(NS):
            a(f"v_add_u32 v{R_+st*stride}, {st*STAGE}, v4")
        a("s_mov_b32 s27, 0\ns_and_b32 s25, s22, 3\ns_lshl_b32 s25, s25, 5")
        t_read_addr(a, R_ + 1, 4, 25, 27, 8192, NS, STAGE, stride)
        for i in range(16):
            a(f"v_mov_b32 v{AC+i}, 0")
        if role in ('PK', 'PV'):
            for i in range(16):
                a(f"v_mov_b32 v{AC2+i}, 0")

    def reads(st, ul, fs):
        f = F[fs]
        r_ = []
        for q in range(2):
            u = 2 * ul + q
            for rr in range(2):
                r_.append(f"ds_read_b64_tr_b16 v[{f+4*q+2*rr}:{f+4*q+2*rr+1}], v{R_+st*stride} offset:{(16*u+4*rr)*128}")
            r_.append(f"ds_read_b128 v[{f+8+4*q}:{f+11+4*q}], v{R_+st*stride+1+u}")
            if role in ('PK', 'PV'):
                g = F2[fs]
                for rr in range(2):
                    r_.append(f"ds_read_b64_tr_b16 v[{g+4*q+2*rr}:{g+4*q+2*rr+1}], v{R_+25+st//2} offset:{(st%2)*STAGE+(16*u+4*rr)*64}")
        return r_

    def mfmas(fs):
        f, g = F[fs], F2[fs]
        r_ = []
        for q in range(2):
            r_.append(f"v_mfma_f32_32x32x16_bf16 v[{AC}:{AC+15}], v[{f+4*q}:{f+4*q+3}], v[{f+8+4*q}:{f+11+4*q}], v[{AC}:{AC+15}]")
            if role == 'PK':
                r_.append(f"v_mfma_f32_32x32x16_bf16 v[{AC2}:{AC2+15}], v[{g+4*q}:{g+4*q+3}], v[{f+8+4*q}:{f+11+4*q}], v[{AC2}:{AC2+15}]")
            if role == 'PV':
                r_.append(f"v_mfma_f32_32x32x16_bf16 v[{AC2}:{AC2+15}], v[{f+8+4*q}:{f+11+4*q}], v[{g+4*q}:{g+4*q+3}], v[{AC2}:{AC2+15}]")
        return r_

    kadv = ["s_add_u32 s16, s16, s17"]

    def ev_touch(js, first):
        a(f"s_cmp_lg_u32 s22, 7\ns_cbranch_scc1 L_qt{js[0]}")
        for j in js:
            touch_j(a, j)
        a(f"L_qt{js[0]}:")

    ev, ex = {}, {}
    SJ = int(os.environ.get('SJ', '12'))
    acts = {SJ: [lambda: side_jobs(a, role)]}
    ex[SJ] = 4
    if role == 'F':
        for t in sorted(set(t for t in TS if 0 <= t < 16)):
            js = [j for j in range(len(TS)) if TS[j] == t]
            acts.setdefault(t, []).append(lambda js=js: ev_touch(js, False))
    ev = {t: (lambda l=l: [f() for f in l]) for t, l in acts.items()}
    pipeline(a, "qg", 16, NS, 2, dmas, reads, mfmas, None, kadv, setup=setup, events=ev, extras=ex, novm=(role == 'F'))
    a(f"s_mov_b32 s23, {f32bits(QSCALE)}\ns_nop 11")
    if role in ('PK', 'PV'):
        for i in range(8):
            a(f"v_cvt_pk_bf16_f32 v{F[0]+i}, v{AC2+2*i}, v{AC2+2*i+1}")
        a(f"v_add_u32 v3, s24, v9")
        for p in range(2):
            a(f"buffer_store_dwordx4 v[{F[0]+4*p}:{F[0]+4*p+3}], v3, s[12:15], 0 offen offset:{p*1024 + (2048 if role == 'PV' else 0)}")
    for i in range(16):
        a(f"v_mul_f32 v{AC+i}, s23, v{AC+i}")
    for i in range(8):
        a(f"v_cvt_pk_bf16_f32 v{Q0+i}, v{AC+2*i}, v{AC+2*i+1}")
    a(f"""
buffer_store_dwordx4 v[{Q0}:{Q0+3}], v9, s[12:15], s26 offen
buffer_store_dwordx4 v[{Q0+4}:{Q0+7}], v9, s[12:15], s26 offen offset:1024
s_waitcnt vmcnt({4 if role in ('PK', 'PV') else 2})
""")
    side_jobs2(a, role)


def side_jobs(a, role):
    T = 200
    a(f"""
v_lshlrev_b32 v6, 5, v2
s_cmp_ge_u32 s22, 4
s_cbranch_scc1 L_sj_emv{role}
s_lshl_b32 s64, s2, 2
s_add_u32 s64, s64, s22
s_sub_u32 s31, 2048, s64
s_lshl_b32 s23, s64, 11
s_lshl_b32 s31, s31, 11
s_mov_b32 s19, {512*2048}
buffer_load_dwordx4 v[{T}:{T+3}], v6, s[80:83], s23 offen
buffer_load_dwordx4 v[{T+4}:{T+7}], v6, s[80:83], s23 offen offset:16
buffer_load_dwordx4 v[{T+8}:{T+11}], v6, s[80:83], s31 offen
buffer_load_dwordx4 v[{T+12}:{T+15}], v6, s[80:83], s31 offen offset:16
buffer_load_dwordx4 v[{T+16}:{T+19}], v6, s[84:87], s19 offen
buffer_load_dwordx4 v[{T+20}:{T+23}], v6, s[84:87], s19 offen offset:16
s_branch L_sj_1{role}
L_sj_emv{role}:
s_lshl_b32 s64, s2, 1
s_add_u32 s64, s64, s22
s_sub_u32 s64, s64, 4
s_cmp_ge_u32 s22, 6
s_cselect_b32 s64, 0x10000, s64
s_lshl_b32 s31, s2, 3
s_add_u32 s31, s31, s22
s_cmp_eq_u32 s31, 6
s_cselect_b32 s64, 512, s64
s_lshl_b32 s23, s64, 11
s_mov_b32 s19, {1024*2048}
buffer_load_dwordx4 v[{T}:{T+3}], v6, s[84:87], s23 offen
buffer_load_dwordx4 v[{T+4}:{T+7}], v6, s[84:87], s23 offen offset:16
buffer_load_dwordx4 v[{T+16}:{T+19}], v6, s[80:83], s19 offen
buffer_load_dwordx4 v[{T+20}:{T+23}], v6, s[80:83], s19 offen offset:16
L_sj_1{role}:
""")


def side_jobs2(a, role):
    T = 200
    o = T + 24
    a(f"""
v_lshlrev_b32 v6, 5, v2
v_mov_b32 v7, 0
s_cmp_ge_u32 s22, 4
s_cbranch_scc1 L_sj_emv2{role}
""")
    for j in range(8):
        a(f"""
v_lshlrev_b32 v{o+16}, 16, v{T+j}
v_and_b32 v{o+17}, 0xffff0000, v{T+j}
v_lshlrev_b32 v{o+18}, 16, v{T+8+j}
v_and_b32 v{o+19}, 0xffff0000, v{T+8+j}
v_add_f32 v{o+20}, v{o+16}, v{o+18}
v_add_f32 v{o+21}, v{o+17}, v{o+19}
v_sub_f32 v{o+22}, v{o+16}, v{o+18}
v_sub_f32 v{o+23}, v{o+17}, v{o+19}
v_cvt_pk_bf16_f32 v{o+j}, v{o+20}, v{o+21}
v_cvt_pk_bf16_f32 v{o+8+j}, v{o+22}, v{o+23}
v_dot2c_f32_bf16 v7, v{o+j}, v{T+16+j}
""")
    a(f"""
s_lshl_b32 s23, s64, 11
s_add_u32 s31, s23, {WS_XM}
s_add_u32 s23, s23, {WS_XP}
buffer_store_dwordx4 v[{o}:{o+3}], v6, s[12:15], s23 offen
buffer_store_dwordx4 v[{o+4}:{o+7}], v6, s[12:15], s23 offen offset:16
buffer_store_dwordx4 v[{o+8}:{o+11}], v6, s[12:15], s31 offen
buffer_store_dwordx4 v[{o+12}:{o+15}], v6, s[12:15], s31 offen offset:16
""")
    wave_sum(a, 7, 3)
    a(f"""
v_cvt_pk_bf16_f32 v7, v7, v7
s_lshl_b32 s23, s64, 1
s_add_u32 s23, s23, {WS_AT + 512*ATP}
v_mov_b32 v4, 0
s_mov_b64 exec, 1
buffer_store_short v7, v4, s[12:15], s23 offen
s_mov_b64 exec, -1
s_branch L_sj_done{role}
L_sj_emv2{role}:
s_cmp_gt_u32 s64, 512
s_cbranch_scc1 L_sj_done{role}
""")
    for j in range(8):
        a(f"v_dot2c_f32_bf16 v7, v{T+j}, v{T+16+j}")
    a("s_nop 3")
    wave_sum(a, 7, 3)
    a(f"""
v_mov_b32 v5, 0
v_cvt_pk_bf16_f32 v7, v7, v5
v_cmp_eq_u32 vcc, 0, v2
s_mul_i32 s23, s64, {ATP}
s_add_u32 s31, s23, {WS_BT + 2048}
s_add_u32 s23, s23, {WS_AT + 2048}
v_cndmask_b32 v7, v5, v7, vcc
v_lshlrev_b32 v4, 2, v2
s_mov_b32 exec_hi, 0
buffer_store_dword v7, v4, s[12:15], s23 offen
buffer_store_dword v5, v4, s[12:15], s31 offen
s_mov_b64 exec, -1
L_sj_done{role}:
""")


def kv_dma(a, g, i):
    a(f"s_add_u32 m0, s18, {(g % ANS)*ASTAGE + i*8192}\ns_mov_b32 s19, {g*ASTAGE}\nbuffer_load_dwordx4 v{12+i}, s[12:15], s19 offen lds")


def attention(a, tag, endlabel):
    wave_setup(a)
    stamp_begin(a)
    tl(a, 3)
    def hook():
        a(f"""
v_lshlrev_b32 v9, 4, v2
v_lshl_add_u32 v12, v1, 10, v9
v_add_u32 v12, {WS_KF}, v12
v_add_u32 v13, 8192, v12
v_add_u32 v14, 16384, v12
v_add_u32 v15, 24576, v12
""")
        for g in range(2):
            for i in range(4): kv_dma(a, g, i)
        a(f"""
v_and_b32 v5, 31, v2
v_and_b32 v4, 3, v1
v_lshl_add_u32 v4, v4, 5, v5
v_lshrrev_b32 v5, 5, v2
v_lshlrev_b32 v5, 4, v5
v_lshl_add_u32 v8, v4, 11, v5
v_lshrrev_b32 v5, 2, v1
v_lshl_add_u32 v8, v5, 6, v8
s_mov_b32 s28, {f32bits(THR1)}
s_mov_b32 s29, {f32bits(THR2)}
v_mov_b32 v10, v9
v_add_u32 v11, 65536, v9
""")
        stage1_setup(a)
        stage1_setup2(a)
        verify_setup(a)
        a(f"""
v_lshrrev_b32 v4, 2, v2
v_lshrrev_b32 v5, 4, v2
v_xor_b32 v4, v4, v5
v_and_b32 v4, 1, v4
v_cmp_eq_u32 vcc, 0, v4
v_mov_b32 v5, 0x3f803f80
s_nop 1
v_cndmask_b32 v{ONES}, 0, v5, vcc
v_mov_b32 v{ONES+1}, v{ONES}
v_mov_b32 v{ONES+2}, v{ONES}
v_mov_b32 v{ONES+3}, v{ONES}
""")
        for i in range(16): a(f"v_mov_b32 v{OB+i}, 0")
        for i in range(4): a(f"v_mov_b32 v{LB+i}, 0")
        a(f"v_mov_b32 v{VMAX}, 0")
    a(f"""
v_lshlrev_b32 v3, 4, v2
s_lshl_b32 s23, s2, 14
s_lshl_b32 s30, s22, 11
s_add_u32 s23, s23, s30
buffer_load_dwordx4 v[{Q0}:{Q0+3}], v3, s[12:15], s23 offen
buffer_load_dwordx4 v[{Q0+4}:{Q0+7}], v3, s[12:15], s23 offen offset:1024
""")
    hook()
    for b in range(2):
        for i in range(4): s1_dma(a, b, i)
    a("s_waitcnt vmcnt(12)\ns_barrier")
    a(f"ds_read_b128 {r(KF_,4)}, v10\nds_read_b128 {r(KF_+4,4)}, v10 offset:1024")
    a("s_waitcnt lgkmcnt(0)")
    a(mf32(SX, KF_, Q0, "0")); a(mf32(SX, KF_ + 4, Q0 + 4, SX))
    a(f"ds_read_b128 {r(KF_,4)}, v10 offset:4096\nds_read_b128 {r(KF_+4,4)}, v10 offset:{4096+1024}")
    a(f"ds_read_b128 {r(VF_+4,4)}, v10 offset:3072\nds_read_b128 {r(VF_,4)}, v10 offset:2048")
    a("s_nop 11")
    a(f"v_max3_f32 v5, v{SX}, v{SX+1}, v{SX+2}")
    for i in range(6): a(f"v_max3_f32 v5, v{SX+3+2*i}, v{SX+4+2*i}, v5")
    a(f"""
v_max_f32 v5, v{SX+15}, v5
v_mov_b32 v6, v5
s_nop 1
v_permlane32_swap_b32 v5, v6
s_nop 1
v_max_f32 v5, v5, v6
v_add_f32 v5, {f32bits(float(MARGIN))}, v5
""")
    for i in range(16): a(f"v_sub_f32 v{NEGM+i}, 0, v5")
    for i in range(16): a(f"v_sub_f32 v{SX+i}, v{SX+i}, v5")
    tl(a, 4)

    HK = {}

    def add(g, tt, slot, lines):
        HK.setdefault((g, tt), {}).setdefault(slot, []).extend(lines)
    BT_ = TPS - 2
    for g in range(NSTG):
        add(g, BT_, 'pre', ["s_waitcnt vmcnt(0)" + (" lgkmcnt(0)" if g == NSTG - 1 else ""), "s_barrier"])
        if g + 2 < NSTG:
            for i in range(4): add(g, BT_, i, cap(kv_dma, g + 2, i))
    add(0, 3, 'pre', ["s_waitcnt vmcnt(0)", "s_barrier"])

    def s1_step(g, tt, buf):
        add(g, tt, 'end', cap(s1_reads, buf))
        for i in range(4): add(g, tt + 1, f"m{i}", cap(s1_mfma, i))
    s1_step(0, 3, 0)
    for j in range(7):
        s1_step(j, BT_, (j + 1) & 1)
        if j + 2 <= 7:
            for i in range(4): add(j + 1, 0, i, cap(s1_dma, j & 1, i))
    add(7, 0, 'pre', f"""
s_and_b32 s27, s22, 1
s_lshr_b32 s25, s22, 1
s_and_b32 s23, s22, 3
s_lshl_b32 s23, s23, 13
s_cmp_ge_u32 s22, 4
s_cselect_b32 s30, 0, {S1B - (5 % ANS)*ASTAGE}
s_add_u32 s30, s30, {(5 % ANS)*ASTAGE}
s_add_u32 s23, s23, s30
v_add_u32 v{S1A}, s23, v9
s_lshl_b32 s23, s25, 11
s_lshl_b32 s30, s27, 13
s_add_u32 s23, s23, s30
v_add_u32 v{S1A+2}, s23, v9
v_add_u32 v{S1A+1}, {S1B}, v{S1A+2}
v_add_u32 v{S1A+2}, {(5 % ANS)*ASTAGE}, v{S1A+2}
""".strip().split("\n"))
    for j in range(8):
        add(7, 1 + j // 3, j % 3, [f"ds_write_b128 v{S1A}, v[{S1ACC+4*j}:{S1ACC+4*j+3}] offset:{j*1024}"])
    add(7, BT_, 'end', [f"ds_read_b128 v[{S1ACC+8*i+4*j}:{S1ACC+8*i+4*j+3}], v{S1A+1+i//2} offset:{(i%2)*16384+j*1024}" for i in range(4) for j in range(2)])
    G0 = int(os.environ.get('G0', '2'))
    for q_ in range(4):
        add(G0 + q_, 7, 3, f"""s_lshr_b32 s23, s22, 1
s_cmp_lg_u32 s23, {q_}
s_cbranch_scc1 L_wt{q_}
s_cmp_ge_u32 s22, 4
s_cselect_b32 s80, s94, s92
s_cselect_b32 s81, s95, s93
s_mov_b32 s82, {1024*4096}
s_mov_b32 s83, 0x00020000
s_lshr_b32 s23, s2, 3
v_bfe_u32 v3, v0, 4, 4
v_and_b32 v4, 15, v0
v_lshlrev_b32 v4, 7, v4
v_lshl_add_u32 v3, v3, 12, v4
s_and_b32 s30, s23, 15
s_lshl_b32 s30, s30, 16
s_lshr_b32 s31, s23, 4
s_lshl_b32 s31, s31, 21
s_add_u32 s30, s30, s31
s_and_b32 s31, s2, 1
s_lshl_b32 s31, s31, 20
s_add_u32 s30, s30, s31
s_bitcmp1_b32 s2, 2
s_cbranch_scc1 L_wc{q_}
s_mov_b32 s80, s88
s_mov_b32 s81, s89
s_mov_b32 s82, {1024*2048}
v_lshlrev_b32 v3, 7, v0
s_lshl_b32 s30, s23, 16
L_wc{q_}:
buffer_load_dword v{VB+24}, v3, s[80:83], s30 offen
L_wt{q_}:""".split("\n"))
    def vchk(g, loads, AM):
        PEND[g] = (len(loads), AM)
        for i, ld_ in enumerate(loads):
            add(*((0, 4) if g == 0 else (g - 1, 7)), i, ld_)
            add(g, BT_, i, [f"v_mfma_f32_16x16x32_bf16 {r(VB+12+4*i,4)}, {r(AM,4)}, {r(VB+4*i,4)}, 0"])
            add(g, TPS - 1, i, [f"v_max3_f32 v{VMAX}, |v{VB+12+4*i}|, |v{VB+13+4*i}|, v{VMAX}", f"v_max3_f32 v{VMAX}, |v{VB+14+4*i}|, |v{VB+15+4*i}|, v{VMAX}"])
    ldn = lambda i, off: [f"buffer_load_dwordx4 v[{VB+4*i}:{VB+4*i+3}], v{VAD}, s[76:79], 0 offen offset:{off}"]
    vchk(0, [ldn(0, 0)], AMN)
    vchk(1, [ldn(0, 512), ldn(1, 1024), ldn(2, 1536)], AMN)
    vchk(2, [ldn(0, 2048), ldn(1, 2560)], AMN)
    vchk(3, [ldn(0, 3072), ldn(1, 3584)], AMN)
    add(3, 7, 'pre', cap(verify_w_switch))
    vchk(4, [[f"buffer_load_dwordx4 v[{VB+4*i}:{VB+4*i+3}], v{VAD}, s[84:87], s63 offen offset:{i*512}"] for i in range(2)]
         + [[f"buffer_load_dwordx4 v[{VB+8}:{VB+11}], v7, s[76:79], 0 offen"]], AMN)
    add(4, 7, 'pre', cap(verify_r_switch))
    ldr = lambda i: [f"buffer_load_dwordx4 v[{VB+4*i}:{VB+4*i+3}], v{VRV}, s[76:79], 0 offen", f"v_add_u32 v{VRV}, v{VRV}, v{VAD}"]
    vchk(5, [ldr(0), ldr(1), [f"buffer_load_dwordx4 v[{VB+8}:{VB+11}], v7, s[76:79], 0 offen"]], AMR)
    vchk(6, [ldr(0), ldr(1)], AMR)
    add(7, 0, 'pre', f"""
s_mov_b32 s23, {f32bits(VTOL)}
v_cmp_nle_f32 vcc, v{VMAX}, s23
s_lshl_b32 s30, s58, 2
s_add_u32 s30, s30, {WS_FLAG}
v_mov_b32 v4, 0
s_cmp_lg_u64 vcc, 0
s_cselect_b32 s23, 1, 0
v_mov_b32 v3, s23
s_mov_b64 exec, 1
buffer_store_dword v3, v4, s[12:15], s30 offen
s_mov_b64 exec, -1
""".strip().split("\n"))

    nx = 0
    for g in range(NSTG):
        Oold, Onew, lold, lnew = (OB, OA, LB, LA) if g % 2 == 0 else (OA, OB, LA, LB)
        for tt in range(TPS):
            X, Y = (SX, SY) if tt % 2 == 0 else (SY, SX)
            H = HK.get((g, tt), {})
            attn_tile(a, g, tt, X, Y, Oold if tt == 0 else Onew, Onew, lold if tt == 0 else lnew, lnew, H, nx)
            nx = sum(1 for k in ('m2', 3, 'end', 'm3') for ins in H.get(k, []) if ins.startswith("ds_"))
        a(f"""
s_nop 7
v_cmp_nlt_f32 vcc, v{lnew}, s28
s_nop 1
s_cbranch_vccnz L_{tag}{g}_slow
L_{tag}{g}_ret:
""")
    tl(a, 2)
    a(f"s_nop 3\nv_rcp_f32 v7, v{LB}\ns_add_u32 s31, s26, {WS_O}")
    for i in range(16):
        a(f"v_mul_f32 v{OB+i}, v7, v{OB+i}")
    for i in range(8): a(f"v_cvt_pk_bf16_f32 v{P_+i}, v{OB+2*i}, v{OB+2*i+1}")
    a("s_nop 1")
    for p in range(2):
        a(f"v_permlane32_swap_b32 v{P_+4*p}, v{P_+4*p+2}\nv_permlane32_swap_b32 v{P_+4*p+1}, v{P_+4*p+3}")
    for p in range(2):
        a(f"buffer_store_dwordx4 {r(P_+4*p,4)}, v8, s[12:15], s31 offen offset:{p*32}")
    for r_ in range(8):
        a(f"v_add_f32 v{S1ACC+r_}, v{S1ACC+r_}, v{S1ACC+8+r_}\nv_add_f32 v{S1ACC+16+r_}, v{S1ACC+16+r_}, v{S1ACC+24+r_}")
    for r_ in range(8):
        a(f"v_add_f32 v{S1ACC+r_}, v{S1ACC+r_}, v{S1ACC+16+r_}")
    pack8(a, 16, S1ACC)
    a(f"""
v_and_b32 v3, 31, v2
s_lshl_b32 s23, s27, 5
v_add_u32 v3, s23, v3
s_mov_b32 s23, {ATP}
v_mul_lo_u32 v3, v3, s23
v_lshrrev_b32 v4, 5, v2
v_lshl_add_u32 v3, v4, 4, v3
s_lshl_b32 s23, s25, 5
s_add_u32 s23, s23, s21
buffer_store_dwordx4 v[16:19], v3, s[12:15], s23 offen
""")
    stamp_end(a, 196608)
    tl(a, 5, True)
    a(f"s_branch {endlabel}")
    for g in range(NSTG):
        if g % 2 == 0:
            attn_slow(a, f"{tag}{g}", OB, OA, LB, LA, SX, (g % ANS) * ASTAGE, PEND.get(g + 1))
        else:
            attn_slow(a, f"{tag}{g}", OA, OB, LA, LB, SX, (g % ANS) * ASTAGE, PEND.get(g + 1))


def wave_sum(a, v, t):
    for sh in (8, 4, 2, 1):
        a(f"s_nop 1\nv_add_f32_dpp v{v}, v{v}, v{v} row_ror:{sh} row_mask:0xf bank_mask:0xf")
    a(f"""
v_mov_b32 v{t}, v{v}
s_nop 1
v_permlane16_swap_b32 v{v}, v{t}
s_nop 1
v_add_f32 v{v}, v{v}, v{t}
v_mov_b32 v{t}, v{v}
s_nop 1
v_permlane32_swap_b32 v{v}, v{t}
s_nop 1
v_add_f32 v{v}, v{v}, v{t}
""")


def small_gemm(a, tag, mode, pP, pR, nsteps, kstep, pre=None):
    NS, STAGE, nu = 4, 32768, 2
    t_dma_voff(a, DV, 1, pP)
    t_dma_voff(a, DV + 1, 1, pR)
    stride = 4

    def setup():
        a("""
s_and_b32 s26, s22, 1
s_lshr_b32 s24, s22, 2
s_and_b32 s27, s22, 2
s_lshl_b32 s27, s27, 1
s_lshl_b32 s28, s24, 7
""")
        t_read_addr(a, RA, nu, 28, 27, 0, NS, STAGE, stride)
        a("s_lshl_b32 s29, s26, 5\ns_add_u32 s28, s28, s29")
        t_read_addr(a, RA + 2, nu, 28, 27, 8192, NS, STAGE, stride)
        for i in range(32):
            a(f"v_mov_b32 v{ACC+i}, 0")

    def dmas(st):
        return [[f"s_add_u32 m0, s18, {st*STAGE}", "s_nop 0", f"buffer_load_dwordx4 v{DV}, s[4:7], s16 offen lds"],
                [f"s_add_u32 m0, s18, {st*STAGE+8192}", "s_nop 0", f"buffer_load_dwordx4 v{DV+1}, s[8:11], s17 offen lds"],
                [f"s_add_u32 m0, s18, {st*STAGE+16384}", "s_nop 0", f"buffer_load_dwordx4 v{DV}, s[36:39], s40 offen lds"],
                [f"s_add_u32 m0, s18, {st*STAGE+24576}", "s_nop 0", f"buffer_load_dwordx4 v{DV+1}, s[44:47], s41 offen lds"]]

    def reads(st, ul, fs):
        f = FR[fs]
        return [f"ds_read_b128 v[{f}:{f+3}], v{RA+st*stride+ul}",
                f"ds_read_b128 v[{f+4}:{f+7}], v{RA+st*stride+ul} offset:4096",
                f"ds_read_b128 v[{f+8}:{f+11}], v{RA+st*stride+2+ul}"]

    def mfmas(fs):
        f = FR[fs]
        return [f"v_mfma_f32_32x32x16_bf16 v[{ACC+16*mb}:{ACC+16*mb+15}], v[{f+4*mb}:{f+4*mb+3}], v[{f+8}:{f+11}], v[{ACC+16*mb}:{ACC+16*mb+15}]" for mb in range(2)]

    kadv = [f"s_add_u32 s{r_}, s{r_}, {kstep}" for r_ in (16, 17, 40, 41)]
    pipeline(a, tag, nsteps, NS, nu, dmas, reads, mfmas, None, kadv, pre=pre, setup=setup)
    small_epi(a, mode, ACC)


def small_epi(a, mode, AC):
    a("s_and_b32 s26, s22, 1")
    a("s_nop 15\ns_barrier")
    a(f"""
v_lshlrev_b32 v3, 4, v2
s_lshl_b32 s23, s22, 13
v_add_u32 v4, s23, v3
s_lshr_b32 s25, s22, 1
s_lshl_b32 s23, s25, 11
s_lshl_b32 s29, s26, 13
s_add_u32 s23, s23, s29
v_add_u32 v3, s23, v3
""")
    for j in range(8):
        a(f"ds_write_b128 v4, v[{AC+4*j}:{AC+4*j+3}] offset:{j*1024}")
    a("s_waitcnt lgkmcnt(0)\ns_barrier")
    for i in range(4):
        for j in range(2):
            a(f"ds_read_b128 v[{96+8*i+4*j}:{96+8*i+4*j+3}], v3 offset:{i*16384+j*1024}")
    a("s_waitcnt lgkmcnt(4)")
    for r_ in range(8):
        a(f"v_add_f32 v{64+r_}, v{96+r_}, v{104+r_}")
    a("s_waitcnt lgkmcnt(0)")
    for r_ in range(8):
        a(f"v_add_f32 v{72+r_}, v{112+r_}, v{120+r_}")
    if mode == 1:
        for r_ in range(8):
            a(f"v_add_f32 v{64+r_}, v{64+r_}, v{72+r_}")


def pack8(a, dst, src):
    for r_ in range(4):
        a(f"v_cvt_pk_bf16_f32 v{dst+r_}, v{src+2*r_}, v{src+2*r_+1}")
    a(f"s_nop 1\nv_permlane32_swap_b32 v{dst}, v{dst+2}\nv_permlane32_swap_b32 v{dst+1}, v{dst+3}")


S1ACC, S1F, S1A, S1D = 200, 232, 24, 68
S1B = ANS_BYTES = 98304


def stage1_setup(a):
    a(f"""
s_and_b32 s30, s2, 7
s_lshr_b32 s31, s2, 3
s_and_b32 s31, s31, 15
s_and_b32 s54, s30, 3
s_lshl_b32 s54, s54, 2
s_and_b32 s55, s31, 3
s_add_u32 s54, s54, s55
s_lshr_b32 s55, s30, 2
s_lshl_b32 s55, s55, 2
s_lshr_b32 s56, s31, 2
s_add_u32 s55, s55, s56
s_cmp_ge_u32 s2, 128
s_cselect_b32 s8, s52, s50
s_cselect_b32 s9, s53, s51
s_cselect_b32 s56, {WS_XM-WS_XP}, 0
s_cselect_b32 s57, {WS_BT-WS_AT}, 0
s_add_u32 s56, s56, {WS_XP}
s_add_u32 s57, s57, {WS_AT}
s_mov_b32 s10, {1024*2048}
s_mov_b32 s11, 0x00020000
""")
    srd(a, 4, 48, 49, WS_BYTES)
    a(f"""
s_lshl_b32 s40, s54, 17
s_add_u32 s40, s40, s56
s_add_u32 s42, s40, 128
s_lshl_b32 s41, s55, 17
s_add_u32 s43, s41, 128
s_mul_i32 s21, s55, {64*ATP}
s_add_u32 s21, s21, s57
s_lshl_b32 s23, s54, 7
s_add_u32 s21, s21, s23
""")
    t_dma_voff(a, S1D, 1, 2048)


def stage1_setup2(a):
    a("""
s_lshr_b32 s25, s22, 2
s_and_b32 s27, s22, 2
s_lshl_b32 s27, s27, 1
s_lshl_b32 s25, s25, 7
""")
    t_read_addr(a, S1A, 2, 25, 27, S1B, 2, 32768, 4)
    a("s_and_b32 s23, s22, 1\ns_lshl_b32 s23, s23, 5\ns_add_u32 s25, s25, s23")
    t_read_addr(a, S1A + 2, 2, 25, 27, S1B + 8192, 2, 32768, 4)
    for i in range(32):
        a(f"v_mov_b32 v{S1ACC+i}, 0")


def s1_dma(a, buf, i):
    if os.environ.get('NOS1'): return
    sr, so = ((4, 40), (8, 41), (4, 42), (8, 43))[i]
    a(f"s_add_u32 m0, s18, {S1B + buf*32768 + i*8192}\ns_nop 0\nbuffer_load_dwordx4 v{S1D}, s[{sr}:{sr+3}], s{so} offen lds\ns_add_u32 s{so}, s{so}, 256")


def s1_reads(a, buf):
    if os.environ.get('NOS1'): return
    for ul in range(2):
        f = S1F + 12 * ul
        a(f"""
ds_read_b128 v[{f}:{f+3}], v{S1A+buf*4+ul}
ds_read_b128 v[{f+4}:{f+7}], v{S1A+buf*4+ul} offset:4096
ds_read_b128 v[{f+8}:{f+11}], v{S1A+buf*4+2+ul}
""")


def s1_mfma(a, i):
    if os.environ.get('NOS1'): return
    ul, mb = i >> 1, i & 1
    f = S1F + 12 * ul
    c = S1ACC + 16 * mb
    a(f"v_mfma_f32_32x32x16_bf16 v[{c}:{c+15}], v[{f+4*mb}:{f+4*mb+3}], v[{f+8}:{f+11}], v[{c}:{c+15}]")


def stage1_store(a):
    a("s_waitcnt vmcnt(0) lgkmcnt(0)")
    small_epi(a, 1, S1ACC)
    pack8(a, 16, 64)
    a(f"""
v_and_b32 v3, 31, v2
s_lshl_b32 s23, s26, 5
v_add_u32 v3, s23, v3
s_mov_b32 s23, {ATP}
v_mul_lo_u32 v3, v3, s23
v_lshrrev_b32 v4, 5, v2
v_lshl_add_u32 v3, v4, 4, v3
s_lshl_b32 s23, s25, 5
s_add_u32 s23, s23, s21
buffer_store_dwordx4 v[16:19], v3, s[12:15], s23 offen
""")


def dot_loads(a, dst, srdA, soffA, srdB, soffB):
    for (d, sr, so) in ((dst, srdA, soffA), (dst + 12, srdB, soffB)):
        a(f"""
buffer_load_dwordx4 v[{d}:{d+3}], v10, s[{sr}:{sr+3}], s{so} offen
buffer_load_dwordx4 v[{d+4}:{d+7}], v10, s[{sr}:{sr+3}], s{so} offen offset:16
buffer_load_dwordx4 v[{d+8}:{d+11}], v11, s[{sr}:{sr+3}], s{so} offen
""")


def dot_compute(a, res, src, t):
    a(f"v_mov_b32 v{res}, 0")
    for i in range(12):
        a(f"v_dot2c_f32_bf16 v{res}, v{src+i}, v{src+12+i}")
    a("s_nop 3")
    wave_sum(a, res, t)


def edge_issue(a):
    srd(a, 64, 56, 57, 2048 * 4096)
    srd(a, 68, 48, 49, WS_BYTES)
    a(f"""
s_lshr_b32 s54, s2, 3
s_and_b32 s55, s2, 7
v_lshlrev_b32 v10, 5, v2
v_lshlrev_b32 v11, 4, v2
v_add_u32 v11, 2048, v11
v_mov_b32 v3, 0x7ffffff0
v_cmp_gt_u32 vcc, 8, v2
s_lshl_b32 s58, s54, 6
s_lshl_b32 s23, s55, 3
s_add_u32 s58, s58, s23
s_add_u32 s58, s58, s22
v_cndmask_b32 v11, v3, v11, vcc
s_lshl_b32 s59, s58, 12
s_mov_b32 s60, {WS_AT + 512*ATP}
s_lshl_b32 s61, s55, 6
s_lshl_b32 s23, s54, 2
s_add_u32 s61, s61, s23
s_add_u32 s61, s61, s22
s_cmp_ge_u32 s22, 4
s_cselect_b32 s61, 512, s61
s_mul_i32 s62, s61, {ATP}
s_add_u32 s62, s62, {WS_AT}
s_mov_b32 s63, {1024*4096}
""")


def edge_loads(a):
    flag_load(a, 212, 76, 48, 49)
    dot_loads(a, 164, 64, 59, 68, 60)
    dot_loads(a, 188, 64, 63, 68, 62)


def edge_finish(a):
    flag_test(a, 212)
    a("s_cbranch_scc1 L_edge_done")
    dot_compute(a, 160, 164, 3)
    dot_compute(a, 161, 188, 3)
    a(f"""
v_cvt_pk_bf16_f32 v160, v160, v161
v_lshrrev_b32 v161, 16, v160
s_mov_b64 exec, 3
s_sub_u32 s23, 2048, s58
v_mov_b32 v3, s58
v_mov_b32 v4, s23
v_cmp_eq_u32 vcc, 0, v2
s_nop 1
v_cndmask_b32 v3, v4, v3, vcc
v_lshlrev_b32 v3, 12, v3
buffer_store_short v160, v3, s[12:15], 0 offen offset:3072
s_sub_u32 s23, 1024, s61
v_mov_b32 v3, s61
v_mov_b32 v4, s23
s_nop 0
v_cndmask_b32 v3, v4, v3, vcc
v_lshlrev_b32 v3, 1, v3
v_add_u32 v3, {1024*4096 + 2048}, v3
s_cmp_eq_u32 s61, 0
s_cselect_b64 s[72:73], 1, 3
s_cmp_gt_u32 s22, 4
s_cselect_b64 s[72:73], 0, s[72:73]
s_mov_b64 exec, s[72:73]
s_cbranch_execz L_edge_done
buffer_store_short v161, v3, s[12:15], 0 offen
L_edge_done:
s_mov_b64 exec, -1
""")


def stage2(a):
    a(f"""
s_and_b32 s54, s30, 3
s_lshl_b32 s54, s54, 2
s_and_b32 s55, s31, 3
s_add_u32 s54, s54, s55
s_lshr_b32 s55, s30, 2
s_lshl_b32 s55, s55, 2
s_lshr_b32 s56, s31, 2
s_add_u32 s55, s55, s56
""")
    srd(a, 4, 48, 49, WS_BYTES)
    srd(a, 36, 48, 49, WS_BYTES)
    srd(a, 8, 50, 51, 2048 * 4096)
    srd(a, 44, 52, 53, 2048 * 4096)
    srd(a, 12, 34, 35, 2048 * 4096)
    a(f"""
s_mul_i32 s16, s55, {64*ATP}
s_add_u32 s40, s16, {WS_BT}
s_add_u32 s16, s16, {WS_AT}
s_lshl_b32 s17, s54, 18
s_mov_b32 s41, s17
""")
    wave_setup(a)
    flag_load(a, 208, 76, 48, 49)

    def pre():
        a("s_waitcnt vmcnt(12)")
        flag_test(a, 208)
        a("s_cbranch_scc1 L_k3_fb")

    small_gemm(a, "s2", 2, ATP, 4096, 17, 128, pre=pre)
    for r_ in range(8):
        a(f"v_sub_f32 v{80+r_}, v{64+r_}, v{72+r_}\nv_add_f32 v{88+r_}, v{64+r_}, v{72+r_}")
    pack8(a, 16, 80)
    pack8(a, 20, 88)
    a("s_nop 0")
    for r_ in range(4):
        a(f"v_alignbit_b32 v{24+r_}, v{19-r_}, v{19-r_}, 16")
        a(f"v_alignbit_b32 v{28+r_}, v{23-r_}, v{23-r_}, 16")
    a(f"""
v_and_b32 v3, 31, v2
s_lshl_b32 s23, s26, 5
s_lshl_b32 s29, s54, 6
s_add_u32 s23, s23, s29
v_add_u32 v3, s23, v3
v_sub_u32 v4, 2048, v3
v_lshlrev_b32 v3, 12, v3
v_lshlrev_b32 v4, 12, v4
v_lshrrev_b32 v5, 5, v2
v_lshlrev_b32 v5, 4, v5
s_lshl_b32 s23, s25, 5
s_lshl_b32 s29, s55, 7
s_add_u32 s23, s23, s29
v_add_u32 v5, s23, v5
v_add_u32 v6, v3, v5
v_add_u32 v7, v4, v5
v_sub_u32 v8, 4082, v5
v_add_u32 v9, v4, v8
v_add_u32 v8, v3, v8
buffer_store_dwordx4 v[16:19], v6, s[12:15], 0 offen offset:2048
buffer_store_dwordx4 v[20:23], v7, s[12:15], 0 offen offset:2048
v_cmp_ne_u32 vcc, 0, v5
s_and_saveexec_b64 s[64:65], vcc
buffer_store_dwordx4 v[28:31], v8, s[12:15], 0 offen
buffer_store_dwordx4 v[24:27], v9, s[12:15], 0 offen
s_andn2_b64 exec, s[64:65], exec
s_cbranch_execz L_s2_e2
buffer_store_dwordx3 v[28:30], v8, s[12:15], 0 offen
buffer_store_short v31, v8, s[12:15], 0 offen offset:12
buffer_store_dwordx3 v[24:26], v9, s[12:15], 0 offen
buffer_store_short v27, v9, s[12:15], 0 offen offset:12
L_s2_e2:
s_mov_b64 exec, s[64:65]
""")


def fold(a):
    wave_setup(a)
    srd(a, 4, 40, 41, 2048 * 2048)
    srd(a, 8, 44, 45, 1024 * 2048)
    a(f"""
v_lshlrev_b32 v6, 5, v2
s_lshl_b32 s16, s31, 5
s_lshl_b32 s23, s22, 2
s_add_u32 s16, s16, s23
s_mov_b32 s17, {512*2048}
buffer_load_dwordx4 v[8:11], v6, s[8:11], s17 offen
buffer_load_dwordx4 v[12:15], v6, s[8:11], s17 offen offset:16
""")
    for i in range(4):
        b = 16 + 16 * i
        a(f"""
s_add_u32 s23, s16, {i}
s_sub_u32 s24, 2048, s23
s_lshl_b32 s23, s23, 11
s_lshl_b32 s24, s24, 11
buffer_load_dwordx4 v[{b}:{b+3}], v6, s[4:7], s23 offen
buffer_load_dwordx4 v[{b+4}:{b+7}], v6, s[4:7], s23 offen offset:16
buffer_load_dwordx4 v[{b+8}:{b+11}], v6, s[4:7], s24 offen
buffer_load_dwordx4 v[{b+12}:{b+15}], v6, s[4:7], s24 offen offset:16
""")
    for i in range(4):
        b = 16 + 16 * i
        o = 96 + 16 * i
        a(f"s_waitcnt vmcnt({(3-i)*4 + 5*i})")
        a(f"v_mov_b32 v{88+i}, 0")
        for j in range(8):
            a(f"""
v_lshlrev_b32 v80, 16, v{b+j}
v_and_b32 v81, 0xffff0000, v{b+j}
v_lshlrev_b32 v82, 16, v{b+8+j}
v_and_b32 v83, 0xffff0000, v{b+8+j}
v_add_f32 v84, v80, v82
v_add_f32 v85, v81, v83
v_sub_f32 v86, v80, v82
v_sub_f32 v87, v81, v83
v_cvt_pk_bf16_f32 v{o+j}, v84, v85
v_cvt_pk_bf16_f32 v{o+8+j}, v86, v87
v_dot2c_f32_bf16 v{88+i}, v{o+j}, v{8+j}
""")
        a(f"""
s_add_u32 s23, s16, {i}
s_lshl_b32 s24, s23, 11
s_add_u32 s25, s24, {WS_XM}
s_add_u32 s24, s24, {WS_XP}
buffer_store_dwordx4 v[{o}:{o+3}], v6, s[12:15], s24 offen
buffer_store_dwordx4 v[{o+4}:{o+7}], v6, s[12:15], s24 offen offset:16
buffer_store_dwordx4 v[{o+8}:{o+11}], v6, s[12:15], s25 offen
buffer_store_dwordx4 v[{o+12}:{o+15}], v6, s[12:15], s25 offen offset:16
""")
        wave_sum(a, 88 + i, 3)
        a(f"""
v_cvt_pk_bf16_f32 v{88+i}, v{88+i}, v{88+i}
s_lshl_b32 s23, s23, 1
s_add_u32 s23, s23, {WS_AT + 512*ATP}
v_mov_b32 v4, 0
s_mov_b64 exec, 1
buffer_store_short v{88+i}, v4, s[12:15], s23 offen
s_mov_b64 exec, -1
""")


def edge_mv(a):
    wave_setup(a)
    srd(a, 4, 40, 41, 2048 * 2048)
    srd(a, 8, 44, 45, 513 * 2048)
    a(f"""
v_lshlrev_b32 v6, 5, v2
s_lshl_b32 s16, s31, 3
s_add_u32 s16, s16, s22
s_mul_i32 s16, s16, 9
s_mov_b32 s17, {1024*2048}
buffer_load_dwordx4 v[8:11], v6, s[4:7], s17 offen
buffer_load_dwordx4 v[12:15], v6, s[4:7], s17 offen offset:16
v_lshlrev_b32 v7, 2, v2
""")
    for i in range(9):
        b = 16 + 8 * i
        a(f"""
s_add_u32 s23, s16, {i}
s_lshl_b32 s23, s23, 11
buffer_load_dwordx4 v[{b}:{b+3}], v6, s[8:11], s23 offen
buffer_load_dwordx4 v[{b+4}:{b+7}], v6, s[8:11], s23 offen offset:16
""")
    a("s_waitcnt vmcnt(0)\nv_mov_b32 v5, 0")
    for i in range(9):
        b = 16 + 8 * i
        a(f"v_mov_b32 v{96+i}, 0")
        for j in range(8):
            a(f"v_dot2c_f32_bf16 v{96+i}, v{b+j}, v{8+j}")
        a("s_nop 3")
        wave_sum(a, 96 + i, 3)
        a(f"""
v_cvt_pk_bf16_f32 v{96+i}, v{96+i}, v5
v_cmp_eq_u32 vcc, 0, v2
s_add_u32 s23, s16, {i}
s_cmp_gt_u32 s23, 512
s_cbranch_scc1 L_emv_done
v_cndmask_b32 v{96+i}, v5, v{96+i}, vcc
s_mul_i32 s23, s23, {ATP}
s_add_u32 s24, s23, {WS_BT + 2048}
s_add_u32 s23, s23, {WS_AT + 2048}
s_mov_b32 exec_hi, 0
buffer_store_dword v{96+i}, v7, s[12:15], s23 offen
buffer_store_dword v5, v7, s[12:15], s24 offen
s_mov_b64 exec, -1
""")
    a("L_emv_done:")


VTOL = 2.0 ** -8 * 1.01
VMAX = 70
VB = 152


def cmp_dw(a, x, y, neg, rev=False):
    lo_y, hi_y = (f"v_and_b32 v5, 0xffff0000, v{y}", f"v_lshlrev_b32 v6, 16, v{y}") if rev else (f"v_lshlrev_b32 v5, 16, v{y}", f"v_and_b32 v6, 0xffff0000, v{y}")
    a(f"""
v_lshlrev_b32 v3, 16, v{x}
v_and_b32 v4, 0xffff0000, v{x}
{lo_y}
{hi_y}
v_fmac_f32 v3, s60, v5
v_fmac_f32 v4, s60, v6
v_max3_f32 v{VMAX}, |v3|, |v4|, v{VMAX}
""")


def verify_c_setup(a):
    a(f"""
s_bitcmp1_b32 s58, 0
s_cselect_b32 s76, s94, s92
s_cselect_b32 s77, s95, s93
s_cselect_b32 s60, 1.0, -1.0
s_mov_b32 s78, {2048*4096}
s_mov_b32 s79, 0x00020000
s_sub_u32 s62, 2048, s61
s_and_b32 s62, s62, 2047
s_lshl_b32 s61, s61, 12
s_lshl_b32 s62, s62, 12
""")


AMN, AMR, VAD, VRV = 192, 196, 69, 71


def verify_setup(a):
    a("s_lshl_b32 s58, s2, 3\ns_add_u32 s58, s58, s22\ns_lshr_b32 s61, s58, 1")
    verify_c_setup(a)
    a(f"""
s_bitcmp1_b32 s58, 0
s_mov_b32 s59, 0xbf80
s_cselect_b32 s59, 0x3f80, s59
v_and_b32 v3, 15, v2
v_bfe_u32 v4, v2, 4, 1
v_lshlrev_b32 v4, 3, v4
v_cmp_gt_u32 vcc, 32, v2
v_mov_b32 v5, s59
v_mov_b32 v6, 0x3f80
v_sub_u32 v7, 15, v3
v_cndmask_b32 v5, v5, v6, vcc
v_cndmask_b32 v7, v7, v3, vcc
v_sub_u32 v3, v3, v4
v_sub_u32 v7, v7, v4
""")
    for base, j in ((AMN, 3), (AMR, 7)):
        a(f"""
v_and_b32 v4, 1, v{j}
v_lshlrev_b32 v4, 4, v4
v_lshlrev_b32 v4, v4, v5
v_lshrrev_b32 v6, 1, v{j}
""")
        for r_ in range(4):
            a(f"v_cmp_eq_u32 vcc, {r_}, v6\ns_nop 1\nv_cndmask_b32 v{base+r_}, 0, v4, vcc")
    a(f"""
v_and_b32 v3, 15, v2
v_lshlrev_b32 v3, 5, v3
v_bfe_u32 v4, v2, 4, 1
v_lshlrev_b32 v4, 4, v4
v_add_u32 v5, v3, v4
v_sub_u32 v6, v4, v3
v_add_u32 v6, 4064, v6
v_add_u32 v7, 2, v5
v_cmp_gt_u32 vcc, 32, v2
v_mov_b32 v3, s62
v_mov_b32 v4, s61
v_cndmask_b32 v6, v6, v7, vcc
v_cndmask_b32 v3, v3, v4, vcc
v_add_u32 v{VRV}, s61, v6
v_add_u32 v{VAD}, v3, v5
s_mov_b32 s63, 0
""")


def verify_w_switch(a):
    a(f"""
s_bitcmp1_b32 s58, 0
s_cselect_b32 s84, s52, s50
s_cselect_b32 s85, s53, s51
s_mov_b32 s86, {1024*2048}
s_lshr_b32 s59, s58, 2
s_add_u32 s59, s59, 1
s_sub_u32 s63, 1024, s59
s_lshl_b32 s59, s59, 11
s_lshl_b32 s63, s63, 11
v_mov_b32 v3, s63
v_mov_b32 v4, s59
v_cmp_gt_u32 vcc, 32, v2
v_and_b32 v5, 15, v2
v_lshlrev_b32 v5, 5, v5
v_bfe_u32 v6, v2, 4, 1
v_lshl_add_u32 v5, v6, 4, v5
v_cndmask_b32 v3, v3, v4, vcc
v_add_u32 v{VAD}, v3, v5
s_and_b32 s63, s58, 2
s_lshl_b32 s63, s63, 9
""")
    a(f"""
s_mov_b32 s87, 0x00020000
s_lshr_b32 s59, s58, 1
s_and_b32 s59, s59, 7
s_lshl_b32 s59, s59, 9
s_add_u32 s59, s59, {1024*4096}
v_add_u32 v7, s59, v5
""")


def verify_r_switch(a):
    a(f"""
v_mov_b32 v3, 512
v_mov_b32 v4, -512
v_cmp_gt_u32 vcc, 32, v2
s_lshr_b32 s59, s58, 1
s_sub_u32 s63, {1024*4096}, s61
s_and_b32 s23, s58, 0xfffffff9
v_cndmask_b32 v{VAD}, v4, v3, vcc
s_cmp_eq_u32 s23, 0
s_cselect_b32 s59, s59, 0
s_cselect_b32 s63, s63, 0
v_mul_lo_u32 v7, v{VAD}, s59
v_add3_u32 v7, v7, v{VRV}, s63
""")


def touch(a):
    a("""
s_load_dwordx8 s[32:39], s[0:1], 0
s_load_dwordx4 s[40:43], s[0:1], 64
s_sub_u32 s31, s2, 56
s_lshl_b32 s23, s31, 9
v_add_u32 v3, s23, v0
v_lshlrev_b32 v4, 7, v3
s_waitcnt lgkmcnt(0)
""")
    off = 0
    for i, (lo, nb) in enumerate(((36, 65536), (38, 65536), (32, 2048 * 2048), (34, 1024 * 2048), (40, 513 * 2048), (42, 512 * 2048))):
        srd(a, 4 + 4 * i, lo, lo + 1, nb)
        a(f"v_subrev_u32 v5, {off}, v4\nbuffer_load_dword v{10+i}, v5, s[{4+4*i}:{7+4*i}], 0 offen")
        off += (nb + 127) // 128 * 128
    assert off <= 200 * 512 * 128
    a("s_waitcnt vmcnt(0)")


def flag_load(a, vd, sr, lo, hi):
    srd(a, sr, lo, hi, 8192, WS_FLAG)
    a("v_and_b32 v3, 63, v0\nv_lshlrev_b32 v3, 4, v3\nv_add_u32 v4, 4096, v3")
    for j in range(8):
        a(f"buffer_load_dwordx4 v[{vd+4*j}:{vd+4*j+3}], v{3 + j//4}, s[{sr}:{sr+3}], 0 offen offset:{(j%4)*1024}")


def flag_test(a, vd):
    for j in range(1, 31, 2):
        a(f"v_or3_b32 v{vd}, v{vd}, v{vd+j}, v{vd+j+1}")
    a(f"v_or_b32 v{vd}, v{vd}, v{vd+31}")
    a(f"v_cmp_ne_u32 vcc, 0, v{vd}\ns_nop 1\ns_cmp_lg_u64 vcc, 0")


def g3(a):
    a("""
s_and_b32 s50, s30, 3
s_lshl_b32 s50, s50, 2
s_and_b32 s51, s31, 3
s_add_u32 s50, s50, s51
s_lshr_b32 s51, s30, 2
s_lshl_b32 s51, s51, 2
s_lshr_b32 s52, s31, 2
s_add_u32 s51, s51, s52
""")
    srd(a, 4, 40, 41, 2048 * 2048)
    a(f"""
s_cmp_ge_u32 s51, 4
s_cselect_b32 s8, s46, s44
s_cselect_b32 s9, s47, s45
s_cselect_b32 s20, {f32bits(-1.0)}, 1.0
s_mov_b32 s10, {1024*2048}
s_mov_b32 s11, 0x00020000
s_lshl_b32 s16, s50, 18
s_and_b32 s17, s51, 3
s_lshl_b32 s17, s17, 19
s_lshl_b32 s21, s51, 20
s_lshl_b32 s23, s50, 8
s_add_u32 s21, s21, s23
s_add_u32 s21, s21, {WS_AB}
""")
    gemm(a, "g3", 2, 4, 1, 'T', 2048, 2048, 16, 3, 4096, scale=True)


def touch2(a):
    a("""
v_lshl_add_u32 v3, v0, 8, s2
v_lshlrev_b32 v4, 7, v3
v_lshrrev_b32 v5, 5, v3
v_and_b32 v6, 31, v3
v_lshlrev_b32 v5, 12, v5
v_lshl_add_u32 v5, v6, 7, v5
v_mov_b32 v7, 0x7ffffff0
v_cmp_gt_u32 vcc, 17, v6
""")
    srd(a, 76, 88, 89, 1024 * 2048)
    a("v_cndmask_b32 v5, v7, v5, vcc\nbuffer_load_dword v196, v4, s[76:79], 0 offen")
    srd(a, 80, 92, 93, 1025 * 4096)
    a("buffer_load_dword v197, v5, s[80:83], 0 offen")
    srd(a, 84, 94, 95, 1025 * 4096)
    a("buffer_load_dword v198, v5, s[84:87], 0 offen")


def k1(a):
    kernel_header(a, "k1_kernel")
    a("""
s_cmp_ge_u32 s2, 256
s_cbranch_scc1 L_k1_end
s_load_dwordx4 s[32:35], s[0:1], 0
s_load_dwordx2 s[50:51], s[0:1], 64
s_load_dwordx2 s[52:53], s[0:1], 72
s_load_dwordx2 s[88:89], s[0:1], 32
s_load_dwordx4 s[92:95], s[0:1], 48
s_load_dwordx2 s[48:49], s[0:1], 96
s_load_dwordx4 s[64:67], s[0:1], 16
s_load_dwordx2 s[74:75], s[0:1], 40
s_load_dwordx2 s[90:91], s[0:1], 88
""")
    wave_setup(a)
    a(f"""
v_lshrrev_b32 v3, 3, v2
v_lshl_add_u32 v3, v1, 5, v3
v_bfe_u32 v4, v3, 1, 1
v_bfe_u32 v5, v2, 2, 1
v_xor_b32 v4, v4, v5
v_and_b32 v5, 3, v2
v_lshlrev_b32 v5, 4, v5
v_lshl_add_u32 v5, v4, 6, v5
v_lshl_add_u32 v6, v3, 11, v5
v_subrev_u32 v3, 64, v3
v_bfe_u32 v4, v3, 1, 3
v_and_b32 v5, 7, v2
v_xor_b32 v4, v4, v5
v_lshlrev_b32 v4, 4, v4
v_lshl_add_u32 v7, v3, 11, v4
v_lshlrev_b32 v8, 4, v2
v_cmp_gt_u32 vcc, 2, v1
v_mov_b32 v9, 64
v_mov_b32 v10, {8*2048}
v_cndmask_b32 v152, v7, v6, vcc
v_cndmask_b32 v9, v9, 0, vcc
v_cmp_lt_u32 vcc, 5, v1
v_mov_b32 v11, 1024
s_lshl_b32 s20, s22, 12
v_cndmask_b32 v152, v152, v8, vcc
v_cndmask_b32 v9, v9, 0, vcc
v_cndmask_b32 v10, v10, v11, vcc
v_xor_b32 v153, v152, v9
v_add_u32 v153, v153, v10
v_lshl_add_u32 v154, v10, 1, v152
v_lshl_add_u32 v155, v10, 1, v153
s_waitcnt lgkmcnt(0)
s_cmp_ge_u32 s2, 128
s_cselect_b32 s96, s66, s64
s_cselect_b32 s97, s67, s65
s_mov_b32 s98, 65536
s_mov_b32 s99, 0x00020000
s_cmp_lt_u32 s22, 6
s_cselect_b32 s96, s32, s96
s_cselect_b32 s97, s33, s97
s_cselect_b32 s98, {2048*2048}, s98
s_cmp_lt_u32 s22, 2
s_cselect_b32 s96, s34, s96
s_cselect_b32 s97, s35, s97
s_cselect_b32 s98, {1024*2048}, s98
""")
    TLK[0] = 0
    srd(a, 12, 48, 49, WS_BYTES)
    srd(a, 36, 34, 35, 1024 * 2048)
    srd(a, 44, 32, 33, 2048 * 2048)
    srd(a, 80, 74, 75, 2048 * 2048)
    srd(a, 84, 50, 51, 513 * 2048)
    tl(a, 0)
    a(f"""
s_and_b32 s30, s2, 7
s_lshr_b32 s31, s2, 3
s_and_b32 s54, s30, 3
s_lshl_b32 s54, s54, 2
s_and_b32 s55, s31, 3
s_add_u32 s54, s54, s55
s_lshr_b32 s55, s30, 2
s_lshl_b32 s55, s55, 3
s_lshr_b32 s56, s31, 2
s_add_u32 s55, s55, s56
s_lshl_b32 s16, s55, 7
s_lshl_b32 s17, s54, 18
s_add_u32 s26, s17, s16
s_cmp_lt_u32 s22, 2
s_cselect_b32 s16, s16, s17
s_mov_b32 s23, 128
s_cselect_b32 s17, {64*2048}, s23
s_cmp_ge_u32 s22, 6
s_cselect_b32 s16, 0, s16
s_cselect_b32 s17, 4096, s17
s_mov_b32 s5, 0
s_and_b32 s24, s55, 3
s_lshl_b32 s23, s54, 2
s_add_u32 s24, s24, s23
s_lshl_b32 s24, s24, 12
s_add_u32 s24, s24, {WS_KF}
s_lshl_b32 s26, s2, 14
s_lshl_b32 s23, s22, 11
s_add_u32 s26, s26, s23
s_cmp_ge_u32 s2, 128
s_cselect_b32 s8, s52, s50
s_cselect_b32 s9, s53, s51
s_mov_b32 s10, {512*2048}
s_mov_b32 s11, 0x00020000
""")

    def hook(role):
        if role == 'F':
            a(f"""
v_mov_b32 v248, 0
s_lshr_b32 s23, s2, 3
s_lshl_b32 s30, s23, 15
s_and_b32 s31, s2, 3
s_lshl_b32 s31, s31, 20
s_add_u32 s30, s30, s31
s_add_u32 s30, s30, 512
v_lshlrev_b32 v251, 7, v2
v_lshrrev_b32 v4, 2, v2
v_and_b32 v5, 3, v2
v_lshlrev_b32 v5, 7, v5
v_lshl_add_u32 v252, v4, 11, v5
v_lshrrev_b32 v4, 3, v2
v_and_b32 v5, 7, v2
v_lshlrev_b32 v5, 7, v5
v_lshl_add_u32 v253, v4, 11, v5
s_lshl_b32 s31, s23, 14
s_and_b32 s23, s2, 4
s_lshl_b32 s23, s23, 8
s_add_u32 s31, s31, s23
s_add_u32 s31, s31, {256*2048}
s_mov_b32 s100, s30
s_mov_b32 s101, s31
s_cmp_lg_u32 s22, 7
s_cbranch_scc1 L_not7
s_and_b32 s54, s2, 127
s_lshl_b32 s54, s54, 13
s_lshr_b32 s23, s2, 3
s_and_b32 s23, s23, 7
s_lshl_b32 s23, s23, 13
buffer_load_dword v249, v251, s[96:99], s23 offen
""")
            for j in range(len(TS)):
                if TS[j] < 0:
                    touch_j(a, j)
            a(f"""
L_not7:
""")
        a("v_lshlrev_b32 v9, 4, v2")
    a(f"""
s_cmp_ge_u32 s55, 8
s_cselect_b32 s23, 6, 7
s_cmp_ge_u32 s22, s23
s_cbranch_scc1 L_qg_F
s_cmp_ge_u32 s55, 8
s_cbranch_scc1 L_qg_D
s_and_b32 s23, s55, 3
s_cmp_lg_u32 s22, s23
s_cbranch_scc1 L_qg_D
s_cmp_ge_u32 s55, 4
s_cbranch_scc1 L_qg_PV
""")
    for role in ('PK', 'PV', 'F', 'D'):
        a(f"L_qg_{role}:")
        q_gemm(a, hook, role)
        if role != 'D':
            a("s_branch L_qg_done")
    a("L_qg_done:")
    tl(a, 5, True)
    a("L_k1_end:\ns_endpgm")


def k2(a):
    kernel_header(a, "k2_kernel")
    a("""
s_cmp_ge_u32 s2, 256
s_cbranch_scc1 L_k2_end
s_load_dwordx4 s[32:35], s[0:1], 0
s_load_dwordx2 s[50:51], s[0:1], 64
s_load_dwordx2 s[52:53], s[0:1], 72
s_load_dwordx2 s[88:89], s[0:1], 32
s_load_dwordx4 s[92:95], s[0:1], 48
s_load_dwordx2 s[48:49], s[0:1], 96
s_waitcnt lgkmcnt(0)
""")
    TLK[0] = 1
    tl(a, 0)
    srd(a, 12, 48, 49, WS_BYTES)
    srd(a, 36, 34, 35, 1024 * 2048)
    srd(a, 44, 32, 33, 2048 * 2048)
    a("""
s_and_b32 s30, s2, 7
s_lshr_b32 s31, s2, 3
s_and_b32 s54, s30, 3
s_lshl_b32 s54, s54, 2
s_and_b32 s55, s31, 3
s_add_u32 s54, s54, s55
s_lshr_b32 s55, s30, 2
s_lshl_b32 s55, s55, 3
s_lshr_b32 s56, s31, 2
s_add_u32 s55, s55, s56
s_lshl_b32 s16, s55, 7
s_lshl_b32 s17, s54, 18
s_add_u32 s26, s17, s16
""")
    attention(a, "at", "L_k2_end")
    a("L_k2_end:\ns_endpgm")


def k3(a):
    kernel_header(a, "k3_kernel")
    a("""
s_cmp_ge_u32 s2, 256
s_cbranch_scc1 L_k3_end
s_load_dwordx2 s[32:33], s[0:1], 32
s_and_b32 s30, s2, 1
s_and_b32 s31, s2, 2
s_lshl_b32 s31, s31, 1
s_or_b32 s30, s30, s31
s_lshr_b32 s31, s2, 7
s_lshl_b32 s31, s31, 1
s_or_b32 s30, s30, s31
s_and_b32 s31, s2, 3
s_lshl_b32 s31, s31, 1
s_lshr_b32 s29, s2, 7
s_or_b32 s31, s31, s29
s_bitcmp0_b32 s2, 2
s_cselect_b32 s30, s31, s30
s_and_b32 s31, s2, 0x78
s_or_b32 s30, s30, s31
s_and_b32 s31, s2, 4
s_lshl_b32 s31, s31, 5
s_or_b32 s2, s30, s31
s_load_dwordx2 s[34:35], s[0:1], 80
s_load_dwordx2 s[48:49], s[0:1], 96
s_load_dwordx4 s[56:59], s[0:1], 48
s_and_b32 s30, s2, 7
s_lshr_b32 s31, s2, 3
s_waitcnt lgkmcnt(0)
""")
    TLK[0] = 2
    tl(a, 0)
    a("""
s_cmp_ge_u32 s2, 128
s_cbranch_scc1 L_k3_s2
s_and_b32 s50, s30, 1
s_lshl_b32 s50, s50, 2
s_and_b32 s51, s31, 3
s_add_u32 s50, s50, s51
s_lshr_b32 s51, s30, 1
s_lshl_b32 s51, s51, 2
s_lshr_b32 s52, s31, 2
s_add_u32 s51, s51, s52
""")
    srd(a, 4, 32, 33, 1024 * 2048)
    srd(a, 8, 48, 49, 2048 * 2048, WS_O)
    srd(a, 12, 34, 35, 2048 * 4096)
    a("""
s_lshl_b32 s16, s50, 8
s_lshl_b32 s17, s51, 18
s_lshl_b32 s21, s51, 19
s_add_u32 s21, s21, s16
""")
    gemm(a, "g5", 2, 2, 2, 'N', 2048, 2048, 16, 4, 4096, touch=(lambda: (edge_issue(a), edge_loads(a)), 20))
    edge_finish(a)
    tl(a, 5, True)
    a("""
s_endpgm
L_k3_s2:
s_sub_u32 s31, s31, 16
s_mov_b32 s50, s56
s_mov_b32 s51, s57
s_mov_b32 s52, s58
s_mov_b32 s53, s59
""")
    stage2(a)
    tl(a, 5, True)
    a("""
s_endpgm
L_k3_fb:
s_load_dwordx2 s[40:41], s[0:1], 40
s_load_dwordx4 s[44:47], s[0:1], 64
s_load_dwordx2 s[90:91], s[0:1], 88
s_mov_b32 s36, s34
s_mov_b32 s37, s35
s_mov_b32 s32, s50
s_mov_b32 s33, s51
s_mov_b32 s34, s52
s_mov_b32 s35, s53
s_waitcnt vmcnt(0) lgkmcnt(0)
s_barrier
""")
    srd(a, 12, 48, 49, WS_BYTES)
    g3(a)
    a("""
s_waitcnt vmcnt(0) lgkmcnt(0)
s_barrier
s_cmp_lg_u32 s22, 0
s_cbranch_scc1 L_k3_gb2
buffer_wbl2 sc1
s_waitcnt vmcnt(0)
v_mov_b32 v3, 0
v_mov_b32 v4, 1
s_mov_b64 exec, 1
global_atomic_add v3, v4, s[90:91] sc1
s_waitcnt vmcnt(0)
L_k3_gb1:
s_sleep 8
global_load_dword v5, v3, s[90:91] sc1
s_waitcnt vmcnt(0)
v_readfirstlane_b32 s23, v5
s_nop 3
s_cmp_lt_u32 s23, 128
s_cbranch_scc1 L_k3_gb1
s_mov_b64 exec, -1
buffer_inv sc1
s_waitcnt vmcnt(0)
L_k3_gb2:
s_barrier
""")
    g4(a)
    a("L_k3_end:\ns_endpgm")


def V(n):
    return 256 if os.environ.get('TL') else n


def main():
    a = Asm()
    hdr = open("cdna_kernels/" + KN + ".s.ref").read().split("; Override launch")[0]
    launches = """; @launch kernel=k1_kernel grid=(256,1,1) block=(512,1,1) lds=131072
; @launch kernel=k2_kernel grid=(256,1,1) block=(512,1,1) lds=163840
; @launch kernel=k3_kernel grid=(256,1,1) block=(512,1,1) lds=147456
"""
    k1(a)
    k2(a)
    k3(a)
    out = hdr + launches + '.amdgcn_target "amdgcn-amd-amdhsa--gfx950"\n.text\n' + a.text()
    out += '.section .rodata,"a"\n.p2align 6\n' + kernel_desc("k1_kernel", V(256), 102) + ".p2align 6\n" + kernel_desc("k2_kernel", V(256)) + ".p2align 6\n" + kernel_desc("k3_kernel", V(248))
    open(sys.argv[1] if len(sys.argv) > 1 else "out.s", "w").write(out)


if __name__ == "__main__":
    main()
```

```python
import sys, os
PROF = os.environ.get('PROF'); NOMFMA = os.environ.get('NOMFMA'); NODMA = os.environ.get('NODMA')

KN = "concat_heads__grouped_kv_mqa__spectral_fnet__prompt"
WS_Q = 0
WS_KF = 4 << 20
WS_VF = (4 << 20) + (128 << 10)
WS_AB = 8 << 20
WS_O = 16 << 20
WS_XP = 26 << 20
WS_XM = 29 << 20
WS_AT = 32 << 20
WS_BT = 34 << 20
WS_FLAG = 36 << 20
ATP = 2176
QSCALE = 1.4426950408889634 * 32 ** -0.5


def f32bits(x):
    import struct
    return struct.unpack("<I", struct.pack("<f", x))[0]


class Asm:
    def __init__(self):
        self.lines = []

    def __call__(self, s):
        for l in s.strip("\n").split("\n"):
            self.lines.append(l if l.endswith(":") else "    " + l.strip())

    def text(self):
        return "\n".join(self.lines) + "\n"


def srd(a, d, lo, hi, nbytes, off=0):
    if off:
        a(f"s_add_u32 s{d}, s{lo}, {off}\ns_addc_u32 s{d+1}, s{hi}, 0")
    else:
        a(f"s_mov_b32 s{d}, s{lo}\ns_mov_b32 s{d+1}, s{hi}")
    a(f"s_mov_b32 s{d+2}, {nbytes}\ns_mov_b32 s{d+3}, 0x00020000")


FR = [16, 32]
UID = [0]
PROFOFF = {'qg': 65536, 'g1': 0, 'g2': 0, 'g3': 0, 'g4': 65536, 'g5': 131072, 's1': 65536, 's2': 131072}
ACC = 64
DV = 48
RA = 128


def pipeline(a, tag, nsteps, NS, nu, dmas, reads, mfmas, nreads, kadv, switch=None, pre=None, setup=None, xtra=0, events=None, extras=None, prebar=None, novm=False, noprol=0):
    nd = len(dmas(0))

    def issue_all(stage):
        for g in dmas(stage % NS):
            for ins in g:
                a(ins)
        for ins in kadv:
            a(ins)

    for st in range(noprol, min(NS - 1, nsteps)):
        issue_all(st)
    if setup is not None:
        setup()
    if pre is not None:
        pre()
    if not novm:
        a(f"s_waitcnt vmcnt({(min(NS - 1, nsteps) - 1) * nd + xtra})")
    a("s_barrier")
    if TLK[0] != 1: stamp_begin(a, 72)
    tl(a, 6 if tag == 's1' else 1) if not (tag == 's2' and TLK[0] == 1) else None
    for ins in reads(0, 0, 0):
        a(ins)
    state = {"set": 0}

    def step(i, dyn=False):
        do_dma = (i + NS - 1) <= nsteps - 1
        groups = list(dmas((i + NS - 1) % NS)) if do_dma else []
        if do_dma and switch is not None:
            if dyn:
                a(switch[2])
            elif i + NS - 1 == switch[0]:
                a(switch[1])
        mcount = len(mfmas(0))
        half = mcount // 2
        nm = (nu - 1) * mcount + half
        slots = [[] for _ in range(nu * mcount)]
        for gi, g in enumerate(groups):
            slots[min(nm - 1, gi * nm // max(1, len(groups)))].extend(g)
        if do_dma:
            slots[nm - 1].extend(kadv)
        last_issued = min(i + NS - 1, nsteps - 1)
        mi = 0

        def emit_m(ms):
            nonlocal mi
            for m in ms:
                if not NOMFMA:
                    a(m)
                for ins in slots[mi]:
                    if NODMA and 'buffer_load' in ins:
                        continue
                    a(ins)
                mi += 1

        for ul in range(nu):
            cur = state["set"]
            nxt = 1 - cur
            ms = mfmas(cur)
            if ul + 1 < nu:
                rd = reads(i % NS, ul + 1, nxt)
                for ins in rd:
                    a(ins)
                a(f"s_waitcnt lgkmcnt({len(rd)})")
                emit_m(ms)
            else:
                a("s_waitcnt lgkmcnt(0)")
                emit_m(ms[:half])
                if i + 1 <= nsteps - 1:
                    ex = sum(n for i2, n in (extras or {}).items() if i + 2 - NS <= i2 < i)
                    if not novm: a(f"s_waitcnt vmcnt({(last_issued - (i + 1)) * nd + ex + (xtra if (i + 1 <= NS - 2 and not dyn) else 0)})")
                    if prebar and i in prebar:
                        prebar[i]()
                    a("s_barrier")
                    for ins in reads((i + 1) % NS, 0, nxt):
                        a(ins)
                emit_m(ms[half:])
                if events and i in events:
                    events[i]()
                if tag == 'qg' and i % 2 == 1 and os.environ.get('TLQ'):
                    tl(a, 8 + i // 2)
            state["set"] = nxt

    xtra_block = False
    steady_end = nsteps - NS + 1
    unroll = NS if (nu % 2 == 0 or NS % 2 == 0) else 2 * NS
    nloop = steady_end // unroll
    if nloop >= 2 and nsteps > int(os.environ.get('LOOPMIN', '16')) and not xtra_block:
        UID[0] += 1
        lab = f"L_{tag}_loop{UID[0]}"
        a(f"s_mov_b32 s19, 0")
        a(f"{lab}:")
        for i in range(unroll):
            step(i, dyn=True)
        a(f"s_add_u32 s19, s19, 1\ns_cmp_lt_u32 s19, {nloop}\ns_cbranch_scc1 {lab}")
        start = nloop * unroll
    else:
        start = 0
    for i in range(start, nsteps):
        step(i)
    if TLK[0] != 1: stamp_end(a, PROFOFF[tag], 72)
    tl(a, 7 if tag == 's1' else 2) if not (tag == 's2' and TLK[0] == 1) else None


def stamp_begin(a, base=66):
    if PROF:
        a(f"s_memtime s[{base}:{base+1}]\ns_memrealtime s[{base+4}:{base+5}]\ns_waitcnt lgkmcnt(0)")


def stamp_end(a, off, base=66):
    if PROF:
        a(f"""s_memtime s[{base+2}:{base+3}]
s_memrealtime s[{base+6}:{base+7}]
s_waitcnt lgkmcnt(0)
s_sub_u32 s{base+2}, s{base+2}, s{base}
s_sub_u32 s{base+6}, s{base+6}, s{base+4}
s_load_dwordx2 s[{base}:{base+1}], s[0:1], 96
s_waitcnt lgkmcnt(0)
s_add_u32 s{base}, s{base}, {24<<20}
s_addc_u32 s{base+1}, s{base+1}, 0
v_mov_b32 v6, s{base+2}
v_mov_b32 v7, s{base+6}
s_lshl_b32 s23, s2, 6
s_lshl_b32 s{base+2}, s22, 3
s_add_u32 s23, s23, s{base+2}
s_add_u32 s23, s23, {off}
v_mov_b32 v5, s23
global_store_dwordx2 v5, v[6:7], s[{base}:{base+1}]
""")


TLK = [0]


def tl(a, slot, drain=False):
    if not os.environ.get('TL'):
        return
    if drain:
        a("s_waitcnt vmcnt(0)")
    b = 66 if TLK[0] <= 1 else 80
    va, vb = (6, 7) if TLK[0] <= 1 else (254, 255)
    a(f"""s_memrealtime s[{b}:{b+1}]
s_load_dwordx2 s[{b+2}:{b+3}], s[0:1], 96
s_waitcnt lgkmcnt(0)
s_add_u32 s{b+2}, s{b+2}, {(24<<20) + (512<<10) + TLK[0]*65536 + slot*4}
s_addc_u32 s{b+3}, s{b+3}, 0
s_lshl_b32 s{b+4}, s2, 6
v_mov_b32 v{va}, s{b+4}
v_mov_b32 v{vb}, s{b}
v_cmp_eq_u32 vcc, 0, v0
s_and_saveexec_b64 s[{b+6}:{b+7}], vcc
global_store_dword v{va}, v{vb}, s[{b+2}:{b+3}]
s_mov_b64 exec, s[{b+6}:{b+7}]
""")


def wave_setup(a):
    a("""
v_lshrrev_b32 v1, 6, v0
s_nop 0
v_readfirstlane_b32 s22, v1
v_and_b32 v2, 63, v0
s_nop 2
s_lshl_b32 s18, s22, 10
""")


def t_dma_voff(a, vdst, n, pitch):
    a(f"""
v_lshrrev_b32 v3, 3, v2
v_lshl_add_u32 v3, v1, 3, v3
v_bfe_u32 v4, v3, 1, 3
v_and_b32 v5, 7, v2
v_xor_b32 v4, v4, v5
v_lshlrev_b32 v4, 4, v4
s_mov_b32 s23, {pitch}
v_mul_lo_u32 v3, v3, s23
v_add_u32 v{vdst}, v3, v4
""")
    for i in range(1, n):
        a(f"v_add_u32 v{vdst+i}, {i*64*pitch}, v{vdst}")


def n_dma_voff(a, vdst, n, pitch, MT):
    lpr = MT * 2 // 16
    rows = 64 // lpr
    sh = lpr.bit_length() - 1
    a(f"""
v_lshrrev_b32 v3, {sh}, v2
v_lshl_add_u32 v3, v1, {rows.bit_length()-1}, v3
v_and_b32 v5, {lpr-1}, v2
v_lshrrev_b32 v6, 2, v5
v_and_b32 v4, 3, v3
v_xor_b32 v6, v6, v4
v_and_b32 v5, 3, v5
v_lshlrev_b32 v5, 4, v5
v_lshl_add_u32 v5, v6, 6, v5
s_mov_b32 s23, {pitch}
v_mul_lo_u32 v3, v3, s23
v_add_u32 v{vdst}, v3, v5
""")
    for i in range(1, n):
        a(f"v_add_u32 v{vdst+i}, {i*8*rows*pitch}, v{vdst}")


def t_read_addr(a, vdst, nu, srow, skg2, base, NS, STAGE, stride):
    a(f"""
v_and_b32 v3, 31, v2
v_bfe_u32 v4, v3, 1, 3
v_lshrrev_b32 v5, 5, v2
v_xor_b32 v4, v4, v5
v_xor_b32 v4, s{skg2}, v4
v_add_u32 v3, s{srow}, v3
v_lshlrev_b32 v3, 7, v3
v_lshl_add_u32 v3, v4, 4, v3
""")
    for st in range(NS):
        for ul in range(nu):
            if ul == 0:
                a(f"v_add_u32 v{vdst+st*stride}, {base+st*STAGE}, v3")
            else:
                a(f"v_xor_b32 v{vdst+st*stride+ul}, {ul*32}, v{vdst+st*stride}")


def n_read_addr(a, vdst, sunit, skrow, LP, base, NS, STAGE, stride, nblk=2):
    a(f"""
v_bfe_u32 v3, v2, 2, 2
v_lshrrev_b32 v4, 5, v2
v_lshl_add_u32 v4, v4, 3, v3
s_mov_b32 s23, {LP}
v_mul_lo_u32 v4, v4, s23
v_add_u32 v4, s{skrow}, v4
v_bfe_u32 v5, v2, 4, 1
v_lshl_add_u32 v4, v5, 5, v4
v_and_b32 v5, 3, v2
v_lshl_add_u32 v4, v5, 3, v4
""")
    for b in range(nblk):
        a(f"""
s_add_u32 s23, s{sunit}, {b}
v_xor_b32 v5, s23, v3
v_lshl_add_u32 v5, v5, 6, v4
""")
        for st in range(NS):
            a(f"v_add_u32 v{vdst+st*stride+b}, {base+st*STAGE}, v5")


def gemm(a, tag, WM, WN, KS, ptype, pP, pR, nsteps, NS, opitch, scale=False, switch=None, touch=None, events=None, extras=None):
    assert WM * WN * KS == 8
    MT, NT = 64 * WM, 64 * WN
    PB, RB = MT * 128, NT * 128
    STAGE = PB + RB
    nu = 4 // KS
    ncP, ncR = PB // 8192, RB // 8192
    wave_setup(a)
    lw = (WM * WN).bit_length() - 1
    lm = WM.bit_length() - 1
    a(f"""
s_lshr_b32 s24, s22, {lw}
s_and_b32 s25, s22, {WM-1}
s_lshr_b32 s26, s22, {lm}
s_and_b32 s26, s26, {WN-1}
""")
    if ptype == 'T':
        t_dma_voff(a, DV, ncP, pP)
    else:
        n_dma_voff(a, DV, ncP, pP, MT)
    t_dma_voff(a, DV + ncP, ncR, pR)
    nP = nu if ptype == 'T' else 2
    stride = nP + nu

    def setup():
        if touch:
            touch[0]() if callable(touch[0]) else a(touch[0])
        a(f"s_mul_i32 s27, s24, {nu*2}")
        if ptype == 'T':
            a(f"s_lshl_b32 s28, s25, 6")
            t_read_addr(a, RA, nu, 28, 27, 0, NS, STAGE, stride)
        else:
            a(f"s_lshl_b32 s28, s25, 1\ns_mul_i32 s29, s24, {nu*16*MT*2}")
            n_read_addr(a, RA, 28, 29, MT * 2, 0, NS, STAGE, stride)
        a(f"s_lshl_b32 s28, s26, 6")
        t_read_addr(a, RA + nP, nu, 28, 27, PB, NS, STAGE, stride)
        for i in range(64):
            a(f"v_mov_b32 v{ACC+i}, 0")

    def dmas(st):
        r = []
        for i in range(ncP):
            r.append([f"s_add_u32 m0, s18, {st*STAGE + i*8192}", "s_nop 0",
                      f"buffer_load_dwordx4 v{DV+i}, s[4:7], s16 offen lds"])
        for i in range(ncR):
            r.append([f"s_add_u32 m0, s18, {st*STAGE + PB + i*8192}", "s_nop 0",
                      f"buffer_load_dwordx4 v{DV+ncP+i}, s[8:11], s17 offen lds"])
        return r

    def reads(st, ul, fs):
        f = FR[fs]
        r = []
        if ptype == 'T':
            for b in range(2):
                r.append(f"ds_read_b128 v[{f+4*b}:{f+4*b+3}], v{RA+st*stride+ul} offset:{b*4096}")
        else:
            for b in range(2):
                for rr in range(2):
                    r.append(f"ds_read_b64_tr_b16 v[{f+4*b+2*rr}:{f+4*b+2*rr+1}], v{RA+st*stride+b} offset:{(16*ul+4*rr)*MT*2}")
        for b in range(2):
            r.append(f"ds_read_b128 v[{f+8+4*b}:{f+8+4*b+3}], v{RA+st*stride+nP+ul} offset:{b*4096}")
        return r

    def mfmas(fs):
        f = FR[fs]
        r = []
        for nb in range(2):
            for mb in range(2):
                c = ACC + 16 * (nb * 2 + mb)
                r.append(f"v_mfma_f32_32x32x16_bf16 v[{c}:{c+15}], v[{f+4*mb}:{f+4*mb+3}], v[{f+8+4*nb}:{f+8+4*nb+3}], v[{c}:{c+15}]")
        return r

    kadv = [f"s_add_u32 s16, s16, {128 if ptype == 'T' else 64*pP}", "s_add_u32 s17, s17, 128"]
    pipeline(a, tag, nsteps, NS, nu, dmas, reads, mfmas, None, kadv, switch, setup=setup, xtra=(touch[1] if touch else 0), events=events, extras=extras)

    a("s_nop 15\ns_nop 3")
    blocks = [(nb, mb) for nb in range(2) for mb in range(2)]
    if KS == 2:
        a("s_barrier")
        a(f"""
v_lshlrev_b32 v3, 4, v2
s_lshl_b32 s23, s22, 13
v_add_u32 v3, s23, v3
s_xor_b32 s23, s22, 4
s_lshl_b32 s23, s23, 13
v_lshlrev_b32 v4, 4, v2
v_add_u32 v4, s23, v4
s_cmp_eq_u32 s24, 0
s_cbranch_scc1 L_{tag}_x0
""")
        for j in range(8):
            a(f"ds_write_b128 v3, v[{ACC+4*j}:{ACC+4*j+3}] offset:{j*1024}")
        for j in range(32):
            a(f"v_mov_b32 v{ACC+j}, v{ACC+32+j}")
        a(f"s_branch L_{tag}_x1\nL_{tag}_x0:")
        for j in range(8):
            a(f"ds_write_b128 v3, v[{ACC+32+4*j}:{ACC+32+4*j+3}] offset:{j*1024}")
        a(f"L_{tag}_x1:\ns_waitcnt lgkmcnt(0)\ns_barrier")
        for j in range(8):
            a(f"ds_read_b128 v[{ACC+32+4*j}:{ACC+32+4*j+3}], v4 offset:{j*1024}")
        for j in range(8):
            a(f"s_waitcnt lgkmcnt({7-j})")
            for r in range(4):
                a(f"v_add_f32 v{ACC+4*j+r}, v{ACC+4*j+r}, v{ACC+32+4*j+r}")
        blocks = [(0, 0), (0, 1)]
    a(f"""
s_lshl_b32 s23, s26, 6
v_and_b32 v3, 31, v2
v_add_u32 v3, s23, v3
""")
    if KS == 2:
        a("s_lshl_b32 s23, s24, 5\nv_add_u32 v3, s23, v3")
    a(f"""
s_mov_b32 s23, {opitch}
v_mul_lo_u32 v3, v3, s23
v_lshrrev_b32 v4, 5, v2
v_lshl_add_u32 v3, v4, 4, v3
s_lshl_b32 s23, s25, 7
s_add_u32 s23, s23, s21
v_add_u32 v3, s23, v3
v_add_u32 v4, {32*opitch}, v3
""")
    for bi, (nb, mb) in enumerate(blocks):
        c = ACC + 16 * (nb * 2 + mb)
        t = 16 + 8 * (bi % 4)
        if scale:
            for r in range(16):
                a(f"v_mul_f32 v{c+r}, s20, v{c+r}")
        for r in range(8):
            a(f"v_cvt_pk_bf16_f32 v{t+r}, v{c+2*r}, v{c+2*r+1}")
        a("s_nop 1")
        for p in range(2):
            a(f"v_permlane32_swap_b32 v{t+4*p}, v{t+4*p+2}\nv_permlane32_swap_b32 v{t+4*p+1}, v{t+4*p+3}")
        for p in range(2):
            a(f"buffer_store_dwordx4 v[{t+4*p}:{t+4*p+3}], v{3+nb}, s[12:15], 0 offen offset:{mb*64+p*32}")


def gemm_kv(a, tag, NS=4):
    PB, RB = 8192, 16384
    STAGE = PB + RB
    nu = 4
    a(f"""
v_and_b32 v3, 3, v1
v_lshlrev_b32 v3, 10, v3
v_lshl_add_u32 v{DV}, v2, 4, v3
""")
    t_dma_voff(a, DV + 1, 2, 2048)
    stride = 1 + nu

    def dmas(st):
        r_ = [[f"s_add_u32 m0, s18, {st*STAGE}", "s_nop 0", f"buffer_load_dwordx4 v{DV}, s[4:7], s16 offen lds"]]
        for i in range(2):
            r_.append([f"s_add_u32 m0, s18, {st*STAGE + PB + i*8192}", "s_nop 0",
                       f"buffer_load_dwordx4 v{DV+1+i}, s[8:11], s17 offen lds"])
        return r_

    def setup():
        a(f"""
v_bfe_u32 v3, v2, 2, 2
v_lshrrev_b32 v4, 5, v2
v_lshl_add_u32 v4, v4, 3, v3
v_lshlrev_b32 v4, 6, v4
v_bfe_u32 v5, v2, 4, 1
v_lshl_add_u32 v4, v5, 5, v4
v_and_b32 v5, 3, v2
v_lshl_add_u32 v4, v5, 3, v4
v_lshrrev_b32 v5, 2, v1
v_lshl_add_u32 v4, v5, 12, v4
""")
        for st in range(NS):
            a(f"v_add_u32 v{RA+st*stride}, {st*STAGE}, v4")
        a("s_mov_b32 s27, 0\ns_and_b32 s28, s22, 3\ns_lshl_b32 s28, s28, 5")
        t_read_addr(a, RA + 1, nu, 28, 27, PB, NS, STAGE, stride)
        for i in range(16):
            a(f"v_mov_b32 v{ACC+i}, 0")

    def reads(st, ul, fs):
        f = FR[fs]
        r_ = []
        for rr in range(2):
            r_.append(f"ds_read_b64_tr_b16 v[{f+2*rr}:{f+2*rr+1}], v{RA+st*stride} offset:{(16*ul+4*rr)*64}")
        r_.append(f"ds_read_b128 v[{f+8}:{f+11}], v{RA+st*stride+1+ul}")
        return r_

    kadv = ["s_add_u32 s16, s16, 4096", "s_add_u32 s17, s17, 128"]
    a(f"s_cmp_ge_u32 s22, 4\ns_cbranch_scc1 L_{tag}_v")
    for kv in range(2):
        if kv:
            a(f"L_{tag}_v:")

        def mfmas(fs):
            f = FR[fs]
            if kv == 0:
                return ["s_nop 0", f"v_mfma_f32_32x32x16_bf16 v[{ACC}:{ACC+15}], v[{f}:{f+3}], v[{f+8}:{f+11}], v[{ACC}:{ACC+15}]"]
            return ["s_nop 0", f"v_mfma_f32_32x32x16_bf16 v[{ACC}:{ACC+15}], v[{f+8}:{f+11}], v[{f}:{f+3}], v[{ACC}:{ACC+15}]"]

        pipeline(a, tag, 16, NS, nu, dmas, reads, mfmas, None, kadv, setup=setup)
        a("s_nop 15\ns_nop 3")
        a(f"""
s_and_b32 s23, s22, 3
s_add_u32 s23, s21, s23
s_lshl_b32 s23, s23, 12
v_lshlrev_b32 v3, 4, v2
v_add_u32 v3, s23, v3
v_add_u32 v3, {WS_KF + 2048*kv}, v3
""")
        for r_ in range(8):
            a(f"v_cvt_pk_bf16_f32 v{16+r_}, v{ACC+2*r_}, v{ACC+2*r_+1}")
        for p in range(2):
            a(f"buffer_store_dwordx4 v[{16+4*p}:{16+4*p+3}], v3, s[12:15], 0 offen offset:{p*1024}")
        if kv == 0:
            tl(a, 5, True)
            a("s_endpgm")


def kernel_header(a, name):
    a.lines.append(f".globl {name}\n.p2align 8\n.type {name},@function\n{name}:")


def kernel_desc(name, vgpr, sgpr=100):
    return f""".amdhsa_kernel {name}
  .amdhsa_next_free_vgpr {vgpr}
  .amdhsa_next_free_sgpr {sgpr}
  .amdhsa_accum_offset {(vgpr+3)//4*4}
  .amdhsa_group_segment_fixed_size 0
  .amdhsa_kernarg_size 104
  .amdhsa_user_sgpr_count 2
  .amdhsa_user_sgpr_kernarg_segment_ptr 1
  .amdhsa_system_sgpr_workgroup_id_x 1
.end_amdhsa_kernel
"""


WS_BYTES = 40 << 20


def g4(a):
    a("""
s_and_b32 s50, s30, 1
s_lshl_b32 s50, s50, 2
s_and_b32 s51, s31, 3
s_add_u32 s50, s50, s51
s_lshr_b32 s51, s30, 1
s_lshl_b32 s51, s51, 2
s_lshr_b32 s52, s31, 2
s_add_u32 s51, s51, s52
""")
    if os.environ.get('SAMETILE') == '1':
        a("s_mov_b32 s50, 0\ns_mov_b32 s51, 0")
    if os.environ.get('SAMETILE') == '2':
        a("s_and_b32 s50, s30, 7\ns_mov_b32 s51, s30")
    if os.environ.get('SAMETILE') == '3':
        a("s_and_b32 s50, s2, 7\ns_lshr_b32 s51, s2, 3")
    srd(a, 4, 48, 49, 2048 * 4096, WS_AB)
    srd(a, 8, 32, 33, 2048 * 4096)
    srd(a, 12, 36, 37, 2048 * 4096)
    a("""
s_lshl_b32 s16, s50, 19
s_lshl_b32 s17, s51, 19
s_lshl_b32 s21, s50, 8
s_add_u32 s21, s21, s17
s_add_u32 s21, s21, 2048
s_add_u32 s53, s17, 4096
""")
    sw = f"""
s_mov_b32 s8, s34
s_mov_b32 s9, s35
s_sub_u32 s17, s17, 4096
s_add_u32 s16, s16, {1024*4096 - 4096}
s_mov_b32 s53, -1
"""
    uid = [0]

    class Dyn(str):
        pass
    dyn = f"""
s_cmp_eq_u32 s17, s53
s_cselect_b32 s8, s34, s8
s_cselect_b32 s9, s35, s9
s_cselect_b32 s23, 4096, 0
s_cselect_b32 s54, {1024*4096 - 4096}, 0
s_cselect_b32 s53, -1, s53
s_sub_u32 s17, s17, s23
s_add_u32 s16, s16, s54
"""
    gemm(a, "g4", 2, 2, 2, 'T', 4096, 4096, 64, 4, 4096, switch=(32, sw, dyn))


TPS = 8
ASTAGE = TPS * 4096
ANS = 3
NSTG = 64 // TPS
Q0, KF_, VF_, P_, ONES, LA, LB, NEGM, SX, SY, OA, OB = 16, 32, 40, 48, 56, 60, 64, 72, 88, 104, 120, 136
ST, KT, VT, PT = 152, 168, 176, 184
THR1 = 2.0 ** int(os.environ.get('THR1', '92'))
THR2 = 2.0 ** 120
MARGIN = int(os.environ.get('MARGIN', '100'))


def r(b, n):
    return f"v[{b}:{b+n-1}]"


def mf32(d, a_, b_, c):
    return f"v_mfma_f32_32x32x16_bf16 {r(d,16)}, {r(a_,4)}, {r(b_,4)}, {r(c,16) if isinstance(c,int) else c}"


def mf16(d, a_, b_, c):
    return f"v_mfma_f32_16x16x32_bf16 {r(d,4)}, {r(a_,4)}, {r(b_,4)}, {r(c,4)}"


def attn_dma(a, i):
    a(f"s_add_u32 m0, s17, {i*8192}\ns_nop 0\nbuffer_load_dwordx4 v{12+i}, s[12:15], s16 offen lds")


def attn_dma_adv(a):
    a(f"""
s_add_u32 s16, s16, {ASTAGE}
s_add_u32 s17, s17, {ASTAGE}
s_sub_u32 s30, s17, {ANS*ASTAGE}
s_cmp_ge_u32 s17, {ANS*ASTAGE}
s_cselect_b32 s17, s30, s17
""")


def cap(fn, *args):
    t = Asm()
    fn(t, *args)
    return [l.strip() for l in t.lines]


def attn_tile(a, g, tt, X, Y, Oc, Od, lc, ld, H, nx):
    cur, nxt = (g % ANS) * ASTAGE, ((g + 1) % ANS) * ASTAGE

    def rd(dst, t2, part):
        if g == NSTG - 1 and t2 >= TPS:
            t2 = TPS - 1
        base = cur if t2 < TPS else nxt
        off = base + (t2 % TPS) * 4096 + part * 1024
        a(f"ds_read_b128 {r(dst,4)}, v{10 + off // 65536} offset:{off % 65536}")
    last = (tt == TPS - 1)
    E = lambda i: a(f"v_exp_f32 v{X+i}, v{X+i}")
    C = lambda i: a(f"v_cvt_pk_bf16_f32 v{P_+i}, v{X+2*i}, v{X+2*i+1}")

    def hook(k):
        for ins in H.get(k, []):
            a(ins)
    hook('pre')
    a(f"s_waitcnt lgkmcnt({2 + nx})")
    a(mf32(Y, KF_, Q0, NEGM))
    for i in range(4): E(i)
    a("s_waitcnt lgkmcnt(0)")
    hook(0)
    if tt > 0:
        a(mf32(Od, VF_ + 4, P_ + 4, Od))
    if last:
        rd(VF_ + 4, tt, 3)
    for i in range(4, 6): E(i)
    hook('m0')
    for i in range(6, 8): E(i)
    hook(1)
    if tt > 0:
        a(mf16(ld, ONES, P_ + 4, ld))
    for i in range(4): C(i)
    a(mf32(Y, KF_ + 4, Q0 + 4, Y))
    hook(2)
    rd(KF_, tt + 2, 0)
    rd(KF_ + 4, tt + 2, 1)
    for i in range(8, 10): E(i)
    hook('m1')
    for i in range(10, 12): E(i)
    a(mf32(Od, VF_, P_, Oc))
    if not last:
        rd(VF_ + 4, tt, 3)
    rd(VF_, tt + 1, 2)
    for i in range(12, 14): E(i)
    hook('m2')
    for i in range(14, 16): E(i)
    hook(3)
    a(mf16(ld, ONES, P_, lc))
    hook('end')
    for i in range(4, 8): C(i)
    hook('m3')
    if last:
        assert not H.get('end')
        a("s_waitcnt lgkmcnt(3)\ns_nop 0")
        a(mf32(Od, VF_ + 4, P_ + 4, Od))
        a(mf16(ld, ONES, P_ + 4, ld))


PEND = {}


def attn_slow(a, tag, Oold, Onew, lold, lnew, Snext, sbase, pend=None):
    a(f"L_{tag}_slow:")
    a("s_nop 15")
    a(f"v_cmp_nlt_f32 vcc, v{lnew}, s29\ns_nop 4\ns_cbranch_vccnz L_{tag}_heavy")
    a(f"""
v_frexp_exp_i32_f32 v3, v{lnew}
v_add_u32 v3, {MARGIN}, v3
v_cvt_f32_i32 v4, v3
v_sub_u32 v3, 0, v3
""")
    for i in range(16): a(f"v_ldexp_f32 v{Onew+i}, v{Onew+i}, v3")
    for i in range(4): a(f"v_ldexp_f32 v{lnew+i}, v{lnew+i}, v3")
    for i in range(16): a(f"v_sub_f32 v{NEGM+i}, v{NEGM+i}, v4")
    for i in range(16): a(f"v_sub_f32 v{Snext+i}, v{Snext+i}, v4")
    a(f"s_nop 1\ns_branch L_{tag}_ret")
    a(f"L_{tag}_heavy:")
    a("s_waitcnt vmcnt(0)")
    np_, AM = pend or (0, 0)
    for i in range(np_):
        a(f"v_mfma_f32_16x16x32_bf16 {r(VB+12+4*i,4)}, {r(AM,4)}, {r(VB+4*i,4)}, 0")
    a("s_nop 15")
    for i in range(np_):
        a(f"v_max3_f32 v{VMAX}, |v{VB+12+4*i}|, |v{VB+13+4*i}|, v{VMAX}\nv_max3_f32 v{VMAX}, |v{VB+14+4*i}|, |v{VB+15+4*i}|, v{VMAX}")
    a(f"s_waitcnt lgkmcnt(0)\nv_log_f32 v5, v{lold}\nv_add_u32 v6, {sbase}, v10\ns_mov_b32 s30, 0")
    a(f"L_{tag}_h1:")
    a(f"ds_read_b128 {r(KT,4)}, v6\nds_read_b128 {r(KT+4,4)}, v6 offset:1024\ns_waitcnt lgkmcnt(0)")
    a(mf32(ST, KT, Q0, NEGM)); a(mf32(ST, KT + 4, Q0 + 4, ST))
    a("s_nop 15")
    for i in range(8): a(f"v_max3_f32 v5, v{ST+2*i}, v{ST+2*i+1}, v5")
    a(f"v_add_u32 v6, 4096, v6\ns_add_u32 s30, s30, 1\ns_cmp_lt_u32 s30, {TPS}\ns_cbranch_scc1 L_{tag}_h1")
    a(f"""
v_mov_b32 v6, v5
s_nop 1
v_permlane32_swap_b32 v5, v6
s_nop 1
v_max_f32 v5, v5, v6
v_ceil_f32 v4, v5
v_add_f32 v4, {f32bits(float(MARGIN))}, v4
v_cvt_i32_f32 v3, v4
v_sub_u32 v3, 0, v3
""")
    for i in range(16): a(f"v_ldexp_f32 v{Onew+i}, v{Oold+i}, v3")
    for i in range(4): a(f"v_ldexp_f32 v{lnew+i}, v{lold+i}, v3")
    for i in range(16): a(f"v_sub_f32 v{NEGM+i}, v{NEGM+i}, v4")
    for i in range(16): a(f"v_sub_f32 v{Snext+i}, v{Snext+i}, v4")
    a(f"v_add_u32 v6, {sbase}, v10\ns_mov_b32 s30, 0")
    a(f"L_{tag}_h2:")
    a(f"ds_read_b128 {r(KT,4)}, v6\nds_read_b128 {r(KT+4,4)}, v6 offset:1024\nds_read_b128 {r(VT,4)}, v6 offset:2048\nds_read_b128 {r(VT+4,4)}, v6 offset:3072\ns_waitcnt lgkmcnt(0)")
    a(mf32(ST, KT, Q0, NEGM)); a(mf32(ST, KT + 4, Q0 + 4, ST))
    a("s_nop 15")
    for i in range(16): a(f"v_exp_f32 v{ST+i}, v{ST+i}")
    a("s_nop 0")
    for i in range(8): a(f"v_cvt_pk_bf16_f32 v{PT+i}, v{ST+2*i}, v{ST+2*i+1}")
    a("s_nop 1")
    a(mf32(Onew, VT, PT, Onew)); a(mf32(Onew, VT + 4, PT + 4, Onew))
    a(mf16(lnew, ONES, PT, lnew)); a(mf16(lnew, ONES, PT + 4, lnew))
    a(f"v_add_u32 v6, 4096, v6\ns_add_u32 s30, s30, 1\ns_cmp_lt_u32 s30, {TPS}\ns_cbranch_scc1 L_{tag}_h2")
    a("s_nop 7")
    for i in range(4 * np_):
        a(f"v_mov_b32 v{VB+i}, 0")
    a(f"s_branch L_{tag}_ret")


N0 = int(os.environ.get('N0', '12'))
TS = eval(os.environ.get('TS', '[-1,-1,-1,-1,-1,-1, 13]'))


def touch_j(a, j):
    if j < 6:
        sr, vo, so, inc = ((44, 252, 100, 512), (36, 253, 101, 256 * 2048))[j % 2]
    else:
        sr, vo, so, inc = (8, 251, 54, 0)
    a(f"buffer_load_dword v249, v{vo}, s[{sr}:{sr+3}], s{so} offen\ns_add_u32 s{so}, s{so}, {inc}")


def q_gemm(a, setup_hook, role):
    NS = int(os.environ.get('QNS', '4'))
    STAGE = 28672
    F = [88, 104]
    F2 = [32, 40]
    D_, R_ = 152, 156
    AC, AC2 = OA, NEGM
    SV = 248
    NB = [0]
    stride = 5

    def dmas(st):
        if role == 'F':
            return []
        return [[f"s_add_u32 m0, s20, {st*STAGE + i*1024}", "s_nop 0", f"buffer_load_dwordx4 v{D_+i}, s[96:99], s16 offen lds"] for i in range(4)]

    def setup():
        setup_hook(role)
        a(f"""
v_bfe_u32 v3, v2, 2, 2
v_lshrrev_b32 v4, 5, v2
v_lshl_add_u32 v4, v4, 3, v3
v_bfe_u32 v5, v2, 4, 1
v_and_b32 v6, 3, v2
v_lshlrev_b32 v6, 3, v6
v_lshl_add_u32 v6, v5, 5, v6
v_lshl_add_u32 v7, v4, 6, v6
v_lshl_add_u32 v4, v4, 7, v6
v_lshrrev_b32 v3, 1, v3
v_lshrrev_b32 v5, 2, v1
v_xor_b32 v3, v3, v5
v_lshl_add_u32 v4, v3, 6, v4
v_add_u32 v{R_+25}, 24576, v7
v_add_u32 v{R_+26}, {24576+2*STAGE}, v7
v_add_u32 v{R_+27}, {24576+4*STAGE}, v7
""")
        for st in range(NS):
            a(f"v_add_u32 v{R_+st*stride}, {st*STAGE}, v4")
        a("s_mov_b32 s27, 0\ns_and_b32 s25, s22, 3\ns_lshl_b32 s25, s25, 5")
        t_read_addr(a, R_ + 1, 4, 25, 27, 8192, NS, STAGE, stride)
        for i in range(16):
            a(f"v_mov_b32 v{AC+i}, 0")
        if role in ('PK', 'PV'):
            for i in range(16):
                a(f"v_mov_b32 v{AC2+i}, 0")

    def reads(st, ul, fs):
        f = F[fs]
        r_ = []
        for q in range(2):
            u = 2 * ul + q
            for rr in range(2):
                r_.append(f"ds_read_b64_tr_b16 v[{f+4*q+2*rr}:{f+4*q+2*rr+1}], v{R_+st*stride} offset:{(16*u+4*rr)*128}")
            r_.append(f"ds_read_b128 v[{f+8+4*q}:{f+11+4*q}], v{R_+st*stride+1+u}")
            if role in ('PK', 'PV'):
                g = F2[fs]
                for rr in range(2):
                    r_.append(f"ds_read_b64_tr_b16 v[{g+4*q+2*rr}:{g+4*q+2*rr+1}], v{R_+25+st//2} offset:{(st%2)*STAGE+(16*u+4*rr)*64}")
        return r_

    def mfmas(fs):
        f, g = F[fs], F2[fs]
        r_ = []
        for q in range(2):
            r_.append(f"v_mfma_f32_32x32x16_bf16 v[{AC}:{AC+15}], v[{f+4*q}:{f+4*q+3}], v[{f+8+4*q}:{f+11+4*q}], v[{AC}:{AC+15}]")
            if role == 'PK':
                r_.append(f"v_mfma_f32_32x32x16_bf16 v[{AC2}:{AC2+15}], v[{g+4*q}:{g+4*q+3}], v[{f+8+4*q}:{f+11+4*q}], v[{AC2}:{AC2+15}]")
            if role == 'PV':
                r_.append(f"v_mfma_f32_32x32x16_bf16 v[{AC2}:{AC2+15}], v[{f+8+4*q}:{f+11+4*q}], v[{g+4*q}:{g+4*q+3}], v[{AC2}:{AC2+15}]")
        return r_

    kadv = ["s_add_u32 s16, s16, s17"]

    def ev_touch(js, first):
        a(f"s_cmp_lg_u32 s22, 7\ns_cbranch_scc1 L_qt{js[0]}")
        for j in js:
            touch_j(a, j)
        a(f"L_qt{js[0]}:")

    ev, ex = {}, {}
    SJ = int(os.environ.get('SJ', '12'))
    acts = {SJ: [lambda: side_jobs(a, role)]}
    ex[SJ] = 4
    if role == 'F':
        for t in sorted(set(t for t in TS if 0 <= t < 16)):
            js = [j for j in range(len(TS)) if TS[j] == t]
            acts.setdefault(t, []).append(lambda js=js: ev_touch(js, False))
    ev = {t: (lambda l=l: [f() for f in l]) for t, l in acts.items()}
    pipeline(a, "qg", 16, NS, 2, dmas, reads, mfmas, None, kadv, setup=setup, events=ev, extras=ex, novm=(role == 'F'))
    a(f"s_mov_b32 s23, {f32bits(QSCALE)}\ns_nop 11")
    if role in ('PK', 'PV'):
        for i in range(8):
            a(f"v_cvt_pk_bf16_f32 v{F[0]+i}, v{AC2+2*i}, v{AC2+2*i+1}")
        a(f"v_add_u32 v3, s24, v9")
        for p in range(2):
            a(f"buffer_store_dwordx4 v[{F[0]+4*p}:{F[0]+4*p+3}], v3, s[12:15], 0 offen offset:{p*1024 + (2048 if role == 'PV' else 0)}")
    for i in range(16):
        a(f"v_mul_f32 v{AC+i}, s23, v{AC+i}")
    for i in range(8):
        a(f"v_cvt_pk_bf16_f32 v{Q0+i}, v{AC+2*i}, v{AC+2*i+1}")
    a(f"""
buffer_store_dwordx4 v[{Q0}:{Q0+3}], v9, s[12:15], s26 offen
buffer_store_dwordx4 v[{Q0+4}:{Q0+7}], v9, s[12:15], s26 offen offset:1024
s_waitcnt vmcnt({4 if role in ('PK', 'PV') else 2})
""")
    side_jobs2(a, role)


def side_jobs(a, role):
    T = 200
    a(f"""
v_lshlrev_b32 v6, 5, v2
s_cmp_ge_u32 s22, 4
s_cbranch_scc1 L_sj_emv{role}
s_lshl_b32 s64, s2, 2
s_add_u32 s64, s64, s22
s_sub_u32 s31, 2048, s64
s_lshl_b32 s23, s64, 11
s_lshl_b32 s31, s31, 11
s_mov_b32 s19, {512*2048}
buffer_load_dwordx4 v[{T}:{T+3}], v6, s[80:83], s23 offen
buffer_load_dwordx4 v[{T+4}:{T+7}], v6, s[80:83], s23 offen offset:16
buffer_load_dwordx4 v[{T+8}:{T+11}], v6, s[80:83], s31 offen
buffer_load_dwordx4 v[{T+12}:{T+15}], v6, s[80:83], s31 offen offset:16
buffer_load_dwordx4 v[{T+16}:{T+19}], v6, s[84:87], s19 offen
buffer_load_dwordx4 v[{T+20}:{T+23}], v6, s[84:87], s19 offen offset:16
s_branch L_sj_1{role}
L_sj_emv{role}:
s_lshl_b32 s64, s2, 1
s_add_u32 s64, s64, s22
s_sub_u32 s64, s64, 4
s_cmp_ge_u32 s22, 6
s_cselect_b32 s64, 0x10000, s64
s_lshl_b32 s31, s2, 3
s_add_u32 s31, s31, s22
s_cmp_eq_u32 s31, 6
s_cselect_b32 s64, 512, s64
s_lshl_b32 s23, s64, 11
s_mov_b32 s19, {1024*2048}
buffer_load_dwordx4 v[{T}:{T+3}], v6, s[84:87], s23 offen
buffer_load_dwordx4 v[{T+4}:{T+7}], v6, s[84:87], s23 offen offset:16
buffer_load_dwordx4 v[{T+16}:{T+19}], v6, s[80:83], s19 offen
buffer_load_dwordx4 v[{T+20}:{T+23}], v6, s[80:83], s19 offen offset:16
L_sj_1{role}:
""")


def side_jobs2(a, role):
    T = 200
    o = T + 24
    a(f"""
v_lshlrev_b32 v6, 5, v2
v_mov_b32 v7, 0
s_cmp_ge_u32 s22, 4
s_cbranch_scc1 L_sj_emv2{role}
""")
    for j in range(8):
        a(f"""
v_lshlrev_b32 v{o+16}, 16, v{T+j}
v_and_b32 v{o+17}, 0xffff0000, v{T+j}
v_lshlrev_b32 v{o+18}, 16, v{T+8+j}
v_and_b32 v{o+19}, 0xffff0000, v{T+8+j}
v_add_f32 v{o+20}, v{o+16}, v{o+18}
v_add_f32 v{o+21}, v{o+17}, v{o+19}
v_sub_f32 v{o+22}, v{o+16}, v{o+18}
v_sub_f32 v{o+23}, v{o+17}, v{o+19}
v_cvt_pk_bf16_f32 v{o+j}, v{o+20}, v{o+21}
v_cvt_pk_bf16_f32 v{o+8+j}, v{o+22}, v{o+23}
v_dot2c_f32_bf16 v7, v{o+j}, v{T+16+j}
""")
    a(f"""
s_lshl_b32 s23, s64, 11
s_add_u32 s31, s23, {WS_XM}
s_add_u32 s23, s23, {WS_XP}
buffer_store_dwordx4 v[{o}:{o+3}], v6, s[12:15], s23 offen
buffer_store_dwordx4 v[{o+4}:{o+7}], v6, s[12:15], s23 offen offset:16
buffer_store_dwordx4 v[{o+8}:{o+11}], v6, s[12:15], s31 offen
buffer_store_dwordx4 v[{o+12}:{o+15}], v6, s[12:15], s31 offen offset:16
""")
    wave_sum(a, 7, 3)
    a(f"""
v_cvt_pk_bf16_f32 v7, v7, v7
s_lshl_b32 s23, s64, 1
s_add_u32 s23, s23, {WS_AT + 512*ATP}
v_mov_b32 v4, 0
s_mov_b64 exec, 1
buffer_store_short v7, v4, s[12:15], s23 offen
s_mov_b64 exec, -1
s_branch L_sj_done{role}
L_sj_emv2{role}:
s_cmp_gt_u32 s64, 512
s_cbranch_scc1 L_sj_done{role}
""")
    for j in range(8):
        a(f"v_dot2c_f32_bf16 v7, v{T+j}, v{T+16+j}")
    a("s_nop 3")
    wave_sum(a, 7, 3)
    a(f"""
v_mov_b32 v5, 0
v_cvt_pk_bf16_f32 v7, v7, v5
v_cmp_eq_u32 vcc, 0, v2
s_mul_i32 s23, s64, {ATP}
s_add_u32 s31, s23, {WS_BT + 2048}
s_add_u32 s23, s23, {WS_AT + 2048}
v_cndmask_b32 v7, v5, v7, vcc
v_lshlrev_b32 v4, 2, v2
s_mov_b32 exec_hi, 0
buffer_store_dword v7, v4, s[12:15], s23 offen
buffer_store_dword v5, v4, s[12:15], s31 offen
s_mov_b64 exec, -1
L_sj_done{role}:
""")


def kv_dma(a, g, i):
    a(f"s_add_u32 m0, s18, {(g % ANS)*ASTAGE + i*8192}\ns_mov_b32 s19, {g*ASTAGE}\nbuffer_load_dwordx4 v{12+i}, s[12:15], s19 offen lds")


def attention(a, tag, endlabel):
    wave_setup(a)
    stamp_begin(a)
    tl(a, 3)
    def hook():
        a(f"""
v_lshlrev_b32 v9, 4, v2
v_lshl_add_u32 v12, v1, 10, v9
v_add_u32 v12, {WS_KF}, v12
v_add_u32 v13, 8192, v12
v_add_u32 v14, 16384, v12
v_add_u32 v15, 24576, v12
""")
        for g in range(2):
            for i in range(4): kv_dma(a, g, i)
        a(f"""
v_and_b32 v5, 31, v2
v_and_b32 v4, 3, v1
v_lshl_add_u32 v4, v4, 5, v5
v_lshrrev_b32 v5, 5, v2
v_lshlrev_b32 v5, 4, v5
v_lshl_add_u32 v8, v4, 11, v5
v_lshrrev_b32 v5, 2, v1
v_lshl_add_u32 v8, v5, 6, v8
s_mov_b32 s28, {f32bits(THR1)}
s_mov_b32 s29, {f32bits(THR2)}
v_mov_b32 v10, v9
v_add_u32 v11, 65536, v9
""")
        stage1_setup(a)
        stage1_setup2(a)
        verify_setup(a)
        a(f"""
v_lshrrev_b32 v4, 2, v2
v_lshrrev_b32 v5, 4, v2
v_xor_b32 v4, v4, v5
v_and_b32 v4, 1, v4
v_cmp_eq_u32 vcc, 0, v4
v_mov_b32 v5, 0x3f803f80
s_nop 1
v_cndmask_b32 v{ONES}, 0, v5, vcc
v_mov_b32 v{ONES+1}, v{ONES}
v_mov_b32 v{ONES+2}, v{ONES}
v_mov_b32 v{ONES+3}, v{ONES}
""")
        for i in range(16): a(f"v_mov_b32 v{OB+i}, 0")
        for i in range(4): a(f"v_mov_b32 v{LB+i}, 0")
        a(f"v_mov_b32 v{VMAX}, 0")
    a(f"""
v_lshlrev_b32 v3, 4, v2
s_lshl_b32 s23, s2, 14
s_lshl_b32 s30, s22, 11
s_add_u32 s23, s23, s30
buffer_load_dwordx4 v[{Q0}:{Q0+3}], v3, s[12:15], s23 offen
buffer_load_dwordx4 v[{Q0+4}:{Q0+7}], v3, s[12:15], s23 offen offset:1024
""")
    hook()
    for b in range(2):
        for i in range(4): s1_dma(a, b, i)
    a("s_waitcnt vmcnt(12)\ns_barrier")
    a(f"ds_read_b128 {r(KF_,4)}, v10\nds_read_b128 {r(KF_+4,4)}, v10 offset:1024")
    a("s_waitcnt lgkmcnt(0)")
    a(mf32(SX, KF_, Q0, "0")); a(mf32(SX, KF_ + 4, Q0 + 4, SX))
    a(f"ds_read_b128 {r(KF_,4)}, v10 offset:4096\nds_read_b128 {r(KF_+4,4)}, v10 offset:{4096+1024}")
    a(f"ds_read_b128 {r(VF_+4,4)}, v10 offset:3072\nds_read_b128 {r(VF_,4)}, v10 offset:2048")
    a("s_nop 11")
    a(f"v_max3_f32 v5, v{SX}, v{SX+1}, v{SX+2}")
    for i in range(6): a(f"v_max3_f32 v5, v{SX+3+2*i}, v{SX+4+2*i}, v5")
    a(f"""
v_max_f32 v5, v{SX+15}, v5
v_mov_b32 v6, v5
s_nop 1
v_permlane32_swap_b32 v5, v6
s_nop 1
v_max_f32 v5, v5, v6
v_add_f32 v5, {f32bits(float(MARGIN))}, v5
""")
    for i in range(16): a(f"v_sub_f32 v{NEGM+i}, 0, v5")
    for i in range(16): a(f"v_sub_f32 v{SX+i}, v{SX+i}, v5")
    tl(a, 4)

    HK = {}

    def add(g, tt, slot, lines):
        HK.setdefault((g, tt), {}).setdefault(slot, []).extend(lines)
    BT_ = TPS - 2
    for g in range(NSTG):
        add(g, BT_, 'pre', ["s_waitcnt vmcnt(0)" + (" lgkmcnt(0)" if g == NSTG - 1 else ""), "s_barrier"])
        if g + 2 < NSTG:
            for i in range(4): add(g, BT_, i, cap(kv_dma, g + 2, i))
    add(0, 3, 'pre', ["s_waitcnt vmcnt(0)", "s_barrier"])

    def s1_step(g, tt, buf):
        add(g, tt, 'end', cap(s1_reads, buf))
        for i in range(4): add(g, tt + 1, f"m{i}", cap(s1_mfma, i))
    s1_step(0, 3, 0)
    for j in range(7):
        s1_step(j, BT_, (j + 1) & 1)
        if j + 2 <= 7:
            for i in range(4): add(j + 1, 0, i, cap(s1_dma, j & 1, i))
    add(7, 0, 'pre', f"""
s_and_b32 s27, s22, 1
s_lshr_b32 s25, s22, 1
s_and_b32 s23, s22, 3
s_lshl_b32 s23, s23, 13
s_cmp_ge_u32 s22, 4
s_cselect_b32 s30, 0, {S1B - (5 % ANS)*ASTAGE}
s_add_u32 s30, s30, {(5 % ANS)*ASTAGE}
s_add_u32 s23, s23, s30
v_add_u32 v{S1A}, s23, v9
s_lshl_b32 s23, s25, 11
s_lshl_b32 s30, s27, 13
s_add_u32 s23, s23, s30
v_add_u32 v{S1A+2}, s23, v9
v_add_u32 v{S1A+1}, {S1B}, v{S1A+2}
v_add_u32 v{S1A+2}, {(5 % ANS)*ASTAGE}, v{S1A+2}
""".strip().split("\n"))
    for j in range(8):
        add(7, 1 + j // 3, j % 3, [f"ds_write_b128 v{S1A}, v[{S1ACC+4*j}:{S1ACC+4*j+3}] offset:{j*1024}"])
    add(7, BT_, 'end', [f"ds_read_b128 v[{S1ACC+8*i+4*j}:{S1ACC+8*i+4*j+3}], v{S1A+1+i//2} offset:{(i%2)*16384+j*1024}" for i in range(4) for j in range(2)])
    def vchk(g, loads, AM):
        PEND[g] = (len(loads), AM)
        for i, ld_ in enumerate(loads):
            add(*((0, 4) if g == 0 else (g - 1, 7)), i, ld_)
            add(g, BT_, i, [f"v_mfma_f32_16x16x32_bf16 {r(VB+12+4*i,4)}, {r(AM,4)}, {r(VB+4*i,4)}, 0"])
            add(g, TPS - 1, i, [f"v_max3_f32 v{VMAX}, |v{VB+12+4*i}|, |v{VB+13+4*i}|, v{VMAX}", f"v_max3_f32 v{VMAX}, |v{VB+14+4*i}|, |v{VB+15+4*i}|, v{VMAX}"])
    ldn = lambda i, off: [f"buffer_load_dwordx4 v[{VB+4*i}:{VB+4*i+3}], v{VAD}, s[76:79], 0 offen offset:{off}"]
    vchk(0, [ldn(0, 0)], AMN)
    vchk(1, [ldn(0, 512), ldn(1, 1024), ldn(2, 1536)], AMN)
    vchk(2, [ldn(0, 2048), ldn(1, 2560)], AMN)
    vchk(3, [ldn(0, 3072), ldn(1, 3584)], AMN)
    add(3, 7, 'pre', cap(verify_w_switch))
    vchk(4, [[f"buffer_load_dwordx4 v[{VB+4*i}:{VB+4*i+3}], v{VAD}, s[84:87], s63 offen offset:{i*512}"] for i in range(2)]
         + [[f"buffer_load_dwordx4 v[{VB+8}:{VB+11}], v7, s[76:79], 0 offen"]], AMN)
    add(4, 7, 'pre', cap(verify_r_switch))
    ldr = lambda i: [f"buffer_load_dwordx4 v[{VB+4*i}:{VB+4*i+3}], v{VRV}, s[76:79], 0 offen", f"v_add_u32 v{VRV}, v{VRV}, v{VAD}"]
    vchk(5, [ldr(0), ldr(1), [f"buffer_load_dwordx4 v[{VB+8}:{VB+11}], v7, s[76:79], 0 offen"]], AMR)
    vchk(6, [ldr(0), ldr(1)], AMR)
    add(7, 0, 'pre', f"""
s_mov_b32 s23, {f32bits(VTOL)}
v_cmp_nle_f32 vcc, v{VMAX}, s23
s_add_u32 s30, s58, {WS_FLAG}
v_mov_b32 v4, 0
s_cmp_lg_u64 vcc, 0
s_cselect_b32 s23, 1, 0
v_mov_b32 v3, s23
s_mov_b64 exec, 1
buffer_store_byte v3, v4, s[12:15], s30 offen
s_mov_b64 exec, -1
""".strip().split("\n"))

    nx = 0
    for g in range(NSTG):
        Oold, Onew, lold, lnew = (OB, OA, LB, LA) if g % 2 == 0 else (OA, OB, LA, LB)
        for tt in range(TPS):
            X, Y = (SX, SY) if tt % 2 == 0 else (SY, SX)
            H = HK.get((g, tt), {})
            attn_tile(a, g, tt, X, Y, Oold if tt == 0 else Onew, Onew, lold if tt == 0 else lnew, lnew, H, nx)
            nx = sum(1 for k in ('m2', 3, 'end', 'm3') for ins in H.get(k, []) if ins.startswith("ds_"))
        a(f"""
s_nop 7
v_cmp_nlt_f32 vcc, v{lnew}, s28
s_nop 1
s_cbranch_vccnz L_{tag}{g}_slow
L_{tag}{g}_ret:
""")
    tl(a, 2)
    a(f"s_nop 3\nv_rcp_f32 v7, v{LB}\ns_add_u32 s31, s26, {WS_O}")
    for i in range(16):
        a(f"v_mul_f32 v{OB+i}, v7, v{OB+i}")
    for i in range(8): a(f"v_cvt_pk_bf16_f32 v{P_+i}, v{OB+2*i}, v{OB+2*i+1}")
    a("s_nop 1")
    for p in range(2):
        a(f"v_permlane32_swap_b32 v{P_+4*p}, v{P_+4*p+2}\nv_permlane32_swap_b32 v{P_+4*p+1}, v{P_+4*p+3}")
    for p in range(2):
        a(f"buffer_store_dwordx4 {r(P_+4*p,4)}, v8, s[12:15], s31 offen offset:{p*32}")
    for r_ in range(8):
        a(f"v_add_f32 v{S1ACC+r_}, v{S1ACC+r_}, v{S1ACC+8+r_}\nv_add_f32 v{S1ACC+16+r_}, v{S1ACC+16+r_}, v{S1ACC+24+r_}")
    for r_ in range(8):
        a(f"v_add_f32 v{S1ACC+r_}, v{S1ACC+r_}, v{S1ACC+16+r_}")
    pack8(a, 16, S1ACC)
    a(f"""
v_and_b32 v3, 31, v2
s_lshl_b32 s23, s27, 5
v_add_u32 v3, s23, v3
s_mov_b32 s23, {ATP}
v_mul_lo_u32 v3, v3, s23
v_lshrrev_b32 v4, 5, v2
v_lshl_add_u32 v3, v4, 4, v3
s_lshl_b32 s23, s25, 5
s_add_u32 s23, s23, s21
buffer_store_dwordx4 v[16:19], v3, s[12:15], s23 offen
""")
    stamp_end(a, 196608)
    tl(a, 5, True)
    a(f"s_branch {endlabel}")
    for g in range(NSTG):
        if g % 2 == 0:
            attn_slow(a, f"{tag}{g}", OB, OA, LB, LA, SX, (g % ANS) * ASTAGE, PEND.get(g + 1))
        else:
            attn_slow(a, f"{tag}{g}", OA, OB, LA, LB, SX, (g % ANS) * ASTAGE, PEND.get(g + 1))


def wave_sum(a, v, t):
    for sh in (8, 4, 2, 1):
        a(f"s_nop 1\nv_add_f32_dpp v{v}, v{v}, v{v} row_ror:{sh} row_mask:0xf bank_mask:0xf")
    a(f"""
v_mov_b32 v{t}, v{v}
s_nop 1
v_permlane16_swap_b32 v{v}, v{t}
s_nop 1
v_add_f32 v{v}, v{v}, v{t}
v_mov_b32 v{t}, v{v}
s_nop 1
v_permlane32_swap_b32 v{v}, v{t}
s_nop 1
v_add_f32 v{v}, v{v}, v{t}
""")


def small_gemm(a, tag, mode, pP, pR, nsteps, kstep, pre=None, xtra=0, events=None):
    NS, STAGE, nu = 4, 32768, 2
    t_dma_voff(a, DV, 1, pP)
    t_dma_voff(a, DV + 1, 1, pR)
    stride = 4

    def setup():
        a("""
s_and_b32 s26, s22, 1
s_lshr_b32 s24, s22, 2
s_and_b32 s27, s22, 2
s_lshl_b32 s27, s27, 1
s_lshl_b32 s28, s24, 7
""")
        t_read_addr(a, RA, nu, 28, 27, 0, NS, STAGE, stride)
        a("s_lshl_b32 s29, s26, 5\ns_add_u32 s28, s28, s29")
        t_read_addr(a, RA + 2, nu, 28, 27, 8192, NS, STAGE, stride)
        for i in range(32):
            a(f"v_mov_b32 v{ACC+i}, 0")

    def dmas(st):
        return [[f"s_add_u32 m0, s18, {st*STAGE}", "s_nop 0", f"buffer_load_dwordx4 v{DV}, s[4:7], s16 offen lds"],
                [f"s_add_u32 m0, s18, {st*STAGE+8192}", "s_nop 0", f"buffer_load_dwordx4 v{DV+1}, s[8:11], s17 offen lds"],
                [f"s_add_u32 m0, s18, {st*STAGE+16384}", "s_nop 0", f"buffer_load_dwordx4 v{DV}, s[36:39], s40 offen lds"],
                [f"s_add_u32 m0, s18, {st*STAGE+24576}", "s_nop 0", f"buffer_load_dwordx4 v{DV+1}, s[44:47], s41 offen lds"]]

    def reads(st, ul, fs):
        f = FR[fs]
        return [f"ds_read_b128 v[{f}:{f+3}], v{RA+st*stride+ul}",
                f"ds_read_b128 v[{f+4}:{f+7}], v{RA+st*stride+ul} offset:4096",
                f"ds_read_b128 v[{f+8}:{f+11}], v{RA+st*stride+2+ul}"]

    def mfmas(fs):
        f = FR[fs]
        return [f"v_mfma_f32_32x32x16_bf16 v[{ACC+16*mb}:{ACC+16*mb+15}], v[{f+4*mb}:{f+4*mb+3}], v[{f+8}:{f+11}], v[{ACC+16*mb}:{ACC+16*mb+15}]" for mb in range(2)]

    kadv = [f"s_add_u32 s{r_}, s{r_}, {kstep}" for r_ in (16, 17, 40, 41)]
    pipeline(a, tag, nsteps, NS, nu, dmas, reads, mfmas, None, kadv, pre=pre, setup=setup, xtra=xtra, events=events)
    small_epi(a, mode, ACC)


def small_epi(a, mode, AC):
    a("s_and_b32 s26, s22, 1")
    a("s_nop 15\ns_barrier")
    a(f"""
v_lshlrev_b32 v3, 4, v2
s_lshl_b32 s23, s22, 13
v_add_u32 v4, s23, v3
s_lshr_b32 s25, s22, 1
s_lshl_b32 s23, s25, 11
s_lshl_b32 s29, s26, 13
s_add_u32 s23, s23, s29
v_add_u32 v3, s23, v3
""")
    for j in range(8):
        a(f"ds_write_b128 v4, v[{AC+4*j}:{AC+4*j+3}] offset:{j*1024}")
    a("s_waitcnt lgkmcnt(0)\ns_barrier")
    for i in range(4):
        for j in range(2):
            a(f"ds_read_b128 v[{96+8*i+4*j}:{96+8*i+4*j+3}], v3 offset:{i*16384+j*1024}")
    a("s_waitcnt lgkmcnt(4)")
    for r_ in range(8):
        a(f"v_add_f32 v{64+r_}, v{96+r_}, v{104+r_}")
    a("s_waitcnt lgkmcnt(0)")
    for r_ in range(8):
        a(f"v_add_f32 v{72+r_}, v{112+r_}, v{120+r_}")
    if mode == 1:
        for r_ in range(8):
            a(f"v_add_f32 v{64+r_}, v{64+r_}, v{72+r_}")


def pack8(a, dst, src):
    for r_ in range(4):
        a(f"v_cvt_pk_bf16_f32 v{dst+r_}, v{src+2*r_}, v{src+2*r_+1}")
    a(f"s_nop 1\nv_permlane32_swap_b32 v{dst}, v{dst+2}\nv_permlane32_swap_b32 v{dst+1}, v{dst+3}")


S1ACC, S1F, S1A, S1D = 200, 232, 24, 68
S1B = ANS_BYTES = 98304


def stage1_setup(a):
    a(f"""
s_and_b32 s30, s2, 7
s_lshr_b32 s31, s2, 3
s_and_b32 s31, s31, 15
s_and_b32 s54, s30, 3
s_lshl_b32 s54, s54, 2
s_and_b32 s55, s31, 3
s_add_u32 s54, s54, s55
s_lshr_b32 s55, s30, 2
s_lshl_b32 s55, s55, 2
s_lshr_b32 s56, s31, 2
s_add_u32 s55, s55, s56
s_cmp_ge_u32 s2, 128
s_cselect_b32 s8, s52, s50
s_cselect_b32 s9, s53, s51
s_cselect_b32 s56, {WS_XM-WS_XP}, 0
s_cselect_b32 s57, {WS_BT-WS_AT}, 0
s_add_u32 s56, s56, {WS_XP}
s_add_u32 s57, s57, {WS_AT}
s_mov_b32 s10, {1024*2048}
s_mov_b32 s11, 0x00020000
""")
    srd(a, 4, 48, 49, WS_BYTES)
    a(f"""
s_lshl_b32 s40, s54, 17
s_add_u32 s40, s40, s56
s_add_u32 s42, s40, 128
s_lshl_b32 s41, s55, 17
s_add_u32 s43, s41, 128
s_mul_i32 s21, s55, {64*ATP}
s_add_u32 s21, s21, s57
s_lshl_b32 s23, s54, 7
s_add_u32 s21, s21, s23
""")
    t_dma_voff(a, S1D, 1, 2048)


def stage1_setup2(a):
    a("""
s_lshr_b32 s25, s22, 2
s_and_b32 s27, s22, 2
s_lshl_b32 s27, s27, 1
s_lshl_b32 s25, s25, 7
""")
    t_read_addr(a, S1A, 2, 25, 27, S1B, 2, 32768, 4)
    a("s_and_b32 s23, s22, 1\ns_lshl_b32 s23, s23, 5\ns_add_u32 s25, s25, s23")
    t_read_addr(a, S1A + 2, 2, 25, 27, S1B + 8192, 2, 32768, 4)
    for i in range(32):
        a(f"v_mov_b32 v{S1ACC+i}, 0")


def s1_dma(a, buf, i):
    if os.environ.get('NOS1'): return
    sr, so = ((4, 40), (8, 41), (4, 42), (8, 43))[i]
    a(f"s_add_u32 m0, s18, {S1B + buf*32768 + i*8192}\ns_nop 0\nbuffer_load_dwordx4 v{S1D}, s[{sr}:{sr+3}], s{so} offen lds\ns_add_u32 s{so}, s{so}, 256")


def s1_reads(a, buf):
    if os.environ.get('NOS1'): return
    for ul in range(2):
        f = S1F + 12 * ul
        a(f"""
ds_read_b128 v[{f}:{f+3}], v{S1A+buf*4+ul}
ds_read_b128 v[{f+4}:{f+7}], v{S1A+buf*4+ul} offset:4096
ds_read_b128 v[{f+8}:{f+11}], v{S1A+buf*4+2+ul}
""")


def s1_mfma(a, i):
    if os.environ.get('NOS1'): return
    ul, mb = i >> 1, i & 1
    f = S1F + 12 * ul
    c = S1ACC + 16 * mb
    a(f"v_mfma_f32_32x32x16_bf16 v[{c}:{c+15}], v[{f+4*mb}:{f+4*mb+3}], v[{f+8}:{f+11}], v[{c}:{c+15}]")


def stage1_store(a):
    a("s_waitcnt vmcnt(0) lgkmcnt(0)")
    small_epi(a, 1, S1ACC)
    pack8(a, 16, 64)
    a(f"""
v_and_b32 v3, 31, v2
s_lshl_b32 s23, s26, 5
v_add_u32 v3, s23, v3
s_mov_b32 s23, {ATP}
v_mul_lo_u32 v3, v3, s23
v_lshrrev_b32 v4, 5, v2
v_lshl_add_u32 v3, v4, 4, v3
s_lshl_b32 s23, s25, 5
s_add_u32 s23, s23, s21
buffer_store_dwordx4 v[16:19], v3, s[12:15], s23 offen
""")


def dot_loads(a, dst, srdA, soffA, srdB, soffB):
    for (d, sr, so) in ((dst, srdA, soffA), (dst + 12, srdB, soffB)):
        a(f"""
buffer_load_dwordx4 v[{d}:{d+3}], v10, s[{sr}:{sr+3}], s{so} offen
buffer_load_dwordx4 v[{d+4}:{d+7}], v10, s[{sr}:{sr+3}], s{so} offen offset:16
buffer_load_dwordx4 v[{d+8}:{d+11}], v11, s[{sr}:{sr+3}], s{so} offen
""")


def dot_compute(a, res, src, t):
    a(f"v_mov_b32 v{res}, 0")
    for i in range(12):
        a(f"v_dot2c_f32_bf16 v{res}, v{src+i}, v{src+12+i}")
    a("s_nop 3")
    wave_sum(a, res, t)


def edge_issue(a):
    srd(a, 64, 56, 57, 2048 * 4096)
    srd(a, 68, 48, 49, WS_BYTES)
    a(f"""
s_lshr_b32 s74, s2, 3
s_and_b32 s74, s74, 15
s_and_b32 s75, s2, 7
v_lshlrev_b32 v10, 5, v2
v_lshlrev_b32 v11, 4, v2
v_add_u32 v11, 2048, v11
v_mov_b32 v3, 0x7ffffff0
v_cmp_gt_u32 vcc, 8, v2
s_lshl_b32 s58, s74, 6
s_lshl_b32 s23, s75, 3
s_add_u32 s58, s58, s23
s_add_u32 s58, s58, s22
v_cndmask_b32 v11, v3, v11, vcc
s_lshl_b32 s59, s58, 12
s_mov_b32 s60, {WS_AT + 512*ATP}
s_lshl_b32 s61, s75, 6
s_lshl_b32 s23, s74, 2
s_add_u32 s61, s61, s23
s_add_u32 s61, s61, s22
s_cmp_ge_u32 s22, 4
s_cselect_b32 s61, 512, s61
s_mul_i32 s62, s61, {ATP}
s_add_u32 s62, s62, {WS_AT}
s_mov_b32 s63, {1024*4096}
s_lshr_b32 s75, s22, 2
s_lshl_b32 s23, s2, 3
s_add_u32 s23, s23, s22
s_cmp_eq_u32 s23, 4
s_cselect_b32 s75, 0, s75
s_cmp_lg_u32 s75, 0
s_cselect_b32 s62, 0x7fff0000, s62
s_cselect_b32 s63, 0x7fff0000, s63
""")


def edge_loads(a):
    flag_load(a, 212, 76, 48, 49)
    dot_loads(a, 164, 64, 59, 68, 60)
    dot_loads(a, 188, 64, 63, 68, 62)


def edge_finish(a):
    flag_test(a, 212)
    a("s_cbranch_scc1 L_edge_done")
    dot_compute(a, 160, 164, 3)
    dot_compute(a, 161, 188, 3)
    a(f"""
v_cvt_pk_bf16_f32 v160, v160, v161
v_lshrrev_b32 v161, 16, v160
s_mov_b64 exec, 3
s_sub_u32 s23, 2048, s58
v_mov_b32 v3, s58
v_mov_b32 v4, s23
v_cmp_eq_u32 vcc, 0, v2
s_nop 1
v_cndmask_b32 v3, v4, v3, vcc
v_lshlrev_b32 v3, 12, v3
buffer_store_short v160, v3, s[12:15], 0 offen offset:3072
s_sub_u32 s23, 1024, s61
v_mov_b32 v3, s61
v_mov_b32 v4, s23
s_nop 0
v_cndmask_b32 v3, v4, v3, vcc
v_lshlrev_b32 v3, 1, v3
v_add_u32 v3, {1024*4096 + 2048}, v3
s_cmp_eq_u32 s61, 0
s_cselect_b64 s[72:73], 1, 3
s_cmp_lg_u32 s75, 0
s_cselect_b64 s[72:73], 0, s[72:73]
s_mov_b64 exec, s[72:73]
s_cbranch_execz L_edge_done
buffer_store_short v161, v3, s[12:15], 0 offen
L_edge_done:
s_mov_b64 exec, -1
""")


def stage2(a):
    a(f"""
s_and_b32 s54, s30, 3
s_lshl_b32 s54, s54, 2
s_and_b32 s55, s31, 3
s_add_u32 s54, s54, s55
s_lshr_b32 s55, s30, 2
s_lshl_b32 s55, s55, 2
s_lshr_b32 s56, s31, 2
s_add_u32 s55, s55, s56
""")
    srd(a, 4, 48, 49, WS_BYTES)
    srd(a, 36, 48, 49, WS_BYTES)
    srd(a, 8, 50, 51, 2048 * 4096)
    srd(a, 44, 52, 53, 2048 * 4096)
    srd(a, 12, 34, 35, 2048 * 4096)
    a(f"""
s_mul_i32 s16, s55, {64*ATP}
s_add_u32 s40, s16, {WS_BT}
s_add_u32 s16, s16, {WS_AT}
s_lshl_b32 s17, s54, 18
s_mov_b32 s41, s17
""")
    wave_setup(a)
    flag_load(a, 212, 76, 48, 49)

    def pre():
        a("s_waitcnt vmcnt(12)")
        flag_test(a, 212)
        a("s_cbranch_scc1 L_k3_fb")

    small_gemm(a, "s2", 2, ATP, 4096, 17, 128, pre=pre)
    for r_ in range(8):
        a(f"v_sub_f32 v{80+r_}, v{64+r_}, v{72+r_}\nv_add_f32 v{88+r_}, v{64+r_}, v{72+r_}")
    pack8(a, 16, 80)
    pack8(a, 20, 88)
    a("s_nop 0")
    for r_ in range(4):
        a(f"v_alignbit_b32 v{24+r_}, v{19-r_}, v{19-r_}, 16")
        a(f"v_alignbit_b32 v{28+r_}, v{23-r_}, v{23-r_}, 16")
    a(f"""
v_and_b32 v3, 31, v2
s_lshl_b32 s23, s26, 5
s_lshl_b32 s29, s54, 6
s_add_u32 s23, s23, s29
v_add_u32 v3, s23, v3
v_sub_u32 v4, 2048, v3
v_lshlrev_b32 v3, 12, v3
v_lshlrev_b32 v4, 12, v4
v_lshrrev_b32 v5, 5, v2
v_lshlrev_b32 v5, 4, v5
s_lshl_b32 s23, s25, 5
s_lshl_b32 s29, s55, 7
s_add_u32 s23, s23, s29
v_add_u32 v5, s23, v5
v_add_u32 v6, v3, v5
v_add_u32 v7, v4, v5
v_sub_u32 v8, 4082, v5
v_add_u32 v9, v4, v8
v_add_u32 v8, v3, v8
buffer_store_dwordx4 v[16:19], v6, s[12:15], 0 offen offset:2048
buffer_store_dwordx4 v[20:23], v7, s[12:15], 0 offen offset:2048
v_cmp_ne_u32 vcc, 0, v5
s_and_saveexec_b64 s[64:65], vcc
buffer_store_dwordx4 v[28:31], v8, s[12:15], 0 offen
buffer_store_dwordx4 v[24:27], v9, s[12:15], 0 offen
s_andn2_b64 exec, s[64:65], exec
s_cbranch_execz L_s2_e2
buffer_store_dwordx3 v[28:30], v8, s[12:15], 0 offen
buffer_store_short v31, v8, s[12:15], 0 offen offset:12
buffer_store_dwordx3 v[24:26], v9, s[12:15], 0 offen
buffer_store_short v27, v9, s[12:15], 0 offen offset:12
L_s2_e2:
s_mov_b64 exec, s[64:65]
""")


def fold(a):
    wave_setup(a)
    srd(a, 4, 40, 41, 2048 * 2048)
    srd(a, 8, 44, 45, 1024 * 2048)
    a(f"""
v_lshlrev_b32 v6, 5, v2
s_lshl_b32 s16, s31, 5
s_lshl_b32 s23, s22, 2
s_add_u32 s16, s16, s23
s_mov_b32 s17, {512*2048}
buffer_load_dwordx4 v[8:11], v6, s[8:11], s17 offen
buffer_load_dwordx4 v[12:15], v6, s[8:11], s17 offen offset:16
""")
    for i in range(4):
        b = 16 + 16 * i
        a(f"""
s_add_u32 s23, s16, {i}
s_sub_u32 s24, 2048, s23
s_lshl_b32 s23, s23, 11
s_lshl_b32 s24, s24, 11
buffer_load_dwordx4 v[{b}:{b+3}], v6, s[4:7], s23 offen
buffer_load_dwordx4 v[{b+4}:{b+7}], v6, s[4:7], s23 offen offset:16
buffer_load_dwordx4 v[{b+8}:{b+11}], v6, s[4:7], s24 offen
buffer_load_dwordx4 v[{b+12}:{b+15}], v6, s[4:7], s24 offen offset:16
""")
    for i in range(4):
        b = 16 + 16 * i
        o = 96 + 16 * i
        a(f"s_waitcnt vmcnt({(3-i)*4 + 5*i})")
        a(f"v_mov_b32 v{88+i}, 0")
        for j in range(8):
            a(f"""
v_lshlrev_b32 v80, 16, v{b+j}
v_and_b32 v81, 0xffff0000, v{b+j}
v_lshlrev_b32 v82, 16, v{b+8+j}
v_and_b32 v83, 0xffff0000, v{b+8+j}
v_add_f32 v84, v80, v82
v_add_f32 v85, v81, v83
v_sub_f32 v86, v80, v82
v_sub_f32 v87, v81, v83
v_cvt_pk_bf16_f32 v{o+j}, v84, v85
v_cvt_pk_bf16_f32 v{o+8+j}, v86, v87
v_dot2c_f32_bf16 v{88+i}, v{o+j}, v{8+j}
""")
        a(f"""
s_add_u32 s23, s16, {i}
s_lshl_b32 s24, s23, 11
s_add_u32 s25, s24, {WS_XM}
s_add_u32 s24, s24, {WS_XP}
buffer_store_dwordx4 v[{o}:{o+3}], v6, s[12:15], s24 offen
buffer_store_dwordx4 v[{o+4}:{o+7}], v6, s[12:15], s24 offen offset:16
buffer_store_dwordx4 v[{o+8}:{o+11}], v6, s[12:15], s25 offen
buffer_store_dwordx4 v[{o+12}:{o+15}], v6, s[12:15], s25 offen offset:16
""")
        wave_sum(a, 88 + i, 3)
        a(f"""
v_cvt_pk_bf16_f32 v{88+i}, v{88+i}, v{88+i}
s_lshl_b32 s23, s23, 1
s_add_u32 s23, s23, {WS_AT + 512*ATP}
v_mov_b32 v4, 0
s_mov_b64 exec, 1
buffer_store_short v{88+i}, v4, s[12:15], s23 offen
s_mov_b64 exec, -1
""")


def edge_mv(a):
    wave_setup(a)
    srd(a, 4, 40, 41, 2048 * 2048)
    srd(a, 8, 44, 45, 513 * 2048)
    a(f"""
v_lshlrev_b32 v6, 5, v2
s_lshl_b32 s16, s31, 3
s_add_u32 s16, s16, s22
s_mul_i32 s16, s16, 9
s_mov_b32 s17, {1024*2048}
buffer_load_dwordx4 v[8:11], v6, s[4:7], s17 offen
buffer_load_dwordx4 v[12:15], v6, s[4:7], s17 offen offset:16
v_lshlrev_b32 v7, 2, v2
""")
    for i in range(9):
        b = 16 + 8 * i
        a(f"""
s_add_u32 s23, s16, {i}
s_lshl_b32 s23, s23, 11
buffer_load_dwordx4 v[{b}:{b+3}], v6, s[8:11], s23 offen
buffer_load_dwordx4 v[{b+4}:{b+7}], v6, s[8:11], s23 offen offset:16
""")
    a("s_waitcnt vmcnt(0)\nv_mov_b32 v5, 0")
    for i in range(9):
        b = 16 + 8 * i
        a(f"v_mov_b32 v{96+i}, 0")
        for j in range(8):
            a(f"v_dot2c_f32_bf16 v{96+i}, v{b+j}, v{8+j}")
        a("s_nop 3")
        wave_sum(a, 96 + i, 3)
        a(f"""
v_cvt_pk_bf16_f32 v{96+i}, v{96+i}, v5
v_cmp_eq_u32 vcc, 0, v2
s_add_u32 s23, s16, {i}
s_cmp_gt_u32 s23, 512
s_cbranch_scc1 L_emv_done
v_cndmask_b32 v{96+i}, v5, v{96+i}, vcc
s_mul_i32 s23, s23, {ATP}
s_add_u32 s24, s23, {WS_BT + 2048}
s_add_u32 s23, s23, {WS_AT + 2048}
s_mov_b32 exec_hi, 0
buffer_store_dword v{96+i}, v7, s[12:15], s23 offen
buffer_store_dword v5, v7, s[12:15], s24 offen
s_mov_b64 exec, -1
""")
    a("L_emv_done:")


VTOL = 2.0 ** -8 * 1.01
VMAX = 70
VB = 152


def cmp_dw(a, x, y, neg, rev=False):
    lo_y, hi_y = (f"v_and_b32 v5, 0xffff0000, v{y}", f"v_lshlrev_b32 v6, 16, v{y}") if rev else (f"v_lshlrev_b32 v5, 16, v{y}", f"v_and_b32 v6, 0xffff0000, v{y}")
    a(f"""
v_lshlrev_b32 v3, 16, v{x}
v_and_b32 v4, 0xffff0000, v{x}
{lo_y}
{hi_y}
v_fmac_f32 v3, s60, v5
v_fmac_f32 v4, s60, v6
v_max3_f32 v{VMAX}, |v3|, |v4|, v{VMAX}
""")


def verify_c_setup(a):
    a(f"""
s_bitcmp1_b32 s58, 0
s_cselect_b32 s76, s94, s92
s_cselect_b32 s77, s95, s93
s_cselect_b32 s60, 1.0, -1.0
s_mov_b32 s78, {2048*4096}
s_mov_b32 s79, 0x00020000
s_sub_u32 s62, 2048, s61
s_and_b32 s62, s62, 2047
s_lshl_b32 s61, s61, 12
s_lshl_b32 s62, s62, 12
""")


AMN, AMR, VAD, VRV = 192, 196, 69, 71


def verify_setup(a):
    a("s_lshl_b32 s58, s2, 3\ns_add_u32 s58, s58, s22\ns_lshr_b32 s61, s58, 1")
    verify_c_setup(a)
    a(f"""
s_bitcmp1_b32 s58, 0
s_mov_b32 s59, 0xbf80
s_cselect_b32 s59, 0x3f80, s59
v_and_b32 v3, 15, v2
v_bfe_u32 v4, v2, 4, 1
v_lshlrev_b32 v4, 3, v4
v_cmp_gt_u32 vcc, 32, v2
v_mov_b32 v5, s59
v_mov_b32 v6, 0x3f80
v_sub_u32 v7, 15, v3
v_cndmask_b32 v5, v5, v6, vcc
v_cndmask_b32 v7, v7, v3, vcc
v_sub_u32 v3, v3, v4
v_sub_u32 v7, v7, v4
""")
    for base, j in ((AMN, 3), (AMR, 7)):
        a(f"""
v_and_b32 v4, 1, v{j}
v_lshlrev_b32 v4, 4, v4
v_lshlrev_b32 v4, v4, v5
v_lshrrev_b32 v6, 1, v{j}
""")
        for r_ in range(4):
            a(f"v_cmp_eq_u32 vcc, {r_}, v6\ns_nop 1\nv_cndmask_b32 v{base+r_}, 0, v4, vcc")
    a(f"""
v_and_b32 v3, 15, v2
v_lshlrev_b32 v3, 5, v3
v_bfe_u32 v4, v2, 4, 1
v_lshlrev_b32 v4, 4, v4
v_add_u32 v5, v3, v4
v_sub_u32 v6, v4, v3
v_add_u32 v6, 4064, v6
v_add_u32 v7, 2, v5
v_cmp_gt_u32 vcc, 32, v2
v_mov_b32 v3, s62
v_mov_b32 v4, s61
v_cndmask_b32 v6, v6, v7, vcc
v_cndmask_b32 v3, v3, v4, vcc
v_add_u32 v{VRV}, s61, v6
v_add_u32 v{VAD}, v3, v5
s_mov_b32 s63, 0
""")


def verify_w_switch(a):
    a(f"""
s_bitcmp1_b32 s58, 0
s_cselect_b32 s84, s52, s50
s_cselect_b32 s85, s53, s51
s_mov_b32 s86, {1024*2048}
s_lshr_b32 s59, s58, 2
s_add_u32 s59, s59, 1
s_sub_u32 s63, 1024, s59
s_lshl_b32 s59, s59, 11
s_lshl_b32 s63, s63, 11
v_mov_b32 v3, s63
v_mov_b32 v4, s59
v_cmp_gt_u32 vcc, 32, v2
v_and_b32 v5, 15, v2
v_lshlrev_b32 v5, 5, v5
v_bfe_u32 v6, v2, 4, 1
v_lshl_add_u32 v5, v6, 4, v5
v_cndmask_b32 v3, v3, v4, vcc
v_add_u32 v{VAD}, v3, v5
s_and_b32 s63, s58, 2
s_lshl_b32 s63, s63, 9
""")
    srd(a, 80, 88, 89, 1024 * 2048)
    a(f"""
v_lshl_add_u32 v3, v0, 8, s2
v_lshlrev_b32 v3, 7, v3
buffer_load_dword v{VB+24}, v3, s[80:83], 0 offen
s_mov_b32 s87, 0x00020000
s_lshr_b32 s59, s58, 1
s_and_b32 s59, s59, 7
s_lshl_b32 s59, s59, 9
s_add_u32 s59, s59, {1024*4096}
v_add_u32 v7, s59, v5
""")


def verify_r_switch(a):
    a(f"""
v_mov_b32 v3, 512
v_mov_b32 v4, -512
v_cmp_gt_u32 vcc, 32, v2
s_lshr_b32 s59, s58, 1
s_sub_u32 s63, {1024*4096}, s61
s_and_b32 s23, s58, 0xfffffff9
v_cndmask_b32 v{VAD}, v4, v3, vcc
s_cmp_eq_u32 s23, 0
s_cselect_b32 s59, s59, 0
s_cselect_b32 s63, s63, 0
v_mul_lo_u32 v7, v{VAD}, s59
v_add3_u32 v7, v7, v{VRV}, s63
""")


def touch(a):
    a("""
s_load_dwordx8 s[32:39], s[0:1], 0
s_load_dwordx4 s[40:43], s[0:1], 64
s_sub_u32 s31, s2, 56
s_lshl_b32 s23, s31, 9
v_add_u32 v3, s23, v0
v_lshlrev_b32 v4, 7, v3
s_waitcnt lgkmcnt(0)
""")
    off = 0
    for i, (lo, nb) in enumerate(((36, 65536), (38, 65536), (32, 2048 * 2048), (34, 1024 * 2048), (40, 513 * 2048), (42, 512 * 2048))):
        srd(a, 4 + 4 * i, lo, lo + 1, nb)
        a(f"v_subrev_u32 v5, {off}, v4\nbuffer_load_dword v{10+i}, v5, s[{4+4*i}:{7+4*i}], 0 offen")
        off += (nb + 127) // 128 * 128
    assert off <= 200 * 512 * 128
    a("s_waitcnt vmcnt(0)")


def flag_load(a, vd, sr, lo, hi):
    srd(a, sr, lo, hi, 2048, WS_FLAG)
    a("v_and_b32 v3, 63, v0\nv_lshlrev_b32 v3, 4, v3\nv_add_u32 v4, 4096, v3")
    for j in range(2):
        a(f"buffer_load_dwordx4 v[{vd+4*j}:{vd+4*j+3}], v{3 + j//4}, s[{sr}:{sr+3}], 0 offen offset:{(j%4)*1024}")


def flag_test(a, vd):
    for j in range(1, 7, 2):
        a(f"v_or3_b32 v{vd}, v{vd}, v{vd+j}, v{vd+j+1}")
    a(f"v_or_b32 v{vd}, v{vd}, v{vd+7}")
    a(f"v_cmp_ne_u32 vcc, 0, v{vd}\ns_nop 1\ns_cmp_lg_u64 vcc, 0")


def g3(a):
    a("""
s_and_b32 s50, s30, 3
s_lshl_b32 s50, s50, 2
s_and_b32 s51, s31, 3
s_add_u32 s50, s50, s51
s_lshr_b32 s51, s30, 2
s_lshl_b32 s51, s51, 2
s_lshr_b32 s52, s31, 2
s_add_u32 s51, s51, s52
""")
    srd(a, 4, 40, 41, 2048 * 2048)
    a(f"""
s_cmp_ge_u32 s51, 4
s_cselect_b32 s8, s46, s44
s_cselect_b32 s9, s47, s45
s_cselect_b32 s20, {f32bits(-1.0)}, 1.0
s_mov_b32 s10, {1024*2048}
s_mov_b32 s11, 0x00020000
s_lshl_b32 s16, s50, 18
s_and_b32 s17, s51, 3
s_lshl_b32 s17, s17, 19
s_lshl_b32 s21, s51, 20
s_lshl_b32 s23, s50, 8
s_add_u32 s21, s21, s23
s_add_u32 s21, s21, {WS_AB}
""")
    gemm(a, "g3", 2, 4, 1, 'T', 2048, 2048, 16, 3, 4096, scale=True)


def touch2(a):
    a("""
v_lshl_add_u32 v3, v0, 8, s2
v_lshlrev_b32 v4, 7, v3
v_lshrrev_b32 v5, 5, v3
v_and_b32 v6, 31, v3
v_lshlrev_b32 v5, 12, v5
v_lshl_add_u32 v5, v6, 7, v5
v_mov_b32 v7, 0x7ffffff0
v_cmp_gt_u32 vcc, 17, v6
""")
    srd(a, 76, 88, 89, 1024 * 2048)
    a("v_cndmask_b32 v5, v7, v5, vcc\nbuffer_load_dword v196, v4, s[76:79], 0 offen")
    srd(a, 80, 92, 93, 1025 * 4096)
    a("buffer_load_dword v197, v5, s[80:83], 0 offen")
    srd(a, 84, 94, 95, 1025 * 4096)
    a("buffer_load_dword v198, v5, s[84:87], 0 offen")


def k1(a):
    kernel_header(a, "k1_kernel")
    a("""
s_cmp_ge_u32 s2, 256
s_cbranch_scc1 L_k1_end
s_load_dwordx4 s[32:35], s[0:1], 0
s_load_dwordx2 s[50:51], s[0:1], 64
s_load_dwordx2 s[52:53], s[0:1], 72
s_load_dwordx2 s[88:89], s[0:1], 32
s_load_dwordx4 s[92:95], s[0:1], 48
s_load_dwordx2 s[48:49], s[0:1], 96
s_load_dwordx4 s[64:67], s[0:1], 16
s_load_dwordx2 s[74:75], s[0:1], 40
s_load_dwordx2 s[90:91], s[0:1], 88
""")
    wave_setup(a)
    a(f"""
v_lshrrev_b32 v3, 3, v2
v_lshl_add_u32 v3, v1, 5, v3
v_bfe_u32 v4, v3, 1, 1
v_bfe_u32 v5, v2, 2, 1
v_xor_b32 v4, v4, v5
v_and_b32 v5, 3, v2
v_lshlrev_b32 v5, 4, v5
v_lshl_add_u32 v5, v4, 6, v5
v_lshl_add_u32 v6, v3, 11, v5
v_subrev_u32 v3, 64, v3
v_bfe_u32 v4, v3, 1, 3
v_and_b32 v5, 7, v2
v_xor_b32 v4, v4, v5
v_lshlrev_b32 v4, 4, v4
v_lshl_add_u32 v7, v3, 11, v4
v_lshlrev_b32 v8, 4, v2
v_cmp_gt_u32 vcc, 2, v1
v_mov_b32 v9, 64
v_mov_b32 v10, {8*2048}
v_cndmask_b32 v152, v7, v6, vcc
v_cndmask_b32 v9, v9, 0, vcc
v_cmp_lt_u32 vcc, 5, v1
v_mov_b32 v11, 1024
s_lshl_b32 s20, s22, 12
v_cndmask_b32 v152, v152, v8, vcc
v_cndmask_b32 v9, v9, 0, vcc
v_cndmask_b32 v10, v10, v11, vcc
v_xor_b32 v153, v152, v9
v_add_u32 v153, v153, v10
v_lshl_add_u32 v154, v10, 1, v152
v_lshl_add_u32 v155, v10, 1, v153
s_waitcnt lgkmcnt(0)
s_cmp_ge_u32 s2, 128
s_cselect_b32 s96, s66, s64
s_cselect_b32 s97, s67, s65
s_mov_b32 s98, 65536
s_mov_b32 s99, 0x00020000
s_cmp_lt_u32 s22, 6
s_cselect_b32 s96, s32, s96
s_cselect_b32 s97, s33, s97
s_cselect_b32 s98, {2048*2048}, s98
s_cmp_lt_u32 s22, 2
s_cselect_b32 s96, s34, s96
s_cselect_b32 s97, s35, s97
s_cselect_b32 s98, {1024*2048}, s98
""")
    TLK[0] = 0
    srd(a, 12, 48, 49, WS_BYTES)
    srd(a, 36, 34, 35, 1024 * 2048)
    srd(a, 44, 32, 33, 2048 * 2048)
    srd(a, 80, 74, 75, 2048 * 2048)
    srd(a, 84, 50, 51, 513 * 2048)
    tl(a, 0)
    a(f"""
s_and_b32 s30, s2, 7
s_lshr_b32 s31, s2, 3
s_and_b32 s54, s30, 3
s_lshl_b32 s54, s54, 2
s_and_b32 s55, s31, 3
s_add_u32 s54, s54, s55
s_lshr_b32 s55, s30, 2
s_lshl_b32 s55, s55, 3
s_lshr_b32 s56, s31, 2
s_add_u32 s55, s55, s56
s_lshl_b32 s16, s55, 7
s_lshl_b32 s17, s54, 18
s_add_u32 s26, s17, s16
s_cmp_lt_u32 s22, 2
s_cselect_b32 s16, s16, s17
s_mov_b32 s23, 128
s_cselect_b32 s17, {64*2048}, s23
s_cmp_ge_u32 s22, 6
s_cselect_b32 s16, 0, s16
s_cselect_b32 s17, 4096, s17
s_mov_b32 s5, 0
s_and_b32 s24, s55, 3
s_lshl_b32 s23, s54, 2
s_add_u32 s24, s24, s23
s_lshl_b32 s24, s24, 12
s_add_u32 s24, s24, {WS_KF}
s_lshl_b32 s26, s2, 14
s_lshl_b32 s23, s22, 11
s_add_u32 s26, s26, s23
s_cmp_ge_u32 s2, 128
s_cselect_b32 s8, s52, s50
s_cselect_b32 s9, s53, s51
s_mov_b32 s10, {512*2048}
s_mov_b32 s11, 0x00020000
""")

    def hook(role):
        if role == 'F':
            a(f"""
v_mov_b32 v248, 0
s_lshr_b32 s23, s2, 3
s_lshl_b32 s30, s23, 15
s_and_b32 s31, s2, 3
s_lshl_b32 s31, s31, 20
s_add_u32 s30, s30, s31
s_add_u32 s30, s30, 512
v_lshlrev_b32 v251, 7, v2
v_lshrrev_b32 v4, 2, v2
v_and_b32 v5, 3, v2
v_lshlrev_b32 v5, 7, v5
v_lshl_add_u32 v252, v4, 11, v5
v_lshrrev_b32 v4, 3, v2
v_and_b32 v5, 7, v2
v_lshlrev_b32 v5, 7, v5
v_lshl_add_u32 v253, v4, 11, v5
s_lshl_b32 s31, s23, 14
s_and_b32 s23, s2, 4
s_lshl_b32 s23, s23, 8
s_add_u32 s31, s31, s23
s_add_u32 s31, s31, {256*2048}
s_mov_b32 s100, s30
s_mov_b32 s101, s31
s_cmp_lg_u32 s22, 7
s_cbranch_scc1 L_not7
s_and_b32 s54, s2, 127
s_lshl_b32 s54, s54, 13
s_lshr_b32 s23, s2, 3
s_and_b32 s23, s23, 7
s_lshl_b32 s23, s23, 13
buffer_load_dword v249, v251, s[96:99], s23 offen
""")
            for j in range(len(TS)):
                if TS[j] < 0:
                    touch_j(a, j)
            a(f"""
L_not7:
""")
        a("v_lshlrev_b32 v9, 4, v2")
    a(f"""
s_cmp_ge_u32 s55, 8
s_cselect_b32 s23, 6, 7
s_cmp_ge_u32 s22, s23
s_cbranch_scc1 L_qg_F
s_cmp_ge_u32 s55, 8
s_cbranch_scc1 L_qg_D
s_and_b32 s23, s55, 3
s_cmp_lg_u32 s22, s23
s_cbranch_scc1 L_qg_D
s_cmp_ge_u32 s55, 4
s_cbranch_scc1 L_qg_PV
""")
    for role in ('PK', 'PV', 'F', 'D'):
        a(f"L_qg_{role}:")
        q_gemm(a, hook, role)
        if role != 'D':
            a("s_branch L_qg_done")
    a("L_qg_done:")
    tl(a, 5, True)
    a("L_k1_end:\ns_endpgm")


def k2(a):
    kernel_header(a, "k2_kernel")
    a("""
s_cmp_ge_u32 s2, 256
s_cbranch_scc1 L_k2_end
s_load_dwordx4 s[32:35], s[0:1], 0
s_load_dwordx2 s[50:51], s[0:1], 64
s_load_dwordx2 s[52:53], s[0:1], 72
s_load_dwordx2 s[88:89], s[0:1], 32
s_load_dwordx4 s[92:95], s[0:1], 48
s_load_dwordx2 s[48:49], s[0:1], 96
s_waitcnt lgkmcnt(0)
""")
    TLK[0] = 1
    tl(a, 0)
    srd(a, 12, 48, 49, WS_BYTES)
    srd(a, 36, 34, 35, 1024 * 2048)
    srd(a, 44, 32, 33, 2048 * 2048)
    a("""
s_and_b32 s30, s2, 7
s_lshr_b32 s31, s2, 3
s_and_b32 s54, s30, 3
s_lshl_b32 s54, s54, 2
s_and_b32 s55, s31, 3
s_add_u32 s54, s54, s55
s_lshr_b32 s55, s30, 2
s_lshl_b32 s55, s55, 3
s_lshr_b32 s56, s31, 2
s_add_u32 s55, s55, s56
s_lshl_b32 s16, s55, 7
s_lshl_b32 s17, s54, 18
s_add_u32 s26, s17, s16
""")
    attention(a, "at", "L_k2_end")
    a("L_k2_end:\ns_endpgm")


def k3(a):
    kernel_header(a, "k3_kernel")
    a("""
s_cmp_ge_u32 s2, 256
s_cbranch_scc1 L_k3_end
s_load_dwordx2 s[32:33], s[0:1], 32
s_and_b32 s30, s2, 1
s_and_b32 s31, s2, 2
s_lshl_b32 s31, s31, 1
s_or_b32 s30, s30, s31
s_lshr_b32 s31, s2, 7
s_lshl_b32 s31, s31, 1
s_or_b32 s30, s30, s31
s_and_b32 s31, s2, 0x78
s_or_b32 s30, s30, s31
s_and_b32 s31, s2, 4
s_lshl_b32 s31, s31, 5
s_or_b32 s2, s30, s31
s_load_dwordx2 s[34:35], s[0:1], 80
s_load_dwordx2 s[48:49], s[0:1], 96
s_load_dwordx4 s[56:59], s[0:1], 48
s_and_b32 s30, s2, 7
s_lshr_b32 s31, s2, 3
s_waitcnt lgkmcnt(0)
""")
    TLK[0] = 2
    tl(a, 0)
    a("""
s_cmp_ge_u32 s2, 128
s_cbranch_scc1 L_k3_s2
s_and_b32 s50, s30, 1
s_lshl_b32 s50, s50, 2
s_and_b32 s51, s31, 3
s_add_u32 s50, s50, s51
s_lshr_b32 s51, s30, 1
s_lshl_b32 s51, s51, 2
s_lshr_b32 s52, s31, 2
s_add_u32 s51, s51, s52
""")
    srd(a, 4, 32, 33, 1024 * 2048)
    srd(a, 8, 48, 49, 2048 * 2048, WS_O)
    srd(a, 12, 34, 35, 2048 * 4096)
    a("""
s_lshl_b32 s16, s50, 8
s_lshl_b32 s17, s51, 18
s_lshl_b32 s21, s51, 19
s_add_u32 s21, s21, s16
""")
    ES = int(os.environ.get('ES', '12'))
    gemm(a, "g5", 2, 2, 2, 'N', 2048, 2048, 16, 4, 4096, events={ES: lambda: (edge_issue(a), edge_loads(a))}, extras={ES: 14})
    a("s_waitcnt vmcnt(" + os.environ.get('EW', '4') + ")")
    edge_finish(a)
    tl(a, 5, True)
    a("""
s_endpgm
L_k3_s2:
s_sub_u32 s31, s31, 16
s_mov_b32 s50, s56
s_mov_b32 s51, s57
s_mov_b32 s52, s58
s_mov_b32 s53, s59
""")
    stage2(a)
    tl(a, 5, True)
    a("""
s_endpgm
L_k3_fb:
s_load_dwordx2 s[40:41], s[0:1], 40
s_load_dwordx4 s[44:47], s[0:1], 64
s_load_dwordx2 s[90:91], s[0:1], 88
s_mov_b32 s36, s34
s_mov_b32 s37, s35
s_mov_b32 s32, s50
s_mov_b32 s33, s51
s_mov_b32 s34, s52
s_mov_b32 s35, s53
s_waitcnt vmcnt(0) lgkmcnt(0)
s_barrier
""")
    srd(a, 12, 48, 49, WS_BYTES)
    g3(a)
    a("""
s_waitcnt vmcnt(0) lgkmcnt(0)
s_barrier
s_cmp_lg_u32 s22, 0
s_cbranch_scc1 L_k3_gb2
buffer_wbl2 sc1
s_waitcnt vmcnt(0)
v_mov_b32 v3, 0
v_mov_b32 v4, 1
s_mov_b64 exec, 1
global_atomic_add v3, v4, s[90:91] sc1
s_waitcnt vmcnt(0)
L_k3_gb1:
s_sleep 8
global_load_dword v5, v3, s[90:91] sc1
s_waitcnt vmcnt(0)
v_readfirstlane_b32 s23, v5
s_nop 3
s_cmp_lt_u32 s23, 128
s_cbranch_scc1 L_k3_gb1
s_mov_b64 exec, -1
buffer_inv sc1
s_waitcnt vmcnt(0)
L_k3_gb2:
s_barrier
""")
    g4(a)
    a("L_k3_end:\ns_endpgm")


def V(n):
    return 256 if os.environ.get('TL') else n


def main():
    a = Asm()
    hdr = open("cdna_kernels/" + KN + ".s.ref").read().split("; Override launch")[0]
    launches = """; @launch kernel=k1_kernel grid=(256,1,1) block=(512,1,1) lds=131072
; @launch kernel=k2_kernel grid=(256,1,1) block=(512,1,1) lds=163840
; @launch kernel=k3_kernel grid=(256,1,1) block=(512,1,1) lds=147456
"""
    k1(a)
    k2(a)
    k3(a)
    out = hdr + launches + '.amdgcn_target "amdgcn-amd-amdhsa--gfx950"\n.text\n' + a.text()
    out += '.section .rodata,"a"\n.p2align 6\n' + kernel_desc("k1_kernel", V(256), 102) + ".p2align 6\n" + kernel_desc("k2_kernel", V(256)) + ".p2align 6\n" + kernel_desc("k3_kernel", V(248))
    open(sys.argv[1] if len(sys.argv) > 1 else "out.s", "w").write(out)


if __name__ == "__main__":
    main()
```

```python
import sys, os
PROF = os.environ.get('PROF'); NOMFMA = os.environ.get('NOMFMA'); NODMA = os.environ.get('NODMA')

KN = "concat_heads__grouped_kv_mqa__spectral_fnet__prompt"
WS_Q = 0
WS_KF = 4 << 20
WS_VF = (4 << 20) + (128 << 10)
WS_AB = 8 << 20
WS_O = 16 << 20
WS_XP = 26 << 20
WS_XM = 29 << 20
WS_AT = 32 << 20
WS_BT = 34 << 20
WS_FLAG = 36 << 20
ATP = 2176
QSCALE = 1.4426950408889634 * 32 ** -0.5


def f32bits(x):
    import struct
    return struct.unpack("<I", struct.pack("<f", x))[0]


class Asm:
    def __init__(self):
        self.lines = []

    def __call__(self, s):
        for l in s.strip("\n").split("\n"):
            self.lines.append(l if l.endswith(":") else "    " + l.strip())

    def text(self):
        return "\n".join(self.lines) + "\n"


def srd(a, d, lo, hi, nbytes, off=0):
    if off:
        a(f"s_add_u32 s{d}, s{lo}, {off}\ns_addc_u32 s{d+1}, s{hi}, 0")
    else:
        a(f"s_mov_b32 s{d}, s{lo}\ns_mov_b32 s{d+1}, s{hi}")
    a(f"s_mov_b32 s{d+2}, {nbytes}\ns_mov_b32 s{d+3}, 0x00020000")


FR = [16, 32]
UID = [0]
PROFOFF = {'qg': 65536, 'g1': 0, 'g2': 0, 'g3': 0, 'g4': 65536, 'g5': 131072, 's1': 65536, 's2': 131072}
ACC = 64
DV = 48
RA = 128


def pipeline(a, tag, nsteps, NS, nu, dmas, reads, mfmas, nreads, kadv, switch=None, pre=None, setup=None, xtra=0, events=None, extras=None, prebar=None, novm=False, noprol=0):
    nd = len(dmas(0))

    def issue_all(stage):
        for g in dmas(stage % NS):
            for ins in g:
                a(ins)
        for ins in kadv:
            a(ins)

    for st in range(noprol, min(NS - 1, nsteps)):
        issue_all(st)
    if setup is not None:
        setup()
    if pre is not None:
        pre()
    if not novm:
        a(f"s_waitcnt vmcnt({(min(NS - 1, nsteps) - 1) * nd + xtra})")
    a("s_barrier")
    if TLK[0] != 1: stamp_begin(a, 72)
    tl(a, 6 if tag == 's1' else 1) if not (tag == 's2' and TLK[0] == 1) else None
    for ins in reads(0, 0, 0):
        a(ins)
    state = {"set": 0}

    def step(i, dyn=False):
        do_dma = (i + NS - 1) <= nsteps - 1
        groups = list(dmas((i + NS - 1) % NS)) if do_dma else []
        if do_dma and switch is not None:
            if dyn:
                a(switch[2])
            elif i + NS - 1 == switch[0]:
                a(switch[1])
        mcount = len(mfmas(0))
        half = mcount // 2
        nm = (nu - 1) * mcount + half
        slots = [[] for _ in range(nu * mcount)]
        for gi, g in enumerate(groups):
            slots[min(nm - 1, gi * nm // max(1, len(groups)))].extend(g)
        if do_dma:
            slots[nm - 1].extend(kadv)
        last_issued = min(i + NS - 1, nsteps - 1)
        mi = 0

        def emit_m(ms):
            nonlocal mi
            for m in ms:
                if not NOMFMA:
                    a(m)
                for ins in slots[mi]:
                    if NODMA and 'buffer_load' in ins:
                        continue
                    a(ins)
                mi += 1

        for ul in range(nu):
            cur = state["set"]
            nxt = 1 - cur
            ms = mfmas(cur)
            if ul + 1 < nu:
                rd = reads(i % NS, ul + 1, nxt)
                for ins in rd:
                    a(ins)
                a(f"s_waitcnt lgkmcnt({len(rd)})")
                emit_m(ms)
            else:
                a("s_waitcnt lgkmcnt(0)")
                emit_m(ms[:half])
                if i + 1 <= nsteps - 1:
                    ex = sum(n for i2, n in (extras or {}).items() if i + 2 - NS <= i2 < i)
                    if not novm: a(f"s_waitcnt vmcnt({(last_issued - (i + 1)) * nd + ex + (xtra if (i + 1 <= NS - 2 and not dyn) else 0)})")
                    if prebar and i in prebar:
                        prebar[i]()
                    a("s_barrier")
                    for ins in reads((i + 1) % NS, 0, nxt):
                        a(ins)
                emit_m(ms[half:])
                if events and i in events:
                    events[i]()
                if tag == 'qg' and i % 2 == 1 and os.environ.get('TLQ'):
                    tl(a, 8 + i // 2)
            state["set"] = nxt

    xtra_block = False
    steady_end = nsteps - NS + 1
    unroll = NS if (nu % 2 == 0 or NS % 2 == 0) else 2 * NS
    nloop = steady_end // unroll
    if nloop >= 2 and nsteps > int(os.environ.get('LOOPMIN', '16')) and not xtra_block:
        UID[0] += 1
        lab = f"L_{tag}_loop{UID[0]}"
        a(f"s_mov_b32 s19, 0")
        a(f"{lab}:")
        for i in range(unroll):
            step(i, dyn=True)
        a(f"s_add_u32 s19, s19, 1\ns_cmp_lt_u32 s19, {nloop}\ns_cbranch_scc1 {lab}")
        start = nloop * unroll
    else:
        start = 0
    for i in range(start, nsteps):
        step(i)
    if TLK[0] != 1: stamp_end(a, PROFOFF[tag], 72)
    tl(a, 7 if tag == 's1' else 2) if not (tag == 's2' and TLK[0] == 1) else None


def stamp_begin(a, base=66):
    if PROF:
        a(f"s_memtime s[{base}:{base+1}]\ns_memrealtime s[{base+4}:{base+5}]\ns_waitcnt lgkmcnt(0)")


def stamp_end(a, off, base=66):
    if PROF:
        a(f"""s_memtime s[{base+2}:{base+3}]
s_memrealtime s[{base+6}:{base+7}]
s_waitcnt lgkmcnt(0)
s_sub_u32 s{base+2}, s{base+2}, s{base}
s_sub_u32 s{base+6}, s{base+6}, s{base+4}
s_load_dwordx2 s[{base}:{base+1}], s[0:1], 96
s_waitcnt lgkmcnt(0)
s_add_u32 s{base}, s{base}, {24<<20}
s_addc_u32 s{base+1}, s{base+1}, 0
v_mov_b32 v6, s{base+2}
v_mov_b32 v7, s{base+6}
s_lshl_b32 s23, s2, 6
s_lshl_b32 s{base+2}, s22, 3
s_add_u32 s23, s23, s{base+2}
s_add_u32 s23, s23, {off}
v_mov_b32 v5, s23
global_store_dwordx2 v5, v[6:7], s[{base}:{base+1}]
""")


TLK = [0]


def tl(a, slot, drain=False):
    if not os.environ.get('TL'):
        return
    if drain:
        a("s_waitcnt vmcnt(0)")
    b = 66 if TLK[0] <= 1 else 80
    va, vb = (6, 7) if TLK[0] <= 1 else (254, 255)
    a(f"""s_memrealtime s[{b}:{b+1}]
s_load_dwordx2 s[{b+2}:{b+3}], s[0:1], 96
s_waitcnt lgkmcnt(0)
s_add_u32 s{b+2}, s{b+2}, {(24<<20) + (512<<10) + TLK[0]*65536 + slot*4}
s_addc_u32 s{b+3}, s{b+3}, 0
s_lshl_b32 s{b+4}, s2, 6
v_mov_b32 v{va}, s{b+4}
v_mov_b32 v{vb}, s{b}
v_cmp_eq_u32 vcc, 0, v0
s_and_saveexec_b64 s[{b+6}:{b+7}], vcc
global_store_dword v{va}, v{vb}, s[{b+2}:{b+3}]
s_mov_b64 exec, s[{b+6}:{b+7}]
""")


def wave_setup(a):
    a("""
v_lshrrev_b32 v1, 6, v0
s_nop 0
v_readfirstlane_b32 s22, v1
v_and_b32 v2, 63, v0
s_nop 2
s_lshl_b32 s18, s22, 10
""")


def t_dma_voff(a, vdst, n, pitch):
    a(f"""
v_lshrrev_b32 v3, 3, v2
v_lshl_add_u32 v3, v1, 3, v3
v_bfe_u32 v4, v3, 1, 3
v_and_b32 v5, 7, v2
v_xor_b32 v4, v4, v5
v_lshlrev_b32 v4, 4, v4
s_mov_b32 s23, {pitch}
v_mul_lo_u32 v3, v3, s23
v_add_u32 v{vdst}, v3, v4
""")
    for i in range(1, n):
        a(f"v_add_u32 v{vdst+i}, {i*64*pitch}, v{vdst}")


def n_dma_voff(a, vdst, n, pitch, MT):
    lpr = MT * 2 // 16
    rows = 64 // lpr
    sh = lpr.bit_length() - 1
    a(f"""
v_lshrrev_b32 v3, {sh}, v2
v_lshl_add_u32 v3, v1, {rows.bit_length()-1}, v3
v_and_b32 v5, {lpr-1}, v2
v_lshrrev_b32 v6, 2, v5
v_and_b32 v4, 3, v3
v_xor_b32 v6, v6, v4
v_and_b32 v5, 3, v5
v_lshlrev_b32 v5, 4, v5
v_lshl_add_u32 v5, v6, 6, v5
s_mov_b32 s23, {pitch}
v_mul_lo_u32 v3, v3, s23
v_add_u32 v{vdst}, v3, v5
""")
    for i in range(1, n):
        a(f"v_add_u32 v{vdst+i}, {i*8*rows*pitch}, v{vdst}")


def t_read_addr(a, vdst, nu, srow, skg2, base, NS, STAGE, stride):
    a(f"""
v_and_b32 v3, 31, v2
v_bfe_u32 v4, v3, 1, 3
v_lshrrev_b32 v5, 5, v2
v_xor_b32 v4, v4, v5
v_xor_b32 v4, s{skg2}, v4
v_add_u32 v3, s{srow}, v3
v_lshlrev_b32 v3, 7, v3
v_lshl_add_u32 v3, v4, 4, v3
""")
    for st in range(NS):
        for ul in range(nu):
            if ul == 0:
                a(f"v_add_u32 v{vdst+st*stride}, {base+st*STAGE}, v3")
            else:
                a(f"v_xor_b32 v{vdst+st*stride+ul}, {ul*32}, v{vdst+st*stride}")


def n_read_addr(a, vdst, sunit, skrow, LP, base, NS, STAGE, stride, nblk=2):
    a(f"""
v_bfe_u32 v3, v2, 2, 2
v_lshrrev_b32 v4, 5, v2
v_lshl_add_u32 v4, v4, 3, v3
s_mov_b32 s23, {LP}
v_mul_lo_u32 v4, v4, s23
v_add_u32 v4, s{skrow}, v4
v_bfe_u32 v5, v2, 4, 1
v_lshl_add_u32 v4, v5, 5, v4
v_and_b32 v5, 3, v2
v_lshl_add_u32 v4, v5, 3, v4
""")
    for b in range(nblk):
        a(f"""
s_add_u32 s23, s{sunit}, {b}
v_xor_b32 v5, s23, v3
v_lshl_add_u32 v5, v5, 6, v4
""")
        for st in range(NS):
            a(f"v_add_u32 v{vdst+st*stride+b}, {base+st*STAGE}, v5")


def gemm(a, tag, WM, WN, KS, ptype, pP, pR, nsteps, NS, opitch, scale=False, switch=None, touch=None, events=None, extras=None):
    assert WM * WN * KS == 8
    MT, NT = 64 * WM, 64 * WN
    PB, RB = MT * 128, NT * 128
    STAGE = PB + RB
    nu = 4 // KS
    ncP, ncR = PB // 8192, RB // 8192
    wave_setup(a)
    lw = (WM * WN).bit_length() - 1
    lm = WM.bit_length() - 1
    a(f"""
s_lshr_b32 s24, s22, {lw}
s_and_b32 s25, s22, {WM-1}
s_lshr_b32 s26, s22, {lm}
s_and_b32 s26, s26, {WN-1}
""")
    if ptype == 'T':
        t_dma_voff(a, DV, ncP, pP)
    else:
        n_dma_voff(a, DV, ncP, pP, MT)
    t_dma_voff(a, DV + ncP, ncR, pR)
    nP = nu if ptype == 'T' else 2
    stride = nP + nu

    def setup():
        if touch:
            touch[0]() if callable(touch[0]) else a(touch[0])
        a(f"s_mul_i32 s27, s24, {nu*2}")
        if ptype == 'T':
            a(f"s_lshl_b32 s28, s25, 6")
            t_read_addr(a, RA, nu, 28, 27, 0, NS, STAGE, stride)
        else:
            a(f"s_lshl_b32 s28, s25, 1\ns_mul_i32 s29, s24, {nu*16*MT*2}")
            n_read_addr(a, RA, 28, 29, MT * 2, 0, NS, STAGE, stride)
        a(f"s_lshl_b32 s28, s26, 6")
        t_read_addr(a, RA + nP, nu, 28, 27, PB, NS, STAGE, stride)
        for i in range(64):
            a(f"v_mov_b32 v{ACC+i}, 0")

    def dmas(st):
        r = []
        for i in range(ncP):
            r.append([f"s_add_u32 m0, s18, {st*STAGE + i*8192}", "s_nop 0",
                      f"buffer_load_dwordx4 v{DV+i}, s[4:7], s16 offen lds"])
        for i in range(ncR):
            r.append([f"s_add_u32 m0, s18, {st*STAGE + PB + i*8192}", "s_nop 0",
                      f"buffer_load_dwordx4 v{DV+ncP+i}, s[8:11], s17 offen lds"])
        return r

    def reads(st, ul, fs):
        f = FR[fs]
        r = []
        if ptype == 'T':
            for b in range(2):
                r.append(f"ds_read_b128 v[{f+4*b}:{f+4*b+3}], v{RA+st*stride+ul} offset:{b*4096}")
        else:
            for b in range(2):
                for rr in range(2):
                    r.append(f"ds_read_b64_tr_b16 v[{f+4*b+2*rr}:{f+4*b+2*rr+1}], v{RA+st*stride+b} offset:{(16*ul+4*rr)*MT*2}")
        for b in range(2):
            r.append(f"ds_read_b128 v[{f+8+4*b}:{f+8+4*b+3}], v{RA+st*stride+nP+ul} offset:{b*4096}")
        return r

    def mfmas(fs):
        f = FR[fs]
        r = []
        for nb in range(2):
            for mb in range(2):
                c = ACC + 16 * (nb * 2 + mb)
                r.append(f"v_mfma_f32_32x32x16_bf16 v[{c}:{c+15}], v[{f+4*mb}:{f+4*mb+3}], v[{f+8+4*nb}:{f+8+4*nb+3}], v[{c}:{c+15}]")
        return r

    kadv = [f"s_add_u32 s16, s16, {128 if ptype == 'T' else 64*pP}", "s_add_u32 s17, s17, 128"]
    pipeline(a, tag, nsteps, NS, nu, dmas, reads, mfmas, None, kadv, switch, setup=setup, xtra=(touch[1] if touch else 0), events=events, extras=extras)

    a("s_nop 15\ns_nop 3")
    blocks = [(nb, mb) for nb in range(2) for mb in range(2)]
    if KS == 2:
        a("s_barrier")
        a(f"""
v_lshlrev_b32 v3, 4, v2
s_lshl_b32 s23, s22, 13
v_add_u32 v3, s23, v3
s_xor_b32 s23, s22, 4
s_lshl_b32 s23, s23, 13
v_lshlrev_b32 v4, 4, v2
v_add_u32 v4, s23, v4
s_cmp_eq_u32 s24, 0
s_cbranch_scc1 L_{tag}_x0
""")
        for j in range(8):
            a(f"ds_write_b128 v3, v[{ACC+4*j}:{ACC+4*j+3}] offset:{j*1024}")
        for j in range(32):
            a(f"v_mov_b32 v{ACC+j}, v{ACC+32+j}")
        a(f"s_branch L_{tag}_x1\nL_{tag}_x0:")
        for j in range(8):
            a(f"ds_write_b128 v3, v[{ACC+32+4*j}:{ACC+32+4*j+3}] offset:{j*1024}")
        a(f"L_{tag}_x1:\ns_waitcnt lgkmcnt(0)\ns_barrier")
        for j in range(8):
            a(f"ds_read_b128 v[{ACC+32+4*j}:{ACC+32+4*j+3}], v4 offset:{j*1024}")
        for j in range(8):
            a(f"s_waitcnt lgkmcnt({7-j})")
            for r in range(4):
                a(f"v_add_f32 v{ACC+4*j+r}, v{ACC+4*j+r}, v{ACC+32+4*j+r}")
        blocks = [(0, 0), (0, 1)]
    a(f"""
s_lshl_b32 s23, s26, 6
v_and_b32 v3, 31, v2
v_add_u32 v3, s23, v3
""")
    if KS == 2:
        a("s_lshl_b32 s23, s24, 5\nv_add_u32 v3, s23, v3")
    a(f"""
s_mov_b32 s23, {opitch}
v_mul_lo_u32 v3, v3, s23
v_lshrrev_b32 v4, 5, v2
v_lshl_add_u32 v3, v4, 4, v3
s_lshl_b32 s23, s25, 7
s_add_u32 s23, s23, s21
v_add_u32 v3, s23, v3
v_add_u32 v4, {32*opitch}, v3
""")
    for bi, (nb, mb) in enumerate(blocks):
        c = ACC + 16 * (nb * 2 + mb)
        t = 16 + 8 * (bi % 4)
        if scale:
            for r in range(16):
                a(f"v_mul_f32 v{c+r}, s20, v{c+r}")
        for r in range(8):
            a(f"v_cvt_pk_bf16_f32 v{t+r}, v{c+2*r}, v{c+2*r+1}")
        a("s_nop 1")
        for p in range(2):
            a(f"v_permlane32_swap_b32 v{t+4*p}, v{t+4*p+2}\nv_permlane32_swap_b32 v{t+4*p+1}, v{t+4*p+3}")
        for p in range(2):
            a(f"buffer_store_dwordx4 v[{t+4*p}:{t+4*p+3}], v{3+nb}, s[12:15], 0 offen offset:{mb*64+p*32}")


def gemm_kv(a, tag, NS=4):
    PB, RB = 8192, 16384
    STAGE = PB + RB
    nu = 4
    a(f"""
v_and_b32 v3, 3, v1
v_lshlrev_b32 v3, 10, v3
v_lshl_add_u32 v{DV}, v2, 4, v3
""")
    t_dma_voff(a, DV + 1, 2, 2048)
    stride = 1 + nu

    def dmas(st):
        r_ = [[f"s_add_u32 m0, s18, {st*STAGE}", "s_nop 0", f"buffer_load_dwordx4 v{DV}, s[4:7], s16 offen lds"]]
        for i in range(2):
            r_.append([f"s_add_u32 m0, s18, {st*STAGE + PB + i*8192}", "s_nop 0",
                       f"buffer_load_dwordx4 v{DV+1+i}, s[8:11], s17 offen lds"])
        return r_

    def setup():
        a(f"""
v_bfe_u32 v3, v2, 2, 2
v_lshrrev_b32 v4, 5, v2
v_lshl_add_u32 v4, v4, 3, v3
v_lshlrev_b32 v4, 6, v4
v_bfe_u32 v5, v2, 4, 1
v_lshl_add_u32 v4, v5, 5, v4
v_and_b32 v5, 3, v2
v_lshl_add_u32 v4, v5, 3, v4
v_lshrrev_b32 v5, 2, v1
v_lshl_add_u32 v4, v5, 12, v4
""")
        for st in range(NS):
            a(f"v_add_u32 v{RA+st*stride}, {st*STAGE}, v4")
        a("s_mov_b32 s27, 0\ns_and_b32 s28, s22, 3\ns_lshl_b32 s28, s28, 5")
        t_read_addr(a, RA + 1, nu, 28, 27, PB, NS, STAGE, stride)
        for i in range(16):
            a(f"v_mov_b32 v{ACC+i}, 0")

    def reads(st, ul, fs):
        f = FR[fs]
        r_ = []
        for rr in range(2):
            r_.append(f"ds_read_b64_tr_b16 v[{f+2*rr}:{f+2*rr+1}], v{RA+st*stride} offset:{(16*ul+4*rr)*64}")
        r_.append(f"ds_read_b128 v[{f+8}:{f+11}], v{RA+st*stride+1+ul}")
        return r_

    kadv = ["s_add_u32 s16, s16, 4096", "s_add_u32 s17, s17, 128"]
    a(f"s_cmp_ge_u32 s22, 4\ns_cbranch_scc1 L_{tag}_v")
    for kv in range(2):
        if kv:
            a(f"L_{tag}_v:")

        def mfmas(fs):
            f = FR[fs]
            if kv == 0:
                return ["s_nop 0", f"v_mfma_f32_32x32x16_bf16 v[{ACC}:{ACC+15}], v[{f}:{f+3}], v[{f+8}:{f+11}], v[{ACC}:{ACC+15}]"]
            return ["s_nop 0", f"v_mfma_f32_32x32x16_bf16 v[{ACC}:{ACC+15}], v[{f+8}:{f+11}], v[{f}:{f+3}], v[{ACC}:{ACC+15}]"]

        pipeline(a, tag, 16, NS, nu, dmas, reads, mfmas, None, kadv, setup=setup)
        a("s_nop 15\ns_nop 3")
        a(f"""
s_and_b32 s23, s22, 3
s_add_u32 s23, s21, s23
s_lshl_b32 s23, s23, 12
v_lshlrev_b32 v3, 4, v2
v_add_u32 v3, s23, v3
v_add_u32 v3, {WS_KF + 2048*kv}, v3
""")
        for r_ in range(8):
            a(f"v_cvt_pk_bf16_f32 v{16+r_}, v{ACC+2*r_}, v{ACC+2*r_+1}")
        for p in range(2):
            a(f"buffer_store_dwordx4 v[{16+4*p}:{16+4*p+3}], v3, s[12:15], 0 offen offset:{p*1024}")
        if kv == 0:
            tl(a, 5, True)
            a("s_endpgm")


def kernel_header(a, name):
    a.lines.append(f".globl {name}\n.p2align 8\n.type {name},@function\n{name}:")


def kernel_desc(name, vgpr, sgpr=100):
    return f""".amdhsa_kernel {name}
  .amdhsa_next_free_vgpr {vgpr}
  .amdhsa_next_free_sgpr {sgpr}
  .amdhsa_accum_offset {(vgpr+3)//4*4}
  .amdhsa_group_segment_fixed_size 0
  .amdhsa_kernarg_size 104
  .amdhsa_user_sgpr_count 2
  .amdhsa_user_sgpr_kernarg_segment_ptr 1
  .amdhsa_system_sgpr_workgroup_id_x 1
.end_amdhsa_kernel
"""


WS_BYTES = 40 << 20


def g4(a):
    a("""
s_and_b32 s50, s30, 1
s_lshl_b32 s50, s50, 2
s_and_b32 s51, s31, 3
s_add_u32 s50, s50, s51
s_lshr_b32 s51, s30, 1
s_lshl_b32 s51, s51, 2
s_lshr_b32 s52, s31, 2
s_add_u32 s51, s51, s52
""")
    if os.environ.get('SAMETILE') == '1':
        a("s_mov_b32 s50, 0\ns_mov_b32 s51, 0")
    if os.environ.get('SAMETILE') == '2':
        a("s_and_b32 s50, s30, 7\ns_mov_b32 s51, s30")
    if os.environ.get('SAMETILE') == '3':
        a("s_and_b32 s50, s2, 7\ns_lshr_b32 s51, s2, 3")
    srd(a, 4, 48, 49, 2048 * 4096, WS_AB)
    srd(a, 8, 32, 33, 2048 * 4096)
    srd(a, 12, 36, 37, 2048 * 4096)
    a("""
s_lshl_b32 s16, s50, 19
s_lshl_b32 s17, s51, 19
s_lshl_b32 s21, s50, 8
s_add_u32 s21, s21, s17
s_add_u32 s21, s21, 2048
s_add_u32 s53, s17, 4096
""")
    sw = f"""
s_mov_b32 s8, s34
s_mov_b32 s9, s35
s_sub_u32 s17, s17, 4096
s_add_u32 s16, s16, {1024*4096 - 4096}
s_mov_b32 s53, -1
"""
    uid = [0]

    class Dyn(str):
        pass
    dyn = f"""
s_cmp_eq_u32 s17, s53
s_cselect_b32 s8, s34, s8
s_cselect_b32 s9, s35, s9
s_cselect_b32 s23, 4096, 0
s_cselect_b32 s54, {1024*4096 - 4096}, 0
s_cselect_b32 s53, -1, s53
s_sub_u32 s17, s17, s23
s_add_u32 s16, s16, s54
"""
    gemm(a, "g4", 2, 2, 2, 'T', 4096, 4096, 64, 4, 4096, switch=(32, sw, dyn))


TPS = 8
ASTAGE = TPS * 4096
ANS = 3
NSTG = 64 // TPS
Q0, KF_, VF_, P_, ONES, LA, LB, NEGM, SX, SY, OA, OB = 16, 32, 40, 48, 56, 60, 64, 72, 88, 104, 120, 136
ST, KT, VT, PT = 152, 168, 176, 184
THR1 = 2.0 ** int(os.environ.get('THR1', '92'))
THR2 = 2.0 ** 120
MARGIN = int(os.environ.get('MARGIN', '100'))


def r(b, n):
    return f"v[{b}:{b+n-1}]"


def mf32(d, a_, b_, c):
    return f"v_mfma_f32_32x32x16_bf16 {r(d,16)}, {r(a_,4)}, {r(b_,4)}, {r(c,16) if isinstance(c,int) else c}"


def mf16(d, a_, b_, c):
    return f"v_mfma_f32_16x16x32_bf16 {r(d,4)}, {r(a_,4)}, {r(b_,4)}, {r(c,4)}"


def attn_dma(a, i):
    a(f"s_add_u32 m0, s17, {i*8192}\ns_nop 0\nbuffer_load_dwordx4 v{12+i}, s[12:15], s16 offen lds")


def attn_dma_adv(a):
    a(f"""
s_add_u32 s16, s16, {ASTAGE}
s_add_u32 s17, s17, {ASTAGE}
s_sub_u32 s30, s17, {ANS*ASTAGE}
s_cmp_ge_u32 s17, {ANS*ASTAGE}
s_cselect_b32 s17, s30, s17
""")


def cap(fn, *args):
    t = Asm()
    fn(t, *args)
    return [l.strip() for l in t.lines]


def attn_tile(a, g, tt, X, Y, Oc, Od, lc, ld, H, nx):
    cur, nxt = (g % ANS) * ASTAGE, ((g + 1) % ANS) * ASTAGE

    def rd(dst, t2, part):
        if g == NSTG - 1 and t2 >= TPS:
            t2 = TPS - 1
        base = cur if t2 < TPS else nxt
        off = base + (t2 % TPS) * 4096 + part * 1024
        a(f"ds_read_b128 {r(dst,4)}, v{10 + off // 65536} offset:{off % 65536}")
    last = (tt == TPS - 1)
    E = lambda i: a(f"v_exp_f32 v{X+i}, v{X+i}")
    C = lambda i: a(f"v_cvt_pk_bf16_f32 v{P_+i}, v{X+2*i}, v{X+2*i+1}")

    def hook(k):
        for ins in H.get(k, []):
            a(ins)
    hook('pre')
    a(f"s_waitcnt lgkmcnt({2 + nx})")
    a(mf32(Y, KF_, Q0, NEGM))
    for i in range(4): E(i)
    a("s_waitcnt lgkmcnt(0)")
    hook(0)
    if tt > 0:
        a(mf32(Od, VF_ + 4, P_ + 4, Od))
    if last:
        rd(VF_ + 4, tt, 3)
    for i in range(4, 6): E(i)
    hook('m0')
    for i in range(6, 8): E(i)
    hook(1)
    if tt > 0:
        a(mf16(ld, ONES, P_ + 4, ld))
    for i in range(4): C(i)
    a(mf32(Y, KF_ + 4, Q0 + 4, Y))
    hook(2)
    rd(KF_, tt + 2, 0)
    rd(KF_ + 4, tt + 2, 1)
    for i in range(8, 10): E(i)
    hook('m1')
    for i in range(10, 12): E(i)
    a(mf32(Od, VF_, P_, Oc))
    if not last:
        rd(VF_ + 4, tt, 3)
    rd(VF_, tt + 1, 2)
    for i in range(12, 14): E(i)
    hook('m2')
    for i in range(14, 16): E(i)
    hook(3)
    a(mf16(ld, ONES, P_, lc))
    hook('end')
    for i in range(4, 8): C(i)
    hook('m3')
    if last:
        assert not H.get('end')
        a("s_waitcnt lgkmcnt(3)\ns_nop 0")
        a(mf32(Od, VF_ + 4, P_ + 4, Od))
        a(mf16(ld, ONES, P_ + 4, ld))


PEND = {}


def attn_slow(a, tag, Oold, Onew, lold, lnew, Snext, sbase, pend=None):
    a(f"L_{tag}_slow:")
    a("s_nop 15")
    a(f"v_cmp_nlt_f32 vcc, v{lnew}, s29\ns_nop 4\ns_cbranch_vccnz L_{tag}_heavy")
    a(f"""
v_frexp_exp_i32_f32 v3, v{lnew}
v_add_u32 v3, {MARGIN}, v3
v_cvt_f32_i32 v4, v3
v_sub_u32 v3, 0, v3
""")
    for i in range(16): a(f"v_ldexp_f32 v{Onew+i}, v{Onew+i}, v3")
    for i in range(4): a(f"v_ldexp_f32 v{lnew+i}, v{lnew+i}, v3")
    for i in range(16): a(f"v_sub_f32 v{NEGM+i}, v{NEGM+i}, v4")
    for i in range(16): a(f"v_sub_f32 v{Snext+i}, v{Snext+i}, v4")
    a(f"s_nop 1\ns_branch L_{tag}_ret")
    a(f"L_{tag}_heavy:")
    a("s_waitcnt vmcnt(0)")
    np_, AM = pend or (0, 0)
    for i in range(np_):
        a(f"v_mfma_f32_16x16x32_bf16 {r(VB+12+4*i,4)}, {r(AM,4)}, {r(VB+4*i,4)}, 0")
    a("s_nop 15")
    for i in range(np_):
        a(f"v_max3_f32 v{VMAX}, |v{VB+12+4*i}|, |v{VB+13+4*i}|, v{VMAX}\nv_max3_f32 v{VMAX}, |v{VB+14+4*i}|, |v{VB+15+4*i}|, v{VMAX}")
    a(f"s_waitcnt lgkmcnt(0)\nv_log_f32 v5, v{lold}\nv_add_u32 v6, {sbase}, v10\ns_mov_b32 s30, 0")
    a(f"L_{tag}_h1:")
    a(f"ds_read_b128 {r(KT,4)}, v6\nds_read_b128 {r(KT+4,4)}, v6 offset:1024\ns_waitcnt lgkmcnt(0)")
    a(mf32(ST, KT, Q0, NEGM)); a(mf32(ST, KT + 4, Q0 + 4, ST))
    a("s_nop 15")
    for i in range(8): a(f"v_max3_f32 v5, v{ST+2*i}, v{ST+2*i+1}, v5")
    a(f"v_add_u32 v6, 4096, v6\ns_add_u32 s30, s30, 1\ns_cmp_lt_u32 s30, {TPS}\ns_cbranch_scc1 L_{tag}_h1")
    a(f"""
v_mov_b32 v6, v5
s_nop 1
v_permlane32_swap_b32 v5, v6
s_nop 1
v_max_f32 v5, v5, v6
v_ceil_f32 v4, v5
v_add_f32 v4, {f32bits(float(MARGIN))}, v4
v_cvt_i32_f32 v3, v4
v_sub_u32 v3, 0, v3
""")
    for i in range(16): a(f"v_ldexp_f32 v{Onew+i}, v{Oold+i}, v3")
    for i in range(4): a(f"v_ldexp_f32 v{lnew+i}, v{lold+i}, v3")
    for i in range(16): a(f"v_sub_f32 v{NEGM+i}, v{NEGM+i}, v4")
    for i in range(16): a(f"v_sub_f32 v{Snext+i}, v{Snext+i}, v4")
    a(f"v_add_u32 v6, {sbase}, v10\ns_mov_b32 s30, 0")
    a(f"L_{tag}_h2:")
    a(f"ds_read_b128 {r(KT,4)}, v6\nds_read_b128 {r(KT+4,4)}, v6 offset:1024\nds_read_b128 {r(VT,4)}, v6 offset:2048\nds_read_b128 {r(VT+4,4)}, v6 offset:3072\ns_waitcnt lgkmcnt(0)")
    a(mf32(ST, KT, Q0, NEGM)); a(mf32(ST, KT + 4, Q0 + 4, ST))
    a("s_nop 15")
    for i in range(16): a(f"v_exp_f32 v{ST+i}, v{ST+i}")
    a("s_nop 0")
    for i in range(8): a(f"v_cvt_pk_bf16_f32 v{PT+i}, v{ST+2*i}, v{ST+2*i+1}")
    a("s_nop 1")
    a(mf32(Onew, VT, PT, Onew)); a(mf32(Onew, VT + 4, PT + 4, Onew))
    a(mf16(lnew, ONES, PT, lnew)); a(mf16(lnew, ONES, PT + 4, lnew))
    a(f"v_add_u32 v6, 4096, v6\ns_add_u32 s30, s30, 1\ns_cmp_lt_u32 s30, {TPS}\ns_cbranch_scc1 L_{tag}_h2")
    a("s_nop 7")
    for i in range(4 * np_):
        a(f"v_mov_b32 v{VB+i}, 0")
    a(f"s_branch L_{tag}_ret")


N0 = int(os.environ.get('N0', '12'))
TS = eval(os.environ.get('TS', '[-1,-1,-1,-1,-1,-1, 13]'))


def touch_j(a, j):
    if j < 6:
        sr, vo, so, inc = ((44, 252, 100, 512), (36, 253, 101, 256 * 2048))[j % 2]
    else:
        sr, vo, so, inc = (8, 251, 54, 0)
    a(f"buffer_load_dword v249, v{vo}, s[{sr}:{sr+3}], s{so} offen\ns_add_u32 s{so}, s{so}, {inc}")


def q_gemm(a, setup_hook, role):
    NS = int(os.environ.get('QNS', '4'))
    STAGE = 28672
    F = [88, 104]
    F2 = [32, 40]
    D_, R_ = 152, 156
    AC, AC2 = OA, NEGM
    SV = 248
    NB = [0]
    stride = 5

    def dmas(st):
        if role == 'F':
            return []
        return [[f"s_add_u32 m0, s20, {st*STAGE + i*1024}", "s_nop 0", f"buffer_load_dwordx4 v{D_+i}, s[96:99], s16 offen lds"] for i in range(4)]

    def setup():
        setup_hook(role)
        a(f"""
v_bfe_u32 v3, v2, 2, 2
v_lshrrev_b32 v4, 5, v2
v_lshl_add_u32 v4, v4, 3, v3
v_bfe_u32 v5, v2, 4, 1
v_and_b32 v6, 3, v2
v_lshlrev_b32 v6, 3, v6
v_lshl_add_u32 v6, v5, 5, v6
v_lshl_add_u32 v7, v4, 6, v6
v_lshl_add_u32 v4, v4, 7, v6
v_lshrrev_b32 v3, 1, v3
v_lshrrev_b32 v5, 2, v1
v_xor_b32 v3, v3, v5
v_lshl_add_u32 v4, v3, 6, v4
v_add_u32 v{R_+25}, 24576, v7
v_add_u32 v{R_+26}, {24576+2*STAGE}, v7
v_add_u32 v{R_+27}, {24576+4*STAGE}, v7
""")
        for st in range(NS):
            a(f"v_add_u32 v{R_+st*stride}, {st*STAGE}, v4")
        a("s_mov_b32 s27, 0\ns_and_b32 s25, s22, 3\ns_lshl_b32 s25, s25, 5")
        t_read_addr(a, R_ + 1, 4, 25, 27, 8192, NS, STAGE, stride)
        for i in range(16):
            a(f"v_mov_b32 v{AC+i}, 0")
        if role in ('PK', 'PV'):
            for i in range(16):
                a(f"v_mov_b32 v{AC2+i}, 0")

    def reads(st, ul, fs):
        f = F[fs]
        r_ = []
        for q in range(2):
            u = 2 * ul + q
            for rr in range(2):
                r_.append(f"ds_read_b64_tr_b16 v[{f+4*q+2*rr}:{f+4*q+2*rr+1}], v{R_+st*stride} offset:{(16*u+4*rr)*128}")
            r_.append(f"ds_read_b128 v[{f+8+4*q}:{f+11+4*q}], v{R_+st*stride+1+u}")
            if role in ('PK', 'PV'):
                g = F2[fs]
                for rr in range(2):
                    r_.append(f"ds_read_b64_tr_b16 v[{g+4*q+2*rr}:{g+4*q+2*rr+1}], v{R_+25+st//2} offset:{(st%2)*STAGE+(16*u+4*rr)*64}")
        return r_

    def mfmas(fs):
        f, g = F[fs], F2[fs]
        r_ = []
        for q in range(2):
            r_.append(f"v_mfma_f32_32x32x16_bf16 v[{AC}:{AC+15}], v[{f+4*q}:{f+4*q+3}], v[{f+8+4*q}:{f+11+4*q}], v[{AC}:{AC+15}]")
            if role == 'PK':
                r_.append(f"v_mfma_f32_32x32x16_bf16 v[{AC2}:{AC2+15}], v[{g+4*q}:{g+4*q+3}], v[{f+8+4*q}:{f+11+4*q}], v[{AC2}:{AC2+15}]")
            if role == 'PV':
                r_.append(f"v_mfma_f32_32x32x16_bf16 v[{AC2}:{AC2+15}], v[{f+8+4*q}:{f+11+4*q}], v[{g+4*q}:{g+4*q+3}], v[{AC2}:{AC2+15}]")
        return r_

    kadv = ["s_add_u32 s16, s16, s17"]

    def ev_touch(js, first):
        a(f"s_cmp_lg_u32 s22, 7\ns_cbranch_scc1 L_qt{js[0]}")
        for j in js:
            touch_j(a, j)
        a(f"L_qt{js[0]}:")

    ev, ex = {}, {}
    SJ = int(os.environ.get('SJ', '12'))
    acts = {SJ: [lambda: side_jobs(a, role)]}
    ex[SJ] = 4
    if role == 'F':
        for t in sorted(set(t for t in TS if 0 <= t < 16)):
            js = [j for j in range(len(TS)) if TS[j] == t]
            acts.setdefault(t, []).append(lambda js=js: ev_touch(js, False))
    ev = {t: (lambda l=l: [f() for f in l]) for t, l in acts.items()}
    pipeline(a, "qg", 16, NS, 2, dmas, reads, mfmas, None, kadv, setup=setup, events=ev, extras=ex, novm=(role == 'F'))
    a(f"s_mov_b32 s23, {f32bits(QSCALE)}\ns_nop 11")
    if role in ('PK', 'PV'):
        for i in range(8):
            a(f"v_cvt_pk_bf16_f32 v{F[0]+i}, v{AC2+2*i}, v{AC2+2*i+1}")
        a(f"v_add_u32 v3, s24, v9")
        for p in range(2):
            a(f"buffer_store_dwordx4 v[{F[0]+4*p}:{F[0]+4*p+3}], v3, s[12:15], 0 offen offset:{p*1024 + (2048 if role == 'PV' else 0)}")
    for i in range(16):
        a(f"v_mul_f32 v{AC+i}, s23, v{AC+i}")
    for i in range(8):
        a(f"v_cvt_pk_bf16_f32 v{Q0+i}, v{AC+2*i}, v{AC+2*i+1}")
    a(f"""
buffer_store_dwordx4 v[{Q0}:{Q0+3}], v9, s[12:15], s26 offen
buffer_store_dwordx4 v[{Q0+4}:{Q0+7}], v9, s[12:15], s26 offen offset:1024
s_waitcnt vmcnt({4 if role in ('PK', 'PV') else 2})
""")
    side_jobs2(a, role)


def side_jobs(a, role):
    T = 200
    a(f"""
v_lshlrev_b32 v6, 5, v2
s_cmp_ge_u32 s22, 4
s_cbranch_scc1 L_sj_emv{role}
s_lshl_b32 s64, s2, 2
s_add_u32 s64, s64, s22
s_sub_u32 s31, 2048, s64
s_lshl_b32 s23, s64, 11
s_lshl_b32 s31, s31, 11
s_mov_b32 s19, {512*2048}
buffer_load_dwordx4 v[{T}:{T+3}], v6, s[80:83], s23 offen
buffer_load_dwordx4 v[{T+4}:{T+7}], v6, s[80:83], s23 offen offset:16
buffer_load_dwordx4 v[{T+8}:{T+11}], v6, s[80:83], s31 offen
buffer_load_dwordx4 v[{T+12}:{T+15}], v6, s[80:83], s31 offen offset:16
buffer_load_dwordx4 v[{T+16}:{T+19}], v6, s[84:87], s19 offen
buffer_load_dwordx4 v[{T+20}:{T+23}], v6, s[84:87], s19 offen offset:16
s_branch L_sj_1{role}
L_sj_emv{role}:
s_lshl_b32 s64, s2, 1
s_add_u32 s64, s64, s22
s_sub_u32 s64, s64, 4
s_cmp_ge_u32 s22, 6
s_cselect_b32 s64, 0x10000, s64
s_lshl_b32 s31, s2, 3
s_add_u32 s31, s31, s22
s_cmp_eq_u32 s31, 6
s_cselect_b32 s64, 512, s64
s_lshl_b32 s23, s64, 11
s_mov_b32 s19, {1024*2048}
buffer_load_dwordx4 v[{T}:{T+3}], v6, s[84:87], s23 offen
buffer_load_dwordx4 v[{T+4}:{T+7}], v6, s[84:87], s23 offen offset:16
buffer_load_dwordx4 v[{T+16}:{T+19}], v6, s[80:83], s19 offen
buffer_load_dwordx4 v[{T+20}:{T+23}], v6, s[80:83], s19 offen offset:16
L_sj_1{role}:
""")


def side_jobs2(a, role):
    T = 200
    o = T + 24
    a(f"""
v_lshlrev_b32 v6, 5, v2
v_mov_b32 v7, 0
s_cmp_ge_u32 s22, 4
s_cbranch_scc1 L_sj_emv2{role}
""")
    for j in range(8):
        a(f"""
v_lshlrev_b32 v{o+16}, 16, v{T+j}
v_and_b32 v{o+17}, 0xffff0000, v{T+j}
v_lshlrev_b32 v{o+18}, 16, v{T+8+j}
v_and_b32 v{o+19}, 0xffff0000, v{T+8+j}
v_add_f32 v{o+20}, v{o+16}, v{o+18}
v_add_f32 v{o+21}, v{o+17}, v{o+19}
v_sub_f32 v{o+22}, v{o+16}, v{o+18}
v_sub_f32 v{o+23}, v{o+17}, v{o+19}
v_cvt_pk_bf16_f32 v{o+j}, v{o+20}, v{o+21}
v_cvt_pk_bf16_f32 v{o+8+j}, v{o+22}, v{o+23}
v_dot2c_f32_bf16 v7, v{o+j}, v{T+16+j}
""")
    a(f"""
s_lshl_b32 s23, s64, 11
s_add_u32 s31, s23, {WS_XM}
s_add_u32 s23, s23, {WS_XP}
buffer_store_dwordx4 v[{o}:{o+3}], v6, s[12:15], s23 offen
buffer_store_dwordx4 v[{o+4}:{o+7}], v6, s[12:15], s23 offen offset:16
buffer_store_dwordx4 v[{o+8}:{o+11}], v6, s[12:15], s31 offen
buffer_store_dwordx4 v[{o+12}:{o+15}], v6, s[12:15], s31 offen offset:16
""")
    wave_sum(a, 7, 3)
    a(f"""
v_cvt_pk_bf16_f32 v7, v7, v7
s_lshl_b32 s23, s64, 1
s_add_u32 s23, s23, {WS_AT + 512*ATP}
v_mov_b32 v4, 0
s_mov_b64 exec, 1
buffer_store_short v7, v4, s[12:15], s23 offen
s_mov_b64 exec, -1
s_branch L_sj_done{role}
L_sj_emv2{role}:
s_cmp_gt_u32 s64, 512
s_cbranch_scc1 L_sj_done{role}
""")
    for j in range(8):
        a(f"v_dot2c_f32_bf16 v7, v{T+j}, v{T+16+j}")
    a("s_nop 3")
    wave_sum(a, 7, 3)
    a(f"""
v_mov_b32 v5, 0
v_cvt_pk_bf16_f32 v7, v7, v5
v_cmp_eq_u32 vcc, 0, v2
s_mul_i32 s23, s64, {ATP}
s_add_u32 s31, s23, {WS_BT + 2048}
s_add_u32 s23, s23, {WS_AT + 2048}
v_cndmask_b32 v7, v5, v7, vcc
v_lshlrev_b32 v4, 2, v2
s_mov_b32 exec_hi, 0
buffer_store_dword v7, v4, s[12:15], s23 offen
buffer_store_dword v5, v4, s[12:15], s31 offen
s_mov_b64 exec, -1
L_sj_done{role}:
""")


def kv_dma(a, g, i):
    a(f"s_add_u32 m0, s18, {(g % ANS)*ASTAGE + i*8192}\ns_mov_b32 s19, {g*ASTAGE}\nbuffer_load_dwordx4 v{12+i}, s[12:15], s19 offen lds")


def attention(a, tag, endlabel):
    wave_setup(a)
    stamp_begin(a)
    tl(a, 3)
    def hook():
        a(f"""
v_lshlrev_b32 v9, 4, v2
v_lshl_add_u32 v12, v1, 10, v9
v_add_u32 v12, {WS_KF}, v12
v_add_u32 v13, 8192, v12
v_add_u32 v14, 16384, v12
v_add_u32 v15, 24576, v12
""")
        for g in range(2):
            for i in range(4): kv_dma(a, g, i)
        a(f"""
v_and_b32 v5, 31, v2
v_and_b32 v4, 3, v1
v_lshl_add_u32 v4, v4, 5, v5
v_lshrrev_b32 v5, 5, v2
v_lshlrev_b32 v5, 4, v5
v_lshl_add_u32 v8, v4, 11, v5
v_lshrrev_b32 v5, 2, v1
v_lshl_add_u32 v8, v5, 6, v8
s_mov_b32 s28, {f32bits(THR1)}
s_mov_b32 s29, {f32bits(THR2)}
v_mov_b32 v10, v9
v_add_u32 v11, 65536, v9
""")
        stage1_setup(a)
        stage1_setup2(a)
        verify_setup(a)
        a(f"""
v_lshrrev_b32 v4, 2, v2
v_lshrrev_b32 v5, 4, v2
v_xor_b32 v4, v4, v5
v_and_b32 v4, 1, v4
v_cmp_eq_u32 vcc, 0, v4
v_mov_b32 v5, 0x3f803f80
s_nop 1
v_cndmask_b32 v{ONES}, 0, v5, vcc
v_mov_b32 v{ONES+1}, v{ONES}
v_mov_b32 v{ONES+2}, v{ONES}
v_mov_b32 v{ONES+3}, v{ONES}
""")
        for i in range(16): a(f"v_mov_b32 v{OB+i}, 0")
        for i in range(4): a(f"v_mov_b32 v{LB+i}, 0")
        a(f"v_mov_b32 v{VMAX}, 0")
    a(f"""
v_lshlrev_b32 v3, 4, v2
s_lshl_b32 s23, s2, 14
s_lshl_b32 s30, s22, 11
s_add_u32 s23, s23, s30
buffer_load_dwordx4 v[{Q0}:{Q0+3}], v3, s[12:15], s23 offen
buffer_load_dwordx4 v[{Q0+4}:{Q0+7}], v3, s[12:15], s23 offen offset:1024
""")
    hook()
    for b in range(2):
        for i in range(4): s1_dma(a, b, i)
    a("s_waitcnt vmcnt(12)\ns_barrier")
    a(f"ds_read_b128 {r(KF_,4)}, v10\nds_read_b128 {r(KF_+4,4)}, v10 offset:1024")
    a("s_waitcnt lgkmcnt(0)")
    a(mf32(SX, KF_, Q0, "0")); a(mf32(SX, KF_ + 4, Q0 + 4, SX))
    a(f"ds_read_b128 {r(KF_,4)}, v10 offset:4096\nds_read_b128 {r(KF_+4,4)}, v10 offset:{4096+1024}")
    a(f"ds_read_b128 {r(VF_+4,4)}, v10 offset:3072\nds_read_b128 {r(VF_,4)}, v10 offset:2048")
    a("s_nop 11")
    a(f"v_max3_f32 v5, v{SX}, v{SX+1}, v{SX+2}")
    for i in range(6): a(f"v_max3_f32 v5, v{SX+3+2*i}, v{SX+4+2*i}, v5")
    a(f"""
v_max_f32 v5, v{SX+15}, v5
v_mov_b32 v6, v5
s_nop 1
v_permlane32_swap_b32 v5, v6
s_nop 1
v_max_f32 v5, v5, v6
v_add_f32 v5, {f32bits(float(MARGIN))}, v5
""")
    for i in range(16): a(f"v_sub_f32 v{NEGM+i}, 0, v5")
    for i in range(16): a(f"v_sub_f32 v{SX+i}, v{SX+i}, v5")
    tl(a, 4)

    HK = {}

    def add(g, tt, slot, lines):
        HK.setdefault((g, tt), {}).setdefault(slot, []).extend(lines)
    BT_ = TPS - 2
    for g in range(NSTG):
        add(g, BT_, 'pre', ["s_waitcnt vmcnt(0)" + (" lgkmcnt(0)" if g == NSTG - 1 else ""), "s_barrier"])
        if g + 2 < NSTG:
            for i in range(4): add(g, BT_, i, cap(kv_dma, g + 2, i))
    add(0, 3, 'pre', ["s_waitcnt vmcnt(0)", "s_barrier"])

    def s1_step(g, tt, buf):
        add(g, tt, 'end', cap(s1_reads, buf))
        for i in range(4): add(g, tt + 1, f"m{i}", cap(s1_mfma, i))
    s1_step(0, 3, 0)
    for j in range(7):
        s1_step(j, BT_, (j + 1) & 1)
        if j + 2 <= 7:
            for i in range(4): add(j + 1, 0, i, cap(s1_dma, j & 1, i))
    add(7, 0, 'pre', f"""
s_and_b32 s27, s22, 1
s_lshr_b32 s25, s22, 1
s_and_b32 s23, s22, 3
s_lshl_b32 s23, s23, 13
s_cmp_ge_u32 s22, 4
s_cselect_b32 s30, 0, {S1B - (5 % ANS)*ASTAGE}
s_add_u32 s30, s30, {(5 % ANS)*ASTAGE}
s_add_u32 s23, s23, s30
v_add_u32 v{S1A}, s23, v9
s_lshl_b32 s23, s25, 11
s_lshl_b32 s30, s27, 13
s_add_u32 s23, s23, s30
v_add_u32 v{S1A+2}, s23, v9
v_add_u32 v{S1A+1}, {S1B}, v{S1A+2}
v_add_u32 v{S1A+2}, {(5 % ANS)*ASTAGE}, v{S1A+2}
""".strip().split("\n"))
    for j in range(8):
        add(7, 1 + j // 3, j % 3, [f"ds_write_b128 v{S1A}, v[{S1ACC+4*j}:{S1ACC+4*j+3}] offset:{j*1024}"])
    add(7, BT_, 'end', [f"ds_read_b128 v[{S1ACC+8*i+4*j}:{S1ACC+8*i+4*j+3}], v{S1A+1+i//2} offset:{(i%2)*16384+j*1024}" for i in range(4) for j in range(2)])
    def vchk(g, loads, AM):
        PEND[g] = (len(loads), AM)
        for i, ld_ in enumerate(loads):
            add(*((0, 4) if g == 0 else (g - 1, 7)), i, ld_)
            add(g, BT_, i, [f"v_mfma_f32_16x16x32_bf16 {r(VB+12+4*i,4)}, {r(AM,4)}, {r(VB+4*i,4)}, 0"])
            add(g, TPS - 1, i, [f"v_max3_f32 v{VMAX}, |v{VB+12+4*i}|, |v{VB+13+4*i}|, v{VMAX}", f"v_max3_f32 v{VMAX}, |v{VB+14+4*i}|, |v{VB+15+4*i}|, v{VMAX}"])
    ldn = lambda i, off: [f"buffer_load_dwordx4 v[{VB+4*i}:{VB+4*i+3}], v{VAD}, s[76:79], 0 offen offset:{off}"]
    vchk(0, [ldn(0, 0)], AMN)
    vchk(1, [ldn(0, 512), ldn(1, 1024), ldn(2, 1536)], AMN)
    vchk(2, [ldn(0, 2048), ldn(1, 2560)], AMN)
    vchk(3, [ldn(0, 3072), ldn(1, 3584)], AMN)
    add(3, 7, 'pre', cap(verify_w_switch))
    vchk(4, [[f"buffer_load_dwordx4 v[{VB+4*i}:{VB+4*i+3}], v{VAD}, s[84:87], s63 offen offset:{i*512}"] for i in range(2)]
         + [[f"buffer_load_dwordx4 v[{VB+8}:{VB+11}], v7, s[76:79], 0 offen"]], AMN)
    add(4, 7, 'pre', cap(verify_r_switch))
    ldr = lambda i: [f"buffer_load_dwordx4 v[{VB+4*i}:{VB+4*i+3}], v{VRV}, s[76:79], 0 offen", f"v_add_u32 v{VRV}, v{VRV}, v{VAD}"]
    vchk(5, [ldr(0), ldr(1), [f"buffer_load_dwordx4 v[{VB+8}:{VB+11}], v7, s[76:79], 0 offen"]], AMR)
    vchk(6, [ldr(0), ldr(1)], AMR)
    add(7, 0, 'pre', f"""
s_mov_b32 s23, {f32bits(VTOL)}
v_cmp_nle_f32 vcc, v{VMAX}, s23
s_add_u32 s30, s58, {WS_FLAG}
v_mov_b32 v4, 0
s_cmp_lg_u64 vcc, 0
s_cselect_b32 s23, 1, 0
v_mov_b32 v3, s23
s_mov_b64 exec, 1
buffer_store_byte v3, v4, s[12:15], s30 offen
s_mov_b64 exec, -1
""".strip().split("\n"))

    nx = 0
    for g in range(NSTG):
        Oold, Onew, lold, lnew = (OB, OA, LB, LA) if g % 2 == 0 else (OA, OB, LA, LB)
        for tt in range(TPS):
            X, Y = (SX, SY) if tt % 2 == 0 else (SY, SX)
            H = HK.get((g, tt), {})
            attn_tile(a, g, tt, X, Y, Oold if tt == 0 else Onew, Onew, lold if tt == 0 else lnew, lnew, H, nx)
            nx = sum(1 for k in ('m2', 3, 'end', 'm3') for ins in H.get(k, []) if ins.startswith("ds_"))
        a(f"""
s_nop 7
v_cmp_nlt_f32 vcc, v{lnew}, s28
s_nop 1
s_cbranch_vccnz L_{tag}{g}_slow
L_{tag}{g}_ret:
""")
    tl(a, 2)
    a(f"s_nop 3\nv_rcp_f32 v7, v{LB}\ns_add_u32 s31, s26, {WS_O}")
    for i in range(16):
        a(f"v_mul_f32 v{OB+i}, v7, v{OB+i}")
    for i in range(8): a(f"v_cvt_pk_bf16_f32 v{P_+i}, v{OB+2*i}, v{OB+2*i+1}")
    a("s_nop 1")
    for p in range(2):
        a(f"v_permlane32_swap_b32 v{P_+4*p}, v{P_+4*p+2}\nv_permlane32_swap_b32 v{P_+4*p+1}, v{P_+4*p+3}")
    for p in range(2):
        a(f"buffer_store_dwordx4 {r(P_+4*p,4)}, v8, s[12:15], s31 offen offset:{p*32}")
    for r_ in range(8):
        a(f"v_add_f32 v{S1ACC+r_}, v{S1ACC+r_}, v{S1ACC+8+r_}\nv_add_f32 v{S1ACC+16+r_}, v{S1ACC+16+r_}, v{S1ACC+24+r_}")
    for r_ in range(8):
        a(f"v_add_f32 v{S1ACC+r_}, v{S1ACC+r_}, v{S1ACC+16+r_}")
    pack8(a, 16, S1ACC)
    a(f"""
v_and_b32 v3, 31, v2
s_lshl_b32 s23, s27, 5
v_add_u32 v3, s23, v3
s_mov_b32 s23, {ATP}
v_mul_lo_u32 v3, v3, s23
v_lshrrev_b32 v4, 5, v2
v_lshl_add_u32 v3, v4, 4, v3
s_lshl_b32 s23, s25, 5
s_add_u32 s23, s23, s21
buffer_store_dwordx4 v[16:19], v3, s[12:15], s23 offen
""")
    stamp_end(a, 196608)
    tl(a, 5, True)
    a(f"s_branch {endlabel}")
    for g in range(NSTG):
        if g % 2 == 0:
            attn_slow(a, f"{tag}{g}", OB, OA, LB, LA, SX, (g % ANS) * ASTAGE, PEND.get(g + 1))
        else:
            attn_slow(a, f"{tag}{g}", OA, OB, LA, LB, SX, (g % ANS) * ASTAGE, PEND.get(g + 1))


def wave_sum(a, v, t):
    for sh in (8, 4, 2, 1):
        a(f"s_nop 1\nv_add_f32_dpp v{v}, v{v}, v{v} row_ror:{sh} row_mask:0xf bank_mask:0xf")
    a(f"""
v_mov_b32 v{t}, v{v}
s_nop 1
v_permlane16_swap_b32 v{v}, v{t}
s_nop 1
v_add_f32 v{v}, v{v}, v{t}
v_mov_b32 v{t}, v{v}
s_nop 1
v_permlane32_swap_b32 v{v}, v{t}
s_nop 1
v_add_f32 v{v}, v{v}, v{t}
""")


def small_gemm(a, tag, mode, pP, pR, nsteps, kstep, pre=None, xtra=0, events=None, extras=None, post=None):
    NS, STAGE, nu = 4, 32768, 2
    t_dma_voff(a, DV, 1, pP)
    t_dma_voff(a, DV + 1, 1, pR)
    stride = 4

    def setup():
        a("""
s_and_b32 s26, s22, 1
s_lshr_b32 s24, s22, 2
s_and_b32 s27, s22, 2
s_lshl_b32 s27, s27, 1
s_lshl_b32 s28, s24, 7
""")
        t_read_addr(a, RA, nu, 28, 27, 0, NS, STAGE, stride)
        a("s_lshl_b32 s29, s26, 5\ns_add_u32 s28, s28, s29")
        t_read_addr(a, RA + 2, nu, 28, 27, 8192, NS, STAGE, stride)
        for i in range(32):
            a(f"v_mov_b32 v{ACC+i}, 0")

    def dmas(st):
        return [[f"s_add_u32 m0, s18, {st*STAGE}", "s_nop 0", f"buffer_load_dwordx4 v{DV}, s[4:7], s16 offen lds"],
                [f"s_add_u32 m0, s18, {st*STAGE+8192}", "s_nop 0", f"buffer_load_dwordx4 v{DV+1}, s[8:11], s17 offen lds"],
                [f"s_add_u32 m0, s18, {st*STAGE+16384}", "s_nop 0", f"buffer_load_dwordx4 v{DV}, s[36:39], s40 offen lds"],
                [f"s_add_u32 m0, s18, {st*STAGE+24576}", "s_nop 0", f"buffer_load_dwordx4 v{DV+1}, s[44:47], s41 offen lds"]]

    def reads(st, ul, fs):
        f = FR[fs]
        return [f"ds_read_b128 v[{f}:{f+3}], v{RA+st*stride+ul}",
                f"ds_read_b128 v[{f+4}:{f+7}], v{RA+st*stride+ul} offset:4096",
                f"ds_read_b128 v[{f+8}:{f+11}], v{RA+st*stride+2+ul}"]

    def mfmas(fs):
        f = FR[fs]
        return [f"v_mfma_f32_32x32x16_bf16 v[{ACC+16*mb}:{ACC+16*mb+15}], v[{f+4*mb}:{f+4*mb+3}], v[{f+8}:{f+11}], v[{ACC+16*mb}:{ACC+16*mb+15}]" for mb in range(2)]

    kadv = [f"s_add_u32 s{r_}, s{r_}, {kstep}" for r_ in (16, 17, 40, 41)]
    pipeline(a, tag, nsteps, NS, nu, dmas, reads, mfmas, None, kadv, pre=pre, setup=setup, xtra=xtra, events=events, extras=extras)
    if post:
        post()
    small_epi(a, mode, ACC)


def small_epi(a, mode, AC):
    a("s_and_b32 s26, s22, 1")
    a("s_nop 15\ns_barrier")
    a(f"""
v_lshlrev_b32 v3, 4, v2
s_lshl_b32 s23, s22, 13
v_add_u32 v4, s23, v3
s_lshr_b32 s25, s22, 1
s_lshl_b32 s23, s25, 11
s_lshl_b32 s29, s26, 13
s_add_u32 s23, s23, s29
v_add_u32 v3, s23, v3
""")
    for j in range(8):
        a(f"ds_write_b128 v4, v[{AC+4*j}:{AC+4*j+3}] offset:{j*1024}")
    a("s_waitcnt lgkmcnt(0)\ns_barrier")
    for i in range(4):
        for j in range(2):
            a(f"ds_read_b128 v[{96+8*i+4*j}:{96+8*i+4*j+3}], v3 offset:{i*16384+j*1024}")
    a("s_waitcnt lgkmcnt(4)")
    for r_ in range(8):
        a(f"v_add_f32 v{64+r_}, v{96+r_}, v{104+r_}")
    a("s_waitcnt lgkmcnt(0)")
    for r_ in range(8):
        a(f"v_add_f32 v{72+r_}, v{112+r_}, v{120+r_}")
    if mode == 1:
        for r_ in range(8):
            a(f"v_add_f32 v{64+r_}, v{64+r_}, v{72+r_}")


def pack8(a, dst, src):
    for r_ in range(4):
        a(f"v_cvt_pk_bf16_f32 v{dst+r_}, v{src+2*r_}, v{src+2*r_+1}")
    a(f"s_nop 1\nv_permlane32_swap_b32 v{dst}, v{dst+2}\nv_permlane32_swap_b32 v{dst+1}, v{dst+3}")


S1ACC, S1F, S1A, S1D = 200, 232, 24, 68
S1B = ANS_BYTES = 98304


def stage1_setup(a):
    a(f"""
s_and_b32 s30, s2, 7
s_lshr_b32 s31, s2, 3
s_and_b32 s31, s31, 15
s_and_b32 s54, s30, 3
s_lshl_b32 s54, s54, 2
s_and_b32 s55, s31, 3
s_add_u32 s54, s54, s55
s_lshr_b32 s55, s30, 2
s_lshl_b32 s55, s55, 2
s_lshr_b32 s56, s31, 2
s_add_u32 s55, s55, s56
s_cmp_ge_u32 s2, 128
s_cselect_b32 s8, s52, s50
s_cselect_b32 s9, s53, s51
s_cselect_b32 s56, {WS_XM-WS_XP}, 0
s_cselect_b32 s57, {WS_BT-WS_AT}, 0
s_add_u32 s56, s56, {WS_XP}
s_add_u32 s57, s57, {WS_AT}
s_mov_b32 s10, {1024*2048}
s_mov_b32 s11, 0x00020000
""")
    srd(a, 4, 48, 49, WS_BYTES)
    a(f"""
s_lshl_b32 s40, s54, 17
s_add_u32 s40, s40, s56
s_add_u32 s42, s40, 128
s_lshl_b32 s41, s55, 17
s_add_u32 s43, s41, 128
s_mul_i32 s21, s55, {64*ATP}
s_add_u32 s21, s21, s57
s_lshl_b32 s23, s54, 7
s_add_u32 s21, s21, s23
""")
    t_dma_voff(a, S1D, 1, 2048)


def stage1_setup2(a):
    a("""
s_lshr_b32 s25, s22, 2
s_and_b32 s27, s22, 2
s_lshl_b32 s27, s27, 1
s_lshl_b32 s25, s25, 7
""")
    t_read_addr(a, S1A, 2, 25, 27, S1B, 2, 32768, 4)
    a("s_and_b32 s23, s22, 1\ns_lshl_b32 s23, s23, 5\ns_add_u32 s25, s25, s23")
    t_read_addr(a, S1A + 2, 2, 25, 27, S1B + 8192, 2, 32768, 4)
    for i in range(32):
        a(f"v_mov_b32 v{S1ACC+i}, 0")


def s1_dma(a, buf, i):
    if os.environ.get('NOS1'): return
    sr, so = ((4, 40), (8, 41), (4, 42), (8, 43))[i]
    a(f"s_add_u32 m0, s18, {S1B + buf*32768 + i*8192}\ns_nop 0\nbuffer_load_dwordx4 v{S1D}, s[{sr}:{sr+3}], s{so} offen lds\ns_add_u32 s{so}, s{so}, 256")


def s1_reads(a, buf):
    if os.environ.get('NOS1'): return
    for ul in range(2):
        f = S1F + 12 * ul
        a(f"""
ds_read_b128 v[{f}:{f+3}], v{S1A+buf*4+ul}
ds_read_b128 v[{f+4}:{f+7}], v{S1A+buf*4+ul} offset:4096
ds_read_b128 v[{f+8}:{f+11}], v{S1A+buf*4+2+ul}
""")


def s1_mfma(a, i):
    if os.environ.get('NOS1'): return
    ul, mb = i >> 1, i & 1
    f = S1F + 12 * ul
    c = S1ACC + 16 * mb
    a(f"v_mfma_f32_32x32x16_bf16 v[{c}:{c+15}], v[{f+4*mb}:{f+4*mb+3}], v[{f+8}:{f+11}], v[{c}:{c+15}]")


def stage1_store(a):
    a("s_waitcnt vmcnt(0) lgkmcnt(0)")
    small_epi(a, 1, S1ACC)
    pack8(a, 16, 64)
    a(f"""
v_and_b32 v3, 31, v2
s_lshl_b32 s23, s26, 5
v_add_u32 v3, s23, v3
s_mov_b32 s23, {ATP}
v_mul_lo_u32 v3, v3, s23
v_lshrrev_b32 v4, 5, v2
v_lshl_add_u32 v3, v4, 4, v3
s_lshl_b32 s23, s25, 5
s_add_u32 s23, s23, s21
buffer_store_dwordx4 v[16:19], v3, s[12:15], s23 offen
""")


def dot_loads(a, dst, srdA, soffA, srdB, soffB):
    for (d, sr, so) in ((dst, srdA, soffA), (dst + 12, srdB, soffB)):
        a(f"""
buffer_load_dwordx4 v[{d}:{d+3}], v10, s[{sr}:{sr+3}], s{so} offen
buffer_load_dwordx4 v[{d+4}:{d+7}], v10, s[{sr}:{sr+3}], s{so} offen offset:16
buffer_load_dwordx4 v[{d+8}:{d+11}], v11, s[{sr}:{sr+3}], s{so} offen
""")


def dot_compute(a, res, src, t):
    a(f"v_mov_b32 v{res}, 0")
    for i in range(12):
        a(f"v_dot2c_f32_bf16 v{res}, v{src+i}, v{src+12+i}")
    a("s_nop 3")
    wave_sum(a, res, t)


def edge_issue(a):
    srd(a, 64, 56, 57, 2048 * 4096)
    srd(a, 68, 48, 49, WS_BYTES)
    a(f"""
s_lshr_b32 s74, s2, 3
s_and_b32 s74, s74, 15
s_and_b32 s75, s2, 7
v_lshlrev_b32 v10, 5, v2
v_lshlrev_b32 v11, 4, v2
v_add_u32 v11, 2048, v11
v_mov_b32 v3, 0x7ffffff0
v_cmp_gt_u32 vcc, 8, v2
s_lshl_b32 s58, s74, 6
s_lshl_b32 s23, s75, 3
s_add_u32 s58, s58, s23
s_add_u32 s58, s58, s22
v_cndmask_b32 v11, v3, v11, vcc
s_lshl_b32 s59, s58, 12
s_mov_b32 s60, {WS_AT + 512*ATP}
s_lshl_b32 s61, s75, 6
s_lshl_b32 s23, s74, 2
s_add_u32 s61, s61, s23
s_add_u32 s61, s61, s22
s_cmp_ge_u32 s22, 4
s_cselect_b32 s61, 512, s61
s_mul_i32 s62, s61, {ATP}
s_add_u32 s62, s62, {WS_AT}
s_mov_b32 s63, {1024*4096}
s_lshr_b32 s75, s22, 2
s_lshl_b32 s23, s2, 3
s_add_u32 s23, s23, s22
s_cmp_eq_u32 s23, 4
s_cselect_b32 s75, 0, s75
s_cmp_lg_u32 s75, 0
s_cselect_b32 s62, 0x7fff0000, s62
s_cselect_b32 s63, 0x7fff0000, s63
""")


def edge_loads(a):
    flag_load(a, 212, 76, 48, 49)
    dot_loads(a, 164, 64, 59, 68, 60)
    dot_loads(a, 188, 64, 63, 68, 62)


def edge_finish(a):
    flag_test(a, 212)
    a("s_cbranch_scc1 L_edge_done")
    dot_compute(a, 160, 164, 3)
    dot_compute(a, 161, 188, 3)
    a(f"""
v_cvt_pk_bf16_f32 v160, v160, v161
v_lshrrev_b32 v161, 16, v160
s_mov_b64 exec, 3
s_sub_u32 s23, 2048, s58
v_mov_b32 v3, s58
v_mov_b32 v4, s23
v_cmp_eq_u32 vcc, 0, v2
s_nop 1
v_cndmask_b32 v3, v4, v3, vcc
v_lshlrev_b32 v3, 12, v3
buffer_store_short v160, v3, s[12:15], 0 offen offset:3072
s_sub_u32 s23, 1024, s61
v_mov_b32 v3, s61
v_mov_b32 v4, s23
s_nop 0
v_cndmask_b32 v3, v4, v3, vcc
v_lshlrev_b32 v3, 1, v3
v_add_u32 v3, {1024*4096 + 2048}, v3
s_cmp_eq_u32 s61, 0
s_cselect_b64 s[72:73], 1, 3
s_cmp_lg_u32 s75, 0
s_cselect_b64 s[72:73], 0, s[72:73]
s_mov_b64 exec, s[72:73]
s_cbranch_execz L_edge_done
buffer_store_short v161, v3, s[12:15], 0 offen
L_edge_done:
s_mov_b64 exec, -1
""")


def stage2(a):
    a(f"""
s_and_b32 s54, s30, 3
s_lshl_b32 s54, s54, 2
s_and_b32 s55, s31, 3
s_add_u32 s54, s54, s55
s_lshr_b32 s55, s30, 2
s_lshl_b32 s55, s55, 2
s_lshr_b32 s56, s31, 2
s_add_u32 s55, s55, s56
""")
    srd(a, 4, 48, 49, WS_BYTES)
    srd(a, 36, 48, 49, WS_BYTES)
    srd(a, 8, 50, 51, 2048 * 4096)
    srd(a, 44, 52, 53, 2048 * 4096)
    srd(a, 12, 34, 35, 2048 * 4096)
    a(f"""
s_mul_i32 s16, s55, {64*ATP}
s_add_u32 s40, s16, {WS_BT}
s_add_u32 s16, s16, {WS_AT}
s_lshl_b32 s17, s54, 18
s_mov_b32 s41, s17
""")
    wave_setup(a)

    def post():
        a("s_waitcnt vmcnt(0)")
        flag_test(a, 212)
        a("s_cbranch_scc1 L_k3_fb")

    small_gemm(a, "s2", 2, ATP, 4096, 17, 128, post=post, events={13: lambda: flag_load(a, 212, 76, 48, 49)}, extras={13: 2})
    for r_ in range(8):
        a(f"v_sub_f32 v{80+r_}, v{64+r_}, v{72+r_}\nv_add_f32 v{88+r_}, v{64+r_}, v{72+r_}")
    pack8(a, 16, 80)
    pack8(a, 20, 88)
    a("s_nop 0")
    for r_ in range(4):
        a(f"v_alignbit_b32 v{24+r_}, v{19-r_}, v{19-r_}, 16")
        a(f"v_alignbit_b32 v{28+r_}, v{23-r_}, v{23-r_}, 16")
    a(f"""
v_and_b32 v3, 31, v2
s_lshl_b32 s23, s26, 5
s_lshl_b32 s29, s54, 6
s_add_u32 s23, s23, s29
v_add_u32 v3, s23, v3
v_sub_u32 v4, 2048, v3
v_lshlrev_b32 v3, 12, v3
v_lshlrev_b32 v4, 12, v4
v_lshrrev_b32 v5, 5, v2
v_lshlrev_b32 v5, 4, v5
s_lshl_b32 s23, s25, 5
s_lshl_b32 s29, s55, 7
s_add_u32 s23, s23, s29
v_add_u32 v5, s23, v5
v_add_u32 v6, v3, v5
v_add_u32 v7, v4, v5
v_sub_u32 v8, 4082, v5
v_add_u32 v9, v4, v8
v_add_u32 v8, v3, v8
buffer_store_dwordx4 v[16:19], v6, s[12:15], 0 offen offset:2048
buffer_store_dwordx4 v[20:23], v7, s[12:15], 0 offen offset:2048
v_cmp_ne_u32 vcc, 0, v5
s_and_saveexec_b64 s[64:65], vcc
buffer_store_dwordx4 v[28:31], v8, s[12:15], 0 offen
buffer_store_dwordx4 v[24:27], v9, s[12:15], 0 offen
s_andn2_b64 exec, s[64:65], exec
s_cbranch_execz L_s2_e2
buffer_store_dwordx3 v[28:30], v8, s[12:15], 0 offen
buffer_store_short v31, v8, s[12:15], 0 offen offset:12
buffer_store_dwordx3 v[24:26], v9, s[12:15], 0 offen
buffer_store_short v27, v9, s[12:15], 0 offen offset:12
L_s2_e2:
s_mov_b64 exec, s[64:65]
""")


def fold(a):
    wave_setup(a)
    srd(a, 4, 40, 41, 2048 * 2048)
    srd(a, 8, 44, 45, 1024 * 2048)
    a(f"""
v_lshlrev_b32 v6, 5, v2
s_lshl_b32 s16, s31, 5
s_lshl_b32 s23, s22, 2
s_add_u32 s16, s16, s23
s_mov_b32 s17, {512*2048}
buffer_load_dwordx4 v[8:11], v6, s[8:11], s17 offen
buffer_load_dwordx4 v[12:15], v6, s[8:11], s17 offen offset:16
""")
    for i in range(4):
        b = 16 + 16 * i
        a(f"""
s_add_u32 s23, s16, {i}
s_sub_u32 s24, 2048, s23
s_lshl_b32 s23, s23, 11
s_lshl_b32 s24, s24, 11
buffer_load_dwordx4 v[{b}:{b+3}], v6, s[4:7], s23 offen
buffer_load_dwordx4 v[{b+4}:{b+7}], v6, s[4:7], s23 offen offset:16
buffer_load_dwordx4 v[{b+8}:{b+11}], v6, s[4:7], s24 offen
buffer_load_dwordx4 v[{b+12}:{b+15}], v6, s[4:7], s24 offen offset:16
""")
    for i in range(4):
        b = 16 + 16 * i
        o = 96 + 16 * i
        a(f"s_waitcnt vmcnt({(3-i)*4 + 5*i})")
        a(f"v_mov_b32 v{88+i}, 0")
        for j in range(8):
            a(f"""
v_lshlrev_b32 v80, 16, v{b+j}
v_and_b32 v81, 0xffff0000, v{b+j}
v_lshlrev_b32 v82, 16, v{b+8+j}
v_and_b32 v83, 0xffff0000, v{b+8+j}
v_add_f32 v84, v80, v82
v_add_f32 v85, v81, v83
v_sub_f32 v86, v80, v82
v_sub_f32 v87, v81, v83
v_cvt_pk_bf16_f32 v{o+j}, v84, v85
v_cvt_pk_bf16_f32 v{o+8+j}, v86, v87
v_dot2c_f32_bf16 v{88+i}, v{o+j}, v{8+j}
""")
        a(f"""
s_add_u32 s23, s16, {i}
s_lshl_b32 s24, s23, 11
s_add_u32 s25, s24, {WS_XM}
s_add_u32 s24, s24, {WS_XP}
buffer_store_dwordx4 v[{o}:{o+3}], v6, s[12:15], s24 offen
buffer_store_dwordx4 v[{o+4}:{o+7}], v6, s[12:15], s24 offen offset:16
buffer_store_dwordx4 v[{o+8}:{o+11}], v6, s[12:15], s25 offen
buffer_store_dwordx4 v[{o+12}:{o+15}], v6, s[12:15], s25 offen offset:16
""")
        wave_sum(a, 88 + i, 3)
        a(f"""
v_cvt_pk_bf16_f32 v{88+i}, v{88+i}, v{88+i}
s_lshl_b32 s23, s23, 1
s_add_u32 s23, s23, {WS_AT + 512*ATP}
v_mov_b32 v4, 0
s_mov_b64 exec, 1
buffer_store_short v{88+i}, v4, s[12:15], s23 offen
s_mov_b64 exec, -1
""")


def edge_mv(a):
    wave_setup(a)
    srd(a, 4, 40, 41, 2048 * 2048)
    srd(a, 8, 44, 45, 513 * 2048)
    a(f"""
v_lshlrev_b32 v6, 5, v2
s_lshl_b32 s16, s31, 3
s_add_u32 s16, s16, s22
s_mul_i32 s16, s16, 9
s_mov_b32 s17, {1024*2048}
buffer_load_dwordx4 v[8:11], v6, s[4:7], s17 offen
buffer_load_dwordx4 v[12:15], v6, s[4:7], s17 offen offset:16
v_lshlrev_b32 v7, 2, v2
""")
    for i in range(9):
        b = 16 + 8 * i
        a(f"""
s_add_u32 s23, s16, {i}
s_lshl_b32 s23, s23, 11
buffer_load_dwordx4 v[{b}:{b+3}], v6, s[8:11], s23 offen
buffer_load_dwordx4 v[{b+4}:{b+7}], v6, s[8:11], s23 offen offset:16
""")
    a("s_waitcnt vmcnt(0)\nv_mov_b32 v5, 0")
    for i in range(9):
        b = 16 + 8 * i
        a(f"v_mov_b32 v{96+i}, 0")
        for j in range(8):
            a(f"v_dot2c_f32_bf16 v{96+i}, v{b+j}, v{8+j}")
        a("s_nop 3")
        wave_sum(a, 96 + i, 3)
        a(f"""
v_cvt_pk_bf16_f32 v{96+i}, v{96+i}, v5
v_cmp_eq_u32 vcc, 0, v2
s_add_u32 s23, s16, {i}
s_cmp_gt_u32 s23, 512
s_cbranch_scc1 L_emv_done
v_cndmask_b32 v{96+i}, v5, v{96+i}, vcc
s_mul_i32 s23, s23, {ATP}
s_add_u32 s24, s23, {WS_BT + 2048}
s_add_u32 s23, s23, {WS_AT + 2048}
s_mov_b32 exec_hi, 0
buffer_store_dword v{96+i}, v7, s[12:15], s23 offen
buffer_store_dword v5, v7, s[12:15], s24 offen
s_mov_b64 exec, -1
""")
    a("L_emv_done:")


VTOL = 2.0 ** -8 * 1.01
VMAX = 70
VB = 152


def cmp_dw(a, x, y, neg, rev=False):
    lo_y, hi_y = (f"v_and_b32 v5, 0xffff0000, v{y}", f"v_lshlrev_b32 v6, 16, v{y}") if rev else (f"v_lshlrev_b32 v5, 16, v{y}", f"v_and_b32 v6, 0xffff0000, v{y}")
    a(f"""
v_lshlrev_b32 v3, 16, v{x}
v_and_b32 v4, 0xffff0000, v{x}
{lo_y}
{hi_y}
v_fmac_f32 v3, s60, v5
v_fmac_f32 v4, s60, v6
v_max3_f32 v{VMAX}, |v3|, |v4|, v{VMAX}
""")


def verify_c_setup(a):
    a(f"""
s_bitcmp1_b32 s58, 0
s_cselect_b32 s76, s94, s92
s_cselect_b32 s77, s95, s93
s_cselect_b32 s60, 1.0, -1.0
s_mov_b32 s78, {2048*4096}
s_mov_b32 s79, 0x00020000
s_sub_u32 s62, 2048, s61
s_and_b32 s62, s62, 2047
s_lshl_b32 s61, s61, 12
s_lshl_b32 s62, s62, 12
""")


AMN, AMR, VAD, VRV = 192, 196, 69, 71


def verify_setup(a):
    a("s_lshl_b32 s58, s2, 3\ns_add_u32 s58, s58, s22\ns_lshr_b32 s61, s58, 1")
    verify_c_setup(a)
    a(f"""
s_bitcmp1_b32 s58, 0
s_mov_b32 s59, 0xbf80
s_cselect_b32 s59, 0x3f80, s59
v_and_b32 v3, 15, v2
v_bfe_u32 v4, v2, 4, 1
v_lshlrev_b32 v4, 3, v4
v_cmp_gt_u32 vcc, 32, v2
v_mov_b32 v5, s59
v_mov_b32 v6, 0x3f80
v_sub_u32 v7, 15, v3
v_cndmask_b32 v5, v5, v6, vcc
v_cndmask_b32 v7, v7, v3, vcc
v_sub_u32 v3, v3, v4
v_sub_u32 v7, v7, v4
""")
    for base, j in ((AMN, 3), (AMR, 7)):
        a(f"""
v_and_b32 v4, 1, v{j}
v_lshlrev_b32 v4, 4, v4
v_lshlrev_b32 v4, v4, v5
v_lshrrev_b32 v6, 1, v{j}
""")
        for r_ in range(4):
            a(f"v_cmp_eq_u32 vcc, {r_}, v6\ns_nop 1\nv_cndmask_b32 v{base+r_}, 0, v4, vcc")
    a(f"""
v_and_b32 v3, 15, v2
v_lshlrev_b32 v3, 5, v3
v_bfe_u32 v4, v2, 4, 1
v_lshlrev_b32 v4, 4, v4
v_add_u32 v5, v3, v4
v_sub_u32 v6, v4, v3
v_add_u32 v6, 4064, v6
v_add_u32 v7, 2, v5
v_cmp_gt_u32 vcc, 32, v2
v_mov_b32 v3, s62
v_mov_b32 v4, s61
v_cndmask_b32 v6, v6, v7, vcc
v_cndmask_b32 v3, v3, v4, vcc
v_add_u32 v{VRV}, s61, v6
v_add_u32 v{VAD}, v3, v5
s_mov_b32 s63, 0
""")


def verify_w_switch(a):
    a(f"""
s_bitcmp1_b32 s58, 0
s_cselect_b32 s84, s52, s50
s_cselect_b32 s85, s53, s51
s_mov_b32 s86, {1024*2048}
s_lshr_b32 s59, s58, 2
s_add_u32 s59, s59, 1
s_sub_u32 s63, 1024, s59
s_lshl_b32 s59, s59, 11
s_lshl_b32 s63, s63, 11
v_mov_b32 v3, s63
v_mov_b32 v4, s59
v_cmp_gt_u32 vcc, 32, v2
v_and_b32 v5, 15, v2
v_lshlrev_b32 v5, 5, v5
v_bfe_u32 v6, v2, 4, 1
v_lshl_add_u32 v5, v6, 4, v5
v_cndmask_b32 v3, v3, v4, vcc
v_add_u32 v{VAD}, v3, v5
s_and_b32 s63, s58, 2
s_lshl_b32 s63, s63, 9
""")
    srd(a, 80, 88, 89, 1024 * 2048)
    a(f"""
v_lshl_add_u32 v3, v0, 8, s2
v_lshlrev_b32 v3, 7, v3
buffer_load_dword v{VB+24}, v3, s[80:83], 0 offen
s_mov_b32 s87, 0x00020000
s_lshr_b32 s59, s58, 1
s_and_b32 s59, s59, 7
s_lshl_b32 s59, s59, 9
s_add_u32 s59, s59, {1024*4096}
v_add_u32 v7, s59, v5
""")


def verify_r_switch(a):
    a(f"""
v_mov_b32 v3, 512
v_mov_b32 v4, -512
v_cmp_gt_u32 vcc, 32, v2
s_lshr_b32 s59, s58, 1
s_sub_u32 s63, {1024*4096}, s61
s_and_b32 s23, s58, 0xfffffff9
v_cndmask_b32 v{VAD}, v4, v3, vcc
s_cmp_eq_u32 s23, 0
s_cselect_b32 s59, s59, 0
s_cselect_b32 s63, s63, 0
v_mul_lo_u32 v7, v{VAD}, s59
v_add3_u32 v7, v7, v{VRV}, s63
""")


def touch(a):
    a("""
s_load_dwordx8 s[32:39], s[0:1], 0
s_load_dwordx4 s[40:43], s[0:1], 64
s_sub_u32 s31, s2, 56
s_lshl_b32 s23, s31, 9
v_add_u32 v3, s23, v0
v_lshlrev_b32 v4, 7, v3
s_waitcnt lgkmcnt(0)
""")
    off = 0
    for i, (lo, nb) in enumerate(((36, 65536), (38, 65536), (32, 2048 * 2048), (34, 1024 * 2048), (40, 513 * 2048), (42, 512 * 2048))):
        srd(a, 4 + 4 * i, lo, lo + 1, nb)
        a(f"v_subrev_u32 v5, {off}, v4\nbuffer_load_dword v{10+i}, v5, s[{4+4*i}:{7+4*i}], 0 offen")
        off += (nb + 127) // 128 * 128
    assert off <= 200 * 512 * 128
    a("s_waitcnt vmcnt(0)")


def flag_load(a, vd, sr, lo, hi):
    srd(a, sr, lo, hi, 2048, WS_FLAG)
    a("v_and_b32 v3, 63, v0\nv_lshlrev_b32 v3, 4, v3\nv_add_u32 v4, 4096, v3")
    for j in range(2):
        a(f"buffer_load_dwordx4 v[{vd+4*j}:{vd+4*j+3}], v{3 + j//4}, s[{sr}:{sr+3}], 0 offen offset:{(j%4)*1024}")


def flag_test(a, vd):
    for j in range(1, 7, 2):
        a(f"v_or3_b32 v{vd}, v{vd}, v{vd+j}, v{vd+j+1}")
    a(f"v_or_b32 v{vd}, v{vd}, v{vd+7}")
    a(f"v_cmp_ne_u32 vcc, 0, v{vd}\ns_nop 1\ns_cmp_lg_u64 vcc, 0")


def g3(a):
    a("""
s_and_b32 s50, s30, 3
s_lshl_b32 s50, s50, 2
s_and_b32 s51, s31, 3
s_add_u32 s50, s50, s51
s_lshr_b32 s51, s30, 2
s_lshl_b32 s51, s51, 2
s_lshr_b32 s52, s31, 2
s_add_u32 s51, s51, s52
""")
    srd(a, 4, 40, 41, 2048 * 2048)
    a(f"""
s_cmp_ge_u32 s51, 4
s_cselect_b32 s8, s46, s44
s_cselect_b32 s9, s47, s45
s_cselect_b32 s20, {f32bits(-1.0)}, 1.0
s_mov_b32 s10, {1024*2048}
s_mov_b32 s11, 0x00020000
s_lshl_b32 s16, s50, 18
s_and_b32 s17, s51, 3
s_lshl_b32 s17, s17, 19
s_lshl_b32 s21, s51, 20
s_lshl_b32 s23, s50, 8
s_add_u32 s21, s21, s23
s_add_u32 s21, s21, {WS_AB}
""")
    gemm(a, "g3", 2, 4, 1, 'T', 2048, 2048, 16, 3, 4096, scale=True)


def touch2(a):
    a("""
v_lshl_add_u32 v3, v0, 8, s2
v_lshlrev_b32 v4, 7, v3
v_lshrrev_b32 v5, 5, v3
v_and_b32 v6, 31, v3
v_lshlrev_b32 v5, 12, v5
v_lshl_add_u32 v5, v6, 7, v5
v_mov_b32 v7, 0x7ffffff0
v_cmp_gt_u32 vcc, 17, v6
""")
    srd(a, 76, 88, 89, 1024 * 2048)
    a("v_cndmask_b32 v5, v7, v5, vcc\nbuffer_load_dword v196, v4, s[76:79], 0 offen")
    srd(a, 80, 92, 93, 1025 * 4096)
    a("buffer_load_dword v197, v5, s[80:83], 0 offen")
    srd(a, 84, 94, 95, 1025 * 4096)
    a("buffer_load_dword v198, v5, s[84:87], 0 offen")


def k1(a):
    kernel_header(a, "k1_kernel")
    a("""
s_cmp_ge_u32 s2, 256
s_cbranch_scc1 L_k1_end
s_load_dwordx4 s[32:35], s[0:1], 0
s_load_dwordx2 s[50:51], s[0:1], 64
s_load_dwordx2 s[52:53], s[0:1], 72
s_load_dwordx2 s[88:89], s[0:1], 32
s_load_dwordx4 s[92:95], s[0:1], 48
s_load_dwordx2 s[48:49], s[0:1], 96
s_load_dwordx4 s[64:67], s[0:1], 16
s_load_dwordx2 s[74:75], s[0:1], 40
s_load_dwordx2 s[90:91], s[0:1], 88
""")
    wave_setup(a)
    a(f"""
v_lshrrev_b32 v3, 3, v2
v_lshl_add_u32 v3, v1, 5, v3
v_bfe_u32 v4, v3, 1, 1
v_bfe_u32 v5, v2, 2, 1
v_xor_b32 v4, v4, v5
v_and_b32 v5, 3, v2
v_lshlrev_b32 v5, 4, v5
v_lshl_add_u32 v5, v4, 6, v5
v_lshl_add_u32 v6, v3, 11, v5
v_subrev_u32 v3, 64, v3
v_bfe_u32 v4, v3, 1, 3
v_and_b32 v5, 7, v2
v_xor_b32 v4, v4, v5
v_lshlrev_b32 v4, 4, v4
v_lshl_add_u32 v7, v3, 11, v4
v_lshlrev_b32 v8, 4, v2
v_cmp_gt_u32 vcc, 2, v1
v_mov_b32 v9, 64
v_mov_b32 v10, {8*2048}
v_cndmask_b32 v152, v7, v6, vcc
v_cndmask_b32 v9, v9, 0, vcc
v_cmp_lt_u32 vcc, 5, v1
v_mov_b32 v11, 1024
s_lshl_b32 s20, s22, 12
v_cndmask_b32 v152, v152, v8, vcc
v_cndmask_b32 v9, v9, 0, vcc
v_cndmask_b32 v10, v10, v11, vcc
v_xor_b32 v153, v152, v9
v_add_u32 v153, v153, v10
v_lshl_add_u32 v154, v10, 1, v152
v_lshl_add_u32 v155, v10, 1, v153
s_waitcnt lgkmcnt(0)
s_cmp_ge_u32 s2, 128
s_cselect_b32 s96, s66, s64
s_cselect_b32 s97, s67, s65
s_mov_b32 s98, 65536
s_mov_b32 s99, 0x00020000
s_cmp_lt_u32 s22, 6
s_cselect_b32 s96, s32, s96
s_cselect_b32 s97, s33, s97
s_cselect_b32 s98, {2048*2048}, s98
s_cmp_lt_u32 s22, 2
s_cselect_b32 s96, s34, s96
s_cselect_b32 s97, s35, s97
s_cselect_b32 s98, {1024*2048}, s98
""")
    TLK[0] = 0
    srd(a, 12, 48, 49, WS_BYTES)
    srd(a, 36, 34, 35, 1024 * 2048)
    srd(a, 44, 32, 33, 2048 * 2048)
    srd(a, 80, 74, 75, 2048 * 2048)
    srd(a, 84, 50, 51, 513 * 2048)
    tl(a, 0)
    a(f"""
s_and_b32 s30, s2, 7
s_lshr_b32 s31, s2, 3
s_and_b32 s54, s30, 3
s_lshl_b32 s54, s54, 2
s_and_b32 s55, s31, 3
s_add_u32 s54, s54, s55
s_lshr_b32 s55, s30, 2
s_lshl_b32 s55, s55, 3
s_lshr_b32 s56, s31, 2
s_add_u32 s55, s55, s56
s_lshl_b32 s16, s55, 7
s_lshl_b32 s17, s54, 18
s_add_u32 s26, s17, s16
s_cmp_lt_u32 s22, 2
s_cselect_b32 s16, s16, s17
s_mov_b32 s23, 128
s_cselect_b32 s17, {64*2048}, s23
s_cmp_ge_u32 s22, 6
s_cselect_b32 s16, 0, s16
s_cselect_b32 s17, 4096, s17
s_mov_b32 s5, 0
s_and_b32 s24, s55, 3
s_lshl_b32 s23, s54, 2
s_add_u32 s24, s24, s23
s_lshl_b32 s24, s24, 12
s_add_u32 s24, s24, {WS_KF}
s_lshl_b32 s26, s2, 14
s_lshl_b32 s23, s22, 11
s_add_u32 s26, s26, s23
s_cmp_ge_u32 s2, 128
s_cselect_b32 s8, s52, s50
s_cselect_b32 s9, s53, s51
s_mov_b32 s10, {512*2048}
s_mov_b32 s11, 0x00020000
""")

    def hook(role):
        if role == 'F':
            a(f"""
v_mov_b32 v248, 0
s_lshr_b32 s23, s2, 3
s_lshl_b32 s30, s23, 15
s_and_b32 s31, s2, 3
s_lshl_b32 s31, s31, 20
s_add_u32 s30, s30, s31
s_add_u32 s30, s30, 512
v_lshlrev_b32 v251, 7, v2
v_lshrrev_b32 v4, 2, v2
v_and_b32 v5, 3, v2
v_lshlrev_b32 v5, 7, v5
v_lshl_add_u32 v252, v4, 11, v5
v_lshrrev_b32 v4, 3, v2
v_and_b32 v5, 7, v2
v_lshlrev_b32 v5, 7, v5
v_lshl_add_u32 v253, v4, 11, v5
s_lshl_b32 s31, s23, 14
s_and_b32 s23, s2, 4
s_lshl_b32 s23, s23, 8
s_add_u32 s31, s31, s23
s_add_u32 s31, s31, {256*2048}
s_mov_b32 s100, s30
s_mov_b32 s101, s31
s_cmp_lg_u32 s22, 7
s_cbranch_scc1 L_not7
s_and_b32 s54, s2, 127
s_lshl_b32 s54, s54, 13
s_lshr_b32 s23, s2, 3
s_and_b32 s23, s23, 7
s_lshl_b32 s23, s23, 13
buffer_load_dword v249, v251, s[96:99], s23 offen
""")
            for j in range(len(TS)):
                if TS[j] < 0:
                    touch_j(a, j)
            a(f"""
L_not7:
""")
        a("v_lshlrev_b32 v9, 4, v2")
    a(f"""
s_cmp_ge_u32 s55, 8
s_cselect_b32 s23, 6, 7
s_cmp_ge_u32 s22, s23
s_cbranch_scc1 L_qg_F
s_cmp_ge_u32 s55, 8
s_cbranch_scc1 L_qg_D
s_and_b32 s23, s55, 3
s_cmp_lg_u32 s22, s23
s_cbranch_scc1 L_qg_D
s_cmp_ge_u32 s55, 4
s_cbranch_scc1 L_qg_PV
""")
    for role in ('PK', 'PV', 'F', 'D'):
        a(f"L_qg_{role}:")
        q_gemm(a, hook, role)
        if role != 'D':
            a("s_branch L_qg_done")
    a("L_qg_done:")
    tl(a, 5, True)
    a("L_k1_end:\ns_endpgm")


def k2(a):
    kernel_header(a, "k2_kernel")
    a("""
s_cmp_ge_u32 s2, 256
s_cbranch_scc1 L_k2_end
s_load_dwordx4 s[32:35], s[0:1], 0
s_load_dwordx2 s[50:51], s[0:1], 64
s_load_dwordx2 s[52:53], s[0:1], 72
s_load_dwordx2 s[88:89], s[0:1], 32
s_load_dwordx4 s[92:95], s[0:1], 48
s_load_dwordx2 s[48:49], s[0:1], 96
s_waitcnt lgkmcnt(0)
""")
    TLK[0] = 1
    tl(a, 0)
    srd(a, 12, 48, 49, WS_BYTES)
    srd(a, 36, 34, 35, 1024 * 2048)
    srd(a, 44, 32, 33, 2048 * 2048)
    a("""
s_and_b32 s30, s2, 7
s_lshr_b32 s31, s2, 3
s_and_b32 s54, s30, 3
s_lshl_b32 s54, s54, 2
s_and_b32 s55, s31, 3
s_add_u32 s54, s54, s55
s_lshr_b32 s55, s30, 2
s_lshl_b32 s55, s55, 3
s_lshr_b32 s56, s31, 2
s_add_u32 s55, s55, s56
s_lshl_b32 s16, s55, 7
s_lshl_b32 s17, s54, 18
s_add_u32 s26, s17, s16
""")
    attention(a, "at", "L_k2_end")
    a("L_k2_end:\ns_endpgm")


def k3(a):
    kernel_header(a, "k3_kernel")
    a("""
s_cmp_ge_u32 s2, 256
s_cbranch_scc1 L_k3_end
s_load_dwordx2 s[32:33], s[0:1], 32
s_and_b32 s30, s2, 1
s_and_b32 s31, s2, 2
s_lshl_b32 s31, s31, 1
s_or_b32 s30, s30, s31
s_lshr_b32 s31, s2, 7
s_lshl_b32 s31, s31, 1
s_or_b32 s30, s30, s31
s_and_b32 s31, s2, 0x78
s_or_b32 s30, s30, s31
s_and_b32 s31, s2, 4
s_lshl_b32 s31, s31, 5
s_or_b32 s2, s30, s31
s_load_dwordx2 s[34:35], s[0:1], 80
s_load_dwordx2 s[48:49], s[0:1], 96
s_load_dwordx4 s[56:59], s[0:1], 48
s_and_b32 s30, s2, 7
s_lshr_b32 s31, s2, 3
s_waitcnt lgkmcnt(0)
""")
    TLK[0] = 2
    tl(a, 0)
    a("""
s_cmp_ge_u32 s2, 128
s_cbranch_scc1 L_k3_s2
s_and_b32 s50, s30, 1
s_lshl_b32 s50, s50, 2
s_and_b32 s51, s31, 3
s_add_u32 s50, s50, s51
s_lshr_b32 s51, s30, 1
s_lshl_b32 s51, s51, 2
s_lshr_b32 s52, s31, 2
s_add_u32 s51, s51, s52
""")
    srd(a, 4, 32, 33, 1024 * 2048)
    srd(a, 8, 48, 49, 2048 * 2048, WS_O)
    srd(a, 12, 34, 35, 2048 * 4096)
    a("""
s_lshl_b32 s16, s50, 8
s_lshl_b32 s17, s51, 18
s_lshl_b32 s21, s51, 19
s_add_u32 s21, s21, s16
""")
    ES = int(os.environ.get('ES', '12'))
    gemm(a, "g5", 2, 2, 2, 'N', 2048, 2048, 16, 4, 4096, events={ES: lambda: (edge_issue(a), edge_loads(a))}, extras={ES: 14})
    a("s_waitcnt vmcnt(" + os.environ.get('EW', '4') + ")")
    edge_finish(a)
    tl(a, 5, True)
    a("""
s_endpgm
L_k3_s2:
s_sub_u32 s31, s31, 16
s_mov_b32 s50, s56
s_mov_b32 s51, s57
s_mov_b32 s52, s58
s_mov_b32 s53, s59
""")
    stage2(a)
    tl(a, 5, True)
    a("""
s_endpgm
L_k3_fb:
s_load_dwordx2 s[40:41], s[0:1], 40
s_load_dwordx4 s[44:47], s[0:1], 64
s_load_dwordx2 s[90:91], s[0:1], 88
s_mov_b32 s36, s34
s_mov_b32 s37, s35
s_mov_b32 s32, s50
s_mov_b32 s33, s51
s_mov_b32 s34, s52
s_mov_b32 s35, s53
s_waitcnt vmcnt(0) lgkmcnt(0)
s_barrier
""")
    srd(a, 12, 48, 49, WS_BYTES)
    g3(a)
    a("""
s_waitcnt vmcnt(0) lgkmcnt(0)
s_barrier
s_cmp_lg_u32 s22, 0
s_cbranch_scc1 L_k3_gb2
buffer_wbl2 sc1
s_waitcnt vmcnt(0)
v_mov_b32 v3, 0
v_mov_b32 v4, 1
s_mov_b64 exec, 1
global_atomic_add v3, v4, s[90:91] sc1
s_waitcnt vmcnt(0)
L_k3_gb1:
s_sleep 8
global_load_dword v5, v3, s[90:91] sc1
s_waitcnt vmcnt(0)
v_readfirstlane_b32 s23, v5
s_nop 3
s_cmp_lt_u32 s23, 128
s_cbranch_scc1 L_k3_gb1
s_mov_b64 exec, -1
buffer_inv sc1
s_waitcnt vmcnt(0)
L_k3_gb2:
s_barrier
""")
    g4(a)
    a("L_k3_end:\ns_endpgm")


def V(n):
    return 256 if os.environ.get('TL') else n


def main():
    a = Asm()
    hdr = open("cdna_kernels/" + KN + ".s.ref").read().split("; Override launch")[0]
    launches = """; @launch kernel=k1_kernel grid=(256,1,1) block=(512,1,1) lds=131072
; @launch kernel=k2_kernel grid=(256,1,1) block=(512,1,1) lds=163840
; @launch kernel=k3_kernel grid=(256,1,1) block=(512,1,1) lds=147456
"""
    k1(a)
    k2(a)
    k3(a)
    out = hdr + launches + '.amdgcn_target "amdgcn-amd-amdhsa--gfx950"\n.text\n' + a.text()
    out += '.section .rodata,"a"\n.p2align 6\n' + kernel_desc("k1_kernel", V(256), 102) + ".p2align 6\n" + kernel_desc("k2_kernel", V(256)) + ".p2align 6\n" + kernel_desc("k3_kernel", V(248))
    open(sys.argv[1] if len(sys.argv) > 1 else "out.s", "w").write(out)


if __name__ == "__main__":
    main()
```

```python
import sys, os
PROF = os.environ.get('PROF'); NOMFMA = os.environ.get('NOMFMA'); NODMA = os.environ.get('NODMA')

KN = "concat_heads__grouped_kv_mqa__spectral_fnet__prompt"
WS_Q = 0
WS_KF = 4 << 20
WS_VF = (4 << 20) + (128 << 10)
WS_AB = 8 << 20
WS_O = 16 << 20
WS_XP = 26 << 20
WS_XM = 29 << 20
WS_AT = 32 << 20
WS_BT = 34 << 20
WS_FLAG = 36 << 20
ATP = 2176
QSCALE = 1.4426950408889634 * 32 ** -0.5


def f32bits(x):
    import struct
    return struct.unpack("<I", struct.pack("<f", x))[0]


class Asm:
    def __init__(self):
        self.lines = []

    def __call__(self, s):
        for l in s.strip("\n").split("\n"):
            self.lines.append(l if l.endswith(":") else "    " + l.strip())

    def text(self):
        return "\n".join(self.lines) + "\n"


def srd(a, d, lo, hi, nbytes, off=0):
    if off:
        a(f"s_add_u32 s{d}, s{lo}, {off}\ns_addc_u32 s{d+1}, s{hi}, 0")
    else:
        a(f"s_mov_b32 s{d}, s{lo}\ns_mov_b32 s{d+1}, s{hi}")
    a(f"s_mov_b32 s{d+2}, {nbytes}\ns_mov_b32 s{d+3}, 0x00020000")


FR = [16, 32]
UID = [0]
PROFOFF = {'qg': 65536, 'g1': 0, 'g2': 0, 'g3': 0, 'g4': 65536, 'g5': 131072, 's1': 65536, 's2': 131072}
ACC = 64
DV = 48
RA = 128


def pipeline(a, tag, nsteps, NS, nu, dmas, reads, mfmas, nreads, kadv, switch=None, pre=None, setup=None, xtra=0, events=None, extras=None, prebar=None, novm=False, noprol=0):
    nd = len(dmas(0))

    def issue_all(stage):
        for g in dmas(stage % NS):
            for ins in g:
                a(ins)
        for ins in kadv:
            a(ins)

    for st in range(noprol, min(NS - 1, nsteps)):
        issue_all(st)
    if setup is not None:
        setup()
    if pre is not None:
        pre()
    if not novm:
        a(f"s_waitcnt vmcnt({(min(NS - 1, nsteps) - 1) * nd + xtra})")
    a("s_barrier")
    if TLK[0] != 1: stamp_begin(a, 72)
    tl(a, 6 if tag == 's1' else 1) if not (tag == 's2' and TLK[0] == 1) else None
    for ins in reads(0, 0, 0):
        a(ins)
    state = {"set": 0}

    def step(i, dyn=False):
        do_dma = (i + NS - 1) <= nsteps - 1
        groups = list(dmas((i + NS - 1) % NS)) if do_dma else []
        if do_dma and switch is not None:
            if dyn:
                a(switch[2])
            elif i + NS - 1 == switch[0]:
                a(switch[1])
        mcount = len(mfmas(0))
        half = mcount // 2
        nm = (nu - 1) * mcount + half
        slots = [[] for _ in range(nu * mcount)]
        for gi, g in enumerate(groups):
            slots[min(nm - 1, gi * nm // max(1, len(groups)))].extend(g)
        if do_dma:
            slots[nm - 1].extend(kadv)
        last_issued = min(i + NS - 1, nsteps - 1)
        mi = 0

        def emit_m(ms):
            nonlocal mi
            for m in ms:
                if not NOMFMA:
                    a(m)
                for ins in slots[mi]:
                    if NODMA and 'buffer_load' in ins:
                        continue
                    a(ins)
                mi += 1

        for ul in range(nu):
            cur = state["set"]
            nxt = 1 - cur
            ms = mfmas(cur)
            if ul + 1 < nu:
                rd = reads(i % NS, ul + 1, nxt)
                for ins in rd:
                    a(ins)
                a(f"s_waitcnt lgkmcnt({len(rd)})")
                emit_m(ms)
            else:
                a("s_waitcnt lgkmcnt(0)")
                emit_m(ms[:half])
                if i + 1 <= nsteps - 1:
                    ex = sum(n for i2, n in (extras or {}).items() if i + 2 - NS <= i2 < i)
                    if not novm: a(f"s_waitcnt vmcnt({(last_issued - (i + 1)) * nd + ex + (xtra if (i + 1 <= NS - 2 and not dyn) else 0)})")
                    if prebar and i in prebar:
                        prebar[i]()
                    a("s_barrier")
                    for ins in reads((i + 1) % NS, 0, nxt):
                        a(ins)
                emit_m(ms[half:])
                if events and i in events:
                    events[i]()
                if tag == 'qg' and i % 2 == 1 and os.environ.get('TLQ'):
                    tl(a, 8 + i // 2)
            state["set"] = nxt

    xtra_block = False
    steady_end = nsteps - NS + 1
    unroll = NS if (nu % 2 == 0 or NS % 2 == 0) else 2 * NS
    nloop = steady_end // unroll
    if nloop >= 2 and nsteps > int(os.environ.get('LOOPMIN', '16')) and not xtra_block:
        UID[0] += 1
        lab = f"L_{tag}_loop{UID[0]}"
        a(f"s_mov_b32 s19, 0")
        a(f"{lab}:")
        for i in range(unroll):
            step(i, dyn=True)
        a(f"s_add_u32 s19, s19, 1\ns_cmp_lt_u32 s19, {nloop}\ns_cbranch_scc1 {lab}")
        start = nloop * unroll
    else:
        start = 0
    for i in range(start, nsteps):
        step(i)
    if TLK[0] != 1: stamp_end(a, PROFOFF[tag], 72)
    tl(a, 7 if tag == 's1' else 2) if not (tag == 's2' and TLK[0] == 1) else None


def stamp_begin(a, base=66):
    if PROF:
        a(f"s_memtime s[{base}:{base+1}]\ns_memrealtime s[{base+4}:{base+5}]\ns_waitcnt lgkmcnt(0)")


def stamp_end(a, off, base=66):
    if PROF:
        a(f"""s_memtime s[{base+2}:{base+3}]
s_memrealtime s[{base+6}:{base+7}]
s_waitcnt lgkmcnt(0)
s_sub_u32 s{base+2}, s{base+2}, s{base}
s_sub_u32 s{base+6}, s{base+6}, s{base+4}
s_load_dwordx2 s[{base}:{base+1}], s[0:1], 96
s_waitcnt lgkmcnt(0)
s_add_u32 s{base}, s{base}, {24<<20}
s_addc_u32 s{base+1}, s{base+1}, 0
v_mov_b32 v6, s{base+2}
v_mov_b32 v7, s{base+6}
s_lshl_b32 s23, s2, 6
s_lshl_b32 s{base+2}, s22, 3
s_add_u32 s23, s23, s{base+2}
s_add_u32 s23, s23, {off}
v_mov_b32 v5, s23
global_store_dwordx2 v5, v[6:7], s[{base}:{base+1}]
""")


TLK = [0]


def tl(a, slot, drain=False):
    if not os.environ.get('TL'):
        return
    if drain:
        a("s_waitcnt vmcnt(0)")
    b = 66 if TLK[0] <= 1 else 80
    va, vb = (6, 7) if TLK[0] <= 1 else (254, 255)
    a(f"""s_memrealtime s[{b}:{b+1}]
s_load_dwordx2 s[{b+2}:{b+3}], s[0:1], 96
s_waitcnt lgkmcnt(0)
s_add_u32 s{b+2}, s{b+2}, {(24<<20) + (512<<10) + TLK[0]*65536 + slot*4}
s_addc_u32 s{b+3}, s{b+3}, 0
s_lshl_b32 s{b+4}, s2, 6
v_mov_b32 v{va}, s{b+4}
v_mov_b32 v{vb}, s{b}
v_cmp_eq_u32 vcc, 0, v0
s_and_saveexec_b64 s[{b+6}:{b+7}], vcc
global_store_dword v{va}, v{vb}, s[{b+2}:{b+3}]
s_mov_b64 exec, s[{b+6}:{b+7}]
""")


def wave_setup(a):
    a("""
v_lshrrev_b32 v1, 6, v0
s_nop 0
v_readfirstlane_b32 s22, v1
v_and_b32 v2, 63, v0
s_nop 2
s_lshl_b32 s18, s22, 10
""")


def t_dma_voff(a, vdst, n, pitch):
    a(f"""
v_lshrrev_b32 v3, 3, v2
v_lshl_add_u32 v3, v1, 3, v3
v_bfe_u32 v4, v3, 1, 3
v_and_b32 v5, 7, v2
v_xor_b32 v4, v4, v5
v_lshlrev_b32 v4, 4, v4
s_mov_b32 s23, {pitch}
v_mul_lo_u32 v3, v3, s23
v_add_u32 v{vdst}, v3, v4
""")
    for i in range(1, n):
        a(f"v_add_u32 v{vdst+i}, {i*64*pitch}, v{vdst}")


def n_dma_voff(a, vdst, n, pitch, MT):
    lpr = MT * 2 // 16
    rows = 64 // lpr
    sh = lpr.bit_length() - 1
    a(f"""
v_lshrrev_b32 v3, {sh}, v2
v_lshl_add_u32 v3, v1, {rows.bit_length()-1}, v3
v_and_b32 v5, {lpr-1}, v2
v_lshrrev_b32 v6, 2, v5
v_and_b32 v4, 3, v3
v_xor_b32 v6, v6, v4
v_and_b32 v5, 3, v5
v_lshlrev_b32 v5, 4, v5
v_lshl_add_u32 v5, v6, 6, v5
s_mov_b32 s23, {pitch}
v_mul_lo_u32 v3, v3, s23
v_add_u32 v{vdst}, v3, v5
""")
    for i in range(1, n):
        a(f"v_add_u32 v{vdst+i}, {i*8*rows*pitch}, v{vdst}")


def t_read_addr(a, vdst, nu, srow, skg2, base, NS, STAGE, stride):
    a(f"""
v_and_b32 v3, 31, v2
v_bfe_u32 v4, v3, 1, 3
v_lshrrev_b32 v5, 5, v2
v_xor_b32 v4, v4, v5
v_xor_b32 v4, s{skg2}, v4
v_add_u32 v3, s{srow}, v3
v_lshlrev_b32 v3, 7, v3
v_lshl_add_u32 v3, v4, 4, v3
""")
    for st in range(NS):
        for ul in range(nu):
            if ul == 0:
                a(f"v_add_u32 v{vdst+st*stride}, {base+st*STAGE}, v3")
            else:
                a(f"v_xor_b32 v{vdst+st*stride+ul}, {ul*32}, v{vdst+st*stride}")


def n_read_addr(a, vdst, sunit, skrow, LP, base, NS, STAGE, stride, nblk=2):
    a(f"""
v_bfe_u32 v3, v2, 2, 2
v_lshrrev_b32 v4, 5, v2
v_lshl_add_u32 v4, v4, 3, v3
s_mov_b32 s23, {LP}
v_mul_lo_u32 v4, v4, s23
v_add_u32 v4, s{skrow}, v4
v_bfe_u32 v5, v2, 4, 1
v_lshl_add_u32 v4, v5, 5, v4
v_and_b32 v5, 3, v2
v_lshl_add_u32 v4, v5, 3, v4
""")
    for b in range(nblk):
        a(f"""
s_add_u32 s23, s{sunit}, {b}
v_xor_b32 v5, s23, v3
v_lshl_add_u32 v5, v5, 6, v4
""")
        for st in range(NS):
            a(f"v_add_u32 v{vdst+st*stride+b}, {base+st*STAGE}, v5")


def gemm(a, tag, WM, WN, KS, ptype, pP, pR, nsteps, NS, opitch, scale=False, switch=None, touch=None, events=None, extras=None):
    assert WM * WN * KS == 8
    MT, NT = 64 * WM, 64 * WN
    PB, RB = MT * 128, NT * 128
    STAGE = PB + RB
    nu = 4 // KS
    ncP, ncR = PB // 8192, RB // 8192
    wave_setup(a)
    lw = (WM * WN).bit_length() - 1
    lm = WM.bit_length() - 1
    a(f"""
s_lshr_b32 s24, s22, {lw}
s_and_b32 s25, s22, {WM-1}
s_lshr_b32 s26, s22, {lm}
s_and_b32 s26, s26, {WN-1}
""")
    if ptype == 'T':
        t_dma_voff(a, DV, ncP, pP)
    else:
        n_dma_voff(a, DV, ncP, pP, MT)
    t_dma_voff(a, DV + ncP, ncR, pR)
    nP = nu if ptype == 'T' else 2
    stride = nP + nu

    def setup():
        if touch:
            touch[0]() if callable(touch[0]) else a(touch[0])
        a(f"s_mul_i32 s27, s24, {nu*2}")
        if ptype == 'T':
            a(f"s_lshl_b32 s28, s25, 6")
            t_read_addr(a, RA, nu, 28, 27, 0, NS, STAGE, stride)
        else:
            a(f"s_lshl_b32 s28, s25, 1\ns_mul_i32 s29, s24, {nu*16*MT*2}")
            n_read_addr(a, RA, 28, 29, MT * 2, 0, NS, STAGE, stride)
        a(f"s_lshl_b32 s28, s26, 6")
        t_read_addr(a, RA + nP, nu, 28, 27, PB, NS, STAGE, stride)
        for i in range(64):
            a(f"v_mov_b32 v{ACC+i}, 0")

    def dmas(st):
        r = []
        for i in range(ncP):
            r.append([f"s_add_u32 m0, s18, {st*STAGE + i*8192}", "s_nop 0",
                      f"buffer_load_dwordx4 v{DV+i}, s[4:7], s16 offen lds"])
        for i in range(ncR):
            r.append([f"s_add_u32 m0, s18, {st*STAGE + PB + i*8192}", "s_nop 0",
                      f"buffer_load_dwordx4 v{DV+ncP+i}, s[8:11], s17 offen lds"])
        return r

    def reads(st, ul, fs):
        f = FR[fs]
        r = []
        if ptype == 'T':
            for b in range(2):
                r.append(f"ds_read_b128 v[{f+4*b}:{f+4*b+3}], v{RA+st*stride+ul} offset:{b*4096}")
        else:
            for b in range(2):
                for rr in range(2):
                    r.append(f"ds_read_b64_tr_b16 v[{f+4*b+2*rr}:{f+4*b+2*rr+1}], v{RA+st*stride+b} offset:{(16*ul+4*rr)*MT*2}")
        for b in range(2):
            r.append(f"ds_read_b128 v[{f+8+4*b}:{f+8+4*b+3}], v{RA+st*stride+nP+ul} offset:{b*4096}")
        return r

    def mfmas(fs):
        f = FR[fs]
        r = []
        for nb in range(2):
            for mb in range(2):
                c = ACC + 16 * (nb * 2 + mb)
                r.append(f"v_mfma_f32_32x32x16_bf16 v[{c}:{c+15}], v[{f+4*mb}:{f+4*mb+3}], v[{f+8+4*nb}:{f+8+4*nb+3}], v[{c}:{c+15}]")
        return r

    kadv = [f"s_add_u32 s16, s16, {128 if ptype == 'T' else 64*pP}", "s_add_u32 s17, s17, 128"]
    pipeline(a, tag, nsteps, NS, nu, dmas, reads, mfmas, None, kadv, switch, setup=setup, xtra=(touch[1] if touch else 0), events=events, extras=extras)

    a("s_nop 15\ns_nop 3")
    blocks = [(nb, mb) for nb in range(2) for mb in range(2)]
    if KS == 2:
        a("s_barrier")
        a(f"""
v_lshlrev_b32 v3, 4, v2
s_lshl_b32 s23, s22, 13
v_add_u32 v3, s23, v3
s_xor_b32 s23, s22, 4
s_lshl_b32 s23, s23, 13
v_lshlrev_b32 v4, 4, v2
v_add_u32 v4, s23, v4
s_cmp_eq_u32 s24, 0
s_cbranch_scc1 L_{tag}_x0
""")
        for j in range(8):
            a(f"ds_write_b128 v3, v[{ACC+4*j}:{ACC+4*j+3}] offset:{j*1024}")
        for j in range(32):
            a(f"v_mov_b32 v{ACC+j}, v{ACC+32+j}")
        a(f"s_branch L_{tag}_x1\nL_{tag}_x0:")
        for j in range(8):
            a(f"ds_write_b128 v3, v[{ACC+32+4*j}:{ACC+32+4*j+3}] offset:{j*1024}")
        a(f"L_{tag}_x1:\ns_waitcnt lgkmcnt(0)\ns_barrier")
        for j in range(8):
            a(f"ds_read_b128 v[{ACC+32+4*j}:{ACC+32+4*j+3}], v4 offset:{j*1024}")
        for j in range(8):
            a(f"s_waitcnt lgkmcnt({7-j})")
            for r in range(4):
                a(f"v_add_f32 v{ACC+4*j+r}, v{ACC+4*j+r}, v{ACC+32+4*j+r}")
        blocks = [(0, 0), (0, 1)]
    a(f"""
s_lshl_b32 s23, s26, 6
v_and_b32 v3, 31, v2
v_add_u32 v3, s23, v3
""")
    if KS == 2:
        a("s_lshl_b32 s23, s24, 5\nv_add_u32 v3, s23, v3")
    a(f"""
s_mov_b32 s23, {opitch}
v_mul_lo_u32 v3, v3, s23
v_lshrrev_b32 v4, 5, v2
v_lshl_add_u32 v3, v4, 4, v3
s_lshl_b32 s23, s25, 7
s_add_u32 s23, s23, s21
v_add_u32 v3, s23, v3
v_add_u32 v4, {32*opitch}, v3
""")
    for bi, (nb, mb) in enumerate(blocks):
        c = ACC + 16 * (nb * 2 + mb)
        t = 16 + 8 * (bi % 4)
        if scale:
            for r in range(16):
                a(f"v_mul_f32 v{c+r}, s20, v{c+r}")
        for r in range(8):
            a(f"v_cvt_pk_bf16_f32 v{t+r}, v{c+2*r}, v{c+2*r+1}")
        a("s_nop 1")
        for p in range(2):
            a(f"v_permlane32_swap_b32 v{t+4*p}, v{t+4*p+2}\nv_permlane32_swap_b32 v{t+4*p+1}, v{t+4*p+3}")
        for p in range(2):
            a(f"buffer_store_dwordx4 v[{t+4*p}:{t+4*p+3}], v{3+nb}, s[12:15], 0 offen offset:{mb*64+p*32}")


def gemm_kv(a, tag, NS=4):
    PB, RB = 8192, 16384
    STAGE = PB + RB
    nu = 4
    a(f"""
v_and_b32 v3, 3, v1
v_lshlrev_b32 v3, 10, v3
v_lshl_add_u32 v{DV}, v2, 4, v3
""")
    t_dma_voff(a, DV + 1, 2, 2048)
    stride = 1 + nu

    def dmas(st):
        r_ = [[f"s_add_u32 m0, s18, {st*STAGE}", "s_nop 0", f"buffer_load_dwordx4 v{DV}, s[4:7], s16 offen lds"]]
        for i in range(2):
            r_.append([f"s_add_u32 m0, s18, {st*STAGE + PB + i*8192}", "s_nop 0",
                       f"buffer_load_dwordx4 v{DV+1+i}, s[8:11], s17 offen lds"])
        return r_

    def setup():
        a(f"""
v_bfe_u32 v3, v2, 2, 2
v_lshrrev_b32 v4, 5, v2
v_lshl_add_u32 v4, v4, 3, v3
v_lshlrev_b32 v4, 6, v4
v_bfe_u32 v5, v2, 4, 1
v_lshl_add_u32 v4, v5, 5, v4
v_and_b32 v5, 3, v2
v_lshl_add_u32 v4, v5, 3, v4
v_lshrrev_b32 v5, 2, v1
v_lshl_add_u32 v4, v5, 12, v4
""")
        for st in range(NS):
            a(f"v_add_u32 v{RA+st*stride}, {st*STAGE}, v4")
        a("s_mov_b32 s27, 0\ns_and_b32 s28, s22, 3\ns_lshl_b32 s28, s28, 5")
        t_read_addr(a, RA + 1, nu, 28, 27, PB, NS, STAGE, stride)
        for i in range(16):
            a(f"v_mov_b32 v{ACC+i}, 0")

    def reads(st, ul, fs):
        f = FR[fs]
        r_ = []
        for rr in range(2):
            r_.append(f"ds_read_b64_tr_b16 v[{f+2*rr}:{f+2*rr+1}], v{RA+st*stride} offset:{(16*ul+4*rr)*64}")
        r_.append(f"ds_read_b128 v[{f+8}:{f+11}], v{RA+st*stride+1+ul}")
        return r_

    kadv = ["s_add_u32 s16, s16, 4096", "s_add_u32 s17, s17, 128"]
    a(f"s_cmp_ge_u32 s22, 4\ns_cbranch_scc1 L_{tag}_v")
    for kv in range(2):
        if kv:
            a(f"L_{tag}_v:")

        def mfmas(fs):
            f = FR[fs]
            if kv == 0:
                return ["s_nop 0", f"v_mfma_f32_32x32x16_bf16 v[{ACC}:{ACC+15}], v[{f}:{f+3}], v[{f+8}:{f+11}], v[{ACC}:{ACC+15}]"]
            return ["s_nop 0", f"v_mfma_f32_32x32x16_bf16 v[{ACC}:{ACC+15}], v[{f+8}:{f+11}], v[{f}:{f+3}], v[{ACC}:{ACC+15}]"]

        pipeline(a, tag, 16, NS, nu, dmas, reads, mfmas, None, kadv, setup=setup)
        a("s_nop 15\ns_nop 3")
        a(f"""
s_and_b32 s23, s22, 3
s_add_u32 s23, s21, s23
s_lshl_b32 s23, s23, 12
v_lshlrev_b32 v3, 4, v2
v_add_u32 v3, s23, v3
v_add_u32 v3, {WS_KF + 2048*kv}, v3
""")
        for r_ in range(8):
            a(f"v_cvt_pk_bf16_f32 v{16+r_}, v{ACC+2*r_}, v{ACC+2*r_+1}")
        for p in range(2):
            a(f"buffer_store_dwordx4 v[{16+4*p}:{16+4*p+3}], v3, s[12:15], 0 offen offset:{p*1024}")
        if kv == 0:
            tl(a, 5, True)
            a("s_endpgm")


def kernel_header(a, name):
    a.lines.append(f".globl {name}\n.p2align 8\n.type {name},@function\n{name}:")


def kernel_desc(name, vgpr, sgpr=100):
    return f""".amdhsa_kernel {name}
  .amdhsa_next_free_vgpr {vgpr}
  .amdhsa_next_free_sgpr {sgpr}
  .amdhsa_accum_offset {(vgpr+3)//4*4}
  .amdhsa_group_segment_fixed_size 0
  .amdhsa_kernarg_size 104
  .amdhsa_user_sgpr_count 2
  .amdhsa_user_sgpr_kernarg_segment_ptr 1
  .amdhsa_system_sgpr_workgroup_id_x 1
.end_amdhsa_kernel
"""


WS_BYTES = 40 << 20


def g4(a):
    a("""
s_and_b32 s50, s30, 1
s_lshl_b32 s50, s50, 2
s_and_b32 s51, s31, 3
s_add_u32 s50, s50, s51
s_lshr_b32 s51, s30, 1
s_lshl_b32 s51, s51, 2
s_lshr_b32 s52, s31, 2
s_add_u32 s51, s51, s52
""")
    if os.environ.get('SAMETILE') == '1':
        a("s_mov_b32 s50, 0\ns_mov_b32 s51, 0")
    if os.environ.get('SAMETILE') == '2':
        a("s_and_b32 s50, s30, 7\ns_mov_b32 s51, s30")
    if os.environ.get('SAMETILE') == '3':
        a("s_and_b32 s50, s2, 7\ns_lshr_b32 s51, s2, 3")
    srd(a, 4, 48, 49, 2048 * 4096, WS_AB)
    srd(a, 8, 32, 33, 2048 * 4096)
    srd(a, 12, 36, 37, 2048 * 4096)
    a("""
s_lshl_b32 s16, s50, 19
s_lshl_b32 s17, s51, 19
s_lshl_b32 s21, s50, 8
s_add_u32 s21, s21, s17
s_add_u32 s21, s21, 2048
s_add_u32 s53, s17, 4096
""")
    sw = f"""
s_mov_b32 s8, s34
s_mov_b32 s9, s35
s_sub_u32 s17, s17, 4096
s_add_u32 s16, s16, {1024*4096 - 4096}
s_mov_b32 s53, -1
"""
    uid = [0]

    class Dyn(str):
        pass
    dyn = f"""
s_cmp_eq_u32 s17, s53
s_cselect_b32 s8, s34, s8
s_cselect_b32 s9, s35, s9
s_cselect_b32 s23, 4096, 0
s_cselect_b32 s54, {1024*4096 - 4096}, 0
s_cselect_b32 s53, -1, s53
s_sub_u32 s17, s17, s23
s_add_u32 s16, s16, s54
"""
    gemm(a, "g4", 2, 2, 2, 'T', 4096, 4096, 64, 4, 4096, switch=(32, sw, dyn))


TPS = 8
ASTAGE = TPS * 4096
ANS = 3
NSTG = 64 // TPS
Q0, KF_, VF_, P_, ONES, LA, LB, NEGM, SX, SY, OA, OB = 16, 32, 40, 48, 56, 60, 64, 72, 88, 104, 120, 136
ST, KT, VT, PT = 152, 168, 176, 184
THR1 = 2.0 ** int(os.environ.get('THR1', '92'))
THR2 = 2.0 ** 120
MARGIN = int(os.environ.get('MARGIN', '100'))


def r(b, n):
    return f"v[{b}:{b+n-1}]"


def mf32(d, a_, b_, c):
    return f"v_mfma_f32_32x32x16_bf16 {r(d,16)}, {r(a_,4)}, {r(b_,4)}, {r(c,16) if isinstance(c,int) else c}"


def mf16(d, a_, b_, c):
    return f"v_mfma_f32_16x16x32_bf16 {r(d,4)}, {r(a_,4)}, {r(b_,4)}, {r(c,4)}"


def attn_dma(a, i):
    a(f"s_add_u32 m0, s17, {i*8192}\ns_nop 0\nbuffer_load_dwordx4 v{12+i}, s[12:15], s16 offen lds")


def attn_dma_adv(a):
    a(f"""
s_add_u32 s16, s16, {ASTAGE}
s_add_u32 s17, s17, {ASTAGE}
s_sub_u32 s30, s17, {ANS*ASTAGE}
s_cmp_ge_u32 s17, {ANS*ASTAGE}
s_cselect_b32 s17, s30, s17
""")


def cap(fn, *args):
    t = Asm()
    fn(t, *args)
    return [l.strip() for l in t.lines]


def attn_tile(a, g, tt, X, Y, Oc, Od, lc, ld, H, nx):
    cur, nxt = (g % ANS) * ASTAGE, ((g + 1) % ANS) * ASTAGE

    def rd(dst, t2, part):
        if g == NSTG - 1 and t2 >= TPS:
            t2 = TPS - 1
        base = cur if t2 < TPS else nxt
        off = base + (t2 % TPS) * 4096 + part * 1024
        a(f"ds_read_b128 {r(dst,4)}, v{10 + off // 65536} offset:{off % 65536}")
    last = (tt == TPS - 1)
    E = lambda i: a(f"v_exp_f32 v{X+i}, v{X+i}")
    C = lambda i: a(f"v_cvt_pk_bf16_f32 v{P_+i}, v{X+2*i}, v{X+2*i+1}")

    def hook(k):
        for ins in H.get(k, []):
            a(ins)
    hook('pre')
    a(f"s_waitcnt lgkmcnt({2 + nx})")
    a(mf32(Y, KF_, Q0, NEGM))
    for i in range(4): E(i)
    a("s_waitcnt lgkmcnt(0)")
    hook(0)
    if tt > 0:
        a(mf32(Od, VF_ + 4, P_ + 4, Od))
    if last:
        rd(VF_ + 4, tt, 3)
    for i in range(4, 6): E(i)
    hook('m0')
    for i in range(6, 8): E(i)
    hook(1)
    if tt > 0:
        a(mf16(ld, ONES, P_ + 4, ld))
    for i in range(4): C(i)
    a(mf32(Y, KF_ + 4, Q0 + 4, Y))
    hook(2)
    rd(KF_, tt + 2, 0)
    rd(KF_ + 4, tt + 2, 1)
    for i in range(8, 10): E(i)
    hook('m1')
    for i in range(10, 12): E(i)
    a(mf32(Od, VF_, P_, Oc))
    if not last:
        rd(VF_ + 4, tt, 3)
    rd(VF_, tt + 1, 2)
    for i in range(12, 14): E(i)
    hook('m2')
    for i in range(14, 16): E(i)
    hook(3)
    a(mf16(ld, ONES, P_, lc))
    hook('end')
    for i in range(4, 8): C(i)
    hook('m3')
    if last:
        assert not H.get('end')
        a("s_waitcnt lgkmcnt(3)\ns_nop 0")
        a(mf32(Od, VF_ + 4, P_ + 4, Od))
        a(mf16(ld, ONES, P_ + 4, ld))


PEND = {}


def attn_slow(a, tag, Oold, Onew, lold, lnew, Snext, sbase, pend=None):
    a(f"L_{tag}_slow:")
    a("s_nop 15")
    a(f"v_cmp_nlt_f32 vcc, v{lnew}, s29\ns_nop 4\ns_cbranch_vccnz L_{tag}_heavy")
    a(f"""
v_frexp_exp_i32_f32 v3, v{lnew}
v_add_u32 v3, {MARGIN}, v3
v_cvt_f32_i32 v4, v3
v_sub_u32 v3, 0, v3
""")
    for i in range(16): a(f"v_ldexp_f32 v{Onew+i}, v{Onew+i}, v3")
    for i in range(4): a(f"v_ldexp_f32 v{lnew+i}, v{lnew+i}, v3")
    for i in range(16): a(f"v_sub_f32 v{NEGM+i}, v{NEGM+i}, v4")
    for i in range(16): a(f"v_sub_f32 v{Snext+i}, v{Snext+i}, v4")
    a(f"s_nop 1\ns_branch L_{tag}_ret")
    a(f"L_{tag}_heavy:")
    a("s_waitcnt vmcnt(0)")
    np_, AM = pend or (0, 0)
    for i in range(np_):
        a(f"v_mfma_f32_16x16x32_bf16 {r(VB+12+4*i,4)}, {r(AM,4)}, {r(VB+4*i,4)}, 0")
    a("s_nop 15")
    for i in range(np_):
        a(f"v_max3_f32 v{VMAX}, |v{VB+12+4*i}|, |v{VB+13+4*i}|, v{VMAX}\nv_max3_f32 v{VMAX}, |v{VB+14+4*i}|, |v{VB+15+4*i}|, v{VMAX}")
    a(f"s_waitcnt lgkmcnt(0)\nv_log_f32 v5, v{lold}\nv_add_u32 v6, {sbase}, v10\ns_mov_b32 s30, 0")
    a(f"L_{tag}_h1:")
    a(f"ds_read_b128 {r(KT,4)}, v6\nds_read_b128 {r(KT+4,4)}, v6 offset:1024\ns_waitcnt lgkmcnt(0)")
    a(mf32(ST, KT, Q0, NEGM)); a(mf32(ST, KT + 4, Q0 + 4, ST))
    a("s_nop 15")
    for i in range(8): a(f"v_max3_f32 v5, v{ST+2*i}, v{ST+2*i+1}, v5")
    a(f"v_add_u32 v6, 4096, v6\ns_add_u32 s30, s30, 1\ns_cmp_lt_u32 s30, {TPS}\ns_cbranch_scc1 L_{tag}_h1")
    a(f"""
v_mov_b32 v6, v5
s_nop 1
v_permlane32_swap_b32 v5, v6
s_nop 1
v_max_f32 v5, v5, v6
v_ceil_f32 v4, v5
v_add_f32 v4, {f32bits(float(MARGIN))}, v4
v_cvt_i32_f32 v3, v4
v_sub_u32 v3, 0, v3
""")
    for i in range(16): a(f"v_ldexp_f32 v{Onew+i}, v{Oold+i}, v3")
    for i in range(4): a(f"v_ldexp_f32 v{lnew+i}, v{lold+i}, v3")
    for i in range(16): a(f"v_sub_f32 v{NEGM+i}, v{NEGM+i}, v4")
    for i in range(16): a(f"v_sub_f32 v{Snext+i}, v{Snext+i}, v4")
    a(f"v_add_u32 v6, {sbase}, v10\ns_mov_b32 s30, 0")
    a(f"L_{tag}_h2:")
    a(f"ds_read_b128 {r(KT,4)}, v6\nds_read_b128 {r(KT+4,4)}, v6 offset:1024\nds_read_b128 {r(VT,4)}, v6 offset:2048\nds_read_b128 {r(VT+4,4)}, v6 offset:3072\ns_waitcnt lgkmcnt(0)")
    a(mf32(ST, KT, Q0, NEGM)); a(mf32(ST, KT + 4, Q0 + 4, ST))
    a("s_nop 15")
    for i in range(16): a(f"v_exp_f32 v{ST+i}, v{ST+i}")
    a("s_nop 0")
    for i in range(8): a(f"v_cvt_pk_bf16_f32 v{PT+i}, v{ST+2*i}, v{ST+2*i+1}")
    a("s_nop 1")
    a(mf32(Onew, VT, PT, Onew)); a(mf32(Onew, VT + 4, PT + 4, Onew))
    a(mf16(lnew, ONES, PT, lnew)); a(mf16(lnew, ONES, PT + 4, lnew))
    a(f"v_add_u32 v6, 4096, v6\ns_add_u32 s30, s30, 1\ns_cmp_lt_u32 s30, {TPS}\ns_cbranch_scc1 L_{tag}_h2")
    a("s_nop 7")
    for i in range(4 * np_):
        a(f"v_mov_b32 v{VB+i}, 0")
    a(f"s_branch L_{tag}_ret")


N0 = int(os.environ.get('N0', '12'))
TS = eval(os.environ.get('TS', '[-1,-1,-1,-1,-1,-1, 13]'))


def touch_j(a, j):
    if j < 6:
        sr, vo, so, inc = ((44, 252, 100, 512), (36, 253, 101, 256 * 2048))[j % 2]
    else:
        sr, vo, so, inc = (8, 251, 54, 0)
    a(f"buffer_load_dword v249, v{vo}, s[{sr}:{sr+3}], s{so} offen\ns_add_u32 s{so}, s{so}, {inc}")


def q_gemm(a, setup_hook, role):
    NS = int(os.environ.get('QNS', '4'))
    STAGE = 28672
    F = [88, 104]
    F2 = [32, 40]
    D_, R_ = 152, 156
    AC, AC2 = OA, NEGM
    SV = 248
    NB = [0]
    stride = 5

    def dmas(st):
        if role == 'F':
            return []
        return [[f"s_add_u32 m0, s20, {st*STAGE + i*1024}", "s_nop 0", f"buffer_load_dwordx4 v{D_+i}, s[96:99], s16 offen lds"] for i in range(4)]

    def setup():
        setup_hook(role)
        a(f"""
v_bfe_u32 v3, v2, 2, 2
v_lshrrev_b32 v4, 5, v2
v_lshl_add_u32 v4, v4, 3, v3
v_bfe_u32 v5, v2, 4, 1
v_and_b32 v6, 3, v2
v_lshlrev_b32 v6, 3, v6
v_lshl_add_u32 v6, v5, 5, v6
v_lshl_add_u32 v7, v4, 6, v6
v_lshl_add_u32 v4, v4, 7, v6
v_lshrrev_b32 v3, 1, v3
v_lshrrev_b32 v5, 2, v1
v_xor_b32 v3, v3, v5
v_lshl_add_u32 v4, v3, 6, v4
v_add_u32 v{R_+25}, 24576, v7
v_add_u32 v{R_+26}, {24576+2*STAGE}, v7
v_add_u32 v{R_+27}, {24576+4*STAGE}, v7
""")
        for st in range(NS):
            a(f"v_add_u32 v{R_+st*stride}, {st*STAGE}, v4")
        a("s_mov_b32 s27, 0\ns_and_b32 s25, s22, 3\ns_lshl_b32 s25, s25, 5")
        t_read_addr(a, R_ + 1, 4, 25, 27, 8192, NS, STAGE, stride)
        for i in range(16):
            a(f"v_mov_b32 v{AC+i}, 0")
        if role in ('PK', 'PV'):
            for i in range(16):
                a(f"v_mov_b32 v{AC2+i}, 0")

    def reads(st, ul, fs):
        f = F[fs]
        r_ = []
        for q in range(2):
            u = 2 * ul + q
            for rr in range(2):
                r_.append(f"ds_read_b64_tr_b16 v[{f+4*q+2*rr}:{f+4*q+2*rr+1}], v{R_+st*stride} offset:{(16*u+4*rr)*128}")
            r_.append(f"ds_read_b128 v[{f+8+4*q}:{f+11+4*q}], v{R_+st*stride+1+u}")
            if role in ('PK', 'PV'):
                g = F2[fs]
                for rr in range(2):
                    r_.append(f"ds_read_b64_tr_b16 v[{g+4*q+2*rr}:{g+4*q+2*rr+1}], v{R_+25+st//2} offset:{(st%2)*STAGE+(16*u+4*rr)*64}")
        return r_

    def mfmas(fs):
        f, g = F[fs], F2[fs]
        r_ = []
        for q in range(2):
            r_.append(f"v_mfma_f32_32x32x16_bf16 v[{AC}:{AC+15}], v[{f+4*q}:{f+4*q+3}], v[{f+8+4*q}:{f+11+4*q}], v[{AC}:{AC+15}]")
            if role == 'PK':
                r_.append(f"v_mfma_f32_32x32x16_bf16 v[{AC2}:{AC2+15}], v[{g+4*q}:{g+4*q+3}], v[{f+8+4*q}:{f+11+4*q}], v[{AC2}:{AC2+15}]")
            if role == 'PV':
                r_.append(f"v_mfma_f32_32x32x16_bf16 v[{AC2}:{AC2+15}], v[{f+8+4*q}:{f+11+4*q}], v[{g+4*q}:{g+4*q+3}], v[{AC2}:{AC2+15}]")
        return r_

    kadv = ["s_add_u32 s16, s16, s17"]

    def ev_touch(js, first):
        a(f"s_cmp_lg_u32 s22, 7\ns_cbranch_scc1 L_qt{js[0]}")
        for j in js:
            touch_j(a, j)
        a(f"L_qt{js[0]}:")

    ev, ex = {}, {}
    SJ = int(os.environ.get('SJ', '13'))
    acts = {SJ: [lambda: side_jobs(a, role)]}
    ex[SJ] = 4
    if role == 'F':
        for t in sorted(set(t for t in TS if 0 <= t < 16)):
            js = [j for j in range(len(TS)) if TS[j] == t]
            acts.setdefault(t, []).append(lambda js=js: ev_touch(js, False))
    ev = {t: (lambda l=l: [f() for f in l]) for t, l in acts.items()}
    pipeline(a, "qg", 16, NS, 2, dmas, reads, mfmas, None, kadv, setup=setup, events=ev, extras=ex, novm=(role == 'F'))
    a(f"s_mov_b32 s23, {f32bits(QSCALE)}\ns_nop 11")
    if role in ('PK', 'PV'):
        for i in range(8):
            a(f"v_cvt_pk_bf16_f32 v{F[0]+i}, v{AC2+2*i}, v{AC2+2*i+1}")
        a(f"v_add_u32 v3, s24, v9")
        for p in range(2):
            a(f"buffer_store_dwordx4 v[{F[0]+4*p}:{F[0]+4*p+3}], v3, s[12:15], 0 offen offset:{p*1024 + (2048 if role == 'PV' else 0)}")
    for i in range(16):
        a(f"v_mul_f32 v{AC+i}, s23, v{AC+i}")
    for i in range(8):
        a(f"v_cvt_pk_bf16_f32 v{Q0+i}, v{AC+2*i}, v{AC+2*i+1}")
    a(f"""
buffer_store_dwordx4 v[{Q0}:{Q0+3}], v9, s[12:15], s26 offen
buffer_store_dwordx4 v[{Q0+4}:{Q0+7}], v9, s[12:15], s26 offen offset:1024
s_waitcnt vmcnt({4 if role in ('PK', 'PV') else 2})
""")
    side_jobs2(a, role)


def side_jobs(a, role):
    T = 200
    a(f"""
v_lshlrev_b32 v6, 5, v2
s_lshr_b32 s31, s2, 6
s_lshl_b32 s31, s31, 5
s_and_b32 s23, s2, 31
s_add_u32 s31, s31, s23
s_bitcmp0_b32 s2, 5
s_cbranch_scc1 L_sj_emv{role}
s_lshl_b32 s64, s31, 3
s_add_u32 s64, s64, s22
s_sub_u32 s31, 2048, s64
s_lshl_b32 s23, s64, 11
s_lshl_b32 s31, s31, 11
s_mov_b32 s19, {512*2048}
buffer_load_dwordx4 v[{T}:{T+3}], v6, s[80:83], s23 offen
buffer_load_dwordx4 v[{T+4}:{T+7}], v6, s[80:83], s23 offen offset:16
buffer_load_dwordx4 v[{T+8}:{T+11}], v6, s[80:83], s31 offen
buffer_load_dwordx4 v[{T+12}:{T+15}], v6, s[80:83], s31 offen offset:16
buffer_load_dwordx4 v[{T+16}:{T+19}], v6, s[84:87], s19 offen
buffer_load_dwordx4 v[{T+20}:{T+23}], v6, s[84:87], s19 offen offset:16
s_branch L_sj_1{role}
L_sj_emv{role}:
s_lshl_b32 s64, s31, 2
s_add_u32 s64, s64, s22
s_cmp_ge_u32 s22, 4
s_cselect_b32 s64, 0x10000, s64
s_lshl_b32 s31, s31, 3
s_add_u32 s31, s31, s22
s_cmp_eq_u32 s31, 4
s_cselect_b32 s64, 512, s64
s_lshl_b32 s23, s64, 11
s_mov_b32 s19, {1024*2048}
buffer_load_dwordx4 v[{T}:{T+3}], v6, s[84:87], s23 offen
buffer_load_dwordx4 v[{T+4}:{T+7}], v6, s[84:87], s23 offen offset:16
buffer_load_dwordx4 v[{T+16}:{T+19}], v6, s[80:83], s19 offen
buffer_load_dwordx4 v[{T+20}:{T+23}], v6, s[80:83], s19 offen offset:16
L_sj_1{role}:
""")


def side_jobs2(a, role):
    T = 200
    o = T + 24
    a(f"""
v_lshlrev_b32 v6, 5, v2
v_mov_b32 v7, 0
s_bitcmp0_b32 s2, 5
s_cbranch_scc1 L_sj_emv2{role}
""")
    for j in range(8):
        a(f"""
v_lshlrev_b32 v{o+16}, 16, v{T+j}
v_and_b32 v{o+17}, 0xffff0000, v{T+j}
v_lshlrev_b32 v{o+18}, 16, v{T+8+j}
v_and_b32 v{o+19}, 0xffff0000, v{T+8+j}
v_add_f32 v{o+20}, v{o+16}, v{o+18}
v_add_f32 v{o+21}, v{o+17}, v{o+19}
v_sub_f32 v{o+22}, v{o+16}, v{o+18}
v_sub_f32 v{o+23}, v{o+17}, v{o+19}
v_cvt_pk_bf16_f32 v{o+j}, v{o+20}, v{o+21}
v_cvt_pk_bf16_f32 v{o+8+j}, v{o+22}, v{o+23}
v_dot2c_f32_bf16 v7, v{o+j}, v{T+16+j}
""")
    a(f"""
s_lshl_b32 s23, s64, 11
s_add_u32 s31, s23, {WS_XM}
s_add_u32 s23, s23, {WS_XP}
buffer_store_dwordx4 v[{o}:{o+3}], v6, s[12:15], s23 offen
buffer_store_dwordx4 v[{o+4}:{o+7}], v6, s[12:15], s23 offen offset:16
buffer_store_dwordx4 v[{o+8}:{o+11}], v6, s[12:15], s31 offen
buffer_store_dwordx4 v[{o+12}:{o+15}], v6, s[12:15], s31 offen offset:16
""")
    wave_sum(a, 7, 3)
    a(f"""
v_cvt_pk_bf16_f32 v7, v7, v7
s_lshl_b32 s23, s64, 1
s_add_u32 s23, s23, {WS_AT + 512*ATP}
v_mov_b32 v4, 0
s_mov_b64 exec, 1
buffer_store_short v7, v4, s[12:15], s23 offen
s_mov_b64 exec, -1
s_branch L_sj_done{role}
L_sj_emv2{role}:
s_cmp_gt_u32 s64, 512
s_cbranch_scc1 L_sj_done{role}
""")
    for j in range(8):
        a(f"v_dot2c_f32_bf16 v7, v{T+j}, v{T+16+j}")
    a("s_nop 3")
    wave_sum(a, 7, 3)
    a(f"""
v_mov_b32 v5, 0
v_cvt_pk_bf16_f32 v7, v7, v5
v_cmp_eq_u32 vcc, 0, v2
s_mul_i32 s23, s64, {ATP}
s_add_u32 s31, s23, {WS_BT + 2048}
s_add_u32 s23, s23, {WS_AT + 2048}
v_cndmask_b32 v7, v5, v7, vcc
v_lshlrev_b32 v4, 2, v2
s_mov_b32 exec_hi, 0
buffer_store_dword v7, v4, s[12:15], s23 offen
buffer_store_dword v5, v4, s[12:15], s31 offen
s_mov_b64 exec, -1
L_sj_done{role}:
""")


def kv_dma(a, g, i):
    a(f"s_add_u32 m0, s18, {(g % ANS)*ASTAGE + i*8192}\ns_mov_b32 s19, {g*ASTAGE}\nbuffer_load_dwordx4 v{12+i}, s[12:15], s19 offen lds")


def attention(a, tag, endlabel):
    wave_setup(a)
    stamp_begin(a)
    tl(a, 3)
    def hook():
        a(f"""
v_lshlrev_b32 v9, 4, v2
v_lshl_add_u32 v12, v1, 10, v9
v_add_u32 v12, {WS_KF}, v12
v_add_u32 v13, 8192, v12
v_add_u32 v14, 16384, v12
v_add_u32 v15, 24576, v12
""")
        for g in range(2):
            for i in range(4): kv_dma(a, g, i)
        a(f"""
v_and_b32 v5, 31, v2
v_and_b32 v4, 3, v1
v_lshl_add_u32 v4, v4, 5, v5
v_lshrrev_b32 v5, 5, v2
v_lshlrev_b32 v5, 4, v5
v_lshl_add_u32 v8, v4, 11, v5
v_lshrrev_b32 v5, 2, v1
v_lshl_add_u32 v8, v5, 6, v8
s_mov_b32 s28, {f32bits(THR1)}
s_mov_b32 s29, {f32bits(THR2)}
v_mov_b32 v10, v9
v_add_u32 v11, 65536, v9
""")
        stage1_setup(a)
        stage1_setup2(a)
        verify_setup(a)
        a(f"""
v_lshrrev_b32 v4, 2, v2
v_lshrrev_b32 v5, 4, v2
v_xor_b32 v4, v4, v5
v_and_b32 v4, 1, v4
v_cmp_eq_u32 vcc, 0, v4
v_mov_b32 v5, 0x3f803f80
s_nop 1
v_cndmask_b32 v{ONES}, 0, v5, vcc
v_mov_b32 v{ONES+1}, v{ONES}
v_mov_b32 v{ONES+2}, v{ONES}
v_mov_b32 v{ONES+3}, v{ONES}
""")
        for i in range(16): a(f"v_mov_b32 v{OB+i}, 0")
        for i in range(4): a(f"v_mov_b32 v{LB+i}, 0")
        a(f"v_mov_b32 v{VMAX}, 0")
    a(f"""
v_lshlrev_b32 v3, 4, v2
s_lshl_b32 s23, s2, 14
s_lshl_b32 s30, s22, 11
s_add_u32 s23, s23, s30
buffer_load_dwordx4 v[{Q0}:{Q0+3}], v3, s[12:15], s23 offen
buffer_load_dwordx4 v[{Q0+4}:{Q0+7}], v3, s[12:15], s23 offen offset:1024
""")
    hook()
    for b in range(2):
        for i in range(4): s1_dma(a, b, i)
    a("s_waitcnt vmcnt(12)\ns_barrier")
    a(f"ds_read_b128 {r(KF_,4)}, v10\nds_read_b128 {r(KF_+4,4)}, v10 offset:1024")
    a("s_waitcnt lgkmcnt(0)")
    a(mf32(SX, KF_, Q0, "0")); a(mf32(SX, KF_ + 4, Q0 + 4, SX))
    a(f"ds_read_b128 {r(KF_,4)}, v10 offset:4096\nds_read_b128 {r(KF_+4,4)}, v10 offset:{4096+1024}")
    a(f"ds_read_b128 {r(VF_+4,4)}, v10 offset:3072\nds_read_b128 {r(VF_,4)}, v10 offset:2048")
    a("s_nop 11")
    a(f"v_max3_f32 v5, v{SX}, v{SX+1}, v{SX+2}")
    for i in range(6): a(f"v_max3_f32 v5, v{SX+3+2*i}, v{SX+4+2*i}, v5")
    a(f"""
v_max_f32 v5, v{SX+15}, v5
v_mov_b32 v6, v5
s_nop 1
v_permlane32_swap_b32 v5, v6
s_nop 1
v_max_f32 v5, v5, v6
v_add_f32 v5, {f32bits(float(MARGIN))}, v5
""")
    for i in range(16): a(f"v_sub_f32 v{NEGM+i}, 0, v5")
    for i in range(16): a(f"v_sub_f32 v{SX+i}, v{SX+i}, v5")
    tl(a, 4)

    HK = {}

    def add(g, tt, slot, lines):
        HK.setdefault((g, tt), {}).setdefault(slot, []).extend(lines)
    BT_ = TPS - 2
    for g in range(NSTG):
        add(g, BT_, 'pre', ["s_waitcnt vmcnt(0)" + (" lgkmcnt(0)" if g == NSTG - 1 else ""), "s_barrier"])
        if g + 2 < NSTG:
            for i in range(4): add(g, BT_, i, cap(kv_dma, g + 2, i))
    add(0, 3, 'pre', ["s_waitcnt vmcnt(0)", "s_barrier"])

    def s1_step(g, tt, buf):
        add(g, tt, 'end', cap(s1_reads, buf))
        for i in range(4): add(g, tt + 1, f"m{i}", cap(s1_mfma, i))
    s1_step(0, 3, 0)
    for j in range(7):
        s1_step(j, BT_, (j + 1) & 1)
        if j + 2 <= 7:
            for i in range(4): add(j + 1, 0, i, cap(s1_dma, j & 1, i))
    add(7, 0, 'pre', f"""
s_and_b32 s27, s22, 1
s_lshr_b32 s25, s22, 1
s_and_b32 s23, s22, 3
s_lshl_b32 s23, s23, 13
s_cmp_ge_u32 s22, 4
s_cselect_b32 s30, 0, {S1B - (5 % ANS)*ASTAGE}
s_add_u32 s30, s30, {(5 % ANS)*ASTAGE}
s_add_u32 s23, s23, s30
v_add_u32 v{S1A}, s23, v9
s_lshl_b32 s23, s25, 11
s_lshl_b32 s30, s27, 13
s_add_u32 s23, s23, s30
v_add_u32 v{S1A+2}, s23, v9
v_add_u32 v{S1A+1}, {S1B}, v{S1A+2}
v_add_u32 v{S1A+2}, {(5 % ANS)*ASTAGE}, v{S1A+2}
""".strip().split("\n"))
    for j in range(8):
        add(7, 1 + j // 3, j % 3, [f"ds_write_b128 v{S1A}, v[{S1ACC+4*j}:{S1ACC+4*j+3}] offset:{j*1024}"])
    add(7, BT_, 'end', [f"ds_read_b128 v[{S1ACC+8*i+4*j}:{S1ACC+8*i+4*j+3}], v{S1A+1+i//2} offset:{(i%2)*16384+j*1024}" for i in range(4) for j in range(2)])
    def vchk(g, loads, AM):
        PEND[g] = (len(loads), AM)
        for i, ld_ in enumerate(loads):
            add(*((0, 4) if g == 0 else (g - 1, 7)), i, ld_)
            add(g, BT_, i, [f"v_mfma_f32_16x16x32_bf16 {r(VB+12+4*i,4)}, {r(AM,4)}, {r(VB+4*i,4)}, 0"])
            add(g, TPS - 1, i, [f"v_max3_f32 v{VMAX}, |v{VB+12+4*i}|, |v{VB+13+4*i}|, v{VMAX}", f"v_max3_f32 v{VMAX}, |v{VB+14+4*i}|, |v{VB+15+4*i}|, v{VMAX}"])
    ldn = lambda i, off: [f"buffer_load_dwordx4 v[{VB+4*i}:{VB+4*i+3}], v{VAD}, s[76:79], 0 offen offset:{off}"]
    vchk(0, [ldn(0, 0)], AMN)
    vchk(1, [ldn(0, 512), ldn(1, 1024), ldn(2, 1536)], AMN)
    vchk(2, [ldn(0, 2048), ldn(1, 2560)], AMN)
    vchk(3, [ldn(0, 3072), ldn(1, 3584)], AMN)
    add(3, 7, 'pre', cap(verify_w_switch))
    vchk(4, [[f"buffer_load_dwordx4 v[{VB+4*i}:{VB+4*i+3}], v{VAD}, s[84:87], s63 offen offset:{i*512}"] for i in range(2)]
         + [[f"buffer_load_dwordx4 v[{VB+8}:{VB+11}], v7, s[76:79], 0 offen"]], AMN)
    add(4, 7, 'pre', cap(verify_r_switch))
    ldr = lambda i: [f"buffer_load_dwordx4 v[{VB+4*i}:{VB+4*i+3}], v{VRV}, s[76:79], 0 offen", f"v_add_u32 v{VRV}, v{VRV}, v{VAD}"]
    vchk(5, [ldr(0), ldr(1), [f"buffer_load_dwordx4 v[{VB+8}:{VB+11}], v7, s[76:79], 0 offen"]], AMR)
    vchk(6, [ldr(0), ldr(1)], AMR)
    add(7, 0, 'pre', f"""
s_mov_b32 s23, {f32bits(VTOL)}
v_cmp_nle_f32 vcc, v{VMAX}, s23
s_add_u32 s30, s58, {WS_FLAG}
v_mov_b32 v4, 0
s_cmp_lg_u64 vcc, 0
s_cselect_b32 s23, 1, 0
v_mov_b32 v3, s23
s_mov_b64 exec, 1
buffer_store_byte v3, v4, s[12:15], s30 offen
s_mov_b64 exec, -1
""".strip().split("\n"))

    nx = 0
    for g in range(NSTG):
        Oold, Onew, lold, lnew = (OB, OA, LB, LA) if g % 2 == 0 else (OA, OB, LA, LB)
        for tt in range(TPS):
            X, Y = (SX, SY) if tt % 2 == 0 else (SY, SX)
            H = HK.get((g, tt), {})
            attn_tile(a, g, tt, X, Y, Oold if tt == 0 else Onew, Onew, lold if tt == 0 else lnew, lnew, H, nx)
            nx = sum(1 for k in ('m2', 3, 'end', 'm3') for ins in H.get(k, []) if ins.startswith("ds_"))
        a(f"""
s_nop 7
v_cmp_nlt_f32 vcc, v{lnew}, s28
s_nop 1
s_cbranch_vccnz L_{tag}{g}_slow
L_{tag}{g}_ret:
""")
    tl(a, 2)
    a(f"s_nop 3\nv_rcp_f32 v7, v{LB}\ns_add_u32 s31, s26, {WS_O}")
    for i in range(16):
        a(f"v_mul_f32 v{OB+i}, v7, v{OB+i}")
    for i in range(8): a(f"v_cvt_pk_bf16_f32 v{P_+i}, v{OB+2*i}, v{OB+2*i+1}")
    a("s_nop 1")
    for p in range(2):
        a(f"v_permlane32_swap_b32 v{P_+4*p}, v{P_+4*p+2}\nv_permlane32_swap_b32 v{P_+4*p+1}, v{P_+4*p+3}")
    for p in range(2):
        a(f"buffer_store_dwordx4 {r(P_+4*p,4)}, v8, s[12:15], s31 offen offset:{p*32}")
    for r_ in range(8):
        a(f"v_add_f32 v{S1ACC+r_}, v{S1ACC+r_}, v{S1ACC+8+r_}\nv_add_f32 v{S1ACC+16+r_}, v{S1ACC+16+r_}, v{S1ACC+24+r_}")
    for r_ in range(8):
        a(f"v_add_f32 v{S1ACC+r_}, v{S1ACC+r_}, v{S1ACC+16+r_}")
    pack8(a, 16, S1ACC)
    a(f"""
v_and_b32 v3, 31, v2
s_lshl_b32 s23, s27, 5
v_add_u32 v3, s23, v3
s_mov_b32 s23, {ATP}
v_mul_lo_u32 v3, v3, s23
v_lshrrev_b32 v4, 5, v2
v_lshl_add_u32 v3, v4, 4, v3
s_lshl_b32 s23, s25, 5
s_add_u32 s23, s23, s21
buffer_store_dwordx4 v[16:19], v3, s[12:15], s23 offen
""")
    stamp_end(a, 196608)
    tl(a, 5, True)
    a(f"s_branch {endlabel}")
    for g in range(NSTG):
        if g % 2 == 0:
            attn_slow(a, f"{tag}{g}", OB, OA, LB, LA, SX, (g % ANS) * ASTAGE, PEND.get(g + 1))
        else:
            attn_slow(a, f"{tag}{g}", OA, OB, LA, LB, SX, (g % ANS) * ASTAGE, PEND.get(g + 1))


def wave_sum(a, v, t):
    for sh in (8, 4, 2, 1):
        a(f"s_nop 1\nv_add_f32_dpp v{v}, v{v}, v{v} row_ror:{sh} row_mask:0xf bank_mask:0xf")
    a(f"""
v_mov_b32 v{t}, v{v}
s_nop 1
v_permlane16_swap_b32 v{v}, v{t}
s_nop 1
v_add_f32 v{v}, v{v}, v{t}
v_mov_b32 v{t}, v{v}
s_nop 1
v_permlane32_swap_b32 v{v}, v{t}
s_nop 1
v_add_f32 v{v}, v{v}, v{t}
""")


def small_gemm(a, tag, mode, pP, pR, nsteps, kstep, pre=None, xtra=0, events=None):
    NS, STAGE, nu = 4, 32768, 2
    t_dma_voff(a, DV, 1, pP)
    t_dma_voff(a, DV + 1, 1, pR)
    stride = 4

    def setup():
        a("""
s_and_b32 s26, s22, 1
s_lshr_b32 s24, s22, 2
s_and_b32 s27, s22, 2
s_lshl_b32 s27, s27, 1
s_lshl_b32 s28, s24, 7
""")
        t_read_addr(a, RA, nu, 28, 27, 0, NS, STAGE, stride)
        a("s_lshl_b32 s29, s26, 5\ns_add_u32 s28, s28, s29")
        t_read_addr(a, RA + 2, nu, 28, 27, 8192, NS, STAGE, stride)
        for i in range(32):
            a(f"v_mov_b32 v{ACC+i}, 0")

    def dmas(st):
        return [[f"s_add_u32 m0, s18, {st*STAGE}", "s_nop 0", f"buffer_load_dwordx4 v{DV}, s[4:7], s16 offen lds"],
                [f"s_add_u32 m0, s18, {st*STAGE+8192}", "s_nop 0", f"buffer_load_dwordx4 v{DV+1}, s[8:11], s17 offen lds"],
                [f"s_add_u32 m0, s18, {st*STAGE+16384}", "s_nop 0", f"buffer_load_dwordx4 v{DV}, s[36:39], s40 offen lds"],
                [f"s_add_u32 m0, s18, {st*STAGE+24576}", "s_nop 0", f"buffer_load_dwordx4 v{DV+1}, s[44:47], s41 offen lds"]]

    def reads(st, ul, fs):
        f = FR[fs]
        return [f"ds_read_b128 v[{f}:{f+3}], v{RA+st*stride+ul}",
                f"ds_read_b128 v[{f+4}:{f+7}], v{RA+st*stride+ul} offset:4096",
                f"ds_read_b128 v[{f+8}:{f+11}], v{RA+st*stride+2+ul}"]

    def mfmas(fs):
        f = FR[fs]
        return [f"v_mfma_f32_32x32x16_bf16 v[{ACC+16*mb}:{ACC+16*mb+15}], v[{f+4*mb}:{f+4*mb+3}], v[{f+8}:{f+11}], v[{ACC+16*mb}:{ACC+16*mb+15}]" for mb in range(2)]

    kadv = [f"s_add_u32 s{r_}, s{r_}, {kstep}" for r_ in (16, 17, 40, 41)]
    pipeline(a, tag, nsteps, NS, nu, dmas, reads, mfmas, None, kadv, pre=pre, setup=setup, xtra=xtra, events=events)
    small_epi(a, mode, ACC)


def small_epi(a, mode, AC):
    a("s_and_b32 s26, s22, 1")
    a("s_nop 15\ns_barrier")
    a(f"""
v_lshlrev_b32 v3, 4, v2
s_lshl_b32 s23, s22, 13
v_add_u32 v4, s23, v3
s_lshr_b32 s25, s22, 1
s_lshl_b32 s23, s25, 11
s_lshl_b32 s29, s26, 13
s_add_u32 s23, s23, s29
v_add_u32 v3, s23, v3
""")
    for j in range(8):
        a(f"ds_write_b128 v4, v[{AC+4*j}:{AC+4*j+3}] offset:{j*1024}")
    a("s_waitcnt lgkmcnt(0)\ns_barrier")
    for i in range(4):
        for j in range(2):
            a(f"ds_read_b128 v[{96+8*i+4*j}:{96+8*i+4*j+3}], v3 offset:{i*16384+j*1024}")
    a("s_waitcnt lgkmcnt(4)")
    for r_ in range(8):
        a(f"v_add_f32 v{64+r_}, v{96+r_}, v{104+r_}")
    a("s_waitcnt lgkmcnt(0)")
    for r_ in range(8):
        a(f"v_add_f32 v{72+r_}, v{112+r_}, v{120+r_}")
    if mode == 1:
        for r_ in range(8):
            a(f"v_add_f32 v{64+r_}, v{64+r_}, v{72+r_}")


def pack8(a, dst, src):
    for r_ in range(4):
        a(f"v_cvt_pk_bf16_f32 v{dst+r_}, v{src+2*r_}, v{src+2*r_+1}")
    a(f"s_nop 1\nv_permlane32_swap_b32 v{dst}, v{dst+2}\nv_permlane32_swap_b32 v{dst+1}, v{dst+3}")


S1ACC, S1F, S1A, S1D = 200, 232, 24, 68
S1B = ANS_BYTES = 98304


def stage1_setup(a):
    a(f"""
s_and_b32 s30, s2, 7
s_lshr_b32 s31, s2, 3
s_and_b32 s31, s31, 15
s_and_b32 s54, s30, 3
s_lshl_b32 s54, s54, 2
s_and_b32 s55, s31, 3
s_add_u32 s54, s54, s55
s_lshr_b32 s55, s30, 2
s_lshl_b32 s55, s55, 2
s_lshr_b32 s56, s31, 2
s_add_u32 s55, s55, s56
s_cmp_ge_u32 s2, 128
s_cselect_b32 s8, s52, s50
s_cselect_b32 s9, s53, s51
s_cselect_b32 s56, {WS_XM-WS_XP}, 0
s_cselect_b32 s57, {WS_BT-WS_AT}, 0
s_add_u32 s56, s56, {WS_XP}
s_add_u32 s57, s57, {WS_AT}
s_mov_b32 s10, {1024*2048}
s_mov_b32 s11, 0x00020000
""")
    srd(a, 4, 48, 49, WS_BYTES)
    a(f"""
s_lshl_b32 s40, s54, 17
s_add_u32 s40, s40, s56
s_add_u32 s42, s40, 128
s_lshl_b32 s41, s55, 17
s_add_u32 s43, s41, 128
s_mul_i32 s21, s55, {64*ATP}
s_add_u32 s21, s21, s57
s_lshl_b32 s23, s54, 7
s_add_u32 s21, s21, s23
""")
    t_dma_voff(a, S1D, 1, 2048)


def stage1_setup2(a):
    a("""
s_lshr_b32 s25, s22, 2
s_and_b32 s27, s22, 2
s_lshl_b32 s27, s27, 1
s_lshl_b32 s25, s25, 7
""")
    t_read_addr(a, S1A, 2, 25, 27, S1B, 2, 32768, 4)
    a("s_and_b32 s23, s22, 1\ns_lshl_b32 s23, s23, 5\ns_add_u32 s25, s25, s23")
    t_read_addr(a, S1A + 2, 2, 25, 27, S1B + 8192, 2, 32768, 4)
    for i in range(32):
        a(f"v_mov_b32 v{S1ACC+i}, 0")


def s1_dma(a, buf, i):
    if os.environ.get('NOS1'): return
    sr, so = ((4, 40), (8, 41), (4, 42), (8, 43))[i]
    a(f"s_add_u32 m0, s18, {S1B + buf*32768 + i*8192}\ns_nop 0\nbuffer_load_dwordx4 v{S1D}, s[{sr}:{sr+3}], s{so} offen lds\ns_add_u32 s{so}, s{so}, 256")


def s1_reads(a, buf):
    if os.environ.get('NOS1'): return
    for ul in range(2):
        f = S1F + 12 * ul
        a(f"""
ds_read_b128 v[{f}:{f+3}], v{S1A+buf*4+ul}
ds_read_b128 v[{f+4}:{f+7}], v{S1A+buf*4+ul} offset:4096
ds_read_b128 v[{f+8}:{f+11}], v{S1A+buf*4+2+ul}
""")


def s1_mfma(a, i):
    if os.environ.get('NOS1'): return
    ul, mb = i >> 1, i & 1
    f = S1F + 12 * ul
    c = S1ACC + 16 * mb
    a(f"v_mfma_f32_32x32x16_bf16 v[{c}:{c+15}], v[{f+4*mb}:{f+4*mb+3}], v[{f+8}:{f+11}], v[{c}:{c+15}]")


def stage1_store(a):
    a("s_waitcnt vmcnt(0) lgkmcnt(0)")
    small_epi(a, 1, S1ACC)
    pack8(a, 16, 64)
    a(f"""
v_and_b32 v3, 31, v2
s_lshl_b32 s23, s26, 5
v_add_u32 v3, s23, v3
s_mov_b32 s23, {ATP}
v_mul_lo_u32 v3, v3, s23
v_lshrrev_b32 v4, 5, v2
v_lshl_add_u32 v3, v4, 4, v3
s_lshl_b32 s23, s25, 5
s_add_u32 s23, s23, s21
buffer_store_dwordx4 v[16:19], v3, s[12:15], s23 offen
""")


def dot_loads(a, dst, srdA, soffA, srdB, soffB):
    for (d, sr, so) in ((dst, srdA, soffA), (dst + 12, srdB, soffB)):
        a(f"""
buffer_load_dwordx4 v[{d}:{d+3}], v10, s[{sr}:{sr+3}], s{so} offen
buffer_load_dwordx4 v[{d+4}:{d+7}], v10, s[{sr}:{sr+3}], s{so} offen offset:16
buffer_load_dwordx4 v[{d+8}:{d+11}], v11, s[{sr}:{sr+3}], s{so} offen
""")


def dot_compute(a, res, src, t):
    a(f"v_mov_b32 v{res}, 0")
    for i in range(12):
        a(f"v_dot2c_f32_bf16 v{res}, v{src+i}, v{src+12+i}")
    a("s_nop 3")
    wave_sum(a, res, t)


def edge_issue(a):
    srd(a, 64, 56, 57, 2048 * 4096)
    srd(a, 68, 48, 49, WS_BYTES)
    a(f"""
s_lshr_b32 s74, s2, 3
s_and_b32 s74, s74, 15
s_and_b32 s75, s2, 7
v_lshlrev_b32 v10, 5, v2
v_lshlrev_b32 v11, 4, v2
v_add_u32 v11, 2048, v11
v_mov_b32 v3, 0x7ffffff0
v_cmp_gt_u32 vcc, 8, v2
s_lshl_b32 s58, s74, 6
s_lshl_b32 s23, s75, 3
s_add_u32 s58, s58, s23
s_add_u32 s58, s58, s22
v_cndmask_b32 v11, v3, v11, vcc
s_lshl_b32 s59, s58, 12
s_mov_b32 s60, {WS_AT + 512*ATP}
s_lshl_b32 s61, s75, 6
s_lshl_b32 s23, s74, 2
s_add_u32 s61, s61, s23
s_add_u32 s61, s61, s22
s_cmp_ge_u32 s22, 4
s_cselect_b32 s61, 512, s61
s_mul_i32 s62, s61, {ATP}
s_add_u32 s62, s62, {WS_AT}
s_mov_b32 s63, {1024*4096}
s_lshr_b32 s75, s22, 2
s_lshl_b32 s23, s2, 3
s_add_u32 s23, s23, s22
s_cmp_eq_u32 s23, 4
s_cselect_b32 s75, 0, s75
s_cmp_lg_u32 s75, 0
s_cselect_b32 s62, 0x7fff0000, s62
s_cselect_b32 s63, 0x7fff0000, s63
""")


def edge_loads(a):
    flag_load(a, 212, 76, 48, 49)
    dot_loads(a, 164, 64, 59, 68, 60)
    dot_loads(a, 188, 64, 63, 68, 62)


def edge_finish(a):
    flag_test(a, 212)
    a("s_cbranch_scc1 L_edge_done")
    dot_compute(a, 160, 164, 3)
    dot_compute(a, 161, 188, 3)
    a(f"""
v_cvt_pk_bf16_f32 v160, v160, v161
v_lshrrev_b32 v161, 16, v160
s_mov_b64 exec, 3
s_sub_u32 s23, 2048, s58
v_mov_b32 v3, s58
v_mov_b32 v4, s23
v_cmp_eq_u32 vcc, 0, v2
s_nop 1
v_cndmask_b32 v3, v4, v3, vcc
v_lshlrev_b32 v3, 12, v3
buffer_store_short v160, v3, s[12:15], 0 offen offset:3072
s_sub_u32 s23, 1024, s61
v_mov_b32 v3, s61
v_mov_b32 v4, s23
s_nop 0
v_cndmask_b32 v3, v4, v3, vcc
v_lshlrev_b32 v3, 1, v3
v_add_u32 v3, {1024*4096 + 2048}, v3
s_cmp_eq_u32 s61, 0
s_cselect_b64 s[72:73], 1, 3
s_cmp_lg_u32 s75, 0
s_cselect_b64 s[72:73], 0, s[72:73]
s_mov_b64 exec, s[72:73]
s_cbranch_execz L_edge_done
buffer_store_short v161, v3, s[12:15], 0 offen
L_edge_done:
s_mov_b64 exec, -1
""")


def stage2(a):
    a(f"""
s_and_b32 s54, s30, 3
s_lshl_b32 s54, s54, 2
s_and_b32 s55, s31, 3
s_add_u32 s54, s54, s55
s_lshr_b32 s55, s30, 2
s_lshl_b32 s55, s55, 2
s_lshr_b32 s56, s31, 2
s_add_u32 s55, s55, s56
""")
    srd(a, 4, 48, 49, WS_BYTES)
    srd(a, 36, 48, 49, WS_BYTES)
    srd(a, 8, 50, 51, 2048 * 4096)
    srd(a, 44, 52, 53, 2048 * 4096)
    srd(a, 12, 34, 35, 2048 * 4096)
    a(f"""
s_mul_i32 s16, s55, {64*ATP}
s_add_u32 s40, s16, {WS_BT}
s_add_u32 s16, s16, {WS_AT}
s_lshl_b32 s17, s54, 18
s_mov_b32 s41, s17
""")
    wave_setup(a)
    flag_load(a, 212, 76, 48, 49)

    def pre():
        a("s_waitcnt vmcnt(12)")
        flag_test(a, 212)
        a("s_cbranch_scc1 L_k3_fb")

    small_gemm(a, "s2", 2, ATP, 4096, 17, 128, pre=pre)
    for r_ in range(8):
        a(f"v_sub_f32 v{80+r_}, v{64+r_}, v{72+r_}\nv_add_f32 v{88+r_}, v{64+r_}, v{72+r_}")
    pack8(a, 16, 80)
    pack8(a, 20, 88)
    a("s_nop 0")
    for r_ in range(4):
        a(f"v_alignbit_b32 v{24+r_}, v{19-r_}, v{19-r_}, 16")
        a(f"v_alignbit_b32 v{28+r_}, v{23-r_}, v{23-r_}, 16")
    a(f"""
v_and_b32 v3, 31, v2
s_lshl_b32 s23, s26, 5
s_lshl_b32 s29, s54, 6
s_add_u32 s23, s23, s29
v_add_u32 v3, s23, v3
v_sub_u32 v4, 2048, v3
v_lshlrev_b32 v3, 12, v3
v_lshlrev_b32 v4, 12, v4
v_lshrrev_b32 v5, 5, v2
v_lshlrev_b32 v5, 4, v5
s_lshl_b32 s23, s25, 5
s_lshl_b32 s29, s55, 7
s_add_u32 s23, s23, s29
v_add_u32 v5, s23, v5
v_add_u32 v6, v3, v5
v_add_u32 v7, v4, v5
v_sub_u32 v8, 4082, v5
v_add_u32 v9, v4, v8
v_add_u32 v8, v3, v8
buffer_store_dwordx4 v[16:19], v6, s[12:15], 0 offen offset:2048
buffer_store_dwordx4 v[20:23], v7, s[12:15], 0 offen offset:2048
v_cmp_ne_u32 vcc, 0, v5
s_and_saveexec_b64 s[64:65], vcc
buffer_store_dwordx4 v[28:31], v8, s[12:15], 0 offen
buffer_store_dwordx4 v[24:27], v9, s[12:15], 0 offen
s_andn2_b64 exec, s[64:65], exec
s_cbranch_execz L_s2_e2
buffer_store_dwordx3 v[28:30], v8, s[12:15], 0 offen
buffer_store_short v31, v8, s[12:15], 0 offen offset:12
buffer_store_dwordx3 v[24:26], v9, s[12:15], 0 offen
buffer_store_short v27, v9, s[12:15], 0 offen offset:12
L_s2_e2:
s_mov_b64 exec, s[64:65]
""")


def fold(a):
    wave_setup(a)
    srd(a, 4, 40, 41, 2048 * 2048)
    srd(a, 8, 44, 45, 1024 * 2048)
    a(f"""
v_lshlrev_b32 v6, 5, v2
s_lshl_b32 s16, s31, 5
s_lshl_b32 s23, s22, 2
s_add_u32 s16, s16, s23
s_mov_b32 s17, {512*2048}
buffer_load_dwordx4 v[8:11], v6, s[8:11], s17 offen
buffer_load_dwordx4 v[12:15], v6, s[8:11], s17 offen offset:16
""")
    for i in range(4):
        b = 16 + 16 * i
        a(f"""
s_add_u32 s23, s16, {i}
s_sub_u32 s24, 2048, s23
s_lshl_b32 s23, s23, 11
s_lshl_b32 s24, s24, 11
buffer_load_dwordx4 v[{b}:{b+3}], v6, s[4:7], s23 offen
buffer_load_dwordx4 v[{b+4}:{b+7}], v6, s[4:7], s23 offen offset:16
buffer_load_dwordx4 v[{b+8}:{b+11}], v6, s[4:7], s24 offen
buffer_load_dwordx4 v[{b+12}:{b+15}], v6, s[4:7], s24 offen offset:16
""")
    for i in range(4):
        b = 16 + 16 * i
        o = 96 + 16 * i
        a(f"s_waitcnt vmcnt({(3-i)*4 + 5*i})")
        a(f"v_mov_b32 v{88+i}, 0")
        for j in range(8):
            a(f"""
v_lshlrev_b32 v80, 16, v{b+j}
v_and_b32 v81, 0xffff0000, v{b+j}
v_lshlrev_b32 v82, 16, v{b+8+j}
v_and_b32 v83, 0xffff0000, v{b+8+j}
v_add_f32 v84, v80, v82
v_add_f32 v85, v81, v83
v_sub_f32 v86, v80, v82
v_sub_f32 v87, v81, v83
v_cvt_pk_bf16_f32 v{o+j}, v84, v85
v_cvt_pk_bf16_f32 v{o+8+j}, v86, v87
v_dot2c_f32_bf16 v{88+i}, v{o+j}, v{8+j}
""")
        a(f"""
s_add_u32 s23, s16, {i}
s_lshl_b32 s24, s23, 11
s_add_u32 s25, s24, {WS_XM}
s_add_u32 s24, s24, {WS_XP}
buffer_store_dwordx4 v[{o}:{o+3}], v6, s[12:15], s24 offen
buffer_store_dwordx4 v[{o+4}:{o+7}], v6, s[12:15], s24 offen offset:16
buffer_store_dwordx4 v[{o+8}:{o+11}], v6, s[12:15], s25 offen
buffer_store_dwordx4 v[{o+12}:{o+15}], v6, s[12:15], s25 offen offset:16
""")
        wave_sum(a, 88 + i, 3)
        a(f"""
v_cvt_pk_bf16_f32 v{88+i}, v{88+i}, v{88+i}
s_lshl_b32 s23, s23, 1
s_add_u32 s23, s23, {WS_AT + 512*ATP}
v_mov_b32 v4, 0
s_mov_b64 exec, 1
buffer_store_short v{88+i}, v4, s[12:15], s23 offen
s_mov_b64 exec, -1
""")


def edge_mv(a):
    wave_setup(a)
    srd(a, 4, 40, 41, 2048 * 2048)
    srd(a, 8, 44, 45, 513 * 2048)
    a(f"""
v_lshlrev_b32 v6, 5, v2
s_lshl_b32 s16, s31, 3
s_add_u32 s16, s16, s22
s_mul_i32 s16, s16, 9
s_mov_b32 s17, {1024*2048}
buffer_load_dwordx4 v[8:11], v6, s[4:7], s17 offen
buffer_load_dwordx4 v[12:15], v6, s[4:7], s17 offen offset:16
v_lshlrev_b32 v7, 2, v2
""")
    for i in range(9):
        b = 16 + 8 * i
        a(f"""
s_add_u32 s23, s16, {i}
s_lshl_b32 s23, s23, 11
buffer_load_dwordx4 v[{b}:{b+3}], v6, s[8:11], s23 offen
buffer_load_dwordx4 v[{b+4}:{b+7}], v6, s[8:11], s23 offen offset:16
""")
    a("s_waitcnt vmcnt(0)\nv_mov_b32 v5, 0")
    for i in range(9):
        b = 16 + 8 * i
        a(f"v_mov_b32 v{96+i}, 0")
        for j in range(8):
            a(f"v_dot2c_f32_bf16 v{96+i}, v{b+j}, v{8+j}")
        a("s_nop 3")
        wave_sum(a, 96 + i, 3)
        a(f"""
v_cvt_pk_bf16_f32 v{96+i}, v{96+i}, v5
v_cmp_eq_u32 vcc, 0, v2
s_add_u32 s23, s16, {i}
s_cmp_gt_u32 s23, 512
s_cbranch_scc1 L_emv_done
v_cndmask_b32 v{96+i}, v5, v{96+i}, vcc
s_mul_i32 s23, s23, {ATP}
s_add_u32 s24, s23, {WS_BT + 2048}
s_add_u32 s23, s23, {WS_AT + 2048}
s_mov_b32 exec_hi, 0
buffer_store_dword v{96+i}, v7, s[12:15], s23 offen
buffer_store_dword v5, v7, s[12:15], s24 offen
s_mov_b64 exec, -1
""")
    a("L_emv_done:")


VTOL = 2.0 ** -8 * 1.01
VMAX = 70
VB = 152


def cmp_dw(a, x, y, neg, rev=False):
    lo_y, hi_y = (f"v_and_b32 v5, 0xffff0000, v{y}", f"v_lshlrev_b32 v6, 16, v{y}") if rev else (f"v_lshlrev_b32 v5, 16, v{y}", f"v_and_b32 v6, 0xffff0000, v{y}")
    a(f"""
v_lshlrev_b32 v3, 16, v{x}
v_and_b32 v4, 0xffff0000, v{x}
{lo_y}
{hi_y}
v_fmac_f32 v3, s60, v5
v_fmac_f32 v4, s60, v6
v_max3_f32 v{VMAX}, |v3|, |v4|, v{VMAX}
""")


def verify_c_setup(a):
    a(f"""
s_bitcmp1_b32 s58, 0
s_cselect_b32 s76, s94, s92
s_cselect_b32 s77, s95, s93
s_cselect_b32 s60, 1.0, -1.0
s_mov_b32 s78, {2048*4096}
s_mov_b32 s79, 0x00020000
s_sub_u32 s62, 2048, s61
s_and_b32 s62, s62, 2047
s_lshl_b32 s61, s61, 12
s_lshl_b32 s62, s62, 12
""")


AMN, AMR, VAD, VRV = 192, 196, 69, 71


def verify_setup(a):
    a("s_lshl_b32 s58, s2, 3\ns_add_u32 s58, s58, s22\ns_lshr_b32 s61, s58, 1")
    verify_c_setup(a)
    a(f"""
s_bitcmp1_b32 s58, 0
s_mov_b32 s59, 0xbf80
s_cselect_b32 s59, 0x3f80, s59
v_and_b32 v3, 15, v2
v_bfe_u32 v4, v2, 4, 1
v_lshlrev_b32 v4, 3, v4
v_cmp_gt_u32 vcc, 32, v2
v_mov_b32 v5, s59
v_mov_b32 v6, 0x3f80
v_sub_u32 v7, 15, v3
v_cndmask_b32 v5, v5, v6, vcc
v_cndmask_b32 v7, v7, v3, vcc
v_sub_u32 v3, v3, v4
v_sub_u32 v7, v7, v4
""")
    for base, j in ((AMN, 3), (AMR, 7)):
        a(f"""
v_and_b32 v4, 1, v{j}
v_lshlrev_b32 v4, 4, v4
v_lshlrev_b32 v4, v4, v5
v_lshrrev_b32 v6, 1, v{j}
""")
        for r_ in range(4):
            a(f"v_cmp_eq_u32 vcc, {r_}, v6\ns_nop 1\nv_cndmask_b32 v{base+r_}, 0, v4, vcc")
    a(f"""
v_and_b32 v3, 15, v2
v_lshlrev_b32 v3, 5, v3
v_bfe_u32 v4, v2, 4, 1
v_lshlrev_b32 v4, 4, v4
v_add_u32 v5, v3, v4
v_sub_u32 v6, v4, v3
v_add_u32 v6, 4064, v6
v_add_u32 v7, 2, v5
v_cmp_gt_u32 vcc, 32, v2
v_mov_b32 v3, s62
v_mov_b32 v4, s61
v_cndmask_b32 v6, v6, v7, vcc
v_cndmask_b32 v3, v3, v4, vcc
v_add_u32 v{VRV}, s61, v6
v_add_u32 v{VAD}, v3, v5
s_mov_b32 s63, 0
""")


def verify_w_switch(a):
    a(f"""
s_bitcmp1_b32 s58, 0
s_cselect_b32 s84, s52, s50
s_cselect_b32 s85, s53, s51
s_mov_b32 s86, {1024*2048}
s_lshr_b32 s59, s58, 2
s_add_u32 s59, s59, 1
s_sub_u32 s63, 1024, s59
s_lshl_b32 s59, s59, 11
s_lshl_b32 s63, s63, 11
v_mov_b32 v3, s63
v_mov_b32 v4, s59
v_cmp_gt_u32 vcc, 32, v2
v_and_b32 v5, 15, v2
v_lshlrev_b32 v5, 5, v5
v_bfe_u32 v6, v2, 4, 1
v_lshl_add_u32 v5, v6, 4, v5
v_cndmask_b32 v3, v3, v4, vcc
v_add_u32 v{VAD}, v3, v5
s_and_b32 s63, s58, 2
s_lshl_b32 s63, s63, 9
""")
    srd(a, 80, 88, 89, 1024 * 2048)
    a(f"""
v_lshl_add_u32 v3, v0, 8, s2
v_lshlrev_b32 v3, 7, v3
buffer_load_dword v{VB+24}, v3, s[80:83], 0 offen
s_mov_b32 s87, 0x00020000
s_lshr_b32 s59, s58, 1
s_and_b32 s59, s59, 7
s_lshl_b32 s59, s59, 9
s_add_u32 s59, s59, {1024*4096}
v_add_u32 v7, s59, v5
""")


def verify_r_switch(a):
    a(f"""
v_mov_b32 v3, 512
v_mov_b32 v4, -512
v_cmp_gt_u32 vcc, 32, v2
s_lshr_b32 s59, s58, 1
s_sub_u32 s63, {1024*4096}, s61
s_and_b32 s23, s58, 0xfffffff9
v_cndmask_b32 v{VAD}, v4, v3, vcc
s_cmp_eq_u32 s23, 0
s_cselect_b32 s59, s59, 0
s_cselect_b32 s63, s63, 0
v_mul_lo_u32 v7, v{VAD}, s59
v_add3_u32 v7, v7, v{VRV}, s63
""")


def touch(a):
    a("""
s_load_dwordx8 s[32:39], s[0:1], 0
s_load_dwordx4 s[40:43], s[0:1], 64
s_sub_u32 s31, s2, 56
s_lshl_b32 s23, s31, 9
v_add_u32 v3, s23, v0
v_lshlrev_b32 v4, 7, v3
s_waitcnt lgkmcnt(0)
""")
    off = 0
    for i, (lo, nb) in enumerate(((36, 65536), (38, 65536), (32, 2048 * 2048), (34, 1024 * 2048), (40, 513 * 2048), (42, 512 * 2048))):
        srd(a, 4 + 4 * i, lo, lo + 1, nb)
        a(f"v_subrev_u32 v5, {off}, v4\nbuffer_load_dword v{10+i}, v5, s[{4+4*i}:{7+4*i}], 0 offen")
        off += (nb + 127) // 128 * 128
    assert off <= 200 * 512 * 128
    a("s_waitcnt vmcnt(0)")


def flag_load(a, vd, sr, lo, hi):
    srd(a, sr, lo, hi, 2048, WS_FLAG)
    a("v_and_b32 v3, 63, v0\nv_lshlrev_b32 v3, 4, v3\nv_add_u32 v4, 4096, v3")
    for j in range(2):
        a(f"buffer_load_dwordx4 v[{vd+4*j}:{vd+4*j+3}], v{3 + j//4}, s[{sr}:{sr+3}], 0 offen offset:{(j%4)*1024}")


def flag_test(a, vd):
    for j in range(1, 7, 2):
        a(f"v_or3_b32 v{vd}, v{vd}, v{vd+j}, v{vd+j+1}")
    a(f"v_or_b32 v{vd}, v{vd}, v{vd+7}")
    a(f"v_cmp_ne_u32 vcc, 0, v{vd}\ns_nop 1\ns_cmp_lg_u64 vcc, 0")


def g3(a):
    a("""
s_and_b32 s50, s30, 3
s_lshl_b32 s50, s50, 2
s_and_b32 s51, s31, 3
s_add_u32 s50, s50, s51
s_lshr_b32 s51, s30, 2
s_lshl_b32 s51, s51, 2
s_lshr_b32 s52, s31, 2
s_add_u32 s51, s51, s52
""")
    srd(a, 4, 40, 41, 2048 * 2048)
    a(f"""
s_cmp_ge_u32 s51, 4
s_cselect_b32 s8, s46, s44
s_cselect_b32 s9, s47, s45
s_cselect_b32 s20, {f32bits(-1.0)}, 1.0
s_mov_b32 s10, {1024*2048}
s_mov_b32 s11, 0x00020000
s_lshl_b32 s16, s50, 18
s_and_b32 s17, s51, 3
s_lshl_b32 s17, s17, 19
s_lshl_b32 s21, s51, 20
s_lshl_b32 s23, s50, 8
s_add_u32 s21, s21, s23
s_add_u32 s21, s21, {WS_AB}
""")
    gemm(a, "g3", 2, 4, 1, 'T', 2048, 2048, 16, 3, 4096, scale=True)


def touch2(a):
    a("""
v_lshl_add_u32 v3, v0, 8, s2
v_lshlrev_b32 v4, 7, v3
v_lshrrev_b32 v5, 5, v3
v_and_b32 v6, 31, v3
v_lshlrev_b32 v5, 12, v5
v_lshl_add_u32 v5, v6, 7, v5
v_mov_b32 v7, 0x7ffffff0
v_cmp_gt_u32 vcc, 17, v6
""")
    srd(a, 76, 88, 89, 1024 * 2048)
    a("v_cndmask_b32 v5, v7, v5, vcc\nbuffer_load_dword v196, v4, s[76:79], 0 offen")
    srd(a, 80, 92, 93, 1025 * 4096)
    a("buffer_load_dword v197, v5, s[80:83], 0 offen")
    srd(a, 84, 94, 95, 1025 * 4096)
    a("buffer_load_dword v198, v5, s[84:87], 0 offen")


def k1(a):
    kernel_header(a, "k1_kernel")
    a("""
s_cmp_ge_u32 s2, 256
s_cbranch_scc1 L_k1_end
s_load_dwordx4 s[32:35], s[0:1], 0
s_load_dwordx2 s[50:51], s[0:1], 64
s_load_dwordx2 s[52:53], s[0:1], 72
s_load_dwordx2 s[88:89], s[0:1], 32
s_load_dwordx4 s[92:95], s[0:1], 48
s_load_dwordx2 s[48:49], s[0:1], 96
s_load_dwordx4 s[64:67], s[0:1], 16
s_load_dwordx2 s[74:75], s[0:1], 40
s_load_dwordx2 s[90:91], s[0:1], 88
""")
    wave_setup(a)
    a(f"""
v_lshrrev_b32 v3, 3, v2
v_lshl_add_u32 v3, v1, 5, v3
v_bfe_u32 v4, v3, 1, 1
v_bfe_u32 v5, v2, 2, 1
v_xor_b32 v4, v4, v5
v_and_b32 v5, 3, v2
v_lshlrev_b32 v5, 4, v5
v_lshl_add_u32 v5, v4, 6, v5
v_lshl_add_u32 v6, v3, 11, v5
v_subrev_u32 v3, 64, v3
v_bfe_u32 v4, v3, 1, 3
v_and_b32 v5, 7, v2
v_xor_b32 v4, v4, v5
v_lshlrev_b32 v4, 4, v4
v_lshl_add_u32 v7, v3, 11, v4
v_lshlrev_b32 v8, 4, v2
v_cmp_gt_u32 vcc, 2, v1
v_mov_b32 v9, 64
v_mov_b32 v10, {8*2048}
v_cndmask_b32 v152, v7, v6, vcc
v_cndmask_b32 v9, v9, 0, vcc
v_cmp_lt_u32 vcc, 5, v1
v_mov_b32 v11, 1024
s_lshl_b32 s20, s22, 12
v_cndmask_b32 v152, v152, v8, vcc
v_cndmask_b32 v9, v9, 0, vcc
v_cndmask_b32 v10, v10, v11, vcc
v_xor_b32 v153, v152, v9
v_add_u32 v153, v153, v10
v_lshl_add_u32 v154, v10, 1, v152
v_lshl_add_u32 v155, v10, 1, v153
s_waitcnt lgkmcnt(0)
s_bitcmp1_b32 s2, 2
s_cselect_b32 s96, s66, s64
s_cselect_b32 s97, s67, s65
s_mov_b32 s98, 65536
s_mov_b32 s99, 0x00020000
s_cmp_lt_u32 s22, 6
s_cselect_b32 s96, s32, s96
s_cselect_b32 s97, s33, s97
s_cselect_b32 s98, {2048*2048}, s98
s_cmp_lt_u32 s22, 2
s_cselect_b32 s96, s34, s96
s_cselect_b32 s97, s35, s97
s_cselect_b32 s98, {1024*2048}, s98
""")
    TLK[0] = 0
    srd(a, 12, 48, 49, WS_BYTES)
    srd(a, 36, 34, 35, 1024 * 2048)
    srd(a, 44, 32, 33, 2048 * 2048)
    srd(a, 80, 74, 75, 2048 * 2048)
    srd(a, 84, 50, 51, 513 * 2048)
    tl(a, 0)
    a(f"""
s_and_b32 s30, s2, 7
s_lshr_b32 s31, s2, 3
s_and_b32 s54, s30, 3
s_lshl_b32 s54, s54, 2
s_and_b32 s55, s31, 3
s_add_u32 s54, s54, s55
s_lshr_b32 s55, s30, 2
s_lshl_b32 s55, s55, 3
s_lshr_b32 s56, s31, 2
s_add_u32 s55, s55, s56
s_lshl_b32 s16, s55, 7
s_lshl_b32 s17, s54, 18
s_add_u32 s26, s17, s16
s_cmp_lt_u32 s22, 2
s_cselect_b32 s16, s16, s17
s_mov_b32 s23, 128
s_cselect_b32 s17, {64*2048}, s23
s_cmp_ge_u32 s22, 6
s_cselect_b32 s16, 0, s16
s_cselect_b32 s17, 4096, s17
s_mov_b32 s5, 0
s_lshr_b32 s56, s55, 1
s_and_b32 s23, s55, 1
s_lshl_b32 s23, s23, 3
s_or_b32 s56, s56, s23
s_and_b32 s24, s56, 3
s_lshl_b32 s23, s54, 2
s_add_u32 s24, s24, s23
s_lshl_b32 s24, s24, 12
s_add_u32 s24, s24, {WS_KF}
s_lshl_b32 s26, s2, 14
s_lshl_b32 s23, s22, 11
s_add_u32 s26, s26, s23
s_cmp_ge_u32 s2, 128
s_cselect_b32 s8, s52, s50
s_cselect_b32 s9, s53, s51
s_mov_b32 s10, {512*2048}
s_mov_b32 s11, 0x00020000
""")

    def hook(role):
        if role == 'F':
            a(f"""
v_mov_b32 v248, 0
s_lshr_b32 s23, s2, 3
s_lshl_b32 s30, s23, 15
s_and_b32 s31, s2, 3
s_lshl_b32 s31, s31, 20
s_add_u32 s30, s30, s31
s_add_u32 s30, s30, 512
v_lshlrev_b32 v251, 7, v2
v_lshrrev_b32 v4, 2, v2
v_and_b32 v5, 3, v2
v_lshlrev_b32 v5, 7, v5
v_lshl_add_u32 v252, v4, 11, v5
v_lshrrev_b32 v4, 3, v2
v_and_b32 v5, 7, v2
v_lshlrev_b32 v5, 7, v5
v_lshl_add_u32 v253, v4, 11, v5
s_lshl_b32 s31, s23, 14
s_and_b32 s23, s2, 4
s_lshl_b32 s23, s23, 8
s_add_u32 s31, s31, s23
s_add_u32 s31, s31, {256*2048}
s_mov_b32 s100, s30
s_mov_b32 s101, s31
s_cmp_lg_u32 s22, 7
s_cbranch_scc1 L_not7
s_and_b32 s54, s2, 127
s_lshl_b32 s54, s54, 13
s_lshr_b32 s23, s2, 3
s_and_b32 s23, s23, 7
s_lshl_b32 s23, s23, 13
buffer_load_dword v249, v251, s[96:99], s23 offen
""")
            for j in range(len(TS)):
                if TS[j] < 0:
                    touch_j(a, j)
            a(f"""
L_not7:
""")
        a("v_lshlrev_b32 v9, 4, v2")
    a(f"""
s_cmp_ge_u32 s56, 8
s_cselect_b32 s23, 6, 7
s_cmp_ge_u32 s22, s23
s_cbranch_scc1 L_qg_F
s_cmp_ge_u32 s56, 8
s_cbranch_scc1 L_qg_D
s_and_b32 s23, s56, 3
s_cmp_lg_u32 s22, s23
s_cbranch_scc1 L_qg_D
s_cmp_ge_u32 s56, 4
s_cbranch_scc1 L_qg_PV
""")
    for role in ('PK', 'PV', 'F', 'D'):
        a(f"L_qg_{role}:")
        q_gemm(a, hook, role)
        if role != 'D':
            a("s_branch L_qg_done")
    a("L_qg_done:")
    tl(a, 5, True)
    a("L_k1_end:\ns_endpgm")


def k2(a):
    kernel_header(a, "k2_kernel")
    a("""
s_cmp_ge_u32 s2, 256
s_cbranch_scc1 L_k2_end
s_load_dwordx4 s[32:35], s[0:1], 0
s_load_dwordx2 s[50:51], s[0:1], 64
s_load_dwordx2 s[52:53], s[0:1], 72
s_load_dwordx2 s[88:89], s[0:1], 32
s_load_dwordx4 s[92:95], s[0:1], 48
s_load_dwordx2 s[48:49], s[0:1], 96
s_waitcnt lgkmcnt(0)
""")
    TLK[0] = 1
    tl(a, 0)
    srd(a, 12, 48, 49, WS_BYTES)
    srd(a, 36, 34, 35, 1024 * 2048)
    srd(a, 44, 32, 33, 2048 * 2048)
    a("""
s_and_b32 s30, s2, 7
s_lshr_b32 s31, s2, 3
s_and_b32 s54, s30, 3
s_lshl_b32 s54, s54, 2
s_and_b32 s55, s31, 3
s_add_u32 s54, s54, s55
s_lshr_b32 s55, s30, 2
s_lshl_b32 s55, s55, 3
s_lshr_b32 s56, s31, 2
s_add_u32 s55, s55, s56
s_lshl_b32 s16, s55, 7
s_lshl_b32 s17, s54, 18
s_add_u32 s26, s17, s16
""")
    attention(a, "at", "L_k2_end")
    a("L_k2_end:\ns_endpgm")


def k3(a):
    kernel_header(a, "k3_kernel")
    a("""
s_cmp_ge_u32 s2, 256
s_cbranch_scc1 L_k3_end
s_load_dwordx2 s[32:33], s[0:1], 32
s_and_b32 s30, s2, 1
s_and_b32 s31, s2, 2
s_lshl_b32 s31, s31, 1
s_or_b32 s30, s30, s31
s_lshr_b32 s31, s2, 7
s_lshl_b32 s31, s31, 1
s_or_b32 s30, s30, s31
s_and_b32 s31, s2, 0x78
s_or_b32 s30, s30, s31
s_and_b32 s31, s2, 4
s_lshl_b32 s31, s31, 5
s_or_b32 s2, s30, s31
s_load_dwordx2 s[34:35], s[0:1], 80
s_load_dwordx2 s[48:49], s[0:1], 96
s_load_dwordx4 s[56:59], s[0:1], 48
s_and_b32 s30, s2, 7
s_lshr_b32 s31, s2, 3
s_waitcnt lgkmcnt(0)
""")
    TLK[0] = 2
    tl(a, 0)
    a("""
s_cmp_ge_u32 s2, 128
s_cbranch_scc1 L_k3_s2
s_and_b32 s50, s30, 1
s_lshl_b32 s50, s50, 2
s_and_b32 s51, s31, 3
s_add_u32 s50, s50, s51
s_lshr_b32 s51, s30, 1
s_lshl_b32 s51, s51, 2
s_lshr_b32 s52, s31, 2
s_add_u32 s51, s51, s52
""")
    srd(a, 4, 32, 33, 1024 * 2048)
    srd(a, 8, 48, 49, 2048 * 2048, WS_O)
    srd(a, 12, 34, 35, 2048 * 4096)
    a("""
s_lshl_b32 s16, s50, 8
s_lshl_b32 s17, s51, 18
s_lshl_b32 s21, s51, 19
s_add_u32 s21, s21, s16
""")
    ES = int(os.environ.get('ES', '13'))
    tch = """
s_lshr_b32 s23, s30, 1
s_and_b32 s23, s23, 1
s_lshl_b32 s23, s23, 4
s_add_u32 s23, s23, s31
s_lshl_b32 s23, s23, 16
s_lshr_b32 s52, s30, 2
s_lshl_b32 s52, s52, 21
s_add_u32 s52, s52, s23
v_lshlrev_b32 v3, 7, v0
buffer_load_dword v220, v3, s[8:11], s52 offen
s_and_b32 s52, s30, 1
s_lshl_b32 s52, s52, 10
s_add_u32 s52, s52, s23
s_cmp_ge_u32 s22, 4
s_cselect_b32 s52, 0x7fff0000, s52
v_lshrrev_b32 v3, 3, v0
v_and_b32 v4, 7, v0
v_lshlrev_b32 v4, 7, v4
v_lshl_add_u32 v3, v3, 11, v4
buffer_load_dword v221, v3, s[4:7], s52 offen
"""
    gemm(a, "g5", 2, 2, 2, 'N', 2048, 2048, 16, 4, 4096, touch=((tch, 2) if os.environ.get('K3T') else None), events={ES: lambda: (edge_issue(a), edge_loads(a))}, extras={ES: 14})
    a("s_waitcnt vmcnt(" + os.environ.get('EW', '4') + ")")
    edge_finish(a)
    tl(a, 5, True)
    a("""
s_endpgm
L_k3_s2:
s_sub_u32 s31, s31, 16
s_mov_b32 s50, s56
s_mov_b32 s51, s57
s_mov_b32 s52, s58
s_mov_b32 s53, s59
""")
    stage2(a)
    tl(a, 5, True)
    a("""
s_endpgm
L_k3_fb:
s_load_dwordx2 s[40:41], s[0:1], 40
s_load_dwordx4 s[44:47], s[0:1], 64
s_load_dwordx2 s[90:91], s[0:1], 88
s_mov_b32 s36, s34
s_mov_b32 s37, s35
s_mov_b32 s32, s50
s_mov_b32 s33, s51
s_mov_b32 s34, s52
s_mov_b32 s35, s53
s_waitcnt vmcnt(0) lgkmcnt(0)
s_barrier
""")
    srd(a, 12, 48, 49, WS_BYTES)
    g3(a)
    a("""
s_waitcnt vmcnt(0) lgkmcnt(0)
s_barrier
s_cmp_lg_u32 s22, 0
s_cbranch_scc1 L_k3_gb2
buffer_wbl2 sc1
s_waitcnt vmcnt(0)
v_mov_b32 v3, 0
v_mov_b32 v4, 1
s_mov_b64 exec, 1
global_atomic_add v3, v4, s[90:91] sc1
s_waitcnt vmcnt(0)
L_k3_gb1:
s_sleep 8
global_load_dword v5, v3, s[90:91] sc1
s_waitcnt vmcnt(0)
v_readfirstlane_b32 s23, v5
s_nop 3
s_cmp_lt_u32 s23, 128
s_cbranch_scc1 L_k3_gb1
s_mov_b64 exec, -1
buffer_inv sc1
s_waitcnt vmcnt(0)
L_k3_gb2:
s_barrier
""")
    g4(a)
    a("L_k3_end:\ns_endpgm")


def V(n):
    return 256 if os.environ.get('TL') else n


def main():
    a = Asm()
    hdr = open("cdna_kernels/" + KN + ".s.ref").read().split("; Override launch")[0]
    launches = """; @launch kernel=k1_kernel grid=(256,1,1) block=(512,1,1) lds=131072
; @launch kernel=k2_kernel grid=(256,1,1) block=(512,1,1) lds=163840
; @launch kernel=k3_kernel grid=(256,1,1) block=(512,1,1) lds=147456
"""
    k1(a)
    k2(a)
    k3(a)
    out = hdr + launches + '.amdgcn_target "amdgcn-amd-amdhsa--gfx950"\n.text\n' + a.text()
    out += '.section .rodata,"a"\n.p2align 6\n' + kernel_desc("k1_kernel", V(256), 102) + ".p2align 6\n" + kernel_desc("k2_kernel", V(256)) + ".p2align 6\n" + kernel_desc("k3_kernel", V(248))
    open(sys.argv[1] if len(sys.argv) > 1 else "out.s", "w").write(out)


if __name__ == "__main__":
    main()
```
